```python
import torch

def _softmax(x, axis=-1):
    return torch.softmax(x, dim=axis)

def _gelu(x):
    return torch.nn.functional.gelu(x, approximate='tanh')

def _silu(x):
    return torch.nn.functional.silu(x)

def _sigmoid(x):
    return torch.sigmoid(x)

def _layernorm(x, axis=-1, eps=1e-05):
    m = x.mean(dim=axis, keepdim=True)
    v = x.var(dim=axis, keepdim=True, unbiased=False)
    return (x - m) / torch.sqrt(v + eps)

def _scatter_add(tgt, idx, src, axis=0):
    return tgt.clone().index_add_(axis, idx, src)

def _segment_sum(src, seg, n):
    out = torch.zeros((n,) + src.shape[1:], dtype=src.dtype)
    return out.index_add_(0, seg, src)

def _pad(x, pw):
    flat = tuple((v for pair in reversed(pw) for v in pair))
    return torch.nn.functional.pad(x, flat)
kernel_name = 'interleave_layers__memory_aug_recurrent_mem_tr__glu_gated_geglu__prompt'

def setup_inputs():

    _w = lambda a: (lambda t: t.to(torch.bfloat16) if t.is_floating_point() else t)(torch.as_tensor(a))

    def _A_setup():
        B, S, Dm = (1, 2048, 512)
        H, Dh = (32, 128)
        M, seg = (8, 32)
        seg = min(seg, S)
        S = S // seg * seg
        return {'x': _w((lambda *s: torch.randn(*s, dtype=torch.bfloat16) * 0.05)(B, S, Dm)), 'mem0': _w((lambda *s: torch.randn(*s, dtype=torch.bfloat16) * 0.4)(B, M, Dm)), 'Wq': _w((lambda *s: torch.randn(*s, dtype=torch.bfloat16) * 0.8)(Dm, H, Dh) * Dm ** (-0.5)), 'Wk': _w((lambda *s: torch.randn(*s, dtype=torch.bfloat16) * 0.8)(Dm, H, Dh) * Dm ** (-0.5)), 'Wv': _w((lambda *s: torch.randn(*s, dtype=torch.bfloat16) * 0.4)(Dm, H, Dh) * Dm ** (-0.5)), 'Wo': _w((lambda *s: torch.randn(*s, dtype=torch.bfloat16) * 0.4)(H, Dh, Dm) * (H * Dh) ** (-0.5)), 'seg_len': seg}
    _A_in = _A_setup()

    def _B_setup():
        B, S, Dm, Df = (1, 2048, 512, 1792)
        return {'x': _w((lambda *s: torch.randn(*s, dtype=torch.bfloat16) * 0.05)(B, S, Dm)), 'w_gate': _w((lambda *s: torch.randn(*s, dtype=torch.bfloat16) * 0.4)(Dm, Df) * Dm ** (-0.5)), 'w_up': _w((lambda *s: torch.randn(*s, dtype=torch.bfloat16) * 0.4)(Dm, Df) * Dm ** (-0.5)), 'w_down': _w((lambda *s: torch.randn(*s, dtype=torch.bfloat16) * 0.4)(Df, Dm) * Df ** (-0.5))}
    _B_in = _B_setup()
    return {'A_x': _A_in['x'], 'A_mem0': _A_in['mem0'], 'A_Wq': _A_in['Wq'], 'A_Wk': _A_in['Wk'], 'A_Wv': _A_in['Wv'], 'A_Wo': _A_in['Wo'], 'A_seg_len': _A_in['seg_len'], 'B_x': _B_in['x'], 'B_w_gate': _B_in['w_gate'], 'B_w_up': _B_in['w_up'], 'B_w_down': _B_in['w_down']}

def reference(A_x, A_mem0, A_Wq, A_Wk, A_Wv, A_Wo, A_seg_len, B_x, B_w_gate, B_w_up, B_w_down):

    def _A_ref(x, mem0, Wq, Wk, Wv, Wo, seg_len):
        B, S, Dm = x.shape
        H, Dh = (Wq.shape[1], Wq.shape[2])
        M = mem0.shape[1]
        scale = Dh ** (-0.5)
        n_seg = S // seg_len
        L = M + seg_len
        idx = torch.arange(L)
        mask = (idx[:, None] < M) | (idx[:, None] >= idx[None, :])
        mem = mem0
        outs = []
        for s in range(n_seg):
            xs = x[:, s * seg_len:(s + 1) * seg_len, :].clone()
            h = torch.concatenate([mem, xs], axis=1)
            q = torch.einsum('btd,dhe->bhte', h, Wq)
            k = torch.einsum('btd,dhe->bhte', h, Wk)
            v = torch.einsum('btd,dhe->bhte', h, Wv)
            scores = torch.einsum('bhqe,bhke->bhqk', q, k) * scale
            scores = torch.where(mask[None, None], scores, -1000000000.0)
            p = _softmax(scores, axis=-1)
            o = torch.einsum('bhqk,bhke->bhqe', p, v)
            o = torch.einsum('bhte,hed->btd', o, Wo)
            mem = o[:, :M, :].clone()
            outs.append(o[:, M:, :])
        return torch.concatenate(outs, axis=1)

    def _B_ref(x, w_gate, w_up, w_down):
        g = torch.einsum('bsd,df->bsf', x, w_gate)
        u = torch.einsum('bsd,df->bsf', x, w_up)
        h = _gelu(g) * u
        return torch.einsum('bsf,fd->bsd', h, w_down)
    x = A_x
    x = x + _A_ref(_layernorm(x, axis=-1), A_mem0, A_Wq, A_Wk, A_Wv, A_Wo, A_seg_len)
    x = x + _B_ref(_layernorm(x, axis=-1), B_w_gate, B_w_up, B_w_down)
    x = x + _A_ref(_layernorm(x, axis=-1), A_mem0, A_Wq, A_Wk, A_Wv, A_Wo, A_seg_len)
    x = x + _B_ref(_layernorm(x, axis=-1), B_w_gate, B_w_up, B_w_down)
    return x
```

```python
import re

REG_RE = re.compile(r'\b([vas])(\d+)\b|\b([vas])\[(\d+):(\d+)\]|\b(vcc|exec|m0|scc)(?:_lo|_hi)?\b')
TRANS = ('v_exp_f32', 'v_log_f32', 'v_rcp_f32', 'v_rsq_f32', 'v_sqrt_f32', 'v_sin_f32', 'v_cos_f32',
         'v_rcp_iflag_f32')


def regs_of(tok):
    out = []
    for m in REG_RE.finditer(tok):
        if m.group(1):
            out.append(m.group(1) + m.group(2))
        elif m.group(3):
            out += [m.group(3) + str(i) for i in range(int(m.group(4)), int(m.group(5)) + 1)]
        else:
            out.append(m.group(6))
    return out


def split_ops(s):
    ops, depth, cur = [], 0, ''
    for ch in s:
        if ch in '[(':
            depth += 1
        if ch in '])':
            depth -= 1
        if ch == ',' and depth == 0:
            ops.append(cur.strip())
            cur = ''
        else:
            cur += ch
    if cur.strip():
        ops.append(cur.strip())
    return ops


class Ins:
    __slots__ = ('text', 'op', 'kind', 'wr', 'rd', 'passes', 'A', 'B', 'C', 'D', 'trans', 'dpp', 'perm',
                 'rdlane', 'widestore', 'ldsdma', 'states', 'target', 'sdata')

    def __init__(self, text):
        self.text = text
        t = text.split(';')[0].strip()
        parts = t.split(None, 1)
        op = parts[0]
        rest = parts[1] if len(parts) > 1 else ''
        self.op = op
        ops = split_ops(rest)
        self.wr, self.rd = [], []
        self.passes = 0
        self.A = self.B = self.C = self.D = []
        self.trans = op.replace('_e32', '').replace('_e64', '') in TRANS
        self.dpp = ('row_' in rest or 'quad_perm' in rest or 'wave_' in rest or '_dpp' in op)
        self.perm = op.startswith('v_permlane')
        self.rdlane = op.startswith('v_readlane') or op.startswith('v_readfirstlane')
        self.widestore = False
        self.ldsdma = False
        self.states = 1
        self.target = None
        self.sdata = []
        R = [regs_of(o) for o in ops]
        if op.startswith('v_mfma') or op.startswith('v_smfmac'):
            self.kind = 'mfma'
            if '32x32' in op:
                self.passes = 8
            elif '16x16' in op:
                self.passes = 4
            else:
                raise ValueError(op)
            self.D = R[0]
            self.A = R[1]
            if op.startswith('v_smfmac'):
                self.B = R[2] + R[3]
                self.C = R[0]
            else:
                self.B = R[2]
                self.C = R[3]
            self.wr = list(self.D)
            self.rd = self.A + self.B + self.C
        elif op.startswith('v_'):
            self.kind = 'valu'
            if op.startswith('v_cmp'):
                self.wr = R[0]
                self.rd = sum(R[1:], [])
            elif self.perm:
                self.wr = R[0] + R[1]
                self.rd = R[0] + R[1]
            elif op.startswith(('v_add_co', 'v_sub_co', 'v_addc_co', 'v_subb_co', 'v_subrev_co')):
                self.wr = R[0] + R[1]
                self.rd = sum(R[2:], [])
            else:
                self.wr = R[0]
                self.rd = sum(R[1:], [])
                if op.startswith(('v_fmac', 'v_pk_fmac', 'v_dot2c', 'v_writelane')):
                    self.rd = self.rd + R[0]
                if self.dpp:
                    self.rd = self.rd + R[0]
                if op.startswith('v_cndmask') and len(ops) == 3:
                    self.rd = self.rd + ['vcc']
        elif op.startswith('buffer_') or op.startswith('global_'):
            self.kind = 'vmem'
            allr = sum(R, [])
            words = rest.replace(',', ' ').split()
            if 'lds' in words or '_lds_' in op:
                self.ldsdma = True
                self.rd = allr + ['m0']
            elif '_load_' in op:
                self.wr = R[0]
                self.rd = sum(R[1:], [])
                if 'd16' in op:
                    self.rd = self.rd + R[0]
            elif '_store_' in op:
                self.rd = allr
                d = R[0] if op.startswith('buffer_') else R[1]
                self.sdata = d
                if len(d) >= 3:
                    self.widestore = True
            elif '_atomic_' in op:
                self.rd = allr
                if 'sc0' in words:
                    self.wr = R[0]
            elif op in ('buffer_inv', 'buffer_wbl2'):
                pass
            else:
                raise ValueError(text)
        elif op.startswith('ds_'):
            self.kind = 'ds'
            if op.startswith(('ds_read', 'ds_bpermute', 'ds_permute', 'ds_swizzle')) or '_rtn' in op:
                self.wr = R[0]
                self.rd = sum(R[1:], [])
                if 'd16' in op:
                    self.rd = self.rd + R[0]
            else:
                self.rd = sum(R, [])
        elif op.startswith('s_'):
            self.kind = 'salu'
            if op == 's_nop':
                self.states = int(ops[0], 0) + 1
            elif op.startswith(('s_cbranch', 's_branch')):
                self.target = ops[0]
            elif op.startswith(('s_cmp', 's_bitcmp', 's_waitcnt', 's_barrier', 's_sleep', 's_endpgm',
                                's_setprio', 's_sethalt', 's_sendmsg')):
                self.rd = sum(R, [])
            else:
                self.wr = R[0] if R else []
                self.rd = sum(R[1:], [])
                if 'saveexec' in op:
                    self.wr = self.wr + ['exec']
        else:
            raise ValueError('unknown instr ' + text)


def need_between(p, c):
    n = 0
    pw = set(p.wr)
    if p.kind == 'valu':
        vw = {r for r in pw if r[0] in 'va' and r != 'vcc'}
        sw = {r for r in pw if r[0] == 's' or r == 'vcc'}
        if vw:
            if c.kind == 'mfma' and vw & set(c.rd):
                n = max(n, 2)
            if c.kind == 'valu':
                hit = vw & set(c.rd)
                if hit:
                    if c.perm or c.dpp:
                        n = max(n, 2)
                    if c.rdlane:
                        n = max(n, 1)
                    if p.trans:
                        n = max(n, 1)
        if sw:
            if c.kind == 'valu' and sw & set(c.rd):
                n = max(n, 4 if c.rdlane or c.op.startswith('v_writelane') else 2)
            if c.kind == 'vmem' and sw & set(c.rd):
                n = max(n, 5)
            if c.kind == 'salu' and sw & set(c.rd):
                n = max(n, 1)
        if 'exec' in pw:
            n = max(n, 5)
    if p.kind == 'mfma':
        D = set(p.D)
        big = {4: 8, 8: 12}[p.passes]
        if c.kind == 'mfma':
            if D & (set(c.A) | set(c.B)):
                n = max(n, big)
            if D & set(c.C):
                if not (c.C == p.D and c.passes == p.passes):
                    n = max(n, {4: 6, 8: 10}[p.passes])
            elif D & set(c.D):
                n = max(n, {4: 6, 8: 10}[p.passes])
        elif c.kind in ('valu', 'vmem', 'ds'):
            if D & (set(c.rd) | set(c.wr)):
                n = max(n, big)
        if c.kind == 'valu' and set(p.C) & set(c.wr):
            n = max(n, {4: 3, 8: 7}[p.passes])
    if p.kind == 'vmem' and p.widestore:
        if set(p.sdata) & set(c.wr):
            n = max(n, 2 if c.kind in ('valu', 'mfma') else 1)
    if p.kind == 'salu' and 'm0' in pw and c.ldsdma:
        n = max(n, 1)
    return n


class Asm:
    def __init__(self):
        self.items = []
        self.uid = 0

    def __call__(self, text):
        for line in text.strip().split('\n'):
            line = line.strip()
            if not line or line.startswith(';'):
                if line:
                    self.items.append(('t', '  ' + line))
                continue
            if line.endswith(':'):
                self.items.append(('l', line[:-1]))
            else:
                self.items.append(('i', Ins(line)))

    def label(self, name):
        self.items.append(('l', name))

    def newlabel(self, base='L'):
        self.uid += 1
        return f'{base}_{self.uid}'

    def raw(self, text):
        self.items.append(('t', text))

    WINDOW = 14

    def _required(self, hist, c):
        need = 0
        dist = 0
        for p in reversed(hist):
            if dist >= self.WINDOW:
                break
            n = need_between(p, c)
            if n > dist:
                need = max(need, n - dist)
            dist += p.states
        return need

    def resolve(self):
        out = []
        hist = []
        for kind, x in self.items:
            if kind == 'i':
                n = self._required(hist, x)
                while n > 0:
                    k = min(n, 16)
                    nop = Ins(f's_nop {k - 1}')
                    out.append(('i', nop))
                    hist.append(nop)
                    n -= k
                out.append((kind, x))
                hist.append(x)
                if x.op in ('s_branch', 's_endpgm'):
                    hist = []
                hist = hist[-40:]
            else:
                out.append((kind, x))
        changed = True
        while changed:
            changed = False
            labels = {x: i for i, (k, x) in enumerate(out) if k == 'l'}
            for i, (k, x) in enumerate(out):
                if k == 'i' and x.target is not None:
                    if x.target not in labels:
                        raise ValueError('unknown label ' + x.target)
                    h = []
                    j = i
                    while j >= 0 and len(h) < 20:
                        kk, y = out[j]
                        if kk == 'i':
                            if y is not x and y.op in ('s_branch', 's_endpgm'):
                                break
                            h.append(y)
                        j -= 1
                    h.reverse()
                    base = len(h)
                    j = labels[x.target]
                    dist = 0
                    worst = 0
                    while j < len(out) and dist < self.WINDOW:
                        kk, y = out[j]
                        if kk == 'i':
                            d = dist
                            for p in reversed(h[:base]):
                                if d >= self.WINDOW:
                                    break
                                n = need_between(p, y)
                                if n > d:
                                    worst = max(worst, n - d)
                                d += p.states
                            dist += y.states
                            if y.op in ('s_branch', 's_endpgm'):
                                break
                        j += 1
                    if worst > 0:
                        out.insert(i, ('i', Ins(f's_nop {worst - 1}')))
                        changed = True
                        break
        return out

    def text(self):
        lines = []
        for kind, x in self.resolve():
            if kind == 'i':
                lines.append('  ' + x.text)
            elif kind == 'l':
                lines.append(x + ':')
            else:
                lines.append(x)
        return '\n'.join(lines) + '\n'


def v(i, n=1):
    return f'v{i}' if n == 1 else f'v[{i}:{i + n - 1}]'


def a(i, n=1):
    return f'a{i}' if n == 1 else f'a[{i}:{i + n - 1}]'


def s(i, n=1):
    return f's{i}' if n == 1 else f's[{i}:{i + n - 1}]'
```

```python
MB = 1 << 20
WS_BYTES = 256 * MB

KA_X, KA_MEM0, KA_WQ, KA_WK, KA_WV, KA_WO = 0, 8, 16, 24, 32, 40
KA_WG, KA_WU, KA_WD = 64, 72, 80
KA_OUT, KA_DBG, KA_WS = 88, 96, 104

NSEG = 64

FLAGS = 0
FLAGS_BYTES = 1 * MB
ST_PROJ, ST_TEAM, ST_ATT, ST_OUT, ST_RL, ST_GU, ST_DN, ST_RL2 = range(8)


def flag_base(stage, layer):
    return FLAGS + (stage * 2 + layer) * 64 * 1024


TP = 1 * MB
TM = 3 * MB
TCTL = 3 * MB + 128 * 1024

XN = 4 * MB
XR = 12 * MB
KM = 20 * MB
VM = 28 * MB
QB = 36 * MB
KB = 68 * MB
VT = 100 * MB
OB = 132 * MB
PO = 148 * MB
HB = 180 * MB
PD = 188 * MB
WS_END = 204 * MB
```

```python
import struct
from asmdsl import v, a, s
from layout import *

S_WG, S_WAVE = 2, 3
SRD_WS, SRD_A, SRD_B, SRD_C, SRD_D = 4, 8, 12, 16, 20
SPIN_LIMIT = 1 << 17


def f32bits(x):
    return struct.unpack('<I', struct.pack('<f', x))[0]


def srd(i):
    return s(i, 4)


def load_srds(A, items):
    for sreg, off, nb in items:
        A(f's_load_dwordx2 {s(sreg, 2)}, s[0:1], {off}')
    A('s_waitcnt lgkmcnt(0)')
    for sreg, off, nb in items:
        A(f's_mov_b32 {s(sreg + 2)}, {nb}')
        A(f's_mov_b32 {s(sreg + 3)}, 0x00020000')


def wave_setup(A):
    A('v_lshrrev_b32 v3, 6, v0')
    A('v_and_b32 v2, 63, v0')
    A(f'v_readfirstlane_b32 {s(S_WAVE)}, v3')
    A('v_lshlrev_b32 v1, 4, v2')


def emit_signal(A, sflag, vone):
    A('s_mov_b64 exec, 1')
    A(f'buffer_store_dword {v(vone)}, off, {srd(SRD_WS)}, {s(sflag)} sc1')
    A('s_mov_b64 exec, -1')


def emit_poll_issue(A, vdst, voff, sflag):
    A(f'buffer_load_dword {v(vdst)}, {v(voff)}, {srd(SRD_WS)}, {s(sflag)} offen sc1')


def emit_poll_check(A, vdst):
    A(f'v_cmp_ne_u32 vcc, 0, {v(vdst)}')
    A('s_cmp_eq_u64 vcc, exec')


def emit_poll_block(A, vdst, voff, sflag, scnt, fail_label, sleep=2):
    top = A.newlabel('poll')
    done = A.newlabel('polld')
    A(f's_mov_b32 {s(scnt)}, 0')
    A.label(top)
    emit_poll_issue(A, vdst, voff, sflag)
    A('s_waitcnt vmcnt(0)')
    emit_poll_check(A, vdst)
    A(f's_cbranch_scc1 {done}')
    A(f's_sleep {sleep}')
    A(f's_add_u32 {s(scnt)}, {s(scnt)}, 1')
    A(f's_cmp_lt_u32 {s(scnt)}, {SPIN_LIMIT}')
    A(f's_cbranch_scc1 {top}')
    A(f's_branch {fail_label}')
    A.label(done)


G_W0, G_W1, G_IN, G_OUT, G_CNT, G_FIN, G_FOUT = 24, 25, 26, 27, 28, 29, 30
G_T0, G_T1, G_PREF, G_PEND, G_SPIN, G_M0 = 31, 32, 33, 34, 35, 36


def gemm_role(A, NK, mode, wstride, srd0, srd1, in_step, out_step, end_label, flags=None, sc1=True):
    vL16, vLane = 1, 2
    vT0, vT1, vT2 = 3, 4, 5
    vW, vTr, vRd, vOut, vOut2, vDma, vFl, vFv, vOne = 6, 7, 8, 9, 10, 11, 12, 13, 14
    D = 4
    R = D + 1
    FR = 16
    ACC = [40, 56]
    TMP = 72
    SC = ' sc1' if sc1 else ''
    phi_cols = mode != 'v'
    A(f'v_lshrrev_b32 {v(vT0)}, 2, {v(vLane)}')
    A(f's_mov_b32 {s(G_T0)}, {wstride}')
    A(f'v_mul_lo_u32 {v(vW)}, {v(vT0)}, {s(G_T0)}')
    A(f'v_and_b32 {v(vT0)}, 3, {v(vLane)}')
    A(f'v_lshl_add_u32 {v(vW)}, {v(vT0)}, 4, {v(vW)}')
    A(f'v_bfe_u32 {v(vT1)}, {v(vLane)}, 2, 2')
    A(f'v_lshrrev_b32 {v(vT2)}, 5, {v(vLane)}')
    A(f'v_lshl_add_u32 {v(vT1)}, {v(vT2)}, 3, {v(vT1)}')
    A(f'v_lshlrev_b32 {v(vTr)}, 6, {v(vT1)}')
    A(f'v_bfe_u32 {v(vT1)}, {v(vLane)}, 4, 1')
    A(f'v_lshl_add_u32 {v(vTr)}, {v(vT1)}, 5, {v(vTr)}')
    if phi_cols:
        A(f'v_and_b32 {v(vT1)}, 1, {v(vLane)}')
        A(f'v_lshl_add_u32 {v(vTr)}, {v(vT1)}, 4, {v(vTr)}')
        A(f'v_bfe_u32 {v(vT1)}, {v(vLane)}, 1, 1')
        A(f'v_lshl_add_u32 {v(vTr)}, {v(vT1)}, 3, {v(vTr)}')
    else:
        A(f'v_lshl_add_u32 {v(vTr)}, {v(vT0)}, 3, {v(vTr)}')
    A(f's_lshl_b32 {s(G_T0)}, {s(S_WAVE)}, 15')
    A(f'v_add_u32 {v(vTr)}, {s(G_T0)}, {v(vTr)}')
    A(f'v_mov_b32 {v(vOne)}, 1')
    rounds = [list(range(c, min(c + 8, NK))) for c in range(0, NK, 8)]

    def issue_round(r):
        A(f's_lshl_b32 {s(G_M0)}, {s(S_WAVE)}, 15')
        A(f's_add_u32 m0, {s(G_M0)}, {(r & 1) * 16384}')
        first = True
        for c in rounds[r]:
            for t in (0, 1):
                if not first:
                    A('s_add_u32 m0, m0, 1024')
                first = False
                sw = G_W0 if t == 0 else G_W1
                A(f'buffer_load_dwordx4 {v(vW)}, {srd(srd0 if t == 0 else srd1)}, {s(sw)} offen lds')
                A(f's_add_u32 {s(sw)}, {s(sw)}, {16 * wstride}')

    def read_round(r):
        for ci, c in enumerate(rounds[r]):
            for t in (0, 1):
                base = (r & 1) * 16384 + (ci * 2 + t) * 1024
                ar = (t * 32 + c) * 4
                A(f'ds_read_b64_tr_b16 {a(ar, 2)}, {v(vTr)} offset:{base}')
                A(f'ds_read_b64_tr_b16 {a(ar + 2, 2)}, {v(vTr)} offset:{base + 256}')
        A('s_waitcnt lgkmcnt(0)')

    nr = len(rounds)
    issue_round(0)
    if nr > 1:
        issue_round(1)
    for r in range(nr):
        nxt = 2 * len(rounds[r + 1]) if r + 1 < nr else 0
        A(f's_waitcnt vmcnt({nxt})')
        read_round(r)
        if r + 2 < nr:
            issue_round(r + 2)
    if mode == 'v':
        A(f'v_and_b32 {v(vT0)}, 0x33, {v(vLane)}')
        A(f'v_bfe_u32 {v(vT1)}, {v(vLane)}, 2, 1')
        A(f'v_lshl_or_b32 {v(vT0)}, {v(vT1)}, 3, {v(vT0)}')
        A(f'v_bfe_u32 {v(vT1)}, {v(vLane)}, 3, 1')
        A(f'v_lshl_or_b32 {v(vT0)}, {v(vT1)}, 2, {v(vT0)}')
        A(f'v_lshlrev_b32 {v(vRd)}, 4, {v(vT0)}')
        A(f'v_and_b32 {v(vT0)}, 31, {v(vLane)}')
        A(f'v_lshlrev_b32 {v(vOut)}, 4, {v(vT0)}')
        A(f'v_lshrrev_b32 {v(vT1)}, 5, {v(vLane)}')
        A(f'v_lshl_add_u32 {v(vOut)}, {v(vT1)}, 11, {v(vOut)}')
        A(f'v_add_u32 {v(vOut2)}, 4096, {v(vOut)}')
    else:
        A(f'v_mov_b32 {v(vRd)}, {v(vL16)}')
        if mode == 'part':
            A(f'v_bfe_u32 {v(vT0)}, {v(vLane)}, 2, 3')
            A(f'v_lshlrev_b32 {v(vOut)}, 13, {v(vT0)}')
            A(f'v_lshrrev_b32 {v(vT1)}, 5, {v(vLane)}')
            A(f'v_lshl_add_u32 {v(vOut)}, {v(vT1)}, 6, {v(vOut)}')
            A(f'v_and_b32 {v(vT0)}, 3, {v(vLane)}')
            A(f'v_lshl_add_u32 {v(vOut)}, {v(vT0)}, 4, {v(vOut)}')
        else:
            A(f'v_mov_b32 {v(vOut)}, {v(vL16)}')
    per_wave = NK // 4
    assert NK % 4 == 0
    A(f's_mul_i32 {s(G_T0)}, {s(S_WAVE)}, {per_wave * 1024}')
    A(f'v_add_u32 {v(vDma)}, {s(G_T0)}, {v(vL16)}')
    A(f's_mov_b32 {s(G_M0)}, {s(G_T0)}')
    if flags:
        A(f'v_min_u32 {v(vFl)}, {flags["n"] - 1}, {v(vLane)}')
        A(f'v_lshlrev_b32 {v(vFl)}, 2, {v(vFl)}')
    if mode == 'gu':
        c0 = -2.0 * 0.7978845608028654 * 1.4426950408889634
        A(f's_mov_b32 s40, {f32bits(c0 * 0.044715):#x}')
        A(f'v_mov_b32 {v(vT2)}, {f32bits(c0):#x}')

    def issue_dma():
        A(f's_mov_b32 m0, {s(G_M0)}')
        for j in range(per_wave):
            if j == 4:
                A('s_add_u32 m0, m0, 4096')
                A(f's_add_u32 {s(G_T1)}, {s(G_IN)}, 4096')
            so = G_IN if j < 4 else G_T1
            A(f'buffer_load_dwordx4 {v(vDma)}, {srd(SRD_WS)}, {s(so)} offen offset:{(j & 3) * 1024}{SC} lds')
        A(f's_add_u32 {s(G_IN)}, {s(G_IN)}, {in_step}')
        A(f's_xor_b32 {s(G_M0)}, {s(G_M0)}, 32768')

    NST = {'qk': 4, 'v': 4, 'gu': 2, 'part': 8}[mode]
    poll_in = bool(flags and flags.get('poll_in', True))
    fail = end_label
    A('s_barrier')
    if poll_in:
        emit_poll_block(A, vFv, vFl, G_FIN, G_SPIN, fail)
        A(f's_add_u32 {s(G_FIN)}, {s(G_FIN)}, {flags["fin_step"]}')
    issue_dma()
    A(f's_mov_b32 {s(G_PEND)}, 0')
    A('s_waitcnt vmcnt(0)')
    top = A.newlabel('gtop')
    A.label(top)
    A(f's_waitcnt vmcnt({NST})')
    A('s_barrier')
    A(f's_sub_u32 {s(G_CNT)}, {s(G_CNT)}, 1')
    if not poll_in:
        skip = A.newlabel('gnodma')
        A(f's_cmp_eq_u32 {s(G_CNT)}, 0')
        A(f's_cbranch_scc1 {skip}')
        issue_dma()
        A.label(skip)
    else:
        emit_poll_issue(A, vFv, vFl, G_FIN)

    def rd(c):
        A(f'ds_read_b128 {v(FR + (c % R) * 4, 4)}, {v(vRd)} offset:{c * 1024}')

    for c in range(D):
        rd(c)
    mid = NK // 2
    for c in range(NK):
        if c + D < NK:
            rd(c + D)
        A(f's_waitcnt lgkmcnt({min(D, NK - 1 - c)})')
        f = v(FR + (c % R) * 4, 4)
        for t in (0, 1):
            w = a((t * 32 + c) * 4, 4)
            cin = '0' if c == 0 else v(ACC[t], 16)
            if mode == 'v':
                A(f'v_mfma_f32_32x32x16_bf16 {v(ACC[t], 16)}, {f}, {w}, {cin}')
            else:
                A(f'v_mfma_f32_32x32x16_bf16 {v(ACC[t], 16)}, {w}, {f}, {cin}')
        if flags and c == mid:
            if poll_in:
                A('s_waitcnt vmcnt(0)')
            else:
                l0 = A.newlabel('gw')
                l1 = A.newlabel('gw')
                A(f's_cmp_eq_u32 {s(G_CNT)}, 0')
                A(f's_cbranch_scc1 {l0}')
                A(f's_waitcnt vmcnt({per_wave})')
                A(f's_branch {l1}')
                A.label(l0)
                A('s_waitcnt vmcnt(0)')
                A.label(l1)
            nosig = A.newlabel('gnosig')
            A(f's_cmp_eq_u32 {s(G_PEND)}, 0')
            A(f's_cbranch_scc1 {nosig}')
            emit_signal(A, G_FOUT, vOne)
            A(f's_add_u32 {s(G_FOUT)}, {s(G_FOUT)}, {flags["fout_step"]}')
            A(f's_mov_b32 {s(G_PEND)}, 0')
            A.label(nosig)
            if poll_in:
                nopf = A.newlabel('gnopf')
                A(f's_mov_b32 {s(G_PREF)}, 0')
                A(f's_cmp_eq_u32 {s(G_CNT)}, 0')
                A(f's_cbranch_scc1 {nopf}')
                emit_poll_check(A, vFv)
                A(f's_cbranch_scc0 {nopf}')
                issue_dma()
                A(f's_add_u32 {s(G_FIN)}, {s(G_FIN)}, {flags["fin_step"]}')
                A(f's_mov_b32 {s(G_PREF)}, 1')
                A.label(nopf)
    A(f'v_xor_b32 {v(vRd)}, 32768, {v(vRd)}')
    if mode in ('qk', 'v'):
        for t in (0, 1):
            for f in (0, 1):
                d = TMP + (t * 2 + f) * 4
                for j in range(4):
                    r0 = ACC[t] + f * 8 + 2 * j
                    A(f'v_cvt_pk_bf16_f32 {v(d + j)}, {v(r0)}, {v(r0 + 1)}')
                if mode == 'qk':
                    A(f'buffer_store_dwordx4 {v(d, 4)}, {v(vOut)}, {srd(SRD_WS)}, {s(G_OUT)} offen '
                      f'offset:{(t * 2 + f) * 1024}{SC}')
                else:
                    A(f'buffer_store_dwordx4 {v(d, 4)}, {v(vOut if f == 0 else vOut2)}, {srd(SRD_WS)}, '
                      f'{s(G_OUT)} offen offset:{t * 512}{SC}')
    elif mode == 'part':
        for t in (0, 1):
            for i4 in range(4):
                off = t * 512 + (i4 >> 1) * 256 + (i4 & 1) * 128
                A(f'buffer_store_dwordx4 {v(ACC[t] + i4 * 4, 4)}, {v(vOut)}, {srd(SRD_WS)}, {s(G_OUT)} offen '
                  f'offset:{off}{SC}')
    elif mode == 'gu':
        G, U = ACC
        T1 = TMP
        for f in (0, 1):
            idx = range(f * 8, f * 8 + 8)
            for i in idx:
                A(f'v_mul_f32 {v(T1 + i)}, {v(G + i)}, {v(G + i)}')
            for i in idx:
                A(f'v_fma_f32 {v(T1 + i)}, {v(T1 + i)}, s40, {v(vT2)}')
            for i in idx:
                A(f'v_mul_f32 {v(T1 + i)}, {v(T1 + i)}, {v(G + i)}')
            for i in idx:
                A(f'v_exp_f32 {v(T1 + i)}, {v(T1 + i)}')
            for i in idx:
                A(f'v_add_f32 {v(T1 + i)}, 1.0, {v(T1 + i)}')
            for i in idx:
                A(f'v_rcp_f32 {v(T1 + i)}, {v(T1 + i)}')
            for i in idx:
                A(f'v_mul_f32 {v(G + i)}, {v(G + i)}, {v(U + i)}')
            for i in idx:
                A(f'v_mul_f32 {v(T1 + i)}, {v(T1 + i)}, {v(G + i)}')
            d = TMP + 16 + f * 4
            for j in range(4):
                A(f'v_cvt_pk_bf16_f32 {v(d + j)}, {v(T1 + f * 8 + 2 * j)}, {v(T1 + f * 8 + 2 * j + 1)}')
            A(f'buffer_store_dwordx4 {v(d, 4)}, {v(vOut)}, {srd(SRD_WS)}, {s(G_OUT)} offen '
              f'offset:{f * 1024}{SC}')
    A(f's_add_u32 {s(G_OUT)}, {s(G_OUT)}, {out_step}')
    if flags:
        A(f's_mov_b32 {s(G_PEND)}, 1')
        last = A.newlabel('glast')
        A(f's_cmp_eq_u32 {s(G_CNT)}, 0')
        A(f's_cbranch_scc1 {last}')
        if poll_in:
            A(f's_cmp_eq_u32 {s(G_PREF)}, 1')
            A(f's_cbranch_scc1 {top}')
            A('s_waitcnt vmcnt(0)')
            emit_signal(A, G_FOUT, vOne)
            A(f's_add_u32 {s(G_FOUT)}, {s(G_FOUT)}, {flags["fout_step"]}')
            A(f's_mov_b32 {s(G_PEND)}, 0')
            emit_poll_block(A, vFv, vFl, G_FIN, G_SPIN, fail)
            A(f's_add_u32 {s(G_FIN)}, {s(G_FIN)}, {flags["fin_step"]}')
            issue_dma()
            A('s_waitcnt vmcnt(0)')
        A(f's_branch {top}')
        A.label(last)
        A('s_waitcnt vmcnt(0)')
        emit_signal(A, G_FOUT, vOne)
    else:
        A(f's_cmp_lg_u32 {s(G_CNT)}, 0')
        A(f's_cbranch_scc1 {top}')
    A(f's_branch {end_label}')


def rl_role(A, KBN, srd_xin, srd_xout, do_ln, steps, end_label, flags=None, sc1=True, xin_sc1=True,
            xout_sc1=True):
    R_P, R_XI, R_XO, R_XN, R_CNT, R_FIN, R_FOUT, R_T0, R_SPIN = 24, 25, 26, 27, 28, 29, 30, 31, 35
    vLane = 2
    vT0, vT1, vT2 = 3, 4, 5
    vP, vX, vN, vLw, vLr, vFl, vFv, vOne = 6, 7, 8, 9, 10, 11, 12, 13
    XB = 16
    XF = 20
    PK = 28
    ST = 32
    LD = 48
    SC = ' sc1' if sc1 else ''
    A(f'v_and_b32 {v(vT0)}, 3, v0')
    A(f'v_lshrrev_b32 {v(vT1)}, 2, v0')
    A(f'v_lshrrev_b32 {v(vT2)}, 1, {v(vT1)}')
    A(f'v_lshlrev_b32 {v(vP)}, 8, {v(vT2)}')
    A(f'v_and_b32 {v(vT2)}, 1, {v(vT1)}')
    A(f'v_lshl_add_u32 {v(vP)}, {v(vT2)}, 6, {v(vP)}')
    A(f'v_lshl_add_u32 {v(vP)}, {v(vT0)}, 4, {v(vP)}')
    A(f'v_lshlrev_b32 {v(vX)}, 10, {v(vT0)}')
    A(f'v_lshl_add_u32 {v(vX)}, {v(vT1)}, 4, {v(vX)}')
    A(f'v_lshlrev_b32 {v(vN)}, 9, {v(vT1)}')
    A(f'v_lshl_add_u32 {v(vN)}, {v(vT0)}, 4, {v(vN)}')
    A(f'v_lshlrev_b32 {v(vLr)}, 4, {v(vT0)}')
    A(f's_lshl_b32 {s(R_T0)}, {s(S_WAVE)}, 2')
    A(f'v_add_u32 {v(vLw)}, {s(R_T0)}, {v(vLr)}')
    A(f'v_mov_b32 {v(vOne)}, 1')
    A(f's_mov_b32 s40, 0xffff0000')
    if flags:
        A(f'v_min_u32 {v(vFl)}, {flags["n"] - 1}, {v(vLane)}')
        A(f'v_lshlrev_b32 {v(vFl)}, 2, {v(vFl)}')
    top = A.newlabel('rltop')
    A.label(top)
    if flags and flags.get('poll_in', True):
        emit_poll_block(A, vFv, vFl, R_FIN, R_SPIN, end_label, sleep=1)
        A(f's_add_u32 {s(R_FIN)}, {s(R_FIN)}, {flags["fin_step"]}')
    A(f'buffer_load_dwordx4 {v(XB, 4)}, {v(vX)}, {srd(srd_xin)}, {s(R_XI)} offen{" sc1" if xin_sc1 else ""}')
    A(f's_mov_b32 {s(R_T0)}, {s(R_P)}')
    for kb in range(KBN):
        for e in (0, 1):
            A(f'buffer_load_dwordx4 {v(LD + kb * 8 + e * 4, 4)}, {v(vP)}, {srd(SRD_WS)}, {s(R_T0)} offen '
              f'offset:{e * 128}{SC}')
        if kb + 1 < KBN:
            A(f's_add_u32 {s(R_T0)}, {s(R_T0)}, {NSEG * 65536}')

    def unpack(dst, src):
        for j in range(4):
            A(f'v_lshlrev_b32 {v(dst + 2 * j)}, 16, {v(src + j)}')
            A(f'v_and_b32 {v(dst + 2 * j + 1)}, s40, {v(src + j)}')

    def pack(dst, src):
        for j in range(4):
            A(f'v_cvt_pk_bf16_f32 {v(dst + j)}, {v(src + 2 * j)}, {v(src + 2 * j + 1)}')

    A(f's_waitcnt vmcnt({2 * KBN})')
    unpack(XF, XB)
    if KBN:
        for kb in range(1, KBN):
            A(f's_waitcnt vmcnt({2 * (KBN - 1 - kb)})')
            for j in range(8):
                A(f'v_add_f32 {v(LD + j)}, {v(LD + j)}, {v(LD + kb * 8 + j)}')
        pack(PK, LD)
        unpack(LD, PK)
        for j in range(8):
            A(f'v_add_f32 {v(XF + j)}, {v(XF + j)}, {v(LD + j)}')
        pack(PK, XF)
        A(f'buffer_store_dwordx4 {v(PK, 4)}, {v(vX)}, {srd(srd_xout)}, {s(R_XO)} offen'
          f'{" sc1" if xout_sc1 else ""}')
        if do_ln:
            unpack(XF, PK)

    def row_reduce(r, ldsoff):
        t = ST + 7
        A(f'v_add_f32_dpp {v(r)}, {v(r)}, {v(r)} row_ror:4 row_mask:0xf bank_mask:0xf')
        A(f'v_add_f32_dpp {v(r)}, {v(r)}, {v(r)} row_ror:8 row_mask:0xf bank_mask:0xf')
        A(f'v_mov_b32 {v(t)}, {v(r)}')
        A(f'v_permlane16_swap_b32 {v(r)}, {v(t)}')
        A(f'v_add_f32 {v(r)}, {v(r)}, {v(t)}')
        A(f'v_mov_b32 {v(t)}, {v(r)}')
        A(f'v_permlane32_swap_b32 {v(r)}, {v(t)}')
        A(f'v_add_f32 {v(r)}, {v(r)}, {v(t)}')
        A(f'ds_write_b32 {v(vLw)}, {v(r)} offset:{ldsoff}')
        A('s_waitcnt lgkmcnt(0)')
        A('s_barrier')
        A(f'ds_read_b128 {v(ST + 8, 4)}, {v(vLr)} offset:{ldsoff}')
        A('s_waitcnt lgkmcnt(0)')
        A(f'v_add_f32 {v(ST + 8)}, {v(ST + 8)}, {v(ST + 9)}')
        A(f'v_add_f32 {v(ST + 10)}, {v(ST + 10)}, {v(ST + 11)}')
        A(f'v_add_f32 {v(r)}, {v(ST + 8)}, {v(ST + 10)}')

    def round_bf16(r):
        A(f'v_cvt_pk_bf16_f32 {v(r)}, {v(r)}, {v(r)}')
        A(f'v_lshlrev_b32 {v(r)}, 16, {v(r)}')

    if do_ln:
        m, q = ST, ST + 1
        A(f'v_add_f32 {v(m)}, {v(XF)}, {v(XF + 1)}')
        A(f'v_add_f32 {v(q)}, {v(XF + 2)}, {v(XF + 3)}')
        A(f'v_add_f32 {v(ST + 2)}, {v(XF + 4)}, {v(XF + 5)}')
        A(f'v_add_f32 {v(ST + 3)}, {v(XF + 6)}, {v(XF + 7)}')
        A(f'v_add_f32 {v(m)}, {v(m)}, {v(q)}')
        A(f'v_add_f32 {v(ST + 2)}, {v(ST + 2)}, {v(ST + 3)}')
        A(f'v_add_f32 {v(m)}, {v(m)}, {v(ST + 2)}')
        row_reduce(m, 0)
        A(f'v_mul_f32 {v(m)}, {f32bits(1.0 / 512):#x}, {v(m)}')
        for j in range(8):
            A(f'v_sub_f32 {v(LD + j)}, {v(XF + j)}, {v(m)}')
        A(f'v_mul_f32 {v(q)}, {v(LD)}, {v(LD)}')
        for j in range(1, 8):
            A(f'v_fmac_f32 {v(q)}, {v(LD + j)}, {v(LD + j)}')
        row_reduce(q, 64)
        A(f'v_mul_f32 {v(q)}, {f32bits(1.0 / 512):#x}, {v(q)}')
        round_bf16(q)
        A(f'v_add_f32 {v(q)}, {f32bits(1e-5):#x}, {v(q)}')
        round_bf16(q)
        A(f'v_sqrt_f32 {v(q)}, {v(q)}')
        round_bf16(q)
        A(f'v_rcp_f32 {v(q)}, {v(q)}')
        round_bf16(m)
        for j in range(8):
            A(f'v_sub_f32 {v(LD + j)}, {v(XF + j)}, {v(m)}')
        pack(XB, LD)
        unpack(LD, XB)
        for j in range(8):
            A(f'v_mul_f32 {v(LD + j)}, {v(LD + j)}, {v(q)}')
        pack(XB, LD)
        A(f'buffer_store_dwordx4 {v(XB, 4)}, {v(vN)}, {srd(SRD_WS)}, {s(R_XN)} offen{SC}')
    if flags and flags.get('signal', True):
        A('s_waitcnt vmcnt(0)')
        emit_signal(A, R_FOUT, vOne)
        A(f's_add_u32 {s(R_FOUT)}, {s(R_FOUT)}, {flags["fout_step"]}')
    A(f's_add_u32 {s(R_P)}, {s(R_P)}, {steps["p"]}')
    A(f's_add_u32 {s(R_XI)}, {s(R_XI)}, {steps["x"]}')
    A(f's_add_u32 {s(R_XO)}, {s(R_XO)}, {steps["x"]}')
    A(f's_add_u32 {s(R_XN)}, {s(R_XN)}, {steps["xn"]}')
    A(f's_sub_u32 {s(R_CNT)}, {s(R_CNT)}, 1')
    A(f's_cmp_lg_u32 {s(R_CNT)}, 0')
    A(f's_cbranch_scc1 {top}')
    A(f's_branch {end_label}')


def att_role(A, segstep, end_label, flags=None, sc1=True):
    T_Q, T_K, T_V, T_KM, T_CNT, T_FIN, T_FOUT, T_VM, T_O, T_FPR, T_T0, T_SPIN = \
        24, 25, 26, 27, 28, 29, 30, 31, 32, 33, 34, 35
    vL16, vLane = 1, 2
    vT0, vT1, vT2 = 3, 4, 5
    vK, vKM, vV, vVM, vFl, vFv, vOne, vFp = 6, 7, 8, 9, 10, 11, 12, 13
    BIAS = 16
    QF, KF, KMF, VF, VMF = 32, 64, 96, 128, 160
    SX, SM = 176, 192
    PB = 208
    OA = 32
    OP = 220
    SC = ' sc1' if sc1 else ''
    scale_log2e = (128 ** -0.5) * 1.4426950408889634
    A(f'v_and_b32 {v(vT0)}, 0x13, {v(vLane)}')
    A(f'v_bfe_u32 {v(vT1)}, {v(vLane)}, 2, 1')
    A(f'v_lshl_or_b32 {v(vT0)}, {v(vT1)}, 3, {v(vT0)}')
    A(f'v_bfe_u32 {v(vT1)}, {v(vLane)}, 3, 1')
    A(f'v_lshl_or_b32 {v(vT0)}, {v(vT1)}, 2, {v(vT0)}')
    A(f'v_lshrrev_b32 {v(vT1)}, 5, {v(vLane)}')
    A(f'v_lshlrev_b32 {v(vK)}, 4, {v(vT0)}')
    A(f'v_lshl_add_u32 {v(vK)}, {v(vT1)}, 9, {v(vK)}')
    A(f'v_lshlrev_b32 {v(vV)}, 4, {v(vT0)}')
    A(f'v_lshl_add_u32 {v(vV)}, {v(vT1)}, 11, {v(vV)}')
    A(f'v_lshlrev_b32 {v(vVM)}, 3, {v(vT0)}')
    A(f'v_lshl_add_u32 {v(vVM)}, {v(vT1)}, 10, {v(vVM)}')
    A(f'v_and_b32 {v(vT2)}, 7, {v(vLane)}')
    A(f'v_lshlrev_b32 {v(vKM)}, 4, {v(vT2)}')
    A(f'v_lshl_add_u32 {v(vKM)}, {v(vT1)}, 7, {v(vKM)}')
    A(f'v_and_b32 {v(vT2)}, 31, {v(vLane)}')
    A(f'v_lshlrev_b32 {v(vT1)}, 3, {v(vT1)}')
    A(f'v_sub_u32 {v(vT2)}, {v(vT2)}, {v(vT1)}')
    A(f'v_mov_b32 {v(vT0)}, {f32bits(-1e30):#x}')
    for i in range(16):
        A(f'v_cmp_gt_i32 vcc, {16 * (i >> 3) + (i & 7)}, {v(vT2)}')
        A(f'v_cndmask_b32 {v(BIAS + i)}, 0, {v(vT0)}, vcc')
    for T in range(4):
        A(f'v_mov_b32 {v(VMF + T * 4 + 2)}, 0')
        A(f'v_mov_b32 {v(VMF + T * 4 + 3)}, 0')
    A(f'v_mov_b32 {v(PB + 10)}, 0')
    A(f'v_mov_b32 {v(PB + 11)}, 0')
    A(f'v_mov_b32 {v(vOne)}, 1')
    A(f's_mov_b32 s40, {f32bits(scale_log2e):#x}')
    if flags:
        A(f'v_min_u32 {v(vFl)}, {flags["n"] - 1}, {v(vLane)}')
        A(f'v_lshlrev_b32 {v(vFl)}, 2, {v(vFl)}')
        if flags.get('poll_proj'):
            A(f'v_min_u32 {v(vT0)}, 5, {v(vLane)}')
            A(f'v_lshrrev_b32 {v(vT1)}, 1, {v(vT0)}')
            A(f'v_lshlrev_b32 {v(vFp)}, 8, {v(vT1)}')
            A(f'v_and_b32 {v(vT0)}, 1, {v(vT0)}')
            A(f'v_lshl_add_u32 {v(vFp)}, {v(vT0)}, 2, {v(vFp)}')
    top = A.newlabel('atop')
    A.label(top)
    if flags and flags.get('poll_proj'):
        emit_poll_block(A, vFv, vFp, T_FPR, T_SPIN, end_label)
        A(f's_add_u32 {s(T_FPR)}, {s(T_FPR)}, {1024 * segstep}')

    def ld8(dst, voff, soff):
        A(f's_add_u32 {s(T_T0)}, {s(soff)}, 4096')
        for c in range(8):
            so = soff if c < 4 else T_T0
            A(f'buffer_load_dwordx4 {v(dst + c * 4, 4)}, {v(voff)}, {srd(SRD_WS)}, {s(so)} offen '
              f'offset:{(c & 3) * 1024}{SC}')

    ld8(KF, vK, T_K)
    ld8(QF, vL16, T_Q)
    A(f's_add_u32 {s(T_T0)}, {s(T_V)}, 4096')
    for T in range(4):
        for f in (0, 1):
            so = T_V if f == 0 else T_T0
            A(f'buffer_load_dwordx4 {v(VF + (T * 2 + f) * 4, 4)}, {v(vV)}, {srd(SRD_WS)}, {s(so)} offen '
              f'offset:{T * 512}{SC}')
    for c in range(8):
        A(f's_waitcnt vmcnt({8 + 7 - c})')
        cin = '0' if c == 0 else v(SX, 16)
        A(f'v_mfma_f32_32x32x16_bf16 {v(SX, 16)}, {v(KF + c * 4, 4)}, {v(QF + c * 4, 4)}, {cin}')
    if flags:
        emit_poll_block(A, vFv, vFl, T_FIN, T_SPIN, end_label, sleep=1)
        A(f's_add_u32 {s(T_FIN)}, {s(T_FIN)}, {1024 * segstep}')
    for c in range(8):
        A(f'buffer_load_dwordx4 {v(KMF + c * 4, 4)}, {v(vKM)}, {srd(SRD_WS)}, {s(T_KM)} offen '
          f'offset:{c * 256}{SC}')
    for T in range(4):
        A(f'buffer_load_dwordx2 {v(VMF + T * 4, 2)}, {v(vVM)}, {srd(SRD_WS)}, {s(T_VM)} offen '
          f'offset:{T * 256}{SC}')
    for i in range(16):
        A(f'v_fma_f32 {v(SX + i)}, {v(SX + i)}, s40, {v(BIAS + i)}')
    mx = vT0
    A(f'v_max3_f32 {v(mx)}, {v(SX)}, {v(SX + 1)}, {v(SX + 2)}')
    for i in range(3, 15, 2):
        A(f'v_max3_f32 {v(mx)}, {v(mx)}, {v(SX + i)}, {v(SX + i + 1)}')
    A(f'v_max_f32 {v(mx)}, {v(mx)}, {v(SX + 15)}')
    for c in range(8):
        A(f's_waitcnt vmcnt({4 + 7 - c})')
        cin = '0' if c == 0 else v(SM, 16)
        A(f'v_mfma_f32_32x32x16_bf16 {v(SM, 16)}, {v(KMF + c * 4, 4)}, {v(QF + c * 4, 4)}, {cin}')
    for i in range(4):
        A(f'v_mul_f32 {v(SM + i)}, s40, {v(SM + i)}')
    A(f'v_max3_f32 {v(mx)}, {v(mx)}, {v(SM)}, {v(SM + 1)}')
    A(f'v_max3_f32 {v(mx)}, {v(mx)}, {v(SM + 2)}, {v(SM + 3)}')
    A(f'v_mov_b32 {v(vT1)}, {v(mx)}')
    A(f'v_permlane32_swap_b32 {v(mx)}, {v(vT1)}')
    A(f'v_max_f32 {v(mx)}, {v(mx)}, {v(vT1)}')
    vals = [SX + i for i in range(16)] + [SM + i for i in range(4)]
    for r in vals:
        A(f'v_sub_f32 {v(r)}, {v(r)}, {v(mx)}')
    for r in vals:
        A(f'v_exp_f32 {v(r)}, {v(r)}')
    sm = vT1
    A(f'v_add_f32 {v(sm)}, {v(vals[0])}, {v(vals[1])}')
    A(f'v_add_f32 {v(vT2)}, {v(vals[2])}, {v(vals[3])}')
    for i in range(4, 20, 2):
        A(f'v_add_f32 {v(sm)}, {v(sm)}, {v(vals[i])}')
        A(f'v_add_f32 {v(vT2)}, {v(vT2)}, {v(vals[i + 1])}')
    A(f'v_add_f32 {v(sm)}, {v(sm)}, {v(vT2)}')
    A(f'v_mov_b32 {v(vT2)}, {v(sm)}')
    A(f'v_permlane32_swap_b32 {v(sm)}, {v(vT2)}')
    A(f'v_add_f32 {v(sm)}, {v(sm)}, {v(vT2)}')
    A(f'v_rcp_f32 {v(sm)}, {v(sm)}')
    for r in vals:
        A(f'v_mul_f32 {v(r)}, {v(r)}, {v(sm)}')
    for j in range(10):
        A(f'v_cvt_pk_bf16_f32 {v(PB + j)}, {v(vals[2 * j])}, {v(vals[2 * j + 1])}')
    A('s_waitcnt vmcnt(0)')
    for T in range(4):
        o = v(OA + T * 16, 16)
        A(f'v_mfma_f32_32x32x16_bf16 {o}, {v(VF + T * 8, 4)}, {v(PB, 4)}, 0')
        A(f'v_mfma_f32_32x32x16_bf16 {o}, {v(VF + T * 8 + 4, 4)}, {v(PB + 4, 4)}, {o}')
        A(f'v_mfma_f32_32x32x16_bf16 {o}, {v(VMF + T * 4, 4)}, {v(PB + 8, 4)}, {o}')
    A(f's_add_u32 {s(T_T0)}, {s(T_O)}, 4096')
    for T in range(4):
        for f in (0, 1):
            n = T * 2 + f
            d = KMF + n * 4
            for j in range(4):
                r0 = OA + T * 16 + f * 8 + 2 * j
                A(f'v_cvt_pk_bf16_f32 {v(d + j)}, {v(r0)}, {v(r0 + 1)}')
            so = T_O if n < 4 else T_T0
            A(f'buffer_store_dwordx4 {v(d, 4)}, {v(vL16)}, {srd(SRD_WS)}, {s(so)} offen '
              f'offset:{(n & 3) * 1024}{SC}')
    if flags:
        A('s_waitcnt vmcnt(0)')
        emit_signal(A, T_FOUT, vOne)
        A(f's_add_u32 {s(T_FOUT)}, {s(T_FOUT)}, {1024 * segstep}')
    for r, st in ((T_Q, 262144), (T_K, 262144), (T_V, 262144), (T_KM, 65536), (T_VM, 65536), (T_O, 262144)):
        A(f's_add_u32 {s(r)}, {s(r)}, {st * segstep}')
    A(f's_sub_u32 {s(T_CNT)}, {s(T_CNT)}, 1')
    A(f's_cmp_lg_u32 {s(T_CNT)}, 0')
    A(f's_cbranch_scc1 {top}')
    A(f's_branch {end_label}')
```

```python
from asmdsl import v, a, s
from layout import *
from roles import *

M_ME, M_K, M_V, M_KM, M_VM, M_TP, M_TM, M_CTL, M_FPR, M_FOUT = 24, 25, 26, 27, 28, 29, 30, 31, 32, 33
M_STEP, M_T0, M_T1, M_T2, M_SPIN = 34, 35, 36, 37, 38
M_PW, M_PR, M_MP, M_MRS, M_MRD = 39, 40, 41, 42, 43
SRD_M0 = 44
M_PUBX = 48
M_KMX = 50
M_ODD = 52
M_C = 54
M_KBUF = 55
M_PREF = 56
M_XCC = 57

L_WO = 0
L_MEM = 131072
L_KX = L_MEM + 8192
L_QK = L_KX + 16384
L_O = L_QK + 4096
L_END = L_O + 2048


def team_role(A, end_label, flags=None, force_slow=False, nsteps=NSEG, stamp=False):
    vL16, vLane = 1, 2
    vIdx, vWo, vMem, vQKw, vQr, vKMr, vOw, vHi, vPw, vPub, vKxD, vVx, vKMe, vVMe = range(3, 17)
    vFl = 17
    vOne = 0
    vTouch = 2
    vTa = 18
    vX0 = 19
    SEL = 20
    ONES = 24
    TMP = 28
    R1 = 32
    R2 = 64
    R3 = 88
    VX = 120
    WV = 128
    t0, t1, t2, t3 = TMP, TMP + 1, TMP + 2, TMP + 3

    vS, vZ, vCh, vWq, vWoD, vTr0, vTr1 = 32, 33, 34, 35, 36, 37, 38
    A(f'v_bfe_u32 {v(vS)}, {v(vLane)}, 2, 1')
    A(f'v_bfe_u32 {v(t0)}, {v(vLane)}, 5, 1')
    A(f'v_lshl_add_u32 {v(vS)}, {v(t0)}, 1, {v(vS)}')
    A(f'v_bfe_u32 {v(t0)}, {v(vLane)}, 4, 1')
    A(f'v_lshl_add_u32 {v(vS)}, {v(t0)}, 2, {v(vS)}')
    A(f'v_bfe_u32 {v(vZ)}, {v(vLane)}, 3, 1')
    A(f'v_and_b32 {v(vCh)}, 3, {v(vLane)}')
    A(f'v_lshlrev_b32 {v(t0)}, 1, {v(t0)}')
    A(f'v_xor_b32 {v(vCh)}, {v(vCh)}, {v(t0)}')
    A(f'v_lshl_add_u32 {v(t1)}, {v(vS)}, 4, {v(vZ)}')
    A(f'v_lshlrev_b32 {v(vWq)}, 13, {v(t1)}')
    A(f'v_lshl_add_u32 {v(vWq)}, {v(vCh)}, 4, {v(vWq)}')
    A(f'v_lshl_add_u32 {v(t1)}, {v(vZ)}, 3, {v(vS)}')
    A(f'v_lshlrev_b32 {v(vWoD)}, 10, {v(t1)}')
    A(f'v_lshl_add_u32 {v(vWoD)}, {v(vCh)}, 4, {v(vWoD)}')
    A(f'v_bfe_u32 {v(t0)}, {v(vLane)}, 2, 3')
    A(f'v_bfe_u32 {v(t1)}, {v(vLane)}, 5, 1')
    A(f'v_lshl_add_u32 {v(t0)}, {v(t1)}, 4, {v(t0)}')
    A(f'v_lshlrev_b32 {v(vTr0)}, 6, {v(t0)}')
    A(f'v_and_b32 {v(t0)}, 3, {v(vLane)}')
    A(f'v_lshl_add_u32 {v(vTr0)}, {v(t0)}, 3, {v(vTr0)}')
    A(f'v_bfe_u32 {v(t1)}, {v(vLane)}, 4, 1')
    A(f'v_lshl_add_u32 {v(vTr0)}, {v(t1)}, 5, {v(vTr0)}')
    A(f's_lshl_b32 {s(M_T0)}, {s(S_WAVE)}, 15')
    A(f'v_add_u32 {v(vTr0)}, {s(M_T0)}, {v(vTr0)}')
    A(f'v_xor_b32 {v(vTr1)}, 32, {v(vTr0)}')
    A(f'v_add_u32 {v(vWo)}, {s(M_T0)}, {v(vL16)}')

    A(f's_getreg_b32 {s(M_XCC)}, hwreg(HW_REG_XCC_ID)')
    A(f's_and_b32 {s(M_XCC)}, {s(M_XCC)}, 15')
    A(f's_add_u32 {s(M_XCC)}, {s(M_XCC)}, 1')
    A(f'v_mov_b32 {v(t0)}, {s(M_XCC)}')
    A(f's_lshl_b32 {s(M_T0)}, {s(M_ME)}, 2')
    A(f's_add_u32 {s(M_T0)}, {s(M_T0)}, {s(M_CTL)}')
    A('s_mov_b64 exec, 1')
    A(f'buffer_store_dword {v(t0)}, off, {srd(SRD_WS)}, {s(M_T0)} sc1')
    A('s_mov_b64 exec, -1')

    blocks = [(m, i) for m in range(3) for i in range(8)]
    groups = [blocks[g:g + 4] for g in range(0, 24, 4)]
    A(f's_lshl_b32 {s(M_T2)}, {s(M_ME)}, 8')
    A(f's_lshl_b32 {s(M_T0)}, {s(S_WAVE)}, 6')
    A(f's_add_u32 {s(M_T2)}, {s(M_T2)}, {s(M_T0)}')

    def issue_group(g):
        A(f's_lshl_b32 {s(M_T0)}, {s(S_WAVE)}, 15')
        A(f's_add_u32 m0, {s(M_T0)}, {(g & 1) * 16384}')
        first = True
        for (m, i) in groups[g]:
            A(f's_xor_b32 {s(M_T0)}, {s(S_WAVE)}, {i >> 1}')
            A(f's_lshl_b32 {s(M_T0)}, {s(M_T0)}, 20')
            A(f's_add_u32 {s(M_T0)}, {s(M_T0)}, {s(M_T2)}')
            A(f's_add_u32 {s(M_T0)}, {s(M_T0)}, {(i & 1) * 8 * 8192}')
            for d in range(4):
                if not first:
                    A('s_add_u32 m0, m0, 1024')
                first = False
                A(f'buffer_load_dwordx4 {v(vWq)}, {srd((SRD_A, SRD_B, SRD_C)[m])}, {s(M_T0)} offen lds')
                if d < 3:
                    A(f's_add_u32 {s(M_T0)}, {s(M_T0)}, {2 * 8192}')

    def wreg(m, t, i, n=8, off=0):
        r = (t * 8 + i) * 8 + off
        if m == 0:
            return a(r, n)
        if m == 1:
            return a(128 + r, n)
        return v(WV + r, n)

    def read_group(g):
        for bi, (m, i) in enumerate(groups[g]):
            base = (g & 1) * 16384 + bi * 4096
            for t in (0, 1):
                for half in (0, 1):
                    for pp in (0, 1):
                        A(f'ds_read_b64_tr_b16 {wreg(m, t, i, 2, half * 4 + pp * 2)}, '
                          f'{v(vTr0 if t == 0 else vTr1)} offset:{base + half * 2048 + pp * 512}')
        A('s_waitcnt lgkmcnt(0)')

    issue_group(0)
    issue_group(1)
    for g in range(6):
        A(f's_waitcnt vmcnt({16 if g < 5 else 0})')
        read_group(g)
        if g + 2 < 6:
            issue_group(g + 2)
    A(f's_lshl_b32 {s(M_T2)}, {s(M_ME)}, 17')
    A(f's_lshl_b32 {s(M_T0)}, {s(S_WAVE)}, 8')
    A(f's_add_u32 {s(M_T2)}, {s(M_T2)}, {s(M_T0)}')
    A(f's_lshl_b32 m0, {s(S_WAVE)}, 15')
    first = True
    for tp in range(4):
        for ks in range(2):
            for d in range(4):
                if not first:
                    A('s_add_u32 m0, m0, 1024')
                first = False
                A(f's_add_u32 {s(M_T0)}, {s(M_T2)}, {tp * 64 + (64 * ks + 16 * d) * 1024}')
                A(f'buffer_load_dwordx4 {v(vWoD)}, {srd(SRD_D)}, {s(M_T0)} offen lds')
    for b in range(8):
        A(f's_waitcnt vmcnt({28 - 4 * b})')
        for t in (0, 1):
            for half in (0, 1):
                for pp in (0, 1):
                    A(f'ds_read_b64_tr_b16 {v(64 + t * 8 + half * 4 + pp * 2, 2)}, '
                      f'{v(vTr0 if t == 0 else vTr1)} offset:{b * 4096 + half * 2048 + pp * 512}')
        A('s_waitcnt lgkmcnt(0)')
        for q in range(4):
            A(f'ds_write_b128 {v(vWo)}, {v(64 + q * 4, 4)} offset:{b * 4096 + q * 1024}')
        A('s_waitcnt lgkmcnt(0)')

    n_, G_, hi_, row_ = 32, 33, 34, 35
    A(f'v_and_b32 {v(n_)}, 15, {v(vLane)}')
    A(f'v_lshrrev_b32 {v(G_)}, 4, {v(vLane)}')
    A(f'v_and_b32 {v(hi_)}, 1, {v(vLane)}')
    A(f'v_lshrrev_b32 {v(row_)}, 1, {v(n_)}')
    A(f'v_cmp_eq_u32 {s(M_ODD, 2)}, 1, {v(hi_)}')
    A(f'v_mov_b32 {v(t0)}, 0x4444')
    A(f'v_mov_b32 {v(t1)}, 0xeeee')
    A(f'v_cndmask_b32 {v(vIdx)}, {v(t0)}, {v(t1)}, {s(M_ODD, 2)}')
    A(f's_lshl_b32 {s(M_T0)}, {s(S_WAVE)}, 11')
    A(f's_add_u32 {s(M_T0)}, {s(M_T0)}, {L_MEM}')
    A(f'v_add_u32 {v(vMem)}, {s(M_T0)}, {v(vL16)}')
    A(f'v_add_u32 {v(vHi)}, {L_KX}, {v(vL16)}')
    A(f'v_lshrrev_b32 {v(t0)}, 3, {v(n_)}')
    A(f'v_lshlrev_b32 {v(vQKw)}, 7, {v(t0)}')
    A(f'v_lshl_add_u32 {v(vQKw)}, {v(G_)}, 5, {v(vQKw)}')
    A(f'v_and_b32 {v(t0)}, 7, {v(n_)}')
    A(f'v_lshl_add_u32 {v(vQKw)}, {v(t0)}, 1, {v(vQKw)}')
    A(f's_lshl_b32 {s(M_T0)}, {s(S_WAVE)}, 9')
    A(f's_add_u32 {s(M_T0)}, {s(M_T0)}, {L_QK}')
    A(f'v_add_u32 {v(vQKw)}, {s(M_T0)}, {v(vQKw)}')
    A(f'v_lshl_add_u32 {v(t0)}, {v(G_)}, 3, {v(row_)}')
    A(f'v_lshlrev_b32 {v(vQr)}, 4, {v(t0)}')
    A(f'v_add_u32 {v(vQr)}, {L_QK}, {v(vQr)}')
    A(f'v_lshrrev_b32 {v(t0)}, 2, {v(n_)}')
    A(f'v_lshl_add_u32 {v(t0)}, {v(t0)}, 1, {v(hi_)}')
    A(f'v_lshl_add_u32 {v(t1)}, {v(G_)}, 3, {v(t0)}')
    A(f'v_lshlrev_b32 {v(vKMe)}, 4, {v(t1)}')
    A(f'v_add_u32 {v(vKMr)}, {L_QK + 2048}, {v(vKMe)}')
    A(f's_lshl_b32 {s(M_T0)}, {s(S_WAVE)}, 9')
    A(f'v_add_u32 {v(vKMe)}, {s(M_T0)}, {v(vKMe)}')
    A(f'v_and_b32 {v(t0)}, 2, {v(n_)}')
    A(f'v_cmp_eq_u32 {s(M_KMX, 2)}, 0, {v(t0)}')
    A(f'v_lshlrev_b32 {v(vOw)}, 8, {v(hi_)}')
    A(f'v_lshl_add_u32 {v(vOw)}, {v(row_)}, 5, {v(vOw)}')
    A(f'v_lshl_add_u32 {v(vOw)}, {v(G_)}, 3, {v(vOw)}')
    A(f's_add_u32 {s(M_T0)}, {s(M_T0)}, {L_O}')
    A(f'v_add_u32 {v(vOw)}, {s(M_T0)}, {v(vOw)}')
    A(f'v_lshrrev_b32 {v(t0)}, 2, {v(n_)}')
    A(f'v_lshlrev_b32 {v(vPw)}, 14, {v(t0)}')
    A(f'v_lshl_add_u32 {v(vPw)}, {v(G_)}, 12, {v(vPw)}')
    A(f'v_and_b32 {v(t0)}, 3, {v(n_)}')
    A(f'v_lshl_add_u32 {v(vPw)}, {v(t0)}, 4, {v(vPw)}')
    A(f's_lshl_b32 {s(M_T0)}, {s(S_WAVE)}, 16')
    A(f'v_add_u32 {v(vPw)}, {s(M_T0)}, {v(vPw)}')
    A(f'v_bfe_u32 {v(t0)}, {v(n_)}, 1, 1')
    A(f'v_lshlrev_b32 {v(vPub)}, 8, {v(t0)}')
    A(f'v_lshl_add_u32 {v(vPub)}, {v(hi_)}, 4, {v(vPub)}')
    A(f'v_and_b32 {v(t0)}, 1, {v(G_)}')
    A(f'v_lshl_add_u32 {v(vPub)}, {v(t0)}, 3, {v(vPub)}')
    A(f's_lshr_b32 {s(M_T0)}, {s(M_ME)}, 1')
    A(f's_lshl_b32 {s(M_T0)}, {s(M_T0)}, 9')
    A(f's_and_b32 {s(M_T1)}, {s(M_ME)}, 1')
    A(f's_lshl_b32 {s(M_T1)}, {s(M_T1)}, 7')
    A(f's_add_u32 {s(M_T0)}, {s(M_T0)}, {s(M_T1)}')
    A(f's_lshl_b32 {s(M_T1)}, {s(S_WAVE)}, 5')
    A(f's_add_u32 {s(M_T0)}, {s(M_T0)}, {s(M_T1)}')
    A(f'v_add_u32 {v(vPub)}, {s(M_T0)}, {v(vPub)}')
    A(f's_mov_b32 {s(M_PUBX)}, 0x000f000f')
    A(f's_mov_b32 {s(M_PUBX + 1)}, 0')
    A(f'v_lshrrev_b32 {v(t0)}, 2, {v(n_)}')
    A(f'v_lshlrev_b32 {v(vKxD)}, 7, {v(t0)}')
    A(f'v_and_b32 {v(t0)}, 3, {v(n_)}')
    A(f'v_lshl_add_u32 {v(vKxD)}, {v(t0)}, 4, {v(vKxD)}')
    A(f'v_lshl_add_u32 {v(vKxD)}, {v(G_)}, 9, {v(vKxD)}')
    A(f's_lshl_b32 {s(M_T0)}, {s(S_WAVE)}, 11')
    A(f'v_add_u32 {v(vKxD)}, {s(M_T0)}, {v(vKxD)}')
    A(f'v_lshlrev_b32 {v(vVx)}, 11, {v(G_)}')
    A(f'v_lshl_add_u32 {v(vVx)}, {v(n_)}, 4, {v(vVx)}')
    A(f's_lshl_b32 {s(M_T0)}, {s(S_WAVE)}, 9')
    A(f'v_add_u32 {v(vVx)}, {s(M_T0)}, {v(vVx)}')
    A(f'v_lshrrev_b32 {v(t0)}, 1, {v(G_)}')
    A(f'v_lshlrev_b32 {v(vVMe)}, 10, {v(t0)}')
    A(f'v_lshl_add_u32 {v(vVMe)}, {v(n_)}, 3, {v(vVMe)}')
    A(f'v_and_b32 {v(t0)}, 1, {v(G_)}')
    A(f'v_lshl_add_u32 {v(vVMe)}, {v(t0)}, 2, {v(vVMe)}')
    A(f's_lshl_b32 {s(M_T0)}, {s(S_WAVE)}, 8')
    A(f'v_add_u32 {v(vVMe)}, {s(M_T0)}, {v(vVMe)}')
    A(f'v_lshlrev_b32 {v(vTa)}, 7, {v(n_)}')
    A(f's_lshl_b32 {s(M_T0)}, {s(S_WAVE)}, 11')
    A(f'v_add_u32 {v(vTa)}, {s(M_T0)}, {v(vTa)}')
    for u in range(4):
        A(f'v_cmp_eq_u32 vcc, {2 * u}, {v(n_)}')
        A(f'v_mov_b32 {v(t0)}, 0x3f80')
        A(f'v_cndmask_b32 {v(SEL + u)}, 0, {v(t0)}, vcc')
        A(f'v_cmp_eq_u32 vcc, {2 * u + 1}, {v(n_)}')
        A(f'v_mov_b32 {v(t0)}, 0x3f800000')
        A(f'v_cndmask_b32 {v(SEL + u)}, {v(SEL + u)}, {v(t0)}, vcc')
        A(f'v_mov_b32 {v(ONES + u)}, 0x3f803f80')
    A(f's_mov_b32 {s(M_C)}, {f32bits((128 ** -0.5) * 1.4426950408889634):#x}')
    if flags:
        A(f'v_and_b32 {v(t0)}, 3, {v(vLane)}')
        A(f'v_lshrrev_b32 {v(t1)}, 1, {v(t0)}')
        A(f'v_lshlrev_b32 {v(vFl)}, 8, {v(t1)}')
        A(f'v_lshl_add_u32 {v(vFl)}, {v(hi_)}, 2, {v(vFl)}')
    A(f'v_lshlrev_b32 {v(t2)}, 10, {v(row_)}')
    A(f'v_lshl_add_u32 {v(t0)}, {v(G_)}, 1, {v(hi_)}')
    A(f'v_lshl_add_u32 {v(t2)}, {v(t0)}, 1, {v(t2)}')
    A(f's_lshl_b32 {s(M_T0)}, {s(S_WAVE)}, 8')
    A(f'v_add_u32 {v(t2)}, {s(M_T0)}, {v(t2)}')
    A('s_nop 1')
    MF = R1
    for f in (0, 1):
        for sl in range(8):
            A(f'buffer_load_ushort {v(40 + f * 8 + sl)}, {v(t2)}, {srd(SRD_M0)}, 0 offen '
              f'offset:{f * 16 + sl * 32}')
    A('s_waitcnt vmcnt(0)')
    for r in range(8):
        A(f'v_lshl_or_b32 {v(MF + r)}, {v(40 + 2 * r + 1)}, 16, {v(40 + 2 * r)}')
    A(f'v_lshlrev_b32 {v(t3)}, 2, {v(vLane)}')
    A(f'v_and_b32 {v(t3)}, 127, {v(t3)}')
    A(f'v_mov_b32 {v(vOne)}, 1')

    if flags:
        emit_poll_block(A, t0, vFl, M_FPR, M_SPIN, end_label)
        A(f's_add_u32 {s(M_FPR)}, {s(M_FPR)}, 1024')
    A(f's_lshl_b32 {s(M_KBUF)}, {s(S_WAVE)}, 11')
    A(f's_add_u32 {s(M_KBUF)}, {s(M_KBUF)}, {L_KX}')

    def issue_kx():
        A(f's_mov_b32 m0, {s(M_KBUF)}')
        A(f's_sub_u32 {s(M_T0)}, {s(M_K)}, {1024 - 64}')
        A(f'buffer_load_dwordx4 {v(vKxD)}, {srd(SRD_WS)}, {s(M_K)} offen sc1 lds')
        A(f'buffer_load_dwordx4 {v(vKxD)}, {srd(SRD_WS)}, {s(M_T0)} offen offset:1024 sc1 lds')
        A(f's_add_u32 {s(M_K)}, {s(M_K)}, 262144')
        A(f's_xor_b32 {s(M_KBUF)}, {s(M_KBUF)}, {(L_KX) ^ (L_KX + 8192)}')

    def issue_vx():
        A(f'buffer_load_dwordx4 {v(VX, 4)}, {v(vVx)}, {srd(SRD_WS)}, {s(M_V)} offen sc1')
        A(f'buffer_load_dwordx4 {v(VX + 4, 4)}, {v(vVx)}, {srd(SRD_WS)}, {s(M_V)} offen offset:256 sc1')
        A(f's_add_u32 {s(M_V)}, {s(M_V)}, 262144')

    issue_kx()
    emit_poll_block(A, t0, t3, M_CTL, M_SPIN, end_label)
    A(f'v_cmp_eq_u32 vcc, {s(M_XCC)}, {v(t0)}')
    A(f's_mov_b32 {s(M_STEP)}, 0')
    slow = A.newlabel('tslow')
    if not force_slow:
        A('s_cmp_eq_u64 vcc, exec')
        A(f's_cbranch_scc0 {slow}')
        team_loop(A, locals(), fast=True)
    A.label(slow)
    team_loop(A, locals(), fast=False)


def team_loop(A, L, fast):
    g = L
    (vL16, vIdx, vWo, vMem, vQKw, vQr, vKMr, vOw, vHi, vPw, vPub, vKxD, vVx, vKMe, vVMe, vFl, vOne, vTouch,
     vTa, vX0, SEL, ONES, R1, R2, R3, VX, t0, t1, t2, t3) = [g[k] for k in (
        'vL16 vIdx vWo vMem vQKw vQr vKMr vOw vHi vPw vPub vKxD vVx vKMe vVMe vFl vOne vTouch vTa vX0 '
        'SEL ONES R1 R2 R3 VX t0 t1 t2 t3').split()]
    wreg, issue_kx, issue_vx = g['wreg'], g['issue_kx'], g['issue_vx']
    flags, end_label, nsteps = g['flags'], g['end_label'], g['nsteps']
    XS = '' if fast else ' sc1'
    MF = R1
    QA, KA, VA = R2, R2 + 8, R2 + 16
    SA = R2
    KX = R3

    def smf(acc, af, b):
        A(f'v_smfmac_f32_16x16x64_bf16 {v(acc, 4)}, {v(af, 4)}, {b}, {v(vIdx)}')

    def zero(r, n):
        for i in range(0, n, 2):
            A(f'v_mov_b64 {v(r + i, 2)}, 0')

    zero(R2, 24)
    top = A.newlabel('ttop')
    A.label(top)
    A(f'ds_write_b128 {v(vMem)}, {v(MF, 4)}')
    A(f'ds_write_b128 {v(vMem)}, {v(MF + 4, 4)} offset:1024')
    issue_vx()
    A(f's_and_b32 {s(M_T0)}, {s(M_STEP)}, 3')
    A(f's_lshl_b32 {s(M_T0)}, {s(M_T0)}, 18')
    A(f's_add_u32 {s(M_T0)}, {s(M_T0)}, {s(M_TP)}')
    A(f's_lshl_b32 {s(M_T1)}, {s(M_ME)}, 6')
    A(f's_add_u32 {s(M_PW)}, {s(M_T0)}, {s(M_T1)}')
    A(f's_lshl_b32 {s(M_T1)}, {s(M_ME)}, 13')
    A(f's_add_u32 {s(M_PR)}, {s(M_T0)}, {s(M_T1)}')
    for i in (0, 1):
        for m in (0, 1):
            for t in (0, 1):
                smf((QA, KA)[m] + t * 4, MF + i * 4, wreg(m, t, i))
    A(f's_lshl_b32 {s(M_T1)}, {s(S_WAVE)}, 11')
    A(f's_add_u32 {s(M_PR)}, {s(M_PR)}, {s(M_T1)}')
    A(f's_add_u32 {s(M_T0)}, {s(M_STEP)}, 1')
    A(f's_and_b32 {s(M_T0)}, {s(M_T0)}, 3')
    A(f's_lshl_b32 {s(M_T0)}, {s(M_T0)}, 13')
    A(f's_add_u32 {s(M_MP)}, {s(M_T0)}, {s(M_TM)}')
    A(f's_add_u32 {s(M_MRD)}, {s(M_MP)}, {s(M_T1)}')
    A(f's_xor_b32 {s(M_T0)}, {s(M_T0)}, {2 << 13}')
    A(f's_add_u32 {s(M_MRS)}, {s(M_T0)}, {s(M_TM)}')
    A(f'v_xor_b32 {v(t0)}, 2048, {v(vMem)}')
    A(f'v_xor_b32 {v(t1)}, 4096, {v(vMem)}')
    A(f'v_xor_b32 {v(t2)}, 6144, {v(vMem)}')
    A('s_waitcnt lgkmcnt(0)')
    A('s_barrier')
    for p, tr in enumerate((t0, t1, t2)):
        A(f'ds_read_b128 {v(MF + 8 + p * 8, 4)}, {v(tr)}')
        A(f'ds_read_b128 {v(MF + 12 + p * 8, 4)}, {v(tr)} offset:1024')
    A(f's_xor_b32 {s(M_T0)}, {s(M_KBUF)}, {L_KX ^ (L_KX + 8192)}')
    A(f's_and_b32 {s(M_T0)}, {s(M_T0)}, {~2047 & ~(3 << 11) & 0xffffffff}')
    A(f'v_add_u32 {v(t3)}, {s(M_T0)}, {v(vL16)}')
    for i in range(2, 8):
        A(f's_waitcnt lgkmcnt({5 if i == 2 else 15 - i})')
        for m in (0, 1):
            for t in (0, 1):
                smf((QA, KA)[m] + t * 4, MF + i * 4, wreg(m, t, i))
        if i == 2:
            for f in range(8):
                A(f'ds_read_b128 {v(KX + f * 4, 4)}, {v(t3)} offset:{f * 1024}')
    nopf = A.newlabel('tnopf')
    A(f's_cmp_ge_u32 {s(M_STEP)}, {nsteps - 1}')
    A(f's_cbranch_scc1 {nopf}')
    if flags:
        raise NotImplementedError
    issue_kx()
    A(f'buffer_load_dword {v(vTouch)}, {v(vTa)}, {srd(SRD_WS)}, {s(M_V)} offen sc1')
    A.label(nopf)
    vq = [(i, t) for i in range(8) for t in (0, 1)]

    def vs(n):
        for _ in range(n):
            i, t = vq.pop(0)
            smf(VA + t * 4, MF + i * 4, wreg(2, t, i))

    vs(3)
    for m, acc in enumerate((QA, KA)):
        for t in (0, 1):
            r = acc + t * 4
            A(f'v_add_f32 {v(r)}, {v(r)}, {v(r + 1)}')
            A(f'v_add_f32 {v(r + 2)}, {v(r + 2)}, {v(r + 3)}')
            if t == 1:
                vs(1)
    for m, acc in enumerate((QA, KA)):
        for t in (0, 1):
            r = acc + t * 4
            A(f'v_cvt_pk_bf16_f32 {v(r)}, {v(r)}, {v(r + 2)}')
        vs(1)
    for m, acc in enumerate((QA, KA)):
        for t in (0, 1):
            r = acc + t * 4
            off = m * 2048 + t * 256
            A(f'ds_write_b16 {v(vQKw)}, {v(r)} offset:{off}')
            A(f'ds_write_b16_d16_hi {v(vQKw)}, {v(r)} offset:{off + 16}')
        if m == 0:
            vs(1)
    assert len(vq) == 8
    A('s_waitcnt lgkmcnt(0)')
    A('s_barrier')
    def qf(ks):
        return MF + ks * 8

    def kf(ks):
        return MF + ks * 8 + 4

    for ks in (0, 1):
        A(f'ds_read_b128 {v(qf(ks), 4)}, {v(vQr)} offset:{ks * 512}')
        A(f'ds_read_b128 {v(kf(ks), 4)}, {v(vKMr)} offset:{ks * 512}')
    vs(4)
    A(f'ds_read_b128 {v(qf(2), 4)}, {v(vQr)} offset:1024')
    A(f'ds_read_b128 {v(kf(2), 4)}, {v(vKMr)} offset:1024')
    vs(4)
    A(f'ds_read_b128 {v(qf(3), 4)}, {v(vQr)} offset:1536')
    A(f'ds_read_b128 {v(kf(3), 4)}, {v(vKMr)} offset:1536')
    for ks in range(4):
        A(f's_waitcnt lgkmcnt({6 - 2 * ks})')
        for t in range(3):
            af = v(KX + (ks * 2 + t) * 4, 4) if t < 2 else v(kf(ks), 4)
            cin = '0' if ks == 0 else v(SA + t * 4, 4)
            A(f'v_mfma_f32_16x16x32_bf16 {v(SA + t * 4, 4)}, {af}, {v(qf(ks), 4)}, {cin}')
    A(f's_lshl_b32 {s(M_T0)}, {s(S_WAVE)}, 9')
    A(f'v_add_u32 {v(vX0)}, {s(M_T0)}, {v(vKMr)}')
    A(f'ds_read_b128 {v(t0, 4)}, {v(vX0)}')
    wo_list = [(i, ks) for i in range(8) for ks in (0, 1)]

    def wo_off(i, ks):
        return ((i >> 1) * 2 + ks) * 4096 + (i & 1) * 2048

    def wo_read(n, reg):
        i, ks = wo_list[n]
        A(f'ds_read_b128 {v(reg, 4)}, {v(vWo)} offset:{wo_off(i, ks)}')
        A(f'ds_read_b128 {v(reg + 4, 4)}, {v(vWo)} offset:{wo_off(i, ks) + 1024}')

    wo_reg = {}
    for n in range(4):
        wo_reg[n] = R3 + n * 8
        wo_read(n, wo_reg[n])
    for t in (0, 1):
        r = VA + t * 4
        A(f'v_add_f32 {v(r)}, {v(r)}, {v(r + 1)}')
        A(f'v_add_f32 {v(r + 2)}, {v(r + 2)}, {v(r + 3)}')
        A(f'v_cvt_pk_bf16_f32 {v(r)}, {v(r)}, {v(r + 2)}')
        A(f'v_mov_b32 {v(r + 1)}, 0')
    for t in (0, 1):
        A(f'buffer_store_dword {v(VA + t * 4)}, {v(vVMe)}, {srd(SRD_WS)}, {s(M_VM)} offen offset:{t * 128} sc1')
    A('s_waitcnt lgkmcnt(8)')
    A(f's_mov_b64 exec, {s(M_KMX, 2)}')
    A(f'buffer_store_dwordx4 {v(t0, 4)}, {v(vKMe)}, {srd(SRD_WS)}, {s(M_KM)} offen sc1')
    A('s_mov_b64 exec, -1')
    A(f's_add_u32 {s(M_KM)}, {s(M_KM)}, 65536')
    A(f's_add_u32 {s(M_VM)}, {s(M_VM)}, 65536')
    done = A.newlabel('tdone')
    A(f's_cmp_ge_u32 {s(M_STEP)}, {nsteps - 1}')
    A(f's_cbranch_scc1 {done}')
    vals = [SA + i for i in range(10)]
    mx, m2 = SA + 10, SA + 11
    A(f'v_max3_f32 {v(mx)}, {v(vals[0])}, {v(vals[1])}, {v(vals[2])}')
    A(f'v_max3_f32 {v(m2)}, {v(vals[3])}, {v(vals[4])}, {v(vals[5])}')
    A(f'v_max3_f32 {v(mx)}, {v(mx)}, {v(vals[6])}, {v(vals[7])}')
    A(f'v_max3_f32 {v(m2)}, {v(m2)}, {v(vals[8])}, {v(vals[9])}')
    A(f'v_max_f32 {v(mx)}, {v(mx)}, {v(m2)}')
    A(f'v_mov_b32 {v(m2)}, {v(mx)}')
    A(f'v_permlane16_swap_b32 {v(mx)}, {v(m2)}')
    A(f'v_max_f32 {v(mx)}, {v(mx)}, {v(m2)}')
    A(f'v_mov_b32 {v(m2)}, {v(mx)}')
    A(f'v_permlane32_swap_b32 {v(mx)}, {v(m2)}')
    A(f'v_max_f32 {v(mx)}, {v(mx)}, {v(m2)}')
    A(f'v_mul_f32 {v(mx)}, {s(M_C)}, {v(mx)}')
    for r in vals:
        A(f'v_fma_f32 {v(r)}, {v(r)}, {s(M_C)}, -{v(mx)}')
    for r in vals:
        A(f'v_exp_f32 {v(r)}, {v(r)}')
    PB = SA + 12
    PM = SA + 10
    for j in range(4):
        A(f'v_cvt_pk_bf16_f32 {v(PB + j)}, {v(vals[2 * j])}, {v(vals[2 * j + 1])}')
    A(f'v_cvt_pk_bf16_f32 {v(PM)}, {v(vals[8])}, {v(vals[9])}')
    A(f'v_mov_b32 {v(PM + 1)}, 0')
    OA = SA
    A('s_waitcnt vmcnt(6)')
    A(f'v_mfma_f32_16x16x32_bf16 {v(t0, 4)}, {v(ONES, 4)}, {v(PB, 4)}, 0')
    A(f'v_mfma_f32_16x16x32_bf16 {v(OA, 4)}, {v(VX, 4)}, {v(PB, 4)}, 0')
    A(f'v_mfma_f32_16x16x32_bf16 {v(OA + 4, 4)}, {v(VX + 4, 4)}, {v(PB, 4)}, 0')
    A(f'v_mfma_f32_16x16x16_bf16 {v(t0, 4)}, {v(ONES, 2)}, {v(PM, 2)}, {v(t0, 4)}')
    A(f'v_mfma_f32_16x16x16_bf16 {v(OA, 4)}, {v(VA, 2)}, {v(PM, 2)}, {v(OA, 4)}')
    A(f'v_mfma_f32_16x16x16_bf16 {v(OA + 4, 4)}, {v(VA + 4, 2)}, {v(PM, 2)}, {v(OA + 4, 4)}')
    OUT = R1
    zero(OUT, 12)
    A(f'v_rcp_f32 {v(t0)}, {v(t0)}')
    for r in range(4):
        A(f'v_cndmask_b32 {v(OA + r)}, {v(OA + r)}, {v(OA + 4 + r)}, {s(M_ODD, 2)}')
    for r in range(4):
        A(f'v_mul_f32 {v(OA + r)}, {v(OA + r)}, {v(t0)}')
    A(f'v_cvt_pk_bf16_f32 {v(t2)}, {v(OA)}, {v(OA + 1)}')
    A(f'v_cvt_pk_bf16_f32 {v(t3)}, {v(OA + 2)}, {v(OA + 3)}')
    A(f'ds_write_b64 {v(vOw)}, {v(t2, 2)}')
    A('s_waitcnt lgkmcnt(0)')
    A('s_barrier')
    OF = VX
    A(f'ds_read_b128 {v(OF, 4)}, {v(vHi)} offset:{L_O - L_KX}')
    A(f'ds_read_b128 {v(OF + 4, 4)}, {v(vHi)} offset:{L_O - L_KX + 1024}')
    for n in range(4, 7):
        wo_reg[n] = R2 + (n - 4) * 8
        wo_read(n, wo_reg[n])
    zero(OUT + 12, 20)
    nissued = 7
    outstanding = [('w', n) for n in range(4, 7)]
    A('s_waitcnt lgkmcnt(6)')
    for n in range(16):
        i, ks = wo_list[n]
        pend = [x for x in outstanding if x[1] > n]
        if any(x[1] == n for x in outstanding):
            A(f's_waitcnt lgkmcnt({2 * len(pend)})')
            outstanding = pend
        smf(OUT + i * 4, OF + ks * 4, v(wo_reg[n], 8))
        if nissued < 16:
            wo_reg[nissued] = wo_reg[n]
            wo_read(nissued, wo_reg[nissued])
            outstanding.append(('w', nissued))
            nissued += 1
        if ks == 1 and i >= 2:
            j = i - 2
            r = OUT + j * 4
            A(f'v_add_f32 {v(r)}, {v(r)}, {v(r + 1)}')
            A(f'v_add_f32 {v(r + 2)}, {v(r + 2)}, {v(r + 3)}')
    for j in (6, 7):
        r = OUT + j * 4
        A(f'v_add_f32 {v(r)}, {v(r)}, {v(r + 1)}')
        A(f'v_add_f32 {v(r + 2)}, {v(r + 2)}, {v(r + 3)}')
    PKD = R3
    for rr in (0, 1):
        for u in range(4):
            d = PKD + rr * 4 + u
            A(f'v_cvt_pk_bf16_f32 {v(d)}, {v(OUT + 2 * u * 4 + rr * 2)}, {v(OUT + (2 * u + 1) * 4 + rr * 2)}')
        for u in range(4):
            d = PKD + rr * 4 + u
            A(f'v_min_u32 {v(d)}, -2, {v(d)}')
        A(f'buffer_store_dwordx4 {v(PKD + rr * 4, 4)}, {v(vPw)}, {srd(SRD_WS)}, {s(M_PW)} offen '
          f'offset:{rr * 2048}{XS}')
    RD = R1
    RA = R1 + 8
    NEG = R1 + 12
    for u in range(4):
        A(f'v_mov_b32 {v(NEG + u)}, -1')
    zero(R2, 24)
    A(f's_mov_b32 {s(M_SPIN)}, 0')
    p1 = A.newlabel('tp1')
    A.label(p1)
    A(f'buffer_load_dwordx4 {v(RD, 4)}, {v(vL16)}, {srd(SRD_WS)}, {s(M_PR)} offen sc1')
    A(f'buffer_load_dwordx4 {v(RD + 4, 4)}, {v(vL16)}, {srd(SRD_WS)}, {s(M_PR)} offen offset:1024 sc1')
    A(f's_add_u32 {s(M_SPIN)}, {s(M_SPIN)}, 1')
    A(f's_cmp_gt_u32 {s(M_SPIN)}, {SPIN_LIMIT * 4}')
    A(f's_cbranch_scc1 {end_label}')
    A('s_waitcnt vmcnt(0)')
    A(f'v_mfma_f32_16x16x32_bf16 {v(RA, 4)}, {v(SEL, 4)}, {v(RD, 4)}, 0')
    A(f'v_mfma_f32_16x16x32_bf16 {v(RA, 4)}, {v(SEL, 4)}, {v(RD + 4, 4)}, {v(RA, 4)}')
    A(f'v_max3_u32 {v(t0)}, {v(RD)}, {v(RD + 1)}, {v(RD + 2)}')
    A(f'v_max3_u32 {v(t1)}, {v(RD + 3)}, {v(RD + 4)}, {v(RD + 5)}')
    A(f'v_max3_u32 {v(t0)}, {v(t0)}, {v(RD + 6)}, {v(RD + 7)}')
    A(f'v_max_u32 {v(t0)}, {v(t0)}, {v(t1)}')
    A(f'v_cmp_eq_u32 vcc, -1, {v(t0)}')
    A(f's_cbranch_vccnz {p1}')
    for sh in (4, 8):
        for r in range(4):
            A(f'v_add_f32_dpp {v(RA + r)}, {v(RA + r)}, {v(RA + r)} row_ror:{sh} row_mask:0xf bank_mask:0xf')
    A(f'v_cvt_pk_bf16_f32 {v(t0)}, {v(RA)}, {v(RA + 1)}')
    A(f'v_cvt_pk_bf16_f32 {v(t1)}, {v(RA + 2)}, {v(RA + 3)}')
    A(f'v_min_u32 {v(t0)}, -2, {v(t0)}')
    A(f'v_min_u32 {v(t1)}, -2, {v(t1)}')
    A(f's_mov_b64 exec, {s(M_PUBX, 2)}')
    A(f'buffer_store_dwordx2 {v(t0, 2)}, {v(vPub)}, {srd(SRD_WS)}, {s(M_MP)} offen{XS}')
    A(f'buffer_store_dwordx2 {v(NEG, 2)}, {v(vPub)}, {srd(SRD_WS)}, {s(M_MRS)} offen{XS}')
    A('s_mov_b64 exec, -1')
    A(f'buffer_store_dwordx4 {v(NEG, 4)}, {v(vL16)}, {srd(SRD_WS)}, {s(M_PR)} offen{XS}')
    A(f'buffer_store_dwordx4 {v(NEG, 4)}, {v(vL16)}, {srd(SRD_WS)}, {s(M_PR)} offen offset:1024{XS}')
    A(f's_mov_b32 {s(M_SPIN)}, 0')
    p2 = A.newlabel('tp2')
    A.label(p2)
    A(f'buffer_load_dwordx4 {v(MF, 4)}, {v(vL16)}, {srd(SRD_WS)}, {s(M_MRD)} offen sc1')
    A(f'buffer_load_dwordx4 {v(MF + 4, 4)}, {v(vL16)}, {srd(SRD_WS)}, {s(M_MRD)} offen offset:1024 sc1')
    A(f's_add_u32 {s(M_SPIN)}, {s(M_SPIN)}, 1')
    A(f's_cmp_gt_u32 {s(M_SPIN)}, {SPIN_LIMIT * 4}')
    A(f's_cbranch_scc1 {end_label}')
    A('s_waitcnt vmcnt(0)')
    A(f'v_max3_u32 {v(t0)}, {v(MF)}, {v(MF + 1)}, {v(MF + 2)}')
    A(f'v_max3_u32 {v(t1)}, {v(MF + 3)}, {v(MF + 4)}, {v(MF + 5)}')
    A(f'v_max3_u32 {v(t0)}, {v(t0)}, {v(MF + 6)}, {v(MF + 7)}')
    A(f'v_max_u32 {v(t0)}, {v(t0)}, {v(t1)}')
    A(f'v_cmp_eq_u32 vcc, -1, {v(t0)}')
    A(f's_cbranch_vccnz {p2}')
    A(f's_add_u32 {s(M_STEP)}, {s(M_STEP)}, 1')
    A(f's_branch {top}')
    A.label(done)
    A(f's_branch {end_label}')
```

```python
import sys, os
sys.path.insert(0, os.path.dirname(__file__))
from asmdsl import Asm, v, a, s
from layout import *
from roles import *
from team import *

NAME = 'interleave_layers__memory_aug_recurrent_mem_tr__glu_gated_geglu__prompt'
LDS = 163840
X_BYTES = 2048 * 512 * 2
WQKV_BYTES = 512 * 4096 * 2
WGU_BYTES = 512 * 1792 * 2


class Kern:
    def __init__(self, name, grid, lds=LDS, vgpr=512):
        self.name, self.grid, self.lds, self.vgpr = name, grid, lds, vgpr
        self.A = Asm()
        self.A.uid = Kern.uid
        Kern.uid += 10000
        self.end = f'{name}_end'
    uid = 0

    def text(self):
        A = self.A
        A.label(self.end)
        A('s_endpgm')
        return (f'.text\n.globl {self.name}\n.p2align 8\n.type {self.name},@function\n{self.name}:\n'
                + A.text())

    def desc(self):
        acc = 256 if self.vgpr > 256 else ((self.vgpr + 3) // 4) * 4
        return (f'.amdhsa_kernel {self.name}\n  .amdhsa_next_free_vgpr {self.vgpr}\n'
                f'  .amdhsa_next_free_sgpr 102\n  .amdhsa_accum_offset {acc}\n'
                f'  .amdhsa_group_segment_fixed_size 0\n  .amdhsa_kernarg_size 112\n'
                f'  .amdhsa_user_sgpr_count 2\n  .amdhsa_user_sgpr_kernarg_segment_ptr 1\n'
                f'  .amdhsa_system_sgpr_workgroup_id_x 1\n.end_amdhsa_kernel\n')


def guard(K, n):
    K.A(f's_cmp_ge_u32 s2, {n}')
    K.A(f's_cbranch_scc1 {K.end}')


def k_init():
    K = Kern('init_kernel', 256, lds=1024, vgpr=128)
    A = K.A
    guard(K, 256)
    load_srds(A, [(SRD_WS, KA_WS, WS_BYTES), (SRD_A, KA_X, X_BYTES)])
    wave_setup(A)
    A('v_lshlrev_b32 v3, 4, v0')
    for i in range(4):
        A(f'v_mov_b32 v{4 + i}, 0')
        A(f'v_mov_b32 v{8 + i}, -1')
    A('s_lshl_b32 s24, s2, 12')
    A(f'buffer_store_dwordx4 v[4:7], v3, {srd(SRD_WS)}, s24 offen')
    A(f's_lshl_b32 s24, s2, 13')
    A(f's_add_u32 s24, s24, {TP}')
    A(f'buffer_store_dwordx4 v[8:11], v3, {srd(SRD_WS)}, s24 offen')
    A(f's_add_u32 s24, s24, 4096')
    A(f'buffer_store_dwordx4 v[8:11], v3, {srd(SRD_WS)}, s24 offen')
    l1 = A.newlabel('i')
    A('s_cmp_ge_u32 s2, 16')
    A(f's_cbranch_scc1 {l1}')
    A(f's_lshl_b32 s24, s2, 12')
    A(f's_add_u32 s24, s24, {TM}')
    A(f'buffer_store_dwordx4 v[8:11], v3, {srd(SRD_WS)}, s24 offen')
    A.label(l1)
    l2 = A.newlabel('i')
    A('s_cmp_lg_u32 s2, 16')
    A(f's_cbranch_scc1 {l2}')
    A(f's_mov_b32 s24, {TCTL}')
    A(f'buffer_store_dwordx4 v[4:7], v3, {srd(SRD_WS)}, s24 offen')
    A.label(l2)
    A('s_mov_b32 s24, 0')
    A('s_lshl_b32 s25, s2, 12')
    A('s_mov_b32 s26, 0')
    A('s_lshr_b32 s27, s2, 3')
    A('s_lshl_b32 s27, s27, 15')
    A('s_and_b32 s31, s2, 7')
    A('s_lshl_b32 s31, s31, 6')
    A('s_add_u32 s27, s27, s31')
    A(f's_add_u32 s27, s27, {XN}')
    A('s_mov_b32 s28, 2')
    rl_role(A, 0, SRD_A, SRD_A, True, dict(p=0, x=256 * 4096, xn=32 * 32768), K.end, sc1=False, xin_sc1=False)
    return K


def k_proj(layer, msplit=5):
    K = Kern(f'proj{layer}_kernel', 48 * msplit)
    A = K.A
    guard(K, 48 * msplit)
    load_srds(A, [(SRD_WS, KA_WS, WS_BYTES), (SRD_A, KA_WQ, WQKV_BYTES), (SRD_B, KA_WK, WQKV_BYTES),
                  (SRD_C, KA_WV, WQKV_BYTES)])
    wave_setup(A)
    A(f's_mov_b32 s40, {(1 << 32) // 48 + 1}')
    A('s_mul_hi_u32 s41, s2, s40')
    A('s_mul_i32 s40, s41, 48')
    A('s_sub_u32 s42, s2, s40')
    A('s_lshr_b32 s43, s42, 4')
    A('s_and_b32 s42, s42, 15')
    A(f's_sub_u32 s28, {64 + msplit - 1}, s41')
    A(f's_mov_b32 s40, {(1 << 32) // msplit + 1}')
    A('s_mul_hi_u32 s28, s28, s40')
    A('s_lshl_b32 s24, s42, 9')
    A('s_lshl_b32 s40, s3, 7')
    A('s_add_u32 s24, s24, s40')
    A('s_add_u32 s25, s24, 64')
    A('s_lshl_b32 s26, s41, 15')
    A(f's_add_u32 s26, s26, {XN + layer * 2 * 2 * MB}')
    A('s_lshl_b32 s27, s41, 18')
    lv = A.newlabel('pv')
    lk = A.newlabel('pk')
    A('s_cmp_eq_u32 s43, 2')
    A(f's_cbranch_scc1 {lv}')
    A('s_lshl_b32 s40, s42, 14')
    A('s_add_u32 s27, s27, s40')
    A('s_lshl_b32 s40, s3, 12')
    A('s_add_u32 s27, s27, s40')
    A('s_cmp_eq_u32 s43, 1')
    A(f's_cbranch_scc1 {lk}')
    A(f's_add_u32 s27, s27, {QB + layer * 16 * MB}')
    gemm_role(A, 32, 'qk', 8192, SRD_A, SRD_A, 32768 * msplit, 262144 * msplit, K.end, sc1=False)
    A.label(lk)
    A(f's_add_u32 s27, s27, {KB + layer * 16 * MB}')
    gemm_role(A, 32, 'qk', 8192, SRD_B, SRD_B, 32768 * msplit, 262144 * msplit, K.end, sc1=False)
    A.label(lv)
    A('s_lshl_b32 s40, s42, 14')
    A('s_add_u32 s27, s27, s40')
    A('s_lshr_b32 s40, s3, 1')
    A('s_lshl_b32 s40, s40, 13')
    A('s_add_u32 s27, s27, s40')
    A('s_and_b32 s40, s3, 1')
    A('s_lshl_b32 s40, s40, 10')
    A('s_add_u32 s27, s27, s40')
    A(f's_add_u32 s27, s27, {VT + layer * 16 * MB}')
    gemm_role(A, 32, 'v', 8192, SRD_C, SRD_C, 32768 * msplit, 262144 * msplit, K.end, sc1=False)
    return K


def k_team(layer, force_slow=False):
    K = Kern(f'team{layer}_kernel', 256)
    A = K.A
    guard(K, 256)
    A('s_and_b32 s40, s2, 7')
    A('s_cmp_lg_u32 s40, 0')
    A(f's_cbranch_scc1 {K.end}')
    load_srds(A, [(SRD_WS, KA_WS, WS_BYTES), (SRD_A, KA_WQ, WQKV_BYTES), (SRD_B, KA_WK, WQKV_BYTES),
                  (SRD_C, KA_WV, WQKV_BYTES), (SRD_D, KA_WO, WQKV_BYTES), (SRD_M0, KA_MEM0, 8192)])
    wave_setup(A)
    A(f's_lshr_b32 {s(M_ME)}, s2, 3')
    A(f's_lshl_b32 s40, {s(M_ME)}, 13')
    A(f's_add_u32 {s(M_K)}, s40, {KB + layer * 16 * MB}')
    A(f's_add_u32 {s(M_V)}, s40, {VT + layer * 16 * MB}')
    A(f's_lshl_b32 s40, {s(M_ME)}, 11')
    A(f's_add_u32 {s(M_KM)}, s40, {KM + layer * 4 * MB}')
    A(f's_add_u32 {s(M_VM)}, s40, {VM + layer * 4 * MB}')
    A(f's_mov_b32 {s(M_TP)}, {TP + layer * MB}')
    A(f's_mov_b32 {s(M_TM)}, {TM + layer * 32768}')
    A(f's_mov_b32 {s(M_CTL)}, {TCTL + layer * 256}')
    team_role(A, K.end, force_slow=force_slow)
    return K


def k_att(layer):
    K = Kern(f'att{layer}_kernel', 256, lds=0, vgpr=256)
    A = K.A
    guard(K, 256)
    load_srds(A, [(SRD_WS, KA_WS, WS_BYTES)])
    wave_setup(A)
    A('s_lshl_b32 s40, s2, 2')
    A('s_add_u32 s40, s40, s3')
    A('s_lshl_b32 s41, s40, 13')
    A(f's_add_u32 s24, s41, {QB + layer * 16 * MB}')
    A(f's_add_u32 s25, s41, {KB + layer * 16 * MB}')
    A(f's_add_u32 s26, s41, {VT + layer * 16 * MB}')
    A(f's_add_u32 s32, s41, {OB}')
    A('s_lshl_b32 s41, s40, 11')
    A(f's_add_u32 s27, s41, {KM + layer * 4 * MB}')
    A(f's_add_u32 s31, s41, {VM + layer * 4 * MB}')
    A('s_mov_b32 s28, 2')
    att_role(A, 32, K.end, sc1=False)
    return K


def k_out():
    K = Kern('out_kernel', 256)
    A = K.A
    guard(K, 256)
    load_srds(A, [(SRD_WS, KA_WS, WS_BYTES), (SRD_A, KA_WO, WQKV_BYTES)])
    wave_setup(A)
    A('s_and_b32 s41, s2, 1')
    A('s_bfe_u32 s42, s2, 0x30001')
    A('s_lshr_b32 s43, s2, 4')
    A('s_lshl_b32 s24, s42, 19')
    A('s_lshl_b32 s40, s41, 9')
    A('s_add_u32 s24, s24, s40')
    A('s_lshl_b32 s40, s3, 7')
    A('s_add_u32 s24, s24, s40')
    A('s_add_u32 s25, s24, 64')
    A('s_lshl_b32 s26, s43, 18')
    A('s_lshl_b32 s40, s42, 15')
    A('s_add_u32 s26, s26, s40')
    A(f's_add_u32 s26, s26, {OB}')
    A('s_lshl_b32 s27, s42, 22')
    A('s_lshl_b32 s40, s43, 16')
    A('s_add_u32 s27, s27, s40')
    A('s_lshl_b32 s40, s41, 12')
    A('s_add_u32 s27, s27, s40')
    A('s_lshl_b32 s40, s3, 10')
    A('s_add_u32 s27, s27, s40')
    A(f's_add_u32 s27, s27, {PO}')
    A('s_mov_b32 s28, 4')
    gemm_role(A, 32, 'part', 1024, SRD_A, SRD_A, 262144 * 16, 65536 * 16, K.end, sc1=False)
    return K


def k_rl(which):
    K = Kern(f'rl{which}_kernel', 256, lds=1024, vgpr=128)
    A = K.A
    guard(K, 256)
    load_srds(A, [(SRD_WS, KA_WS, WS_BYTES), (SRD_A, KA_X, X_BYTES), (SRD_B, KA_OUT, X_BYTES)])
    wave_setup(A)
    pbase, kbn = (PO, 8) if which % 2 == 0 else (PD, 4)
    A('s_lshl_b32 s24, s2, 13')
    A(f's_add_u32 s24, s24, {pbase}')
    A('s_lshl_b32 s25, s2, 12')
    A('s_mov_b32 s26, s25')
    if which > 0:
        A(f's_add_u32 s25, s25, {XR + (which - 1) * 2 * MB}')
    if which < 3:
        A(f's_add_u32 s26, s26, {XR + which * 2 * MB}')
    A('s_lshr_b32 s27, s2, 3')
    A('s_lshl_b32 s27, s27, 15')
    A('s_and_b32 s31, s2, 7')
    A('s_lshl_b32 s31, s31, 6')
    A('s_add_u32 s27, s27, s31')
    A(f's_add_u32 s27, s27, {XN + ((which + 1) & 3) * 2 * MB}')
    A('s_mov_b32 s28, 2')
    rl_role(A, kbn, SRD_A if which == 0 else SRD_WS, SRD_B if which == 3 else SRD_WS, which < 3,
            dict(p=256 * 8192, x=256 * 4096, xn=32 * 32768), K.end, sc1=False, xin_sc1=False, xout_sc1=False)
    return K


def k_gu(layer):
    K = Kern(f'gu{layer}_kernel', 14 * 16)
    A = K.A
    guard(K, 14 * 16)
    load_srds(A, [(SRD_WS, KA_WS, WS_BYTES), (SRD_A, KA_WG, WGU_BYTES), (SRD_B, KA_WU, WGU_BYTES)])
    wave_setup(A)
    A('s_and_b32 s43, s2, 15')
    A('s_lshr_b32 s42, s2, 4')
    A('s_lshl_b32 s24, s42, 8')
    A('s_lshl_b32 s40, s3, 6')
    A('s_add_u32 s24, s24, s40')
    A('s_mov_b32 s25, s24')
    A('s_lshl_b32 s26, s43, 15')
    A(f's_add_u32 s26, s26, {XN + (layer * 2 + 1) * 2 * MB}')
    A(f's_mul_i32 s27, s43, {224 * 512}')
    A('s_lshl_b32 s40, s42, 13')
    A('s_add_u32 s27, s27, s40')
    A('s_lshl_b32 s40, s3, 11')
    A('s_add_u32 s27, s27, s40')
    A(f's_add_u32 s27, s27, {HB}')
    A('s_mov_b32 s28, 4')
    gemm_role(A, 32, 'gu', 3584, SRD_A, SRD_B, 32768 * 16, 224 * 512 * 16, K.end, sc1=False)
    return K


def k_dn():
    K = Kern('dn_kernel', 256)
    A = K.A
    guard(K, 256)
    load_srds(A, [(SRD_WS, KA_WS, WS_BYTES), (SRD_A, KA_WD, WGU_BYTES)])
    wave_setup(A)
    A('s_and_b32 s41, s2, 1')
    A('s_bfe_u32 s42, s2, 0x20001')
    A('s_lshr_b32 s43, s2, 3')
    A(f's_mul_i32 s24, s42, {448 * 1024}')
    A('s_lshl_b32 s40, s41, 9')
    A('s_add_u32 s24, s24, s40')
    A('s_lshl_b32 s40, s3, 7')
    A('s_add_u32 s24, s24, s40')
    A('s_add_u32 s25, s24, 64')
    A(f's_mul_i32 s26, s43, {224 * 512}')
    A(f's_mul_i32 s40, s42, {28 * 1024}')
    A('s_add_u32 s26, s26, s40')
    A(f's_add_u32 s26, s26, {HB}')
    A('s_lshl_b32 s27, s42, 22')
    A('s_lshl_b32 s40, s43, 16')
    A('s_add_u32 s27, s27, s40')
    A('s_lshl_b32 s40, s41, 12')
    A('s_add_u32 s27, s27, s40')
    A('s_lshl_b32 s40, s3, 10')
    A('s_add_u32 s27, s27, s40')
    A(f's_add_u32 s27, s27, {PD}')
    A('s_mov_b32 s28, 2')
    gemm_role(A, 28, 'part', 1024, SRD_A, SRD_A, 224 * 512 * 32, 65536 * 32, K.end, sc1=False)
    return K


def build(launches):
    header = open(f'cdna_kernels/{NAME}.s.ref').read().split('\n')
    hdr = [l for l in header if l.startswith(';') and '@launch' not in l and 'Override' not in l
           and 'grid=ceil' not in l]
    out = hdr[:]
    for k in launches:
        out.append(f'; @launch kernel={k.name} grid=({k.grid},1,1) block=(256,1,1) lds={k.lds}')
    out.append('.amdgcn_target "amdgcn-amd-amdhsa--gfx950"')
    seen = []
    for k in launches:
        if k not in seen:
            seen.append(k)
    for k in seen:
        out.append(k.text())
    out.append('.section .rodata,"a"')
    for k in seen:
        out.append('.p2align 6')
        out.append(k.desc())
    return '\n'.join(out)


def stage_b(force_slow=False):
    ko, kd = k_out(), k_dn()
    return [k_init(), k_proj(0), k_team(0, force_slow), k_att(0), ko, k_rl(0), k_gu(0), kd, k_rl(1),
            k_proj(1), k_team(1, force_slow), k_att(1), ko, k_rl(2), k_gu(1), kd, k_rl(3)]


if __name__ == '__main__':
    outp = sys.argv[1] if len(sys.argv) > 1 else f'cdna_kernels/{NAME}.s'
    variant = sys.argv[2] if len(sys.argv) > 2 else 'b'
    if variant == 'b':
        txt = build(stage_b())
    elif variant == 'bslow':
        txt = build(stage_b(True))
    open(outp, 'w').write(txt)
    print('wrote', outp, len(txt))
```

```python
from asmdsl import Asm, v, a, s
from layout import *
from roles import *
from team import *

X_BYTES = 2048 * 512 * 2
WQKV_BYTES = 512 * 4096 * 2
WGU_BYTES = 512 * 1792 * 2
SRD_DBG = 92
S_SLOT, S_LAYER, S_IDX, S_X = 96, 97, 98, 99

N_PROJ = 48
GROUP = [('rl2', 8), ('dn', 8), ('gu', 14), ('rl', 8), ('out', 16), ('att', 16)]
NA = 20
GN = sum(n for _, n in GROUP)


def read_counts(A, vdst, fail):
    A(f'v_and_b32 v3, 7, v2')
    A(f'v_lshlrev_b32 v3, 2, v3')
    A(f'buffer_load_dword {v(vdst)}, v3, {srd(SRD_DBG)}, 0 offen sc1')
    A('s_waitcnt vmcnt(0)')
    for i in range(8):
        A(f'v_readlane_b32 s{80 + i}, {v(vdst)}, {i}')
    A('s_add_u32 s88, s80, s81')
    for i in range(2, 8):
        A(f's_add_u32 s88, s88, s{80 + i}')


def assign_slot(A, end, fake_xcc=None):
    A(f's_getreg_b32 {s(S_X)}, hwreg(HW_REG_XCC_ID)')
    A(f's_and_b32 {s(S_X)}, {s(S_X)}, 7')
    if fake_xcc:
        A(fake_xcc)
    have = A.newlabel('tick')
    A(f's_cmp_lg_u32 {s(S_WAVE)}, 0')
    A(f's_cbranch_scc1 {have}')
    A(f's_lshl_b32 s40, {s(S_X)}, 2')
    A('v_mov_b32 v4, 1')
    A('v_mov_b32 v5, 0')
    A('s_mov_b64 exec, 1')
    A(f'buffer_atomic_add v4, off, {srd(SRD_DBG)}, s40 sc0 sc1')
    A('s_waitcnt vmcnt(0)')
    A('ds_write_b32 v5, v4')
    A('s_mov_b64 exec, -1')
    A('s_waitcnt lgkmcnt(0)')
    A.label(have)
    A('s_barrier')
    A('v_mov_b32 v5, 0')
    A('ds_read_b32 v4, v5')
    A('s_waitcnt lgkmcnt(0)')
    A('v_readfirstlane_b32 s41, v4')
    A('s_barrier')
    A(f's_lshl_b32 {s(S_SLOT)}, {s(S_X)}, 5')
    A(f's_add_u32 {s(S_SLOT)}, {s(S_SLOT)}, s41')
    ok = A.newlabel('slotok')
    A('s_cmp_lt_u32 s41, 32')
    A(f's_cbranch_scc1 {ok}')
    lp = A.newlabel('surp')
    A('s_mov_b32 s42, 0')
    A.label(lp)
    A('s_add_u32 s42, s42, 1')
    A(f's_cmp_gt_u32 s42, {SPIN_LIMIT}')
    A(f's_cbranch_scc1 {end}')
    read_counts(A, 4, end)
    A('s_cmp_lt_u32 s88, 256')
    A(f's_cbranch_scc1 {lp}')
    A('s_sub_u32 s43, s41, 32')
    for i in range(8):
        A(f's_max_u32 s89, s{80 + i}, 32')
        A('s_sub_u32 s89, s89, 32')
        A(f's_cmp_gt_u32 {s(S_X)}, {i}')
        A('s_cselect_b32 s89, s89, 0')
        A('s_add_u32 s43, s43, s89')
    for i in range(8):
        nx = A.newlabel('hole')
        A(f's_min_u32 s89, s{80 + i}, 32')
        A('s_sub_u32 s90, 32, s89')
        A('s_cmp_lt_u32 s43, s90')
        A(f's_cbranch_scc0 {nx}')
        A(f's_add_u32 {s(S_SLOT)}, s89, s43')
        A(f's_add_u32 {s(S_SLOT)}, {s(S_SLOT)}, {i * 32}')
        A(f's_branch {ok}')
        A.label(nx)
        A('s_sub_u32 s43, s43, s90')
    A(f's_branch {end}')
    A.label(ok)


def ptr_srd(A, sreg, ka, nbytes):
    A(f's_load_dwordx2 {s(sreg, 2)}, s[0:1], {ka}')
    A('s_waitcnt lgkmcnt(0)')
    A(f's_mov_b32 {s(sreg + 2)}, {nbytes}')
    A(f's_mov_b32 {s(sreg + 3)}, 0x00020000')


def proj_params(A, layer, seg0, nseg, is_v):
    A(f's_mov_b32 {s(G_IN)}, {XN + layer * 4 * MB + seg0 * 32768}')
    A('s_lshl_b32 s27, s42, 14')
    if is_v:
        A('s_lshr_b32 s40, s3, 1')
        A('s_lshl_b32 s40, s40, 13')
        A('s_add_u32 s27, s27, s40')
        A('s_and_b32 s40, s3, 1')
        A('s_lshl_b32 s40, s40, 10')
        A('s_add_u32 s27, s27, s40')
        A(f's_add_u32 s27, s27, {VT + layer * 16 * MB + seg0 * 262144}')
    else:
        A('s_lshl_b32 s40, s3, 12')
        A('s_add_u32 s27, s27, s40')
        A('s_lshl_b32 s40, s43, 25')
        A('s_add_u32 s27, s27, s40')
        A(f's_add_u32 s27, s27, {QB + layer * 16 * MB + seg0 * 262144}')
    assert KB - QB == 1 << 25
    A(f's_mov_b32 {s(G_CNT)}, {nseg}')
    A(f's_mov_b32 {s(G_FIN)}, {flag_base(ST_RL2, 0) + seg0 * 1024}')
    A(f's_lshl_b32 {s(G_FOUT)}, s43, 6')
    A('s_lshl_b32 s40, s42, 2')
    A(f's_add_u32 {s(G_FOUT)}, {s(G_FOUT)}, s40')
    A(f's_add_u32 {s(G_FOUT)}, {s(G_FOUT)}, {flag_base(ST_PROJ, layer) + seg0 * 1024}')


def build_mega(K, force_slow=False, fake_xcc=None, tune=None, stamp=False):
    A = K.A
    end = K.end
    A('s_cmp_ge_u32 s2, 256')
    A(f's_cbranch_scc1 {end}')
    load_srds(A, [(SRD_WS, KA_WS, WS_BYTES), (SRD_DBG, KA_DBG, 256)])
    wave_setup(A)
    assign_slot(A, end, fake_xcc)
    L = {n: A.newlabel('r_' + n) for n in ('team', 'proj', 'group', 'att', 'out', 'gu', 'dn', 'rl', 'rl2')}
    A(f's_cmp_lt_u32 {s(S_SLOT)}, 64')
    A(f's_cbranch_scc1 {L["team"]}')
    A(f's_sub_u32 {s(S_IDX)}, {s(S_SLOT)}, 64')
    A(f's_mov_b32 s44, 0')
    A(f's_mov_b32 s45, {s(S_IDX)}')
    A(f's_cmp_lt_u32 {s(S_IDX)}, {N_PROJ}')
    A(f's_cbranch_scc1 {L["proj"]}')
    A(f's_sub_u32 {s(S_IDX)}, {s(S_IDX)}, {N_PROJ}')
    A(f's_mov_b32 {s(S_LAYER)}, 0')
    A(f's_cmp_lt_u32 {s(S_IDX)}, {GN}')
    A(f's_cbranch_scc1 {L["group"]}')
    A(f's_sub_u32 {s(S_IDX)}, {s(S_IDX)}, {GN}')
    A(f's_mov_b32 {s(S_LAYER)}, 1')
    A(f's_cmp_ge_u32 {s(S_IDX)}, {GN}')
    A(f's_cbranch_scc1 {end}')
    A(f's_cmp_ge_u32 {s(S_IDX)}, {N_PROJ}')
    A(f's_cbranch_scc1 {L["group"]}')
    A(f's_mov_b32 s44, 1')
    A(f's_mov_b32 s45, {s(S_IDX)}')

    A.label(L['proj'])
    A('s_lshr_b32 s43, s45, 4')
    A('s_and_b32 s42, s45, 15')
    A('s_lshl_b32 s40, s43, 3')
    A(f's_add_u32 s40, s40, {KA_WQ}')
    A(f's_load_dwordx2 {s(SRD_A, 2)}, s[0:1], s40')
    A('s_waitcnt lgkmcnt(0)')
    A(f's_mov_b32 {s(SRD_A + 2)}, {WQKV_BYTES}')
    A(f's_mov_b32 {s(SRD_A + 3)}, 0x00020000')
    A('s_lshl_b32 s24, s42, 9')
    A('s_lshl_b32 s40, s3, 7')
    A('s_add_u32 s24, s24, s40')
    A('s_add_u32 s25, s24, 64')
    lv = A.newlabel('pv')
    A('s_cmp_eq_u32 s43, 2')
    A(f's_cbranch_scc1 {lv}')
    for is_v in (False, True):
        mode = 'v' if is_v else 'qk'
        if is_v:
            A.label(lv)
        gemm_setup(A, 32, mode, 8192, SRD_A, SRD_A)
        proj_params(A, 0, 0, NA, is_v)
        A(f's_mul_i32 s40, s44, 32768')
        A(f's_add_u32 {s(G_IN)}, {s(G_IN)}, s40')
        A(f's_mul_i32 s40, s44, 262144')
        A(f's_add_u32 {s(G_OUT)}, {s(G_OUT)}, s40')
        A(f's_mul_i32 s40, s44, 1024')
        A(f's_add_u32 {s(G_FOUT)}, {s(G_FOUT)}, s40')
        A(f's_mov_b32 s47, {2 * 32768}')
        A(f's_mov_b32 s48, {2 * 262144}')
        A(f's_mov_b32 s49, 2048')
        again = A.newlabel('pagain')
        l2 = A.newlabel('pl2')
        A.label(again)
        gemm_loop(A, 32, mode, 's47', 's48', end, flags=dict(n=1, fout_step='s49', poll_in=False))
        A('s_barrier')
        A('s_cmp_eq_u32 s44, 0')
        A(f's_cbranch_scc1 {l2}')
        A('s_cmp_eq_u32 s44, 2')
        A(f's_cbranch_scc1 {L["group"]}')
        A('s_mov_b32 s44, 2')
        proj_params(A, 0, 2 * NA, 64 - 2 * NA, is_v)
        A(f's_mov_b32 s47, 32768')
        A(f's_mov_b32 s48, 262144')
        A(f's_mov_b32 s49, 1024')
        A(f's_branch {again}')
        A.label(l2)
        proj_params(A, 1, 0, 64, is_v)
        gemm_loop(A, 32, mode, 32768, 262144, end,
                  flags=dict(n=8, fin_step=1024, fout_step=1024, poll_in=True))
        A(f's_branch {end}')

    A.label(L['group'])
    A(f's_lshl_b32 s46, {s(S_LAYER)}, 16')
    for name, n in GROUP:
        A(f's_cmp_lt_u32 {s(S_IDX)}, {n}')
        A(f's_cbranch_scc1 {L[name]}')
        A(f's_sub_u32 {s(S_IDX)}, {s(S_IDX)}, {n}')
    A(f's_branch {end}')

    A.label(L['att'])
    A(f's_lshl_b32 s40, {s(S_IDX)}, 2')
    A('s_add_u32 s40, s40, s3')
    A('s_lshl_b32 s41, s40, 13')
    A(f's_add_u32 s32, s41, {OB}')
    A(f's_lshl_b32 s42, {s(S_LAYER)}, 24')
    A('s_add_u32 s41, s41, s42')
    A(f's_add_u32 s24, s41, {QB}')
    A(f's_add_u32 s25, s41, {KB}')
    A(f's_add_u32 s26, s41, {VT}')
    A('s_lshl_b32 s41, s40, 11')
    A(f's_lshl_b32 s42, {s(S_LAYER)}, 22')
    A('s_add_u32 s41, s41, s42')
    A(f's_add_u32 s27, s41, {KM}')
    A(f's_add_u32 s31, s41, {VM}')
    A('s_mov_b32 s28, 32')
    A('s_lshr_b32 s41, s40, 5')
    A('s_lshl_b32 s41, s41, 10')
    A('s_add_u32 s41, s41, s46')
    A('s_and_b32 s42, s40, 31')
    A('s_lshl_b32 s43, s42, 4')
    A('s_add_u32 s29, s41, s43')
    A(f's_add_u32 s29, s29, {flag_base(ST_TEAM, 0)}')
    A('s_lshl_b32 s43, s42, 2')
    A('s_add_u32 s30, s41, s43')
    A(f's_add_u32 s30, s30, {flag_base(ST_ATT, 0)}')
    A('s_lshr_b32 s43, s42, 1')
    A('s_lshl_b32 s43, s43, 2')
    A('s_add_u32 s33, s41, s43')
    A(f's_add_u32 s33, s33, {flag_base(ST_PROJ, 0)}')
    att_role(A, 2, end, flags=dict(n=2))

    def own_flag(stage):
        A(f's_lshl_b32 {s(G_FOUT)}, {s(S_IDX)}, 2')
        A(f's_add_u32 {s(G_FOUT)}, {s(G_FOUT)}, s46')
        A(f's_add_u32 {s(G_FOUT)}, {s(G_FOUT)}, {flag_base(stage, 0)}')

    def part_out(base):
        A('s_lshl_b32 s27, s42, 21')
        A('s_lshl_b32 s40, s41, 11')
        A('s_add_u32 s27, s27, s40')
        A('s_lshl_b32 s40, s3, 9')
        A('s_add_u32 s27, s27, s40')
        A(f's_add_u32 s27, s27, {base}')

    A.label(L['out'])
    ptr_srd(A, SRD_A, KA_WO, WQKV_BYTES)
    A(f's_and_b32 s41, {s(S_IDX)}, 1')
    A(f's_lshr_b32 s42, {s(S_IDX)}, 1')
    A('s_lshl_b32 s24, s42, 19')
    A('s_lshl_b32 s40, s41, 9')
    A('s_add_u32 s24, s24, s40')
    A('s_lshl_b32 s40, s3, 7')
    A('s_add_u32 s24, s24, s40')
    A('s_add_u32 s25, s24, 64')
    A('s_lshl_b32 s26, s42, 15')
    A(f's_add_u32 s26, s26, {OB}')
    part_out(PO)
    A('s_mov_b32 s28, 64')
    A(f's_lshl_b32 {s(G_FIN)}, s42, 4')
    A(f's_add_u32 {s(G_FIN)}, {s(G_FIN)}, s46')
    A(f's_add_u32 {s(G_FIN)}, {s(G_FIN)}, {flag_base(ST_ATT, 0)}')
    own_flag(ST_OUT)
    gemm_role(A, 32, 'part', 1024, SRD_A, SRD_A, 262144, PSEG, end,
              flags=dict(n=4, fin_step=1024, fout_step=1024, poll_in=True))

    A.label(L['gu'])
    ptr_srd(A, SRD_A, KA_WG, WGU_BYTES)
    ptr_srd(A, SRD_B, KA_WU, WGU_BYTES)
    A(f's_lshl_b32 s24, {s(S_IDX)}, 8')
    A('s_lshl_b32 s40, s3, 6')
    A('s_add_u32 s24, s24, s40')
    A('s_mov_b32 s25, s24')
    A(f's_lshl_b32 s26, {s(S_LAYER)}, 22')
    A(f's_add_u32 s26, s26, {XN + 2 * MB}')
    A(f's_lshl_b32 s27, {s(S_IDX)}, 13')
    A('s_lshl_b32 s40, s3, 11')
    A('s_add_u32 s27, s27, s40')
    A(f's_add_u32 s27, s27, {HB}')
    A('s_mov_b32 s28, 64')
    A(f's_add_u32 {s(G_FIN)}, s46, {flag_base(ST_RL, 0)}')
    own_flag(ST_GU)
    gemm_role(A, 32, 'gu', 3584, SRD_A, SRD_B, 32768, 224 * 512, end,
              flags=dict(n=8, fin_step=1024, fout_step=1024, poll_in=True))

    A.label(L['dn'])
    ptr_srd(A, SRD_A, KA_WD, WGU_BYTES)
    A(f's_and_b32 s41, {s(S_IDX)}, 1')
    A(f's_lshr_b32 s42, {s(S_IDX)}, 1')
    A(f's_mul_i32 s24, s42, {448 * 1024}')
    A('s_lshl_b32 s40, s41, 9')
    A('s_add_u32 s24, s24, s40')
    A('s_lshl_b32 s40, s3, 7')
    A('s_add_u32 s24, s24, s40')
    A('s_add_u32 s25, s24, 64')
    A(f's_mul_i32 s26, s42, {28 * 1024}')
    A(f's_add_u32 s26, s26, {HB}')
    part_out(PD)
    A('s_mov_b32 s28, 64')
    A(f's_mul_i32 {s(G_FIN)}, s42, 7')
    A(f's_lshr_b32 {s(G_FIN)}, {s(G_FIN)}, 1')
    A(f's_lshl_b32 {s(G_FIN)}, {s(G_FIN)}, 2')
    A(f's_add_u32 {s(G_FIN)}, {s(G_FIN)}, s46')
    A(f's_add_u32 {s(G_FIN)}, {s(G_FIN)}, {flag_base(ST_GU, 0)}')
    own_flag(ST_DN)
    gemm_role(A, 28, 'part', 1024, SRD_A, SRD_A, 224 * 512, PSEG, end,
              flags=dict(n=4, fin_step=1024, fout_step=1024, poll_in=True))

    steps = dict(p=PSEG, x=32768, xn=32768)
    for name, pbase, kbn, st_in, nfl, st_out in (('rl', PO, 8, ST_OUT, 16, ST_RL), ('rl2', PD, 4, ST_DN, 8, ST_RL2)):
        A.label(L[name])
        l1 = A.newlabel('rl_l1')
        A(f's_lshl_b32 s24, {s(S_IDX)}, 12')
        A(f's_add_u32 s24, s24, {pbase}')
        A(f's_lshl_b32 s25, {s(S_IDX)}, 12')
        A('s_mov_b32 s26, s25')
        A(f's_lshl_b32 s27, {s(S_IDX)}, 6')
        A('s_mov_b32 s28, 64')
        A(f's_add_u32 s29, s46, {flag_base(st_in, 0)}')
        own_flag(st_out)
        A(f's_cmp_eq_u32 {s(S_LAYER)}, 1')
        A(f's_cbranch_scc1 {l1}')
        for layer in (0, 1):
            which = layer * 2 + (0 if name == 'rl' else 1)
            if layer == 1:
                A.label(l1)
            if which == 0:
                ptr_srd(A, SRD_A, KA_X, X_BYTES)
            if which == 3:
                ptr_srd(A, SRD_B, KA_OUT, X_BYTES)
            if which > 0:
                A(f's_add_u32 s25, s25, {XR + (which - 1) * 2 * MB}')
            if which < 3:
                A(f's_add_u32 s26, s26, {XR + which * 2 * MB}')
            A(f's_add_u32 s27, s27, {XN + ((which + 1) & 3) * 2 * MB}')
            rl_role(A, kbn, SRD_A if which == 0 else SRD_WS, SRD_B if which == 3 else SRD_WS, which < 3, steps,
                    end, flags=dict(n=nfl, fin_step=1024, fout_step=1024, poll_in=True, signal=which < 3),
                    xin_sc1=which > 0, xout_sc1=which < 3)

    A.label(L['team'])
    load_srds(A, [(SRD_A, KA_WQ, WQKV_BYTES), (SRD_B, KA_WK, WQKV_BYTES),
                  (SRD_C, KA_WV, WQKV_BYTES), (SRD_D, KA_WO, WQKV_BYTES), (SRD_M0, KA_MEM0, 8192)])
    A(f's_lshr_b32 {s(S_LAYER)}, {s(S_SLOT)}, 5')
    A(f's_and_b32 {s(M_ME)}, {s(S_SLOT)}, 31')
    A(f's_lshl_b32 s40, {s(M_ME)}, 13')
    A(f's_lshl_b32 s41, {s(S_LAYER)}, 24')
    A('s_add_u32 s40, s40, s41')
    A(f's_add_u32 {s(M_K)}, s40, {KB}')
    A(f's_add_u32 {s(M_V)}, s40, {VT}')
    A(f's_lshl_b32 s40, {s(M_ME)}, 11')
    A(f's_lshl_b32 s41, {s(S_LAYER)}, 22')
    A('s_add_u32 s40, s40, s41')
    A(f's_add_u32 {s(M_KM)}, s40, {KM}')
    A(f's_add_u32 {s(M_VM)}, s40, {VM}')
    A(f's_lshl_b32 s40, {s(S_LAYER)}, 20')
    A(f's_add_u32 {s(M_TP)}, s40, {TP}')
    A(f's_lshl_b32 s40, {s(S_LAYER)}, 15')
    A(f's_add_u32 {s(M_TM)}, s40, {TM}')
    A(f's_lshl_b32 s41, {s(S_LAYER)}, 16')
    A(f's_lshr_b32 s40, {s(M_ME)}, 1')
    A('s_lshl_b32 s40, s40, 2')
    A('s_add_u32 s40, s40, s41')
    A(f's_add_u32 {s(M_FPR)}, s40, {flag_base(ST_PROJ, 0) + 64}')
    A(f's_lshl_b32 s40, {s(M_ME)}, 4')
    A('s_add_u32 s40, s40, s41')
    A(f's_add_u32 {s(M_FOUT)}, s40, {flag_base(ST_TEAM, 0)}')

    def purity(A):
        lp = A.newlabel('pur')
        dn = A.newlabel('purd')
        A(f's_mov_b32 {s(M_SPIN)}, 0')
        A.label(lp)
        A(f's_add_u32 {s(M_SPIN)}, {s(M_SPIN)}, 1')
        A(f's_cmp_gt_u32 {s(M_SPIN)}, {SPIN_LIMIT}')
        A(f's_cbranch_scc1 {end}')
        read_counts(A, 20, end)
        A(f's_cmp_eq_u32 {s(S_LAYER)}, 0')
        A('s_cselect_b32 s89, s80, s81')
        A(f's_mov_b32 {s(M_FAST)}, 1')
        A('s_cmp_ge_u32 s89, 32')
        A(f's_cbranch_scc1 {dn}')
        A(f's_mov_b32 {s(M_FAST)}, 0')
        A('s_cmp_lt_u32 s88, 256')
        A(f's_cbranch_scc1 {lp}')
        A.label(dn)

    team_role(A, end, flags=dict(poll_in=True, signal=True), force_slow=force_slow, purity=purity, tune=tune,
              stamp=stamp)
```

```python
import struct
from asmdsl import v, a, s
from layout import *

S_WG, S_WAVE = 2, 3
SRD_WS, SRD_A, SRD_B, SRD_C, SRD_D = 4, 8, 12, 16, 20
SPIN_LIMIT = 1 << 17


def f32bits(x):
    return struct.unpack('<I', struct.pack('<f', x))[0]


def srd(i):
    return s(i, 4)


def load_srds(A, items):
    for sreg, off, nb in items:
        A(f's_load_dwordx2 {s(sreg, 2)}, s[0:1], {off}')
    A('s_waitcnt lgkmcnt(0)')
    for sreg, off, nb in items:
        A(f's_mov_b32 {s(sreg + 2)}, {nb}')
        A(f's_mov_b32 {s(sreg + 3)}, 0x00020000')


def wave_setup(A):
    A('v_lshrrev_b32 v3, 6, v0')
    A('v_and_b32 v2, 63, v0')
    A(f'v_readfirstlane_b32 {s(S_WAVE)}, v3')
    A('v_lshlrev_b32 v1, 4, v2')


PROFILE = [False]
GSTAMP = [0]


def emit_signal(A, sflag, vone):
    if PROFILE[0]:
        A('s_memrealtime s[100:101]')
        A('s_waitcnt lgkmcnt(0)')
        A('s_or_b32 s100, s100, 1')
        A(f'v_mov_b32 {v(vone)}, s100')
    A('s_mov_b64 exec, 1')
    A(f'buffer_store_dword {v(vone)}, off, {srd(SRD_WS)}, {s(sflag)} sc1')
    A('s_mov_b64 exec, -1')


def emit_poll_issue(A, vdst, voff, sflag):
    A(f'buffer_load_dword {v(vdst)}, {v(voff)}, {srd(SRD_WS)}, {s(sflag)} offen sc1')


def emit_poll_check(A, vdst):
    A(f'v_cmp_ne_u32 vcc, 0, {v(vdst)}')
    A('s_cmp_eq_u64 vcc, exec')


def emit_poll_block(A, vdst, voff, sflag, scnt, fail_label, sleep=2, pend=None):
    top = A.newlabel('poll')
    done = A.newlabel('polld')
    A(f's_mov_b32 {s(scnt)}, 0')
    A.label(top)
    emit_poll_issue(A, vdst, voff, sflag)
    A('s_waitcnt vmcnt(0)')
    if pend:
        sp, sf, fstep, vone = pend
        ns = A.newlabel('pnos')
        A(f's_cmp_eq_u32 {s(sp)}, 0')
        A(f's_cbranch_scc1 {ns}')
        emit_signal(A, sf, vone)
        A(f's_add_u32 {s(sf)}, {s(sf)}, {fstep}')
        A(f's_mov_b32 {s(sp)}, 0')
        A.label(ns)
    emit_poll_check(A, vdst)
    A(f's_cbranch_scc1 {done}')
    A(f's_sleep {sleep}')
    A(f's_add_u32 {s(scnt)}, {s(scnt)}, 1')
    A(f's_cmp_lt_u32 {s(scnt)}, {SPIN_LIMIT}')
    A(f's_cbranch_scc1 {top}')
    A(f's_branch {fail_label}')
    A.label(done)


L_SYNC = 160 * 1024 - 256


def sync_setup(A, vaddr, vc1, lds=L_SYNC):
    A(f'v_mov_b32 {v(vaddr)}, {lds}')
    A(f'v_mov_b32 {v(vc1)}, 0')
    A(f'ds_write_b32 {v(vaddr)}, {v(vc1)}')
    A(f'ds_write_b32 {v(vaddr)}, {v(vc1)} offset:4')
    A(f'ds_write_b32 {v(vaddr)}, {v(vc1)} offset:8')
    A('s_waitcnt lgkmcnt(0)')
    A(f'v_mov_b32 {v(vc1)}, 1')
    A(f'v_mov_b32 {v(vaddr + 1)}, {lds}')


def emit_signal_agg(A, sflag, vone, vaddr, vc1, vtmp, stmp):
    sk = A.newlabel('agg')
    A('s_mov_b64 exec, 1')
    A(f'ds_add_rtn_u32 {v(vtmp)}, {v(vaddr + 1)}, {v(vc1)}')
    A('s_waitcnt lgkmcnt(0)')
    A(f'v_readfirstlane_b32 {s(stmp)}, {v(vtmp)}')
    A('s_mov_b64 exec, -1')
    A(f'v_xor_b32 {v(vaddr + 1)}, 8, {v(vaddr + 1)}')
    A(f's_and_b32 {s(stmp)}, {s(stmp)}, 3')
    A(f's_cmp_lg_u32 {s(stmp)}, 3')
    A(f's_cbranch_scc1 {sk}')
    emit_signal(A, sflag, vone)
    A.label(sk)


def emit_post_ready(A, sseq, vaddr, vtmp):
    sk = A.newlabel('post')
    A(f's_cmp_lg_u32 {s(S_WAVE)}, 0')
    A(f's_cbranch_scc1 {sk}')
    A(f'v_mov_b32 {v(vtmp)}, {s(sseq)}')
    A(f'ds_write_b32 {v(vaddr)}, {v(vtmp)} offset:4')
    A('s_waitcnt lgkmcnt(0)')
    A.label(sk)


def emit_wait_ready(A, vdst, voff, sflag, sseq, scnt, stmp, vaddr, fail_label, sleep=2):
    oth = A.newlabel('wro')
    done = A.newlabel('wrd')
    A(f's_cmp_lg_u32 {s(S_WAVE)}, 0')
    A(f's_cbranch_scc1 {oth}')
    emit_poll_block(A, vdst, voff, sflag, scnt, fail_label, sleep=sleep)
    A(f'v_mov_b32 {v(vdst)}, {s(sseq)}')
    A(f'ds_write_b32 {v(vaddr)}, {v(vdst)} offset:4')
    A('s_waitcnt lgkmcnt(0)')
    A(f's_branch {done}')
    A.label(oth)
    A(f's_mov_b32 {s(scnt)}, 0')
    lp = A.newlabel('wrl')
    A.label(lp)
    A(f'ds_read_b32 {v(vdst)}, {v(vaddr)} offset:4')
    A(f's_add_u32 {s(scnt)}, {s(scnt)}, 1')
    A(f's_cmp_gt_u32 {s(scnt)}, {SPIN_LIMIT * 16}')
    A(f's_cbranch_scc1 {fail_label}')
    A('s_waitcnt lgkmcnt(0)')
    A(f'v_readfirstlane_b32 {s(stmp)}, {v(vdst)}')
    A(f's_cmp_ge_u32 {s(stmp)}, {s(sseq)}')
    A(f's_cbranch_scc1 {done}')
    A('s_sleep 1')
    A(f's_branch {lp}')
    A.label(done)


G_W0, G_W1, G_IN, G_OUT, G_CNT, G_FIN, G_FOUT = 24, 25, 26, 27, 28, 29, 30
G_T0, G_T1, G_PREF, G_PEND, G_SPIN, G_M0 = 31, 32, 33, 34, 35, 36


def gemm_setup(A, NK, mode, wstride, srd0, srd1):
    vL16, vLane = 1, 2
    vT0, vT1, vT2 = 3, 4, 5
    vW, vTr, vRd, vOut, vOut2, vDma, vFl, vFv, vOne = 6, 7, 8, 9, 10, 11, 12, 13, 14
    D = 4
    R = D + 1
    FR = 16
    ACC = [40, 56]
    TMP = 72
    phi_cols = mode != 'v'
    A(f'v_lshrrev_b32 {v(vT0)}, 2, {v(vLane)}')
    A(f's_mov_b32 {s(G_T0)}, {wstride}')
    A(f'v_mul_lo_u32 {v(vW)}, {v(vT0)}, {s(G_T0)}')
    A(f'v_and_b32 {v(vT0)}, 3, {v(vLane)}')
    A(f'v_lshl_add_u32 {v(vW)}, {v(vT0)}, 4, {v(vW)}')
    A(f'v_bfe_u32 {v(vT1)}, {v(vLane)}, 2, 2')
    A(f'v_lshrrev_b32 {v(vT2)}, 5, {v(vLane)}')
    A(f'v_lshl_add_u32 {v(vT1)}, {v(vT2)}, 3, {v(vT1)}')
    A(f'v_lshlrev_b32 {v(vTr)}, 6, {v(vT1)}')
    A(f'v_bfe_u32 {v(vT1)}, {v(vLane)}, 4, 1')
    A(f'v_lshl_add_u32 {v(vTr)}, {v(vT1)}, 5, {v(vTr)}')
    if phi_cols:
        A(f'v_and_b32 {v(vT1)}, 1, {v(vLane)}')
        A(f'v_lshl_add_u32 {v(vTr)}, {v(vT1)}, 4, {v(vTr)}')
        A(f'v_bfe_u32 {v(vT1)}, {v(vLane)}, 1, 1')
        A(f'v_lshl_add_u32 {v(vTr)}, {v(vT1)}, 3, {v(vTr)}')
    else:
        A(f'v_lshl_add_u32 {v(vTr)}, {v(vT0)}, 3, {v(vTr)}')
    A(f's_lshl_b32 {s(G_T0)}, {s(S_WAVE)}, 15')
    A(f'v_add_u32 {v(vTr)}, {s(G_T0)}, {v(vTr)}')
    A(f'v_mov_b32 {v(vOne)}, 1')
    rounds = [list(range(c, min(c + 8, NK))) for c in range(0, NK, 8)]

    def issue_round(r):
        A(f's_lshl_b32 {s(G_M0)}, {s(S_WAVE)}, 15')
        A(f's_add_u32 m0, {s(G_M0)}, {(r & 1) * 16384}')
        first = True
        for c in rounds[r]:
            for t in (0, 1):
                if not first:
                    A('s_add_u32 m0, m0, 1024')
                first = False
                sw = G_W0 if t == 0 else G_W1
                A(f'buffer_load_dwordx4 {v(vW)}, {srd(srd0 if t == 0 else srd1)}, {s(sw)} offen lds')
                A(f's_add_u32 {s(sw)}, {s(sw)}, {16 * wstride}')

    def read_round(r):
        for ci, c in enumerate(rounds[r]):
            for t in (0, 1):
                base = (r & 1) * 16384 + (ci * 2 + t) * 1024
                ar = (t * 32 + c) * 4
                A(f'ds_read_b64_tr_b16 {a(ar, 2)}, {v(vTr)} offset:{base}')
                A(f'ds_read_b64_tr_b16 {a(ar + 2, 2)}, {v(vTr)} offset:{base + 256}')
        A('s_waitcnt lgkmcnt(0)')

    nr = len(rounds)
    issue_round(0)
    if nr > 1:
        issue_round(1)
    for r in range(nr):
        nxt = 2 * len(rounds[r + 1]) if r + 1 < nr else 0
        A(f's_waitcnt vmcnt({nxt})')
        read_round(r)
        if r + 2 < nr:
            issue_round(r + 2)
    if mode == 'v':
        A(f'v_and_b32 {v(vT0)}, 0x33, {v(vLane)}')
        A(f'v_bfe_u32 {v(vT1)}, {v(vLane)}, 2, 1')
        A(f'v_lshl_or_b32 {v(vT0)}, {v(vT1)}, 3, {v(vT0)}')
        A(f'v_bfe_u32 {v(vT1)}, {v(vLane)}, 3, 1')
        A(f'v_lshl_or_b32 {v(vT0)}, {v(vT1)}, 2, {v(vT0)}')
        A(f'v_lshlrev_b32 {v(vRd)}, 4, {v(vT0)}')
        A(f'v_and_b32 {v(vT0)}, 31, {v(vLane)}')
        A(f'v_lshlrev_b32 {v(vOut)}, 4, {v(vT0)}')
        A(f'v_lshrrev_b32 {v(vT1)}, 5, {v(vLane)}')
        A(f'v_lshl_add_u32 {v(vOut)}, {v(vT1)}, 11, {v(vOut)}')
        A(f'v_add_u32 {v(vOut2)}, 4096, {v(vOut)}')
    else:
        A(f'v_mov_b32 {v(vRd)}, {v(vL16)}')
        if mode == 'part':
            A(f'v_bfe_u32 {v(vT0)}, {v(vLane)}, 2, 3')
            A(f'v_lshlrev_b32 {v(vOut)}, 12, {v(vT0)}')
            A(f'v_lshrrev_b32 {v(vT1)}, 5, {v(vLane)}')
            A(f'v_lshl_add_u32 {v(vOut)}, {v(vT1)}, 6, {v(vOut)}')
            A(f'v_and_b32 {v(vT0)}, 3, {v(vLane)}')
            A(f'v_lshl_add_u32 {v(vOut)}, {v(vT0)}, 4, {v(vOut)}')
        else:
            A(f'v_mov_b32 {v(vOut)}, {v(vL16)}')
    if mode == 'gu':
        c0 = -2.0 * 0.7978845608028654 * 1.4426950408889634
        A(f's_mov_b32 s40, {f32bits(c0 * 0.044715):#x}')
        A(f'v_mov_b32 {v(vT2)}, {f32bits(c0):#x}')


OOB = 0x7ff00000


def gemm_loop(A, NK, mode, in_step, out_step, fail, flags=None, sc1=True):
    vL16, vLane = 1, 2
    vT0, vT1, vT2 = 3, 4, 5
    vW, vTr, vRd, vOut, vOut2, vDma, vFl, vFv, vOne = 6, 7, 8, 9, 10, 11, 12, 13, 14
    D = 4
    R = D + 1
    FR = 16
    ACC = [40, 56]
    TMP = 72
    SC = ' sc1' if sc1 else ''
    G_SRC, G_SEQ = 37, 38
    vSy, vC1, vSt = 36, 38, 39
    per_wave = NK // 4
    assert NK % 4 == 0
    A(f's_lshl_b32 {s(G_T0)}, {s(S_WAVE)}, 10')
    A(f'v_add_u32 {v(vDma)}, {s(G_T0)}, {v(vL16)}')
    A(f's_mov_b32 {s(G_M0)}, {s(G_T0)}')
    if flags:
        A(f'v_min_u32 {v(vFl)}, {flags["n"] - 1}, {v(vLane)}')
        A(f'v_lshlrev_b32 {v(vFl)}, 2, {v(vFl)}')

    def dma_piece(j):
        if j == 0:
            A(f's_mov_b32 m0, {s(G_M0)}')
        else:
            A('s_add_u32 m0, m0, 4096')
            A(f's_add_u32 {s(G_SRC)}, {s(G_SRC)}, 4096')
        A(f'buffer_load_dwordx4 {v(vDma)}, {srd(SRD_WS)}, {s(G_SRC)} offen{SC} lds')

    def advance():
        A(f's_add_u32 {s(G_IN)}, {s(G_IN)}, {in_step}')
        A(f's_xor_b32 {s(G_M0)}, {s(G_M0)}, 32768')
        if poll_in:
            A(f's_add_u32 {s(G_FIN)}, {s(G_FIN)}, {flags["fin_step"]}')
            A(f's_add_u32 {s(G_SEQ)}, {s(G_SEQ)}, 1')

    def signal():
        emit_signal_agg(A, G_FOUT, vOne, vSy, vC1, vSt, G_T0)
        A(f's_add_u32 {s(G_FOUT)}, {s(G_FOUT)}, {flags["fout_step"]}')
        A(f's_mov_b32 {s(G_PEND)}, 0')

    def issue_dma():
        A(f's_mov_b32 {s(G_SRC)}, {s(G_IN)}')
        for j in range(per_wave):
            dma_piece(j)
        advance()

    NST = {'qk': 4, 'v': 4, 'gu': 2, 'part': 4}[mode]
    poll_in = bool(flags and flags.get('poll_in', True))
    A(f'v_and_b32 {v(vRd)}, 0x7fff, {v(vRd)}')
    if flags:
        sync_setup(A, vSy, vC1)
        A(f's_mov_b32 {s(G_SEQ)}, 1')
    A('s_barrier')
    if poll_in:
        emit_wait_ready(A, vFv, vFl, G_FIN, G_SEQ, G_SPIN, G_T0, vSy, fail, sleep=8)
    issue_dma()
    A(f's_mov_b32 {s(G_PEND)}, 0')
    A('s_waitcnt vmcnt(0)')
    top = A.newlabel('gtop')
    A.label(top)
    GS = GSTAMP[0]
    if GS:
        A('s_mov_b64 s[72:73], s[60:61]')
        A('s_mov_b64 s[74:75], s[70:71]')
        A('s_memtime s[60:61]')
        A('s_memrealtime s[70:71]')
    A(f's_waitcnt vmcnt({NST})')
    if GS:
        A('s_memtime s[62:63]')
    A('s_barrier')
    if GS:
        A('s_memtime s[64:65]')

    def rd(c):
        A(f'ds_read_b128 {v(FR + (c % R) * 4, 4)}, {v(vRd)} offset:{c * 1024}')

    for c in range(D):
        rd(c)
    A(f's_sub_u32 {s(G_CNT)}, {s(G_CNT)}, 1')
    mid = NK // 2 - 2
    if not poll_in:
        A(f's_cmp_eq_u32 {s(G_CNT)}, 0')
        A(f's_cselect_b32 {s(G_SRC)}, {OOB}, {s(G_IN)}')
        dma_at = {1 + 2 * j: j for j in range(per_wave)}
        mid = 2 * per_wave + 2
    else:
        emit_poll_issue(A, vFv, vFl, G_FIN)
        dma_at = {mid + 1 + 2 * j: j for j in range(per_wave)}
    assert max(dma_at) < NK
    for c in range(NK):
        if c + D < NK:
            rd(c + D)
        A(f's_waitcnt lgkmcnt({min(D, NK - 1 - c)})')
        f = v(FR + (c % R) * 4, 4)
        for t in (0, 1):
            w = a((t * 32 + c) * 4, 4)
            cin = '0' if c == 0 else v(ACC[t], 16)
            if mode == 'v':
                A(f'v_mfma_f32_32x32x16_bf16 {v(ACC[t], 16)}, {f}, {w}, {cin}')
            else:
                A(f'v_mfma_f32_32x32x16_bf16 {v(ACC[t], 16)}, {w}, {f}, {cin}')
        if c in dma_at:
            dma_piece(dma_at[c])
        if flags and c == mid:
            A(f's_waitcnt vmcnt({0 if poll_in else per_wave})')
            nosig = A.newlabel('gnosig')
            A(f's_cmp_eq_u32 {s(G_PEND)}, 0')
            A(f's_cbranch_scc1 {nosig}')
            signal()
            A.label(nosig)
            if poll_in:
                emit_poll_check(A, vFv)
                A(f's_cselect_b32 {s(G_PREF)}, 1, 0')
                A(f's_cmp_eq_u32 {s(G_CNT)}, 0')
                A(f's_cselect_b32 {s(G_PREF)}, 0, {s(G_PREF)}')
                A(f's_cmp_eq_u32 {s(G_PREF)}, 1')
                A(f's_cselect_b32 {s(G_SRC)}, {s(G_IN)}, {OOB}')
    A(f'v_xor_b32 {v(vRd)}, 32768, {v(vRd)}')
    if GS:
        A('s_memtime s[66:67]')
    if mode in ('qk', 'v', 'part'):
        for t in (0, 1):
            for f in (0, 1):
                d = TMP + (t * 2 + f) * 4
                for j in range(4):
                    r0 = ACC[t] + f * 8 + 2 * j
                    A(f'v_cvt_pk_bf16_f32 {v(d + j)}, {v(r0)}, {v(r0 + 1)}')
                if mode == 'qk':
                    A(f'buffer_store_dwordx4 {v(d, 4)}, {v(vOut)}, {srd(SRD_WS)}, {s(G_OUT)} offen '
                      f'offset:{(t * 2 + f) * 1024}{SC}')
                elif mode == 'part':
                    A(f'buffer_store_dwordx4 {v(d, 4)}, {v(vOut)}, {srd(SRD_WS)}, {s(G_OUT)} offen '
                      f'offset:{(t * 2 + f) * 128}{SC}')
                else:
                    A(f'buffer_store_dwordx4 {v(d, 4)}, {v(vOut if f == 0 else vOut2)}, {srd(SRD_WS)}, '
                      f'{s(G_OUT)} offen offset:{t * 512}{SC}')
    elif mode == 'gu':
        G, U = ACC
        T1 = TMP
        for f in (0, 1):
            idx = range(f * 8, f * 8 + 8)
            for i in idx:
                A(f'v_mul_f32 {v(T1 + i)}, {v(G + i)}, {v(G + i)}')
            for i in idx:
                A(f'v_fma_f32 {v(T1 + i)}, {v(T1 + i)}, s40, {v(vT2)}')
            for i in idx:
                A(f'v_mul_f32 {v(T1 + i)}, {v(T1 + i)}, {v(G + i)}')
            for i in idx:
                A(f'v_exp_f32 {v(T1 + i)}, {v(T1 + i)}')
            for i in idx:
                A(f'v_add_f32 {v(T1 + i)}, 1.0, {v(T1 + i)}')
            for i in idx:
                A(f'v_rcp_f32 {v(T1 + i)}, {v(T1 + i)}')
            for i in idx:
                A(f'v_mul_f32 {v(G + i)}, {v(G + i)}, {v(U + i)}')
            for i in idx:
                A(f'v_mul_f32 {v(T1 + i)}, {v(T1 + i)}, {v(G + i)}')
            d = TMP + 16 + f * 4
            for j in range(4):
                A(f'v_cvt_pk_bf16_f32 {v(d + j)}, {v(T1 + f * 8 + 2 * j)}, {v(T1 + f * 8 + 2 * j + 1)}')
            A(f'buffer_store_dwordx4 {v(d, 4)}, {v(vOut)}, {srd(SRD_WS)}, {s(G_OUT)} offen '
              f'offset:{f * 1024}{SC}')
    if GS:
        A('s_memtime s[68:69]')
        sk = A.newlabel('gsk')
        A('s_waitcnt lgkmcnt(0)')
        A(f's_cmp_lg_u32 {s(G_CNT)}, {GS}')
        A(f's_cbranch_scc1 {sk}')
        A('s_lshl_b32 s76, s2, 2')
        A('s_add_u32 s76, s76, s3')
        A('s_lshl_b32 s76, s76, 6')
        A(f's_add_u32 s76, s76, {TCTL + 65536}')
        A('s_mov_b64 exec, 1')
        for i, r in enumerate((60, 62, 64, 66, 68, 70, 72, 74)):
            A(f'v_mov_b32 {v(vT0)}, s{r}')
            A(f'buffer_store_dword {v(vT0)}, off, {srd(SRD_WS)}, s76 offset:{4 * i}')
        A('s_mov_b64 exec, -1')
        A('s_waitcnt vmcnt(0)')
        A.label(sk)
    A(f's_add_u32 {s(G_OUT)}, {s(G_OUT)}, {out_step}')
    if flags:
        A(f's_mov_b32 {s(G_PEND)}, 1')
    last = A.newlabel('glast')
    A(f's_cmp_eq_u32 {s(G_CNT)}, 0')
    A(f's_cbranch_scc1 {last}')
    if poll_in:
        blk = A.newlabel('gblk')
        A(f's_cmp_eq_u32 {s(G_PREF)}, 0')
        A(f's_cbranch_scc1 {blk}')
        emit_post_ready(A, G_SEQ, vSy, vSt)
        advance()
        A(f's_branch {top}')
        A.label(blk)
        A('s_waitcnt vmcnt(0)')
        signal()
        emit_wait_ready(A, vFv, vFl, G_FIN, G_SEQ, G_SPIN, G_T0, vSy, fail, sleep=2)
        issue_dma()
        A('s_waitcnt vmcnt(0)')
    else:
        advance()
    A(f's_branch {top}')
    A.label(last)
    if flags:
        A('s_waitcnt vmcnt(0)')
        signal()


def gemm_role(A, NK, mode, wstride, srd0, srd1, in_step, out_step, end_label, flags=None, sc1=True):
    gemm_setup(A, NK, mode, wstride, srd0, srd1)
    gemm_loop(A, NK, mode, in_step, out_step, end_label, flags, sc1)
    A(f's_branch {end_label}')


PSEG = 32768


def rl_role(A, KBN, srd_xin, srd_xout, do_ln, steps, end_label, flags=None, sc1=True, xin_sc1=True,
            xout_sc1=True):
    R_P, R_XI, R_XO, R_XN, R_CNT, R_FIN, R_FOUT, R_T0, R_PREF, R_PEND, R_SPIN = \
        24, 25, 26, 27, 28, 29, 30, 31, 33, 34, 35
    vLane = 2
    vT0, vT1, vT2 = 3, 4, 5
    vP, vX, vN, vLw, vLr, vFl, vFv, vOne = 6, 7, 8, 9, 10, 11, 12, 13
    XF = 16
    PK = 24
    PN = 28
    ST = 32
    AC = 44
    UP = 52
    SETS = [60, 60 + 4 + 4 * KBN]
    vSy, vC1, vSt = 14, 4, 5
    R_SEQ = 36
    SC = ' sc1' if sc1 else ''
    A(f'v_and_b32 {v(vT0)}, 3, v0')
    A(f'v_lshrrev_b32 {v(vT1)}, 2, v0')
    A(f'v_lshlrev_b32 {v(vP)}, 4, v0')
    A(f'v_lshlrev_b32 {v(vX)}, 10, {v(vT0)}')
    A(f'v_lshl_add_u32 {v(vX)}, {v(vT1)}, 4, {v(vX)}')
    A(f'v_lshlrev_b32 {v(vN)}, 9, {v(vT1)}')
    A(f'v_lshl_add_u32 {v(vN)}, {v(vT0)}, 4, {v(vN)}')
    A(f'v_lshlrev_b32 {v(vLr)}, 4, {v(vT0)}')
    A(f's_lshl_b32 {s(R_T0)}, {s(S_WAVE)}, 2')
    A(f'v_add_u32 {v(vLw)}, {s(R_T0)}, {v(vLr)}')
    A(f'v_mov_b32 {v(vOne)}, 1')
    A(f's_mov_b32 s40, 0xffff0000')
    poll_in = bool(flags and flags.get('poll_in', True))
    sig = bool(flags and flags.get('signal', True))
    if flags:
        A(f'v_min_u32 {v(vFl)}, {flags["n"] - 1}, {v(vLane)}')
        A(f'v_lshlrev_b32 {v(vFl)}, 2, {v(vFl)}')
    if flags:
        sync_setup(A, vSy, vC1)
        A(f's_mov_b32 {s(R_SEQ)}, 1')
        A('s_barrier')

    def signal():
        emit_signal_agg(A, R_FOUT, vOne, vSy, vC1, vSt, R_T0)
        A(f's_add_u32 {s(R_FOUT)}, {s(R_FOUT)}, {flags["fout_step"]}')
        A(f's_mov_b32 {s(R_PEND)}, 0')

    def loads(S):
        A(f'buffer_load_dwordx4 {v(S, 4)}, {v(vX)}, {srd(srd_xin)}, {s(R_XI)} offen{" sc1" if xin_sc1 else ""}')
        A(f's_mov_b32 {s(R_T0)}, {s(R_P)}')
        for kb in range(KBN):
            A(f'buffer_load_dwordx4 {v(S + 4 + kb * 4, 4)}, {v(vP)}, {srd(SRD_WS)}, {s(R_T0)} offen{SC}')
            if kb + 1 < KBN:
                A(f's_add_u32 {s(R_T0)}, {s(R_T0)}, {NSEG * PSEG}')
        A(f's_add_u32 {s(R_P)}, {s(R_P)}, {steps["p"]}')
        A(f's_add_u32 {s(R_XI)}, {s(R_XI)}, {steps["x"]}')
        if poll_in:
            A(f's_add_u32 {s(R_FIN)}, {s(R_FIN)}, {flags["fin_step"]}')
            A(f's_add_u32 {s(R_SEQ)}, {s(R_SEQ)}, 1')

    def unpack(dst, src):
        for j in range(4):
            A(f'v_lshlrev_b32 {v(dst + 2 * j)}, 16, {v(src + j)}')
            A(f'v_and_b32 {v(dst + 2 * j + 1)}, s40, {v(src + j)}')

    def pack(dst, src):
        for j in range(4):
            A(f'v_cvt_pk_bf16_f32 {v(dst + j)}, {v(src + 2 * j)}, {v(src + 2 * j + 1)}')

    def row_reduce(r, ldsoff):
        t = ST + 7
        A(f'v_add_f32_dpp {v(r)}, {v(r)}, {v(r)} row_ror:4 row_mask:0xf bank_mask:0xf')
        A(f'v_add_f32_dpp {v(r)}, {v(r)}, {v(r)} row_ror:8 row_mask:0xf bank_mask:0xf')
        A(f'v_mov_b32 {v(t)}, {v(r)}')
        A(f'v_permlane16_swap_b32 {v(r)}, {v(t)}')
        A(f'v_add_f32 {v(r)}, {v(r)}, {v(t)}')
        A(f'v_mov_b32 {v(t)}, {v(r)}')
        A(f'v_permlane32_swap_b32 {v(r)}, {v(t)}')
        A(f'v_add_f32 {v(r)}, {v(r)}, {v(t)}')
        A(f'ds_write_b32 {v(vLw)}, {v(r)} offset:{ldsoff}')
        A('s_waitcnt lgkmcnt(0)')
        A('s_barrier')
        A(f'ds_read_b128 {v(ST + 8, 4)}, {v(vLr)} offset:{ldsoff}')
        A('s_waitcnt lgkmcnt(0)')
        A(f'v_add_f32 {v(ST + 8)}, {v(ST + 8)}, {v(ST + 9)}')
        A(f'v_add_f32 {v(ST + 10)}, {v(ST + 10)}, {v(ST + 11)}')
        A(f'v_add_f32 {v(r)}, {v(ST + 8)}, {v(ST + 10)}')

    def round_bf16(r):
        A(f'v_cvt_pk_bf16_f32 {v(r)}, {v(r)}, {v(r)}')
        A(f'v_lshlrev_b32 {v(r)}, 16, {v(r)}')

    def compute(S):
        unpack(XF, S)
        if KBN:
            unpack(AC, S + 4)
            for kb in range(1, KBN):
                unpack(UP, S + 4 + kb * 4)
                for j in range(8):
                    A(f'v_add_f32 {v(AC + j)}, {v(AC + j)}, {v(UP + j)}')
            pack(PK, AC)
            unpack(AC, PK)
            for j in range(8):
                A(f'v_add_f32 {v(XF + j)}, {v(XF + j)}, {v(AC + j)}')
            pack(PK, XF)
            A(f'buffer_store_dwordx4 {v(PK, 4)}, {v(vX)}, {srd(srd_xout)}, {s(R_XO)} offen'
              f'{" sc1" if xout_sc1 else ""}')
            if do_ln:
                unpack(XF, PK)
        if do_ln:
            m, q = ST, ST + 1
            A(f'v_add_f32 {v(m)}, {v(XF)}, {v(XF + 1)}')
            A(f'v_add_f32 {v(q)}, {v(XF + 2)}, {v(XF + 3)}')
            A(f'v_add_f32 {v(ST + 2)}, {v(XF + 4)}, {v(XF + 5)}')
            A(f'v_add_f32 {v(ST + 3)}, {v(XF + 6)}, {v(XF + 7)}')
            A(f'v_add_f32 {v(m)}, {v(m)}, {v(q)}')
            A(f'v_add_f32 {v(ST + 2)}, {v(ST + 2)}, {v(ST + 3)}')
            A(f'v_add_f32 {v(m)}, {v(m)}, {v(ST + 2)}')
            row_reduce(m, 0)
            A(f'v_mul_f32 {v(m)}, {f32bits(1.0 / 512):#x}, {v(m)}')
            for j in range(8):
                A(f'v_sub_f32 {v(AC + j)}, {v(XF + j)}, {v(m)}')
            A(f'v_mul_f32 {v(q)}, {v(AC)}, {v(AC)}')
            for j in range(1, 8):
                A(f'v_fmac_f32 {v(q)}, {v(AC + j)}, {v(AC + j)}')
            row_reduce(q, 64)
            A(f'v_mul_f32 {v(q)}, {f32bits(1.0 / 512):#x}, {v(q)}')
            round_bf16(q)
            A(f'v_add_f32 {v(q)}, {f32bits(1e-5):#x}, {v(q)}')
            round_bf16(q)
            A(f'v_sqrt_f32 {v(q)}, {v(q)}')
            round_bf16(q)
            A(f'v_rcp_f32 {v(q)}, {v(q)}')
            round_bf16(m)
            for j in range(8):
                A(f'v_sub_f32 {v(AC + j)}, {v(XF + j)}, {v(m)}')
            pack(PN, AC)
            unpack(AC, PN)
            for j in range(8):
                A(f'v_mul_f32 {v(AC + j)}, {v(AC + j)}, {v(q)}')
            pack(PN, AC)
            A(f'buffer_store_dwordx4 {v(PN, 4)}, {v(vN)}, {srd(SRD_WS)}, {s(R_XN)} offen{SC}')
        A(f's_add_u32 {s(R_XO)}, {s(R_XO)}, {steps["x"]}')
        A(f's_add_u32 {s(R_XN)}, {s(R_XN)}, {steps["xn"]}')

    A(f's_mov_b32 {s(R_PEND)}, 0')
    if poll_in:
        emit_wait_ready(A, vFv, vFl, R_FIN, R_SEQ, R_SPIN, R_T0, vSy, end_label, sleep=8)
    loads(SETS[0])
    top = A.newlabel('rltop')
    last = A.newlabel('rllast')
    A.label(top)
    for u in (0, 1):
        S, O = SETS[u], SETS[1 - u]
        A(f's_sub_u32 {s(R_CNT)}, {s(R_CNT)}, 1')
        if poll_in:
            emit_poll_issue(A, vFv, vFl, R_FIN)
        A('s_waitcnt vmcnt(0)')
        if sig:
            ns = A.newlabel('rlns')
            A(f's_cmp_eq_u32 {s(R_PEND)}, 0')
            A(f's_cbranch_scc1 {ns}')
            signal()
            A.label(ns)
        nopf = A.newlabel('rlnopf')
        A(f's_mov_b32 {s(R_PREF)}, 0')
        A(f's_cmp_eq_u32 {s(R_CNT)}, 0')
        A(f's_cbranch_scc1 {nopf}')
        if poll_in:
            emit_poll_check(A, vFv)
            A(f's_cbranch_scc0 {nopf}')
            emit_post_ready(A, R_SEQ, vSy, vSt)
        loads(O)
        A(f's_mov_b32 {s(R_PREF)}, 1')
        A.label(nopf)
        compute(S)
        A(f's_mov_b32 {s(R_PEND)}, 1')
        A(f's_cmp_eq_u32 {s(R_CNT)}, 0')
        A(f's_cbranch_scc1 {last}')
        if poll_in:
            nx = A.newlabel('rlnx')
            A(f's_cmp_eq_u32 {s(R_PREF)}, 1')
            A(f's_cbranch_scc1 {nx}')
            if sig:
                A('s_waitcnt vmcnt(0)')
                signal()
            emit_wait_ready(A, vFv, vFl, R_FIN, R_SEQ, R_SPIN, R_T0, vSy, end_label, sleep=2)
            loads(O)
            A.label(nx)
    A(f's_branch {top}')
    A.label(last)
    if sig:
        A('s_waitcnt vmcnt(0)')
        signal()
    A(f's_branch {end_label}')


def att_role(A, segstep, end_label, flags=None, sc1=True):
    T_Q, T_K, T_V, T_KM, T_CNT, T_FIN, T_FOUT, T_VM, T_O, T_FPR, T_T0, T_SPIN = \
        24, 25, 26, 27, 28, 29, 30, 31, 32, 33, 34, 35
    vL16, vLane = 1, 2
    vT0, vT1, vT2 = 3, 4, 5
    vK, vKM, vV, vVM, vFl, vFv, vOne, vFp = 6, 7, 8, 9, 10, 11, 12, 13
    BIAS = 16
    QF, KF, KMF, VF, VMF = 32, 64, 96, 128, 160
    SX, SM = 176, 192
    PB = 208
    OA = 32
    OP = 220
    SC = ' sc1' if sc1 else ''
    scale_log2e = (128 ** -0.5) * 1.4426950408889634
    A(f'v_and_b32 {v(vT0)}, 0x13, {v(vLane)}')
    A(f'v_bfe_u32 {v(vT1)}, {v(vLane)}, 2, 1')
    A(f'v_lshl_or_b32 {v(vT0)}, {v(vT1)}, 3, {v(vT0)}')
    A(f'v_bfe_u32 {v(vT1)}, {v(vLane)}, 3, 1')
    A(f'v_lshl_or_b32 {v(vT0)}, {v(vT1)}, 2, {v(vT0)}')
    A(f'v_lshrrev_b32 {v(vT1)}, 5, {v(vLane)}')
    A(f'v_lshlrev_b32 {v(vK)}, 4, {v(vT0)}')
    A(f'v_lshl_add_u32 {v(vK)}, {v(vT1)}, 9, {v(vK)}')
    A(f'v_lshlrev_b32 {v(vV)}, 4, {v(vT0)}')
    A(f'v_lshl_add_u32 {v(vV)}, {v(vT1)}, 11, {v(vV)}')
    A(f'v_lshlrev_b32 {v(vVM)}, 3, {v(vT0)}')
    A(f'v_lshl_add_u32 {v(vVM)}, {v(vT1)}, 10, {v(vVM)}')
    A(f'v_and_b32 {v(vT2)}, 7, {v(vLane)}')
    A(f'v_lshlrev_b32 {v(vKM)}, 4, {v(vT2)}')
    A(f'v_lshl_add_u32 {v(vKM)}, {v(vT1)}, 7, {v(vKM)}')
    A(f'v_and_b32 {v(vT2)}, 31, {v(vLane)}')
    A(f'v_lshlrev_b32 {v(vT1)}, 3, {v(vT1)}')
    A(f'v_sub_u32 {v(vT2)}, {v(vT2)}, {v(vT1)}')
    A(f'v_mov_b32 {v(vT0)}, {f32bits(-1e30):#x}')
    for i in range(16):
        A(f'v_cmp_gt_i32 vcc, {16 * (i >> 3) + (i & 7)}, {v(vT2)}')
        A(f'v_cndmask_b32 {v(BIAS + i)}, 0, {v(vT0)}, vcc')
    for T in range(4):
        A(f'v_mov_b32 {v(VMF + T * 4 + 2)}, 0')
        A(f'v_mov_b32 {v(VMF + T * 4 + 3)}, 0')
    A(f'v_mov_b32 {v(PB + 10)}, 0')
    A(f'v_mov_b32 {v(PB + 11)}, 0')
    A(f'v_mov_b32 {v(vOne)}, 1')
    A(f's_mov_b32 s40, {f32bits(scale_log2e):#x}')
    if flags:
        A(f'v_min_u32 {v(vFl)}, {flags["n"] - 1}, {v(vLane)}')
        A(f'v_lshlrev_b32 {v(vFl)}, 2, {v(vFl)}')
        if True:
            A(f'v_min_u32 {v(vT0)}, 2, {v(vLane)}')
            A(f'v_lshlrev_b32 {v(vFp)}, 6, {v(vT0)}')
    T_PEND = 36
    A(f's_mov_b32 {s(T_PEND)}, 0')
    top = A.newlabel('atop')
    A.label(top)
    if flags:
        emit_poll_block(A, vFv, vFp, T_FPR, T_SPIN, end_label, sleep=8,
                        pend=(T_PEND, T_FOUT, 1024 * segstep, vOne))
        A(f's_add_u32 {s(T_FPR)}, {s(T_FPR)}, {1024 * segstep}')

    def ld8(dst, voff, soff):
        A(f's_add_u32 {s(T_T0)}, {s(soff)}, 4096')
        for c in range(8):
            so = soff if c < 4 else T_T0
            A(f'buffer_load_dwordx4 {v(dst + c * 4, 4)}, {v(voff)}, {srd(SRD_WS)}, {s(so)} offen '
              f'offset:{(c & 3) * 1024}{SC}')

    ld8(KF, vK, T_K)
    ld8(QF, vL16, T_Q)
    A(f's_add_u32 {s(T_T0)}, {s(T_V)}, 4096')
    for T in range(4):
        for f in (0, 1):
            so = T_V if f == 0 else T_T0
            A(f'buffer_load_dwordx4 {v(VF + (T * 2 + f) * 4, 4)}, {v(vV)}, {srd(SRD_WS)}, {s(so)} offen '
              f'offset:{T * 512}{SC}')
    for c in range(8):
        A(f's_waitcnt vmcnt({8 + 7 - c})')
        cin = '0' if c == 0 else v(SX, 16)
        A(f'v_mfma_f32_32x32x16_bf16 {v(SX, 16)}, {v(KF + c * 4, 4)}, {v(QF + c * 4, 4)}, {cin}')
    if flags:
        emit_poll_block(A, vFv, vFl, T_FIN, T_SPIN, end_label, sleep=3)
        A(f's_add_u32 {s(T_FIN)}, {s(T_FIN)}, {1024 * segstep}')
    for c in range(8):
        A(f'buffer_load_dwordx4 {v(KMF + c * 4, 4)}, {v(vKM)}, {srd(SRD_WS)}, {s(T_KM)} offen '
          f'offset:{c * 256}{SC}')
    for T in range(4):
        A(f'buffer_load_dwordx2 {v(VMF + T * 4, 2)}, {v(vVM)}, {srd(SRD_WS)}, {s(T_VM)} offen '
          f'offset:{T * 256}{SC}')
    for i in range(16):
        A(f'v_fma_f32 {v(SX + i)}, {v(SX + i)}, s40, {v(BIAS + i)}')
    mx = vT0
    A(f'v_max3_f32 {v(mx)}, {v(SX)}, {v(SX + 1)}, {v(SX + 2)}')
    for i in range(3, 15, 2):
        A(f'v_max3_f32 {v(mx)}, {v(mx)}, {v(SX + i)}, {v(SX + i + 1)}')
    A(f'v_max_f32 {v(mx)}, {v(mx)}, {v(SX + 15)}')
    for c in range(8):
        A(f's_waitcnt vmcnt({4 + 7 - c})')
        cin = '0' if c == 0 else v(SM, 16)
        A(f'v_mfma_f32_32x32x16_bf16 {v(SM, 16)}, {v(KMF + c * 4, 4)}, {v(QF + c * 4, 4)}, {cin}')
    for i in range(4):
        A(f'v_mul_f32 {v(SM + i)}, s40, {v(SM + i)}')
    A(f'v_max3_f32 {v(mx)}, {v(mx)}, {v(SM)}, {v(SM + 1)}')
    A(f'v_max3_f32 {v(mx)}, {v(mx)}, {v(SM + 2)}, {v(SM + 3)}')
    A(f'v_mov_b32 {v(vT1)}, {v(mx)}')
    A(f'v_permlane32_swap_b32 {v(mx)}, {v(vT1)}')
    A(f'v_max_f32 {v(mx)}, {v(mx)}, {v(vT1)}')
    vals = [SX + i for i in range(16)] + [SM + i for i in range(4)]
    for r in vals:
        A(f'v_sub_f32 {v(r)}, {v(r)}, {v(mx)}')
    for r in vals:
        A(f'v_exp_f32 {v(r)}, {v(r)}')
    sm = vT1
    A(f'v_add_f32 {v(sm)}, {v(vals[0])}, {v(vals[1])}')
    A(f'v_add_f32 {v(vT2)}, {v(vals[2])}, {v(vals[3])}')
    for i in range(4, 20, 2):
        A(f'v_add_f32 {v(sm)}, {v(sm)}, {v(vals[i])}')
        A(f'v_add_f32 {v(vT2)}, {v(vT2)}, {v(vals[i + 1])}')
    A(f'v_add_f32 {v(sm)}, {v(sm)}, {v(vT2)}')
    A(f'v_mov_b32 {v(vT2)}, {v(sm)}')
    A(f'v_permlane32_swap_b32 {v(sm)}, {v(vT2)}')
    A(f'v_add_f32 {v(sm)}, {v(sm)}, {v(vT2)}')
    A(f'v_rcp_f32 {v(sm)}, {v(sm)}')
    for r in vals:
        A(f'v_mul_f32 {v(r)}, {v(r)}, {v(sm)}')
    for j in range(10):
        A(f'v_cvt_pk_bf16_f32 {v(PB + j)}, {v(vals[2 * j])}, {v(vals[2 * j + 1])}')
    A('s_waitcnt vmcnt(0)')
    for T in range(4):
        o = v(OA + T * 16, 16)
        A(f'v_mfma_f32_32x32x16_bf16 {o}, {v(VF + T * 8, 4)}, {v(PB, 4)}, 0')
        A(f'v_mfma_f32_32x32x16_bf16 {o}, {v(VF + T * 8 + 4, 4)}, {v(PB + 4, 4)}, {o}')
        A(f'v_mfma_f32_32x32x16_bf16 {o}, {v(VMF + T * 4, 4)}, {v(PB + 8, 4)}, {o}')
    A(f's_add_u32 {s(T_T0)}, {s(T_O)}, 4096')
    for T in range(4):
        for f in (0, 1):
            n = T * 2 + f
            d = KMF + n * 4
            for j in range(4):
                r0 = OA + T * 16 + f * 8 + 2 * j
                A(f'v_cvt_pk_bf16_f32 {v(d + j)}, {v(r0)}, {v(r0 + 1)}')
            so = T_O if n < 4 else T_T0
            A(f'buffer_store_dwordx4 {v(d, 4)}, {v(vL16)}, {srd(SRD_WS)}, {s(so)} offen '
              f'offset:{(n & 3) * 1024}{SC}')
    A(f's_mov_b32 {s(T_PEND)}, 1')
    for r, st in ((T_Q, 262144), (T_K, 262144), (T_V, 262144), (T_KM, 65536), (T_VM, 65536), (T_O, 262144)):
        A(f's_add_u32 {s(r)}, {s(r)}, {st * segstep}')
    A(f's_sub_u32 {s(T_CNT)}, {s(T_CNT)}, 1')
    A(f's_cmp_lg_u32 {s(T_CNT)}, 0')
    A(f's_cbranch_scc1 {top}')
    if flags:
        A('s_waitcnt vmcnt(0)')
        emit_signal(A, T_FOUT, vOne)
    A(f's_branch {end_label}')
```

```python
from asmdsl import v, a, s
from layout import *
from roles import *

M_ME, M_K, M_V, M_KM, M_VM, M_TP, M_TM, M_CTL, M_FPR, M_FOUT = 24, 25, 26, 27, 28, 29, 30, 31, 32, 33
M_STEP, M_T0, M_T1, M_T2, M_SPIN = 34, 35, 36, 37, 38
M_PW, M_PR, M_MP, M_MRS, M_MRD = 39, 40, 41, 42, 43
SRD_M0 = 44
M_PUBX = 48
M_ODD = 52
M_C = 54
M_PW2 = 56
M_XCC = 57
M_FAST = 59
M_PRO, M_SIG = 90, 91
M_SRC, M_EXP, M_DST, M_HS = 50, 51, 55, 58
M_H1, M_H2, M_EXO, M_SIG2 = 25, 26, 27, 28

STAMP_NAMES = []
L_MEM = 131072
L_KX = L_MEM + 8192
L_VX = L_KX + 8192
L_QK = L_VX + 8192
L_O = L_QK + 4096
L_SEL = L_O + 2048
L_END = L_SEL + 1024

vOne, vL16, vLane = 0, 1, 2
vTouch = 2
vIdx, vWl, vHi, vQKw, vQr, vKMr, vOw, vPw, vPub, vHD, vVMw, vFl, vTa, vFv, vVr, vMw, vEx = range(3, 20)
t0, t1, t2, t3 = 20, 21, 22, 23
VX = 24
MF = 32
ACC = 64
S1 = 88
E = 120
QA, KA, VA = ACC, ACC + 8, ACC + 16
ONES = E + 4

RBLOCKS = ([('q', i) for i in range(2, 8)] + [('k', i) for i in range(2, 8)] + [('v', i) for i in range(8)]
           + [('o', 1, 0), ('o', 1, 1), ('o', 2, 0), ('o', 2, 1)])
LBLOCKS = [('q', 0), ('q', 1), ('k', 0), ('k', 1), ('o', 0, 0), ('o', 0, 1), ('o', 3, 0), ('o', 3, 1)]


def rreg(blk, t, n=8, off=0):
    r = (RBLOCKS.index(blk) * 2 + t) * 8 + off
    return a(r, n) if r < 256 else v(128 + r - 256, n)


def loff(blk, t):
    return LBLOCKS.index(blk) * 4096 + t * 2048


def hi(x):
    return x - L_MEM


def team_role(A, end_label, flags=None, force_slow=False, nsteps=NSEG, stamp=False, purity='ctl', tune=None):
    tune = tune or {}
    vS, vZ, vCh, vWq, vWoD, vTr0, vTr1 = 32, 33, 34, 35, 36, 37, 38
    A(f'v_bfe_u32 {v(vS)}, {v(vLane)}, 2, 1')
    A(f'v_bfe_u32 {v(t0)}, {v(vLane)}, 5, 1')
    A(f'v_lshl_add_u32 {v(vS)}, {v(t0)}, 1, {v(vS)}')
    A(f'v_bfe_u32 {v(t0)}, {v(vLane)}, 4, 1')
    A(f'v_lshl_add_u32 {v(vS)}, {v(t0)}, 2, {v(vS)}')
    A(f'v_bfe_u32 {v(vZ)}, {v(vLane)}, 3, 1')
    A(f'v_and_b32 {v(vCh)}, 3, {v(vLane)}')
    A(f'v_lshlrev_b32 {v(t0)}, 1, {v(t0)}')
    A(f'v_xor_b32 {v(vCh)}, {v(vCh)}, {v(t0)}')
    A(f'v_lshl_add_u32 {v(t1)}, {v(vS)}, 4, {v(vZ)}')
    A(f'v_lshlrev_b32 {v(vWq)}, 13, {v(t1)}')
    A(f'v_lshl_add_u32 {v(vWq)}, {v(vCh)}, 4, {v(vWq)}')
    A(f'v_lshl_add_u32 {v(t1)}, {v(vZ)}, 3, {v(vS)}')
    A(f'v_lshlrev_b32 {v(vWoD)}, 10, {v(t1)}')
    A(f'v_lshl_add_u32 {v(vWoD)}, {v(vCh)}, 4, {v(vWoD)}')
    A(f'v_bfe_u32 {v(t0)}, {v(vLane)}, 2, 3')
    A(f'v_bfe_u32 {v(t1)}, {v(vLane)}, 5, 1')
    A(f'v_lshl_add_u32 {v(t0)}, {v(t1)}, 4, {v(t0)}')
    A(f'v_lshlrev_b32 {v(vTr0)}, 6, {v(t0)}')
    A(f'v_and_b32 {v(t0)}, 3, {v(vLane)}')
    A(f'v_lshl_add_u32 {v(vTr0)}, {v(t0)}, 3, {v(vTr0)}')
    A(f'v_bfe_u32 {v(t1)}, {v(vLane)}, 4, 1')
    A(f'v_lshl_add_u32 {v(vTr0)}, {v(t1)}, 5, {v(vTr0)}')
    A(f's_lshl_b32 {s(M_T0)}, {s(S_WAVE)}, 15')
    A(f'v_add_u32 {v(vTr0)}, {s(M_T0)}, {v(vTr0)}')
    A(f'v_xor_b32 {v(vTr1)}, 32, {v(vTr0)}')
    A(f'v_add_u32 {v(vWl)}, {s(M_T0)}, {v(vL16)}')

    if purity == 'ctl':
        A(f's_getreg_b32 {s(M_XCC)}, hwreg(HW_REG_XCC_ID)')
        A(f's_and_b32 {s(M_XCC)}, {s(M_XCC)}, 15')
        A(f's_add_u32 {s(M_XCC)}, {s(M_XCC)}, 1')
        A(f'v_mov_b32 {v(t0)}, {s(M_XCC)}')
        A(f's_lshl_b32 {s(M_T0)}, {s(M_ME)}, 2')
        A(f's_add_u32 {s(M_T0)}, {s(M_T0)}, {s(M_CTL)}')
        A('s_mov_b64 exec, 1')
        A(f'buffer_store_dword {v(t0)}, off, {srd(SRD_WS)}, {s(M_T0)} sc1')
        A('s_mov_b64 exec, -1')

    A(f's_lshl_b32 {s(M_T2)}, {s(M_ME)}, 8')
    A(f's_lshl_b32 {s(M_T0)}, {s(S_WAVE)}, 6')
    A(f's_add_u32 {s(M_T2)}, {s(M_T2)}, {s(M_T0)}')
    A(f's_lshl_b32 {s(M_T1)}, {s(M_ME)}, 17')
    A(f's_lshl_b32 {s(M_T0)}, {s(S_WAVE)}, 8')
    A(f's_add_u32 {s(M_T1)}, {s(M_T1)}, {s(M_T0)}')
    groups = [RBLOCKS[g:g + 4] for g in range(0, 24, 4)] + [LBLOCKS[0:4], LBLOCKS[4:8]]

    def issue_group(g):
        A(f's_lshl_b32 {s(M_T0)}, {s(S_WAVE)}, 15')
        A(f's_add_u32 m0, {s(M_T0)}, {(g & 1) * 16384}')
        first = True
        for blk in groups[g]:
            for d in range(4):
                if not first:
                    A('s_add_u32 m0, m0, 1024')
                first = False
                if blk[0] == 'o':
                    _, tp, ks = blk
                    A(f's_add_u32 {s(M_T0)}, {s(M_T1)}, {tp * 64 + (64 * ks + 16 * d) * 1024}')
                    A(f'buffer_load_dwordx4 {v(vWoD)}, {srd(SRD_D)}, {s(M_T0)} offen lds')
                else:
                    m, i = blk
                    A(f's_add_u32 {s(M_T0)}, {s(M_T2)}, {(128 * (i >> 1) + 8 * (i & 1) + 2 * d) * 8192}')
                    A(f'buffer_load_dwordx4 {v(vWq)}, {srd(dict(q=SRD_A, k=SRD_B, v=SRD_C)[m])}, '
                      f'{s(M_T0)} offen lds')

    def read_group(g):
        for bi, blk in enumerate(groups[g]):
            base = (g & 1) * 16384 + bi * 4096
            for t in (0, 1):
                for half in (0, 1):
                    for pp in (0, 1):
                        o = half * 4 + pp * 2
                        dst = rreg(blk, t, 2, o) if g < 6 else v(64 + bi * 16 + t * 8 + o, 2)
                        A(f'ds_read_b64_tr_b16 {dst}, {v(vTr0 if t == 0 else vTr1)} '
                          f'offset:{base + half * 2048 + pp * 512}')
        A('s_waitcnt lgkmcnt(0)')
        if g >= 6:
            for q in range(16):
                A(f'ds_write_b128 {v(vWl)}, {v(64 + q * 4, 4)} offset:{(g & 1) * 16384 + q * 1024}')
            A('s_waitcnt lgkmcnt(0)')

    issue_group(0)
    issue_group(1)
    for g in range(8):
        A(f's_waitcnt vmcnt({16 if g < 7 else 0})')
        read_group(g)
        if g + 2 < 8:
            issue_group(g + 2)
    if callable(purity):
        purity(A)

    n_, G_, hi_, row_ = 32, 33, 34, 35
    A(f'v_and_b32 {v(n_)}, 15, {v(vLane)}')
    A(f'v_lshrrev_b32 {v(G_)}, 4, {v(vLane)}')
    A(f'v_and_b32 {v(hi_)}, 1, {v(vLane)}')
    A(f'v_lshrrev_b32 {v(row_)}, 1, {v(n_)}')
    A(f'v_cmp_eq_u32 {s(M_ODD, 2)}, 1, {v(hi_)}')
    A(f'v_mov_b32 {v(t0)}, 0x4444')
    A(f'v_mov_b32 {v(t1)}, 0xeeee')
    A(f'v_cndmask_b32 {v(vIdx)}, {v(t0)}, {v(t1)}, {s(M_ODD, 2)}')
    A(f'v_add_u32 {v(vHi)}, {L_MEM}, {v(vL16)}')
    A(f's_and_b32 {s(M_T0)}, {s(S_WAVE)}, 1')
    A(f's_lshl_b32 {s(M_T0)}, {s(M_T0)}, 12')
    A(f'v_add_u32 {v(vMw)}, {s(M_T0)}, {v(vHi)}')
    A(f's_lshl_b32 {s(M_T0)}, {s(S_WAVE)}, 11')
    A(f's_add_u32 {s(M_T0)}, {s(M_T0)}, {L_VX}')
    A(f'v_add_u32 {v(vVr)}, {s(M_T0)}, {v(vL16)}')
    A(f's_cmp_eq_u32 {s(S_WAVE)}, 2')
    A(f's_mov_b32 {s(M_T0)}, {L_QK}')
    A(f's_cmov_b32 {s(M_T0)}, {L_QK + 2048}')
    A(f'v_add_u32 {v(vEx)}, {s(M_T0)}, {v(vL16)}')
    A(f's_cselect_b32 {s(M_EXP)}, {s(M_KM)}, {s(M_VM)}')
    A(f's_cselect_b32 {s(M_SRC)}, {s(M_K)}, {s(M_V)}')
    A(f's_mov_b32 {s(M_DST)}, {L_VX}')
    A(f's_cmov_b32 {s(M_DST)}, {L_KX}')
    A(f'v_lshrrev_b32 {v(t0)}, 3, {v(n_)}')
    A(f'v_lshlrev_b32 {v(vQKw)}, 7, {v(t0)}')
    A(f'v_lshl_add_u32 {v(vQKw)}, {v(G_)}, 5, {v(vQKw)}')
    A(f'v_and_b32 {v(t0)}, 7, {v(n_)}')
    A(f'v_lshl_add_u32 {v(vQKw)}, {v(t0)}, 1, {v(vQKw)}')
    A(f's_lshl_b32 {s(M_T0)}, {s(S_WAVE)}, 9')
    A(f's_add_u32 {s(M_T0)}, {s(M_T0)}, {L_QK}')
    A(f'v_add_u32 {v(vQKw)}, {s(M_T0)}, {v(vQKw)}')
    A(f'v_lshl_add_u32 {v(t0)}, {v(G_)}, 3, {v(row_)}')
    A(f'v_lshlrev_b32 {v(vQr)}, 4, {v(t0)}')
    A(f'v_add_u32 {v(vQr)}, {L_QK}, {v(vQr)}')
    A(f'v_lshrrev_b32 {v(t0)}, 2, {v(n_)}')
    A(f'v_lshl_add_u32 {v(t0)}, {v(t0)}, 1, {v(hi_)}')
    A(f'v_lshl_add_u32 {v(t1)}, {v(G_)}, 3, {v(t0)}')
    A(f'v_lshlrev_b32 {v(vKMr)}, 4, {v(t1)}')
    A(f'v_add_u32 {v(vKMr)}, {L_QK + 2048}, {v(vKMr)}')
    A(f'v_lshlrev_b32 {v(vOw)}, 8, {v(hi_)}')
    A(f'v_lshl_add_u32 {v(vOw)}, {v(row_)}, 5, {v(vOw)}')
    A(f'v_lshl_add_u32 {v(vOw)}, {v(G_)}, 3, {v(vOw)}')
    A(f's_lshl_b32 {s(M_T0)}, {s(S_WAVE)}, 9')
    A(f's_add_u32 {s(M_T0)}, {s(M_T0)}, {L_O}')
    A(f'v_add_u32 {v(vOw)}, {s(M_T0)}, {v(vOw)}')
    A(f'v_lshrrev_b32 {v(t0)}, 2, {v(n_)}')
    A(f'v_lshlrev_b32 {v(vPw)}, 14, {v(t0)}')
    A(f'v_lshrrev_b32 {v(t0)}, 1, {v(G_)}')
    A(f'v_lshl_add_u32 {v(vPw)}, {v(t0)}, 13, {v(vPw)}')
    A(f'v_and_b32 {v(t0)}, 1, {v(G_)}')
    A(f'v_lshl_add_u32 {v(vPw)}, {v(t0)}, 11, {v(vPw)}')
    A(f'v_and_b32 {v(t0)}, 3, {v(n_)}')
    A(f'v_lshl_add_u32 {v(vPw)}, {v(t0)}, 4, {v(vPw)}')
    A(f's_lshl_b32 {s(M_T0)}, {s(S_WAVE)}, 16')
    A(f'v_add_u32 {v(vPw)}, {s(M_T0)}, {v(vPw)}')
    A(f'v_bfe_u32 {v(t0)}, {v(n_)}, 1, 1')
    A(f'v_lshlrev_b32 {v(vPub)}, 8, {v(t0)}')
    A(f'v_lshl_add_u32 {v(vPub)}, {v(hi_)}, 4, {v(vPub)}')
    A(f'v_and_b32 {v(t0)}, 1, {v(G_)}')
    A(f'v_lshl_add_u32 {v(vPub)}, {v(t0)}, 5, {v(vPub)}')
    A(f's_lshr_b32 {s(M_T0)}, {s(M_ME)}, 1')
    A(f's_lshl_b32 {s(M_T0)}, {s(M_T0)}, 9')
    A(f's_and_b32 {s(M_T1)}, {s(M_ME)}, 1')
    A(f's_lshl_b32 {s(M_T1)}, {s(M_T1)}, 7')
    A(f's_add_u32 {s(M_T0)}, {s(M_T0)}, {s(M_T1)}')
    A(f's_and_b32 {s(M_T1)}, {s(S_WAVE)}, 1')
    A(f's_lshl_b32 {s(M_T1)}, {s(M_T1)}, 6')
    A(f's_add_u32 {s(M_T0)}, {s(M_T0)}, {s(M_T1)}')
    A(f's_lshr_b32 {s(M_T1)}, {s(S_WAVE)}, 1')
    A(f's_lshl_b32 {s(M_T1)}, {s(M_T1)}, 3')
    A(f's_add_u32 {s(M_T0)}, {s(M_T0)}, {s(M_T1)}')
    A(f'v_add_u32 {v(vPub)}, {s(M_T0)}, {v(vPub)}')
    A(f's_mov_b32 {s(M_PUBX)}, 0x000f000f')
    A(f's_mov_b32 {s(M_PUBX + 1)}, 0')
    A(f'v_lshrrev_b32 {v(t0)}, 2, {v(n_)}')
    A(f'v_lshlrev_b32 {v(t1)}, 7, {v(t0)}')
    A(f'v_and_b32 {v(t0)}, 3, {v(n_)}')
    A(f'v_lshl_add_u32 {v(t1)}, {v(t0)}, 4, {v(t1)}')
    A(f'v_lshl_add_u32 {v(t1)}, {v(G_)}, 9, {v(t1)}')
    A(f'v_lshlrev_b32 {v(t2)}, 11, {v(G_)}')
    A(f'v_lshl_add_u32 {v(t2)}, {v(n_)}, 4, {v(t2)}')
    A(f's_cmp_eq_u32 {s(S_WAVE)}, 2')
    A(f's_cselect_b64 vcc, -1, 0')
    A(f'v_cndmask_b32 {v(vHD)}, {v(t2)}, {v(t1)}, vcc')
    A(f'v_lshrrev_b32 {v(t0)}, 1, {v(G_)}')
    A(f'v_lshlrev_b32 {v(vVMw)}, 10, {v(t0)}')
    A(f'v_lshl_add_u32 {v(vVMw)}, {v(n_)}, 3, {v(vVMw)}')
    A(f'v_and_b32 {v(t0)}, 1, {v(G_)}')
    A(f'v_lshl_add_u32 {v(vVMw)}, {v(t0)}, 2, {v(vVMw)}')
    A(f's_lshl_b32 {s(M_T0)}, {s(S_WAVE)}, 8')
    A(f's_add_u32 {s(M_T0)}, {s(M_T0)}, {L_QK}')
    A(f'v_add_u32 {v(vVMw)}, {s(M_T0)}, {v(vVMw)}')
    A(f'v_lshlrev_b32 {v(vTa)}, 7, {v(vLane)}')
    for u in range(4):
        A(f'v_cmp_eq_u32 vcc, {2 * u}, {v(n_)}')
        A(f'v_mov_b32 {v(t0)}, 0x3f80')
        A(f'v_cndmask_b32 {v(64 + u)}, 0, {v(t0)}, vcc')
        A(f'v_cmp_eq_u32 vcc, {2 * u + 1}, {v(n_)}')
        A(f'v_mov_b32 {v(t0)}, 0x3f800000')
        A(f'v_cndmask_b32 {v(64 + u)}, {v(64 + u)}, {v(t0)}, vcc')
        A(f'v_mov_b32 {v(ONES + u)}, 0x3f803f80')
    A(f'ds_write_b128 {v(vHi)}, {v(64, 4)} offset:{hi(L_SEL)}')
    A(f's_mov_b32 {s(M_C)}, {f32bits((128 ** -0.5) * 1.4426950408889634):#x}')
    A(f'v_mov_b32 {v(vFl)}, 0')
    A(f's_and_b32 {s(M_T0)}, {s(S_WAVE)}, 1')
    A(f's_lshl_b32 {s(M_T1)}, {s(M_T0)}, 6')
    A(f's_add_u32 {s(M_FPR)}, {s(M_FPR)}, {s(M_T1)}')
    A(f's_lshl_b32 {s(M_T1)}, {s(M_T0)}, 2')
    A(f's_add_u32 {s(M_FOUT)}, {s(M_FOUT)}, {s(M_T1)}')
    A(f'v_lshlrev_b32 {v(t2)}, 10, {v(row_)}')
    A(f'v_lshl_add_u32 {v(t0)}, {v(G_)}, 1, {v(hi_)}')
    A(f'v_lshl_add_u32 {v(t2)}, {v(t0)}, 1, {v(t2)}')
    A(f's_lshl_b32 {s(M_T0)}, {s(S_WAVE)}, 8')
    A(f'v_add_u32 {v(t2)}, {s(M_T0)}, {v(t2)}')
    for f in (0, 1):
        for sl in range(8):
            A(f'buffer_load_ushort {v(40 + f * 8 + sl)}, {v(t2)}, {srd(SRD_M0)}, 0 offen '
              f'offset:{f * 16 + sl * 32}')
    A('s_waitcnt vmcnt(0)')
    for r in range(8):
        A(f'v_lshl_or_b32 {v(MF + r)}, {v(40 + 2 * r + 1)}, 16, {v(40 + 2 * r)}')
    A(f's_lshl_b32 {s(M_T0)}, {s(S_WAVE)}, 11')
    A(f'v_add_u32 {v(t2)}, {s(M_T0)}, {v(vHi)}')
    A(f'ds_write_b128 {v(t2)}, {v(MF, 4)}')
    A(f'ds_write_b128 {v(t2)}, {v(MF + 4, 4)} offset:1024')
    A(f'v_lshlrev_b32 {v(t3)}, 2, {v(vLane)}')
    A(f'v_and_b32 {v(t3)}, 127, {v(t3)}')
    A(f'v_mov_b32 {v(vOne)}, 1')
    A(f'v_mov_b32 {v(vFv)}, 0')
    A(f's_mov_b32 {s(M_STEP)}, 0')
    slow = A.newlabel('tslow')
    P = dict(flags=flags, end_label=end_label, nsteps=nsteps, stamp=stamp, tune=tune)
    if purity == 'ctl':
        emit_poll_block(A, t0, t3, M_CTL, M_SPIN, end_label)
        A(f'v_cmp_eq_u32 vcc, {s(M_XCC)}, {v(t0)}')
        A('s_cmp_eq_u64 vcc, exec')
    else:
        A(f's_cmp_eq_u32 {s(M_FAST)}, 1')
    if not force_slow:
        A(f's_cbranch_scc0 {slow}')
        team_loop(A, P, fast=True)
    A.label(slow)
    team_loop(A, P, fast=False)


def team_loop(A, P, fast):
    flags, end_label, nsteps, tune = P['flags'], P['end_label'], P['nsteps'], P['tune']
    XS = '' if fast else ' sc1'
    poll_in = bool(flags and flags.get('poll_in'))
    has_sig = bool(flags and flags.get('signal'))

    def smf(acc, af, b):
        return f'v_smfmac_f32_16x16x64_bf16 {v(acc, 4)}, {v(af, 4)}, {b}, {v(vIdx)}'

    def zero(r, n):
        return [f'v_mov_b64 {v(r + i, 2)}, 0' for i in range(0, n, 2)]

    def emit(lst):
        for x in lst:
            for y in x.split('|'):
                A(y)

    def mix(ms, fs, per=2):
        for m in ms:
            A(m)
            for _ in range(per):
                if fs:
                    emit([fs.pop(0)])

    def lread(blk, t, reg):
        return [f'ds_read_b128 {v(reg, 4)}, {v(vWl)} offset:{loff(blk, t)}',
                f'ds_read_b128 {v(reg + 4, 4)}, {v(vWl)} offset:{loff(blk, t) + 1024}']

    nst = [0]

    def st(name):
        if P['stamp']:
            A(f's_memtime {s(60 + 2 * nst[0], 2)}')
            if fast:
                STAMP_NAMES.append(name)
            nst[0] += 1

    def st_flush():
        if not P['stamp']:
            return
        sk = A.newlabel('tsk')
        A(f's_cmp_lg_u32 {s(M_STEP)}, {P["stamp"]}')
        A(f's_cbranch_scc1 {sk}')
        A('s_waitcnt lgkmcnt(0)')
        A(f's_lshl_b32 {s(M_T0)}, {s(M_ME)}, 2')
        A(f's_add_u32 {s(M_T0)}, {s(M_T0)}, {s(S_WAVE)}')
        A(f's_lshl_b32 {s(M_T0)}, {s(M_T0)}, 7')
        A(f's_add_u32 {s(M_T0)}, {s(M_T0)}, {TCTL + 4096}')
        A('s_mov_b64 exec, 1')
        for i in range(nst[0]):
            A(f'v_mov_b32 {v(t0)}, {s(60 + 2 * i)}')
            A(f'buffer_store_dword {v(t0)}, off, {srd(SRD_WS)}, {s(M_T0)} offset:{4 * i}')
        A('s_mov_b64 exec, -1')
        A('s_waitcnt vmcnt(0)')
        A.label(sk)

    def prep_step():
        emit(zero(ACC, 24))
        for i in (0, 1):
            for t in (0, 1):
                emit(lread(('q', i), t, S1 + (i * 2 + t) * 8))
        A(f's_and_b32 {s(M_T0)}, {s(M_STEP)}, 3')
        A(f's_lshl_b32 {s(M_T0)}, {s(M_T0)}, 18')
        A(f's_add_u32 {s(M_T0)}, {s(M_T0)}, {s(M_TP)}')
        A(f's_lshl_b32 {s(M_T1)}, {s(M_ME)}, 6')
        A(f's_add_u32 {s(M_PW)}, {s(M_T0)}, {s(M_T1)}')
        A(f's_add_u32 {s(M_PW2)}, {s(M_PW)}, 4096')
        A(f's_lshl_b32 {s(M_T1)}, {s(M_ME)}, 13')
        A(f's_add_u32 {s(M_PR)}, {s(M_T0)}, {s(M_T1)}')
        A(f's_lshl_b32 {s(M_T1)}, {s(S_WAVE)}, 11')
        A(f's_add_u32 {s(M_PR)}, {s(M_PR)}, {s(M_T1)}')
        A(f's_add_u32 {s(M_T0)}, {s(M_STEP)}, 1')
        A(f's_and_b32 {s(M_T0)}, {s(M_T0)}, 3')
        A(f's_lshl_b32 {s(M_T0)}, {s(M_T0)}, 13')
        A(f's_add_u32 {s(M_MP)}, {s(M_T0)}, {s(M_TM)}')
        A(f's_xor_b32 {s(M_MRS)}, {s(M_MP)}, {2 << 13}')

    NEG = E

    def hk_wait_flags():
        if poll_in:
            ok = A.newlabel('tfok')
            emit_poll_check(A, vFv)
            A(f's_cbranch_scc1 {ok}')
            emit_poll_block(A, vFv, vFl, M_FPR, M_SPIN, end_label, sleep=4)
            A.label(ok)
            A(f's_add_u32 {s(M_FPR)}, {s(M_FPR)}, 1024')
        A(f's_mov_b32 m0, {s(M_DST)}')
        A(f's_mov_b32 {s(M_HS)}, {s(M_SRC)}')
        A(f's_add_u32 {s(M_SRC)}, {s(M_SRC)}, 262144')

    def hk_ops():
        ops = []
        for f in range(8):
            pre = ''
            if f:
                pre = (f's_add_u32 m0, m0, 1024|'
                       f's_add_u32 {s(M_HS)}, {s(M_HS)}, {s(M_H1 if f & 1 else M_H2)}|')
            ops.append(pre + f'buffer_load_dwordx4 {v(vHD)}, {srd(SRD_WS)}, {s(M_HS)} offen sc1 lds')
        late = []
        if has_sig:
            sg = ''
            if PROFILE[0]:
                sg = (f's_memrealtime s[100:101]|s_waitcnt lgkmcnt(0)|s_or_b32 s100, s100, 1|'
                      f'v_mov_b32 {v(vOne)}, s100|')
            late.append(sg + f's_mov_b64 exec, 1|buffer_store_dword {v(vOne)}, off, {srd(SRD_WS)}, '
                        f'{s(M_SIG)} sc1|s_mov_b64 exec, -1')
        late.append(f'buffer_store_dwordx4 {v(VX, 4)}, {v(vL16)}, {srd(SRD_WS)}, {s(M_EXO)} offen sc1')
        late.append(f'buffer_store_dwordx4 {v(VX + 4, 4)}, {v(vL16)}, {srd(SRD_WS)}, {s(M_EXO)} offen '
                    f'offset:1024 sc1')
        late.append(f'buffer_load_dword {v(vTouch)}, {v(vTa)}, {srd(SRD_WS)}, {s(M_SRC)} offen sc1')
        if poll_in:
            late.append(f'buffer_load_dword {v(vFv)}, {v(vFl)}, {srd(SRD_WS)}, {s(M_FPR)} offen sc1')
        for j in range(4):
            late.append(f'buffer_store_dwordx4 {v(NEG, 4)}, {v(vL16)}, {srd(SRD_WS)}, {s(M_PRO)} offen '
                        f'offset:{j * 1024}{XS}')
        return ops, late

    def hk_export_read():
        A(f'ds_read_b128 {v(VX, 4)}, {v(vEx)}')
        A(f'ds_read_b128 {v(VX + 4, 4)}, {v(vEx)} offset:1024')

    assert TM % 32768 == 0
    top = A.newlabel('ttop')
    A(f's_mov_b32 {s(M_SIG)}, {OOB}')
    A(f's_mov_b32 {s(M_SIG2)}, {OOB}')
    A(f's_mov_b32 {s(M_PRO)}, {OOB}')
    A(f's_mov_b32 {s(M_EXO)}, {OOB}')
    A(f's_cmp_eq_u32 {s(S_WAVE)}, 2')
    A(f's_cselect_b32 {s(M_H1)}, 64, 256')
    A(f's_mov_b32 {s(M_H2)}, 256')
    A(f's_cmov_b32 {s(M_H2)}, {2048 - 64}')
    p0 = A.newlabel('tp0')
    A(f's_cmp_lt_u32 {s(S_WAVE)}, 2')
    A(f's_cbranch_scc1 {p0}')
    hk_wait_flags()
    A.label(p0)
    prep_step()
    A.label(top)
    st('top')
    A('s_waitcnt lgkmcnt(0)')
    A('s_barrier')
    st('B1')
    for i in range(8):
        A(f'ds_read_b128 {v(MF + i * 4, 4)}, {v(vHi)} offset:{i * 1024}')

    def qq(i, t):
        b = v(S1 + (i * 2 + t) * 8, 8) if i < 2 else rreg(('q', i), t)
        return smf(QA + t * 4, MF + i * 4, b)

    def kq(i, t):
        b = v(S1 + (i * 2 + t) * 8, 8) if i < 2 else rreg(('k', i), t)
        return smf(KA + t * 4, MF + i * 4, b)

    def vq(i, t):
        return smf(VA + t * 4, MF + i * 4, rreg(('v', i), t))

    def epi(acc, sel):
        f = []
        for t in (0, 1):
            r = acc + t * 4
            f += [f'v_add_f32 {v(r)}, {v(r)}, {v(r + 1)}', f'v_add_f32 {v(r + 2)}, {v(r + 2)}, {v(r + 3)}',
                  f'v_cvt_pk_bf16_f32 {v(r)}, {v(r)}, {v(r + 2)}|'
                  f'ds_write_b16 {v(vQKw)}, {v(r)} offset:{sel * 2048 + t * 256}|'
                  f'ds_write_b16_d16_hi {v(vQKw)}, {v(r)} offset:{sel * 2048 + t * 256 + 16}']
        return f

    km_ = [kq(i, t) for i in range(8) for t in (0, 1)]
    vs_ = [vq(i, t) for i in range(8) for t in (0, 1)]
    KXR, QF = S1, S1 + 16
    hkq = A.newlabel('thkq')
    jq = A.newlabel('tjq')
    A(f's_cmp_ge_u32 {s(S_WAVE)}, 2')
    A(f's_cbranch_scc1 {hkq}')
    for hk in (False, True):
        if hk:
            A.label(hkq)
            ops, late = hk_ops()
            nlate = len(late)
            emit(ops[0:3])
            ops = ops[3:] + late
        else:
            ops = []
        kl = []
        for i in (0, 1):
            for t in (0, 1):
                kl += lread(('k', i), t, S1 + (i * 2 + t) * 8)
        nk = 0
        for i in range(8):
            A(f's_waitcnt lgkmcnt({7 - i + nk})')
            A(qq(i, 0))
            A(qq(i, 1))
            if i in (1, 2):
                emit(kl[(i - 1) * 4:(i - 1) * 4 + 4])
                nk += 4
            if ops:
                emit([ops.pop(0)])
        A('s_waitcnt lgkmcnt(0)')
        fq = epi(QA, 0)
        for n in range(13):
            A(km_[n])
            if 5 <= n < 11:
                emit([fq.pop(0)])
            if ops and n % 2 == 1:
                emit([ops.pop(0)])
        emit(ops)
        if hk:
            A(f's_waitcnt vmcnt({nlate})')
        else:
            A(f's_branch {jq}')
    A.label(jq)
    st('Qissued')
    A('s_waitcnt lgkmcnt(0)')
    A('s_barrier')
    st('B2q')
    A(f'ds_read_b128 {v(QF, 4)}, {v(vQr)}')
    for f in range(2):
        A(f'ds_read_b128 {v(KXR + f * 4, 4)}, {v(vHi)} offset:{hi(L_KX) + f * 1024}')
    A(f'ds_read_b128 {v(QF + 4, 4)}, {v(vQr)} offset:512')
    for f in range(2, 4):
        A(f'ds_read_b128 {v(KXR + f * 4, 4)}, {v(vHi)} offset:{hi(L_KX) + f * 1024}')
    for ks in (2, 3):
        A(f'ds_read_b128 {v(QF + ks * 4, 4)}, {v(vQr)} offset:{ks * 512}')
    emit(km_[13:16])
    emit(vs_[0:4])
    st('Kissued')
    SX = QA
    SMA = E

    def sx(ks, t):
        cin = '0' if ks == 0 else v(SX + t * 4, 4)
        return (f'v_mfma_f32_16x16x32_bf16 {v(SX + t * 4, 4)}, {v(KXR + ((ks & 1) * 2 + t) * 4, 4)}, '
                f'{v(QF + ks * 4, 4)}, {cin}')

    fk = epi(KA, 1)
    A('s_waitcnt lgkmcnt(2)')
    mix([sx(0, 0), sx(0, 1)], fk, 2)
    A(f'ds_read_b128 {v(KXR, 4)}, {v(vHi)} offset:{hi(L_KX) + 4096}')
    A(f'ds_read_b128 {v(KXR + 4, 4)}, {v(vHi)} offset:{hi(L_KX) + 5120}')
    mix([sx(1, 0), sx(1, 1)], fk, 2)
    assert not fk
    A(f'ds_read_b128 {v(KXR + 8, 4)}, {v(vHi)} offset:{hi(L_KX) + 6144}')
    A(f'ds_read_b128 {v(KXR + 12, 4)}, {v(vHi)} offset:{hi(L_KX) + 7168}')
    emit(vs_[4:8])
    A('s_waitcnt lgkmcnt(2)')
    A('s_barrier')
    st('B2k')
    KMF = MF
    for ks in range(4):
        A(f'ds_read_b128 {v(KMF + ks * 4, 4)}, {v(vKMr)} offset:{ks * 512}')
    A(f'ds_read_b128 {v(VX, 4)}, {v(vVr)}')
    A(f'ds_read_b128 {v(VX + 4, 4)}, {v(vVr)} offset:1024')
    A(sx(2, 0))
    A(sx(2, 1))
    A('s_waitcnt lgkmcnt(6)')
    A(sx(3, 0))
    A(sx(3, 1))
    emit(vs_[8:11])

    def sm(ks):
        cin = '0' if ks == 0 else v(SMA, 4)
        return f'v_mfma_f32_16x16x32_bf16 {v(SMA, 4)}, {v(KMF + ks * 4, 4)}, {v(QF + ks * 4, 4)}, {cin}'

    mt, m2 = t0, t1
    tv = [SX + i for i in range(8)]
    PB = KA
    LT = KA + 4
    ft = [f'v_max3_f32 {v(mt)}, {v(tv[0])}, {v(tv[1])}, {v(tv[2])}',
          f'v_max3_f32 {v(m2)}, {v(tv[3])}, {v(tv[4])}, {v(tv[5])}',
          f'v_max3_f32 {v(mt)}, {v(mt)}, {v(tv[6])}, {v(tv[7])}',
          f'v_max_f32 {v(mt)}, {v(mt)}, {v(m2)}',
          f'v_mov_b32 {v(m2)}, {v(mt)}',
          's_nop 0']
    A('s_waitcnt lgkmcnt(0)')
    A(sm(0))
    mix([sm(ks) for ks in range(1, 4)], ft, 2)
    st('Smissued')
    fl = []
    for ks in (0, 1):
        for t in (0, 1):
            fl += lread(('o', 0, ks), t, S1 + (t * 2 + ks) * 8)
    mm, m3 = SMA + 2, SMA + 3
    A(vs_[11])
    A(f'v_permlane16_swap_b32 {v(mt)}, {v(m2)}')
    A(f'v_max_f32 {v(mt)}, {v(mt)}, {v(m2)}')
    A(f'v_mov_b32 {v(m2)}, {v(mt)}')
    A(vs_[12])
    emit(fl[0:4])
    A(f'v_permlane32_swap_b32 {v(mt)}, {v(m2)}')
    A(f'v_max_f32 {v(mt)}, {v(mt)}, {v(m2)}')
    A(vs_[13])
    emit(fl[4:8])
    A(f'v_mul_f32 {v(mt)}, {s(M_C)}, {v(mt)}')
    A(f'v_max_f32 {v(mm)}, {v(SMA)}, {v(SMA + 1)}')
    A(vs_[14])
    A(f'v_mov_b32 {v(m3)}, {v(mm)}')
    for r in tv[0:2]:
        A(f'v_fma_f32 {v(r)}, {v(r)}, {s(M_C)}, -{v(mt)}')
    A(f'v_permlane16_swap_b32 {v(mm)}, {v(m3)}')
    A(vs_[15])
    A(f'v_max_f32 {v(mm)}, {v(mm)}, {v(m3)}')
    A(f'v_mov_b32 {v(m3)}, {v(mm)}')
    for r in tv[2:4]:
        A(f'v_fma_f32 {v(r)}, {v(r)}, {s(M_C)}, -{v(mt)}')
    A(f'v_permlane32_swap_b32 {v(mm)}, {v(m3)}')
    for r in tv[4:8]:
        A(f'v_fma_f32 {v(r)}, {v(r)}, {s(M_C)}, -{v(mt)}')
    for r in tv:
        A(f'v_exp_f32 {v(r)}, {v(r)}')
    A(f'v_max_f32 {v(mm)}, {v(mm)}, {v(m3)}')
    for j in range(4):
        A(f'v_cvt_pk_bf16_f32 {v(PB + j)}, {v(tv[2 * j])}, {v(tv[2 * j + 1])}')
    A(f'v_mul_f32 {v(mm)}, {s(M_C)}, {v(mm)}')
    A(f'v_max_f32 {v(mm)}, {v(mm)}, {v(mt)}')
    OT = QA
    A(f'v_mfma_f32_16x16x32_bf16 {v(OT, 4)}, {v(VX, 4)}, {v(PB, 4)}, 0')
    A(f'v_fma_f32 {v(SMA)}, {v(SMA)}, {s(M_C)}, -{v(mm)}')
    A(f'v_fma_f32 {v(SMA + 1)}, {v(SMA + 1)}, {s(M_C)}, -{v(mm)}')
    A(f'v_mfma_f32_16x16x32_bf16 {v(OT + 4, 4)}, {v(VX + 4, 4)}, {v(PB, 4)}, 0')
    A(f'v_sub_f32 {v(mt)}, {v(mt)}, {v(mm)}')
    A(f'v_exp_f32 {v(SMA)}, {v(SMA)}')
    A(f'v_mfma_f32_16x16x32_bf16 {v(LT, 4)}, {v(ONES, 4)}, {v(PB, 4)}, 0')
    A(f'v_exp_f32 {v(SMA + 1)}, {v(SMA + 1)}')
    A(f'v_exp_f32 {v(mt)}, {v(mt)}')
    for t in (0, 1):
        r = VA + t * 4
        A(f'v_add_f32 {v(r)}, {v(r)}, {v(r + 1)}')
        A(f'v_add_f32 {v(r + 2)}, {v(r + 2)}, {v(r + 3)}')
    A(f'v_cvt_pk_bf16_f32 {v(t2)}, {v(SMA)}, {v(SMA + 1)}')
    for t in (0, 1):
        r = VA + t * 4
        A(f'v_cvt_pk_bf16_f32 {v(r)}, {v(r)}, {v(r + 2)}')
        A(f'v_mov_b32 {v(r + 1)}, 0')
    PME, PMO = SMA, SMA + 2
    A(f'v_cndmask_b32 {v(PME)}, {v(t2)}, 0, {s(M_ODD, 2)}')
    A(f'v_cndmask_b32 {v(PMO)}, 0, {v(t2)}, {s(M_ODD, 2)}')
    A(f'v_mov_b32 {v(PME + 1)}, 0')
    A(f'v_mov_b32 {v(PMO + 1)}, 0')
    A(f'v_mov_b32 {v(t3)}, 0')
    A(f'v_mul_f32 {v(LT)}, {v(LT)}, {v(mt)}')
    for r in range(4):
        A(f'v_cndmask_b32 {v(OT + r)}, {v(OT + r)}, {v(OT + 4 + r)}, {s(M_ODD, 2)}')
    A(f'v_mfma_f32_16x16x16_bf16 {v(LT, 4)}, {v(ONES, 2)}, {v(t2, 2)}, {v(LT, 4)}')
    for r in range(4):
        A(f'v_mul_f32 {v(OT + r)}, {v(OT + r)}, {v(mt)}')
    st('softdone')
    for t in (0, 1):
        A(f'ds_write_b32 {v(vVMw)}, {v(VA + t * 4)} offset:{t * 128}')
    A(f'v_mfma_f32_16x16x16_bf16 {v(OT, 4)}, {v(VA, 2)}, {v(PME, 2)}, {v(OT, 4)}')
    A(f'v_mfma_f32_16x16x16_bf16 {v(OT, 4)}, {v(VA + 4, 2)}, {v(PMO, 2)}, {v(OT, 4)}')
    A(f'v_rcp_f32 {v(LT)}, {v(LT)}')
    for ks in (0, 1):
        emit(lread(('o', 3, ks), 0, MF + ks * 8))
    emit(zero(MF + 16, 8))
    for r in range(4):
        A(f'v_mul_f32 {v(OT + r)}, {v(OT + r)}, {v(LT)}')
    A(f'v_cvt_pk_bf16_f32 {v(t2)}, {v(OT)}, {v(OT + 1)}')
    A(f'v_cvt_pk_bf16_f32 {v(t3)}, {v(OT + 2)}, {v(OT + 3)}')
    A(f'ds_write_b64 {v(vOw)}, {v(t2, 2)}')
    emit(zero(KA, 16))
    st('preB3')
    A('s_waitcnt lgkmcnt(0)')
    A('s_barrier')
    st('B3')
    done = A.newlabel('tdone')
    OF = VX
    A(f'ds_read_b128 {v(OF, 4)}, {v(vHi)} offset:{hi(L_O)}')
    A(f'ds_read_b128 {v(OF + 4, 4)}, {v(vHi)} offset:{hi(L_O) + 1024}')
    A(f's_cmp_ge_u32 {s(M_STEP)}, {nsteps - 1}')
    A(f's_cbranch_scc1 {done}')
    emit(zero(MF + 24, 8))
    oacc = [KA, KA + 4, VA, VA + 4, MF + 16, MF + 20, MF + 24, MF + 28]

    def wo(i, ks):
        if i < 2:
            return v(S1 + (i * 2 + ks) * 8, 8)
        if i < 6:
            return rreg(('o', i >> 1, ks), i & 1)
        if i == 6:
            return v(MF + ks * 8, 8)
        return v(S1 + ks * 8, 8)

    om = [smf(oacc[i], OF + ks * 4, wo(i, ks)) for i in range(8) for ks in (0, 1)]
    PK = QA

    def oadd(i):
        r = oacc[i]
        return [f'v_add_f32 {v(r)}, {v(r)}, {v(r + 1)}', f'v_add_f32 {v(r + 2)}, {v(r + 2)}, {v(r + 3)}']

    def opack(h, half):
        i0 = 4 * h + 2 * half
        f = []
        for rr in (0, 1):
            d = PK + h * 4 + rr * 2 + half
            f.append(f'v_cvt_pk_bf16_f32 {v(d)}, {v(oacc[i0] + rr * 2)}, {v(oacc[i0 + 1] + rr * 2)}')
        for rr in (0, 1):
            d = PK + h * 4 + rr * 2 + half
            f.append(f'v_min_u32 {v(d)}, -2, {v(d)}')
        return f

    def pstore(h):
        return (f'buffer_store_dwordx4 {v(PK + h * 4, 4)}, {v(vPw)}, {srd(SRD_WS)}, '
                f'{s(M_PW if h == 0 else M_PW2)} offen{XS}')

    A('s_waitcnt lgkmcnt(1)')
    A(om[0])
    A('s_waitcnt lgkmcnt(0)')
    A(om[1])
    f7 = lread(('o', 3, 0), 1, S1) + lread(('o', 3, 1), 1, S1 + 8)
    mix(om[2:4], f7, 2)
    A(om[4])
    SELR = S1 + 16
    A(f'ds_read_b128 {v(SELR, 4)}, {v(vHi)} offset:{hi(L_SEL)}')
    fo = oadd(0) + oadd(1) + opack(0, 0) + oadd(2) + oadd(3) + opack(0, 1) + [pstore(0)] + oadd(4)
    mix(om[5:14], fo, 2)
    A('s_waitcnt lgkmcnt(0)')
    fo += oadd(5) + opack(1, 0)
    mix(om[14:16], fo, 2)
    st('outissued')
    emit(fo)
    emit(oadd(6) + oadd(7) + opack(1, 1) + [pstore(1)])
    st('pstored')
    RD, RA = MF, MF + 8
    A(f'v_mov_b64 {v(NEG, 2)}, -1')
    A(f'v_mov_b64 {v(NEG + 2, 2)}, -1')
    A(f's_mov_b32 {s(M_SPIN)}, 0')
    if tune.get('d1'):
        A(f's_sleep {tune["d1"]}')
    p1 = A.newlabel('tp1')
    A.label(p1)
    A(f'buffer_load_dwordx4 {v(RD, 4)}, {v(vL16)}, {srd(SRD_WS)}, {s(M_PR)} offen sc1')
    A(f'buffer_load_dwordx4 {v(RD + 4, 4)}, {v(vL16)}, {srd(SRD_WS)}, {s(M_PR)} offen offset:1024 sc1')
    A('s_mov_b64 exec, -1')
    A(f's_add_u32 {s(M_SPIN)}, {s(M_SPIN)}, 1')
    A(f's_cmp_gt_u32 {s(M_SPIN)}, {SPIN_LIMIT * 4}')
    A(f's_cbranch_scc1 {end_label}')
    A('s_waitcnt vmcnt(0)')
    A(f'v_mfma_f32_16x16x32_bf16 {v(RA, 4)}, {v(SELR, 4)}, {v(RD, 4)}, 0')
    A(f'v_max3_u32 {v(t0)}, {v(RD)}, {v(RD + 1)}, {v(RD + 2)}')
    A(f'v_max3_u32 {v(t1)}, {v(RD + 3)}, {v(RD + 4)}, {v(RD + 5)}')
    A(f'v_mfma_f32_16x16x32_bf16 {v(RA, 4)}, {v(SELR, 4)}, {v(RD + 4, 4)}, {v(RA, 4)}')
    A(f'v_max3_u32 {v(t0)}, {v(t0)}, {v(RD + 6)}, {v(RD + 7)}')
    A(f'v_max_u32 {v(t0)}, {v(t0)}, {v(t1)}')
    A(f'v_cmp_eq_u32 vcc, -1, {v(t0)}')
    A('s_mov_b64 exec, vcc')
    A(f's_cbranch_vccnz {p1}')
    A('s_mov_b64 exec, -1')
    st('p1ok')
    for sh in (4, 8):
        for r in range(4):
            A(f'v_add_f32_dpp {v(RA + r)}, {v(RA + r)}, {v(RA + r)} row_ror:{sh} row_mask:0xf bank_mask:0xf')
    A(f'v_cvt_pk_bf16_f32 {v(t0)}, {v(RA)}, {v(RA + 1)}')
    A(f'v_cvt_pk_bf16_f32 {v(t1)}, {v(RA + 2)}, {v(RA + 3)}')
    A(f'v_min_u32 {v(t0)}, -2, {v(t0)}')
    A(f'v_min_u32 {v(t1)}, -2, {v(t1)}')
    A(f's_mov_b64 exec, {s(M_PUBX, 2)}')
    A(f'buffer_store_dwordx2 {v(t0, 2)}, {v(vPub)}, {srd(SRD_WS)}, {s(M_MP)} offen{XS}')
    A(f'buffer_store_dwordx2 {v(NEG, 2)}, {v(vPub)}, {srd(SRD_WS)}, {s(M_MRS)} offen{XS}')
    A('s_mov_b64 exec, -1')
    st('published')
    A(f's_add_u32 {s(M_STEP)}, {s(M_STEP)}, 1')
    pw = A.newlabel('tpw')
    A(f's_cmp_lt_u32 {s(S_WAVE)}, 2')
    A(f's_cbranch_scc1 {pw}')
    hk_export_read()
    A(f's_mov_b32 {s(M_SIG)}, {s(M_SIG2)}')
    A(f's_mov_b32 {s(M_SIG2)}, {s(M_FOUT)}')
    A(f's_add_u32 {s(M_FOUT)}, {s(M_FOUT)}, 1024')
    A(f's_mov_b32 {s(M_EXO)}, {s(M_EXP)}')
    A(f's_add_u32 {s(M_EXP)}, {s(M_EXP)}, 65536')
    hk_wait_flags()
    A(f's_lshl_b32 {s(M_T0)}, {s(S_WAVE)}, 11')
    A(f's_add_u32 {s(M_PRO)}, {s(M_PR)}, {s(M_T0)}')
    A(f's_sub_u32 {s(M_PRO)}, {s(M_PRO)}, 8192')
    prep_step()
    st('p2ok')
    st_flush()
    A(f's_branch {top}')
    nst[0] -= 1
    if P['stamp'] and fast:
        STAMP_NAMES.pop()
    A.label(pw)
    A(f's_lshl_b32 {s(M_T1)}, {s(S_WAVE)}, 12')
    A(f's_add_u32 {s(M_MRD)}, {s(M_MP)}, {s(M_T1)}')
    prep_step()
    A(f's_mov_b32 {s(M_SPIN)}, 0')
    if tune.get('d2'):
        A(f's_sleep {tune["d2"]}')
    p2 = A.newlabel('tp2')
    c0, c1 = VX, VX + 1
    A.label(p2)
    for j in range(4):
        A(f'buffer_load_dwordx4 {v(MF + j * 4, 4)}, {v(vL16)}, {srd(SRD_WS)}, {s(M_MRD)} offen '
          f'offset:{j * 1024} sc1')
    A('s_mov_b64 exec, -1')
    A(f's_add_u32 {s(M_SPIN)}, {s(M_SPIN)}, 1')
    A(f's_cmp_gt_u32 {s(M_SPIN)}, {SPIN_LIMIT * 4}')
    A(f's_cbranch_scc1 {end_label}')
    for j in range(4):
        A(f's_waitcnt vmcnt({3 - j})')
        A(f'ds_write_b128 {v(vMw)}, {v(MF + j * 4, 4)} offset:{j * 1024}')
        r = MF + j * 4
        if j == 0:
            A(f'v_max3_u32 {v(c0)}, {v(r)}, {v(r + 1)}, {v(r + 2)}')
            A(f'v_max_u32 {v(c0)}, {v(c0)}, {v(r + 3)}')
        else:
            A(f'v_max3_u32 {v(c0)}, {v(c0)}, {v(r)}, {v(r + 1)}')
            A(f'v_max3_u32 {v(c0)}, {v(c0)}, {v(r + 2)}, {v(r + 3)}')
    A(f'v_cmp_eq_u32 vcc, -1, {v(c0)}')
    A('s_mov_b64 exec, vcc')
    A(f's_cbranch_vccnz {p2}')
    A('s_mov_b64 exec, -1')
    st('p2ok')
    st_flush()
    A(f's_branch {top}')
    A.label(done)
    A(f's_cmp_lt_u32 {s(S_WAVE)}, 2')
    A(f's_cbranch_scc1 {end_label}')
    A('s_waitcnt lgkmcnt(0)')
    hk_export_read()
    A('s_waitcnt lgkmcnt(0)')
    A(f'buffer_store_dwordx4 {v(VX, 4)}, {v(vL16)}, {srd(SRD_WS)}, {s(M_EXP)} offen sc1')
    A(f'buffer_store_dwordx4 {v(VX + 4, 4)}, {v(vL16)}, {srd(SRD_WS)}, {s(M_EXP)} offen offset:1024 sc1')
    if has_sig:
        A('s_waitcnt vmcnt(2)')
        emit_signal(A, M_SIG2, vOne)
        A('s_waitcnt vmcnt(0)')
        emit_signal(A, M_FOUT, vOne)
    A(f's_branch {end_label}')
```

```python
import sys, os
sys.path.insert(0, os.path.dirname(__file__))
from asmdsl import Asm, v, a, s
from layout import *
from roles import *
from team import *
import mega

NAME = 'interleave_layers__memory_aug_recurrent_mem_tr__glu_gated_geglu__prompt'
LDS = 163840
X_BYTES = 2048 * 512 * 2
WQKV_BYTES = 512 * 4096 * 2
WGU_BYTES = 512 * 1792 * 2


class Kern:
    def __init__(self, name, grid, lds=LDS, vgpr=512):
        self.name, self.grid, self.lds, self.vgpr = name, grid, lds, vgpr
        self.A = Asm()
        self.A.uid = Kern.uid
        Kern.uid += 10000
        self.end = f'{name}_end'
    uid = 0

    def text(self):
        A = self.A
        A.label(self.end)
        A('s_endpgm')
        return (f'.text\n.globl {self.name}\n.p2align 8\n.type {self.name},@function\n{self.name}:\n'
                + A.text())

    def desc(self):
        acc = 256 if self.vgpr > 256 else ((self.vgpr + 3) // 4) * 4
        return (f'.amdhsa_kernel {self.name}\n  .amdhsa_next_free_vgpr {self.vgpr}\n'
                f'  .amdhsa_next_free_sgpr 102\n  .amdhsa_accum_offset {acc}\n'
                f'  .amdhsa_group_segment_fixed_size 0\n  .amdhsa_kernarg_size 112\n'
                f'  .amdhsa_user_sgpr_count 2\n  .amdhsa_user_sgpr_kernarg_segment_ptr 1\n'
                f'  .amdhsa_system_sgpr_workgroup_id_x 1\n.end_amdhsa_kernel\n')


def guard(K, n):
    K.A(f's_cmp_ge_u32 s2, {n}')
    K.A(f's_cbranch_scc1 {K.end}')


def k_init():
    K = Kern('init_kernel', 256, lds=1024, vgpr=128)
    A = K.A
    guard(K, 256)
    load_srds(A, [(SRD_WS, KA_WS, WS_BYTES), (SRD_A, KA_X, X_BYTES)])
    wave_setup(A)
    A('v_lshlrev_b32 v3, 4, v0')
    for i in range(4):
        A(f'v_mov_b32 v{4 + i}, 0')
        A(f'v_mov_b32 v{8 + i}, -1')
    A('s_lshl_b32 s24, s2, 12')
    A(f'buffer_store_dwordx4 v[4:7], v3, {srd(SRD_WS)}, s24 offen')
    A(f's_lshl_b32 s24, s2, 13')
    A(f's_add_u32 s24, s24, {TP}')
    A(f'buffer_store_dwordx4 v[8:11], v3, {srd(SRD_WS)}, s24 offen')
    A(f's_add_u32 s24, s24, 4096')
    A(f'buffer_store_dwordx4 v[8:11], v3, {srd(SRD_WS)}, s24 offen')
    l1 = A.newlabel('i')
    A('s_cmp_ge_u32 s2, 16')
    A(f's_cbranch_scc1 {l1}')
    A(f's_lshl_b32 s24, s2, 12')
    A(f's_add_u32 s24, s24, {TM}')
    A(f'buffer_store_dwordx4 v[8:11], v3, {srd(SRD_WS)}, s24 offen')
    A.label(l1)
    l2 = A.newlabel('i')
    A('s_cmp_lg_u32 s2, 16')
    A(f's_cbranch_scc1 {l2}')
    A(f's_mov_b32 s24, {TCTL}')
    A(f'buffer_store_dwordx4 v[4:7], v3, {srd(SRD_WS)}, s24 offen')
    A.label(l2)
    A('s_mov_b32 s24, 0')
    A('s_lshl_b32 s25, s2, 12')
    A('s_mov_b32 s26, 0')
    A('s_lshr_b32 s27, s2, 3')
    A('s_lshl_b32 s27, s27, 15')
    A('s_and_b32 s31, s2, 7')
    A('s_lshl_b32 s31, s31, 6')
    A('s_add_u32 s27, s27, s31')
    A(f's_add_u32 s27, s27, {XN}')
    A('s_mov_b32 s28, 2')
    rl_role(A, 0, SRD_A, SRD_A, True, dict(p=0, x=256 * 4096, xn=32 * 32768), K.end, sc1=False, xin_sc1=False)
    return K


def k_proj(layer, msplit=5):
    K = Kern(f'proj{layer}_kernel', 48 * msplit)
    A = K.A
    guard(K, 48 * msplit)
    load_srds(A, [(SRD_WS, KA_WS, WS_BYTES), (SRD_A, KA_WQ, WQKV_BYTES), (SRD_B, KA_WK, WQKV_BYTES),
                  (SRD_C, KA_WV, WQKV_BYTES)])
    wave_setup(A)
    A(f's_mov_b32 s40, {(1 << 32) // 48 + 1}')
    A('s_mul_hi_u32 s41, s2, s40')
    A('s_mul_i32 s40, s41, 48')
    A('s_sub_u32 s42, s2, s40')
    A('s_lshr_b32 s43, s42, 4')
    A('s_and_b32 s42, s42, 15')
    A(f's_sub_u32 s28, {64 + msplit - 1}, s41')
    A(f's_mov_b32 s40, {(1 << 32) // msplit + 1}')
    A('s_mul_hi_u32 s28, s28, s40')
    A('s_lshl_b32 s24, s42, 9')
    A('s_lshl_b32 s40, s3, 7')
    A('s_add_u32 s24, s24, s40')
    A('s_add_u32 s25, s24, 64')
    A('s_lshl_b32 s26, s41, 15')
    A(f's_add_u32 s26, s26, {XN + layer * 2 * 2 * MB}')
    A('s_lshl_b32 s27, s41, 18')
    lv = A.newlabel('pv')
    lk = A.newlabel('pk')
    A('s_cmp_eq_u32 s43, 2')
    A(f's_cbranch_scc1 {lv}')
    A('s_lshl_b32 s40, s42, 14')
    A('s_add_u32 s27, s27, s40')
    A('s_lshl_b32 s40, s3, 12')
    A('s_add_u32 s27, s27, s40')
    A('s_cmp_eq_u32 s43, 1')
    A(f's_cbranch_scc1 {lk}')
    A(f's_add_u32 s27, s27, {QB + layer * 16 * MB}')
    gemm_role(A, 32, 'qk', 8192, SRD_A, SRD_A, 32768 * msplit, 262144 * msplit, K.end, sc1=False)
    A.label(lk)
    A(f's_add_u32 s27, s27, {KB + layer * 16 * MB}')
    gemm_role(A, 32, 'qk', 8192, SRD_B, SRD_B, 32768 * msplit, 262144 * msplit, K.end, sc1=False)
    A.label(lv)
    A('s_lshl_b32 s40, s42, 14')
    A('s_add_u32 s27, s27, s40')
    A('s_lshr_b32 s40, s3, 1')
    A('s_lshl_b32 s40, s40, 13')
    A('s_add_u32 s27, s27, s40')
    A('s_and_b32 s40, s3, 1')
    A('s_lshl_b32 s40, s40, 10')
    A('s_add_u32 s27, s27, s40')
    A(f's_add_u32 s27, s27, {VT + layer * 16 * MB}')
    gemm_role(A, 32, 'v', 8192, SRD_C, SRD_C, 32768 * msplit, 262144 * msplit, K.end, sc1=False)
    return K


def k_team(layer, force_slow=False, stamp=False, nsteps=64, tune=None):
    K = Kern(f'team{layer}_kernel', 256)
    A = K.A
    guard(K, 256)
    A('s_and_b32 s40, s2, 7')
    A('s_cmp_lg_u32 s40, 0')
    A(f's_cbranch_scc1 {K.end}')
    load_srds(A, [(SRD_WS, KA_WS, WS_BYTES), (SRD_A, KA_WQ, WQKV_BYTES), (SRD_B, KA_WK, WQKV_BYTES),
                  (SRD_C, KA_WV, WQKV_BYTES), (SRD_D, KA_WO, WQKV_BYTES), (SRD_M0, KA_MEM0, 8192)])
    wave_setup(A)
    A(f's_lshr_b32 {s(M_ME)}, s2, 3')
    A(f's_lshl_b32 s40, {s(M_ME)}, 13')
    A(f's_add_u32 {s(M_K)}, s40, {KB + layer * 16 * MB}')
    A(f's_add_u32 {s(M_V)}, s40, {VT + layer * 16 * MB}')
    A(f's_lshl_b32 s40, {s(M_ME)}, 11')
    A(f's_add_u32 {s(M_KM)}, s40, {KM + layer * 4 * MB}')
    A(f's_add_u32 {s(M_VM)}, s40, {VM + layer * 4 * MB}')
    A(f's_mov_b32 {s(M_TP)}, {TP + layer * MB}')
    A(f's_mov_b32 {s(M_TM)}, {TM + layer * 32768}')
    A(f's_mov_b32 {s(M_CTL)}, {TCTL + layer * 256}')
    team_role(A, K.end, force_slow=force_slow, stamp=stamp, nsteps=nsteps, tune=tune)
    return K


def k_att(layer):
    K = Kern(f'att{layer}_kernel', 256, lds=0, vgpr=256)
    A = K.A
    guard(K, 256)
    load_srds(A, [(SRD_WS, KA_WS, WS_BYTES)])
    wave_setup(A)
    A('s_lshl_b32 s40, s2, 2')
    A('s_add_u32 s40, s40, s3')
    A('s_lshl_b32 s41, s40, 13')
    A(f's_add_u32 s24, s41, {QB + layer * 16 * MB}')
    A(f's_add_u32 s25, s41, {KB + layer * 16 * MB}')
    A(f's_add_u32 s26, s41, {VT + layer * 16 * MB}')
    A(f's_add_u32 s32, s41, {OB}')
    A('s_lshl_b32 s41, s40, 11')
    A(f's_add_u32 s27, s41, {KM + layer * 4 * MB}')
    A(f's_add_u32 s31, s41, {VM + layer * 4 * MB}')
    A('s_mov_b32 s28, 2')
    att_role(A, 32, K.end, sc1=False)
    return K


def k_out():
    K = Kern('out_kernel', 256)
    A = K.A
    guard(K, 256)
    load_srds(A, [(SRD_WS, KA_WS, WS_BYTES), (SRD_A, KA_WO, WQKV_BYTES)])
    wave_setup(A)
    A('s_and_b32 s41, s2, 1')
    A('s_bfe_u32 s42, s2, 0x30001')
    A('s_lshr_b32 s43, s2, 4')
    A('s_lshl_b32 s24, s42, 19')
    A('s_lshl_b32 s40, s41, 9')
    A('s_add_u32 s24, s24, s40')
    A('s_lshl_b32 s40, s3, 7')
    A('s_add_u32 s24, s24, s40')
    A('s_add_u32 s25, s24, 64')
    A('s_lshl_b32 s26, s43, 18')
    A('s_lshl_b32 s40, s42, 15')
    A('s_add_u32 s26, s26, s40')
    A(f's_add_u32 s26, s26, {OB}')
    A('s_lshl_b32 s27, s42, 22')
    A('s_lshl_b32 s40, s43, 16')
    A('s_add_u32 s27, s27, s40')
    A('s_lshl_b32 s40, s41, 12')
    A('s_add_u32 s27, s27, s40')
    A('s_lshl_b32 s40, s3, 10')
    A('s_add_u32 s27, s27, s40')
    A(f's_add_u32 s27, s27, {PO}')
    A('s_mov_b32 s28, 4')
    gemm_role(A, 32, 'part', 1024, SRD_A, SRD_A, 262144 * 16, 65536 * 16, K.end, sc1=False)
    return K


def k_rl(which):
    K = Kern(f'rl{which}_kernel', 256, lds=1024, vgpr=128)
    A = K.A
    guard(K, 256)
    load_srds(A, [(SRD_WS, KA_WS, WS_BYTES), (SRD_A, KA_X, X_BYTES), (SRD_B, KA_OUT, X_BYTES)])
    wave_setup(A)
    pbase, kbn = (PO, 8) if which % 2 == 0 else (PD, 4)
    A('s_lshl_b32 s24, s2, 13')
    A(f's_add_u32 s24, s24, {pbase}')
    A('s_lshl_b32 s25, s2, 12')
    A('s_mov_b32 s26, s25')
    if which > 0:
        A(f's_add_u32 s25, s25, {XR + (which - 1) * 2 * MB}')
    if which < 3:
        A(f's_add_u32 s26, s26, {XR + which * 2 * MB}')
    A('s_lshr_b32 s27, s2, 3')
    A('s_lshl_b32 s27, s27, 15')
    A('s_and_b32 s31, s2, 7')
    A('s_lshl_b32 s31, s31, 6')
    A('s_add_u32 s27, s27, s31')
    A(f's_add_u32 s27, s27, {XN + ((which + 1) & 3) * 2 * MB}')
    A('s_mov_b32 s28, 2')
    rl_role(A, kbn, SRD_A if which == 0 else SRD_WS, SRD_B if which == 3 else SRD_WS, which < 3,
            dict(p=256 * 8192, x=256 * 4096, xn=32 * 32768), K.end, sc1=False, xin_sc1=False, xout_sc1=False)
    return K


def k_gu(layer):
    K = Kern(f'gu{layer}_kernel', 14 * 16)
    A = K.A
    guard(K, 14 * 16)
    load_srds(A, [(SRD_WS, KA_WS, WS_BYTES), (SRD_A, KA_WG, WGU_BYTES), (SRD_B, KA_WU, WGU_BYTES)])
    wave_setup(A)
    A('s_and_b32 s43, s2, 15')
    A('s_lshr_b32 s42, s2, 4')
    A('s_lshl_b32 s24, s42, 8')
    A('s_lshl_b32 s40, s3, 6')
    A('s_add_u32 s24, s24, s40')
    A('s_mov_b32 s25, s24')
    A('s_lshl_b32 s26, s43, 15')
    A(f's_add_u32 s26, s26, {XN + (layer * 2 + 1) * 2 * MB}')
    A(f's_mul_i32 s27, s43, {224 * 512}')
    A('s_lshl_b32 s40, s42, 13')
    A('s_add_u32 s27, s27, s40')
    A('s_lshl_b32 s40, s3, 11')
    A('s_add_u32 s27, s27, s40')
    A(f's_add_u32 s27, s27, {HB}')
    A('s_mov_b32 s28, 4')
    gemm_role(A, 32, 'gu', 3584, SRD_A, SRD_B, 32768 * 16, 224 * 512 * 16, K.end, sc1=False)
    return K


def k_dn():
    K = Kern('dn_kernel', 256)
    A = K.A
    guard(K, 256)
    load_srds(A, [(SRD_WS, KA_WS, WS_BYTES), (SRD_A, KA_WD, WGU_BYTES)])
    wave_setup(A)
    A('s_and_b32 s41, s2, 1')
    A('s_bfe_u32 s42, s2, 0x20001')
    A('s_lshr_b32 s43, s2, 3')
    A(f's_mul_i32 s24, s42, {448 * 1024}')
    A('s_lshl_b32 s40, s41, 9')
    A('s_add_u32 s24, s24, s40')
    A('s_lshl_b32 s40, s3, 7')
    A('s_add_u32 s24, s24, s40')
    A('s_add_u32 s25, s24, 64')
    A(f's_mul_i32 s26, s43, {224 * 512}')
    A(f's_mul_i32 s40, s42, {28 * 1024}')
    A('s_add_u32 s26, s26, s40')
    A(f's_add_u32 s26, s26, {HB}')
    A('s_lshl_b32 s27, s42, 22')
    A('s_lshl_b32 s40, s43, 16')
    A('s_add_u32 s27, s27, s40')
    A('s_lshl_b32 s40, s41, 12')
    A('s_add_u32 s27, s27, s40')
    A('s_lshl_b32 s40, s3, 10')
    A('s_add_u32 s27, s27, s40')
    A(f's_add_u32 s27, s27, {PD}')
    A('s_mov_b32 s28, 2')
    gemm_role(A, 28, 'part', 1024, SRD_A, SRD_A, 224 * 512 * 32, 65536 * 32, K.end, sc1=False)
    return K


def k_mega(**kw):
    K = Kern('mega_kernel', 256)
    mega.build_mega(K, **kw)
    return K


def build(launches):
    header = open(f'cdna_kernels/{NAME}.s.ref').read().split('\n')
    hdr = [l for l in header if l.startswith(';') and '@launch' not in l and 'Override' not in l
           and 'grid=ceil' not in l]
    out = hdr[:]
    for k in launches:
        out.append(f'; @launch kernel={k.name} grid=({k.grid},1,1) block=(256,1,1) lds={k.lds}')
    out.append('.amdgcn_target "amdgcn-amd-amdhsa--gfx950"')
    seen = []
    for k in launches:
        if k not in seen:
            seen.append(k)
    for k in seen:
        out.append(k.text())
    out.append('.section .rodata,"a"')
    for k in seen:
        out.append('.p2align 6')
        out.append(k.desc())
    return '\n'.join(out)


def stage_b(force_slow=False):
    ko, kd = k_out(), k_dn()
    return [k_init(), k_proj(0), k_team(0, force_slow), k_att(0), ko, k_rl(0), k_gu(0), kd, k_rl(1),
            k_proj(1), k_team(1, force_slow), k_att(1), ko, k_rl(2), k_gu(1), kd, k_rl(3)]


if __name__ == '__main__':
    outp = sys.argv[1] if len(sys.argv) > 1 else f'cdna_kernels/{NAME}.s'
    variant = sys.argv[2] if len(sys.argv) > 2 else 'b'
    if variant == 'b':
        txt = build(stage_b())
    elif variant == 'teamstamp':
        txt = build([k_init(), k_proj(0), k_team(0, False, 30)])
        print(STAMP_NAMES)
    elif variant.startswith('teamn'):
        tune = eval(sys.argv[3]) if len(sys.argv) > 3 else None
        txt = build([k_init(), k_proj(0), k_team(0, False, False, int(variant[5:]), tune)])
    elif variant == 'm':
        kw = eval(sys.argv[3]) if len(sys.argv) > 3 else {}
        PROFILE[0] = kw.pop('profile', False)
        GSTAMP[0] = kw.pop('gstamp', 0)
        DBGT[0] = kw.pop('dbgt', 0)
        TUNE.update(kw.pop('gt', {}))
        if 'pcfg' not in TUNE:
            TUNE.setdefault('psplit', 0)
        txt = build([k_mega(**kw)])
    elif variant == 'projonly':
        GSTAMP[0] = int(sys.argv[4]) if len(sys.argv) > 4 else 0
        txt = build([k_init(), k_proj(0, int(sys.argv[3]))])
    elif variant == 'bslow':
        txt = build(stage_b(True))
    open(outp, 'w').write(txt)
    print('wrote', outp, len(txt))
```

```python
from asmdsl import Asm, v, a, s
from layout import *
from roles import *
from team import *

X_BYTES = 2048 * 512 * 2
WQKV_BYTES = 512 * 4096 * 2
WGU_BYTES = 512 * 1792 * 2
SRD_DBG = 92
S_SLOT, S_LAYER, S_IDX, S_X = 96, 97, 98, 99

N_PROJ = 48
GROUP = [('rl2', 8), ('dn', 8), ('gu', 14), ('rl', 8), ('ao', 32)]
N1, NA2 = 15, 6
GN = sum(n for _, n in GROUP)


def read_counts(A, vdst, fail):
    A(f'v_and_b32 v3, 7, v2')
    A(f'v_lshlrev_b32 v3, 2, v3')
    A(f'buffer_load_dword {v(vdst)}, v3, {srd(SRD_DBG)}, 0 offen sc1')
    A('s_waitcnt vmcnt(0)')
    for i in range(8):
        A(f'v_readlane_b32 s{80 + i}, {v(vdst)}, {i}')
    A('s_add_u32 s88, s80, s81')
    for i in range(2, 8):
        A(f's_add_u32 s88, s88, s{80 + i}')


def assign_slot(A, end, fake_xcc=None):
    A(f's_getreg_b32 {s(S_X)}, hwreg(HW_REG_XCC_ID)')
    A(f's_and_b32 {s(S_X)}, {s(S_X)}, 7')
    if fake_xcc:
        A(fake_xcc)
    have = A.newlabel('tick')
    A(f's_cmp_lg_u32 {s(S_WAVE)}, 0')
    A(f's_cbranch_scc1 {have}')
    A(f's_lshl_b32 s40, {s(S_X)}, 2')
    A('v_mov_b32 v4, 1')
    A('v_mov_b32 v5, 0')
    A('s_mov_b64 exec, 1')
    A(f'buffer_atomic_add v4, off, {srd(SRD_DBG)}, s40 sc0 sc1')
    A('s_waitcnt vmcnt(0)')
    A('ds_write_b32 v5, v4')
    A('s_mov_b64 exec, -1')
    A('s_waitcnt lgkmcnt(0)')
    A.label(have)
    A('s_barrier')
    A('v_mov_b32 v5, 0')
    A('ds_read_b32 v4, v5')
    A('s_waitcnt lgkmcnt(0)')
    A('v_readfirstlane_b32 s41, v4')
    A('s_barrier')
    A(f's_lshl_b32 {s(S_SLOT)}, {s(S_X)}, 5')
    A(f's_add_u32 {s(S_SLOT)}, {s(S_SLOT)}, s41')
    ok = A.newlabel('slotok')
    A('s_cmp_lt_u32 s41, 32')
    A(f's_cbranch_scc1 {ok}')
    lp = A.newlabel('surp')
    A('s_mov_b32 s42, 0')
    A.label(lp)
    A('s_add_u32 s42, s42, 1')
    A(f's_cmp_gt_u32 s42, {SPIN_LIMIT}')
    A(f's_cbranch_scc1 {end}')
    read_counts(A, 4, end)
    A('s_cmp_lt_u32 s88, 256')
    A(f's_cbranch_scc1 {lp}')
    A('s_sub_u32 s43, s41, 32')
    for i in range(8):
        A(f's_max_u32 s89, s{80 + i}, 32')
        A('s_sub_u32 s89, s89, 32')
        A(f's_cmp_gt_u32 {s(S_X)}, {i}')
        A('s_cselect_b32 s89, s89, 0')
        A('s_add_u32 s43, s43, s89')
    for i in range(8):
        nx = A.newlabel('hole')
        A(f's_min_u32 s89, s{80 + i}, 32')
        A('s_sub_u32 s90, 32, s89')
        A('s_cmp_lt_u32 s43, s90')
        A(f's_cbranch_scc0 {nx}')
        A(f's_add_u32 {s(S_SLOT)}, s89, s43')
        A(f's_add_u32 {s(S_SLOT)}, {s(S_SLOT)}, {i * 32}')
        A(f's_branch {ok}')
        A.label(nx)
        A('s_sub_u32 s43, s43, s90')
    A(f's_branch {end}')
    A.label(ok)


def ptr_srd(A, sreg, ka, nbytes):
    A(f's_load_dwordx2 {s(sreg, 2)}, s[0:1], {ka}')
    A('s_waitcnt lgkmcnt(0)')
    A(f's_mov_b32 {s(sreg + 2)}, {nbytes}')
    A(f's_mov_b32 {s(sreg + 3)}, 0x00020000')


def proj_params(A, layer, seg0, nseg, is_v):
    A(f's_mov_b32 {s(G_IN)}, {XN + layer * 4 * MB + seg0 * 32768}')
    A('s_lshl_b32 s27, s42, 14')
    if is_v:
        A('s_lshr_b32 s40, s3, 1')
        A('s_lshl_b32 s40, s40, 13')
        A('s_add_u32 s27, s27, s40')
        A('s_and_b32 s40, s3, 1')
        A('s_lshl_b32 s40, s40, 10')
        A('s_add_u32 s27, s27, s40')
        A(f's_add_u32 s27, s27, {VT + layer * 16 * MB + seg0 * 262144}')
    else:
        A('s_lshl_b32 s40, s3, 12')
        A('s_add_u32 s27, s27, s40')
        A('s_lshl_b32 s40, s43, 25')
        A('s_add_u32 s27, s27, s40')
        A(f's_add_u32 s27, s27, {QB + layer * 16 * MB + seg0 * 262144}')
    assert KB - QB == 1 << 25
    A(f's_mov_b32 {s(G_CNT)}, {nseg}')
    A(f's_mov_b32 {s(G_FIN)}, {flag_base(ST_RL2, 0) + seg0 * 1024}')
    A(f's_lshl_b32 {s(G_FOUT)}, s43, 6')
    A('s_lshl_b32 s40, s42, 2')
    A(f's_add_u32 {s(G_FOUT)}, {s(G_FOUT)}, s40')
    A(f's_add_u32 {s(G_FOUT)}, {s(G_FOUT)}, {flag_base(ST_PROJ, layer) + seg0 * 1024}')


def build_mega(K, force_slow=False, fake_xcc=None, tune=None, stamp=False):
    A = K.A
    end = K.end
    A('s_cmp_ge_u32 s2, 256')
    A(f's_cbranch_scc1 {end}')
    load_srds(A, [(SRD_WS, KA_WS, WS_BYTES), (SRD_DBG, KA_DBG, 256)])
    wave_setup(A)
    assign_slot(A, end, fake_xcc)
    L = {n: A.newlabel('r_' + n) for n in ('team', 'proj', 'group', 'ao', 'gu', 'dn', 'rl', 'rl2')}
    A(f's_cmp_lt_u32 {s(S_SLOT)}, 32')
    A(f's_cbranch_scc1 {L["team"]}')
    A('s_mov_b32 s44, 2')
    A(f's_sub_u32 s45, {s(S_SLOT)}, 32')
    A(f's_cmp_lt_u32 {s(S_SLOT)}, 64')
    A(f's_cbranch_scc1 {L["proj"]}')
    A(f's_and_b32 s40, {s(S_SLOT)}, 31')
    A('s_mul_i32 s40, s40, 6')
    A(f's_lshr_b32 s41, {s(S_SLOT)}, 5')
    A('s_add_u32 s40, s40, s41')
    A(f's_sub_u32 {s(S_IDX)}, s40, 2')
    A(f's_mov_b32 s44, 0')
    A(f's_mov_b32 s45, {s(S_IDX)}')
    A(f's_cmp_lt_u32 {s(S_IDX)}, {N_PROJ}')
    A(f's_cbranch_scc1 {L["proj"]}')
    A(f's_sub_u32 {s(S_IDX)}, {s(S_IDX)}, {N_PROJ}')
    A(f's_mov_b32 {s(S_LAYER)}, 0')
    A(f's_cmp_lt_u32 {s(S_IDX)}, {GN}')
    A(f's_cbranch_scc1 {L["group"]}')
    A(f's_sub_u32 {s(S_IDX)}, {s(S_IDX)}, {GN}')
    A(f's_mov_b32 {s(S_LAYER)}, 1')
    A(f's_cmp_ge_u32 {s(S_IDX)}, {GN}')
    A(f's_cbranch_scc1 {end}')
    A(f's_cmp_ge_u32 {s(S_IDX)}, {N_PROJ + 16}')
    A(f's_cbranch_scc1 {L["group"]}')
    A(f's_mov_b32 s44, 1')
    A(f's_mov_b32 s45, {s(S_IDX)}')
    A(f's_cmp_lt_u32 {s(S_IDX)}, {N_PROJ}')
    A(f's_cbranch_scc1 {L["proj"]}')
    A('s_mov_b32 s44, 2')
    A(f's_sub_u32 s45, {s(S_IDX)}, 16')

    A.label(L['proj'])
    A('s_lshr_b32 s43, s45, 4')
    A('s_and_b32 s42, s45, 15')
    A('s_lshl_b32 s40, s43, 3')
    A(f's_add_u32 s40, s40, {KA_WQ}')
    A(f's_load_dwordx2 {s(SRD_A, 2)}, s[0:1], s40')
    A('s_waitcnt lgkmcnt(0)')
    A(f's_mov_b32 {s(SRD_A + 2)}, {WQKV_BYTES}')
    A(f's_mov_b32 {s(SRD_A + 3)}, 0x00020000')
    A('s_lshl_b32 s24, s42, 9')
    A('s_lshl_b32 s40, s3, 7')
    A('s_add_u32 s24, s24, s40')
    A('s_add_u32 s25, s24, 64')
    lv = A.newlabel('pv')
    A('s_cmp_eq_u32 s43, 2')
    A(f's_cbranch_scc1 {lv}')
    for is_v in (False, True):
        mode = 'v' if is_v else 'qk'
        if is_v:
            A.label(lv)
        gemm_setup(A, 32, mode, 8192, SRD_A, SRD_A)
        proj_params(A, 0, 0, N1, is_v)
        A(f's_mul_i32 s40, s44, 32768')
        A(f's_add_u32 {s(G_IN)}, {s(G_IN)}, s40')
        A(f's_mul_i32 s40, s44, 262144')
        A(f's_add_u32 {s(G_OUT)}, {s(G_OUT)}, s40')
        A(f's_mul_i32 s40, s44, 1024')
        A(f's_add_u32 {s(G_FOUT)}, {s(G_FOUT)}, s40')
        A(f's_mov_b32 s47, {3 * 32768}')
        A(f's_mov_b32 s48, {3 * 262144}')
        A(f's_mov_b32 s49, 3072')
        A('s_mov_b32 s41, 0')
        again = A.newlabel('pagain')
        l2 = A.newlabel('pl2')
        fin = A.newlabel('pfin')
        pb = A.newlabel('pb')
        A.label(again)
        gemm_loop(A, 32, mode, 's47', 's48', end, flags=dict(n=1, fout_step='s49', poll_in=False))
        A('s_barrier')
        A('s_cmp_eq_u32 s44, 2')
        A(f's_cbranch_scc1 {fin}')
        A('s_cmp_eq_u32 s41, 1')
        A(f's_cbranch_scc1 {fin}')
        A('s_mov_b32 s41, 1')
        A(f's_mov_b32 s47, 32768')
        A(f's_mov_b32 s48, 262144')
        A(f's_mov_b32 s49, 1024')
        A('s_cmp_eq_u32 s44, 1')
        A(f's_cbranch_scc1 {pb}')
        proj_params(A, 0, 3 * N1, NA2, is_v)
        A(f's_branch {again}')
        A.label(pb)
        proj_params(A, 0, 3 * N1 + NA2, 64 - 3 * N1 - NA2, is_v)
        A(f's_branch {again}')
        A.label(fin)
        A('s_cmp_eq_u32 s44, 0')
        A(f's_cbranch_scc1 {l2}')
        A(f's_cmp_lt_u32 {s(S_SLOT)}, 64')
        A(f's_cbranch_scc1 {L["team"]}')
        A(f's_branch {L["group"]}')
        A.label(l2)
        proj_params(A, 1, 0, 64, is_v)
        gemm_loop(A, 32, mode, 32768, 262144, end,
                  flags=dict(n=4, fin_step=1024, fout_step=1024, poll_in=True))
        A(f's_branch {end}')

    A.label(L['group'])
    A(f's_lshl_b32 s46, {s(S_LAYER)}, 16')
    for name, n in GROUP:
        A(f's_cmp_lt_u32 {s(S_IDX)}, {n}')
        A(f's_cbranch_scc1 {L[name]}')
        A(f's_sub_u32 {s(S_IDX)}, {s(S_IDX)}, {n}')
    A(f's_branch {end}')

    def own_flag(stage):
        A(f's_lshl_b32 {s(G_FOUT)}, {s(S_IDX)}, 2')
        A(f's_add_u32 {s(G_FOUT)}, {s(G_FOUT)}, s46')
        A(f's_add_u32 {s(G_FOUT)}, {s(G_FOUT)}, {flag_base(stage, 0)}')

    def part_out(base):
        A('s_lshl_b32 s27, s42, 21')
        A('s_lshl_b32 s40, s41, 11')
        A('s_add_u32 s27, s27, s40')
        A('s_lshl_b32 s40, s3, 9')
        A('s_add_u32 s27, s27, s40')
        A(f's_add_u32 s27, s27, {base}')

    A.label(L['ao'])
    ptr_srd(A, SRD_A, KA_WO, WQKV_BYTES)
    A(f's_and_b32 s41, {s(S_IDX)}, 1')
    A(f's_bfe_u32 s42, {s(S_IDX)}, 0x30001')
    A(f's_lshr_b32 s43, {s(S_IDX)}, 4')
    A('s_lshl_b32 s24, s42, 19')
    A('s_lshl_b32 s40, s41, 9')
    A('s_add_u32 s24, s24, s40')
    A('s_lshl_b32 s40, s3, 7')
    A('s_add_u32 s24, s24, s40')
    A('s_add_u32 s25, s24, 64')
    part_out(PO)
    A(f's_mul_i32 s40, s43, {PSEG}')
    A('s_add_u32 s27, s27, s40')
    A('s_mov_b32 s28, 32')
    A('s_lshl_b32 s47, s42, 2')
    A('s_add_u32 s47, s47, s3')
    A('s_lshl_b32 s48, s43, 5')
    A('s_add_u32 s48, s48, s47')
    A('s_lshl_b32 s40, s48, 13')
    A(f's_lshl_b32 s49, {s(S_LAYER)}, 24')
    A('s_add_u32 s40, s40, s49')
    A(f's_add_u32 s50, s40, {QB}')
    A(f's_add_u32 s51, s40, {KB}')
    A(f's_add_u32 s52, s40, {VT}')
    A('s_lshl_b32 s40, s48, 11')
    A(f's_lshl_b32 s49, {s(S_LAYER)}, 22')
    A('s_add_u32 s40, s40, s49')
    A(f's_add_u32 s53, s40, {KM}')
    A(f's_add_u32 s54, s40, {VM}')
    A('s_lshl_b32 s49, s43, 10')
    A('s_add_u32 s49, s49, s46')
    A('s_lshl_b32 s40, s47, 4')
    A('s_add_u32 s29, s49, s40')
    A(f's_add_u32 s29, s29, {flag_base(ST_TEAM, 0)}')
    A('s_lshr_b32 s40, s47, 1')
    A('s_lshl_b32 s40, s40, 2')
    A('s_add_u32 s55, s49, s40')
    A(f's_add_u32 s55, s55, {flag_base(ST_PROJ, 0)}')
    A(f's_and_b32 s40, {s(S_IDX)}, 15')
    A('s_lshl_b32 s40, s40, 2')
    A('s_add_u32 s30, s49, s40')
    A(f's_add_u32 s30, s30, {flag_base(ST_OUT, 0)}')
    ao_role(A, 2, end)

    A.label(L['gu'])
    ptr_srd(A, SRD_A, KA_WG, WGU_BYTES)
    ptr_srd(A, SRD_B, KA_WU, WGU_BYTES)
    A(f's_lshl_b32 s24, {s(S_IDX)}, 8')
    A('s_lshl_b32 s40, s3, 6')
    A('s_add_u32 s24, s24, s40')
    A('s_mov_b32 s25, s24')
    A(f's_lshl_b32 s26, {s(S_LAYER)}, 22')
    A(f's_add_u32 s26, s26, {XN + 2 * MB}')
    A(f's_lshl_b32 s27, {s(S_IDX)}, 13')
    A('s_lshl_b32 s40, s3, 11')
    A('s_add_u32 s27, s27, s40')
    A(f's_add_u32 s27, s27, {HB}')
    A('s_mov_b32 s28, 64')
    A(f's_add_u32 {s(G_FIN)}, s46, {flag_base(ST_RL, 0)}')
    own_flag(ST_GU)
    gemm_role(A, 32, 'gu', 3584, SRD_A, SRD_B, 32768, 224 * 512, end,
              flags=dict(n=4, fin_step=1024, fout_step=1024, poll_in=True))

    A.label(L['dn'])
    ptr_srd(A, SRD_A, KA_WD, WGU_BYTES)
    A(f's_and_b32 s41, {s(S_IDX)}, 1')
    A(f's_lshr_b32 s42, {s(S_IDX)}, 1')
    A(f's_mul_i32 s24, s42, {448 * 1024}')
    A('s_lshl_b32 s40, s41, 9')
    A('s_add_u32 s24, s24, s40')
    A('s_lshl_b32 s40, s3, 7')
    A('s_add_u32 s24, s24, s40')
    A('s_add_u32 s25, s24, 64')
    A(f's_mul_i32 s26, s42, {28 * 1024}')
    A(f's_add_u32 s26, s26, {HB}')
    part_out(PD)
    A('s_mov_b32 s28, 64')
    A(f's_mul_i32 {s(G_FIN)}, s42, 7')
    A(f's_lshr_b32 {s(G_FIN)}, {s(G_FIN)}, 1')
    A(f's_lshl_b32 {s(G_FIN)}, {s(G_FIN)}, 2')
    A(f's_add_u32 {s(G_FIN)}, {s(G_FIN)}, s46')
    A(f's_add_u32 {s(G_FIN)}, {s(G_FIN)}, {flag_base(ST_GU, 0)}')
    own_flag(ST_DN)
    gemm_role(A, 28, 'part', 1024, SRD_A, SRD_A, 224 * 512, PSEG, end,
              flags=dict(n=4, fin_step=1024, fout_step=1024, poll_in=True))

    for name, pbase, kbn, st_in, nfl, st_out in (('rl', PO, 8, ST_OUT, 16, ST_RL), ('rl2', PD, 4, ST_DN, 8, ST_RL2)):
        A.label(L[name])
        l1 = A.newlabel('rl_l1')
        A(f's_lshl_b32 s24, {s(S_IDX)}, 13')
        A('s_mov_b32 s25, s24')
        A('s_mov_b32 s26, s24')
        A(f's_add_u32 s24, s24, {pbase}')
        A(f's_lshr_b32 s41, {s(S_IDX)}, 2')
        A(f's_and_b32 s42, {s(S_IDX)}, 3')
        A('s_lshl_b32 s27, s41, 15')
        A('s_lshl_b32 s40, s42, 7')
        A('s_add_u32 s27, s27, s40')
        A('s_mov_b32 s28, 32')
        A('s_lshl_b32 s41, s41, 10')
        A('s_add_u32 s41, s41, s46')
        A(f's_add_u32 s29, s41, {flag_base(st_in, 0)}')
        A('s_lshl_b32 s40, s42, 2')
        A('s_add_u32 s30, s41, s40')
        A(f's_add_u32 s30, s30, {flag_base(st_out, 0)}')
        A(f's_cmp_eq_u32 {s(S_LAYER)}, 1')
        A(f's_cbranch_scc1 {l1}')
        for layer in (0, 1):
            which = layer * 2 + (0 if name == 'rl' else 1)
            if layer == 1:
                A.label(l1)
            if which == 0:
                ptr_srd(A, SRD_A, KA_X, X_BYTES)
            if which == 3:
                ptr_srd(A, SRD_B, KA_OUT, X_BYTES)
            if which > 0:
                A(f's_add_u32 s25, s25, {XR + (which - 1) * 2 * MB}')
            if which < 3:
                A(f's_add_u32 s26, s26, {XR + which * 2 * MB}')
            A(f's_add_u32 s27, s27, {XN + ((which + 1) & 3) * 2 * MB}')
            rl_role(A, kbn, SRD_A if which == 0 else SRD_WS, SRD_B if which == 3 else SRD_WS, which < 3,
                    dict(p=2 * PSEG, x=65536, xn=65536), end,
                    flags=dict(n=nfl, fin_step=2048, fout_step=2048, poll_in=True, signal=which < 3, pair=True),
                    xin_sc1=which > 0, xout_sc1=which < 3)

    A.label(L['team'])
    load_srds(A, [(SRD_A, KA_WQ, WQKV_BYTES), (SRD_B, KA_WK, WQKV_BYTES),
                  (SRD_C, KA_WV, WQKV_BYTES), (SRD_D, KA_WO, WQKV_BYTES), (SRD_M0, KA_MEM0, 8192)])
    A(f's_lshr_b32 {s(S_LAYER)}, {s(S_SLOT)}, 5')
    A(f's_and_b32 {s(M_ME)}, {s(S_SLOT)}, 31')
    A(f's_lshl_b32 s40, {s(M_ME)}, 13')
    A(f's_lshl_b32 s41, {s(S_LAYER)}, 24')
    A('s_add_u32 s40, s40, s41')
    A(f's_add_u32 {s(M_K)}, s40, {KB}')
    A(f's_add_u32 {s(M_V)}, s40, {VT}')
    A(f's_lshl_b32 s40, {s(M_ME)}, 11')
    A(f's_lshl_b32 s41, {s(S_LAYER)}, 22')
    A('s_add_u32 s40, s40, s41')
    A(f's_add_u32 {s(M_KM)}, s40, {KM}')
    A(f's_add_u32 {s(M_VM)}, s40, {VM}')
    A(f's_lshl_b32 s40, {s(S_LAYER)}, 20')
    A(f's_add_u32 {s(M_TP)}, s40, {TP}')
    A(f's_lshl_b32 s40, {s(S_LAYER)}, 15')
    A(f's_add_u32 {s(M_TM)}, s40, {TM}')
    A(f's_lshl_b32 s41, {s(S_LAYER)}, 16')
    A(f's_lshr_b32 s40, {s(M_ME)}, 1')
    A('s_lshl_b32 s40, s40, 2')
    A('s_add_u32 s40, s40, s41')
    A(f's_add_u32 {s(M_FPR)}, s40, {flag_base(ST_PROJ, 0) + 64}')
    A(f's_lshl_b32 s40, {s(M_ME)}, 4')
    A('s_add_u32 s40, s40, s41')
    A(f's_add_u32 {s(M_FOUT)}, s40, {flag_base(ST_TEAM, 0)}')

    def purity(A):
        lp = A.newlabel('pur')
        dn = A.newlabel('purd')
        A(f's_mov_b32 {s(M_SPIN)}, 0')
        A.label(lp)
        A(f's_add_u32 {s(M_SPIN)}, {s(M_SPIN)}, 1')
        A(f's_cmp_gt_u32 {s(M_SPIN)}, {SPIN_LIMIT}')
        A(f's_cbranch_scc1 {end}')
        read_counts(A, 20, end)
        A(f's_cmp_eq_u32 {s(S_LAYER)}, 0')
        A('s_cselect_b32 s89, s80, s81')
        A(f's_mov_b32 {s(M_FAST)}, 1')
        A('s_cmp_ge_u32 s89, 32')
        A(f's_cbranch_scc1 {dn}')
        A(f's_mov_b32 {s(M_FAST)}, 0')
        A('s_cmp_lt_u32 s88, 256')
        A(f's_cbranch_scc1 {lp}')
        A.label(dn)

    team_role(A, end, flags=dict(poll_in=True, signal=True), force_slow=force_slow, purity=purity, tune=tune,
              stamp=stamp)
```

```python
import struct
from asmdsl import v, a, s
from layout import *

S_WG, S_WAVE = 2, 3
SRD_WS, SRD_A, SRD_B, SRD_C, SRD_D = 4, 8, 12, 16, 20
SPIN_LIMIT = 1 << 17


def f32bits(x):
    return struct.unpack('<I', struct.pack('<f', x))[0]


def srd(i):
    return s(i, 4)


def load_srds(A, items):
    for sreg, off, nb in items:
        A(f's_load_dwordx2 {s(sreg, 2)}, s[0:1], {off}')
    A('s_waitcnt lgkmcnt(0)')
    for sreg, off, nb in items:
        A(f's_mov_b32 {s(sreg + 2)}, {nb}')
        A(f's_mov_b32 {s(sreg + 3)}, 0x00020000')


def wave_setup(A):
    A('v_lshrrev_b32 v3, 6, v0')
    A('v_and_b32 v2, 63, v0')
    A(f'v_readfirstlane_b32 {s(S_WAVE)}, v3')
    A('v_lshlrev_b32 v1, 4, v2')


PROFILE = [False]
GSTAMP = [0]
TUNE = {}


def emit_signal(A, sflag, vone):
    if PROFILE[0]:
        A('s_memrealtime s[100:101]')
        A('s_waitcnt lgkmcnt(0)')
        A('s_or_b32 s100, s100, 1')
        A(f'v_mov_b32 {v(vone)}, s100')
    A('s_mov_b64 exec, 1')
    A(f'buffer_store_dword {v(vone)}, off, {srd(SRD_WS)}, {s(sflag)} sc1')
    A('s_mov_b64 exec, -1')


def emit_poll_issue(A, vdst, voff, sflag):
    A(f'buffer_load_dword {v(vdst)}, {v(voff)}, {srd(SRD_WS)}, {s(sflag)} offen sc1')


def emit_poll_check(A, vdst):
    A(f'v_cmp_ne_u32 vcc, 0, {v(vdst)}')
    A('s_cmp_eq_u64 vcc, exec')


def emit_poll_block(A, vdst, voff, sflag, scnt, fail_label, sleep=2, pend=None):
    top = A.newlabel('poll')
    done = A.newlabel('polld')
    A(f's_mov_b32 {s(scnt)}, 0')
    A.label(top)
    emit_poll_issue(A, vdst, voff, sflag)
    A('s_waitcnt vmcnt(0)')
    if pend:
        sp, sf, fstep, vone = pend
        ns = A.newlabel('pnos')
        A(f's_cmp_eq_u32 {s(sp)}, 0')
        A(f's_cbranch_scc1 {ns}')
        emit_signal(A, sf, vone)
        A(f's_add_u32 {s(sf)}, {s(sf)}, {fstep}')
        A(f's_mov_b32 {s(sp)}, 0')
        A.label(ns)
    emit_poll_check(A, vdst)
    A(f's_cbranch_scc1 {done}')
    A(f's_sleep {sleep}')
    A(f's_add_u32 {s(scnt)}, {s(scnt)}, 1')
    A(f's_cmp_lt_u32 {s(scnt)}, {SPIN_LIMIT}')
    A(f's_cbranch_scc1 {top}')
    A(f's_branch {fail_label}')
    A.label(done)


L_SYNC = 160 * 1024 - 256


def sync_setup(A, vaddr, vc1, lds=L_SYNC):
    A(f'v_mov_b32 {v(vaddr)}, {lds}')
    A(f'v_mov_b32 {v(vc1)}, 0')
    A(f'ds_write_b32 {v(vaddr)}, {v(vc1)}')
    A(f'ds_write_b32 {v(vaddr)}, {v(vc1)} offset:4')
    A(f'ds_write_b32 {v(vaddr)}, {v(vc1)} offset:8')
    A('s_waitcnt lgkmcnt(0)')
    A(f'v_mov_b32 {v(vc1)}, 1')
    A(f'v_mov_b32 {v(vaddr + 1)}, {lds}')


def emit_signal_agg(A, sflag, vone, vaddr, vc1, vtmp, stmp, drain=False):
    sk = A.newlabel('agg')
    A('s_mov_b64 exec, 1')
    A(f'ds_add_rtn_u32 {v(vtmp)}, {v(vaddr + 1)}, {v(vc1)}')
    A('s_waitcnt lgkmcnt(0)')
    A(f'v_readfirstlane_b32 {s(stmp)}, {v(vtmp)}')
    A('s_mov_b64 exec, -1')
    A(f'v_xor_b32 {v(vaddr + 1)}, 8, {v(vaddr + 1)}')
    A(f's_and_b32 {s(stmp)}, {s(stmp)}, 3')
    A(f's_cmp_lg_u32 {s(stmp)}, 3')
    A(f's_cbranch_scc1 {sk}')
    emit_signal(A, sflag, vone)
    if drain:
        j = A.newlabel('aggj')
        A('s_waitcnt vmcnt(1)')
        A(f's_branch {j}')
        A.label(sk)
        A('s_waitcnt vmcnt(0)')
        A.label(j)
    else:
        A.label(sk)


def emit_post_ready(A, sseq, vaddr, vtmp):
    sk = A.newlabel('post')
    A(f's_cmp_lg_u32 {s(S_WAVE)}, 0')
    A(f's_cbranch_scc1 {sk}')
    A(f'v_mov_b32 {v(vtmp)}, {s(sseq)}')
    A(f'ds_write_b32 {v(vaddr)}, {v(vtmp)} offset:4')
    A('s_waitcnt lgkmcnt(0)')
    A.label(sk)


def emit_wait_ready(A, vdst, voff, sflag, sseq, scnt, stmp, vaddr, fail_label, sleep=2):
    oth = A.newlabel('wro')
    done = A.newlabel('wrd')
    A(f's_cmp_lg_u32 {s(S_WAVE)}, 0')
    A(f's_cbranch_scc1 {oth}')
    emit_poll_block(A, vdst, voff, sflag, scnt, fail_label, sleep=sleep)
    A(f'v_mov_b32 {v(vdst)}, {s(sseq)}')
    A(f'ds_write_b32 {v(vaddr)}, {v(vdst)} offset:4')
    A('s_waitcnt lgkmcnt(0)')
    A(f's_branch {done}')
    A.label(oth)
    A(f's_mov_b32 {s(scnt)}, 0')
    lp = A.newlabel('wrl')
    A.label(lp)
    A(f'ds_read_b32 {v(vdst)}, {v(vaddr)} offset:4')
    A(f's_add_u32 {s(scnt)}, {s(scnt)}, 1')
    A(f's_cmp_gt_u32 {s(scnt)}, {SPIN_LIMIT * 16}')
    A(f's_cbranch_scc1 {fail_label}')
    A('s_waitcnt lgkmcnt(0)')
    A(f'v_readfirstlane_b32 {s(stmp)}, {v(vdst)}')
    A(f's_cmp_ge_u32 {s(stmp)}, {s(sseq)}')
    A(f's_cbranch_scc1 {done}')
    A('s_sleep 1')
    A(f's_branch {lp}')
    A.label(done)


G_W0, G_W1, G_IN, G_OUT, G_CNT, G_FIN, G_FOUT = 24, 25, 26, 27, 28, 29, 30
G_T0, G_T1, G_PREF, G_PEND, G_SPIN, G_M0 = 31, 32, 33, 34, 35, 36


def gemm_setup(A, NK, mode, wstride, srd0, srd1):
    vL16, vLane = 1, 2
    vT0, vT1, vT2 = 3, 4, 5
    vW, vTr, vRd, vOut, vOut2, vDma, vFl, vFv, vOne = 6, 7, 8, 9, 10, 11, 12, 13, 14
    D = 4
    R = D + 1
    FR = 16
    ACC = [40, 56]
    TMP = 72
    phi_cols = mode != 'v'
    A(f'v_lshrrev_b32 {v(vT0)}, 2, {v(vLane)}')
    A(f's_mov_b32 {s(G_T0)}, {wstride}')
    A(f'v_mul_lo_u32 {v(vW)}, {v(vT0)}, {s(G_T0)}')
    A(f'v_and_b32 {v(vT0)}, 3, {v(vLane)}')
    A(f'v_lshl_add_u32 {v(vW)}, {v(vT0)}, 4, {v(vW)}')
    A(f'v_bfe_u32 {v(vT1)}, {v(vLane)}, 2, 2')
    A(f'v_lshrrev_b32 {v(vT2)}, 5, {v(vLane)}')
    A(f'v_lshl_add_u32 {v(vT1)}, {v(vT2)}, 3, {v(vT1)}')
    A(f'v_lshlrev_b32 {v(vTr)}, 6, {v(vT1)}')
    A(f'v_bfe_u32 {v(vT1)}, {v(vLane)}, 4, 1')
    A(f'v_lshl_add_u32 {v(vTr)}, {v(vT1)}, 5, {v(vTr)}')
    if phi_cols:
        A(f'v_and_b32 {v(vT1)}, 1, {v(vLane)}')
        A(f'v_lshl_add_u32 {v(vTr)}, {v(vT1)}, 4, {v(vTr)}')
        A(f'v_bfe_u32 {v(vT1)}, {v(vLane)}, 1, 1')
        A(f'v_lshl_add_u32 {v(vTr)}, {v(vT1)}, 3, {v(vTr)}')
    else:
        A(f'v_lshl_add_u32 {v(vTr)}, {v(vT0)}, 3, {v(vTr)}')
    A(f's_lshl_b32 {s(G_T0)}, {s(S_WAVE)}, 15')
    A(f'v_add_u32 {v(vTr)}, {s(G_T0)}, {v(vTr)}')
    A(f'v_mov_b32 {v(vOne)}, 1')
    rounds = [list(range(c, min(c + 8, NK))) for c in range(0, NK, 8)]

    def issue_round(r):
        A(f's_lshl_b32 {s(G_M0)}, {s(S_WAVE)}, 15')
        A(f's_add_u32 m0, {s(G_M0)}, {(r & 1) * 16384}')
        first = True
        for c in rounds[r]:
            for t in (0, 1):
                if not first:
                    A('s_add_u32 m0, m0, 1024')
                first = False
                sw = G_W0 if t == 0 else G_W1
                A(f'buffer_load_dwordx4 {v(vW)}, {srd(srd0 if t == 0 else srd1)}, {s(sw)} offen lds')
                A(f's_add_u32 {s(sw)}, {s(sw)}, {16 * wstride}')

    def read_round(r):
        for ci, c in enumerate(rounds[r]):
            for t in (0, 1):
                base = (r & 1) * 16384 + (ci * 2 + t) * 1024
                ar = (t * 32 + c) * 4
                A(f'ds_read_b64_tr_b16 {a(ar, 2)}, {v(vTr)} offset:{base}')
                A(f'ds_read_b64_tr_b16 {a(ar + 2, 2)}, {v(vTr)} offset:{base + 256}')
        A('s_waitcnt lgkmcnt(0)')

    nr = len(rounds)
    issue_round(0)
    if nr > 1:
        issue_round(1)
    for r in range(nr):
        nxt = 2 * len(rounds[r + 1]) if r + 1 < nr else 0
        A(f's_waitcnt vmcnt({nxt})')
        read_round(r)
        if r + 2 < nr:
            issue_round(r + 2)
    if mode == 'v':
        A(f'v_and_b32 {v(vT0)}, 0x33, {v(vLane)}')
        A(f'v_bfe_u32 {v(vT1)}, {v(vLane)}, 2, 1')
        A(f'v_lshl_or_b32 {v(vT0)}, {v(vT1)}, 3, {v(vT0)}')
        A(f'v_bfe_u32 {v(vT1)}, {v(vLane)}, 3, 1')
        A(f'v_lshl_or_b32 {v(vT0)}, {v(vT1)}, 2, {v(vT0)}')
        A(f'v_lshlrev_b32 {v(vRd)}, 4, {v(vT0)}')
        A(f'v_and_b32 {v(vT0)}, 31, {v(vLane)}')
        A(f'v_lshlrev_b32 {v(vOut)}, 4, {v(vT0)}')
        A(f'v_lshrrev_b32 {v(vT1)}, 5, {v(vLane)}')
        A(f'v_lshl_add_u32 {v(vOut)}, {v(vT1)}, 11, {v(vOut)}')
        A(f'v_add_u32 {v(vOut2)}, 4096, {v(vOut)}')
    else:
        A(f'v_mov_b32 {v(vRd)}, {v(vL16)}')
        if mode == 'part':
            A(f'v_bfe_u32 {v(vT0)}, {v(vLane)}, 2, 3')
            A(f'v_lshlrev_b32 {v(vOut)}, 12, {v(vT0)}')
            A(f'v_lshrrev_b32 {v(vT1)}, 5, {v(vLane)}')
            A(f'v_lshl_add_u32 {v(vOut)}, {v(vT1)}, 6, {v(vOut)}')
            A(f'v_and_b32 {v(vT0)}, 3, {v(vLane)}')
            A(f'v_lshl_add_u32 {v(vOut)}, {v(vT0)}, 4, {v(vOut)}')
        else:
            A(f'v_mov_b32 {v(vOut)}, {v(vL16)}')
    if mode == 'gu':
        c0 = -2.0 * 0.7978845608028654 * 1.4426950408889634
        A(f's_mov_b32 s40, {f32bits(c0 * 0.044715):#x}')
        A(f'v_mov_b32 {v(vT2)}, {f32bits(c0):#x}')


OOB = 0x7ff00000


def gemm_loop(A, NK, mode, in_step, out_step, fail, flags=None, sc1=True):
    vL16, vLane = 1, 2
    vT0, vT1, vT2 = 3, 4, 5
    vW, vTr, vRd, vOut, vOut2, vDma, vFl, vFv, vOne = 6, 7, 8, 9, 10, 11, 12, 13, 14
    D = 4
    R = D + 1
    FR = 16
    ACC = [40, 56]
    TMP = 72
    SC = ' sc1' if sc1 else ''
    G_SRC, G_SEQ = 37, 38
    vSy, vC1, vSt = 36, 38, 39
    per_wave = NK // 4
    assert NK % 4 == 0
    A(f's_lshl_b32 {s(G_T0)}, {s(S_WAVE)}, 10')
    A(f'v_add_u32 {v(vDma)}, {s(G_T0)}, {v(vL16)}')
    A(f's_mov_b32 {s(G_M0)}, {s(G_T0)}')
    vFl2 = 15
    if flags:
        A(f'v_min_u32 {v(vFl)}, {flags["n"] - 1}, {v(vLane)}')
        A(f'v_lshlrev_b32 {v(vFl)}, 2, {v(vFl)}')

    def dma_piece(j):
        if j == 0:
            A(f's_mov_b32 m0, {s(G_M0)}')
        else:
            A('s_add_u32 m0, m0, 4096')
            A(f's_add_u32 {s(G_SRC)}, {s(G_SRC)}, 4096')
        A(f'buffer_load_dwordx4 {v(vDma)}, {srd(SRD_WS)}, {s(G_SRC)} offen{SC} lds')

    def advance():
        A(f's_add_u32 {s(G_IN)}, {s(G_IN)}, {in_step}')
        A(f's_xor_b32 {s(G_M0)}, {s(G_M0)}, 32768')
        if poll_in:
            A(f's_add_u32 {s(G_FIN)}, {s(G_FIN)}, {flags["fin_step"]}')
            A(f's_add_u32 {s(G_SEQ)}, {s(G_SEQ)}, 1')

    HP = PROFILE[0] and flags

    def hstamp(i):
        if HP:
            A(f's_memrealtime {s(60 + 2 * i, 2)}')

    def hflush():
        if HP:
            sk = A.newlabel('hs')
            A('s_waitcnt lgkmcnt(0)')
            A(f's_cmp_lg_u32 {s(S_WAVE)}, 0')
            A(f's_cbranch_scc1 {sk}')
            A(f's_and_b32 s66, {s(G_FOUT)}, 0xff')
            A(f's_andn2_b32 s67, {s(G_FOUT)}, 0xff')
            A('s_mul_i32 s66, s66, 3')
            A('s_add_u32 s66, s66, s67')
            A('s_add_u32 s66, s66, 256')
            A('s_mov_b64 exec, 1')
            for i in range(3):
                A(f'v_mov_b32 {v(vSt)}, {s(60 + 2 * i)}')
                A(f'buffer_store_dword {v(vSt)}, off, {srd(SRD_WS)}, s66 offset:{4 * i}')
            A('s_mov_b64 exec, -1')
            A.label(sk)

    def signal(drain=False):
        emit_signal_agg(A, G_FOUT, vOne, vSy, vC1, vSt, G_T0, drain)
        A(f's_add_u32 {s(G_FOUT)}, {s(G_FOUT)}, {flags["fout_step"]}')
        A(f's_mov_b32 {s(G_PEND)}, 0')

    def issue_dma():
        hstamp(0)
        A(f's_mov_b32 {s(G_SRC)}, {s(G_IN)}')
        for j in range(per_wave):
            dma_piece(j)
        advance()

    NST = 2
    poll_in = bool(flags and flags.get('poll_in', True))
    A(f'v_and_b32 {v(vRd)}, 0x7fff, {v(vRd)}')
    if flags:
        sync_setup(A, vSy, vC1)
        A(f's_mov_b32 {s(G_SEQ)}, 1')
    A('s_barrier')
    if poll_in:
        emit_wait_ready(A, vFv, vFl, G_FIN, G_SEQ, G_SPIN, G_T0, vSy, fail, sleep=8)
    issue_dma()
    A(f's_mov_b32 {s(G_PEND)}, 0')
    A('s_waitcnt vmcnt(0)')
    top = A.newlabel('gtop')
    A.label(top)
    GS = GSTAMP[0]
    if GS:
        A('s_mov_b64 s[72:73], s[60:61]')
        A('s_mov_b64 s[74:75], s[70:71]')
        A('s_memtime s[60:61]')
        A('s_memrealtime s[70:71]')
    A(f's_waitcnt vmcnt({NST})')
    if GS:
        A('s_memtime s[62:63]')
    A('s_barrier')
    if GS:
        A('s_memtime s[64:65]')
    hstamp(1)

    NS = 2 * NK
    D2, R2 = 7, 8
    FR2 = 96

    def rd(n):
        A(f'ds_read_b128 {v(FR2 + (n % R2) * 4, 4)}, {v(vRd)} offset:{(n % NK) * 1024}')

    for n in range(D2):
        rd(n)
    A(f's_sub_u32 {s(G_CNT)}, {s(G_CNT)}, 1')
    ev = {}

    def at(n, fn):
        ev.setdefault(n, []).append(fn)

    nvm = [0]

    def piece():
        A(f'buffer_load_dwordx4 {v(vDma)}, {srd(SRD_WS)}, {s(G_SRC)} offen{SC} lds')
        A('s_add_u32 m0, m0, 4096')
        A(f's_add_u32 {s(G_SRC)}, {s(G_SRC)}, 4096')
        nvm[0] += 1

    def poll():
        emit_poll_issue(A, vFv, vFl, G_FIN)
        nvm[0] += 1

    def evaluate():
        A(f'v_cmp_ne_u32 vcc, 0, {v(vFv)}')
        A('s_cmp_eq_u64 vcc, exec')
        A(f's_cselect_b32 {s(G_T0)}, {s(G_PREF)}, 1')
        A(f's_cmp_eq_u32 {s(G_T0)}, 0')
        A(f's_cselect_b32 {s(G_SRC)}, {s(G_IN)}, {OOB}')
        A(f's_cselect_b32 m0, {s(G_M0)}, 65536')
        A(f's_cselect_b32 {s(G_PREF)}, 1, {s(G_PREF)}')

    def sig1():
        A(f's_waitcnt vmcnt({nvm[0]})')
        A(f'v_mov_b32 {v(vC1)}, {s(G_PEND)}')
        A('s_mov_b64 exec, 1')
        A(f'ds_add_rtn_u32 {v(vSt)}, {v(vSy + 1)}, {v(vC1)}')
        A('s_mov_b64 exec, -1')

    def sig2():
        A(f'v_readfirstlane_b32 {s(G_T0)}, {v(vSt)}')
        A(f's_lshl_b32 {s(G_T1)}, {s(G_PEND)}, 3')
        A(f'v_xor_b32 {v(vSy + 1)}, {s(G_T1)}, {v(vSy + 1)}')
        A(f'v_mov_b32 {v(vC1)}, 1')
        A(f's_and_b32 {s(G_T0)}, {s(G_T0)}, 3')
        A(f's_add_u32 {s(G_T0)}, {s(G_T0)}, {s(G_PEND)}')
        A(f's_cmp_eq_u32 {s(G_T0)}, 4')
        A(f's_cselect_b32 {s(G_T0)}, {s(G_FOUT)}, {OOB}')
        emit_signal(A, G_T0, vOne)
        nvm[0] += 1
        A(f's_mul_i32 {s(G_T1)}, {s(G_PEND)}, {flags["fout_step"]}')
        A(f's_add_u32 {s(G_FOUT)}, {s(G_FOUT)}, {s(G_T1)}')
        A(f's_mov_b32 {s(G_PEND)}, 0')

    if not poll_in:
        A(f's_cmp_eq_u32 {s(G_CNT)}, 0')
        A(f's_cselect_b32 {s(G_SRC)}, {OOB}, {s(G_IN)}')
        A(f's_mov_b32 m0, {s(G_M0)}')
        for j in range(per_wave):
            at(2 + 3 * j, piece)
    else:
        A(f'v_mov_b32 {v(vFv)}, 0')
        poll()
        A(f's_cmp_eq_u32 {s(G_CNT)}, 0')
        A(f's_cselect_b32 {s(G_PREF)}, 2, 0')
        e1, e2 = TUNE.get('e1', 12), NS - 2 * per_wave - 6
        at(e1, evaluate)
        for j in range(per_wave):
            at(e1 + 1 + 2 * j, piece)
        at(e1 + 2, poll)
        at(e2 - 14, poll)
        at(e2, evaluate)
        for j in range(per_wave):
            at(e2 + 1 + 2 * j, piece)
        at(e2 + 2, poll)
        at(NS - 6, poll)
    if flags:
        sn = TUNE.get('sn', NK - 4)
        at(sn, sig1)
        at(sn + D2 + 1, sig2)

    def store(t, f, d):
        if mode == 'qk':
            return (f'buffer_store_dwordx4 {v(d, 4)}, {v(vOut)}, {srd(SRD_WS)}, {s(G_OUT)} offen '
                    f'offset:{(t * 2 + f) * 1024}{SC}')
        if mode == 'part':
            return (f'buffer_store_dwordx4 {v(d, 4)}, {v(vOut)}, {srd(SRD_WS)}, {s(G_OUT)} offen '
                    f'offset:{(t * 2 + f) * 128}{SC}')
        return (f'buffer_store_dwordx4 {v(d, 4)}, {v(vOut if f == 0 else vOut2)}, {srd(SRD_WS)}, '
                f'{s(G_OUT)} offen offset:{t * 512}{SC}')

    def cvt_tile(t):
        out = []
        for f in (0, 1):
            d = TMP + (t * 2 + f) * 4
            for j in range(4):
                r0 = ACC[t] + f * 8 + 2 * j
                out.append(f'v_cvt_pk_bf16_f32 {v(d + j)}, {v(r0)}, {v(r0 + 1)}')
            out.append(store(t, f, d))
        return out

    if mode == 'gu':
        G, U, T1 = ACC[0], ACC[1], TMP
        early = []
        for q in range(4):
            idx = range(q * 4, q * 4 + 4)
            early += [f'v_mul_f32 {v(T1 + i)}, {v(G + i)}, {v(G + i)}' for i in idx]
            early += [f'v_fma_f32 {v(T1 + i)}, {v(T1 + i)}, s40, {v(vT2)}' for i in idx]
            early += [f'v_mul_f32 {v(T1 + i)}, {v(T1 + i)}, {v(G + i)}' for i in idx]
            early += [f'v_exp_f32 {v(T1 + i)}, {v(T1 + i)}' for i in idx]
            early += [f'v_add_f32 {v(T1 + i)}, 1.0, {v(T1 + i)}' for i in idx]
            early += [f'v_rcp_f32 {v(T1 + i)}, {v(T1 + i)}' for i in idx]
            early += [f'v_mul_f32 {v(T1 + i)}, {v(T1 + i)}, {v(G + i)}' for i in idx]
        per = 4
    else:
        early = cvt_tile(0)
        per = 2
    for n in range(NS):
        t, c = divmod(n, NK)
        if n + D2 < NS:
            rd(n + D2)
        A(f's_waitcnt lgkmcnt({min(D2, NS - 1 - n)})')
        f = v(FR2 + (n % R2) * 4, 4)
        w = a((t * 32 + c) * 4, 4)
        cin = '0' if c == 0 else v(ACC[t], 16)
        if mode == 'v':
            A(f'v_mfma_f32_32x32x16_bf16 {v(ACC[t], 16)}, {f}, {w}, {cin}')
        else:
            A(f'v_mfma_f32_32x32x16_bf16 {v(ACC[t], 16)}, {w}, {f}, {cin}')
        if n >= NK + 3:
            for _ in range(per):
                if early:
                    x = early.pop(0)
                    A(x)
                    if x.startswith('buffer_store'):
                        nvm[0] += 1
        for fn in ev.get(n, []):
            fn()
    assert not early
    A(f'v_xor_b32 {v(vRd)}, 32768, {v(vRd)}')
    if GS:
        A('s_memtime s[66:67]')
    if mode == 'gu':
        for f in (0, 1):
            for i in range(f * 8, f * 8 + 8):
                A(f'v_mul_f32 {v(T1 + i)}, {v(T1 + i)}, {v(U + i)}')
            d = TMP + 16 + f * 4
            for j in range(4):
                A(f'v_cvt_pk_bf16_f32 {v(d + j)}, {v(T1 + f * 8 + 2 * j)}, {v(T1 + f * 8 + 2 * j + 1)}')
            A(f'buffer_store_dwordx4 {v(d, 4)}, {v(vOut)}, {srd(SRD_WS)}, {s(G_OUT)} offen '
              f'offset:{f * 1024}{SC}')
    else:
        for x in cvt_tile(1):
            A(x)
    if GS:
        A('s_memtime s[68:69]')
        sk = A.newlabel('gsk')
        A('s_waitcnt lgkmcnt(0)')
        A(f's_cmp_lg_u32 {s(G_CNT)}, {GS}')
        A(f's_cbranch_scc1 {sk}')
        A('s_lshl_b32 s76, s2, 2')
        A('s_add_u32 s76, s76, s3')
        A('s_lshl_b32 s76, s76, 6')
        A(f's_add_u32 s76, s76, {TCTL + 65536}')
        A('s_mov_b64 exec, 1')
        for i, r in enumerate((60, 62, 64, 66, 68, 70, 72, 74)):
            A(f'v_mov_b32 {v(vT0)}, s{r}')
            A(f'buffer_store_dword {v(vT0)}, off, {srd(SRD_WS)}, s76 offset:{4 * i}')
        A('s_mov_b64 exec, -1')
        A('s_waitcnt vmcnt(0)')
        A.label(sk)
    hstamp(2)
    hflush()
    A(f's_add_u32 {s(G_OUT)}, {s(G_OUT)}, {out_step}')
    if flags:
        A(f's_mov_b32 {s(G_PEND)}, 1')
    last = A.newlabel('glast')
    A(f's_cmp_eq_u32 {s(G_CNT)}, 0')
    A(f's_cbranch_scc1 {last}')
    if poll_in:
        blk = A.newlabel('gblk')
        A(f's_cmp_eq_u32 {s(G_PREF)}, 0')
        A(f's_cbranch_scc1 {blk}')
        emit_post_ready(A, G_SEQ, vSy, vSt)
        advance()
        A(f's_branch {top}')
        A.label(blk)
        blk2 = A.newlabel('gblk2')
        A(f's_waitcnt vmcnt({NST})')
        emit_poll_check(A, vFv)
        A(f's_cbranch_scc0 {blk2}')
        emit_post_ready(A, G_SEQ, vSy, vSt)
        issue_dma()
        A(f's_waitcnt vmcnt({per_wave})')
        signal(drain=True)
        A(f's_branch {top}')
        A.label(blk2)
        A('s_waitcnt vmcnt(0)')
        signal()
        emit_wait_ready(A, vFv, vFl, G_FIN, G_SEQ, G_SPIN, G_T0, vSy, fail, sleep=2)
        issue_dma()
        A('s_waitcnt vmcnt(0)')
    else:
        advance()
    A(f's_branch {top}')
    A.label(last)
    if flags:
        A('s_waitcnt vmcnt(0)')
        signal()


def gemm_role(A, NK, mode, wstride, srd0, srd1, in_step, out_step, end_label, flags=None, sc1=True):
    gemm_setup(A, NK, mode, wstride, srd0, srd1)
    gemm_loop(A, NK, mode, in_step, out_step, end_label, flags, sc1)
    A(f's_branch {end_label}')


PSEG = 32768


def rl_role(A, KBN, srd_xin, srd_xout, do_ln, steps, end_label, flags=None, sc1=True, xin_sc1=True,
            xout_sc1=True):
    R_P, R_XI, R_XO, R_XN, R_CNT, R_FIN, R_FOUT, R_T0, R_PREF, R_PEND, R_SPIN = \
        24, 25, 26, 27, 28, 29, 30, 31, 33, 34, 35
    vLane = 2
    vT0, vT1, vT2 = 3, 4, 5
    vP, vX, vN, vLw, vLr, vFl, vFv, vOne = 6, 7, 8, 9, 10, 11, 12, 13
    XF = 16
    PK = 24
    PN = 28
    ST = 32
    AC = 44
    UP = 52
    SETS = [60, 60 + 4 + 4 * KBN]
    vSy, vC1, vSt = 14, 4, 5
    R_SEQ = 36
    SC = ' sc1' if sc1 else ''
    A(f'v_and_b32 {v(vT0)}, 3, v0')
    A(f'v_lshrrev_b32 {v(vT1)}, 2, v0')
    A(f'v_lshlrev_b32 {v(vP)}, 4, v0')
    A(f'v_lshlrev_b32 {v(vX)}, 10, {v(vT0)}')
    A(f'v_lshl_add_u32 {v(vX)}, {v(vT1)}, 4, {v(vX)}')
    A(f'v_lshlrev_b32 {v(vN)}, 9, {v(vT1)}')
    A(f'v_lshl_add_u32 {v(vN)}, {v(vT0)}, 4, {v(vN)}')
    A(f'v_lshlrev_b32 {v(vLr)}, 4, {v(vT0)}')
    A(f's_lshl_b32 {s(R_T0)}, {s(S_WAVE)}, 2')
    A(f'v_add_u32 {v(vLw)}, {s(R_T0)}, {v(vLr)}')
    A(f'v_mov_b32 {v(vOne)}, 1')
    A(f's_mov_b32 s40, 0xffff0000')
    poll_in = bool(flags and flags.get('poll_in', True))
    sig = bool(flags and flags.get('signal', True))
    if flags:
        A(f'v_min_u32 {v(vFl)}, {flags["n"] - 1}, {v(vLane)}')
        A(f'v_lshlrev_b32 {v(vFl)}, 2, {v(vFl)}')
    if flags:
        sync_setup(A, vSy, vC1)
        A(f's_mov_b32 {s(R_SEQ)}, 1')
        A('s_barrier')

    def signal():
        emit_signal_agg(A, R_FOUT, vOne, vSy, vC1, vSt, R_T0)
        A(f's_add_u32 {s(R_FOUT)}, {s(R_FOUT)}, {flags["fout_step"]}')
        A(f's_mov_b32 {s(R_PEND)}, 0')

    def loads(S):
        A(f'buffer_load_dwordx4 {v(S, 4)}, {v(vX)}, {srd(srd_xin)}, {s(R_XI)} offen{" sc1" if xin_sc1 else ""}')
        A(f's_mov_b32 {s(R_T0)}, {s(R_P)}')
        for kb in range(KBN):
            A(f'buffer_load_dwordx4 {v(S + 4 + kb * 4, 4)}, {v(vP)}, {srd(SRD_WS)}, {s(R_T0)} offen{SC}')
            if kb + 1 < KBN:
                A(f's_add_u32 {s(R_T0)}, {s(R_T0)}, {NSEG * PSEG}')
        A(f's_add_u32 {s(R_P)}, {s(R_P)}, {steps["p"]}')
        A(f's_add_u32 {s(R_XI)}, {s(R_XI)}, {steps["x"]}')
        if poll_in:
            A(f's_add_u32 {s(R_FIN)}, {s(R_FIN)}, {flags["fin_step"]}')
            A(f's_add_u32 {s(R_SEQ)}, {s(R_SEQ)}, 1')

    def unpack(dst, src):
        for j in range(4):
            A(f'v_lshlrev_b32 {v(dst + 2 * j)}, 16, {v(src + j)}')
            A(f'v_and_b32 {v(dst + 2 * j + 1)}, s40, {v(src + j)}')

    def pack(dst, src):
        for j in range(4):
            A(f'v_cvt_pk_bf16_f32 {v(dst + j)}, {v(src + 2 * j)}, {v(src + 2 * j + 1)}')

    def row_reduce(r, ldsoff):
        t = ST + 7
        A(f'v_add_f32_dpp {v(r)}, {v(r)}, {v(r)} row_ror:4 row_mask:0xf bank_mask:0xf')
        A(f'v_add_f32_dpp {v(r)}, {v(r)}, {v(r)} row_ror:8 row_mask:0xf bank_mask:0xf')
        A(f'v_mov_b32 {v(t)}, {v(r)}')
        A(f'v_permlane16_swap_b32 {v(r)}, {v(t)}')
        A(f'v_add_f32 {v(r)}, {v(r)}, {v(t)}')
        A(f'v_mov_b32 {v(t)}, {v(r)}')
        A(f'v_permlane32_swap_b32 {v(r)}, {v(t)}')
        A(f'v_add_f32 {v(r)}, {v(r)}, {v(t)}')
        A(f'ds_write_b32 {v(vLw)}, {v(r)} offset:{ldsoff}')
        A('s_waitcnt lgkmcnt(0)')
        A('s_barrier')
        A(f'ds_read_b128 {v(ST + 8, 4)}, {v(vLr)} offset:{ldsoff}')
        A('s_waitcnt lgkmcnt(0)')
        A(f'v_add_f32 {v(ST + 8)}, {v(ST + 8)}, {v(ST + 9)}')
        A(f'v_add_f32 {v(ST + 10)}, {v(ST + 10)}, {v(ST + 11)}')
        A(f'v_add_f32 {v(r)}, {v(ST + 8)}, {v(ST + 10)}')

    def round_bf16(r):
        A(f'v_cvt_pk_bf16_f32 {v(r)}, {v(r)}, {v(r)}')
        A(f'v_lshlrev_b32 {v(r)}, 16, {v(r)}')

    def compute(S):
        unpack(XF, S)
        if KBN:
            unpack(AC, S + 4)
            for kb in range(1, KBN):
                unpack(UP, S + 4 + kb * 4)
                for j in range(8):
                    A(f'v_add_f32 {v(AC + j)}, {v(AC + j)}, {v(UP + j)}')
            pack(PK, AC)
            unpack(AC, PK)
            for j in range(8):
                A(f'v_add_f32 {v(XF + j)}, {v(XF + j)}, {v(AC + j)}')
            pack(PK, XF)
            A(f'buffer_store_dwordx4 {v(PK, 4)}, {v(vX)}, {srd(srd_xout)}, {s(R_XO)} offen'
              f'{" sc1" if xout_sc1 else ""}')
            if do_ln:
                unpack(XF, PK)
        if do_ln:
            m, q = ST, ST + 1
            A(f'v_add_f32 {v(m)}, {v(XF)}, {v(XF + 1)}')
            A(f'v_add_f32 {v(q)}, {v(XF + 2)}, {v(XF + 3)}')
            A(f'v_add_f32 {v(ST + 2)}, {v(XF + 4)}, {v(XF + 5)}')
            A(f'v_add_f32 {v(ST + 3)}, {v(XF + 6)}, {v(XF + 7)}')
            A(f'v_add_f32 {v(m)}, {v(m)}, {v(q)}')
            A(f'v_add_f32 {v(ST + 2)}, {v(ST + 2)}, {v(ST + 3)}')
            A(f'v_add_f32 {v(m)}, {v(m)}, {v(ST + 2)}')
            row_reduce(m, 0)
            A(f'v_mul_f32 {v(m)}, {f32bits(1.0 / 512):#x}, {v(m)}')
            for j in range(8):
                A(f'v_sub_f32 {v(AC + j)}, {v(XF + j)}, {v(m)}')
            A(f'v_mul_f32 {v(q)}, {v(AC)}, {v(AC)}')
            for j in range(1, 8):
                A(f'v_fmac_f32 {v(q)}, {v(AC + j)}, {v(AC + j)}')
            row_reduce(q, 64)
            A(f'v_mul_f32 {v(q)}, {f32bits(1.0 / 512):#x}, {v(q)}')
            round_bf16(q)
            A(f'v_add_f32 {v(q)}, {f32bits(1e-5):#x}, {v(q)}')
            round_bf16(q)
            A(f'v_sqrt_f32 {v(q)}, {v(q)}')
            round_bf16(q)
            A(f'v_rcp_f32 {v(q)}, {v(q)}')
            round_bf16(m)
            for j in range(8):
                A(f'v_sub_f32 {v(AC + j)}, {v(XF + j)}, {v(m)}')
            pack(PN, AC)
            unpack(AC, PN)
            for j in range(8):
                A(f'v_mul_f32 {v(AC + j)}, {v(AC + j)}, {v(q)}')
            pack(PN, AC)
            A(f'buffer_store_dwordx4 {v(PN, 4)}, {v(vN)}, {srd(SRD_WS)}, {s(R_XN)} offen{SC}')
        A(f's_add_u32 {s(R_XO)}, {s(R_XO)}, {steps["x"]}')
        A(f's_add_u32 {s(R_XN)}, {s(R_XN)}, {steps["xn"]}')

    if flags and flags.get('pair'):
        top = A.newlabel('rlptop')
        A.label(top)
        emit_wait_ready(A, vFv, vFl, R_FIN, R_SEQ, R_SPIN, R_T0, vSy, end_label, sleep=3)
        st2 = dict(steps)
        steps.update(p=4096, x=4096, xn=64)
        fs = flags['fin_step']
        flags['fin_step'] = 0
        loads(SETS[0])
        steps.update(p=st2['p'] - 4096, x=st2['x'] - 4096)
        flags['fin_step'] = fs
        loads(SETS[1])
        steps.update(p=4096, x=4096, xn=64)
        A(f's_waitcnt vmcnt({KBN + 1})')
        compute(SETS[0])
        steps.update(x=st2['x'] - 4096, xn=st2['xn'] - 64)
        A(f's_waitcnt vmcnt({2 if do_ln else 1})')
        compute(SETS[1])
        steps.update(st2)
        if sig:
            A('s_waitcnt vmcnt(0)')
            signal()
        A(f's_sub_u32 {s(R_CNT)}, {s(R_CNT)}, 1')
        A(f's_cmp_lg_u32 {s(R_CNT)}, 0')
        A(f's_cbranch_scc1 {top}')
        A(f's_branch {end_label}')
        return
    A(f's_mov_b32 {s(R_PEND)}, 0')
    if poll_in:
        emit_wait_ready(A, vFv, vFl, R_FIN, R_SEQ, R_SPIN, R_T0, vSy, end_label, sleep=8)
    loads(SETS[0])
    top = A.newlabel('rltop')
    last = A.newlabel('rllast')
    A.label(top)
    for u in (0, 1):
        S, O = SETS[u], SETS[1 - u]
        A(f's_sub_u32 {s(R_CNT)}, {s(R_CNT)}, 1')
        if poll_in:
            emit_poll_issue(A, vFv, vFl, R_FIN)
        A('s_waitcnt vmcnt(0)')
        if sig:
            ns = A.newlabel('rlns')
            A(f's_cmp_eq_u32 {s(R_PEND)}, 0')
            A(f's_cbranch_scc1 {ns}')
            signal()
            A.label(ns)
        nopf = A.newlabel('rlnopf')
        A(f's_mov_b32 {s(R_PREF)}, 0')
        A(f's_cmp_eq_u32 {s(R_CNT)}, 0')
        A(f's_cbranch_scc1 {nopf}')
        if poll_in:
            emit_poll_check(A, vFv)
            A(f's_cbranch_scc0 {nopf}')
            emit_post_ready(A, R_SEQ, vSy, vSt)
        loads(O)
        A(f's_mov_b32 {s(R_PREF)}, 1')
        A.label(nopf)
        compute(S)
        A(f's_mov_b32 {s(R_PEND)}, 1')
        A(f's_cmp_eq_u32 {s(R_CNT)}, 0')
        A(f's_cbranch_scc1 {last}')
        if poll_in:
            nx = A.newlabel('rlnx')
            A(f's_cmp_eq_u32 {s(R_PREF)}, 1')
            A(f's_cbranch_scc1 {nx}')
            if sig:
                A('s_waitcnt vmcnt(0)')
                signal()
            emit_wait_ready(A, vFv, vFl, R_FIN, R_SEQ, R_SPIN, R_T0, vSy, end_label, sleep=2)
            loads(O)
            A.label(nx)
    A(f's_branch {top}')
    A.label(last)
    if sig:
        A('s_waitcnt vmcnt(0)')
        signal()
    A(f's_branch {end_label}')


def att_role(A, segstep, end_label, flags=None, sc1=True):
    T_Q, T_K, T_V, T_KM, T_CNT, T_FIN, T_FOUT, T_VM, T_O, T_FPR, T_T0, T_SPIN = \
        24, 25, 26, 27, 28, 29, 30, 31, 32, 33, 34, 35
    vL16, vLane = 1, 2
    vT0, vT1, vT2 = 3, 4, 5
    vK, vKM, vV, vVM, vFl, vFv, vOne, vFp = 6, 7, 8, 9, 10, 11, 12, 13
    BIAS = 16
    QF, KF, KMF, VF, VMF = 32, 64, 96, 128, 160
    SX, SM = 176, 192
    PB = 208
    OA = 32
    OP = 220
    SC = ' sc1' if sc1 else ''
    scale_log2e = (128 ** -0.5) * 1.4426950408889634
    A(f'v_and_b32 {v(vT0)}, 0x13, {v(vLane)}')
    A(f'v_bfe_u32 {v(vT1)}, {v(vLane)}, 2, 1')
    A(f'v_lshl_or_b32 {v(vT0)}, {v(vT1)}, 3, {v(vT0)}')
    A(f'v_bfe_u32 {v(vT1)}, {v(vLane)}, 3, 1')
    A(f'v_lshl_or_b32 {v(vT0)}, {v(vT1)}, 2, {v(vT0)}')
    A(f'v_lshrrev_b32 {v(vT1)}, 5, {v(vLane)}')
    A(f'v_lshlrev_b32 {v(vK)}, 4, {v(vT0)}')
    A(f'v_lshl_add_u32 {v(vK)}, {v(vT1)}, 9, {v(vK)}')
    A(f'v_lshlrev_b32 {v(vV)}, 4, {v(vT0)}')
    A(f'v_lshl_add_u32 {v(vV)}, {v(vT1)}, 11, {v(vV)}')
    A(f'v_lshlrev_b32 {v(vVM)}, 3, {v(vT0)}')
    A(f'v_lshl_add_u32 {v(vVM)}, {v(vT1)}, 10, {v(vVM)}')
    A(f'v_and_b32 {v(vT2)}, 7, {v(vLane)}')
    A(f'v_lshlrev_b32 {v(vKM)}, 4, {v(vT2)}')
    A(f'v_lshl_add_u32 {v(vKM)}, {v(vT1)}, 7, {v(vKM)}')
    A(f'v_and_b32 {v(vT2)}, 31, {v(vLane)}')
    A(f'v_lshlrev_b32 {v(vT1)}, 3, {v(vT1)}')
    A(f'v_sub_u32 {v(vT2)}, {v(vT2)}, {v(vT1)}')
    A(f'v_mov_b32 {v(vT0)}, {f32bits(-1e30):#x}')
    for i in range(16):
        A(f'v_cmp_gt_i32 vcc, {16 * (i >> 3) + (i & 7)}, {v(vT2)}')
        A(f'v_cndmask_b32 {v(BIAS + i)}, 0, {v(vT0)}, vcc')
    for T in range(4):
        A(f'v_mov_b32 {v(VMF + T * 4 + 2)}, 0')
        A(f'v_mov_b32 {v(VMF + T * 4 + 3)}, 0')
    A(f'v_mov_b32 {v(PB + 10)}, 0')
    A(f'v_mov_b32 {v(PB + 11)}, 0')
    A(f'v_mov_b32 {v(vOne)}, 1')
    A(f's_mov_b32 s40, {f32bits(scale_log2e):#x}')
    if flags:
        A(f'v_min_u32 {v(vFl)}, {flags["n"] - 1}, {v(vLane)}')
        A(f'v_lshlrev_b32 {v(vFl)}, 2, {v(vFl)}')
        if True:
            A(f'v_min_u32 {v(vT0)}, 2, {v(vLane)}')
            A(f'v_lshlrev_b32 {v(vFp)}, 6, {v(vT0)}')
    T_PEND = 36
    A(f's_mov_b32 {s(T_PEND)}, 0')
    top = A.newlabel('atop')
    A.label(top)
    if flags:
        emit_poll_block(A, vFv, vFp, T_FPR, T_SPIN, end_label, sleep=8,
                        pend=(T_PEND, T_FOUT, 1024 * segstep, vOne))
        A(f's_add_u32 {s(T_FPR)}, {s(T_FPR)}, {1024 * segstep}')

    def ld8(dst, voff, soff):
        A(f's_add_u32 {s(T_T0)}, {s(soff)}, 4096')
        for c in range(8):
            so = soff if c < 4 else T_T0
            A(f'buffer_load_dwordx4 {v(dst + c * 4, 4)}, {v(voff)}, {srd(SRD_WS)}, {s(so)} offen '
              f'offset:{(c & 3) * 1024}{SC}')

    ld8(KF, vK, T_K)
    ld8(QF, vL16, T_Q)
    A(f's_add_u32 {s(T_T0)}, {s(T_V)}, 4096')
    for T in range(4):
        for f in (0, 1):
            so = T_V if f == 0 else T_T0
            A(f'buffer_load_dwordx4 {v(VF + (T * 2 + f) * 4, 4)}, {v(vV)}, {srd(SRD_WS)}, {s(so)} offen '
              f'offset:{T * 512}{SC}')
    for c in range(8):
        A(f's_waitcnt vmcnt({8 + 7 - c})')
        cin = '0' if c == 0 else v(SX, 16)
        A(f'v_mfma_f32_32x32x16_bf16 {v(SX, 16)}, {v(KF + c * 4, 4)}, {v(QF + c * 4, 4)}, {cin}')
    if flags:
        emit_poll_block(A, vFv, vFl, T_FIN, T_SPIN, end_label, sleep=3)
        A(f's_add_u32 {s(T_FIN)}, {s(T_FIN)}, {1024 * segstep}')
    for c in range(8):
        A(f'buffer_load_dwordx4 {v(KMF + c * 4, 4)}, {v(vKM)}, {srd(SRD_WS)}, {s(T_KM)} offen '
          f'offset:{c * 256}{SC}')
    for T in range(4):
        A(f'buffer_load_dwordx2 {v(VMF + T * 4, 2)}, {v(vVM)}, {srd(SRD_WS)}, {s(T_VM)} offen '
          f'offset:{T * 256}{SC}')
    for i in range(16):
        A(f'v_fma_f32 {v(SX + i)}, {v(SX + i)}, s40, {v(BIAS + i)}')
    mx = vT0
    A(f'v_max3_f32 {v(mx)}, {v(SX)}, {v(SX + 1)}, {v(SX + 2)}')
    for i in range(3, 15, 2):
        A(f'v_max3_f32 {v(mx)}, {v(mx)}, {v(SX + i)}, {v(SX + i + 1)}')
    A(f'v_max_f32 {v(mx)}, {v(mx)}, {v(SX + 15)}')
    for c in range(8):
        A(f's_waitcnt vmcnt({4 + 7 - c})')
        cin = '0' if c == 0 else v(SM, 16)
        A(f'v_mfma_f32_32x32x16_bf16 {v(SM, 16)}, {v(KMF + c * 4, 4)}, {v(QF + c * 4, 4)}, {cin}')
    for i in range(4):
        A(f'v_mul_f32 {v(SM + i)}, s40, {v(SM + i)}')
    A(f'v_max3_f32 {v(mx)}, {v(mx)}, {v(SM)}, {v(SM + 1)}')
    A(f'v_max3_f32 {v(mx)}, {v(mx)}, {v(SM + 2)}, {v(SM + 3)}')
    A(f'v_mov_b32 {v(vT1)}, {v(mx)}')
    A(f'v_permlane32_swap_b32 {v(mx)}, {v(vT1)}')
    A(f'v_max_f32 {v(mx)}, {v(mx)}, {v(vT1)}')
    vals = [SX + i for i in range(16)] + [SM + i for i in range(4)]
    for r in vals:
        A(f'v_sub_f32 {v(r)}, {v(r)}, {v(mx)}')
    for r in vals:
        A(f'v_exp_f32 {v(r)}, {v(r)}')
    sm = vT1
    A(f'v_add_f32 {v(sm)}, {v(vals[0])}, {v(vals[1])}')
    A(f'v_add_f32 {v(vT2)}, {v(vals[2])}, {v(vals[3])}')
    for i in range(4, 20, 2):
        A(f'v_add_f32 {v(sm)}, {v(sm)}, {v(vals[i])}')
        A(f'v_add_f32 {v(vT2)}, {v(vT2)}, {v(vals[i + 1])}')
    A(f'v_add_f32 {v(sm)}, {v(sm)}, {v(vT2)}')
    A(f'v_mov_b32 {v(vT2)}, {v(sm)}')
    A(f'v_permlane32_swap_b32 {v(sm)}, {v(vT2)}')
    A(f'v_add_f32 {v(sm)}, {v(sm)}, {v(vT2)}')
    A(f'v_rcp_f32 {v(sm)}, {v(sm)}')
    for r in vals:
        A(f'v_mul_f32 {v(r)}, {v(r)}, {v(sm)}')
    for j in range(10):
        A(f'v_cvt_pk_bf16_f32 {v(PB + j)}, {v(vals[2 * j])}, {v(vals[2 * j + 1])}')
    A('s_waitcnt vmcnt(0)')
    for T in range(4):
        o = v(OA + T * 16, 16)
        A(f'v_mfma_f32_32x32x16_bf16 {o}, {v(VF + T * 8, 4)}, {v(PB, 4)}, 0')
        A(f'v_mfma_f32_32x32x16_bf16 {o}, {v(VF + T * 8 + 4, 4)}, {v(PB + 4, 4)}, {o}')
        A(f'v_mfma_f32_32x32x16_bf16 {o}, {v(VMF + T * 4, 4)}, {v(PB + 8, 4)}, {o}')
    A(f's_add_u32 {s(T_T0)}, {s(T_O)}, 4096')
    for T in range(4):
        for f in (0, 1):
            n = T * 2 + f
            d = KMF + n * 4
            for j in range(4):
                r0 = OA + T * 16 + f * 8 + 2 * j
                A(f'v_cvt_pk_bf16_f32 {v(d + j)}, {v(r0)}, {v(r0 + 1)}')
            so = T_O if n < 4 else T_T0
            A(f'buffer_store_dwordx4 {v(d, 4)}, {v(vL16)}, {srd(SRD_WS)}, {s(so)} offen '
              f'offset:{(n & 3) * 1024}{SC}')
    A(f's_mov_b32 {s(T_PEND)}, 1')
    for r, st in ((T_Q, 262144), (T_K, 262144), (T_V, 262144), (T_KM, 65536), (T_VM, 65536), (T_O, 262144)):
        A(f's_add_u32 {s(r)}, {s(r)}, {st * segstep}')
    A(f's_sub_u32 {s(T_CNT)}, {s(T_CNT)}, 1')
    A(f's_cmp_lg_u32 {s(T_CNT)}, 0')
    A(f's_cbranch_scc1 {top}')
    if flags:
        A('s_waitcnt vmcnt(0)')
        emit_signal(A, T_FOUT, vOne)
    A(f's_branch {end_label}')


def ao_role(A, segstep, end_label):
    gemm_setup(A, 32, 'part', 1024, SRD_A, SRD_A)
    T_Q, T_K, T_V, T_KM, T_VM, T_FPR = 50, 51, 52, 53, 54, 55
    T_OUT, T_CNT, T_FIN, T_FOUT = 27, 28, 29, 30
    T_T0, T_T1, T_SPIN, T_PREF, T_PEND = 31, 32, 35, 33, 34
    P_Q, P_K, P_V = 56, 58, 60
    vL16, vLane = 1, 2
    vT0, vT1, vT2 = 3, 4, 5
    vK, vKM, vV, vVM, vFl, vFv, vOne, vFp, vOut, vLw = 6, 7, 8, 9, 10, 11, 12, 13, 14, 15
    BIAS = 16
    QF, KF, KMF, VF, VMF = 32, 64, 96, 128, 160
    SX, SM = 176, 192
    PB = 208
    OA = 32
    TMP = 220
    vSy, vC1, vSt, vRd, vFq = 236, 238, 239, 240, 241
    SC = ' sc1'
    scale_log2e = (128 ** -0.5) * 1.4426950408889634
    A(f'v_mov_b32 {v(vOut)}, v9')
    A(f'v_and_b32 {v(vT0)}, 0x13, {v(vLane)}')
    A(f'v_bfe_u32 {v(vT1)}, {v(vLane)}, 2, 1')
    A(f'v_lshl_or_b32 {v(vT0)}, {v(vT1)}, 3, {v(vT0)}')
    A(f'v_bfe_u32 {v(vT1)}, {v(vLane)}, 3, 1')
    A(f'v_lshl_or_b32 {v(vT0)}, {v(vT1)}, 2, {v(vT0)}')
    A(f'v_lshrrev_b32 {v(vT1)}, 5, {v(vLane)}')
    A(f'v_lshlrev_b32 {v(vK)}, 4, {v(vT0)}')
    A(f'v_lshl_add_u32 {v(vK)}, {v(vT1)}, 9, {v(vK)}')
    A(f'v_lshlrev_b32 {v(vV)}, 4, {v(vT0)}')
    A(f'v_lshl_add_u32 {v(vV)}, {v(vT1)}, 11, {v(vV)}')
    A(f'v_lshlrev_b32 {v(vVM)}, 3, {v(vT0)}')
    A(f'v_lshl_add_u32 {v(vVM)}, {v(vT1)}, 10, {v(vVM)}')
    A(f'v_and_b32 {v(vT2)}, 7, {v(vLane)}')
    A(f'v_lshlrev_b32 {v(vKM)}, 4, {v(vT2)}')
    A(f'v_lshl_add_u32 {v(vKM)}, {v(vT1)}, 7, {v(vKM)}')
    A(f'v_and_b32 {v(vT2)}, 31, {v(vLane)}')
    A(f'v_lshlrev_b32 {v(vT1)}, 3, {v(vT1)}')
    A(f'v_sub_u32 {v(vT2)}, {v(vT2)}, {v(vT1)}')
    A(f'v_mov_b32 {v(vT0)}, {f32bits(-1e30):#x}')
    for i in range(16):
        A(f'v_cmp_gt_i32 vcc, {16 * (i >> 3) + (i & 7)}, {v(vT2)}')
        A(f'v_cndmask_b32 {v(BIAS + i)}, 0, {v(vT0)}, vcc')
    for T in range(4):
        A(f'v_mov_b32 {v(VMF + T * 4 + 2)}, 0')
        A(f'v_mov_b32 {v(VMF + T * 4 + 3)}, 0')
    A(f'v_mov_b32 {v(PB + 10)}, 0')
    A(f'v_mov_b32 {v(PB + 11)}, 0')
    A(f'v_mov_b32 {v(vOne)}, 1')
    A(f's_mov_b32 s40, {f32bits(scale_log2e):#x}')
    A(f'v_mov_b32 {v(vFl)}, 0')
    A(f'v_min_u32 {v(vT0)}, 2, {v(vLane)}')
    A(f'v_lshlrev_b32 {v(vFp)}, 6, {v(vT0)}')
    A(f's_lshl_b32 {s(T_T0)}, {s(S_WAVE)}, 13')
    A(f'v_add_u32 {v(vLw)}, {s(T_T0)}, {v(vL16)}')
    A(f'v_mov_b32 {v(vRd)}, {v(vL16)}')
    sync_setup(A, vSy, vC1)
    A('s_barrier')

    def set_src(real):
        for p, r in ((P_Q, T_Q), (P_K, T_K), (P_V, T_V)):
            if real is None:
                A(f's_mov_b32 {s(p)}, {s(r)}')
            else:
                A(f's_cselect_b32 {s(p)}, {s(r)}, {OOB}')
        for p in (P_Q, P_K, P_V):
            A(f's_add_u32 {s(p + 1)}, {s(p)}, 4096')

    def load_list():
        L = []
        for c in range(8):
            L.append(f'buffer_load_dwordx4 {v(KF + c * 4, 4)}, {v(vK)}, {srd(SRD_WS)}, {s(P_K + (c >> 2))} offen '
                     f'offset:{(c & 3) * 1024}{SC}')
            L.append(f'buffer_load_dwordx4 {v(QF + c * 4, 4)}, {v(vL16)}, {srd(SRD_WS)}, {s(P_Q + (c >> 2))} offen '
                     f'offset:{(c & 3) * 1024}{SC}')
        for T in range(4):
            for f in (0, 1):
                L.append(f'buffer_load_dwordx4 {v(VF + (T * 2 + f) * 4, 4)}, {v(vV)}, {srd(SRD_WS)}, '
                         f'{s(P_V + f)} offen offset:{T * 512}{SC}')
        return L

    def adv_in():
        for r in (T_Q, T_K, T_V):
            A(f's_add_u32 {s(r)}, {s(r)}, {262144 * segstep}')
        A(f's_add_u32 {s(T_FPR)}, {s(T_FPR)}, {1024 * segstep}')

    emit_poll_block(A, vFv, vFp, T_FPR, T_SPIN, end_label, sleep=8)
    set_src(None)
    for x in load_list():
        A(x)
    adv_in()
    A(f's_mov_b32 {s(T_PEND)}, 0')

    def signal():
        emit_signal_agg(A, T_FOUT, vOne, vSy, vC1, vSt, T_T0)
        A(f's_add_u32 {s(T_FOUT)}, {s(T_FOUT)}, {1024 * segstep}')
        A(f's_mov_b32 {s(T_PEND)}, 0')

    top = A.newlabel('aotop')
    A.label(top)
    A(f's_sub_u32 {s(T_CNT)}, {s(T_CNT)}, 1')
    emit_poll_issue(A, vFv, vFl, T_FIN)
    A('s_waitcnt vmcnt(9)')
    for c in range(8):
        cin = '0' if c == 0 else v(SX, 16)
        A(f'v_mfma_f32_32x32x16_bf16 {v(SX, 16)}, {v(KF + c * 4, 4)}, {v(QF + c * 4, 4)}, {cin}')
    for i in range(16):
        A(f'v_fma_f32 {v(SX + i)}, {v(SX + i)}, s40, {v(BIAS + i)}')
    mx = vT0
    A(f'v_max3_f32 {v(mx)}, {v(SX)}, {v(SX + 1)}, {v(SX + 2)}')
    for i in range(3, 15, 2):
        A(f'v_max3_f32 {v(mx)}, {v(mx)}, {v(SX + i)}, {v(SX + i + 1)}')
    A(f'v_max_f32 {v(mx)}, {v(mx)}, {v(SX + 15)}')
    A('s_waitcnt vmcnt(0)')
    ns = A.newlabel('aons')
    A(f's_cmp_eq_u32 {s(T_PEND)}, 0')
    A(f's_cbranch_scc1 {ns}')
    signal()
    A.label(ns)
    go = A.newlabel('aogo')
    emit_poll_check(A, vFv)
    A(f's_cbranch_scc1 {go}')
    emit_poll_block(A, vFv, vFl, T_FIN, T_SPIN, end_label, sleep=2)
    A.label(go)
    A(f's_add_u32 {s(T_FIN)}, {s(T_FIN)}, {1024 * segstep}')
    for c in range(8):
        A(f'buffer_load_dwordx4 {v(KMF + c * 4, 4)}, {v(vKM)}, {srd(SRD_WS)}, {s(T_KM)} offen '
          f'offset:{c * 256}{SC}')
    for T in range(4):
        A(f'buffer_load_dwordx2 {v(VMF + T * 4, 2)}, {v(vVM)}, {srd(SRD_WS)}, {s(T_VM)} offen '
          f'offset:{T * 256}{SC}')
    emit_poll_issue(A, vFq, vFp, T_FPR)
    A(f's_add_u32 {s(T_KM)}, {s(T_KM)}, {65536 * segstep}')
    A(f's_add_u32 {s(T_VM)}, {s(T_VM)}, {65536 * segstep}')
    for c in range(8):
        A(f's_waitcnt vmcnt({5 + 7 - c})')
        cin = '0' if c == 0 else v(SM, 16)
        A(f'v_mfma_f32_32x32x16_bf16 {v(SM, 16)}, {v(KMF + c * 4, 4)}, {v(QF + c * 4, 4)}, {cin}')
    for i in range(4):
        A(f'v_mul_f32 {v(SM + i)}, s40, {v(SM + i)}')
    A(f'v_max3_f32 {v(mx)}, {v(mx)}, {v(SM)}, {v(SM + 1)}')
    A(f'v_max3_f32 {v(mx)}, {v(mx)}, {v(SM + 2)}, {v(SM + 3)}')
    A(f'v_mov_b32 {v(vT1)}, {v(mx)}')
    A(f'v_permlane32_swap_b32 {v(mx)}, {v(vT1)}')
    A(f'v_max_f32 {v(mx)}, {v(mx)}, {v(vT1)}')
    vals = [SX + i for i in range(16)] + [SM + i for i in range(4)]
    for r in vals:
        A(f'v_sub_f32 {v(r)}, {v(r)}, {v(mx)}')
    for r in vals:
        A(f'v_exp_f32 {v(r)}, {v(r)}')
    sm = vT1
    A(f'v_add_f32 {v(sm)}, {v(vals[0])}, {v(vals[1])}')
    A(f'v_add_f32 {v(vT2)}, {v(vals[2])}, {v(vals[3])}')
    for i in range(4, 20, 2):
        A(f'v_add_f32 {v(sm)}, {v(sm)}, {v(vals[i])}')
        A(f'v_add_f32 {v(vT2)}, {v(vT2)}, {v(vals[i + 1])}')
    A(f'v_add_f32 {v(sm)}, {v(sm)}, {v(vT2)}')
    A(f'v_mov_b32 {v(vT2)}, {v(sm)}')
    A(f'v_permlane32_swap_b32 {v(sm)}, {v(vT2)}')
    A(f'v_add_f32 {v(sm)}, {v(sm)}, {v(vT2)}')
    A(f'v_rcp_f32 {v(sm)}, {v(sm)}')
    for r in vals:
        A(f'v_mul_f32 {v(r)}, {v(r)}, {v(sm)}')
    for j in range(10):
        A(f'v_cvt_pk_bf16_f32 {v(PB + j)}, {v(vals[2 * j])}, {v(vals[2 * j + 1])}')
    A('s_waitcnt vmcnt(0)')

    def pack(T):
        out = []
        for f in (0, 1):
            n = T * 2 + f
            d = KMF + n * 4
            for j in range(4):
                r0 = OA + T * 16 + f * 8 + 2 * j
                out.append(f'v_cvt_pk_bf16_f32 {v(d + j)}, {v(r0)}, {v(r0 + 1)}')
            out.append(f'ds_write_b128 {v(vLw)}, {v(d, 4)} offset:{n * 1024}')
        return out

    fill = []
    for T in range(4):
        o = v(OA + T * 16, 16)
        for m in (f'v_mfma_f32_32x32x16_bf16 {o}, {v(VF + T * 8, 4)}, {v(PB, 4)}, 0',
                  f'v_mfma_f32_32x32x16_bf16 {o}, {v(VF + T * 8 + 4, 4)}, {v(PB + 4, 4)}, {o}',
                  f'v_mfma_f32_32x32x16_bf16 {o}, {v(VMF + T * 4, 4)}, {v(PB + 8, 4)}, {o}'):
            A(m)
            for _ in range(4):
                if fill:
                    A(fill.pop(0))
        if T >= 1:
            fill += pack(T - 1)
    emit_poll_check(A, vFq)
    A(f's_cselect_b32 {s(T_PREF)}, 1, 0')
    A(f's_cmp_eq_u32 {s(T_CNT)}, 0')
    A(f's_cselect_b32 {s(T_PREF)}, 0, {s(T_PREF)}')
    A(f's_cmp_eq_u32 {s(T_PREF)}, 1')
    set_src(True)
    for x in fill + pack(3):
        A(x)
    A('s_waitcnt lgkmcnt(0)')
    A('s_barrier')
    NK, NS, D2, R2 = 32, 64, 7, 8
    ACC = [SX, SM]

    def rd(n):
        A(f'ds_read_b128 {v(KMF + (n % R2) * 4, 4)}, {v(vRd)} offset:{(n % NK) * 1024}')

    def cvt_tile(t):
        out = []
        for f in (0, 1):
            d = TMP + (t * 2 + f) * 4
            for j in range(4):
                r0 = ACC[t] + f * 8 + 2 * j
                out.append(f'v_cvt_pk_bf16_f32 {v(d + j)}, {v(r0)}, {v(r0 + 1)}')
            out.append(f'buffer_store_dwordx4 {v(d, 4)}, {v(vOut)}, {srd(SRD_WS)}, {s(T_OUT)} offen '
                       f'offset:{(t * 2 + f) * 128}{SC}')
        return out

    for n in range(D2):
        rd(n)
    pl = load_list()
    early = cvt_tile(0)
    for n in range(NS):
        t, c = divmod(n, NK)
        if n + D2 < NS:
            rd(n + D2)
        A(f's_waitcnt lgkmcnt({min(D2, NS - 1 - n)})')
        cin = '0' if c == 0 else v(ACC[t], 16)
        A(f'v_mfma_f32_32x32x16_bf16 {v(ACC[t], 16)}, {a((t * 32 + c) * 4, 4)}, '
          f'{v(KMF + (n % R2) * 4, 4)}, {cin}')
        if pl and (n % 4 != 3):
            A(pl.pop(0))
        if n >= NK + 3:
            for _ in range(2):
                if early:
                    A(early.pop(0))
    assert not pl and not early
    A(f'v_xor_b32 {v(vRd)}, 32768, {v(vRd)}')
    A(f'v_xor_b32 {v(vLw)}, 32768, {v(vLw)}')
    for x in cvt_tile(1):
        A(x)
    A(f's_add_u32 {s(T_OUT)}, {s(T_OUT)}, {PSEG * segstep}')
    A(f's_mov_b32 {s(T_PEND)}, 1')
    pf = A.newlabel('aopf')
    A(f's_cmp_eq_u32 {s(T_PREF)}, 1')
    A(f's_cbranch_scc1 {pf}')
    A('s_waitcnt vmcnt(0)')
    signal()
    A(f's_cmp_eq_u32 {s(T_CNT)}, 0')
    A(f's_cbranch_scc1 {end_label}')
    emit_poll_block(A, vFv, vFp, T_FPR, T_SPIN, end_label, sleep=4)
    set_src(None)
    for x in load_list():
        A(x)
    A.label(pf)
    adv_in()
    A(f's_branch {top}')
```

```python
from asmdsl import v, a, s
from layout import *
from roles import *

M_ME, M_K, M_V, M_KM, M_VM, M_TP, M_TM, M_CTL, M_FPR, M_FOUT = 24, 25, 26, 27, 28, 29, 30, 31, 32, 33
M_STEP, M_T0, M_T1, M_T2, M_SPIN = 34, 35, 36, 37, 38
M_PW, M_PR, M_MP, M_MRS, M_MRD = 39, 40, 41, 42, 43
SRD_M0 = 44
M_PUBX = 48
M_ODD = 52
M_C = 54
M_PW2 = 56
M_XCC = 57
M_FAST = 59
M_PRO, M_SIG = 90, 91
M_SRC, M_EXP, M_DST, M_HS = 50, 51, 55, 58
M_FP2 = 58
M_K2, M_EXO, M_SIG2 = 50, 27, 28

STAMP_NAMES = []
L_MEM = 131072
L_KX = L_MEM + 8192
L_VX = L_KX + 8192
L_QK = L_VX + 8192
L_O = L_QK + 4096
L_SEL = L_O + 2048
L_END = L_SEL + 1024

vOne, vL16, vLane = 0, 1, 2
vTouch = 2
vIdx, vWl, vHi, vQKw, vQr, vKMr, vOw, vPw, vPub, vHD, vVMw, vFl, vTa, vFv, vVr, vMw, vEx = range(3, 20)
t0, t1, t2, t3 = 20, 21, 22, 23
VX = 24
MF = 32
ACC = 64
S1 = 88
E = 120
QA, KA, VA = ACC, ACC + 8, ACC + 16
ONES = E + 4

RBLOCKS = ([('q', i) for i in range(2, 8)] + [('k', i) for i in range(2, 8)] + [('v', i) for i in range(8)]
           + [('o', 1, 0), ('o', 1, 1), ('o', 2, 0), ('o', 2, 1)])
LBLOCKS = [('q', 0), ('q', 1), ('k', 0), ('k', 1), ('o', 0, 0), ('o', 0, 1), ('o', 3, 0), ('o', 3, 1)]


def rreg(blk, t, n=8, off=0):
    r = (RBLOCKS.index(blk) * 2 + t) * 8 + off
    return a(r, n) if r < 256 else v(128 + r - 256, n)


def loff(blk, t):
    return LBLOCKS.index(blk) * 4096 + t * 2048


def hi(x):
    return x - L_MEM


def team_role(A, end_label, flags=None, force_slow=False, nsteps=NSEG, stamp=False, purity='ctl', tune=None):
    tune = tune or {}
    vS, vZ, vCh, vWq, vWoD, vTr0, vTr1 = 32, 33, 34, 35, 36, 37, 38
    A(f'v_bfe_u32 {v(vS)}, {v(vLane)}, 2, 1')
    A(f'v_bfe_u32 {v(t0)}, {v(vLane)}, 5, 1')
    A(f'v_lshl_add_u32 {v(vS)}, {v(t0)}, 1, {v(vS)}')
    A(f'v_bfe_u32 {v(t0)}, {v(vLane)}, 4, 1')
    A(f'v_lshl_add_u32 {v(vS)}, {v(t0)}, 2, {v(vS)}')
    A(f'v_bfe_u32 {v(vZ)}, {v(vLane)}, 3, 1')
    A(f'v_and_b32 {v(vCh)}, 3, {v(vLane)}')
    A(f'v_lshlrev_b32 {v(t0)}, 1, {v(t0)}')
    A(f'v_xor_b32 {v(vCh)}, {v(vCh)}, {v(t0)}')
    A(f'v_lshl_add_u32 {v(t1)}, {v(vS)}, 4, {v(vZ)}')
    A(f'v_lshlrev_b32 {v(vWq)}, 13, {v(t1)}')
    A(f'v_lshl_add_u32 {v(vWq)}, {v(vCh)}, 4, {v(vWq)}')
    A(f'v_lshl_add_u32 {v(t1)}, {v(vZ)}, 3, {v(vS)}')
    A(f'v_lshlrev_b32 {v(vWoD)}, 10, {v(t1)}')
    A(f'v_lshl_add_u32 {v(vWoD)}, {v(vCh)}, 4, {v(vWoD)}')
    A(f'v_bfe_u32 {v(t0)}, {v(vLane)}, 2, 3')
    A(f'v_bfe_u32 {v(t1)}, {v(vLane)}, 5, 1')
    A(f'v_lshl_add_u32 {v(t0)}, {v(t1)}, 4, {v(t0)}')
    A(f'v_lshlrev_b32 {v(vTr0)}, 6, {v(t0)}')
    A(f'v_and_b32 {v(t0)}, 3, {v(vLane)}')
    A(f'v_lshl_add_u32 {v(vTr0)}, {v(t0)}, 3, {v(vTr0)}')
    A(f'v_bfe_u32 {v(t1)}, {v(vLane)}, 4, 1')
    A(f'v_lshl_add_u32 {v(vTr0)}, {v(t1)}, 5, {v(vTr0)}')
    A(f's_lshl_b32 {s(M_T0)}, {s(S_WAVE)}, 15')
    A(f'v_add_u32 {v(vTr0)}, {s(M_T0)}, {v(vTr0)}')
    A(f'v_xor_b32 {v(vTr1)}, 32, {v(vTr0)}')
    A(f'v_add_u32 {v(vWl)}, {s(M_T0)}, {v(vL16)}')

    if purity == 'ctl':
        A(f's_getreg_b32 {s(M_XCC)}, hwreg(HW_REG_XCC_ID)')
        A(f's_and_b32 {s(M_XCC)}, {s(M_XCC)}, 15')
        A(f's_add_u32 {s(M_XCC)}, {s(M_XCC)}, 1')
        A(f'v_mov_b32 {v(t0)}, {s(M_XCC)}')
        A(f's_lshl_b32 {s(M_T0)}, {s(M_ME)}, 2')
        A(f's_add_u32 {s(M_T0)}, {s(M_T0)}, {s(M_CTL)}')
        A('s_mov_b64 exec, 1')
        A(f'buffer_store_dword {v(t0)}, off, {srd(SRD_WS)}, {s(M_T0)} sc1')
        A('s_mov_b64 exec, -1')

    A(f's_lshl_b32 {s(M_T2)}, {s(M_ME)}, 8')
    A(f's_lshl_b32 {s(M_T0)}, {s(S_WAVE)}, 6')
    A(f's_add_u32 {s(M_T2)}, {s(M_T2)}, {s(M_T0)}')
    A(f's_lshl_b32 {s(M_T1)}, {s(M_ME)}, 17')
    A(f's_lshl_b32 {s(M_T0)}, {s(S_WAVE)}, 8')
    A(f's_add_u32 {s(M_T1)}, {s(M_T1)}, {s(M_T0)}')
    groups = [RBLOCKS[g:g + 4] for g in range(0, 24, 4)] + [LBLOCKS[0:4], LBLOCKS[4:8]]

    def issue_group(g):
        A(f's_lshl_b32 {s(M_T0)}, {s(S_WAVE)}, 15')
        A(f's_add_u32 m0, {s(M_T0)}, {(g & 1) * 16384}')
        first = True
        for blk in groups[g]:
            for d in range(4):
                if not first:
                    A('s_add_u32 m0, m0, 1024')
                first = False
                if blk[0] == 'o':
                    _, tp, ks = blk
                    A(f's_add_u32 {s(M_T0)}, {s(M_T1)}, {tp * 64 + (64 * ks + 16 * d) * 1024}')
                    A(f'buffer_load_dwordx4 {v(vWoD)}, {srd(SRD_D)}, {s(M_T0)} offen lds')
                else:
                    m, i = blk
                    A(f's_add_u32 {s(M_T0)}, {s(M_T2)}, {(128 * (i >> 1) + 8 * (i & 1) + 2 * d) * 8192}')
                    A(f'buffer_load_dwordx4 {v(vWq)}, {srd(dict(q=SRD_A, k=SRD_B, v=SRD_C)[m])}, '
                      f'{s(M_T0)} offen lds')

    def read_group(g):
        for bi, blk in enumerate(groups[g]):
            base = (g & 1) * 16384 + bi * 4096
            for t in (0, 1):
                for half in (0, 1):
                    for pp in (0, 1):
                        o = half * 4 + pp * 2
                        dst = rreg(blk, t, 2, o) if g < 6 else v(64 + bi * 16 + t * 8 + o, 2)
                        A(f'ds_read_b64_tr_b16 {dst}, {v(vTr0 if t == 0 else vTr1)} '
                          f'offset:{base + half * 2048 + pp * 512}')
        A('s_waitcnt lgkmcnt(0)')
        if g >= 6:
            for q in range(16):
                A(f'ds_write_b128 {v(vWl)}, {v(64 + q * 4, 4)} offset:{(g & 1) * 16384 + q * 1024}')
            A('s_waitcnt lgkmcnt(0)')

    issue_group(0)
    issue_group(1)
    for g in range(8):
        A(f's_waitcnt vmcnt({16 if g < 7 else 0})')
        read_group(g)
        if g + 2 < 8:
            issue_group(g + 2)
    if callable(purity):
        purity(A)

    n_, G_, hi_, row_ = 32, 33, 34, 35
    A(f'v_and_b32 {v(n_)}, 15, {v(vLane)}')
    A(f'v_lshrrev_b32 {v(G_)}, 4, {v(vLane)}')
    A(f'v_and_b32 {v(hi_)}, 1, {v(vLane)}')
    A(f'v_lshrrev_b32 {v(row_)}, 1, {v(n_)}')
    A(f'v_cmp_eq_u32 {s(M_ODD, 2)}, 1, {v(hi_)}')
    A(f'v_mov_b32 {v(t0)}, 0x4444')
    A(f'v_mov_b32 {v(t1)}, 0xeeee')
    A(f'v_cndmask_b32 {v(vIdx)}, {v(t0)}, {v(t1)}, {s(M_ODD, 2)}')
    A(f'v_add_u32 {v(vHi)}, {L_MEM}, {v(vL16)}')
    A(f's_lshl_b32 {s(M_T0)}, {s(S_WAVE)}, 11')
    A(f'v_add_u32 {v(vMw)}, {s(M_T0)}, {v(vHi)}')
    A(f's_add_u32 {s(M_DST)}, {s(M_T0)}, {L_KX}')
    A(f'v_lshlrev_b32 {v(vVr)}, 11, {v(G_)}')
    A(f'v_lshl_add_u32 {v(vVr)}, {v(n_)}, 4, {v(vVr)}')
    A(f's_lshl_b32 {s(M_T0)}, {s(S_WAVE)}, 9')
    A(f'v_add_u32 {v(vVr)}, {s(M_T0)}, {v(vVr)}')
    A(f's_lshl_b32 {s(M_T0)}, {s(S_WAVE)}, 10')
    A(f's_add_u32 {s(M_T0)}, {s(M_T0)}, {L_QK}')
    A(f'v_add_u32 {v(vEx)}, {s(M_T0)}, {v(vL16)}')
    A(f's_cmp_ge_u32 {s(S_WAVE)}, 2')
    A(f's_cselect_b32 {s(M_EXP)}, {s(M_KM)}, {s(M_VM)}')
    A(f's_and_b32 {s(M_T0)}, {s(S_WAVE)}, 1')
    A(f's_lshl_b32 {s(M_T0)}, {s(M_T0)}, 10')
    A(f's_add_u32 {s(M_EXP)}, {s(M_EXP)}, {s(M_T0)}')
    A(f'v_lshrrev_b32 {v(t0)}, 3, {v(n_)}')
    A(f'v_lshlrev_b32 {v(vQKw)}, 7, {v(t0)}')
    A(f'v_lshl_add_u32 {v(vQKw)}, {v(G_)}, 5, {v(vQKw)}')
    A(f'v_and_b32 {v(t0)}, 7, {v(n_)}')
    A(f'v_lshl_add_u32 {v(vQKw)}, {v(t0)}, 1, {v(vQKw)}')
    A(f's_lshl_b32 {s(M_T0)}, {s(S_WAVE)}, 9')
    A(f's_add_u32 {s(M_T0)}, {s(M_T0)}, {L_QK}')
    A(f'v_add_u32 {v(vQKw)}, {s(M_T0)}, {v(vQKw)}')
    A(f'v_lshl_add_u32 {v(t0)}, {v(G_)}, 3, {v(row_)}')
    A(f'v_lshlrev_b32 {v(vQr)}, 4, {v(t0)}')
    A(f'v_add_u32 {v(vQr)}, {L_QK}, {v(vQr)}')
    A(f'v_lshrrev_b32 {v(t0)}, 2, {v(n_)}')
    A(f'v_lshl_add_u32 {v(t0)}, {v(t0)}, 1, {v(hi_)}')
    A(f'v_lshl_add_u32 {v(t1)}, {v(G_)}, 3, {v(t0)}')
    A(f'v_lshlrev_b32 {v(vKMr)}, 4, {v(t1)}')
    A(f'v_add_u32 {v(vKMr)}, {L_QK + 2048}, {v(vKMr)}')
    A(f'v_lshlrev_b32 {v(vOw)}, 8, {v(hi_)}')
    A(f'v_lshl_add_u32 {v(vOw)}, {v(row_)}, 5, {v(vOw)}')
    A(f'v_lshl_add_u32 {v(vOw)}, {v(G_)}, 3, {v(vOw)}')
    A(f's_lshl_b32 {s(M_T0)}, {s(S_WAVE)}, 9')
    A(f's_add_u32 {s(M_T0)}, {s(M_T0)}, {L_O}')
    A(f'v_add_u32 {v(vOw)}, {s(M_T0)}, {v(vOw)}')
    A(f'v_lshrrev_b32 {v(t0)}, 2, {v(n_)}')
    A(f'v_lshlrev_b32 {v(vPw)}, 14, {v(t0)}')
    A(f'v_lshrrev_b32 {v(t0)}, 1, {v(G_)}')
    A(f'v_lshl_add_u32 {v(vPw)}, {v(t0)}, 13, {v(vPw)}')
    A(f'v_and_b32 {v(t0)}, 1, {v(G_)}')
    A(f'v_lshl_add_u32 {v(vPw)}, {v(t0)}, 11, {v(vPw)}')
    A(f'v_and_b32 {v(t0)}, 3, {v(n_)}')
    A(f'v_lshl_add_u32 {v(vPw)}, {v(t0)}, 4, {v(vPw)}')
    A(f's_lshl_b32 {s(M_T0)}, {s(S_WAVE)}, 16')
    A(f'v_add_u32 {v(vPw)}, {s(M_T0)}, {v(vPw)}')
    A(f'v_bfe_u32 {v(t0)}, {v(n_)}, 1, 1')
    A(f'v_lshlrev_b32 {v(vPub)}, 8, {v(t0)}')
    A(f'v_lshl_add_u32 {v(vPub)}, {v(hi_)}, 4, {v(vPub)}')
    A(f'v_and_b32 {v(t0)}, 1, {v(G_)}')
    A(f'v_lshl_add_u32 {v(vPub)}, {v(t0)}, 5, {v(vPub)}')
    A(f's_lshr_b32 {s(M_T0)}, {s(M_ME)}, 1')
    A(f's_lshl_b32 {s(M_T0)}, {s(M_T0)}, 9')
    A(f's_and_b32 {s(M_T1)}, {s(M_ME)}, 1')
    A(f's_lshl_b32 {s(M_T1)}, {s(M_T1)}, 7')
    A(f's_add_u32 {s(M_T0)}, {s(M_T0)}, {s(M_T1)}')
    A(f's_and_b32 {s(M_T1)}, {s(S_WAVE)}, 1')
    A(f's_lshl_b32 {s(M_T1)}, {s(M_T1)}, 6')
    A(f's_add_u32 {s(M_T0)}, {s(M_T0)}, {s(M_T1)}')
    A(f's_lshr_b32 {s(M_T1)}, {s(S_WAVE)}, 1')
    A(f's_lshl_b32 {s(M_T1)}, {s(M_T1)}, 3')
    A(f's_add_u32 {s(M_T0)}, {s(M_T0)}, {s(M_T1)}')
    A(f'v_add_u32 {v(vPub)}, {s(M_T0)}, {v(vPub)}')
    A(f's_mov_b32 {s(M_PUBX)}, 0x000f000f')
    A(f's_mov_b32 {s(M_PUBX + 1)}, 0')
    A(f'v_lshrrev_b32 {v(t0)}, 2, {v(n_)}')
    A(f'v_lshlrev_b32 {v(vHD)}, 7, {v(t0)}')
    A(f'v_and_b32 {v(t0)}, 3, {v(n_)}')
    A(f'v_lshl_add_u32 {v(vHD)}, {v(t0)}, 4, {v(vHD)}')
    A(f'v_lshl_add_u32 {v(vHD)}, {v(G_)}, 9, {v(vHD)}')
    A(f's_lshl_b32 {s(M_T0)}, {s(S_WAVE)}, 11')
    A(f'v_add_u32 {v(vHD)}, {s(M_T0)}, {v(vHD)}')
    A(f'v_lshrrev_b32 {v(t0)}, 1, {v(G_)}')
    A(f'v_lshlrev_b32 {v(vVMw)}, 10, {v(t0)}')
    A(f'v_lshl_add_u32 {v(vVMw)}, {v(n_)}, 3, {v(vVMw)}')
    A(f'v_and_b32 {v(t0)}, 1, {v(G_)}')
    A(f'v_lshl_add_u32 {v(vVMw)}, {v(t0)}, 2, {v(vVMw)}')
    A(f's_lshl_b32 {s(M_T0)}, {s(S_WAVE)}, 8')
    A(f's_add_u32 {s(M_T0)}, {s(M_T0)}, {L_QK}')
    A(f'v_add_u32 {v(vVMw)}, {s(M_T0)}, {v(vVMw)}')
    A(f'v_lshlrev_b32 {v(vTa)}, 7, {v(n_)}')
    A(f's_lshl_b32 {s(M_T0)}, {s(S_WAVE)}, 11')
    A(f's_add_u32 {s(M_T0)}, {s(M_T0)}, 262144')
    A(f'v_add_u32 {v(vTa)}, {s(M_T0)}, {v(vTa)}')
    A(f'v_and_b32 {v(t0)}, 1, {v(G_)}')
    A(f'v_lshl_add_u32 {v(vTa)}, {v(t0)}, 25, {v(vTa)}')
    assert VT - KB == 1 << 25
    for u in range(4):
        A(f'v_cmp_eq_u32 vcc, {2 * u}, {v(n_)}')
        A(f'v_mov_b32 {v(t0)}, 0x3f80')
        A(f'v_cndmask_b32 {v(64 + u)}, 0, {v(t0)}, vcc')
        A(f'v_cmp_eq_u32 vcc, {2 * u + 1}, {v(n_)}')
        A(f'v_mov_b32 {v(t0)}, 0x3f800000')
        A(f'v_cndmask_b32 {v(64 + u)}, {v(64 + u)}, {v(t0)}, vcc')
        A(f'v_mov_b32 {v(ONES + u)}, 0x3f803f80')
    A(f'ds_write_b128 {v(vHi)}, {v(64, 4)} offset:{hi(L_SEL)}')
    A(f's_mov_b32 {s(M_C)}, {f32bits((128 ** -0.5) * 1.4426950408889634):#x}')
    A(f'v_lshlrev_b32 {v(vFl)}, 6, {v(hi_)}')
    A(f'v_lshlrev_b32 {v(t2)}, 10, {v(row_)}')
    A(f'v_lshl_add_u32 {v(t0)}, {v(G_)}, 1, {v(hi_)}')
    A(f'v_lshl_add_u32 {v(t2)}, {v(t0)}, 1, {v(t2)}')
    A(f's_lshl_b32 {s(M_T0)}, {s(S_WAVE)}, 8')
    A(f'v_add_u32 {v(t2)}, {s(M_T0)}, {v(t2)}')
    for f in (0, 1):
        for sl in range(8):
            A(f'buffer_load_ushort {v(40 + f * 8 + sl)}, {v(t2)}, {srd(SRD_M0)}, 0 offen '
              f'offset:{f * 16 + sl * 32}')
    A('s_waitcnt vmcnt(0)')
    for r in range(8):
        A(f'v_lshl_or_b32 {v(MF + r)}, {v(40 + 2 * r + 1)}, 16, {v(40 + 2 * r)}')
    A(f's_lshl_b32 {s(M_T0)}, {s(S_WAVE)}, 11')
    A(f'v_add_u32 {v(t2)}, {s(M_T0)}, {v(vHi)}')
    A(f'ds_write_b128 {v(t2)}, {v(MF, 4)}')
    A(f'ds_write_b128 {v(t2)}, {v(MF + 4, 4)} offset:1024')
    A(f'v_lshlrev_b32 {v(t3)}, 2, {v(vLane)}')
    A(f'v_and_b32 {v(t3)}, 127, {v(t3)}')
    A(f'v_mov_b32 {v(vOne)}, 1')
    A(f'v_mov_b32 {v(vFv)}, 0')
    A(f's_mov_b32 {s(M_STEP)}, 0')
    slow = A.newlabel('tslow')
    P = dict(flags=flags, end_label=end_label, nsteps=nsteps, stamp=stamp, tune=tune)
    if purity == 'ctl':
        emit_poll_block(A, t0, t3, M_CTL, M_SPIN, end_label)
        A(f'v_cmp_eq_u32 vcc, {s(M_XCC)}, {v(t0)}')
        A('s_cmp_eq_u64 vcc, exec')
    else:
        A(f's_cmp_eq_u32 {s(M_FAST)}, 1')
    if not force_slow:
        A(f's_cbranch_scc0 {slow}')
        team_loop(A, P, fast=True)
    A.label(slow)
    team_loop(A, P, fast=False)


def team_loop(A, P, fast):
    flags, end_label, nsteps, tune = P['flags'], P['end_label'], P['nsteps'], P['tune']
    XS = '' if fast else ' sc1'
    poll_in = bool(flags and flags.get('poll_in'))
    has_sig = bool(flags and flags.get('signal'))

    def smf(acc, af, b):
        return f'v_smfmac_f32_16x16x64_bf16 {v(acc, 4)}, {v(af, 4)}, {b}, {v(vIdx)}'

    def zero(r, n):
        return [f'v_mov_b64 {v(r + i, 2)}, 0' for i in range(0, n, 2)]

    def emit(lst):
        for x in lst:
            for y in x.split('|'):
                A(y)

    def mix(ms, fs, per=2):
        for m in ms:
            A(m)
            for _ in range(per):
                if fs:
                    emit([fs.pop(0)])

    def lread(blk, t, reg):
        return [f'ds_read_b128 {v(reg, 4)}, {v(vWl)} offset:{loff(blk, t)}',
                f'ds_read_b128 {v(reg + 4, 4)}, {v(vWl)} offset:{loff(blk, t) + 1024}']

    nst = [0]

    def st(name):
        if P['stamp']:
            A(f's_memtime {s(60 + 2 * nst[0], 2)}')
            if fast:
                STAMP_NAMES.append(name)
            nst[0] += 1

    def st_flush():
        if not P['stamp']:
            return
        sk = A.newlabel('tsk')
        A(f's_cmp_lg_u32 {s(M_STEP)}, {P["stamp"]}')
        A(f's_cbranch_scc1 {sk}')
        A('s_waitcnt lgkmcnt(0)')
        A(f's_lshl_b32 {s(M_T0)}, {s(M_ME)}, 2')
        A(f's_add_u32 {s(M_T0)}, {s(M_T0)}, {s(S_WAVE)}')
        A(f's_lshl_b32 {s(M_T0)}, {s(M_T0)}, 7')
        A(f's_add_u32 {s(M_T0)}, {s(M_T0)}, {TCTL + 4096}')
        A('s_mov_b64 exec, 1')
        for i in range(nst[0]):
            A(f'v_mov_b32 {v(VX)}, {s(60 + 2 * i)}')
            A(f'buffer_store_dword {v(VX)}, off, {srd(SRD_WS)}, {s(M_T0)} offset:{4 * i}')
        A('s_mov_b64 exec, -1')
        A('s_waitcnt vmcnt(0)')
        A.label(sk)

    def prep_step():
        emit(zero(ACC, 24))
        for i in (0, 1):
            for t in (0, 1):
                emit(lread(('q', i), t, S1 + (i * 2 + t) * 8))
        A(f's_and_b32 {s(M_T0)}, {s(M_STEP)}, 3')
        A(f's_lshl_b32 {s(M_T0)}, {s(M_T0)}, 18')
        A(f's_add_u32 {s(M_T0)}, {s(M_T0)}, {s(M_TP)}')
        A(f's_lshl_b32 {s(M_T1)}, {s(M_ME)}, 6')
        A(f's_add_u32 {s(M_PW)}, {s(M_T0)}, {s(M_T1)}')
        A(f's_add_u32 {s(M_PW2)}, {s(M_PW)}, 4096')
        A(f's_lshl_b32 {s(M_T1)}, {s(M_ME)}, 13')
        A(f's_add_u32 {s(M_PR)}, {s(M_T0)}, {s(M_T1)}')
        A(f's_lshl_b32 {s(M_T1)}, {s(S_WAVE)}, 11')
        A(f's_add_u32 {s(M_PR)}, {s(M_PR)}, {s(M_T1)}')
        A(f's_add_u32 {s(M_T0)}, {s(M_STEP)}, 1')
        A(f's_and_b32 {s(M_T0)}, {s(M_T0)}, 3')
        A(f's_lshl_b32 {s(M_T0)}, {s(M_T0)}, 13')
        A(f's_add_u32 {s(M_MP)}, {s(M_T0)}, {s(M_TM)}')
        A(f's_xor_b32 {s(M_MRS)}, {s(M_MP)}, {2 << 13}')
        A(f's_sub_u32 {s(M_K2)}, {s(M_K)}, {1024 - 64}')

    NEG = E

    def wait_flags():
        if poll_in:
            ok = A.newlabel('tfok')
            A(f's_cmp_lg_u32 {s(S_WAVE)}, 3')
            A(f's_cbranch_scc1 {ok}')
            emit_poll_check(A, vFv)
            A(f's_cbranch_scc1 {ok}')
            emit_poll_block(A, vFv, vFl, M_FPR, M_SPIN, end_label, sleep=4)
            A.label(ok)
            A(f's_add_u32 {s(M_FPR)}, {s(M_FPR)}, 1024')
            A(f's_cmp_eq_u32 {s(S_WAVE)}, 3')
            A(f's_cselect_b32 {s(M_FP2)}, {s(M_FPR)}, {OOB}')

    EXR = t0

    assert TM % 32768 == 0
    top = A.newlabel('ttop')
    A(f's_mov_b32 {s(M_SIG)}, {OOB}')
    A(f's_mov_b32 {s(M_SIG2)}, {OOB}')
    A(f's_mov_b32 {s(M_PRO)}, {OOB}')
    A(f's_mov_b32 {s(M_EXO)}, {OOB}')
    A(f's_mov_b32 m0, {s(M_DST)}')
    wait_flags()
    prep_step()
    A.label(top)
    st('top')
    A('s_waitcnt lgkmcnt(0)')
    A('s_barrier')
    st('B1')
    for i in range(8):
        A(f'ds_read_b128 {v(MF + i * 4, 4)}, {v(vHi)} offset:{i * 1024}')
    A(f'buffer_load_dwordx4 {v(vHD)}, {srd(SRD_WS)}, {s(M_K)} offen sc1 lds')
    A(f'buffer_load_dwordx4 {v(vHD)}, {srd(SRD_WS)}, {s(M_K2)} offen offset:1024 sc1 lds')

    def qq(i, t):
        b = v(S1 + (i * 2 + t) * 8, 8) if i < 2 else rreg(('q', i), t)
        return smf(QA + t * 4, MF + i * 4, b)

    def kq(i, t):
        b = v(S1 + (i * 2 + t) * 8, 8) if i < 2 else rreg(('k', i), t)
        return smf(KA + t * 4, MF + i * 4, b)

    def vq(i, t):
        return smf(VA + t * 4, MF + i * 4, rreg(('v', i), t))

    def epi(acc, sel):
        f = []
        for t in (0, 1):
            r = acc + t * 4
            f += [f'v_add_f32 {v(r)}, {v(r)}, {v(r + 1)}', f'v_add_f32 {v(r + 2)}, {v(r + 2)}, {v(r + 3)}',
                  f'v_cvt_pk_bf16_f32 {v(r)}, {v(r)}, {v(r + 2)}|'
                  f'ds_write_b16 {v(vQKw)}, {v(r)} offset:{sel * 2048 + t * 256}|'
                  f'ds_write_b16_d16_hi {v(vQKw)}, {v(r)} offset:{sel * 2048 + t * 256 + 16}']
        return f

    km_ = [kq(i, t) for i in range(8) for t in (0, 1)]
    vs_ = [vq(i, t) for i in range(8) for t in (0, 1)]
    KXR, QF = S1, S1 + 16
    ops = {2: [f'buffer_load_dwordx4 {v(VX, 4)}, {v(vVr)}, {srd(SRD_WS)}, {s(M_V)} offen sc1'],
           4: [f'buffer_load_dwordx4 {v(VX + 4, 4)}, {v(vVr)}, {srd(SRD_WS)}, {s(M_V)} offen offset:256 sc1'],
           6: [f'buffer_store_dwordx4 {v(EXR, 4)}, {v(vL16)}, {srd(SRD_WS)}, {s(M_EXO)} offen sc1']}
    kops = {1: [f'buffer_load_dword {v(vTouch)}, {v(vTa)}, {srd(SRD_WS)}, {s(M_K)} offen sc1']}
    nyoung = 4
    fx = []
    if has_sig:
        sg = ''
        if PROFILE[0]:
            sg = (f's_memrealtime s[100:101]|s_waitcnt lgkmcnt(0)|s_or_b32 s100, s100, 1|'
                  f'v_mov_b32 {v(vOne)}, s100|')
        fx.append(sg + f's_mov_b64 exec, 1|buffer_store_dword {v(vOne)}, off, {srd(SRD_WS)}, '
                  f'{s(M_SIG)} sc1|s_mov_b64 exec, -1')
        nyoung += 1
    if poll_in:
        fx.append(f'buffer_load_dword {v(vFv)}, {v(vFl)}, {srd(SRD_WS)}, {s(M_FP2)} offen sc1')
        nyoung += 1
    kops[3] = fx
    kl = []
    for i in (0, 1):
        for t in (0, 1):
            kl += lread(('k', i), t, S1 + (i * 2 + t) * 8)
    nk = 0
    for i in range(8):
        A(f's_waitcnt lgkmcnt({7 - i + nk})')
        A(qq(i, 0))
        A(qq(i, 1))
        if i in (1, 2):
            emit(kl[(i - 1) * 4:(i - 1) * 4 + 4])
            nk += 4
        emit(ops.get(i, []))
    st('Qissued')
    A('s_waitcnt lgkmcnt(0)')
    fq = epi(QA, 0)
    for n in range(13):
        A(km_[n])
        if 5 <= n < 11:
            emit([fq.pop(0)])
        emit(kops.get(n, []))
    A(f's_waitcnt vmcnt({nyoung}) lgkmcnt(0)')
    A('s_barrier')
    st('B2q')
    A(f'ds_read_b128 {v(QF, 4)}, {v(vQr)}')
    for f in range(2):
        A(f'ds_read_b128 {v(KXR + f * 4, 4)}, {v(vHi)} offset:{hi(L_KX) + f * 1024}')
    A(f'ds_read_b128 {v(QF + 4, 4)}, {v(vQr)} offset:512')
    for f in range(2, 4):
        A(f'ds_read_b128 {v(KXR + f * 4, 4)}, {v(vHi)} offset:{hi(L_KX) + f * 1024}')
    for ks in (2, 3):
        A(f'ds_read_b128 {v(QF + ks * 4, 4)}, {v(vQr)} offset:{ks * 512}')
    A(f'buffer_store_dwordx4 {v(NEG, 4)}, {v(vL16)}, {srd(SRD_WS)}, {s(M_PRO)} offen offset:1024{XS}')
    emit(km_[13:16])
    emit(vs_[0:4])
    st('Kissued')
    SX = QA
    SMA = E

    def sx(ks, t):
        cin = '0' if ks == 0 else v(SX + t * 4, 4)
        return (f'v_mfma_f32_16x16x32_bf16 {v(SX + t * 4, 4)}, {v(KXR + ((ks & 1) * 2 + t) * 4, 4)}, '
                f'{v(QF + ks * 4, 4)}, {cin}')

    fk = epi(KA, 1)
    A('s_waitcnt lgkmcnt(2)')
    mix([sx(0, 0), sx(0, 1)], fk, 2)
    A(f'ds_read_b128 {v(KXR, 4)}, {v(vHi)} offset:{hi(L_KX) + 4096}')
    A(f'ds_read_b128 {v(KXR + 4, 4)}, {v(vHi)} offset:{hi(L_KX) + 5120}')
    mix([sx(1, 0), sx(1, 1)], fk, 2)
    assert not fk
    A(f'ds_read_b128 {v(KXR + 8, 4)}, {v(vHi)} offset:{hi(L_KX) + 6144}')
    A(f'ds_read_b128 {v(KXR + 12, 4)}, {v(vHi)} offset:{hi(L_KX) + 7168}')
    emit(vs_[4:8])
    A('s_waitcnt lgkmcnt(2)')
    A('s_barrier')
    st('B2k')
    KMF = MF
    for ks in range(4):
        A(f'ds_read_b128 {v(KMF + ks * 4, 4)}, {v(vKMr)} offset:{ks * 512}')
    A(f'buffer_store_dwordx4 {v(NEG, 4)}, {v(vL16)}, {srd(SRD_WS)}, {s(M_PRO)} offen{XS}')
    A(sx(2, 0))
    A(sx(2, 1))
    A('s_waitcnt lgkmcnt(4)')
    A(sx(3, 0))
    A(sx(3, 1))
    emit(vs_[8:11])

    def sm(ks):
        cin = '0' if ks == 0 else v(SMA, 4)
        return f'v_mfma_f32_16x16x32_bf16 {v(SMA, 4)}, {v(KMF + ks * 4, 4)}, {v(QF + ks * 4, 4)}, {cin}'

    mt, m2 = t0, t1
    tv = [SX + i for i in range(8)]
    PB = KA
    LT = KA + 4
    ft = [f'v_max3_f32 {v(mt)}, {v(tv[0])}, {v(tv[1])}, {v(tv[2])}',
          f'v_max3_f32 {v(m2)}, {v(tv[3])}, {v(tv[4])}, {v(tv[5])}',
          f'v_max3_f32 {v(mt)}, {v(mt)}, {v(tv[6])}, {v(tv[7])}',
          f'v_max_f32 {v(mt)}, {v(mt)}, {v(m2)}',
          f'v_mov_b32 {v(m2)}, {v(mt)}',
          's_nop 0']
    A('s_waitcnt lgkmcnt(0)')
    A(sm(0))
    mix([sm(ks) for ks in range(1, 4)], ft, 2)
    st('Smissued')
    fl = []
    for ks in (0, 1):
        for t in (0, 1):
            fl += lread(('o', 0, ks), t, S1 + (t * 2 + ks) * 8)
    mm, m3 = SMA + 2, SMA + 3
    A(vs_[11])
    A(f'v_permlane16_swap_b32 {v(mt)}, {v(m2)}')
    A(f'v_max_f32 {v(mt)}, {v(mt)}, {v(m2)}')
    A(f'v_mov_b32 {v(m2)}, {v(mt)}')
    A(vs_[12])
    emit(fl[0:4])
    A(f'v_permlane32_swap_b32 {v(mt)}, {v(m2)}')
    A(f'v_max_f32 {v(mt)}, {v(mt)}, {v(m2)}')
    A(vs_[13])
    emit(fl[4:8])
    A(f'v_mul_f32 {v(mt)}, {s(M_C)}, {v(mt)}')
    A(f'v_max_f32 {v(mm)}, {v(SMA)}, {v(SMA + 1)}')
    A(vs_[14])
    A(f'v_mov_b32 {v(m3)}, {v(mm)}')
    for r in tv[0:2]:
        A(f'v_fma_f32 {v(r)}, {v(r)}, {s(M_C)}, -{v(mt)}')
    A(f'v_permlane16_swap_b32 {v(mm)}, {v(m3)}')
    A(vs_[15])
    A(f'v_max_f32 {v(mm)}, {v(mm)}, {v(m3)}')
    A(f'v_mov_b32 {v(m3)}, {v(mm)}')
    for r in tv[2:4]:
        A(f'v_fma_f32 {v(r)}, {v(r)}, {s(M_C)}, -{v(mt)}')
    A(f'v_permlane32_swap_b32 {v(mm)}, {v(m3)}')
    for r in tv[4:8]:
        A(f'v_fma_f32 {v(r)}, {v(r)}, {s(M_C)}, -{v(mt)}')
    for r in tv:
        A(f'v_exp_f32 {v(r)}, {v(r)}')
    A(f'v_max_f32 {v(mm)}, {v(mm)}, {v(m3)}')
    for j in range(4):
        A(f'v_cvt_pk_bf16_f32 {v(PB + j)}, {v(tv[2 * j])}, {v(tv[2 * j + 1])}')
    A(f'v_mul_f32 {v(mm)}, {s(M_C)}, {v(mm)}')
    A(f'v_max_f32 {v(mm)}, {v(mm)}, {v(mt)}')
    OT = QA
    A(f's_waitcnt vmcnt({nyoung})')
    A(f'v_mfma_f32_16x16x32_bf16 {v(OT, 4)}, {v(VX, 4)}, {v(PB, 4)}, 0')
    A(f'v_fma_f32 {v(SMA)}, {v(SMA)}, {s(M_C)}, -{v(mm)}')
    A(f'v_fma_f32 {v(SMA + 1)}, {v(SMA + 1)}, {s(M_C)}, -{v(mm)}')
    A(f'v_mfma_f32_16x16x32_bf16 {v(OT + 4, 4)}, {v(VX + 4, 4)}, {v(PB, 4)}, 0')
    A(f'v_sub_f32 {v(mt)}, {v(mt)}, {v(mm)}')
    A(f'v_exp_f32 {v(SMA)}, {v(SMA)}')
    A(f'v_mfma_f32_16x16x32_bf16 {v(LT, 4)}, {v(ONES, 4)}, {v(PB, 4)}, 0')
    A(f'v_exp_f32 {v(SMA + 1)}, {v(SMA + 1)}')
    A(f'v_exp_f32 {v(mt)}, {v(mt)}')
    for t in (0, 1):
        r = VA + t * 4
        A(f'v_add_f32 {v(r)}, {v(r)}, {v(r + 1)}')
        A(f'v_add_f32 {v(r + 2)}, {v(r + 2)}, {v(r + 3)}')
    A(f'v_cvt_pk_bf16_f32 {v(t2)}, {v(SMA)}, {v(SMA + 1)}')
    for t in (0, 1):
        r = VA + t * 4
        A(f'v_cvt_pk_bf16_f32 {v(r)}, {v(r)}, {v(r + 2)}')
        A(f'v_mov_b32 {v(r + 1)}, 0')
    PME, PMO = SMA, SMA + 2
    A(f'v_cndmask_b32 {v(PME)}, {v(t2)}, 0, {s(M_ODD, 2)}')
    A(f'v_cndmask_b32 {v(PMO)}, 0, {v(t2)}, {s(M_ODD, 2)}')
    A(f'v_mov_b32 {v(PME + 1)}, 0')
    A(f'v_mov_b32 {v(PMO + 1)}, 0')
    A(f'v_mov_b32 {v(t3)}, 0')
    A(f'v_mul_f32 {v(LT)}, {v(LT)}, {v(mt)}')
    for r in range(4):
        A(f'v_cndmask_b32 {v(OT + r)}, {v(OT + r)}, {v(OT + 4 + r)}, {s(M_ODD, 2)}')
    A(f'v_mfma_f32_16x16x16_bf16 {v(LT, 4)}, {v(ONES, 2)}, {v(t2, 2)}, {v(LT, 4)}')
    for r in range(4):
        A(f'v_mul_f32 {v(OT + r)}, {v(OT + r)}, {v(mt)}')
    st('softdone')
    for t in (0, 1):
        A(f'ds_write_b32 {v(vVMw)}, {v(VA + t * 4)} offset:{t * 128}')
    A(f'v_mfma_f32_16x16x16_bf16 {v(OT, 4)}, {v(VA, 2)}, {v(PME, 2)}, {v(OT, 4)}')
    A(f'v_mfma_f32_16x16x16_bf16 {v(OT, 4)}, {v(VA + 4, 2)}, {v(PMO, 2)}, {v(OT, 4)}')
    A(f'v_rcp_f32 {v(LT)}, {v(LT)}')
    for ks in (0, 1):
        emit(lread(('o', 3, ks), 0, MF + ks * 8))
    emit(zero(MF + 16, 8))
    for r in range(4):
        A(f'v_mul_f32 {v(OT + r)}, {v(OT + r)}, {v(LT)}')
    A(f'v_cvt_pk_bf16_f32 {v(t2)}, {v(OT)}, {v(OT + 1)}')
    A(f'v_cvt_pk_bf16_f32 {v(t3)}, {v(OT + 2)}, {v(OT + 3)}')
    A(f'ds_write_b64 {v(vOw)}, {v(t2, 2)}')
    emit(zero(KA, 16))
    st('preB3')
    A('s_waitcnt lgkmcnt(0)')
    A('s_barrier')
    st('B3')
    done = A.newlabel('tdone')
    OF = VX
    A(f'ds_read_b128 {v(OF, 4)}, {v(vHi)} offset:{hi(L_O)}')
    A(f'ds_read_b128 {v(OF + 4, 4)}, {v(vHi)} offset:{hi(L_O) + 1024}')
    A(f's_cmp_ge_u32 {s(M_STEP)}, {nsteps - 1}')
    A(f's_cbranch_scc1 {done}')
    emit(zero(MF + 24, 8))
    oacc = [KA, KA + 4, VA, VA + 4, MF + 16, MF + 20, MF + 24, MF + 28]

    def wo(i, ks):
        if i < 2:
            return v(S1 + (i * 2 + ks) * 8, 8)
        if i < 6:
            return rreg(('o', i >> 1, ks), i & 1)
        if i == 6:
            return v(MF + ks * 8, 8)
        return v(S1 + ks * 8, 8)

    om = [smf(oacc[i], OF + ks * 4, wo(i, ks)) for i in range(8) for ks in (0, 1)]
    PK = QA

    def oadd(i):
        r = oacc[i]
        return [f'v_add_f32 {v(r)}, {v(r)}, {v(r + 1)}', f'v_add_f32 {v(r + 2)}, {v(r + 2)}, {v(r + 3)}']

    def opack(h, half):
        i0 = 4 * h + 2 * half
        f = []
        for rr in (0, 1):
            d = PK + h * 4 + rr * 2 + half
            f.append(f'v_cvt_pk_bf16_f32 {v(d)}, {v(oacc[i0] + rr * 2)}, {v(oacc[i0 + 1] + rr * 2)}')
        for rr in (0, 1):
            d = PK + h * 4 + rr * 2 + half
            f.append(f'v_min_u32 {v(d)}, -2, {v(d)}')
        return f

    def pstore(h):
        return (f'buffer_store_dwordx4 {v(PK + h * 4, 4)}, {v(vPw)}, {srd(SRD_WS)}, '
                f'{s(M_PW if h == 0 else M_PW2)} offen{XS}')

    A('s_waitcnt lgkmcnt(1)')
    A(om[0])
    A('s_waitcnt lgkmcnt(0)')
    A(om[1])
    f7 = lread(('o', 3, 0), 1, S1) + lread(('o', 3, 1), 1, S1 + 8)
    mix(om[2:4], f7, 2)
    A(om[4])
    SELR = S1 + 16
    A(f'ds_read_b128 {v(SELR, 4)}, {v(vHi)} offset:{hi(L_SEL)}')
    fo = oadd(0) + oadd(1) + opack(0, 0) + oadd(2) + oadd(3) + opack(0, 1) + [pstore(0)] + oadd(4)
    mix(om[5:14], fo, 2)
    A('s_waitcnt lgkmcnt(0)')
    fo += oadd(5) + opack(1, 0)
    mix(om[14:16], fo, 2)
    st('outissued')
    emit(fo)
    emit(oadd(6) + oadd(7) + opack(1, 1) + [pstore(1)])
    st('pstored')
    RD, RA = MF, MF + 8
    A(f'v_mov_b64 {v(NEG, 2)}, -1')
    A(f'v_mov_b64 {v(NEG + 2, 2)}, -1')
    A(f's_mov_b32 {s(M_SPIN)}, 0')
    if tune.get('d1'):
        A(f's_sleep {tune["d1"]}')
    p1 = A.newlabel('tp1')
    A.label(p1)
    A(f'buffer_load_dwordx4 {v(RD, 4)}, {v(vL16)}, {srd(SRD_WS)}, {s(M_PR)} offen sc1')
    A(f'buffer_load_dwordx4 {v(RD + 4, 4)}, {v(vL16)}, {srd(SRD_WS)}, {s(M_PR)} offen offset:1024 sc1')
    A('s_mov_b64 exec, -1')
    A(f's_add_u32 {s(M_SPIN)}, {s(M_SPIN)}, 1')
    A(f's_cmp_gt_u32 {s(M_SPIN)}, {SPIN_LIMIT * 4}')
    A(f's_cbranch_scc1 {end_label}')
    A('s_waitcnt vmcnt(0)')
    A(f'v_mfma_f32_16x16x32_bf16 {v(RA, 4)}, {v(SELR, 4)}, {v(RD, 4)}, 0')
    A(f'v_max3_u32 {v(t0)}, {v(RD)}, {v(RD + 1)}, {v(RD + 2)}')
    A(f'v_max3_u32 {v(t1)}, {v(RD + 3)}, {v(RD + 4)}, {v(RD + 5)}')
    A(f'v_mfma_f32_16x16x32_bf16 {v(RA, 4)}, {v(SELR, 4)}, {v(RD + 4, 4)}, {v(RA, 4)}')
    A(f'v_max3_u32 {v(t0)}, {v(t0)}, {v(RD + 6)}, {v(RD + 7)}')
    A(f'v_max_u32 {v(t0)}, {v(t0)}, {v(t1)}')
    A(f'v_cmp_eq_u32 vcc, -1, {v(t0)}')
    A('s_mov_b64 exec, vcc')
    A(f's_cbranch_vccnz {p1}')
    A('s_mov_b64 exec, -1')
    st('p1ok')
    for sh in (4, 8):
        for r in range(4):
            A(f'v_add_f32_dpp {v(RA + r)}, {v(RA + r)}, {v(RA + r)} row_ror:{sh} row_mask:0xf bank_mask:0xf')
    A(f'v_cvt_pk_bf16_f32 {v(t0)}, {v(RA)}, {v(RA + 1)}')
    A(f'v_cvt_pk_bf16_f32 {v(t1)}, {v(RA + 2)}, {v(RA + 3)}')
    A(f'v_min_u32 {v(t0)}, -2, {v(t0)}')
    A(f'v_min_u32 {v(t1)}, -2, {v(t1)}')
    A(f's_mov_b64 exec, {s(M_PUBX, 2)}')
    A(f'buffer_store_dwordx2 {v(t0, 2)}, {v(vPub)}, {srd(SRD_WS)}, {s(M_MP)} offen{XS}')
    A(f'buffer_store_dwordx2 {v(NEG, 2)}, {v(vPub)}, {srd(SRD_WS)}, {s(M_MRS)} offen{XS}')
    A('s_mov_b64 exec, -1')
    st('published')
    A(f's_add_u32 {s(M_STEP)}, {s(M_STEP)}, 1')
    A(f's_lshl_b32 {s(M_T1)}, {s(S_WAVE)}, 11')
    A(f's_add_u32 {s(M_MRD)}, {s(M_MP)}, {s(M_T1)}')
    A(f's_mov_b32 {s(M_SPIN)}, 0')
    first = [True]
    p2 = A.newlabel('tp2')
    p2b = A.newlabel('tp2b')
    c0 = VX

    def p2_loads():
        for j in range(2):
            A(f'buffer_load_dwordx4 {v(MF + j * 4, 4)}, {v(vL16)}, {srd(SRD_WS)}, {s(M_MRD)} offen '
              f'offset:{j * 1024} sc1')

    p2_loads()
    A(f'ds_read_b128 {v(EXR, 4)}, {v(vEx)}')
    A(f's_mov_b32 {s(M_SIG)}, {s(M_SIG2)}')
    A(f's_cmp_eq_u32 {s(S_WAVE)}, 2')
    A(f's_cselect_b32 {s(M_SIG2)}, {s(M_FOUT)}, {OOB}')
    A(f's_add_u32 {s(M_FOUT)}, {s(M_FOUT)}, 1024')
    A(f's_mov_b32 {s(M_EXO)}, {s(M_EXP)}')
    A(f's_add_u32 {s(M_EXP)}, {s(M_EXP)}, 65536')
    A(f's_mov_b32 {s(M_PRO)}, {s(M_PR)}')
    A(f's_add_u32 {s(M_K)}, {s(M_K)}, 262144')
    A(f's_add_u32 {s(M_V)}, {s(M_V)}, 262144')
    prep_step()
    A(f's_branch {p2b}')
    A.label(p2)
    p2_loads()
    A('s_mov_b64 exec, -1')
    A(f's_add_u32 {s(M_SPIN)}, {s(M_SPIN)}, 1')
    A(f's_cmp_gt_u32 {s(M_SPIN)}, {SPIN_LIMIT * 4}')
    A(f's_cbranch_scc1 {end_label}')
    A.label(p2b)
    for j in range(2):
        A(f's_waitcnt vmcnt({1 - j})')
        A(f'ds_write_b128 {v(vMw)}, {v(MF + j * 4, 4)} offset:{j * 1024}')
        r = MF + j * 4
        if j == 0:
            A(f'v_max3_u32 {v(c0)}, {v(r)}, {v(r + 1)}, {v(r + 2)}')
            A(f'v_max_u32 {v(c0)}, {v(c0)}, {v(r + 3)}')
        else:
            A(f'v_max3_u32 {v(c0)}, {v(c0)}, {v(r)}, {v(r + 1)}')
            A(f'v_max3_u32 {v(c0)}, {v(c0)}, {v(r + 2)}, {v(r + 3)}')
    A(f'v_cmp_eq_u32 vcc, -1, {v(c0)}')
    A('s_mov_b64 exec, vcc')
    A(f's_cbranch_vccnz {p2}')
    A('s_mov_b64 exec, -1')
    wait_flags()
    st('p2ok')
    st_flush()
    A(f's_branch {top}')
    A.label(done)
    A(f'ds_read_b128 {v(EXR, 4)}, {v(vEx)}')
    A('s_waitcnt lgkmcnt(0)')
    A(f'buffer_store_dwordx4 {v(EXR, 4)}, {v(vL16)}, {srd(SRD_WS)}, {s(M_EXP)} offen sc1')
    if has_sig:
        A('s_waitcnt vmcnt(0)')
        A('s_barrier')
        A(f's_cmp_lg_u32 {s(S_WAVE)}, 2')
        A(f's_cbranch_scc1 {end_label}')
        emit_signal(A, M_SIG2, vOne)
        emit_signal(A, M_FOUT, vOne)
    A(f's_branch {end_label}')
```

```python
from asmdsl import Asm, v, a, s
from layout import *
from roles import *
from team import *

X_BYTES = 2048 * 512 * 2
WQKV_BYTES = 512 * 4096 * 2
WGU_BYTES = 512 * 1792 * 2
SRD_DBG = 92
S_SLOT, S_LAYER, S_IDX, S_X = 96, 97, 98, 99

N_PROJ = 48
GROUP = [('rl2', 8), ('dn', 8), ('gu', 14), ('rl', 8), ('ao', 32)]
PASSES = [[(0, 4, 7), (28, 3, 4), (40, 1, 7)],
          [(1, 4, 7), (29, 3, 4), (47, 1, 17)],
          [(2, 4, 7), (30, 3, 4)],
          [(3, 4, 7)]]
assert sorted(st + sd * i for p in PASSES for st, sd, c in p for i in range(c)) == list(range(64))
GN = sum(n for _, n in GROUP)


N_INIT = 64


def read_counts(A, vdst, fail, vt=3):
    A(f'v_and_b32 {v(vt)}, 7, v2')
    A(f'v_lshlrev_b32 {v(vt)}, 2, {v(vt)}')
    A(f'v_cmp_ne_u32 vcc, 0, {v(vt)}')
    A(f'v_add_u32 {v(vdst)}, 128, {v(vt)}')
    A(f'v_cndmask_b32 {v(vt)}, 0, {v(vdst)}, vcc')
    A(f'buffer_load_dword {v(vdst)}, {v(vt)}, {srd(SRD_DBG)}, 0 offen sc1')
    A('s_waitcnt vmcnt(0)')
    for i in range(8):
        A(f'v_readlane_b32 s{80 + i}, {v(vdst)}, {i}')
    A('s_add_u32 s88, s80, s81')
    for i in range(2, 8):
        A(f's_add_u32 s88, s88, s{80 + i}')


def wait_init(A, fail, vt=3, vd=4):
    lp = A.newlabel('wi')
    dn = A.newlabel('wid')
    A(f'v_and_b32 {v(vt)}, 1, v2')
    A(f'v_lshlrev_b32 {v(vt)}, 7, {v(vt)}')
    A('s_mov_b32 s89, 0')
    A.label(lp)
    A(f'buffer_load_dword {v(vd)}, {v(vt)}, {srd(SRD_DBG)}, 0 offen offset:64 sc1')
    A('s_waitcnt vmcnt(0)')
    A(f'v_readlane_b32 s80, {v(vd)}, 0')
    A(f'v_readlane_b32 s81, {v(vd)}, 1')
    A('s_add_u32 s80, s80, s81')
    A(f's_cmp_ge_u32 s80, {N_INIT}')
    A(f's_cbranch_scc1 {dn}')
    A('s_sleep 8')
    A('s_add_u32 s89, s89, 1')
    A(f's_cmp_lt_u32 s89, {SPIN_LIMIT}')
    A(f's_cbranch_scc1 {lp}')
    A(f's_branch {fail}')
    A.label(dn)


def init_work(A, end):
    A(f's_mov_b32 s42, {s(S_IDX)}')
    pstamp(A, 0, 120)

    def fills():
        A('v_lshlrev_b32 v100, 4, v0')
        for i in range(4):
            A(f'v_mov_b32 v{104 + i}, 0')
            A(f'v_mov_b32 v{108 + i}, -1')
        A('s_mov_b32 s43, s42')
        for u in range(256 // N_INIT):
            A('s_lshl_b32 s50, s43, 12')
            A(f'buffer_store_dwordx4 v[104:107], v100, {srd(SRD_WS)}, s50 offen sc1')
            A(f's_add_u32 s51, s50, {TM}')
            A('s_cmp_lt_u32 s43, 16')
            A(f's_cselect_b32 s51, s51, {OOB}')
            A(f'buffer_store_dwordx4 v[108:111], v100, {srd(SRD_WS)}, s51 offen sc1')
            A('s_lshl_b32 s50, s43, 13')
            A(f's_add_u32 s50, s50, {TP}')
            A(f'buffer_store_dwordx4 v[108:111], v100, {srd(SRD_WS)}, s50 offen sc1')
            A('s_add_u32 s50, s50, 4096')
            A(f'buffer_store_dwordx4 v[108:111], v100, {srd(SRD_WS)}, s50 offen sc1')
            A(f's_add_u32 s43, s43, {N_INIT}')
        return 4 * (256 // N_INIT)

    ptr_srd(A, SRD_A, KA_X, X_BYTES)
    A('s_lshl_b32 s24, s42, 2')
    A('s_add_u32 s24, s24, s3')
    A('s_lshl_b32 s25, s24, 12')
    A('s_lshr_b32 s27, s24, 3')
    A('s_lshl_b32 s27, s27, 15')
    A('s_and_b32 s31, s24, 7')
    A('s_lshl_b32 s31, s31, 6')
    A('s_add_u32 s27, s27, s31')
    A(f's_add_u32 s27, s27, {XN}')
    ln_wave(A, SRD_A, 25, 27, 2, 256 * 4096, 32 * 32768, between=fills)
    pstamp(A, 1, 120)
    A('s_waitcnt vmcnt(0)')
    pstamp(A, 2, 120)
    A('s_barrier')
    sk = A.newlabel('iws')
    A(f's_cmp_lg_u32 {s(S_WAVE)}, 0')
    A(f's_cbranch_scc1 {sk}')
    A(f's_and_b32 s40, {s(S_SLOT)}, 1')
    A('s_lshl_b32 s40, s40, 7')
    A('v_mov_b32 v4, 1')
    A('s_mov_b64 exec, 1')
    A(f'buffer_atomic_add v4, off, {srd(SRD_DBG)}, s40 offset:64 sc1')
    A('s_mov_b64 exec, -1')
    A.label(sk)


def assign_slot(A, end, fake_xcc=None):
    A(f's_getreg_b32 {s(S_X)}, hwreg(HW_REG_XCC_ID)')
    A(f's_and_b32 {s(S_X)}, {s(S_X)}, 7')
    if fake_xcc:
        A(fake_xcc)
    have = A.newlabel('tick')
    A(f's_cmp_lg_u32 {s(S_WAVE)}, 0')
    A(f's_cbranch_scc1 {have}')
    A(f's_lshl_b32 s40, {s(S_X)}, 2')
    A('s_add_u32 s40, s40, 128')
    A(f's_cmp_eq_u32 {s(S_X)}, 0')
    A('s_cselect_b32 s40, 0, s40')
    A('v_mov_b32 v4, 1')
    A('v_mov_b32 v5, 0')
    A('s_mov_b64 exec, 1')
    A(f'buffer_atomic_add v4, off, {srd(SRD_DBG)}, s40 sc0 sc1')
    A('s_waitcnt vmcnt(0)')
    A('ds_write_b32 v5, v4')
    A('s_mov_b64 exec, -1')
    A('s_waitcnt lgkmcnt(0)')
    A.label(have)
    A('s_barrier')
    A('v_mov_b32 v5, 0')
    A('ds_read_b32 v4, v5')
    A('s_waitcnt lgkmcnt(0)')
    A('v_readfirstlane_b32 s41, v4')
    A('s_barrier')
    A(f's_lshl_b32 {s(S_SLOT)}, {s(S_X)}, 5')
    A(f's_add_u32 {s(S_SLOT)}, {s(S_SLOT)}, s41')
    ok = A.newlabel('slotok')
    A('s_cmp_lt_u32 s41, 32')
    A(f's_cbranch_scc1 {ok}')
    lp = A.newlabel('surp')
    A('s_mov_b32 s42, 0')
    A.label(lp)
    A('s_add_u32 s42, s42, 1')
    A(f's_cmp_gt_u32 s42, {SPIN_LIMIT}')
    A(f's_cbranch_scc1 {end}')
    read_counts(A, 4, end)
    A('s_cmp_lt_u32 s88, 256')
    A(f's_cbranch_scc1 {lp}')
    A('s_sub_u32 s43, s41, 32')
    for i in range(8):
        A(f's_max_u32 s89, s{80 + i}, 32')
        A('s_sub_u32 s89, s89, 32')
        A(f's_cmp_gt_u32 {s(S_X)}, {i}')
        A('s_cselect_b32 s89, s89, 0')
        A('s_add_u32 s43, s43, s89')
    for i in range(8):
        nx = A.newlabel('hole')
        A(f's_min_u32 s89, s{80 + i}, 32')
        A('s_sub_u32 s90, 32, s89')
        A('s_cmp_lt_u32 s43, s90')
        A(f's_cbranch_scc0 {nx}')
        A(f's_add_u32 {s(S_SLOT)}, s89, s43')
        A(f's_add_u32 {s(S_SLOT)}, {s(S_SLOT)}, {i * 32}')
        A(f's_branch {ok}')
        A.label(nx)
        A('s_sub_u32 s43, s43, s90')
    A(f's_branch {end}')
    A.label(ok)


def ptr_srd(A, sreg, ka, nbytes):
    A(f's_load_dwordx2 {s(sreg, 2)}, s[0:1], {ka}')
    A('s_waitcnt lgkmcnt(0)')
    A(f's_mov_b32 {s(sreg + 2)}, {nbytes}')
    A(f's_mov_b32 {s(sreg + 3)}, 0x00020000')


def proj_params(A, layer, seg0, nseg, is_v):
    A(f's_mov_b32 {s(G_IN)}, {XN + layer * 4 * MB + seg0 * 32768}')
    A('s_lshl_b32 s27, s42, 14')
    if is_v:
        A('s_lshr_b32 s40, s3, 1')
        A('s_lshl_b32 s40, s40, 13')
        A('s_add_u32 s27, s27, s40')
        A('s_and_b32 s40, s3, 1')
        A('s_lshl_b32 s40, s40, 10')
        A('s_add_u32 s27, s27, s40')
        A(f's_add_u32 s27, s27, {VT + layer * 16 * MB + seg0 * 262144}')
    else:
        A('s_lshl_b32 s40, s3, 12')
        A('s_add_u32 s27, s27, s40')
        A('s_lshl_b32 s40, s43, 25')
        A('s_add_u32 s27, s27, s40')
        A(f's_add_u32 s27, s27, {QB + layer * 16 * MB + seg0 * 262144}')
    assert KB - QB == 1 << 25
    A(f's_mov_b32 {s(G_CNT)}, {nseg}')
    A(f's_mov_b32 {s(G_FIN)}, {flag_base(ST_RL2, 0) + seg0 * 1024}')
    A(f's_lshl_b32 {s(G_FOUT)}, s43, 6')
    A('s_lshl_b32 s40, s42, 2')
    A(f's_add_u32 {s(G_FOUT)}, {s(G_FOUT)}, s40')
    A(f's_add_u32 {s(G_FOUT)}, {s(G_FOUT)}, {flag_base(ST_PROJ, layer) + seg0 * 1024}')


def build_mega(K, force_slow=False, fake_xcc=None, tune=None, stamp=False):
    A = K.A
    end = K.end
    A('s_cmp_ge_u32 s2, 256')
    A(f's_cbranch_scc1 {end}')
    load_srds(A, [(SRD_WS, KA_WS, WS_BYTES), (SRD_DBG, KA_DBG, 256)])
    wave_setup(A)
    if PROFILE[0]:
        A('s_lshl_b32 s40, s2, 2')
        A(f's_add_u32 s40, s40, {TCTL + 131072}')
        emit_signal(A, 40, 4)
    assign_slot(A, end, fake_xcc)
    if PROFILE[0]:
        A('s_lshl_b32 s40, s2, 2')
        A(f's_add_u32 s40, s40, {TCTL + 131072 + 1024}')
        emit_signal(A, 40, 4)
    L = {n: A.newlabel('r_' + n) for n in ('team', 'proj', 'init', 'group', 'ao', 'gu', 'dn', 'rl', 'rl2')}
    A(f's_cmp_lt_u32 {s(S_SLOT)}, 32')
    A(f's_cbranch_scc1 {L["team"]}')
    A('s_mov_b32 s44, 2')
    A(f's_sub_u32 s45, {s(S_SLOT)}, 32')
    A(f's_cmp_lt_u32 {s(S_SLOT)}, 64')
    A(f's_cbranch_scc1 {L["proj"]}')
    A(f's_and_b32 s40, {s(S_SLOT)}, 31')
    A('s_mul_i32 s40, s40, 6')
    A(f's_lshr_b32 s41, {s(S_SLOT)}, 5')
    A('s_add_u32 s40, s40, s41')
    A(f's_sub_u32 {s(S_IDX)}, s40, 2')
    A(f's_mov_b32 s44, 0')
    A(f's_mov_b32 s45, {s(S_IDX)}')
    A(f's_cmp_lt_u32 {s(S_IDX)}, {N_PROJ}')
    A(f's_cbranch_scc1 {L["proj"]}')
    A(f's_sub_u32 {s(S_IDX)}, {s(S_IDX)}, {N_PROJ}')
    A(f's_mov_b32 {s(S_LAYER)}, 0')
    A(f's_cmp_lt_u32 {s(S_IDX)}, {N_INIT}')
    A(f's_cbranch_scc1 {L["init"]}')
    A(f's_cmp_lt_u32 {s(S_IDX)}, {GN}')
    A(f's_cbranch_scc1 {L["group"]}')
    A(f's_sub_u32 {s(S_IDX)}, {s(S_IDX)}, {GN}')
    A(f's_mov_b32 {s(S_LAYER)}, 1')
    A('s_mov_b32 s44, 3')
    A(f's_sub_u32 s45, {s(S_IDX)}, {N_PROJ + 16 - 38}')
    A(f's_cmp_ge_u32 {s(S_IDX)}, {N_PROJ + 16}')
    A(f's_cbranch_scc1 {L["proj"]}')
    A(f's_mov_b32 s44, 1')
    A(f's_mov_b32 s45, {s(S_IDX)}')
    A(f's_cmp_lt_u32 {s(S_IDX)}, {N_PROJ}')
    A(f's_cbranch_scc1 {L["proj"]}')
    A('s_mov_b32 s44, 2')
    A(f's_sub_u32 s45, {s(S_IDX)}, 16')

    A.label(L['proj'])
    A('s_lshr_b32 s43, s45, 4')
    A('s_and_b32 s42, s45, 15')
    A('s_lshl_b32 s40, s43, 3')
    A(f's_add_u32 s40, s40, {KA_WQ}')
    A(f's_load_dwordx2 {s(SRD_A, 2)}, s[0:1], s40')
    A('s_waitcnt lgkmcnt(0)')
    A(f's_mov_b32 {s(SRD_A + 2)}, {WQKV_BYTES}')
    A(f's_mov_b32 {s(SRD_A + 3)}, 0x00020000')
    A('s_lshl_b32 s24, s42, 9')
    A('s_lshl_b32 s40, s3, 7')
    A('s_add_u32 s24, s24, s40')
    A('s_add_u32 s25, s24, 64')
    lv = A.newlabel('pv')
    A('s_cmp_eq_u32 s43, 2')
    A(f's_cbranch_scc1 {lv}')
    for is_v in (False, True):
        mode = 'v' if is_v else 'qk'
        if is_v:
            A.label(lv)
        pstamp(A, 5, 3)
        A('s_waitcnt vmcnt(0)')
        gemm_setup(A, 32, mode, 8192, SRD_A, SRD_A)
        pstamp(A, 6, 3)
        wait_init(A, end)
        pstamp(A, 7, 3)
        A('s_lshl_b32 s41, s44, 2')
        again = A.newlabel('pagain')
        l2 = A.newlabel('pl2')
        fin = A.newlabel('pfin')
        go = A.newlabel('pgo')
        A.label(again)
        for si, ps in enumerate(PASSES):
            for pi, (st, sd, cnt) in enumerate(ps):
                A(f's_mov_b32 s50, {st | (sd << 8) | (cnt << 16)}')
                A(f's_cmp_eq_u32 s41, {si * 4 + pi}')
                A(f's_cbranch_scc1 {go}')
        A(f's_branch {fin}')
        A.label(go)
        proj_params(A, 0, 0, 1, is_v)
        A('s_and_b32 s51, s50, 255')
        A('s_lshl_b32 s40, s51, 15')
        A(f's_add_u32 {s(G_IN)}, {s(G_IN)}, s40')
        A('s_lshl_b32 s40, s51, 18')
        A(f's_add_u32 {s(G_OUT)}, {s(G_OUT)}, s40')
        A('s_lshl_b32 s40, s51, 10')
        A(f's_add_u32 {s(G_FOUT)}, {s(G_FOUT)}, s40')
        A('s_bfe_u32 s51, s50, 0x80008')
        A('s_lshl_b32 s47, s51, 15')
        A('s_lshl_b32 s48, s51, 18')
        A('s_lshl_b32 s49, s51, 10')
        A(f's_lshr_b32 {s(G_CNT)}, s50, 16')
        gemm_loop(A, 32, mode, 's47', 's48', end, flags=dict(n=1, fout_step='s49', poll_in=False))
        A('s_barrier')
        A('s_add_u32 s41, s41, 1')
        A(f's_branch {again}')
        A.label(fin)
        A('s_cmp_eq_u32 s44, 0')
        A(f's_cbranch_scc1 {l2}')
        A(f's_cmp_lt_u32 {s(S_SLOT)}, 64')
        A(f's_cbranch_scc1 {L["team"]}')
        A(f's_branch {L["group"]}')
        A.label(l2)
        proj_params(A, 1, 0, 64, is_v)
        gemm_loop(A, 32, mode, 32768, 262144, end,
                  flags=dict(n=4, fin_step=1024, fout_step=1024, poll_in=True))
        A(f's_branch {end}')

    A.label(L['init'])
    init_work(A, end)
    A('s_mov_b32 s44, 3')
    A(f's_mov_b32 s45, {s(S_IDX)}')
    A(f's_cmp_lt_u32 {s(S_IDX)}, 38')
    A(f's_cbranch_scc1 {L["proj"]}')
    A.label(L['group'])
    wait_init(A, end)
    A(f's_lshl_b32 s46, {s(S_LAYER)}, 16')
    for name, n in GROUP:
        A(f's_cmp_lt_u32 {s(S_IDX)}, {n}')
        A(f's_cbranch_scc1 {L[name]}')
        A(f's_sub_u32 {s(S_IDX)}, {s(S_IDX)}, {n}')
    A(f's_branch {end}')

    def own_flag(stage):
        A(f's_lshl_b32 {s(G_FOUT)}, {s(S_IDX)}, 2')
        A(f's_add_u32 {s(G_FOUT)}, {s(G_FOUT)}, s46')
        A(f's_add_u32 {s(G_FOUT)}, {s(G_FOUT)}, {flag_base(stage, 0)}')

    def part_out(base):
        A('s_lshl_b32 s27, s42, 21')
        A('s_lshl_b32 s40, s41, 11')
        A('s_add_u32 s27, s27, s40')
        A('s_lshl_b32 s40, s3, 9')
        A('s_add_u32 s27, s27, s40')
        A(f's_add_u32 s27, s27, {base}')

    A.label(L['ao'])
    ptr_srd(A, SRD_A, KA_WO, WQKV_BYTES)
    A(f's_and_b32 s41, {s(S_IDX)}, 1')
    A(f's_bfe_u32 s42, {s(S_IDX)}, 0x30001')
    A(f's_lshr_b32 s43, {s(S_IDX)}, 4')
    A('s_lshl_b32 s24, s42, 19')
    A('s_lshl_b32 s40, s41, 9')
    A('s_add_u32 s24, s24, s40')
    A('s_lshl_b32 s40, s3, 7')
    A('s_add_u32 s24, s24, s40')
    A('s_add_u32 s25, s24, 64')
    part_out(PO)
    A(f's_mul_i32 s40, s43, {PSEG}')
    A('s_add_u32 s27, s27, s40')
    A('s_mov_b32 s28, 32')
    A('s_lshl_b32 s47, s42, 2')
    A('s_add_u32 s47, s47, s3')
    A('s_lshl_b32 s48, s43, 5')
    A('s_add_u32 s48, s48, s47')
    A('s_lshl_b32 s40, s48, 13')
    A(f's_lshl_b32 s49, {s(S_LAYER)}, 24')
    A('s_add_u32 s40, s40, s49')
    A(f's_add_u32 s50, s40, {QB}')
    A(f's_add_u32 s51, s40, {KB}')
    A(f's_add_u32 s52, s40, {VT}')
    A('s_lshl_b32 s40, s48, 11')
    A(f's_lshl_b32 s49, {s(S_LAYER)}, 22')
    A('s_add_u32 s40, s40, s49')
    A(f's_add_u32 s53, s40, {KM}')
    A(f's_add_u32 s54, s40, {VM}')
    A('s_lshl_b32 s49, s43, 10')
    A('s_add_u32 s49, s49, s46')
    A('s_lshl_b32 s40, s47, 4')
    A('s_add_u32 s29, s49, s40')
    A(f's_add_u32 s29, s29, {flag_base(ST_TEAM, 0)}')
    A('s_lshr_b32 s40, s47, 1')
    A('s_lshl_b32 s40, s40, 2')
    A('s_add_u32 s55, s49, s40')
    A(f's_add_u32 s55, s55, {flag_base(ST_PROJ, 0)}')
    A(f's_and_b32 s40, {s(S_IDX)}, 15')
    A('s_lshl_b32 s40, s40, 2')
    A('s_add_u32 s30, s49, s40')
    A(f's_add_u32 s30, s30, {flag_base(ST_OUT, 0)}')
    ao_role(A, 2, end)

    A.label(L['gu'])
    ptr_srd(A, SRD_A, KA_WG, WGU_BYTES)
    ptr_srd(A, SRD_B, KA_WU, WGU_BYTES)
    A(f's_lshl_b32 s24, {s(S_IDX)}, 8')
    A('s_lshl_b32 s40, s3, 6')
    A('s_add_u32 s24, s24, s40')
    A('s_mov_b32 s25, s24')
    A(f's_lshl_b32 s26, {s(S_LAYER)}, 22')
    A(f's_add_u32 s26, s26, {XN + 2 * MB}')
    A(f's_lshl_b32 s27, {s(S_IDX)}, 13')
    A('s_lshl_b32 s40, s3, 11')
    A('s_add_u32 s27, s27, s40')
    A(f's_add_u32 s27, s27, {HB}')
    A('s_mov_b32 s28, 64')
    A(f's_add_u32 {s(G_FIN)}, s46, {flag_base(ST_RL, 0)}')
    own_flag(ST_GU)
    gemm_role(A, 32, 'gu', 3584, SRD_A, SRD_B, 32768, 224 * 512, end,
              flags=dict(n=4, fin_step=1024, fout_step=1024, poll_in=True))

    A.label(L['dn'])
    ptr_srd(A, SRD_A, KA_WD, WGU_BYTES)
    A(f's_and_b32 s41, {s(S_IDX)}, 1')
    A(f's_lshr_b32 s42, {s(S_IDX)}, 1')
    A(f's_mul_i32 s24, s42, {448 * 1024}')
    A('s_lshl_b32 s40, s41, 9')
    A('s_add_u32 s24, s24, s40')
    A('s_lshl_b32 s40, s3, 7')
    A('s_add_u32 s24, s24, s40')
    A('s_add_u32 s25, s24, 64')
    A(f's_mul_i32 s26, s42, {28 * 1024}')
    A(f's_add_u32 s26, s26, {HB}')
    part_out(PD)
    A('s_mov_b32 s28, 64')
    A(f's_mul_i32 {s(G_FIN)}, s42, 7')
    A(f's_lshr_b32 {s(G_FIN)}, {s(G_FIN)}, 1')
    A(f's_lshl_b32 {s(G_FIN)}, {s(G_FIN)}, 2')
    A(f's_add_u32 {s(G_FIN)}, {s(G_FIN)}, s46')
    A(f's_add_u32 {s(G_FIN)}, {s(G_FIN)}, {flag_base(ST_GU, 0)}')
    own_flag(ST_DN)
    gemm_role(A, 28, 'part', 1024, SRD_A, SRD_A, 224 * 512, PSEG, end,
              flags=dict(n=4, fin_step=1024, fout_step=1024, poll_in=True))

    for name, pbase, kbn, st_in, nfl, st_out in (('rl', PO, 8, ST_OUT, 16, ST_RL), ('rl2', PD, 4, ST_DN, 8, ST_RL2)):
        A.label(L[name])
        l1 = A.newlabel('rl_l1')
        A(f's_lshl_b32 s24, {s(S_IDX)}, 13')
        A('s_mov_b32 s25, s24')
        A('s_mov_b32 s26, s24')
        A(f's_add_u32 s24, s24, {pbase}')
        A(f's_lshr_b32 s41, {s(S_IDX)}, 2')
        A(f's_and_b32 s42, {s(S_IDX)}, 3')
        A('s_lshl_b32 s27, s41, 15')
        A('s_lshl_b32 s40, s42, 7')
        A('s_add_u32 s27, s27, s40')
        A('s_mov_b32 s28, 32')
        A('s_lshl_b32 s41, s41, 10')
        A('s_add_u32 s41, s41, s46')
        A(f's_add_u32 s29, s41, {flag_base(st_in, 0)}')
        A('s_lshl_b32 s40, s42, 2')
        A('s_add_u32 s30, s41, s40')
        A(f's_add_u32 s30, s30, {flag_base(st_out, 0)}')
        A(f's_cmp_eq_u32 {s(S_LAYER)}, 1')
        A(f's_cbranch_scc1 {l1}')
        for layer in (0, 1):
            which = layer * 2 + (0 if name == 'rl' else 1)
            if layer == 1:
                A.label(l1)
            if which == 0:
                ptr_srd(A, SRD_A, KA_X, X_BYTES)
            if which == 3:
                ptr_srd(A, SRD_B, KA_OUT, X_BYTES)
            if which > 0:
                A(f's_add_u32 s25, s25, {XR + (which - 1) * 2 * MB}')
            if which < 3:
                A(f's_add_u32 s26, s26, {XR + which * 2 * MB}')
            A(f's_add_u32 s27, s27, {XN + ((which + 1) & 3) * 2 * MB}')
            rl_role(A, kbn, SRD_A if which == 0 else SRD_WS, SRD_B if which == 3 else SRD_WS, which < 3,
                    dict(p=2 * PSEG, x=65536, xn=65536), end,
                    flags=dict(n=nfl, fin_step=2048, fout_step=2048, poll_in=True, signal=which < 3 or PROFILE[0], pair=True),
                    xin_sc1=which > 0, xout_sc1=which < 3)

    A.label(L['team'])
    load_srds(A, [(SRD_A, KA_WQ, WQKV_BYTES), (SRD_B, KA_WK, WQKV_BYTES),
                  (SRD_C, KA_WV, WQKV_BYTES), (SRD_D, KA_WO, WQKV_BYTES), (SRD_M0, KA_MEM0, 8192)])
    A(f's_lshr_b32 {s(S_LAYER)}, {s(S_SLOT)}, 5')
    A(f's_and_b32 {s(M_ME)}, {s(S_SLOT)}, 31')
    A(f's_lshl_b32 s40, {s(M_ME)}, 13')
    A(f's_lshl_b32 s41, {s(S_LAYER)}, 24')
    A('s_add_u32 s40, s40, s41')
    A(f's_add_u32 {s(M_K)}, s40, {KB}')
    A(f's_add_u32 {s(M_V)}, s40, {VT}')
    A(f's_lshl_b32 s40, {s(M_ME)}, 11')
    A(f's_lshl_b32 s41, {s(S_LAYER)}, 22')
    A('s_add_u32 s40, s40, s41')
    A(f's_add_u32 {s(M_KM)}, s40, {KM}')
    A(f's_add_u32 {s(M_VM)}, s40, {VM}')
    A(f's_lshl_b32 s40, {s(S_LAYER)}, 20')
    A(f's_add_u32 {s(M_TP)}, s40, {TP}')
    A(f's_lshl_b32 s40, {s(S_LAYER)}, 15')
    A(f's_add_u32 {s(M_TM)}, s40, {TM}')
    A(f's_lshl_b32 s41, {s(S_LAYER)}, 16')
    A(f's_lshr_b32 s40, {s(M_ME)}, 1')
    A('s_lshl_b32 s40, s40, 2')
    A('s_add_u32 s40, s40, s41')
    A(f's_add_u32 {s(M_FPR)}, s40, {flag_base(ST_PROJ, 0) + 64}')
    A(f's_lshl_b32 s40, {s(M_ME)}, 4')
    A('s_add_u32 s40, s40, s41')
    A(f's_add_u32 {s(M_FOUT)}, s40, {flag_base(ST_TEAM, 0)}')

    def purity(A):
        lp = A.newlabel('pur')
        dn = A.newlabel('purd')
        A(f's_mov_b32 {s(M_SPIN)}, 0')
        A.label(lp)
        A(f's_add_u32 {s(M_SPIN)}, {s(M_SPIN)}, 1')
        A(f's_cmp_gt_u32 {s(M_SPIN)}, {SPIN_LIMIT}')
        A(f's_cbranch_scc1 {end}')
        read_counts(A, 20, end, 21)
        A(f's_cmp_eq_u32 {s(S_LAYER)}, 0')
        A('s_cselect_b32 s89, s80, s81')
        A(f's_mov_b32 {s(M_FAST)}, 1')
        A('s_cmp_ge_u32 s89, 32')
        A(f's_cbranch_scc1 {dn}')
        A(f's_mov_b32 {s(M_FAST)}, 0')
        A('s_cmp_lt_u32 s88, 256')
        A(f's_cbranch_scc1 {lp}')
        A.label(dn)
        wait_init(A, end, 20, 21)

    team_role(A, end, flags=dict(poll_in=True, signal=True), force_slow=force_slow, purity=purity, tune=tune,
              stamp=stamp)
```

```python
import struct
from asmdsl import v, a, s
from layout import *

S_WG, S_WAVE = 2, 3
SRD_WS, SRD_A, SRD_B, SRD_C, SRD_D = 4, 8, 12, 16, 20
SPIN_LIMIT = 1 << 17


def f32bits(x):
    return struct.unpack('<I', struct.pack('<f', x))[0]


def srd(i):
    return s(i, 4)


def load_srds(A, items):
    for sreg, off, nb in items:
        A(f's_load_dwordx2 {s(sreg, 2)}, s[0:1], {off}')
    A('s_waitcnt lgkmcnt(0)')
    for sreg, off, nb in items:
        A(f's_mov_b32 {s(sreg + 2)}, {nb}')
        A(f's_mov_b32 {s(sreg + 3)}, 0x00020000')


def wave_setup(A):
    A('v_lshrrev_b32 v3, 6, v0')
    A('v_and_b32 v2, 63, v0')
    A(f'v_readfirstlane_b32 {s(S_WAVE)}, v3')
    A('v_lshlrev_b32 v1, 4, v2')


PROFILE = [False]
GSTAMP = [0]
TUNE = {}


def emit_signal(A, sflag, vone):
    if PROFILE[0]:
        A('s_memrealtime s[100:101]')
        A('s_waitcnt lgkmcnt(0)')
        A('s_or_b32 s100, s100, 1')
        A(f'v_mov_b32 {v(vone)}, s100')
    A('s_mov_b64 exec, 1')
    A(f'buffer_store_dword {v(vone)}, off, {srd(SRD_WS)}, {s(sflag)} sc1')
    A('s_mov_b64 exec, -1')


def pstamp(A, i, vtmp):
    if PROFILE[0]:
        A('s_lshl_b32 s79, s96, 5')
        A(f's_add_u32 s79, s79, {TCTL + 135168 + 4 * i}')
        emit_signal(A, 79, vtmp)


def emit_poll_issue(A, vdst, voff, sflag):
    A(f'buffer_load_dword {v(vdst)}, {v(voff)}, {srd(SRD_WS)}, {s(sflag)} offen sc1')


def emit_poll_check(A, vdst):
    A(f'v_cmp_ne_u32 vcc, 0, {v(vdst)}')
    A('s_cmp_eq_u64 vcc, exec')


def emit_poll_block(A, vdst, voff, sflag, scnt, fail_label, sleep=2, pend=None):
    top = A.newlabel('poll')
    done = A.newlabel('polld')
    A(f's_mov_b32 {s(scnt)}, 0')
    A.label(top)
    emit_poll_issue(A, vdst, voff, sflag)
    A('s_waitcnt vmcnt(0)')
    if pend:
        sp, sf, fstep, vone = pend
        ns = A.newlabel('pnos')
        A(f's_cmp_eq_u32 {s(sp)}, 0')
        A(f's_cbranch_scc1 {ns}')
        emit_signal(A, sf, vone)
        A(f's_add_u32 {s(sf)}, {s(sf)}, {fstep}')
        A(f's_mov_b32 {s(sp)}, 0')
        A.label(ns)
    emit_poll_check(A, vdst)
    A(f's_cbranch_scc1 {done}')
    A(f's_sleep {sleep}')
    A(f's_add_u32 {s(scnt)}, {s(scnt)}, 1')
    A(f's_cmp_lt_u32 {s(scnt)}, {SPIN_LIMIT}')
    A(f's_cbranch_scc1 {top}')
    A(f's_branch {fail_label}')
    A.label(done)


L_SYNC = 160 * 1024 - 256


def sync_setup(A, vaddr, vc1, lds=L_SYNC):
    A(f'v_mov_b32 {v(vaddr)}, {lds}')
    A(f'v_mov_b32 {v(vc1)}, 0')
    A(f'ds_write_b32 {v(vaddr)}, {v(vc1)}')
    A(f'ds_write_b32 {v(vaddr)}, {v(vc1)} offset:4')
    A(f'ds_write_b32 {v(vaddr)}, {v(vc1)} offset:8')
    A('s_waitcnt lgkmcnt(0)')
    A(f'v_mov_b32 {v(vc1)}, 1')
    A(f'v_mov_b32 {v(vaddr + 1)}, {lds}')


def emit_signal_agg(A, sflag, vone, vaddr, vc1, vtmp, stmp, drain=False):
    sk = A.newlabel('agg')
    A('s_mov_b64 exec, 1')
    A(f'ds_add_rtn_u32 {v(vtmp)}, {v(vaddr + 1)}, {v(vc1)}')
    A('s_waitcnt lgkmcnt(0)')
    A(f'v_readfirstlane_b32 {s(stmp)}, {v(vtmp)}')
    A('s_mov_b64 exec, -1')
    A(f'v_xor_b32 {v(vaddr + 1)}, 8, {v(vaddr + 1)}')
    A(f's_and_b32 {s(stmp)}, {s(stmp)}, 3')
    A(f's_cmp_lg_u32 {s(stmp)}, 3')
    A(f's_cbranch_scc1 {sk}')
    emit_signal(A, sflag, vone)
    if drain:
        j = A.newlabel('aggj')
        A('s_waitcnt vmcnt(1)')
        A(f's_branch {j}')
        A.label(sk)
        A('s_waitcnt vmcnt(0)')
        A.label(j)
    else:
        A.label(sk)


def emit_post_ready(A, sseq, vaddr, vtmp):
    sk = A.newlabel('post')
    A(f's_cmp_lg_u32 {s(S_WAVE)}, 0')
    A(f's_cbranch_scc1 {sk}')
    A(f'v_mov_b32 {v(vtmp)}, {s(sseq)}')
    A(f'ds_write_b32 {v(vaddr)}, {v(vtmp)} offset:4')
    A('s_waitcnt lgkmcnt(0)')
    A.label(sk)


def emit_wait_ready(A, vdst, voff, sflag, sseq, scnt, stmp, vaddr, fail_label, sleep=2):
    oth = A.newlabel('wro')
    done = A.newlabel('wrd')
    A(f's_cmp_lg_u32 {s(S_WAVE)}, 0')
    A(f's_cbranch_scc1 {oth}')
    emit_poll_block(A, vdst, voff, sflag, scnt, fail_label, sleep=sleep)
    A(f'v_mov_b32 {v(vdst)}, {s(sseq)}')
    A(f'ds_write_b32 {v(vaddr)}, {v(vdst)} offset:4')
    A('s_waitcnt lgkmcnt(0)')
    A(f's_branch {done}')
    A.label(oth)
    A(f's_mov_b32 {s(scnt)}, 0')
    lp = A.newlabel('wrl')
    A.label(lp)
    A(f'ds_read_b32 {v(vdst)}, {v(vaddr)} offset:4')
    A(f's_add_u32 {s(scnt)}, {s(scnt)}, 1')
    A(f's_cmp_gt_u32 {s(scnt)}, {SPIN_LIMIT * 16}')
    A(f's_cbranch_scc1 {fail_label}')
    A('s_waitcnt lgkmcnt(0)')
    A(f'v_readfirstlane_b32 {s(stmp)}, {v(vdst)}')
    A(f's_cmp_ge_u32 {s(stmp)}, {s(sseq)}')
    A(f's_cbranch_scc1 {done}')
    A('s_sleep 1')
    A(f's_branch {lp}')
    A.label(done)


G_W0, G_W1, G_IN, G_OUT, G_CNT, G_FIN, G_FOUT = 24, 25, 26, 27, 28, 29, 30
G_T0, G_T1, G_PREF, G_PEND, G_SPIN, G_M0 = 31, 32, 33, 34, 35, 36


def gemm_setup(A, NK, mode, wstride, srd0, srd1):
    vL16, vLane = 1, 2
    vT0, vT1, vT2 = 3, 4, 5
    vW, vTr, vRd, vOut, vOut2, vDma, vFl, vFv, vOne = 6, 7, 8, 9, 10, 11, 12, 13, 14
    D = 4
    R = D + 1
    FR = 16
    ACC = [40, 56]
    TMP = 72
    phi_cols = mode != 'v'
    A(f'v_lshrrev_b32 {v(vT0)}, 2, {v(vLane)}')
    A(f's_mov_b32 {s(G_T0)}, {wstride}')
    A(f'v_mul_lo_u32 {v(vW)}, {v(vT0)}, {s(G_T0)}')
    A(f'v_and_b32 {v(vT0)}, 3, {v(vLane)}')
    A(f'v_lshl_add_u32 {v(vW)}, {v(vT0)}, 4, {v(vW)}')
    A(f'v_bfe_u32 {v(vT1)}, {v(vLane)}, 2, 2')
    A(f'v_lshrrev_b32 {v(vT2)}, 5, {v(vLane)}')
    A(f'v_lshl_add_u32 {v(vT1)}, {v(vT2)}, 3, {v(vT1)}')
    A(f'v_lshlrev_b32 {v(vTr)}, 6, {v(vT1)}')
    A(f'v_bfe_u32 {v(vT1)}, {v(vLane)}, 4, 1')
    A(f'v_lshl_add_u32 {v(vTr)}, {v(vT1)}, 5, {v(vTr)}')
    if phi_cols:
        A(f'v_and_b32 {v(vT1)}, 1, {v(vLane)}')
        A(f'v_lshl_add_u32 {v(vTr)}, {v(vT1)}, 4, {v(vTr)}')
        A(f'v_bfe_u32 {v(vT1)}, {v(vLane)}, 1, 1')
        A(f'v_lshl_add_u32 {v(vTr)}, {v(vT1)}, 3, {v(vTr)}')
    else:
        A(f'v_lshl_add_u32 {v(vTr)}, {v(vT0)}, 3, {v(vTr)}')
    A(f's_lshl_b32 {s(G_T0)}, {s(S_WAVE)}, 15')
    A(f'v_add_u32 {v(vTr)}, {s(G_T0)}, {v(vTr)}')
    A(f'v_mov_b32 {v(vOne)}, 1')
    rounds = [list(range(c, min(c + 8, NK))) for c in range(0, NK, 8)]

    def issue_round(r):
        A(f's_lshl_b32 {s(G_M0)}, {s(S_WAVE)}, 15')
        A(f's_add_u32 m0, {s(G_M0)}, {(r & 1) * 16384}')
        first = True
        for c in rounds[r]:
            for t in (0, 1):
                if not first:
                    A('s_add_u32 m0, m0, 1024')
                first = False
                sw = G_W0 if t == 0 else G_W1
                A(f'buffer_load_dwordx4 {v(vW)}, {srd(srd0 if t == 0 else srd1)}, {s(sw)} offen lds')
                A(f's_add_u32 {s(sw)}, {s(sw)}, {16 * wstride}')

    def read_round(r):
        for ci, c in enumerate(rounds[r]):
            for t in (0, 1):
                base = (r & 1) * 16384 + (ci * 2 + t) * 1024
                ar = (t * 32 + c) * 4
                A(f'ds_read_b64_tr_b16 {a(ar, 2)}, {v(vTr)} offset:{base}')
                A(f'ds_read_b64_tr_b16 {a(ar + 2, 2)}, {v(vTr)} offset:{base + 256}')
        A('s_waitcnt lgkmcnt(0)')

    nr = len(rounds)
    issue_round(0)
    if nr > 1:
        issue_round(1)
    for r in range(nr):
        nxt = 2 * len(rounds[r + 1]) if r + 1 < nr else 0
        A(f's_waitcnt vmcnt({nxt})')
        read_round(r)
        if r + 2 < nr:
            issue_round(r + 2)
    if mode == 'v':
        A(f'v_and_b32 {v(vT0)}, 0x33, {v(vLane)}')
        A(f'v_bfe_u32 {v(vT1)}, {v(vLane)}, 2, 1')
        A(f'v_lshl_or_b32 {v(vT0)}, {v(vT1)}, 3, {v(vT0)}')
        A(f'v_bfe_u32 {v(vT1)}, {v(vLane)}, 3, 1')
        A(f'v_lshl_or_b32 {v(vT0)}, {v(vT1)}, 2, {v(vT0)}')
        A(f'v_lshlrev_b32 {v(vRd)}, 4, {v(vT0)}')
        A(f'v_and_b32 {v(vT0)}, 31, {v(vLane)}')
        A(f'v_lshlrev_b32 {v(vOut)}, 4, {v(vT0)}')
        A(f'v_lshrrev_b32 {v(vT1)}, 5, {v(vLane)}')
        A(f'v_lshl_add_u32 {v(vOut)}, {v(vT1)}, 11, {v(vOut)}')
        A(f'v_add_u32 {v(vOut2)}, 4096, {v(vOut)}')
    else:
        A(f'v_mov_b32 {v(vRd)}, {v(vL16)}')
        if mode == 'part':
            A(f'v_bfe_u32 {v(vT0)}, {v(vLane)}, 2, 3')
            A(f'v_lshlrev_b32 {v(vOut)}, 12, {v(vT0)}')
            A(f'v_lshrrev_b32 {v(vT1)}, 5, {v(vLane)}')
            A(f'v_lshl_add_u32 {v(vOut)}, {v(vT1)}, 6, {v(vOut)}')
            A(f'v_and_b32 {v(vT0)}, 3, {v(vLane)}')
            A(f'v_lshl_add_u32 {v(vOut)}, {v(vT0)}, 4, {v(vOut)}')
        else:
            A(f'v_mov_b32 {v(vOut)}, {v(vL16)}')
    if mode == 'gu':
        c0 = -2.0 * 0.7978845608028654 * 1.4426950408889634
        A(f's_mov_b32 s40, {f32bits(c0 * 0.044715):#x}')
        A(f'v_mov_b32 {v(vT2)}, {f32bits(c0):#x}')


OOB = 0x7ff00000


def gemm_loop(A, NK, mode, in_step, out_step, fail, flags=None, sc1=True):
    vL16, vLane = 1, 2
    vT0, vT1, vT2 = 3, 4, 5
    vW, vTr, vRd, vOut, vOut2, vDma, vFl, vFv, vOne = 6, 7, 8, 9, 10, 11, 12, 13, 14
    D = 4
    R = D + 1
    FR = 16
    ACC = [40, 56]
    TMP = 72
    SC = ' sc1' if sc1 else ''
    G_SRC, G_SEQ = 37, 38
    vSy, vC1, vSt = 36, 38, 39
    per_wave = NK // 4
    assert NK % 4 == 0
    A(f's_lshl_b32 {s(G_T0)}, {s(S_WAVE)}, 10')
    A(f'v_add_u32 {v(vDma)}, {s(G_T0)}, {v(vL16)}')
    A(f's_mov_b32 {s(G_M0)}, {s(G_T0)}')
    vFl2 = 15
    if flags:
        A(f'v_min_u32 {v(vFl)}, {flags["n"] - 1}, {v(vLane)}')
        A(f'v_lshlrev_b32 {v(vFl)}, 2, {v(vFl)}')

    def dma_piece(j):
        if j == 0:
            A(f's_mov_b32 m0, {s(G_M0)}')
        else:
            A('s_add_u32 m0, m0, 4096')
            A(f's_add_u32 {s(G_SRC)}, {s(G_SRC)}, 4096')
        A(f'buffer_load_dwordx4 {v(vDma)}, {srd(SRD_WS)}, {s(G_SRC)} offen{SC} lds')

    def advance():
        A(f's_add_u32 {s(G_IN)}, {s(G_IN)}, {in_step}')
        A(f's_xor_b32 {s(G_M0)}, {s(G_M0)}, 32768')
        if poll_in:
            A(f's_add_u32 {s(G_FIN)}, {s(G_FIN)}, {flags["fin_step"]}')
            A(f's_add_u32 {s(G_SEQ)}, {s(G_SEQ)}, 1')

    HP = PROFILE[0] and flags

    def hstamp(i):
        if HP:
            A(f's_memrealtime {s(60 + 2 * i, 2)}')

    def hflush():
        if HP:
            sk = A.newlabel('hs')
            A('s_waitcnt lgkmcnt(0)')
            A(f's_cmp_lg_u32 {s(S_WAVE)}, 0')
            A(f's_cbranch_scc1 {sk}')
            A(f's_and_b32 s66, {s(G_FOUT)}, 0xff')
            A(f's_andn2_b32 s67, {s(G_FOUT)}, 0xff')
            A('s_mul_i32 s66, s66, 3')
            A('s_add_u32 s66, s66, s67')
            A('s_add_u32 s66, s66, 256')
            A('s_mov_b64 exec, 1')
            for i in range(3):
                A(f'v_mov_b32 {v(vSt)}, {s(60 + 2 * i)}')
                A(f'buffer_store_dword {v(vSt)}, off, {srd(SRD_WS)}, s66 offset:{4 * i}')
            A('s_mov_b64 exec, -1')
            A.label(sk)

    def signal(drain=False):
        emit_signal_agg(A, G_FOUT, vOne, vSy, vC1, vSt, G_T0, drain)
        A(f's_add_u32 {s(G_FOUT)}, {s(G_FOUT)}, {flags["fout_step"]}')
        A(f's_mov_b32 {s(G_PEND)}, 0')

    def issue_dma():
        hstamp(0)
        A(f's_mov_b32 {s(G_SRC)}, {s(G_IN)}')
        for j in range(per_wave):
            dma_piece(j)
        advance()

    NST = 2
    poll_in = bool(flags and flags.get('poll_in', True))
    A(f'v_and_b32 {v(vRd)}, 0x7fff, {v(vRd)}')
    if flags:
        sync_setup(A, vSy, vC1)
        A(f's_mov_b32 {s(G_SEQ)}, 1')
    A('s_barrier')
    if poll_in:
        emit_wait_ready(A, vFv, vFl, G_FIN, G_SEQ, G_SPIN, G_T0, vSy, fail, sleep=8)
    issue_dma()
    A(f's_mov_b32 {s(G_PEND)}, 0')
    A('s_waitcnt vmcnt(0)')
    top = A.newlabel('gtop')
    A.label(top)
    GS = GSTAMP[0]
    if GS:
        A('s_mov_b64 s[72:73], s[60:61]')
        A('s_mov_b64 s[74:75], s[70:71]')
        A('s_memtime s[60:61]')
        A('s_memrealtime s[70:71]')
    A(f's_waitcnt vmcnt({NST})')
    if GS:
        A('s_memtime s[62:63]')
    A('s_barrier')
    if GS:
        A('s_memtime s[64:65]')
    hstamp(1)

    NS = 2 * NK
    D2, R2 = 7, 8
    FR2 = 96

    def rd(n):
        A(f'ds_read_b128 {v(FR2 + (n % R2) * 4, 4)}, {v(vRd)} offset:{(n % NK) * 1024}')

    for n in range(D2):
        rd(n)
    A(f's_sub_u32 {s(G_CNT)}, {s(G_CNT)}, 1')
    ev = {}

    def at(n, fn):
        ev.setdefault(n, []).append(fn)

    nvm = [0]

    def piece():
        A(f'buffer_load_dwordx4 {v(vDma)}, {srd(SRD_WS)}, {s(G_SRC)} offen{SC} lds')
        A('s_add_u32 m0, m0, 4096')
        A(f's_add_u32 {s(G_SRC)}, {s(G_SRC)}, 4096')
        nvm[0] += 1

    def poll():
        emit_poll_issue(A, vFv, vFl, G_FIN)
        nvm[0] += 1

    def evaluate():
        A(f'v_cmp_ne_u32 vcc, 0, {v(vFv)}')
        A('s_cmp_eq_u64 vcc, exec')
        A(f's_cselect_b32 {s(G_T0)}, {s(G_PREF)}, 1')
        A(f's_cmp_eq_u32 {s(G_T0)}, 0')
        A(f's_cselect_b32 {s(G_SRC)}, {s(G_IN)}, {OOB}')
        A(f's_cselect_b32 m0, {s(G_M0)}, 65536')
        A(f's_cselect_b32 {s(G_PREF)}, 1, {s(G_PREF)}')

    def sig1():
        A(f's_waitcnt vmcnt({nvm[0]})')
        A(f'v_mov_b32 {v(vC1)}, {s(G_PEND)}')
        A('s_mov_b64 exec, 1')
        A(f'ds_add_rtn_u32 {v(vSt)}, {v(vSy + 1)}, {v(vC1)}')
        A('s_mov_b64 exec, -1')

    def sig2():
        A(f'v_readfirstlane_b32 {s(G_T0)}, {v(vSt)}')
        A(f's_lshl_b32 {s(G_T1)}, {s(G_PEND)}, 3')
        A(f'v_xor_b32 {v(vSy + 1)}, {s(G_T1)}, {v(vSy + 1)}')
        A(f'v_mov_b32 {v(vC1)}, 1')
        A(f's_and_b32 {s(G_T0)}, {s(G_T0)}, 3')
        A(f's_add_u32 {s(G_T0)}, {s(G_T0)}, {s(G_PEND)}')
        A(f's_cmp_eq_u32 {s(G_T0)}, 4')
        A(f's_cselect_b32 {s(G_T0)}, {s(G_FOUT)}, {OOB}')
        emit_signal(A, G_T0, vOne)
        nvm[0] += 1
        A(f's_mul_i32 {s(G_T1)}, {s(G_PEND)}, {flags["fout_step"]}')
        A(f's_add_u32 {s(G_FOUT)}, {s(G_FOUT)}, {s(G_T1)}')
        A(f's_mov_b32 {s(G_PEND)}, 0')

    if not poll_in:
        A(f's_cmp_eq_u32 {s(G_CNT)}, 0')
        A(f's_cselect_b32 {s(G_SRC)}, {OOB}, {s(G_IN)}')
        A(f's_mov_b32 m0, {s(G_M0)}')
        for j in range(per_wave):
            at(2 + 3 * j, piece)
    else:
        A(f'v_mov_b32 {v(vFv)}, 0')
        poll()
        A(f's_cmp_eq_u32 {s(G_CNT)}, 0')
        A(f's_cselect_b32 {s(G_PREF)}, 2, 0')
        e1, e2 = TUNE.get('e1', 18 if NK == 32 else 14), NS - 2 * per_wave - 6
        at(e1, evaluate)
        for j in range(per_wave):
            at(e1 + 1 + 2 * j, piece)
        at(e1 + 2, poll)
        at(e2 - 14, poll)
        at(e2, evaluate)
        for j in range(per_wave):
            at(e2 + 1 + 2 * j, piece)
        at(e2 + 2, poll)
        at(NS - 6, poll)
    if flags:
        sn = TUNE.get('sn', 18)
        at(sn, sig1)
        at(sn + D2 + 1, sig2)

    def store(t, f, d):
        if mode == 'qk':
            return (f'buffer_store_dwordx4 {v(d, 4)}, {v(vOut)}, {srd(SRD_WS)}, {s(G_OUT)} offen '
                    f'offset:{(t * 2 + f) * 1024}{SC}')
        if mode == 'part':
            return (f'buffer_store_dwordx4 {v(d, 4)}, {v(vOut)}, {srd(SRD_WS)}, {s(G_OUT)} offen '
                    f'offset:{(t * 2 + f) * 128}{SC}')
        return (f'buffer_store_dwordx4 {v(d, 4)}, {v(vOut if f == 0 else vOut2)}, {srd(SRD_WS)}, '
                f'{s(G_OUT)} offen offset:{t * 512}{SC}')

    def cvt_tile(t):
        out = []
        for f in (0, 1):
            d = TMP + (t * 2 + f) * 4
            for j in range(4):
                r0 = ACC[t] + f * 8 + 2 * j
                out.append(f'v_cvt_pk_bf16_f32 {v(d + j)}, {v(r0)}, {v(r0 + 1)}')
            out.append(store(t, f, d))
        return out

    if mode == 'gu':
        G, U, T1 = ACC[0], ACC[1], TMP
        early = []
        for q in range(4):
            idx = range(q * 4, q * 4 + 4)
            early += [f'v_mul_f32 {v(T1 + i)}, {v(G + i)}, {v(G + i)}' for i in idx]
            early += [f'v_fma_f32 {v(T1 + i)}, {v(T1 + i)}, s40, {v(vT2)}' for i in idx]
            early += [f'v_mul_f32 {v(T1 + i)}, {v(T1 + i)}, {v(G + i)}' for i in idx]
            early += [f'v_exp_f32 {v(T1 + i)}, {v(T1 + i)}' for i in idx]
            early += [f'v_add_f32 {v(T1 + i)}, 1.0, {v(T1 + i)}' for i in idx]
            early += [f'v_rcp_f32 {v(T1 + i)}, {v(T1 + i)}' for i in idx]
            early += [f'v_mul_f32 {v(T1 + i)}, {v(T1 + i)}, {v(G + i)}' for i in idx]
        per = 4
    else:
        early = cvt_tile(0)
        per = 2
    for n in range(NS):
        t, c = divmod(n, NK)
        if n + D2 < NS:
            rd(n + D2)
        A(f's_waitcnt lgkmcnt({min(D2, NS - 1 - n)})')
        f = v(FR2 + (n % R2) * 4, 4)
        w = a((t * 32 + c) * 4, 4)
        cin = '0' if c == 0 else v(ACC[t], 16)
        if mode == 'v':
            A(f'v_mfma_f32_32x32x16_bf16 {v(ACC[t], 16)}, {f}, {w}, {cin}')
        else:
            A(f'v_mfma_f32_32x32x16_bf16 {v(ACC[t], 16)}, {w}, {f}, {cin}')
        if n >= NK + 3:
            for _ in range(per):
                if early:
                    x = early.pop(0)
                    A(x)
                    if x.startswith('buffer_store'):
                        nvm[0] += 1
        for fn in ev.get(n, []):
            fn()
    assert not early
    A(f'v_xor_b32 {v(vRd)}, 32768, {v(vRd)}')
    if GS:
        A('s_memtime s[66:67]')
    if mode == 'gu':
        for f in (0, 1):
            for i in range(f * 8, f * 8 + 8):
                A(f'v_mul_f32 {v(T1 + i)}, {v(T1 + i)}, {v(U + i)}')
            d = TMP + 16 + f * 4
            for j in range(4):
                A(f'v_cvt_pk_bf16_f32 {v(d + j)}, {v(T1 + f * 8 + 2 * j)}, {v(T1 + f * 8 + 2 * j + 1)}')
            A(f'buffer_store_dwordx4 {v(d, 4)}, {v(vOut)}, {srd(SRD_WS)}, {s(G_OUT)} offen '
              f'offset:{f * 1024}{SC}')
    else:
        for x in cvt_tile(1):
            A(x)
    if GS:
        A('s_memtime s[68:69]')
        sk = A.newlabel('gsk')
        A('s_waitcnt lgkmcnt(0)')
        A(f's_cmp_lg_u32 {s(G_CNT)}, {GS}')
        A(f's_cbranch_scc1 {sk}')
        A('s_lshl_b32 s76, s2, 2')
        A('s_add_u32 s76, s76, s3')
        A('s_lshl_b32 s76, s76, 6')
        A(f's_add_u32 s76, s76, {TCTL + 65536}')
        A('s_mov_b64 exec, 1')
        for i, r in enumerate((60, 62, 64, 66, 68, 70, 72, 74)):
            A(f'v_mov_b32 {v(vT0)}, s{r}')
            A(f'buffer_store_dword {v(vT0)}, off, {srd(SRD_WS)}, s76 offset:{4 * i}')
        A('s_mov_b64 exec, -1')
        A('s_waitcnt vmcnt(0)')
        A.label(sk)
    hstamp(2)
    hflush()
    A(f's_add_u32 {s(G_OUT)}, {s(G_OUT)}, {out_step}')
    if flags:
        A(f's_mov_b32 {s(G_PEND)}, 1')
    last = A.newlabel('glast')
    A(f's_cmp_eq_u32 {s(G_CNT)}, 0')
    A(f's_cbranch_scc1 {last}')
    if poll_in:
        blk = A.newlabel('gblk')
        A(f's_cmp_eq_u32 {s(G_PREF)}, 0')
        A(f's_cbranch_scc1 {blk}')
        emit_post_ready(A, G_SEQ, vSy, vSt)
        advance()
        A(f's_branch {top}')
        A.label(blk)
        blk2 = A.newlabel('gblk2')
        A(f's_waitcnt vmcnt({NST})')
        emit_poll_check(A, vFv)
        A(f's_cbranch_scc0 {blk2}')
        emit_post_ready(A, G_SEQ, vSy, vSt)
        issue_dma()
        A(f's_waitcnt vmcnt({per_wave})')
        signal(drain=True)
        A(f's_branch {top}')
        A.label(blk2)
        A('s_waitcnt vmcnt(0)')
        signal()
        emit_wait_ready(A, vFv, vFl, G_FIN, G_SEQ, G_SPIN, G_T0, vSy, fail, sleep=2)
        issue_dma()
        A('s_waitcnt vmcnt(0)')
    else:
        advance()
    A(f's_branch {top}')
    A.label(last)
    if flags:
        A('s_waitcnt vmcnt(0)')
        signal()


def gemm_role(A, NK, mode, wstride, srd0, srd1, in_step, out_step, end_label, flags=None, sc1=True):
    gemm_setup(A, NK, mode, wstride, srd0, srd1)
    gemm_loop(A, NK, mode, in_step, out_step, end_label, flags, sc1)
    A(f's_branch {end_label}')


PSEG = 32768


def rl_role(A, KBN, srd_xin, srd_xout, do_ln, steps, end_label, flags=None, sc1=True, xin_sc1=True,
            xout_sc1=True, burst=0, between=None):
    R_P, R_XI, R_XO, R_XN, R_CNT, R_FIN, R_FOUT, R_T0, R_PREF, R_PEND, R_SPIN = \
        24, 25, 26, 27, 28, 29, 30, 31, 33, 34, 35
    vLane = 2
    vT0, vT1, vT2 = 3, 4, 5
    vP, vX, vN, vLw, vLr, vFl, vFv, vOne = 6, 7, 8, 9, 10, 11, 12, 13
    XF = 16
    PK = 24
    PN = 28
    ST = 32
    AC = 44
    UP = 52
    SETS = [60, 60 + 4 + 4 * KBN]
    vSy, vC1, vSt = 14, 4, 5
    R_SEQ = 36
    SC = ' sc1' if sc1 else ''
    A(f'v_and_b32 {v(vT0)}, 3, v0')
    A(f'v_lshrrev_b32 {v(vT1)}, 2, v0')
    A(f'v_lshlrev_b32 {v(vP)}, 4, v0')
    A(f'v_lshlrev_b32 {v(vX)}, 10, {v(vT0)}')
    A(f'v_lshl_add_u32 {v(vX)}, {v(vT1)}, 4, {v(vX)}')
    A(f'v_lshlrev_b32 {v(vN)}, 9, {v(vT1)}')
    A(f'v_lshl_add_u32 {v(vN)}, {v(vT0)}, 4, {v(vN)}')
    A(f'v_lshlrev_b32 {v(vLr)}, 4, {v(vT0)}')
    A(f's_lshl_b32 {s(R_T0)}, {s(S_WAVE)}, 2')
    A(f'v_add_u32 {v(vLw)}, {s(R_T0)}, {v(vLr)}')
    A(f'v_mov_b32 {v(vOne)}, 1')
    A(f's_mov_b32 s40, 0xffff0000')
    poll_in = bool(flags and flags.get('poll_in', True))
    sig = bool(flags and flags.get('signal', True))
    if flags:
        A(f'v_min_u32 {v(vFl)}, {flags["n"] - 1}, {v(vLane)}')
        A(f'v_lshlrev_b32 {v(vFl)}, 2, {v(vFl)}')
    if flags:
        sync_setup(A, vSy, vC1)
        A(f's_mov_b32 {s(R_SEQ)}, 1')
        A('s_barrier')

    def signal():
        emit_signal_agg(A, R_FOUT, vOne, vSy, vC1, vSt, R_T0)
        A(f's_add_u32 {s(R_FOUT)}, {s(R_FOUT)}, {flags["fout_step"]}')
        A(f's_mov_b32 {s(R_PEND)}, 0')

    def loads(S):
        A(f'buffer_load_dwordx4 {v(S, 4)}, {v(vX)}, {srd(srd_xin)}, {s(R_XI)} offen{" sc1" if xin_sc1 else ""}')
        A(f's_mov_b32 {s(R_T0)}, {s(R_P)}')
        for kb in range(KBN):
            A(f'buffer_load_dwordx4 {v(S + 4 + kb * 4, 4)}, {v(vP)}, {srd(SRD_WS)}, {s(R_T0)} offen{SC}')
            if kb + 1 < KBN:
                A(f's_add_u32 {s(R_T0)}, {s(R_T0)}, {NSEG * PSEG}')
        A(f's_add_u32 {s(R_P)}, {s(R_P)}, {steps["p"]}')
        A(f's_add_u32 {s(R_XI)}, {s(R_XI)}, {steps["x"]}')
        if poll_in:
            A(f's_add_u32 {s(R_FIN)}, {s(R_FIN)}, {flags["fin_step"]}')
            A(f's_add_u32 {s(R_SEQ)}, {s(R_SEQ)}, 1')

    def unpack(dst, src):
        for j in range(4):
            A(f'v_lshlrev_b32 {v(dst + 2 * j)}, 16, {v(src + j)}')
            A(f'v_and_b32 {v(dst + 2 * j + 1)}, s40, {v(src + j)}')

    def pack(dst, src):
        for j in range(4):
            A(f'v_cvt_pk_bf16_f32 {v(dst + j)}, {v(src + 2 * j)}, {v(src + 2 * j + 1)}')

    def row_reduce(r, ldsoff):
        t = ST + 7
        A(f'v_add_f32_dpp {v(r)}, {v(r)}, {v(r)} row_ror:4 row_mask:0xf bank_mask:0xf')
        A(f'v_add_f32_dpp {v(r)}, {v(r)}, {v(r)} row_ror:8 row_mask:0xf bank_mask:0xf')
        A(f'v_mov_b32 {v(t)}, {v(r)}')
        A(f'v_permlane16_swap_b32 {v(r)}, {v(t)}')
        A(f'v_add_f32 {v(r)}, {v(r)}, {v(t)}')
        A(f'v_mov_b32 {v(t)}, {v(r)}')
        A(f'v_permlane32_swap_b32 {v(r)}, {v(t)}')
        A(f'v_add_f32 {v(r)}, {v(r)}, {v(t)}')
        A(f'ds_write_b32 {v(vLw)}, {v(r)} offset:{ldsoff}')
        A('s_waitcnt lgkmcnt(0)')
        A('s_barrier')
        A(f'ds_read_b128 {v(ST + 8, 4)}, {v(vLr)} offset:{ldsoff}')
        A('s_waitcnt lgkmcnt(0)')
        A(f'v_add_f32 {v(ST + 8)}, {v(ST + 8)}, {v(ST + 9)}')
        A(f'v_add_f32 {v(ST + 10)}, {v(ST + 10)}, {v(ST + 11)}')
        A(f'v_add_f32 {v(r)}, {v(ST + 8)}, {v(ST + 10)}')

    def round_bf16(r):
        A(f'v_cvt_pk_bf16_f32 {v(r)}, {v(r)}, {v(r)}')
        A(f'v_lshlrev_b32 {v(r)}, 16, {v(r)}')

    def compute(S):
        unpack(XF, S)
        if KBN:
            unpack(AC, S + 4)
            for kb in range(1, KBN):
                unpack(UP, S + 4 + kb * 4)
                for j in range(8):
                    A(f'v_add_f32 {v(AC + j)}, {v(AC + j)}, {v(UP + j)}')
            pack(PK, AC)
            unpack(AC, PK)
            for j in range(8):
                A(f'v_add_f32 {v(XF + j)}, {v(XF + j)}, {v(AC + j)}')
            pack(PK, XF)
            A(f'buffer_store_dwordx4 {v(PK, 4)}, {v(vX)}, {srd(srd_xout)}, {s(R_XO)} offen'
              f'{" sc1" if xout_sc1 else ""}')
            if do_ln:
                unpack(XF, PK)
        if do_ln:
            m, q = ST, ST + 1
            A(f'v_add_f32 {v(m)}, {v(XF)}, {v(XF + 1)}')
            A(f'v_add_f32 {v(q)}, {v(XF + 2)}, {v(XF + 3)}')
            A(f'v_add_f32 {v(ST + 2)}, {v(XF + 4)}, {v(XF + 5)}')
            A(f'v_add_f32 {v(ST + 3)}, {v(XF + 6)}, {v(XF + 7)}')
            A(f'v_add_f32 {v(m)}, {v(m)}, {v(q)}')
            A(f'v_add_f32 {v(ST + 2)}, {v(ST + 2)}, {v(ST + 3)}')
            A(f'v_add_f32 {v(m)}, {v(m)}, {v(ST + 2)}')
            row_reduce(m, 0)
            A(f'v_mul_f32 {v(m)}, {f32bits(1.0 / 512):#x}, {v(m)}')
            for j in range(8):
                A(f'v_sub_f32 {v(AC + j)}, {v(XF + j)}, {v(m)}')
            A(f'v_mul_f32 {v(q)}, {v(AC)}, {v(AC)}')
            for j in range(1, 8):
                A(f'v_fmac_f32 {v(q)}, {v(AC + j)}, {v(AC + j)}')
            row_reduce(q, 64)
            A(f'v_mul_f32 {v(q)}, {f32bits(1.0 / 512):#x}, {v(q)}')
            round_bf16(q)
            A(f'v_add_f32 {v(q)}, {f32bits(1e-5):#x}, {v(q)}')
            round_bf16(q)
            A(f'v_sqrt_f32 {v(q)}, {v(q)}')
            round_bf16(q)
            A(f'v_rcp_f32 {v(q)}, {v(q)}')
            round_bf16(m)
            for j in range(8):
                A(f'v_sub_f32 {v(AC + j)}, {v(XF + j)}, {v(m)}')
            pack(PN, AC)
            unpack(AC, PN)
            for j in range(8):
                A(f'v_mul_f32 {v(AC + j)}, {v(AC + j)}, {v(q)}')
            pack(PN, AC)
            A(f'buffer_store_dwordx4 {v(PN, 4)}, {v(vN)}, {srd(SRD_WS)}, {s(R_XN)} offen{SC}')
        A(f's_add_u32 {s(R_XO)}, {s(R_XO)}, {steps["x"]}')
        A(f's_add_u32 {s(R_XN)}, {s(R_XN)}, {steps["xn"]}')

    if burst:
        assert KBN == 0
        for i in range(burst):
            loads(64 + 4 * i)
        nb = between() if between else 0
        for i in range(burst):
            A(f's_waitcnt vmcnt({burst - 1 + nb})')
            compute(64 + 4 * i)
        A(f's_branch {end_label}')
        return
    if flags and flags.get('pair'):
        top = A.newlabel('rlptop')
        A.label(top)
        emit_wait_ready(A, vFv, vFl, R_FIN, R_SEQ, R_SPIN, R_T0, vSy, end_label, sleep=3)
        st2 = dict(steps)
        steps.update(p=4096, x=4096, xn=64)
        fs = flags['fin_step']
        flags['fin_step'] = 0
        loads(SETS[0])
        steps.update(p=st2['p'] - 4096, x=st2['x'] - 4096)
        flags['fin_step'] = fs
        loads(SETS[1])
        steps.update(p=4096, x=4096, xn=64)
        A(f's_waitcnt vmcnt({KBN + 1})')
        compute(SETS[0])
        steps.update(x=st2['x'] - 4096, xn=st2['xn'] - 64)
        A(f's_waitcnt vmcnt({2 if do_ln else 1})')
        compute(SETS[1])
        steps.update(st2)
        if sig:
            A('s_waitcnt vmcnt(0)')
            signal()
        A(f's_sub_u32 {s(R_CNT)}, {s(R_CNT)}, 1')
        A(f's_cmp_lg_u32 {s(R_CNT)}, 0')
        A(f's_cbranch_scc1 {top}')
        A(f's_branch {end_label}')
        return
    A(f's_mov_b32 {s(R_PEND)}, 0')
    if poll_in:
        emit_wait_ready(A, vFv, vFl, R_FIN, R_SEQ, R_SPIN, R_T0, vSy, end_label, sleep=8)
    loads(SETS[0])
    top = A.newlabel('rltop')
    last = A.newlabel('rllast')
    A.label(top)
    for u in (0, 1):
        S, O = SETS[u], SETS[1 - u]
        A(f's_sub_u32 {s(R_CNT)}, {s(R_CNT)}, 1')
        if poll_in:
            emit_poll_issue(A, vFv, vFl, R_FIN)
        A('s_waitcnt vmcnt(0)')
        if sig:
            ns = A.newlabel('rlns')
            A(f's_cmp_eq_u32 {s(R_PEND)}, 0')
            A(f's_cbranch_scc1 {ns}')
            signal()
            A.label(ns)
        nopf = A.newlabel('rlnopf')
        A(f's_mov_b32 {s(R_PREF)}, 0')
        A(f's_cmp_eq_u32 {s(R_CNT)}, 0')
        A(f's_cbranch_scc1 {nopf}')
        if poll_in:
            emit_poll_check(A, vFv)
            A(f's_cbranch_scc0 {nopf}')
            emit_post_ready(A, R_SEQ, vSy, vSt)
        loads(O)
        A(f's_mov_b32 {s(R_PREF)}, 1')
        A.label(nopf)
        compute(S)
        A(f's_mov_b32 {s(R_PEND)}, 1')
        A(f's_cmp_eq_u32 {s(R_CNT)}, 0')
        A(f's_cbranch_scc1 {last}')
        if poll_in:
            nx = A.newlabel('rlnx')
            A(f's_cmp_eq_u32 {s(R_PREF)}, 1')
            A(f's_cbranch_scc1 {nx}')
            if sig:
                A('s_waitcnt vmcnt(0)')
                signal()
            emit_wait_ready(A, vFv, vFl, R_FIN, R_SEQ, R_SPIN, R_T0, vSy, end_label, sleep=2)
            loads(O)
            A.label(nx)
    A(f's_branch {top}')
    A.label(last)
    if sig:
        A('s_waitcnt vmcnt(0)')
        signal()
    A(f's_branch {end_label}')


def att_role(A, segstep, end_label, flags=None, sc1=True):
    T_Q, T_K, T_V, T_KM, T_CNT, T_FIN, T_FOUT, T_VM, T_O, T_FPR, T_T0, T_SPIN = \
        24, 25, 26, 27, 28, 29, 30, 31, 32, 33, 34, 35
    vL16, vLane = 1, 2
    vT0, vT1, vT2 = 3, 4, 5
    vK, vKM, vV, vVM, vFl, vFv, vOne, vFp = 6, 7, 8, 9, 10, 11, 12, 13
    BIAS = 16
    QF, KF, KMF, VF, VMF = 32, 64, 96, 128, 160
    SX, SM = 176, 192
    PB = 208
    OA = 32
    OP = 220
    SC = ' sc1' if sc1 else ''
    scale_log2e = (128 ** -0.5) * 1.4426950408889634
    A(f'v_and_b32 {v(vT0)}, 0x13, {v(vLane)}')
    A(f'v_bfe_u32 {v(vT1)}, {v(vLane)}, 2, 1')
    A(f'v_lshl_or_b32 {v(vT0)}, {v(vT1)}, 3, {v(vT0)}')
    A(f'v_bfe_u32 {v(vT1)}, {v(vLane)}, 3, 1')
    A(f'v_lshl_or_b32 {v(vT0)}, {v(vT1)}, 2, {v(vT0)}')
    A(f'v_lshrrev_b32 {v(vT1)}, 5, {v(vLane)}')
    A(f'v_lshlrev_b32 {v(vK)}, 4, {v(vT0)}')
    A(f'v_lshl_add_u32 {v(vK)}, {v(vT1)}, 9, {v(vK)}')
    A(f'v_lshlrev_b32 {v(vV)}, 4, {v(vT0)}')
    A(f'v_lshl_add_u32 {v(vV)}, {v(vT1)}, 11, {v(vV)}')
    A(f'v_lshlrev_b32 {v(vVM)}, 3, {v(vT0)}')
    A(f'v_lshl_add_u32 {v(vVM)}, {v(vT1)}, 10, {v(vVM)}')
    A(f'v_and_b32 {v(vT2)}, 7, {v(vLane)}')
    A(f'v_lshlrev_b32 {v(vKM)}, 4, {v(vT2)}')
    A(f'v_lshl_add_u32 {v(vKM)}, {v(vT1)}, 7, {v(vKM)}')
    A(f'v_and_b32 {v(vT2)}, 31, {v(vLane)}')
    A(f'v_lshlrev_b32 {v(vT1)}, 3, {v(vT1)}')
    A(f'v_sub_u32 {v(vT2)}, {v(vT2)}, {v(vT1)}')
    A(f'v_mov_b32 {v(vT0)}, {f32bits(-1e30):#x}')
    for i in range(16):
        A(f'v_cmp_gt_i32 vcc, {16 * (i >> 3) + (i & 7)}, {v(vT2)}')
        A(f'v_cndmask_b32 {v(BIAS + i)}, 0, {v(vT0)}, vcc')
    for T in range(4):
        A(f'v_mov_b32 {v(VMF + T * 4 + 2)}, 0')
        A(f'v_mov_b32 {v(VMF + T * 4 + 3)}, 0')
    A(f'v_mov_b32 {v(PB + 10)}, 0')
    A(f'v_mov_b32 {v(PB + 11)}, 0')
    A(f'v_mov_b32 {v(vOne)}, 1')
    A(f's_mov_b32 s40, {f32bits(scale_log2e):#x}')
    if flags:
        A(f'v_min_u32 {v(vFl)}, {flags["n"] - 1}, {v(vLane)}')
        A(f'v_lshlrev_b32 {v(vFl)}, 2, {v(vFl)}')
        if True:
            A(f'v_min_u32 {v(vT0)}, 2, {v(vLane)}')
            A(f'v_lshlrev_b32 {v(vFp)}, 6, {v(vT0)}')
    T_PEND = 36
    A(f's_mov_b32 {s(T_PEND)}, 0')
    top = A.newlabel('atop')
    A.label(top)
    if flags:
        emit_poll_block(A, vFv, vFp, T_FPR, T_SPIN, end_label, sleep=8,
                        pend=(T_PEND, T_FOUT, 1024 * segstep, vOne))
        A(f's_add_u32 {s(T_FPR)}, {s(T_FPR)}, {1024 * segstep}')

    def ld8(dst, voff, soff):
        A(f's_add_u32 {s(T_T0)}, {s(soff)}, 4096')
        for c in range(8):
            so = soff if c < 4 else T_T0
            A(f'buffer_load_dwordx4 {v(dst + c * 4, 4)}, {v(voff)}, {srd(SRD_WS)}, {s(so)} offen '
              f'offset:{(c & 3) * 1024}{SC}')

    ld8(KF, vK, T_K)
    ld8(QF, vL16, T_Q)
    A(f's_add_u32 {s(T_T0)}, {s(T_V)}, 4096')
    for T in range(4):
        for f in (0, 1):
            so = T_V if f == 0 else T_T0
            A(f'buffer_load_dwordx4 {v(VF + (T * 2 + f) * 4, 4)}, {v(vV)}, {srd(SRD_WS)}, {s(so)} offen '
              f'offset:{T * 512}{SC}')
    for c in range(8):
        A(f's_waitcnt vmcnt({8 + 7 - c})')
        cin = '0' if c == 0 else v(SX, 16)
        A(f'v_mfma_f32_32x32x16_bf16 {v(SX, 16)}, {v(KF + c * 4, 4)}, {v(QF + c * 4, 4)}, {cin}')
    if flags:
        emit_poll_block(A, vFv, vFl, T_FIN, T_SPIN, end_label, sleep=3)
        A(f's_add_u32 {s(T_FIN)}, {s(T_FIN)}, {1024 * segstep}')
    for c in range(8):
        A(f'buffer_load_dwordx4 {v(KMF + c * 4, 4)}, {v(vKM)}, {srd(SRD_WS)}, {s(T_KM)} offen '
          f'offset:{c * 256}{SC}')
    for T in range(4):
        A(f'buffer_load_dwordx2 {v(VMF + T * 4, 2)}, {v(vVM)}, {srd(SRD_WS)}, {s(T_VM)} offen '
          f'offset:{T * 256}{SC}')
    for i in range(16):
        A(f'v_fma_f32 {v(SX + i)}, {v(SX + i)}, s40, {v(BIAS + i)}')
    mx = vT0
    A(f'v_max3_f32 {v(mx)}, {v(SX)}, {v(SX + 1)}, {v(SX + 2)}')
    for i in range(3, 15, 2):
        A(f'v_max3_f32 {v(mx)}, {v(mx)}, {v(SX + i)}, {v(SX + i + 1)}')
    A(f'v_max_f32 {v(mx)}, {v(mx)}, {v(SX + 15)}')
    for c in range(8):
        A(f's_waitcnt vmcnt({4 + 7 - c})')
        cin = '0' if c == 0 else v(SM, 16)
        A(f'v_mfma_f32_32x32x16_bf16 {v(SM, 16)}, {v(KMF + c * 4, 4)}, {v(QF + c * 4, 4)}, {cin}')
    for i in range(4):
        A(f'v_mul_f32 {v(SM + i)}, s40, {v(SM + i)}')
    A(f'v_max3_f32 {v(mx)}, {v(mx)}, {v(SM)}, {v(SM + 1)}')
    A(f'v_max3_f32 {v(mx)}, {v(mx)}, {v(SM + 2)}, {v(SM + 3)}')
    A(f'v_mov_b32 {v(vT1)}, {v(mx)}')
    A(f'v_permlane32_swap_b32 {v(mx)}, {v(vT1)}')
    A(f'v_max_f32 {v(mx)}, {v(mx)}, {v(vT1)}')
    vals = [SX + i for i in range(16)] + [SM + i for i in range(4)]
    for r in vals:
        A(f'v_sub_f32 {v(r)}, {v(r)}, {v(mx)}')
    for r in vals:
        A(f'v_exp_f32 {v(r)}, {v(r)}')
    sm = vT1
    A(f'v_add_f32 {v(sm)}, {v(vals[0])}, {v(vals[1])}')
    A(f'v_add_f32 {v(vT2)}, {v(vals[2])}, {v(vals[3])}')
    for i in range(4, 20, 2):
        A(f'v_add_f32 {v(sm)}, {v(sm)}, {v(vals[i])}')
        A(f'v_add_f32 {v(vT2)}, {v(vT2)}, {v(vals[i + 1])}')
    A(f'v_add_f32 {v(sm)}, {v(sm)}, {v(vT2)}')
    A(f'v_mov_b32 {v(vT2)}, {v(sm)}')
    A(f'v_permlane32_swap_b32 {v(sm)}, {v(vT2)}')
    A(f'v_add_f32 {v(sm)}, {v(sm)}, {v(vT2)}')
    A(f'v_rcp_f32 {v(sm)}, {v(sm)}')
    for r in vals:
        A(f'v_mul_f32 {v(r)}, {v(r)}, {v(sm)}')
    for j in range(10):
        A(f'v_cvt_pk_bf16_f32 {v(PB + j)}, {v(vals[2 * j])}, {v(vals[2 * j + 1])}')
    A('s_waitcnt vmcnt(0)')
    for T in range(4):
        o = v(OA + T * 16, 16)
        A(f'v_mfma_f32_32x32x16_bf16 {o}, {v(VF + T * 8, 4)}, {v(PB, 4)}, 0')
        A(f'v_mfma_f32_32x32x16_bf16 {o}, {v(VF + T * 8 + 4, 4)}, {v(PB + 4, 4)}, {o}')
        A(f'v_mfma_f32_32x32x16_bf16 {o}, {v(VMF + T * 4, 4)}, {v(PB + 8, 4)}, {o}')
    A(f's_add_u32 {s(T_T0)}, {s(T_O)}, 4096')
    for T in range(4):
        for f in (0, 1):
            n = T * 2 + f
            d = KMF + n * 4
            for j in range(4):
                r0 = OA + T * 16 + f * 8 + 2 * j
                A(f'v_cvt_pk_bf16_f32 {v(d + j)}, {v(r0)}, {v(r0 + 1)}')
            so = T_O if n < 4 else T_T0
            A(f'buffer_store_dwordx4 {v(d, 4)}, {v(vL16)}, {srd(SRD_WS)}, {s(so)} offen '
              f'offset:{(n & 3) * 1024}{SC}')
    A(f's_mov_b32 {s(T_PEND)}, 1')
    for r, st in ((T_Q, 262144), (T_K, 262144), (T_V, 262144), (T_KM, 65536), (T_VM, 65536), (T_O, 262144)):
        A(f's_add_u32 {s(r)}, {s(r)}, {st * segstep}')
    A(f's_sub_u32 {s(T_CNT)}, {s(T_CNT)}, 1')
    A(f's_cmp_lg_u32 {s(T_CNT)}, 0')
    A(f's_cbranch_scc1 {top}')
    if flags:
        A('s_waitcnt vmcnt(0)')
        emit_signal(A, T_FOUT, vOne)
    A(f's_branch {end_label}')


def ao_role(A, segstep, end_label):
    gemm_setup(A, 32, 'part', 1024, SRD_A, SRD_A)
    T_Q, T_K, T_V, T_KM, T_VM, T_FPR = 50, 51, 52, 53, 54, 55
    T_OUT, T_CNT, T_FIN, T_FOUT = 27, 28, 29, 30
    T_T0, T_T1, T_SPIN, T_PREF, T_PEND = 31, 32, 35, 33, 34
    P_Q, P_K, P_V = 56, 58, 60
    vL16, vLane = 1, 2
    vT0, vT1, vT2 = 3, 4, 5
    vK, vKM, vV, vVM, vFl, vFv, vOne, vFp, vOut, vLw = 6, 7, 8, 9, 10, 11, 12, 13, 14, 15
    BIAS = 16
    QF, KF, KMF, VF, VMF = 32, 64, 96, 128, 160
    SX, SM = 176, 192
    PB = 208
    OA = 32
    TMP = 220
    vSy, vC1, vSt, vRd, vFq = 236, 238, 239, 240, 241
    SC = ' sc1'
    scale_log2e = (128 ** -0.5) * 1.4426950408889634
    A(f'v_mov_b32 {v(vOut)}, v9')
    A(f'v_and_b32 {v(vT0)}, 0x13, {v(vLane)}')
    A(f'v_bfe_u32 {v(vT1)}, {v(vLane)}, 2, 1')
    A(f'v_lshl_or_b32 {v(vT0)}, {v(vT1)}, 3, {v(vT0)}')
    A(f'v_bfe_u32 {v(vT1)}, {v(vLane)}, 3, 1')
    A(f'v_lshl_or_b32 {v(vT0)}, {v(vT1)}, 2, {v(vT0)}')
    A(f'v_lshrrev_b32 {v(vT1)}, 5, {v(vLane)}')
    A(f'v_lshlrev_b32 {v(vK)}, 4, {v(vT0)}')
    A(f'v_lshl_add_u32 {v(vK)}, {v(vT1)}, 9, {v(vK)}')
    A(f'v_lshlrev_b32 {v(vV)}, 4, {v(vT0)}')
    A(f'v_lshl_add_u32 {v(vV)}, {v(vT1)}, 11, {v(vV)}')
    A(f'v_lshlrev_b32 {v(vVM)}, 3, {v(vT0)}')
    A(f'v_lshl_add_u32 {v(vVM)}, {v(vT1)}, 10, {v(vVM)}')
    A(f'v_and_b32 {v(vT2)}, 7, {v(vLane)}')
    A(f'v_lshlrev_b32 {v(vKM)}, 4, {v(vT2)}')
    A(f'v_lshl_add_u32 {v(vKM)}, {v(vT1)}, 7, {v(vKM)}')
    A(f'v_and_b32 {v(vT2)}, 31, {v(vLane)}')
    A(f'v_lshlrev_b32 {v(vT1)}, 3, {v(vT1)}')
    A(f'v_sub_u32 {v(vT2)}, {v(vT2)}, {v(vT1)}')
    A(f'v_mov_b32 {v(vT0)}, {f32bits(-1e30):#x}')
    for i in range(16):
        A(f'v_cmp_gt_i32 vcc, {16 * (i >> 3) + (i & 7)}, {v(vT2)}')
        A(f'v_cndmask_b32 {v(BIAS + i)}, 0, {v(vT0)}, vcc')
    for T in range(4):
        A(f'v_mov_b32 {v(VMF + T * 4 + 2)}, 0')
        A(f'v_mov_b32 {v(VMF + T * 4 + 3)}, 0')
    A(f'v_mov_b32 {v(PB + 10)}, 0')
    A(f'v_mov_b32 {v(PB + 11)}, 0')
    A(f'v_mov_b32 {v(vOne)}, 1')
    A(f's_mov_b32 s40, {f32bits(scale_log2e):#x}')
    A(f'v_mov_b32 {v(vFl)}, 0')
    A(f'v_min_u32 {v(vT0)}, 2, {v(vLane)}')
    A(f'v_lshlrev_b32 {v(vFp)}, 6, {v(vT0)}')
    A(f's_lshl_b32 {s(T_T0)}, {s(S_WAVE)}, 13')
    A(f'v_add_u32 {v(vLw)}, {s(T_T0)}, {v(vL16)}')
    A(f'v_mov_b32 {v(vRd)}, {v(vL16)}')
    sync_setup(A, vSy, vC1)
    A('s_barrier')

    def set_src(real):
        for p, r in ((P_Q, T_Q), (P_K, T_K), (P_V, T_V)):
            if real is None:
                A(f's_mov_b32 {s(p)}, {s(r)}')
            else:
                A(f's_cselect_b32 {s(p)}, {s(r)}, {OOB}')
        for p in (P_Q, P_K, P_V):
            A(f's_add_u32 {s(p + 1)}, {s(p)}, 4096')

    def load_list():
        L = []
        for c in range(8):
            L.append(f'buffer_load_dwordx4 {v(KF + c * 4, 4)}, {v(vK)}, {srd(SRD_WS)}, {s(P_K + (c >> 2))} offen '
                     f'offset:{(c & 3) * 1024}{SC}')
            L.append(f'buffer_load_dwordx4 {v(QF + c * 4, 4)}, {v(vL16)}, {srd(SRD_WS)}, {s(P_Q + (c >> 2))} offen '
                     f'offset:{(c & 3) * 1024}{SC}')
        for T in range(4):
            for f in (0, 1):
                L.append(f'buffer_load_dwordx4 {v(VF + (T * 2 + f) * 4, 4)}, {v(vV)}, {srd(SRD_WS)}, '
                         f'{s(P_V + f)} offen offset:{T * 512}{SC}')
        return L

    def adv_in():
        for r in (T_Q, T_K, T_V):
            A(f's_add_u32 {s(r)}, {s(r)}, {262144 * segstep}')
        A(f's_add_u32 {s(T_FPR)}, {s(T_FPR)}, {1024 * segstep}')

    emit_poll_block(A, vFv, vFp, T_FPR, T_SPIN, end_label, sleep=8)
    set_src(None)
    for x in load_list():
        A(x)
    adv_in()
    A(f's_mov_b32 {s(T_PEND)}, 0')

    def signal():
        emit_signal_agg(A, T_FOUT, vOne, vSy, vC1, vSt, T_T0)
        A(f's_add_u32 {s(T_FOUT)}, {s(T_FOUT)}, {1024 * segstep}')
        A(f's_mov_b32 {s(T_PEND)}, 0')

    top = A.newlabel('aotop')
    A.label(top)
    A(f's_sub_u32 {s(T_CNT)}, {s(T_CNT)}, 1')
    emit_poll_issue(A, vFv, vFl, T_FIN)
    A('s_waitcnt vmcnt(9)')
    for c in range(8):
        cin = '0' if c == 0 else v(SX, 16)
        A(f'v_mfma_f32_32x32x16_bf16 {v(SX, 16)}, {v(KF + c * 4, 4)}, {v(QF + c * 4, 4)}, {cin}')
    for i in range(16):
        A(f'v_fma_f32 {v(SX + i)}, {v(SX + i)}, s40, {v(BIAS + i)}')
    mx = vT0
    A(f'v_max3_f32 {v(mx)}, {v(SX)}, {v(SX + 1)}, {v(SX + 2)}')
    for i in range(3, 15, 2):
        A(f'v_max3_f32 {v(mx)}, {v(mx)}, {v(SX + i)}, {v(SX + i + 1)}')
    A(f'v_max_f32 {v(mx)}, {v(mx)}, {v(SX + 15)}')
    A('s_waitcnt vmcnt(0)')
    ns = A.newlabel('aons')
    A(f's_cmp_eq_u32 {s(T_PEND)}, 0')
    A(f's_cbranch_scc1 {ns}')
    signal()
    A.label(ns)
    go = A.newlabel('aogo')
    emit_poll_check(A, vFv)
    A(f's_cbranch_scc1 {go}')
    emit_poll_block(A, vFv, vFl, T_FIN, T_SPIN, end_label, sleep=2)
    A.label(go)
    A(f's_add_u32 {s(T_FIN)}, {s(T_FIN)}, {1024 * segstep}')
    for c in range(8):
        A(f'buffer_load_dwordx4 {v(KMF + c * 4, 4)}, {v(vKM)}, {srd(SRD_WS)}, {s(T_KM)} offen '
          f'offset:{c * 256}{SC}')
    for T in range(4):
        A(f'buffer_load_dwordx2 {v(VMF + T * 4, 2)}, {v(vVM)}, {srd(SRD_WS)}, {s(T_VM)} offen '
          f'offset:{T * 256}{SC}')
    emit_poll_issue(A, vFq, vFp, T_FPR)
    A(f's_add_u32 {s(T_KM)}, {s(T_KM)}, {65536 * segstep}')
    A(f's_add_u32 {s(T_VM)}, {s(T_VM)}, {65536 * segstep}')
    for c in range(8):
        A(f's_waitcnt vmcnt({5 + 7 - c})')
        cin = '0' if c == 0 else v(SM, 16)
        A(f'v_mfma_f32_32x32x16_bf16 {v(SM, 16)}, {v(KMF + c * 4, 4)}, {v(QF + c * 4, 4)}, {cin}')
    for i in range(4):
        A(f'v_mul_f32 {v(SM + i)}, s40, {v(SM + i)}')
    A(f'v_max3_f32 {v(mx)}, {v(mx)}, {v(SM)}, {v(SM + 1)}')
    A(f'v_max3_f32 {v(mx)}, {v(mx)}, {v(SM + 2)}, {v(SM + 3)}')
    A(f'v_mov_b32 {v(vT1)}, {v(mx)}')
    A(f'v_permlane32_swap_b32 {v(mx)}, {v(vT1)}')
    A(f'v_max_f32 {v(mx)}, {v(mx)}, {v(vT1)}')
    vals = [SX + i for i in range(16)] + [SM + i for i in range(4)]
    for r in vals:
        A(f'v_sub_f32 {v(r)}, {v(r)}, {v(mx)}')
    for r in vals:
        A(f'v_exp_f32 {v(r)}, {v(r)}')
    sm = vT1
    A(f'v_add_f32 {v(sm)}, {v(vals[0])}, {v(vals[1])}')
    A(f'v_add_f32 {v(vT2)}, {v(vals[2])}, {v(vals[3])}')
    for i in range(4, 20, 2):
        A(f'v_add_f32 {v(sm)}, {v(sm)}, {v(vals[i])}')
        A(f'v_add_f32 {v(vT2)}, {v(vT2)}, {v(vals[i + 1])}')
    A(f'v_add_f32 {v(sm)}, {v(sm)}, {v(vT2)}')
    A(f'v_mov_b32 {v(vT2)}, {v(sm)}')
    A(f'v_permlane32_swap_b32 {v(sm)}, {v(vT2)}')
    A(f'v_add_f32 {v(sm)}, {v(sm)}, {v(vT2)}')
    A(f'v_rcp_f32 {v(sm)}, {v(sm)}')
    for r in vals:
        A(f'v_mul_f32 {v(r)}, {v(r)}, {v(sm)}')
    for j in range(10):
        A(f'v_cvt_pk_bf16_f32 {v(PB + j)}, {v(vals[2 * j])}, {v(vals[2 * j + 1])}')
    A('s_waitcnt vmcnt(0)')

    def pack(T):
        out = []
        for f in (0, 1):
            n = T * 2 + f
            d = KMF + n * 4
            for j in range(4):
                r0 = OA + T * 16 + f * 8 + 2 * j
                out.append(f'v_cvt_pk_bf16_f32 {v(d + j)}, {v(r0)}, {v(r0 + 1)}')
            out.append(f'ds_write_b128 {v(vLw)}, {v(d, 4)} offset:{n * 1024}')
        return out

    fill = []
    for T in range(4):
        o = v(OA + T * 16, 16)
        for m in (f'v_mfma_f32_32x32x16_bf16 {o}, {v(VF + T * 8, 4)}, {v(PB, 4)}, 0',
                  f'v_mfma_f32_32x32x16_bf16 {o}, {v(VF + T * 8 + 4, 4)}, {v(PB + 4, 4)}, {o}',
                  f'v_mfma_f32_32x32x16_bf16 {o}, {v(VMF + T * 4, 4)}, {v(PB + 8, 4)}, {o}'):
            A(m)
            for _ in range(4):
                if fill:
                    A(fill.pop(0))
        if T >= 1:
            fill += pack(T - 1)
    emit_poll_check(A, vFq)
    A(f's_cselect_b32 {s(T_PREF)}, 1, 0')
    A(f's_cmp_eq_u32 {s(T_CNT)}, 0')
    A(f's_cselect_b32 {s(T_PREF)}, 0, {s(T_PREF)}')
    A(f's_cmp_eq_u32 {s(T_PREF)}, 1')
    set_src(True)
    for x in fill + pack(3):
        A(x)
    A('s_waitcnt lgkmcnt(0)')
    A('s_barrier')
    NK, NS, D2, R2 = 32, 64, 7, 8
    ACC = [SX, SM]

    def rd(n):
        A(f'ds_read_b128 {v(KMF + (n % R2) * 4, 4)}, {v(vRd)} offset:{(n % NK) * 1024}')

    def cvt_tile(t):
        out = []
        for f in (0, 1):
            d = TMP + (t * 2 + f) * 4
            for j in range(4):
                r0 = ACC[t] + f * 8 + 2 * j
                out.append(f'v_cvt_pk_bf16_f32 {v(d + j)}, {v(r0)}, {v(r0 + 1)}')
            out.append(f'buffer_store_dwordx4 {v(d, 4)}, {v(vOut)}, {srd(SRD_WS)}, {s(T_OUT)} offen '
                       f'offset:{(t * 2 + f) * 128}{SC}')
        return out

    for n in range(D2):
        rd(n)
    pl = load_list()
    early = cvt_tile(0)
    for n in range(NS):
        t, c = divmod(n, NK)
        if n + D2 < NS:
            rd(n + D2)
        A(f's_waitcnt lgkmcnt({min(D2, NS - 1 - n)})')
        cin = '0' if c == 0 else v(ACC[t], 16)
        A(f'v_mfma_f32_32x32x16_bf16 {v(ACC[t], 16)}, {a((t * 32 + c) * 4, 4)}, '
          f'{v(KMF + (n % R2) * 4, 4)}, {cin}')
        if pl and (n % 4 != 3):
            A(pl.pop(0))
        if n >= NK + 3:
            for _ in range(2):
                if early:
                    A(early.pop(0))
    assert not pl and not early
    A(f'v_xor_b32 {v(vRd)}, 32768, {v(vRd)}')
    A(f'v_xor_b32 {v(vLw)}, 32768, {v(vLw)}')
    for x in cvt_tile(1):
        A(x)
    A(f's_add_u32 {s(T_OUT)}, {s(T_OUT)}, {PSEG * segstep}')
    A(f's_mov_b32 {s(T_PEND)}, 1')
    pf = A.newlabel('aopf')
    A(f's_cmp_eq_u32 {s(T_PREF)}, 1')
    A(f's_cbranch_scc1 {pf}')
    A('s_waitcnt vmcnt(0)')
    signal()
    A(f's_cmp_eq_u32 {s(T_CNT)}, 0')
    A(f's_cbranch_scc1 {end_label}')
    emit_poll_block(A, vFv, vFp, T_FPR, T_SPIN, end_label, sleep=4)
    set_src(None)
    for x in load_list():
        A(x)
    A.label(pf)
    adv_in()
    A(f's_branch {top}')


def ln_wave(A, srd_x, s_x, s_xn, ntask, x_step, xn_step, between=None):
    vLane = 2
    vX, vN, m, q, t = 6, 7, 8, 9, 10
    XF, PN = 16, 48
    LD = 64
    A(f'v_and_b32 v3, 3, {v(vLane)}')
    A(f'v_lshrrev_b32 v4, 2, {v(vLane)}')
    A(f'v_lshlrev_b32 {v(vX)}, 10, v3')
    A(f'v_lshl_add_u32 {v(vX)}, v4, 4, {v(vX)}')
    A(f'v_lshlrev_b32 {v(vN)}, 9, v4')
    A(f'v_lshl_add_u32 {v(vN)}, v3, 4, {v(vN)}')
    A('s_mov_b32 s40, 0xffff0000')
    for i in range(ntask):
        for j in range(4):
            A(f'buffer_load_dwordx4 {v(LD + i * 16 + j * 4, 4)}, {v(vX)}, {srd(srd_x)}, {s(s_x)} offen offset:{j * 256}')
        A(f's_add_u32 {s(s_x)}, {s(s_x)}, {x_step}')
    nb = between() if between else 0

    def reduce(r):
        A(f'v_add_f32_dpp {v(r)}, {v(r)}, {v(r)} row_ror:4 row_mask:0xf bank_mask:0xf')
        A(f'v_add_f32_dpp {v(r)}, {v(r)}, {v(r)} row_ror:8 row_mask:0xf bank_mask:0xf')
        A(f'v_mov_b32 {v(t)}, {v(r)}')
        A(f'v_permlane16_swap_b32 {v(r)}, {v(t)}')
        A(f'v_add_f32 {v(r)}, {v(r)}, {v(t)}')
        A(f'v_mov_b32 {v(t)}, {v(r)}')
        A(f'v_permlane32_swap_b32 {v(r)}, {v(t)}')
        A(f'v_add_f32 {v(r)}, {v(r)}, {v(t)}')

    def rb(r):
        A(f'v_cvt_pk_bf16_f32 {v(r)}, {v(r)}, {v(r)}')
        A(f'v_lshlrev_b32 {v(r)}, 16, {v(r)}')

    for i in range(ntask):
        S = LD + i * 16
        A(f's_waitcnt vmcnt({4 * (ntask - 1) + nb})')
        for j in range(16):
            A(f'v_lshlrev_b32 {v(XF + 2 * j)}, 16, {v(S + j)}')
            A(f'v_and_b32 {v(XF + 2 * j + 1)}, s40, {v(S + j)}')
        A(f'v_add_f32 {v(m)}, {v(XF)}, {v(XF + 1)}')
        A(f'v_add_f32 {v(q)}, {v(XF + 2)}, {v(XF + 3)}')
        for j in range(4, 32, 2):
            A(f'v_add_f32 {v(m)}, {v(m)}, {v(XF + j)}')
            A(f'v_add_f32 {v(q)}, {v(q)}, {v(XF + j + 1)}')
        A(f'v_add_f32 {v(m)}, {v(m)}, {v(q)}')
        reduce(m)
        A(f'v_mul_f32 {v(m)}, {f32bits(1.0 / 512):#x}, {v(m)}')
        A(f'v_mov_b32 {v(q)}, 0')
        A(f'v_mov_b32 v11, 0')
        for j in range(0, 32, 2):
            A(f'v_sub_f32 v12, {v(XF + j)}, {v(m)}')
            A(f'v_sub_f32 v13, {v(XF + j + 1)}, {v(m)}')
            A(f'v_fmac_f32 {v(q)}, v12, v12')
            A(f'v_fmac_f32 v11, v13, v13')
        A(f'v_add_f32 {v(q)}, {v(q)}, v11')
        reduce(q)
        A(f'v_mul_f32 {v(q)}, {f32bits(1.0 / 512):#x}, {v(q)}')
        rb(q)
        A(f'v_add_f32 {v(q)}, {f32bits(1e-5):#x}, {v(q)}')
        rb(q)
        A(f'v_sqrt_f32 {v(q)}, {v(q)}')
        rb(q)
        A(f'v_rcp_f32 {v(q)}, {v(q)}')
        rb(m)
        for j in range(32):
            A(f'v_sub_f32 {v(XF + j)}, {v(XF + j)}, {v(m)}')
        for j in range(16):
            A(f'v_cvt_pk_bf16_f32 {v(S + j)}, {v(XF + 2 * j)}, {v(XF + 2 * j + 1)}')
        for j in range(16):
            A(f'v_lshlrev_b32 {v(XF + 2 * j)}, 16, {v(S + j)}')
            A(f'v_and_b32 {v(XF + 2 * j + 1)}, s40, {v(S + j)}')
        for j in range(32):
            A(f'v_mul_f32 {v(XF + j)}, {v(XF + j)}, {v(q)}')
        for j in range(16):
            A(f'v_cvt_pk_bf16_f32 {v(S + j)}, {v(XF + 2 * j)}, {v(XF + 2 * j + 1)}')
        for j in range(4):
            A(f's_add_u32 s41, {s(s_xn)}, {j * 8192}')
            A(f'buffer_store_dwordx4 {v(S + j * 4, 4)}, {v(vN)}, {srd(SRD_WS)}, s41 offen sc1')
        A(f's_add_u32 {s(s_xn)}, {s(s_xn)}, {xn_step}')
```

```python
from asmdsl import v, a, s
from layout import *
from roles import *

M_ME, M_K, M_V, M_KM, M_VM, M_TP, M_TM, M_CTL, M_FPR, M_FOUT = 24, 25, 26, 27, 28, 29, 30, 31, 32, 33
M_STEP, M_T0, M_T1, M_T2, M_SPIN = 34, 35, 36, 37, 38
M_PW, M_PR, M_MP, M_MRS, M_MRD = 39, 40, 41, 42, 43
SRD_M0 = 44
M_PUBX = 48
M_ODD = 52
M_C = 54
M_PW2 = 56
M_XCC = 57
M_FAST = 59
M_PRO, M_SIG = 90, 91
M_SRC, M_EXP, M_DST, M_HS = 50, 51, 55, 58
M_FP2 = 58
M_K2, M_EXO, M_SIG2 = 50, 27, 28

STAMP_NAMES = []
L_MEM = 131072
L_KX = L_MEM + 8192
L_VX = L_KX + 8192
L_QK = L_VX + 8192
L_O = L_QK + 4096
L_SEL = L_O + 2048
L_END = L_SEL + 1024

vOne, vL16, vLane = 0, 1, 2
vTouch = 2
vIdx, vWl, vHi, vQKw, vQr, vKMr, vOw, vPw, vPub, vHD, vVMw, vFl, vTa, vFv, vVr, vMw, vEx = range(3, 20)
t0, t1, t2, t3 = 20, 21, 22, 23
VX = 24
MF = 32
ACC = 64
S1 = 88
E = 120
QA, KA, VA = ACC, ACC + 8, ACC + 16
ONES = E + 4

RBLOCKS = ([('q', i) for i in (0, 2, 1, 3, 5, 7)] + [('k', i) for i in (0, 2, 1, 3, 5, 7)]
           + [('v', i) for i in (0, 2, 1, 3, 4, 6, 5, 7)]
           + [('o', 1, 0), ('o', 1, 1), ('o', 2, 0), ('o', 2, 1)])
LBLOCKS = [('q', 4), ('q', 6), ('k', 4), ('k', 6), ('o', 0, 0), ('o', 0, 1), ('o', 3, 0), ('o', 3, 1)]


def rreg(blk, t, n=8, off=0):
    r = (RBLOCKS.index(blk) * 2 + t) * 8 + off
    return a(r, n) if r < 256 else v(128 + r - 256, n)


def loff(blk, t):
    return LBLOCKS.index(blk) * 4096 + t * 2048


def hi(x):
    return x - L_MEM


def team_role(A, end_label, flags=None, force_slow=False, nsteps=NSEG, stamp=False, purity='ctl', tune=None):
    tune = tune or {}
    vS, vZ, vCh, vWq, vWoD, vTr0, vTr1 = 32, 33, 34, 35, 36, 37, 38
    A(f'v_bfe_u32 {v(vS)}, {v(vLane)}, 2, 1')
    A(f'v_bfe_u32 {v(t0)}, {v(vLane)}, 5, 1')
    A(f'v_lshl_add_u32 {v(vS)}, {v(t0)}, 1, {v(vS)}')
    A(f'v_bfe_u32 {v(t0)}, {v(vLane)}, 4, 1')
    A(f'v_lshl_add_u32 {v(vS)}, {v(t0)}, 2, {v(vS)}')
    A(f'v_bfe_u32 {v(vZ)}, {v(vLane)}, 3, 1')
    A(f'v_and_b32 {v(vCh)}, 3, {v(vLane)}')
    A(f'v_lshlrev_b32 {v(t0)}, 1, {v(t0)}')
    A(f'v_xor_b32 {v(vCh)}, {v(vCh)}, {v(t0)}')
    A(f'v_lshl_add_u32 {v(t1)}, {v(vS)}, 4, {v(vZ)}')
    A(f'v_lshlrev_b32 {v(vWq)}, 13, {v(t1)}')
    A(f'v_lshl_add_u32 {v(vWq)}, {v(vCh)}, 4, {v(vWq)}')
    A(f'v_lshl_add_u32 {v(t1)}, {v(vZ)}, 3, {v(vS)}')
    A(f'v_lshlrev_b32 {v(vWoD)}, 10, {v(t1)}')
    A(f'v_lshl_add_u32 {v(vWoD)}, {v(vCh)}, 4, {v(vWoD)}')
    A(f'v_bfe_u32 {v(t0)}, {v(vLane)}, 2, 3')
    A(f'v_bfe_u32 {v(t1)}, {v(vLane)}, 5, 1')
    A(f'v_lshl_add_u32 {v(t0)}, {v(t1)}, 4, {v(t0)}')
    A(f'v_lshlrev_b32 {v(vTr0)}, 6, {v(t0)}')
    A(f'v_and_b32 {v(t0)}, 3, {v(vLane)}')
    A(f'v_lshl_add_u32 {v(vTr0)}, {v(t0)}, 3, {v(vTr0)}')
    A(f'v_bfe_u32 {v(t1)}, {v(vLane)}, 4, 1')
    A(f'v_lshl_add_u32 {v(vTr0)}, {v(t1)}, 5, {v(vTr0)}')
    A(f's_lshl_b32 {s(M_T0)}, {s(S_WAVE)}, 15')
    A(f'v_add_u32 {v(vTr0)}, {s(M_T0)}, {v(vTr0)}')
    A(f'v_xor_b32 {v(vTr1)}, 32, {v(vTr0)}')
    A(f'v_add_u32 {v(vWl)}, {s(M_T0)}, {v(vL16)}')

    if purity == 'ctl':
        A(f's_getreg_b32 {s(M_XCC)}, hwreg(HW_REG_XCC_ID)')
        A(f's_and_b32 {s(M_XCC)}, {s(M_XCC)}, 15')
        A(f's_add_u32 {s(M_XCC)}, {s(M_XCC)}, 1')
        A(f'v_mov_b32 {v(t0)}, {s(M_XCC)}')
        A(f's_lshl_b32 {s(M_T0)}, {s(M_ME)}, 2')
        A(f's_add_u32 {s(M_T0)}, {s(M_T0)}, {s(M_CTL)}')
        A('s_mov_b64 exec, 1')
        A(f'buffer_store_dword {v(t0)}, off, {srd(SRD_WS)}, {s(M_T0)} sc1')
        A('s_mov_b64 exec, -1')

    A(f's_lshl_b32 {s(M_T2)}, {s(M_ME)}, 8')
    A(f's_lshl_b32 {s(M_T0)}, {s(S_WAVE)}, 6')
    A(f's_add_u32 {s(M_T2)}, {s(M_T2)}, {s(M_T0)}')
    A(f's_lshl_b32 {s(M_T1)}, {s(M_ME)}, 17')
    A(f's_lshl_b32 {s(M_T0)}, {s(S_WAVE)}, 8')
    A(f's_add_u32 {s(M_T1)}, {s(M_T1)}, {s(M_T0)}')
    def early_consts():
        n_, G_, hi_, row_ = 44, 45, 46, 47
        A(f'v_and_b32 {v(n_)}, 15, {v(vLane)}')
        A(f'v_lshrrev_b32 {v(G_)}, 4, {v(vLane)}')
        A(f'v_and_b32 {v(hi_)}, 1, {v(vLane)}')
        A(f'v_lshrrev_b32 {v(row_)}, 1, {v(n_)}')
        A(f'v_cmp_eq_u32 {s(M_ODD, 2)}, 1, {v(hi_)}')
        A(f'v_mov_b32 {v(t0)}, 0x4444')
        A(f'v_mov_b32 {v(t1)}, 0xeeee')
        A(f'v_cndmask_b32 {v(vIdx)}, {v(t0)}, {v(t1)}, {s(M_ODD, 2)}')
        A(f'v_add_u32 {v(vHi)}, {L_MEM}, {v(vL16)}')
        A(f's_lshl_b32 {s(M_T0)}, {s(S_WAVE)}, 11')
        A(f'v_add_u32 {v(vMw)}, {s(M_T0)}, {v(vHi)}')
        A(f's_add_u32 {s(M_DST)}, {s(M_T0)}, {L_KX}')
        A(f'v_lshlrev_b32 {v(vVr)}, 11, {v(G_)}')
        A(f'v_lshl_add_u32 {v(vVr)}, {v(n_)}, 4, {v(vVr)}')
        A(f's_lshl_b32 {s(M_T0)}, {s(S_WAVE)}, 9')
        A(f'v_add_u32 {v(vVr)}, {s(M_T0)}, {v(vVr)}')
        A(f's_lshl_b32 {s(M_T0)}, {s(S_WAVE)}, 10')
        A(f's_add_u32 {s(M_T0)}, {s(M_T0)}, {L_QK}')
        A(f'v_add_u32 {v(vEx)}, {s(M_T0)}, {v(vL16)}')
        A(f's_cmp_ge_u32 {s(S_WAVE)}, 2')
        A(f's_cselect_b32 {s(M_EXP)}, {s(M_KM)}, {s(M_VM)}')
        A(f's_and_b32 {s(M_T0)}, {s(S_WAVE)}, 1')
        A(f's_lshl_b32 {s(M_T0)}, {s(M_T0)}, 10')
        A(f's_add_u32 {s(M_EXP)}, {s(M_EXP)}, {s(M_T0)}')
        A(f'v_lshrrev_b32 {v(t0)}, 3, {v(n_)}')
        A(f'v_lshlrev_b32 {v(vQKw)}, 7, {v(t0)}')
        A(f'v_lshl_add_u32 {v(vQKw)}, {v(G_)}, 5, {v(vQKw)}')
        A(f'v_and_b32 {v(t0)}, 7, {v(n_)}')
        A(f'v_lshl_add_u32 {v(vQKw)}, {v(t0)}, 1, {v(vQKw)}')
        A(f's_lshl_b32 {s(M_T0)}, {s(S_WAVE)}, 9')
        A(f's_add_u32 {s(M_T0)}, {s(M_T0)}, {L_QK}')
        A(f'v_add_u32 {v(vQKw)}, {s(M_T0)}, {v(vQKw)}')
        A(f'v_lshl_add_u32 {v(t0)}, {v(G_)}, 3, {v(row_)}')
        A(f'v_lshlrev_b32 {v(vQr)}, 4, {v(t0)}')
        A(f'v_add_u32 {v(vQr)}, {L_QK}, {v(vQr)}')
        A(f'v_lshrrev_b32 {v(t0)}, 2, {v(n_)}')
        A(f'v_lshl_add_u32 {v(t0)}, {v(t0)}, 1, {v(hi_)}')
        A(f'v_lshl_add_u32 {v(t1)}, {v(G_)}, 3, {v(t0)}')
        A(f'v_lshlrev_b32 {v(vKMr)}, 4, {v(t1)}')
        A(f'v_add_u32 {v(vKMr)}, {L_QK + 2048}, {v(vKMr)}')
        A(f'v_lshlrev_b32 {v(vOw)}, 8, {v(hi_)}')
        A(f'v_lshl_add_u32 {v(vOw)}, {v(row_)}, 5, {v(vOw)}')
        A(f'v_lshl_add_u32 {v(vOw)}, {v(G_)}, 3, {v(vOw)}')
        A(f's_lshl_b32 {s(M_T0)}, {s(S_WAVE)}, 9')
        A(f's_add_u32 {s(M_T0)}, {s(M_T0)}, {L_O}')
        A(f'v_add_u32 {v(vOw)}, {s(M_T0)}, {v(vOw)}')
        A(f'v_lshrrev_b32 {v(t0)}, 2, {v(n_)}')
        A(f'v_lshlrev_b32 {v(vPw)}, 14, {v(t0)}')
        A(f'v_lshrrev_b32 {v(t0)}, 1, {v(G_)}')
        A(f'v_lshl_add_u32 {v(vPw)}, {v(t0)}, 13, {v(vPw)}')
        A(f'v_and_b32 {v(t0)}, 1, {v(G_)}')
        A(f'v_lshl_add_u32 {v(vPw)}, {v(t0)}, 11, {v(vPw)}')
        A(f'v_and_b32 {v(t0)}, 3, {v(n_)}')
        A(f'v_lshl_add_u32 {v(vPw)}, {v(t0)}, 4, {v(vPw)}')
        A(f's_lshl_b32 {s(M_T0)}, {s(S_WAVE)}, 16')
        A(f'v_add_u32 {v(vPw)}, {s(M_T0)}, {v(vPw)}')
        A(f'v_bfe_u32 {v(t0)}, {v(n_)}, 1, 1')
        A(f'v_lshlrev_b32 {v(vPub)}, 8, {v(t0)}')
        A(f'v_lshl_add_u32 {v(vPub)}, {v(hi_)}, 4, {v(vPub)}')
        A(f'v_and_b32 {v(t0)}, 1, {v(G_)}')
        A(f'v_lshl_add_u32 {v(vPub)}, {v(t0)}, 5, {v(vPub)}')
        A(f's_lshr_b32 {s(M_T0)}, {s(M_ME)}, 1')
        A(f's_lshl_b32 {s(M_T0)}, {s(M_T0)}, 9')
        A(f's_and_b32 {s(M_T1)}, {s(M_ME)}, 1')
        A(f's_lshl_b32 {s(M_T1)}, {s(M_T1)}, 7')
        A(f's_add_u32 {s(M_T0)}, {s(M_T0)}, {s(M_T1)}')
        A(f's_and_b32 {s(M_T1)}, {s(S_WAVE)}, 1')
        A(f's_lshl_b32 {s(M_T1)}, {s(M_T1)}, 6')
        A(f's_add_u32 {s(M_T0)}, {s(M_T0)}, {s(M_T1)}')
        A(f's_lshr_b32 {s(M_T1)}, {s(S_WAVE)}, 1')
        A(f's_lshl_b32 {s(M_T1)}, {s(M_T1)}, 3')
        A(f's_add_u32 {s(M_T0)}, {s(M_T0)}, {s(M_T1)}')
        A(f'v_add_u32 {v(vPub)}, {s(M_T0)}, {v(vPub)}')
        A(f's_mov_b32 {s(M_PUBX)}, 0x000f000f')
        A(f's_mov_b32 {s(M_PUBX + 1)}, 0')
        A(f'v_lshrrev_b32 {v(t0)}, 2, {v(n_)}')
        A(f'v_lshlrev_b32 {v(vHD)}, 7, {v(t0)}')
        A(f'v_and_b32 {v(t0)}, 3, {v(n_)}')
        A(f'v_lshl_add_u32 {v(vHD)}, {v(t0)}, 4, {v(vHD)}')
        A(f'v_lshl_add_u32 {v(vHD)}, {v(G_)}, 9, {v(vHD)}')
        A(f's_lshl_b32 {s(M_T0)}, {s(S_WAVE)}, 11')
        A(f'v_add_u32 {v(vHD)}, {s(M_T0)}, {v(vHD)}')
        A(f'v_lshrrev_b32 {v(t0)}, 1, {v(G_)}')
        A(f'v_lshlrev_b32 {v(vVMw)}, 10, {v(t0)}')
        A(f'v_lshl_add_u32 {v(vVMw)}, {v(n_)}, 3, {v(vVMw)}')
        A(f'v_and_b32 {v(t0)}, 1, {v(G_)}')
        A(f'v_lshl_add_u32 {v(vVMw)}, {v(t0)}, 2, {v(vVMw)}')
        A(f's_lshl_b32 {s(M_T0)}, {s(S_WAVE)}, 8')
        A(f's_add_u32 {s(M_T0)}, {s(M_T0)}, {L_QK}')
        A(f'v_add_u32 {v(vVMw)}, {s(M_T0)}, {v(vVMw)}')
        A(f'v_lshlrev_b32 {v(vTa)}, 7, {v(n_)}')
        A(f's_lshl_b32 {s(M_T0)}, {s(S_WAVE)}, 11')
        A(f's_add_u32 {s(M_T0)}, {s(M_T0)}, 262144')
        A(f'v_add_u32 {v(vTa)}, {s(M_T0)}, {v(vTa)}')
        A(f'v_and_b32 {v(t0)}, 1, {v(G_)}')
        A(f'v_lshl_add_u32 {v(vTa)}, {v(t0)}, 25, {v(vTa)}')
        assert VT - KB == 1 << 25
        for u in range(4):
            A(f'v_cmp_eq_u32 vcc, {2 * u}, {v(n_)}')
            A(f'v_mov_b32 {v(t0)}, 0x3f80')
            A(f'v_cndmask_b32 {v(48 + u)}, 0, {v(t0)}, vcc')
            A(f'v_cmp_eq_u32 vcc, {2 * u + 1}, {v(n_)}')
            A(f'v_mov_b32 {v(t0)}, 0x3f800000')
            A(f'v_cndmask_b32 {v(48 + u)}, {v(48 + u)}, {v(t0)}, vcc')
            A(f'v_mov_b32 {v(ONES + u)}, 0x3f803f80')
        A(f's_mov_b32 {s(M_C)}, {f32bits((128 ** -0.5) * 1.4426950408889634):#x}')
        A(f'v_lshlrev_b32 {v(vFl)}, 6, {v(hi_)}')
        A(f'v_lshlrev_b32 {v(t2)}, 10, {v(row_)}')
        A(f'v_lshl_add_u32 {v(t0)}, {v(G_)}, 1, {v(hi_)}')
        A(f'v_lshl_add_u32 {v(t2)}, {v(t0)}, 1, {v(t2)}')
        A(f's_lshl_b32 {s(M_T0)}, {s(S_WAVE)}, 8')
        A(f'v_add_u32 {v(t2)}, {s(M_T0)}, {v(t2)}')
        for f in (0, 1):
            for sl in range(8):
                A(f'buffer_load_ushort {v(96 + f * 8 + sl)}, {v(t2)}, {srd(SRD_M0)}, 0 offen '
                  f'offset:{f * 16 + sl * 32}')

    def late_consts():
        A(f'ds_write_b128 {v(vHi)}, {v(48, 4)} offset:{hi(L_SEL)}')
        for r in range(8):
            A(f'v_lshl_or_b32 {v(MF + r)}, {v(96 + 2 * r + 1)}, 16, {v(96 + 2 * r)}')
        A(f's_lshl_b32 {s(M_T0)}, {s(S_WAVE)}, 11')
        A(f'v_add_u32 {v(t2)}, {s(M_T0)}, {v(vHi)}')
        A(f'ds_write_b128 {v(t2)}, {v(MF, 4)}')
        A(f'ds_write_b128 {v(t2)}, {v(MF + 4, 4)} offset:1024')
        A(f'v_lshlrev_b32 {v(t3)}, 2, {v(vLane)}')
        A(f'v_and_b32 {v(t3)}, 127, {v(t3)}')
        A(f'v_mov_b32 {v(vOne)}, 1')
        A(f'v_mov_b32 {v(vFv)}, 0')
        A(f's_mov_b32 {s(M_STEP)}, 0')

    A(f's_lshl_b32 {s(M_SPIN)}, {s(S_WAVE)}, 15')
    A(f's_lshl_b32 {s(M_STEP)}, {s(S_WAVE)}, 13')
    A(f's_add_u32 {s(M_STEP)}, {s(M_STEP)}, {L_MEM}')
    vTx0, vTx1 = 39, 40
    A(f's_sub_u32 {s(M_T0)}, {s(M_STEP)}, {s(M_SPIN)}')
    A(f'v_add_u32 {v(vTx0)}, {s(M_T0)}, {v(vTr0)}')
    A(f'v_xor_b32 {v(vTx1)}, 32, {v(vTx0)}')
    order = RBLOCKS + LBLOCKS
    NSL = 10
    slot_of = {}
    for n, blk in enumerate(RBLOCKS):
        slot_of[blk] = n % NSL
    for n, blk in enumerate(LBLOCKS):
        slot_of[blk] = n

    A(f's_and_b32 {s(M_PR)}, {s(S_WAVE)}, 1')
    A(f's_lshl_b32 {s(M_PR)}, {s(M_PR)}, 12')
    A(f's_and_b32 {s(M_MP)}, {s(S_WAVE)}, 2')

    def issue(pair):
        sl = slot_of[pair[0]]
        for p, blk in enumerate(pair):
            base, off = (M_SPIN, sl * 4096) if sl < 8 else (M_STEP, (sl - 8) * 4096)
            if blk[0] == 'o':
                A(f's_add_u32 m0, {s(base)}, {off + p * 4096}')
            else:
                A(f's_xor_b32 {s(M_T0)}, {s(M_PR)}, {p * 4096}')
                A(f's_add_u32 {s(M_T0)}, {s(M_T0)}, {s(base)}')
                A(f's_add_u32 m0, {s(M_T0)}, {off}')
            for d in range(4):
                if d:
                    A('s_add_u32 m0, m0, 1024')
                if blk[0] == 'o':
                    _, tp, ks = blk
                    A(f's_add_u32 {s(M_T0)}, {s(M_T1)}, {tp * 64 + (64 * ks + 16 * d) * 1024}')
                    A(f'buffer_load_dwordx4 {v(vWoD)}, {srd(SRD_D)}, {s(M_T0)} offen lds')
                else:
                    m, i = blk
                    if d == 0:
                        A(f's_xor_b32 {s(M_PW)}, {s(M_MP)}, {i >> 1}')
                        A(f's_lshl_b32 {s(M_PW)}, {s(M_PW)}, 20')
                        A(f's_add_u32 {s(M_PW)}, {s(M_PW)}, {s(M_T2)}')
                    A(f's_add_u32 {s(M_T0)}, {s(M_PW)}, {(8 * (i & 1) + 2 * d) * 8192}')
                    A(f'buffer_load_dwordx4 {v(vWq)}, {srd(dict(q=SRD_A, k=SRD_B, v=SRD_C)[m])}, '
                      f'{s(M_T0)} offen lds')

    def consume(blk):
        sl = slot_of[blk]
        a0, a1, base = (vTr0, vTr1, sl * 4096) if sl < 8 else (vTx0, vTx1, (sl - 8) * 4096)
        isl = blk in LBLOCKS
        for t in (0, 1):
            for half in (0, 1):
                for pp in (0, 1):
                    o = half * 4 + pp * 2
                    dst = v(64 + t * 8 + o, 2) if isl else rreg(blk, t, 2, o)
                    A(f'ds_read_b64_tr_b16 {dst}, {v(a0 if t == 0 else a1)} offset:{base + half * 2048 + pp * 512}')
        A('s_waitcnt lgkmcnt(0)')
        if isl:
            for q in range(4):
                A(f'ds_write_b128 {v(vWl)}, {v(64 + q * 4, 4)} offset:{base + q * 1024}')
            A('s_waitcnt lgkmcnt(0)')

    busy = {}
    pairs = [tuple(order[n:n + 2]) for n in range(0, len(order), 2)]
    pending = list(pairs)
    inflight = []

    def try_issue():
        for pr in list(pending):
            sl = slot_of[pr[0]]
            if sl in busy:
                continue
            if any(slot_of[b[0]] == sl and pending.index(b) < pending.index(pr) for b in pending):
                continue
            issue(pr)
            busy[sl] = pr
            inflight.append(pr)
            pending.remove(pr)

    pstamp(A, 0, 41)
    A('s_waitcnt vmcnt(0)')
    try_issue()
    A(f's_mov_b64 s[60:61], s[{M_T1}:{M_T2}]')
    early_consts()
    A(f's_mov_b64 s[{M_T1}:{M_T2}], s[60:61]')
    while inflight:
        pr = inflight.pop(0)
        A(f's_waitcnt vmcnt({8 * len(inflight) + (16 if pairs.index(pr) < NSL // 2 else 0)})')
        consume(pr[0])
        consume(pr[1])
        if pr[0] in RBLOCKS:
            del busy[slot_of[pr[0]]]
        try_issue()
    assert not pending
    pstamp(A, 1, 41)
    A('s_barrier')
    if callable(purity):
        purity(A)

    pstamp(A, 2, 41)
    late_consts()
    pstamp(A, 3, 41)
    slow = A.newlabel('tslow')
    P = dict(flags=flags, end_label=end_label, nsteps=nsteps, stamp=stamp, tune=tune)
    if purity == 'ctl':
        emit_poll_block(A, t0, t3, M_CTL, M_SPIN, end_label)
        A(f'v_cmp_eq_u32 vcc, {s(M_XCC)}, {v(t0)}')
        A('s_cmp_eq_u64 vcc, exec')
    else:
        A(f's_cmp_eq_u32 {s(M_FAST)}, 1')
    if not force_slow:
        A(f's_cbranch_scc0 {slow}')
        team_loop(A, P, fast=True)
    A.label(slow)
    team_loop(A, P, fast=False)


def team_loop(A, P, fast):
    flags, end_label, nsteps, tune = P['flags'], P['end_label'], P['nsteps'], P['tune']
    XS = '' if fast else ' sc1'
    poll_in = bool(flags and flags.get('poll_in'))
    has_sig = bool(flags and flags.get('signal'))

    def smf(acc, af, b):
        return f'v_smfmac_f32_16x16x64_bf16 {v(acc, 4)}, {v(af, 4)}, {b}, {v(vIdx)}'

    def zero(r, n):
        return [f'v_mov_b64 {v(r + i, 2)}, 0' for i in range(0, n, 2)]

    def emit(lst):
        for x in lst:
            for y in x.split('|'):
                A(y)

    def mix(ms, fs, per=2):
        for m in ms:
            A(m)
            for _ in range(per):
                if fs:
                    emit([fs.pop(0)])

    def lread(blk, t, reg):
        return [f'ds_read_b128 {v(reg, 4)}, {v(vWl)} offset:{loff(blk, t)}',
                f'ds_read_b128 {v(reg + 4, 4)}, {v(vWl)} offset:{loff(blk, t) + 1024}']

    nst = [0]

    def st(name):
        if P['stamp']:
            A(f'{"s_memrealtime" if tune.get("rt") else "s_memtime"} {s(60 + 2 * nst[0], 2)}')
            if fast:
                STAMP_NAMES.append(name)
            nst[0] += 1

    def st_flush():
        if not P['stamp']:
            return
        sk = A.newlabel('tsk')
        A(f's_cmp_lg_u32 {s(M_STEP)}, {P["stamp"]}')
        A(f's_cbranch_scc1 {sk}')
        A('s_waitcnt lgkmcnt(0)')
        A(f's_lshl_b32 {s(M_T0)}, {s(M_ME)}, 2')
        A(f's_add_u32 {s(M_T0)}, {s(M_T0)}, {s(S_WAVE)}')
        A(f's_lshl_b32 {s(M_T0)}, {s(M_T0)}, 7')
        A(f's_add_u32 {s(M_T0)}, {s(M_T0)}, {TCTL + 4096}')
        A('s_mov_b64 exec, 1')
        for i in range(nst[0]):
            A(f'v_mov_b32 {v(VX)}, {s(60 + 2 * i)}')
            A(f'buffer_store_dword {v(VX)}, off, {srd(SRD_WS)}, {s(M_T0)} offset:{4 * i}')
        A('s_mov_b64 exec, -1')
        A('s_waitcnt vmcnt(0)')
        A.label(sk)

    def prep_step():
        emit(zero(ACC, 24))
        for i in (4, 6):
            for t in (0, 1):
                emit(lread(('q', i), t, S1 + (i - 4 + t) * 8))
        A(f's_and_b32 {s(M_T0)}, {s(M_STEP)}, 3')
        A(f's_lshl_b32 {s(M_T0)}, {s(M_T0)}, 18')
        A(f's_add_u32 {s(M_T0)}, {s(M_T0)}, {s(M_TP)}')
        A(f's_lshl_b32 {s(M_T1)}, {s(M_ME)}, 6')
        A(f's_add_u32 {s(M_PW)}, {s(M_T0)}, {s(M_T1)}')
        A(f's_add_u32 {s(M_PW2)}, {s(M_PW)}, 4096')
        A(f's_lshl_b32 {s(M_T1)}, {s(M_ME)}, 13')
        A(f's_add_u32 {s(M_PR)}, {s(M_T0)}, {s(M_T1)}')
        A(f's_lshl_b32 {s(M_T1)}, {s(S_WAVE)}, 11')
        A(f's_add_u32 {s(M_PR)}, {s(M_PR)}, {s(M_T1)}')
        A(f's_add_u32 {s(M_T0)}, {s(M_STEP)}, 1')
        A(f's_and_b32 {s(M_T0)}, {s(M_T0)}, 3')
        A(f's_lshl_b32 {s(M_T0)}, {s(M_T0)}, 13')
        A(f's_add_u32 {s(M_MP)}, {s(M_T0)}, {s(M_TM)}')
        A(f's_xor_b32 {s(M_MRS)}, {s(M_MP)}, {2 << 13}')
        A(f's_sub_u32 {s(M_K2)}, {s(M_K)}, {1024 - 64}')

    NEG = E

    def wait_flags():
        if poll_in:
            ok = A.newlabel('tfok')
            A(f's_cmp_lg_u32 {s(S_WAVE)}, 3')
            A(f's_cbranch_scc1 {ok}')
            emit_poll_check(A, vFv)
            A(f's_cbranch_scc1 {ok}')
            emit_poll_block(A, vFv, vFl, M_FPR, M_SPIN, end_label, sleep=4)
            A.label(ok)
            A(f's_add_u32 {s(M_FPR)}, {s(M_FPR)}, 1024')
            A(f's_cmp_eq_u32 {s(S_WAVE)}, 3')
            A(f's_cselect_b32 {s(M_FP2)}, {s(M_FPR)}, {OOB}')

    EXR = t0

    assert TM % 32768 == 0
    top = A.newlabel('ttop')
    A(f's_mov_b32 {s(M_SIG)}, {OOB}')
    A(f's_mov_b32 {s(M_SIG2)}, {OOB}')
    A(f's_mov_b32 {s(M_PRO)}, {OOB}')
    A(f's_mov_b32 {s(M_EXO)}, {OOB}')
    A(f's_mov_b32 m0, {s(M_DST)}')
    wait_flags()
    pstamp(A, 4, 41)
    prep_step()
    A.label(top)
    st('top')
    def qq(i, t):
        b = v(S1 + (i - 4 + t) * 8, 8) if i in (4, 6) else rreg(('q', i), t)
        return smf(QA + t * 4, MF + i * 4, b)

    def kq(i, t):
        b = v(S1 + (i - 4 + t) * 8, 8) if i in (4, 6) else rreg(('k', i), t)
        return smf(KA + t * 4, MF + i * 4, b)

    def vq(i, t):
        return smf(VA + t * 4, MF + i * 4, rreg(('v', i), t))

    def epi(acc, sel):
        f = []
        for t in (0, 1):
            r = acc + t * 4
            f += [f'v_add_f32 {v(r)}, {v(r)}, {v(r + 1)}', f'v_add_f32 {v(r + 2)}, {v(r + 2)}, {v(r + 3)}',
                  f'v_cvt_pk_bf16_f32 {v(r)}, {v(r)}, {v(r + 2)}|'
                  f'ds_write_b16 {v(vQKw)}, {v(r)} offset:{sel * 2048 + t * 256}|'
                  f'ds_write_b16_d16_hi {v(vQKw)}, {v(r)} offset:{sel * 2048 + t * 256 + 16}']
        return f

    km_ = [kq(i, t) for i in (2, 3, 4, 6, 5, 7) for t in (0, 1)]
    vs_ = [vq(i, t) for i in range(2, 8) for t in (0, 1)]
    KXR, QF = S1, S1 + 16
    nyoung = 4
    early_sig = has_sig and tune.get('sigpos', 'b2k') == 'early'
    xa = [VX, VX + 1, VX + 2]
    A(qq(0, 0))
    A(f'v_xor_b32 {v(xa[0])}, 2048, {v(vMw)}')
    A(qq(0, 1))
    A(f'v_xor_b32 {v(xa[1])}, 4096, {v(vMw)}')
    A(f'v_xor_b32 {v(xa[2])}, 6144, {v(vMw)}')
    A('s_waitcnt lgkmcnt(0)')
    A('s_barrier')
    st('B1')
    qorder = (4, 6, 2, 3, 5, 7)
    for i in qorder:
        A(f'ds_read_b128 {v(MF + i * 4, 4)}, {v(xa[(i >> 1) - 1])} offset:{(i & 1) * 1024}')
    kl = []
    for i in (4, 6):
        for t in (0, 1):
            kl += lread(('k', i), t, S1 + (i - 4 + t) * 8)
    own = [qq(1, 0), qq(1, 1)] + [kq(i, t) for i in (0, 1) for t in (0, 1)] + [vq(i, t) for i in (0, 1) for t in (0, 1)]
    A(own[0])
    A(f'buffer_load_dwordx4 {v(vHD)}, {srd(SRD_WS)}, {s(M_K)} offen sc1 lds')
    emit(own[1:4])
    A(f'buffer_load_dwordx4 {v(vHD)}, {srd(SRD_WS)}, {s(M_K2)} offen offset:1024 sc1 lds')
    emit(own[4:7])
    A(f'buffer_store_dwordx4 {v(EXR, 4)}, {v(vL16)}, {srd(SRD_WS)}, {s(M_EXO)} offen sc1')
    emit(own[7:9])
    if early_sig:
        emit_signal(A, M_SIG, vOne)
        nyoung += 1
    A(own[9])
    ops = {1: [f'buffer_load_dwordx4 {v(VX, 4)}, {v(vVr)}, {srd(SRD_WS)}, {s(M_V)} offen sc1'],
           3: [f'buffer_load_dwordx4 {v(VX + 4, 4)}, {v(vVr)}, {srd(SRD_WS)}, {s(M_V)} offen offset:256 sc1'],
           5: [f'buffer_load_dword {v(vTouch)}, {v(vTa)}, {srd(SRD_WS)}, {s(M_K)} offen sc1']}
    kops = {}
    if poll_in:
        kops[2] = [f'buffer_load_dword {v(vFv)}, {v(vFl)}, {srd(SRD_WS)}, {s(M_FP2)} offen sc1']
        nyoung += 1
    nk = 0
    for n, i in enumerate(qorder):
        A(f's_waitcnt lgkmcnt({5 - n + nk})')
        A(qq(i, 0))
        if n in (1, 2):
            emit(kl[(n - 1) * 4:(n - 1) * 4 + 2])
        A(qq(i, 1))
        if n in (1, 2):
            emit(kl[(n - 1) * 4 + 2:(n - 1) * 4 + 4])
            nk += 4
        emit(ops.get(n, []))
    st('Qissued')
    fq = epi(QA, 0)
    for n in range(11):
        if n == 4:
            A('s_waitcnt lgkmcnt(0)')
        A(km_[n])
        if 4 <= n < 10:
            emit([fq.pop(0)])
        emit(kops.get(n, []))
    A(f's_waitcnt vmcnt({nyoung}) lgkmcnt(0)')
    A('s_barrier')
    st('B2q')
    rq = [f'ds_read_b128 {v(QF, 4)}, {v(vQr)}']
    rq += [f'ds_read_b128 {v(KXR + f * 4, 4)}, {v(vHi)} offset:{hi(L_KX) + f * 1024}' for f in range(2)]
    rq += [f'ds_read_b128 {v(QF + 4, 4)}, {v(vQr)} offset:512']
    rq += [f'ds_read_b128 {v(KXR + f * 4, 4)}, {v(vHi)} offset:{hi(L_KX) + f * 1024}' for f in range(2, 4)]
    rq += [f'ds_read_b128 {v(QF + ks * 4, 4)}, {v(vQr)} offset:{ks * 512}' for ks in (2, 3)]
    emit(rq[0:2])
    rq = rq[2:]
    mix([km_[11]] + vs_[0:2], rq, 2)
    A(vs_[2])
    A(f'buffer_store_dwordx4 {v(NEG, 4)}, {v(vL16)}, {srd(SRD_WS)}, {s(M_PRO)} offen offset:1024{XS}')
    A(vs_[3])
    st('Kissued')
    SX = QA
    SMA = E

    def sx(ks, t):
        cin = '0' if ks == 0 else v(SX + t * 4, 4)
        return (f'v_mfma_f32_16x16x32_bf16 {v(SX + t * 4, 4)}, {v(KXR + ((ks & 1) * 2 + t) * 4, 4)}, '
                f'{v(QF + ks * 4, 4)}, {cin}')

    fk = epi(KA, 1)
    A('s_waitcnt lgkmcnt(2)')
    mix([sx(0, 0), sx(0, 1)], fk, 2)
    A(f'ds_read_b128 {v(KXR, 4)}, {v(vHi)} offset:{hi(L_KX) + 4096}')
    A(f'ds_read_b128 {v(KXR + 4, 4)}, {v(vHi)} offset:{hi(L_KX) + 5120}')
    mix([sx(1, 0), sx(1, 1)], fk, 2)
    assert not fk
    A(f'ds_read_b128 {v(KXR + 8, 4)}, {v(vHi)} offset:{hi(L_KX) + 6144}')
    A(f'ds_read_b128 {v(KXR + 12, 4)}, {v(vHi)} offset:{hi(L_KX) + 7168}')
    emit(vs_[4:6])
    A('s_waitcnt lgkmcnt(2)' if early_sig else f's_waitcnt vmcnt({nyoung}) lgkmcnt(2)')
    A('s_barrier')
    st('B2k')
    KMF = MF
    rk = [f'ds_read_b128 {v(KMF + ks * 4, 4)}, {v(vKMr)} offset:{ks * 512}' for ks in range(4)]
    emit(rk[0:2])
    A(sx(2, 0))
    emit(rk[2:4])
    A(sx(2, 1))
    if has_sig and not early_sig:
        emit_signal(A, M_SIG, vOne)
    A('s_waitcnt lgkmcnt(4)')
    A(sx(3, 0))
    A(f'buffer_store_dwordx4 {v(NEG, 4)}, {v(vL16)}, {srd(SRD_WS)}, {s(M_PRO)} offen{XS}')
    A(sx(3, 1))
    A(vs_[6])

    def sm(ks):
        cin = '0' if ks == 0 else v(SMA, 4)
        return f'v_mfma_f32_16x16x32_bf16 {v(SMA, 4)}, {v(KMF + ks * 4, 4)}, {v(QF + ks * 4, 4)}, {cin}'

    mt, m2 = t0, t1
    tv = [SX + i for i in range(8)]
    PB = KA
    LT = KA + 4
    ft = [f'v_max3_f32 {v(mt)}, {v(tv[0])}, {v(tv[1])}, {v(tv[2])}',
          f'v_max3_f32 {v(m2)}, {v(tv[3])}, {v(tv[4])}, {v(tv[5])}',
          f'v_max3_f32 {v(mt)}, {v(mt)}, {v(tv[6])}, {v(tv[7])}',
          f'v_max_f32 {v(mt)}, {v(mt)}, {v(m2)}',
          f'v_mov_b32 {v(m2)}, {v(mt)}',
          's_nop 0']
    A('s_waitcnt lgkmcnt(0)')
    A(sm(0))
    mix([sm(ks) for ks in range(1, 4)], ft, 2)
    st('Smissued')
    fl = []
    for ks in (0, 1):
        for t in (0, 1):
            fl += lread(('o', 0, ks), t, S1 + (t * 2 + ks) * 8)
    mm, m3 = SMA + 2, SMA + 3
    A(vs_[7])
    A(f'v_permlane16_swap_b32 {v(mt)}, {v(m2)}')
    A(f'v_max_f32 {v(mt)}, {v(mt)}, {v(m2)}')
    A(f'v_mov_b32 {v(m2)}, {v(mt)}')
    A(vs_[8])
    emit(fl[0:4])
    A(f'v_permlane32_swap_b32 {v(mt)}, {v(m2)}')
    A(f'v_max_f32 {v(mt)}, {v(mt)}, {v(m2)}')
    A(vs_[9])
    emit(fl[4:8])
    A(f'v_mul_f32 {v(mt)}, {s(M_C)}, {v(mt)}')
    A(f'v_max_f32 {v(mm)}, {v(SMA)}, {v(SMA + 1)}')
    A(vs_[10])
    A(f'v_mov_b32 {v(m3)}, {v(mm)}')
    for r in tv[0:2]:
        A(f'v_fma_f32 {v(r)}, {v(r)}, {s(M_C)}, -{v(mt)}')
    A(f'v_permlane16_swap_b32 {v(mm)}, {v(m3)}')
    A(vs_[11])
    A(f'v_max_f32 {v(mm)}, {v(mm)}, {v(m3)}')
    A(f'v_mov_b32 {v(m3)}, {v(mm)}')
    for r in tv[2:4]:
        A(f'v_fma_f32 {v(r)}, {v(r)}, {s(M_C)}, -{v(mt)}')
    A(f'v_permlane32_swap_b32 {v(mm)}, {v(m3)}')
    for r in tv[4:8]:
        A(f'v_fma_f32 {v(r)}, {v(r)}, {s(M_C)}, -{v(mt)}')
    for r in tv:
        A(f'v_exp_f32 {v(r)}, {v(r)}')
    A(f'v_max_f32 {v(mm)}, {v(mm)}, {v(m3)}')
    for j in range(4):
        A(f'v_cvt_pk_bf16_f32 {v(PB + j)}, {v(tv[2 * j])}, {v(tv[2 * j + 1])}')
    A(f'v_mul_f32 {v(mm)}, {s(M_C)}, {v(mm)}')
    A(f'v_max_f32 {v(mm)}, {v(mm)}, {v(mt)}')
    OT = QA
    A(f's_waitcnt vmcnt({nyoung - 2 if early_sig else nyoung - 1 + (1 if has_sig else 0)})')
    A(f'v_mfma_f32_16x16x32_bf16 {v(OT, 4)}, {v(VX, 4)}, {v(PB, 4)}, 0')
    A(f'v_fma_f32 {v(SMA)}, {v(SMA)}, {s(M_C)}, -{v(mm)}')
    A(f'v_fma_f32 {v(SMA + 1)}, {v(SMA + 1)}, {s(M_C)}, -{v(mm)}')
    A(f'v_mfma_f32_16x16x32_bf16 {v(OT + 4, 4)}, {v(VX + 4, 4)}, {v(PB, 4)}, 0')
    A(f'v_sub_f32 {v(mt)}, {v(mt)}, {v(mm)}')
    A(f'v_exp_f32 {v(SMA)}, {v(SMA)}')
    A(f'v_mfma_f32_16x16x32_bf16 {v(LT, 4)}, {v(ONES, 4)}, {v(PB, 4)}, 0')
    A(f'v_exp_f32 {v(SMA + 1)}, {v(SMA + 1)}')
    A(f'v_exp_f32 {v(mt)}, {v(mt)}')
    for t in (0, 1):
        r = VA + t * 4
        A(f'v_add_f32 {v(r)}, {v(r)}, {v(r + 1)}')
        A(f'v_add_f32 {v(r + 2)}, {v(r + 2)}, {v(r + 3)}')
    A(f'v_cvt_pk_bf16_f32 {v(t2)}, {v(SMA)}, {v(SMA + 1)}')
    for t in (0, 1):
        r = VA + t * 4
        A(f'v_cvt_pk_bf16_f32 {v(r)}, {v(r)}, {v(r + 2)}')
        A(f'v_mov_b32 {v(r + 1)}, 0')
    PME, PMO = SMA, SMA + 2
    A(f'v_cndmask_b32 {v(PME)}, {v(t2)}, 0, {s(M_ODD, 2)}')
    A(f'v_cndmask_b32 {v(PMO)}, 0, {v(t2)}, {s(M_ODD, 2)}')
    A(f'v_mov_b32 {v(PME + 1)}, 0')
    A(f'v_mov_b32 {v(PMO + 1)}, 0')
    A(f'v_mov_b32 {v(t3)}, 0')
    A(f'v_mul_f32 {v(LT)}, {v(LT)}, {v(mt)}')
    for r in range(4):
        A(f'v_cndmask_b32 {v(OT + r)}, {v(OT + r)}, {v(OT + 4 + r)}, {s(M_ODD, 2)}')
    A(f'v_mfma_f32_16x16x16_bf16 {v(LT, 4)}, {v(ONES, 2)}, {v(t2, 2)}, {v(LT, 4)}')
    for r in range(4):
        A(f'v_mul_f32 {v(OT + r)}, {v(OT + r)}, {v(mt)}')
    st('softdone')
    for t in (0, 1):
        A(f'ds_write_b32 {v(vVMw)}, {v(VA + t * 4)} offset:{t * 128}')
    A(f'v_mfma_f32_16x16x16_bf16 {v(OT, 4)}, {v(VA, 2)}, {v(PME, 2)}, {v(OT, 4)}')
    A(f'v_mfma_f32_16x16x16_bf16 {v(OT, 4)}, {v(VA + 4, 2)}, {v(PMO, 2)}, {v(OT, 4)}')
    A(f'v_rcp_f32 {v(LT)}, {v(LT)}')
    for ks in (0, 1):
        emit(lread(('o', 3, ks), 0, MF + ks * 8))
    emit(zero(MF + 16, 8))
    for r in range(4):
        A(f'v_mul_f32 {v(OT + r)}, {v(OT + r)}, {v(LT)}')
    A(f'v_cvt_pk_bf16_f32 {v(t2)}, {v(OT)}, {v(OT + 1)}')
    A(f'v_cvt_pk_bf16_f32 {v(t3)}, {v(OT + 2)}, {v(OT + 3)}')
    A(f'ds_write_b64 {v(vOw)}, {v(t2, 2)}')
    emit(zero(KA, 16))
    st('preB3')
    A('s_waitcnt lgkmcnt(0)')
    A('s_barrier')
    st('B3')
    done = A.newlabel('tdone')
    OF = VX
    A(f'ds_read_b128 {v(OF, 4)}, {v(vHi)} offset:{hi(L_O)}')
    A(f'ds_read_b128 {v(OF + 4, 4)}, {v(vHi)} offset:{hi(L_O) + 1024}')
    A(f's_cmp_ge_u32 {s(M_STEP)}, {nsteps - 1}')
    A(f's_cbranch_scc1 {done}')
    emit(zero(MF + 24, 8))
    oacc = [KA, KA + 4, VA, VA + 4, MF + 16, MF + 20, MF + 24, MF + 28]

    def wo(i, ks):
        if i < 2:
            return v(S1 + (i * 2 + ks) * 8, 8)
        if i < 6:
            return rreg(('o', i >> 1, ks), i & 1)
        if i == 6:
            return v(MF + ks * 8, 8)
        return v(S1 + ks * 8, 8)

    om = [smf(oacc[i], OF + ks * 4, wo(i, ks)) for i in range(8) for ks in (0, 1)]
    PK = QA

    def oadd(i):
        r = oacc[i]
        return [f'v_add_f32 {v(r)}, {v(r)}, {v(r + 1)}', f'v_add_f32 {v(r + 2)}, {v(r + 2)}, {v(r + 3)}']

    def opack(h, half):
        i0 = 4 * h + 2 * half
        f = []
        for rr in (0, 1):
            d = PK + h * 4 + rr * 2 + half
            f.append(f'v_cvt_pk_bf16_f32 {v(d)}, {v(oacc[i0] + rr * 2)}, {v(oacc[i0 + 1] + rr * 2)}')
        for rr in (0, 1):
            d = PK + h * 4 + rr * 2 + half
            f.append(f'v_min_u32 {v(d)}, -2, {v(d)}')
        return f

    def pstore(h):
        return (f'buffer_store_dwordx4 {v(PK + h * 4, 4)}, {v(vPw)}, {srd(SRD_WS)}, '
                f'{s(M_PW if h == 0 else M_PW2)} offen{XS}')

    A('s_waitcnt lgkmcnt(1)')
    A(om[0])
    A('s_waitcnt lgkmcnt(0)')
    A(om[1])
    f7 = lread(('o', 3, 0), 1, S1) + lread(('o', 3, 1), 1, S1 + 8)
    mix(om[2:4], f7, 2)
    A(om[4])
    SELR = S1 + 16
    A(f'ds_read_b128 {v(SELR, 4)}, {v(vHi)} offset:{hi(L_SEL)}')
    fo = oadd(0) + oadd(1) + opack(0, 0) + oadd(2) + oadd(3) + opack(0, 1) + [pstore(0)] + oadd(4)
    mix(om[5:14], fo, 2)
    A('s_waitcnt lgkmcnt(0)')
    fo += oadd(5) + opack(1, 0)
    mix(om[14:16], fo, 2)
    st('outissued')
    emit(fo)
    emit(oadd(6) + oadd(7) + opack(1, 1) + [pstore(1)])
    st('pstored')
    RD, RA = MF, MF + 8
    A(f'v_mov_b64 {v(NEG, 2)}, -1')
    A(f'v_mov_b64 {v(NEG + 2, 2)}, -1')
    A(f's_mov_b32 {s(M_SPIN)}, 0')
    if tune.get('d1'):
        A(f's_sleep {tune["d1"]}')
    p1 = A.newlabel('tp1')
    A.label(p1)
    A(f'buffer_load_dwordx4 {v(RD, 4)}, {v(vL16)}, {srd(SRD_WS)}, {s(M_PR)} offen sc1')
    A(f'buffer_load_dwordx4 {v(RD + 4, 4)}, {v(vL16)}, {srd(SRD_WS)}, {s(M_PR)} offen offset:1024 sc1')
    A('s_mov_b64 exec, -1')
    A(f's_add_u32 {s(M_SPIN)}, {s(M_SPIN)}, 1')
    A(f's_cmp_gt_u32 {s(M_SPIN)}, {SPIN_LIMIT * 4}')
    A(f's_cbranch_scc1 {end_label}')
    A('s_waitcnt vmcnt(0)')
    A(f'v_mfma_f32_16x16x32_bf16 {v(RA, 4)}, {v(SELR, 4)}, {v(RD, 4)}, 0')
    A(f'v_max3_u32 {v(t0)}, {v(RD)}, {v(RD + 1)}, {v(RD + 2)}')
    A(f'v_max3_u32 {v(t1)}, {v(RD + 3)}, {v(RD + 4)}, {v(RD + 5)}')
    A(f'v_mfma_f32_16x16x32_bf16 {v(RA, 4)}, {v(SELR, 4)}, {v(RD + 4, 4)}, {v(RA, 4)}')
    A(f'v_max3_u32 {v(t0)}, {v(t0)}, {v(RD + 6)}, {v(RD + 7)}')
    A(f'v_max_u32 {v(t0)}, {v(t0)}, {v(t1)}')
    A(f'v_cmp_eq_u32 vcc, -1, {v(t0)}')
    A('s_mov_b64 exec, vcc')
    A(f's_cbranch_vccnz {p1}')
    A('s_mov_b64 exec, -1')
    st('p1ok')
    for sh in (4, 8):
        for r in range(4):
            A(f'v_add_f32_dpp {v(RA + r)}, {v(RA + r)}, {v(RA + r)} row_ror:{sh} row_mask:0xf bank_mask:0xf')
    A(f'v_cvt_pk_bf16_f32 {v(t0)}, {v(RA)}, {v(RA + 1)}')
    A(f'v_cvt_pk_bf16_f32 {v(t1)}, {v(RA + 2)}, {v(RA + 3)}')
    A(f'v_min_u32 {v(t0)}, -2, {v(t0)}')
    A(f'v_min_u32 {v(t1)}, -2, {v(t1)}')
    A(f's_mov_b64 exec, {s(M_PUBX, 2)}')
    A(f'buffer_store_dwordx2 {v(t0, 2)}, {v(vPub)}, {srd(SRD_WS)}, {s(M_MP)} offen{XS}')
    A(f'buffer_store_dwordx2 {v(NEG, 2)}, {v(vPub)}, {srd(SRD_WS)}, {s(M_MRS)} offen{XS}')
    A('s_mov_b64 exec, -1')
    st('published')
    A(f's_add_u32 {s(M_STEP)}, {s(M_STEP)}, 1')
    A(f's_lshl_b32 {s(M_T1)}, {s(S_WAVE)}, 11')
    A(f's_add_u32 {s(M_MRD)}, {s(M_MP)}, {s(M_T1)}')
    A(f's_mov_b32 {s(M_SPIN)}, 0')
    first = [True]
    p2 = A.newlabel('tp2')
    p2b = A.newlabel('tp2b')
    c0 = VX

    def p2_loads():
        for j in range(2):
            A(f'buffer_load_dwordx4 {v(MF + j * 4, 4)}, {v(vL16)}, {srd(SRD_WS)}, {s(M_MRD)} offen '
              f'offset:{j * 1024} sc1')

    p2_loads()
    A(f'ds_read_b128 {v(EXR, 4)}, {v(vEx)}')
    A(f's_cmp_eq_u32 {s(S_WAVE)}, 2')
    if early_sig:
        A(f's_mov_b32 {s(M_SIG)}, {s(M_SIG2)}')
        A(f's_cselect_b32 {s(M_SIG2)}, {s(M_FOUT)}, {OOB}')
    else:
        A(f's_cselect_b32 {s(M_SIG)}, {s(M_FOUT)}, {OOB}')
    A(f's_add_u32 {s(M_FOUT)}, {s(M_FOUT)}, 1024')
    A(f's_mov_b32 {s(M_EXO)}, {s(M_EXP)}')
    A(f's_add_u32 {s(M_EXP)}, {s(M_EXP)}, 65536')
    A(f's_mov_b32 {s(M_PRO)}, {s(M_PR)}')
    if not tune.get('x_nokv'):
        A(f's_add_u32 {s(M_K)}, {s(M_K)}, 262144')
        A(f's_add_u32 {s(M_V)}, {s(M_V)}, 262144')
    if tune.get('x_noexp'):
        A(f's_mov_b32 {s(M_EXO)}, {OOB}')
    prep_step()
    A(f's_branch {p2b}')
    A.label(p2)
    p2_loads()
    A('s_mov_b64 exec, -1')
    A(f's_add_u32 {s(M_SPIN)}, {s(M_SPIN)}, 1')
    A(f's_cmp_gt_u32 {s(M_SPIN)}, {SPIN_LIMIT * 4}')
    A(f's_cbranch_scc1 {end_label}')
    A.label(p2b)
    for j in range(2):
        A(f's_waitcnt vmcnt({1 - j})')
        A(f'ds_write_b128 {v(vMw)}, {v(MF + j * 4, 4)} offset:{j * 1024}')
        r = MF + j * 4
        if j == 0:
            A(f'v_max3_u32 {v(c0)}, {v(r)}, {v(r + 1)}, {v(r + 2)}')
            A(f'v_max_u32 {v(c0)}, {v(c0)}, {v(r + 3)}')
        else:
            A(f'v_max3_u32 {v(c0)}, {v(c0)}, {v(r)}, {v(r + 1)}')
            A(f'v_max3_u32 {v(c0)}, {v(c0)}, {v(r + 2)}, {v(r + 3)}')
    A(f'v_cmp_eq_u32 vcc, -1, {v(c0)}')
    A('s_mov_b64 exec, vcc')
    A(f's_cbranch_vccnz {p2}')
    A('s_mov_b64 exec, -1')
    wait_flags()
    st('p2ok')
    st_flush()
    A(f's_branch {top}')
    A.label(done)
    A(f'ds_read_b128 {v(EXR, 4)}, {v(vEx)}')
    A('s_waitcnt lgkmcnt(0)')
    A(f'buffer_store_dwordx4 {v(EXR, 4)}, {v(vL16)}, {srd(SRD_WS)}, {s(M_EXP)} offen sc1')
    if has_sig:
        A('s_waitcnt vmcnt(0)')
        A('s_barrier')
        A(f's_cmp_lg_u32 {s(S_WAVE)}, 2')
        A(f's_cbranch_scc1 {end_label}')
        if early_sig:
            emit_signal(A, M_SIG2, vOne)
        emit_signal(A, M_FOUT, vOne)
    A(f's_branch {end_label}')
```

```python
MB = 1 << 20
WS_BYTES = 256 * MB

KA_X, KA_MEM0, KA_WQ, KA_WK, KA_WV, KA_WO = 0, 8, 16, 24, 32, 40
KA_WG, KA_WU, KA_WD = 64, 72, 80
KA_OUT, KA_DBG, KA_WS = 88, 96, 104

NSEG = 64

FLAGS = 0
FLAGS_BYTES = 1 * MB
ST_PROJ, ST_TEAM, ST_ATT, ST_OUT, ST_RL, ST_GU, ST_DN, ST_RL2 = range(8)


def flag_base(stage, layer):
    return FLAGS + (stage * 2 + layer) * 64 * 1024


TP = 1 * MB
TM = 3 * MB
TCTL = 3 * MB + 128 * 1024

XN = 4 * MB
XR = 12 * MB
KM = 20 * MB
VM = 28 * MB
QB = 36 * MB
KB = 68 * MB
VT = 100 * MB
OB = 132 * MB
PO = 132 * MB
HB = 164 * MB
PD = 180 * MB
WS_END = 196 * MB
```

```python
from asmdsl import Asm, v, a, s
from layout import *
from roles import *
from team import *

X_BYTES = 2048 * 512 * 2
WQKV_BYTES = 512 * 4096 * 2
WGU_BYTES = 512 * 1792 * 2
SRD_DBG = 92
S_SLOT, S_LAYER, S_IDX, S_X = 96, 97, 98, 99

N_PROJ = 48
GROUP = [('rl2', 8), ('dn', 8), ('gu', 14), ('rl', 8), ('ao', 32)]
PASSES = [[(0, 4, 3), (12, 3, 4), (24, 2, 10)],
          [(1, 4, 3), (13, 3, 4), (25, 2, 10), (44, 1, 20)],
          [(2, 4, 3), (14, 3, 4)],
          [(3, 4, 3)]]
assert sorted(st + sd * i for p in PASSES for st, sd, c in p for i in range(c)) == list(range(64))
GN = sum(n for _, n in GROUP)


N_INIT = 64


def read_counts(A, vdst, fail, vt=3):
    A(f'v_and_b32 {v(vt)}, 7, v2')
    A(f'v_lshlrev_b32 {v(vt)}, 2, {v(vt)}')
    A(f'v_cmp_ne_u32 vcc, 0, {v(vt)}')
    A(f'v_add_u32 {v(vdst)}, 128, {v(vt)}')
    A(f'v_cndmask_b32 {v(vt)}, 0, {v(vdst)}, vcc')
    A(f'buffer_load_dword {v(vdst)}, {v(vt)}, {srd(SRD_DBG)}, 0 offen sc1')
    A('s_waitcnt vmcnt(0)')
    for i in range(8):
        A(f'v_readlane_b32 s{80 + i}, {v(vdst)}, {i}')
    A('s_add_u32 s88, s80, s81')
    for i in range(2, 8):
        A(f's_add_u32 s88, s88, s{80 + i}')


def wait_init(A, fail, vt=3, vd=4):
    lp = A.newlabel('wi')
    dn = A.newlabel('wid')
    A(f'v_and_b32 {v(vt)}, 1, v2')
    A(f'v_lshlrev_b32 {v(vt)}, 7, {v(vt)}')
    A('s_mov_b32 s89, 0')
    A.label(lp)
    A(f'buffer_load_dword {v(vd)}, {v(vt)}, {srd(SRD_DBG)}, 0 offen offset:64 sc1')
    A('s_waitcnt vmcnt(0)')
    A(f'v_readlane_b32 s80, {v(vd)}, 0')
    A(f'v_readlane_b32 s81, {v(vd)}, 1')
    A('s_add_u32 s80, s80, s81')
    A(f's_cmp_ge_u32 s80, {N_INIT}')
    A(f's_cbranch_scc1 {dn}')
    A('s_sleep 8')
    A('s_add_u32 s89, s89, 1')
    A(f's_cmp_lt_u32 s89, {SPIN_LIMIT}')
    A(f's_cbranch_scc1 {lp}')
    A(f's_branch {fail}')
    A.label(dn)


def xcd_pure(A, end, sdst, vd, vt, force=False):
    lp = A.newlabel('pur')
    dn = A.newlabel('purd')
    A('s_mov_b32 s90, 0')
    A.label(lp)
    A('s_add_u32 s90, s90, 1')
    A(f's_cmp_gt_u32 s90, {SPIN_LIMIT}')
    A(f's_cbranch_scc1 {end}')
    read_counts(A, vd, end, vt)
    A(f's_lshr_b32 s89, {s(S_SLOT)}, 5')
    A(f'v_readlane_b32 s89, {v(vd)}, s89')
    A(f's_mov_b32 {s(sdst)}, {0 if force else 1}')
    A('s_cmp_ge_u32 s89, 32')
    A(f's_cbranch_scc1 {dn}')
    A(f's_mov_b32 {s(sdst)}, 0')
    A('s_cmp_lt_u32 s88, 256')
    A(f's_cbranch_scc1 {lp}')
    A.label(dn)


def init_work(A, end):
    A(f's_mov_b32 s42, {s(S_IDX)}')
    pstamp(A, 0, 120)

    def fills():
        A('v_lshlrev_b32 v100, 4, v0')
        for i in range(4):
            A(f'v_mov_b32 v{104 + i}, 0')
            A(f'v_mov_b32 v{108 + i}, -1')
        A('s_mov_b32 s43, s42')
        for u in range(256 // N_INIT):
            A('s_lshl_b32 s50, s43, 12')
            A(f'buffer_store_dwordx4 v[104:107], v100, {srd(SRD_WS)}, s50 offen sc1')
            A(f's_add_u32 s51, s50, {TM}')
            A('s_cmp_lt_u32 s43, 16')
            A(f's_cselect_b32 s51, s51, {OOB}')
            A(f'buffer_store_dwordx4 v[108:111], v100, {srd(SRD_WS)}, s51 offen sc1')
            A('s_lshl_b32 s50, s43, 13')
            A(f's_add_u32 s50, s50, {TP}')
            A(f'buffer_store_dwordx4 v[108:111], v100, {srd(SRD_WS)}, s50 offen sc1')
            A('s_add_u32 s50, s50, 4096')
            A(f'buffer_store_dwordx4 v[108:111], v100, {srd(SRD_WS)}, s50 offen sc1')
            A(f's_add_u32 s43, s43, {N_INIT}')
        return 4 * (256 // N_INIT)

    ptr_srd(A, SRD_A, KA_X, X_BYTES)
    A('s_lshl_b32 s24, s42, 2')
    A('s_add_u32 s24, s24, s3')
    A('s_lshl_b32 s25, s24, 12')
    A('s_lshr_b32 s27, s24, 3')
    A('s_lshl_b32 s27, s27, 15')
    A('s_and_b32 s31, s24, 7')
    A('s_lshl_b32 s31, s31, 6')
    A('s_add_u32 s27, s27, s31')
    A(f's_add_u32 s27, s27, {XN}')
    ln_wave(A, SRD_A, 25, 27, 2, 256 * 4096, 32 * 32768, between=fills)
    pstamp(A, 1, 120)
    A('s_waitcnt vmcnt(0)')
    pstamp(A, 2, 120)
    A('s_barrier')
    sk = A.newlabel('iws')
    A(f's_cmp_lg_u32 {s(S_WAVE)}, 0')
    A(f's_cbranch_scc1 {sk}')
    A(f's_and_b32 s40, {s(S_SLOT)}, 1')
    A('s_lshl_b32 s40, s40, 7')
    A('v_mov_b32 v4, 1')
    A('s_mov_b64 exec, 1')
    A(f'buffer_atomic_add v4, off, {srd(SRD_DBG)}, s40 offset:64 sc1')
    A('s_mov_b64 exec, -1')
    A.label(sk)


def assign_slot(A, end, fake_xcc=None):
    A(f's_getreg_b32 {s(S_X)}, hwreg(HW_REG_XCC_ID)')
    A(f's_and_b32 {s(S_X)}, {s(S_X)}, 7')
    if fake_xcc:
        A(fake_xcc)
    have = A.newlabel('tick')
    A(f's_cmp_lg_u32 {s(S_WAVE)}, 0')
    A(f's_cbranch_scc1 {have}')
    A(f's_lshl_b32 s40, {s(S_X)}, 2')
    A('s_add_u32 s40, s40, 128')
    A(f's_cmp_eq_u32 {s(S_X)}, 0')
    A('s_cselect_b32 s40, 0, s40')
    A('v_mov_b32 v4, 1')
    A('v_mov_b32 v5, 0')
    A('s_mov_b64 exec, 1')
    A(f'buffer_atomic_add v4, off, {srd(SRD_DBG)}, s40 sc0 sc1')
    A('s_waitcnt vmcnt(0)')
    A('ds_write_b32 v5, v4')
    A('s_mov_b64 exec, -1')
    A('s_waitcnt lgkmcnt(0)')
    A.label(have)
    A('s_barrier')
    A('v_mov_b32 v5, 0')
    A('ds_read_b32 v4, v5')
    A('s_waitcnt lgkmcnt(0)')
    A('v_readfirstlane_b32 s41, v4')
    A('s_barrier')
    A(f's_lshl_b32 {s(S_SLOT)}, {s(S_X)}, 5')
    A(f's_add_u32 {s(S_SLOT)}, {s(S_SLOT)}, s41')
    ok = A.newlabel('slotok')
    A('s_cmp_lt_u32 s41, 32')
    A(f's_cbranch_scc1 {ok}')
    lp = A.newlabel('surp')
    A('s_mov_b32 s42, 0')
    A.label(lp)
    A('s_add_u32 s42, s42, 1')
    A(f's_cmp_gt_u32 s42, {SPIN_LIMIT}')
    A(f's_cbranch_scc1 {end}')
    read_counts(A, 4, end)
    A('s_cmp_lt_u32 s88, 256')
    A(f's_cbranch_scc1 {lp}')
    A('s_sub_u32 s43, s41, 32')
    for i in range(8):
        A(f's_max_u32 s89, s{80 + i}, 32')
        A('s_sub_u32 s89, s89, 32')
        A(f's_cmp_gt_u32 {s(S_X)}, {i}')
        A('s_cselect_b32 s89, s89, 0')
        A('s_add_u32 s43, s43, s89')
    for i in range(8):
        nx = A.newlabel('hole')
        A(f's_min_u32 s89, s{80 + i}, 32')
        A('s_sub_u32 s90, 32, s89')
        A('s_cmp_lt_u32 s43, s90')
        A(f's_cbranch_scc0 {nx}')
        A(f's_add_u32 {s(S_SLOT)}, s89, s43')
        A(f's_add_u32 {s(S_SLOT)}, {s(S_SLOT)}, {i * 32}')
        A(f's_branch {ok}')
        A.label(nx)
        A('s_sub_u32 s43, s43, s90')
    A(f's_branch {end}')
    A.label(ok)


def ptr_srd(A, sreg, ka, nbytes):
    A(f's_load_dwordx2 {s(sreg, 2)}, s[0:1], {ka}')
    A('s_waitcnt lgkmcnt(0)')
    A(f's_mov_b32 {s(sreg + 2)}, {nbytes}')
    A(f's_mov_b32 {s(sreg + 3)}, 0x00020000')


def proj_params(A, layer, seg0, nseg, is_v):
    A(f's_mov_b32 {s(G_IN)}, {XN + layer * 4 * MB + seg0 * 32768}')
    A('s_lshl_b32 s27, s42, 14')
    if is_v:
        A('s_lshr_b32 s40, s3, 1')
        A('s_lshl_b32 s40, s40, 13')
        A('s_add_u32 s27, s27, s40')
        A('s_and_b32 s40, s3, 1')
        A('s_lshl_b32 s40, s40, 10')
        A('s_add_u32 s27, s27, s40')
        A(f's_add_u32 s27, s27, {VT + layer * 16 * MB + seg0 * 262144}')
    else:
        A('s_lshl_b32 s40, s3, 12')
        A('s_add_u32 s27, s27, s40')
        A('s_lshl_b32 s40, s43, 25')
        A('s_add_u32 s27, s27, s40')
        A(f's_add_u32 s27, s27, {QB + layer * 16 * MB + seg0 * 262144}')
    assert KB - QB == 1 << 25
    A(f's_mov_b32 {s(G_CNT)}, {nseg}')
    A(f's_mov_b32 {s(G_FIN)}, {flag_base(ST_RL2, 0) + seg0 * 1024}')
    A(f's_lshl_b32 {s(G_FOUT)}, s43, 6')
    A('s_lshl_b32 s40, s42, 2')
    A(f's_add_u32 {s(G_FOUT)}, {s(G_FOUT)}, s40')
    A(f's_add_u32 {s(G_FOUT)}, {s(G_FOUT)}, {flag_base(ST_PROJ, layer) + seg0 * 1024}')


def ring(A, lim, sreg, span):
    A(f's_add_u32 {s(lim)}, {s(sreg)}, {span * RING}')
    return (lim, span * RING)


def build_mega(K, force_slow=False, fake_xcc=None, tune=None, stamp=False):
    A = K.A
    end = K.end
    A('s_cmp_ge_u32 s2, 256')
    A(f's_cbranch_scc1 {end}')
    load_srds(A, [(SRD_WS, KA_WS, WS_BYTES), (SRD_DBG, KA_DBG, 256)])
    wave_setup(A)
    if PROFILE[0]:
        A('s_lshl_b32 s40, s2, 2')
        A(f's_add_u32 s40, s40, {TCTL + 131072}')
        emit_signal(A, 40, 4)
    assign_slot(A, end, fake_xcc)
    if PROFILE[0]:
        A('s_lshl_b32 s40, s2, 2')
        A(f's_add_u32 s40, s40, {TCTL + 131072 + 1024}')
        emit_signal(A, 40, 4)
    L = {n: A.newlabel('r_' + n) for n in ('team', 'proj', 'init', 'group', 'ao', 'gu', 'dn', 'rl', 'rl2')}
    A(f's_cmp_lt_u32 {s(S_SLOT)}, 32')
    A(f's_cbranch_scc1 {L["team"]}')
    A('s_mov_b32 s44, 2')
    A(f's_sub_u32 s45, {s(S_SLOT)}, 32')
    A(f's_cmp_lt_u32 {s(S_SLOT)}, 64')
    A(f's_cbranch_scc1 {L["proj"]}')
    A(f's_and_b32 s40, {s(S_SLOT)}, 31')
    A(f's_lshr_b32 s41, {s(S_SLOT)}, 5')
    hi4 = A.newlabel('mx4')
    mdone = A.newlabel('mxd')
    A('s_cmp_ge_u32 s41, 4')
    A(f's_cbranch_scc1 {hi4}')
    A('s_sub_u32 s41, s41, 2')
    A(f's_mul_i32 s42, s41, {GN}')
    A(f's_add_u32 s42, s42, {N_PROJ}')
    A('s_lshl_b32 s43, s41, 1')
    A(f's_add_u32 s43, s43, {N_PROJ + 2 * GN - 30}')
    A('s_cmp_lt_u32 s40, 30')
    A('s_cselect_b32 s42, s42, s43')
    A(f's_add_u32 {s(S_IDX)}, s42, s40')
    A(f's_branch {mdone}')
    A.label(hi4)
    A('s_sub_u32 s41, s41, 4')
    A('s_lshr_b32 s42, s41, 1')
    A(f's_mul_i32 s42, s42, {GN}')
    A(f's_add_u32 s42, s42, {N_PROJ}')
    A('s_and_b32 s43, s41, 1')
    A('s_lshl_b32 s47, s43, 4')
    A('s_add_u32 s47, s47, s42')
    A('s_add_u32 s47, s47, 38')
    A('s_lshl_b32 s48, s43, 2')
    A('s_add_u32 s48, s48, s42')
    A('s_add_u32 s48, s48, 14')
    A('s_mul_i32 s49, s41, 12')
    A('s_sub_u32 s49, s49, 20')
    A('s_cmp_lt_u32 s40, 20')
    A('s_cselect_b32 s49, s48, s49')
    A('s_cmp_lt_u32 s40, 16')
    A('s_cselect_b32 s49, s47, s49')
    A(f's_add_u32 {s(S_IDX)}, s49, s40')
    A.label(mdone)
    A(f's_mov_b32 s44, 0')
    A(f's_mov_b32 s45, {s(S_IDX)}')
    A(f's_cmp_lt_u32 {s(S_IDX)}, {N_PROJ}')
    A(f's_cbranch_scc1 {L["proj"]}')
    A(f's_sub_u32 {s(S_IDX)}, {s(S_IDX)}, {N_PROJ}')
    A(f's_mov_b32 {s(S_LAYER)}, 0')
    A(f's_cmp_lt_u32 {s(S_IDX)}, {N_INIT}')
    A(f's_cbranch_scc1 {L["init"]}')
    A(f's_cmp_lt_u32 {s(S_IDX)}, {GN}')
    A(f's_cbranch_scc1 {L["group"]}')
    A(f's_sub_u32 {s(S_IDX)}, {s(S_IDX)}, {GN}')
    A(f's_mov_b32 {s(S_LAYER)}, 1')
    A('s_mov_b32 s44, 3')
    A(f's_sub_u32 s45, {s(S_IDX)}, {N_PROJ + 16 - 38}')
    A(f's_cmp_ge_u32 {s(S_IDX)}, {N_PROJ + 16}')
    A(f's_cbranch_scc1 {L["proj"]}')
    A(f's_mov_b32 s44, 1')
    A(f's_mov_b32 s45, {s(S_IDX)}')
    A(f's_cmp_lt_u32 {s(S_IDX)}, {N_PROJ}')
    A(f's_cbranch_scc1 {L["proj"]}')
    A('s_mov_b32 s44, 2')
    A(f's_sub_u32 s45, {s(S_IDX)}, 16')

    A.label(L['proj'])
    A('s_lshr_b32 s43, s45, 4')
    A('s_and_b32 s42, s45, 15')
    A('s_lshl_b32 s40, s43, 3')
    A(f's_add_u32 s40, s40, {KA_WQ}')
    A(f's_load_dwordx2 {s(SRD_A, 2)}, s[0:1], s40')
    A('s_waitcnt lgkmcnt(0)')
    A(f's_mov_b32 {s(SRD_A + 2)}, {WQKV_BYTES}')
    A(f's_mov_b32 {s(SRD_A + 3)}, 0x00020000')
    A('s_lshl_b32 s24, s42, 9')
    A('s_lshl_b32 s40, s3, 7')
    A('s_add_u32 s24, s24, s40')
    A('s_add_u32 s25, s24, 64')
    lv = A.newlabel('pv')
    A('s_cmp_eq_u32 s43, 2')
    A(f's_cbranch_scc1 {lv}')
    for is_v in (False, True):
        mode = 'v' if is_v else 'qk'
        if is_v:
            A.label(lv)
        pstamp(A, 5, 3)
        A('s_waitcnt vmcnt(0)')
        gemm_setup(A, 32, mode, 8192, SRD_A, SRD_A)
        pstamp(A, 6, 3)
        wait_init(A, end)
        pstamp(A, 7, 3)
        A('s_lshl_b32 s41, s44, 3')
        again = A.newlabel('pagain')
        l2 = A.newlabel('pl2')
        fin = A.newlabel('pfin')
        go = A.newlabel('pgo')
        A.label(again)
        for si, ps in enumerate(PASSES):
            for pi, (st, sd, cnt) in enumerate(ps):
                A(f's_mov_b32 s50, {st | (sd << 8) | (cnt << 16)}')
                A(f's_cmp_eq_u32 s41, {si * 8 + pi}')
                A(f's_cbranch_scc1 {go}')
        A(f's_branch {fin}')
        A.label(go)
        proj_params(A, 0, 0, 1, is_v)
        A('s_and_b32 s51, s50, 255')
        A('s_lshl_b32 s40, s51, 15')
        A(f's_add_u32 {s(G_IN)}, {s(G_IN)}, s40')
        A('s_lshl_b32 s40, s51, 18')
        A(f's_add_u32 {s(G_OUT)}, {s(G_OUT)}, s40')
        A('s_lshl_b32 s40, s51, 10')
        A(f's_add_u32 {s(G_FOUT)}, {s(G_FOUT)}, s40')
        A('s_bfe_u32 s51, s50, 0x80008')
        A('s_lshl_b32 s47, s51, 15')
        A('s_lshl_b32 s48, s51, 18')
        A('s_lshl_b32 s49, s51, 10')
        A(f's_lshr_b32 {s(G_CNT)}, s50, 16')
        gemm_loop(A, 32, mode, 's47', 's48', end, flags=dict(n=1, fout_step='s49', poll_in=False))
        A('s_barrier')
        A('s_add_u32 s41, s41, 1')
        A(f's_branch {again}')
        A.label(fin)
        A('s_cmp_eq_u32 s44, 0')
        A(f's_cbranch_scc1 {l2}')
        A(f's_cmp_lt_u32 {s(S_SLOT)}, 64')
        A(f's_cbranch_scc1 {L["team"]}')
        A(f's_branch {L["group"]}')
        A.label(l2)
        proj_params(A, 1, 0, 64, is_v)
        gemm_loop(A, 32, mode, 32768, 262144, end,
                  flags=dict(n=4, fin_step=1024, fout_step=1024, poll_in=True))
        A(f's_branch {end}')

    A.label(L['init'])
    init_work(A, end)
    A('s_mov_b32 s44, 3')
    A(f's_mov_b32 s45, {s(S_IDX)}')
    A(f's_cmp_lt_u32 {s(S_IDX)}, 38')
    A(f's_cbranch_scc1 {L["proj"]}')
    A.label(L['group'])
    wait_init(A, end)
    xcd_pure(A, end, 91, 4, 3, force=force_slow or TUNE.get('noloc'))
    A(f's_lshl_b32 s46, {s(S_LAYER)}, 16')
    for name, n in GROUP:
        A(f's_cmp_lt_u32 {s(S_IDX)}, {n}')
        A(f's_cbranch_scc1 {L[name]}')
        A(f's_sub_u32 {s(S_IDX)}, {s(S_IDX)}, {n}')
    A(f's_branch {end}')

    def own_flag(stage):
        A(f's_lshl_b32 {s(G_FOUT)}, {s(S_IDX)}, 2')
        A(f's_add_u32 {s(G_FOUT)}, {s(G_FOUT)}, s46')
        A(f's_add_u32 {s(G_FOUT)}, {s(G_FOUT)}, {flag_base(stage, 0)}')

    def part_out(base, lsh):
        A('s_lshl_b32 s27, s42, 15')
        A(f's_lshl_b32 s40, {s(S_LAYER)}, {lsh}')
        A('s_add_u32 s27, s27, s40')
        A('s_lshl_b32 s40, s41, 11')
        A('s_add_u32 s27, s27, s40')
        A('s_lshl_b32 s40, s3, 9')
        A('s_add_u32 s27, s27, s40')
        A(f's_add_u32 s27, s27, {base}')

    A.label(L['ao'])
    ptr_srd(A, SRD_A, KA_WO, WQKV_BYTES)
    A(f's_and_b32 s41, {s(S_IDX)}, 1')
    A(f's_bfe_u32 s42, {s(S_IDX)}, 0x30001')
    A(f's_lshr_b32 s43, {s(S_IDX)}, 4')
    A('s_lshl_b32 s24, s42, 19')
    A('s_lshl_b32 s40, s41, 9')
    A('s_add_u32 s24, s24, s40')
    A('s_lshl_b32 s40, s3, 7')
    A('s_add_u32 s24, s24, s40')
    A('s_add_u32 s25, s24, 64')
    part_out(PO, 24)
    A(f's_mul_i32 s40, s43, {8 * PSEG}')
    A('s_add_u32 s27, s27, s40')
    A('s_mov_b32 s28, 32')
    A('s_lshl_b32 s47, s42, 2')
    A('s_add_u32 s47, s47, s3')
    A('s_lshl_b32 s48, s43, 5')
    A('s_add_u32 s48, s48, s47')
    A('s_lshl_b32 s40, s48, 13')
    A(f's_lshl_b32 s49, {s(S_LAYER)}, 24')
    A('s_add_u32 s40, s40, s49')
    A(f's_add_u32 s50, s40, {QB}')
    A(f's_add_u32 s51, s40, {KB}')
    A(f's_add_u32 s52, s40, {VT}')
    A('s_lshl_b32 s40, s48, 11')
    A(f's_lshl_b32 s49, {s(S_LAYER)}, 22')
    A('s_add_u32 s40, s40, s49')
    A(f's_add_u32 s53, s40, {KM}')
    A(f's_add_u32 s54, s40, {VM}')
    A('s_lshl_b32 s49, s43, 10')
    A('s_add_u32 s49, s49, s46')
    A('s_lshl_b32 s40, s47, 4')
    A('s_add_u32 s29, s49, s40')
    A(f's_add_u32 s29, s29, {flag_base(ST_TEAM, 0)}')
    A('s_lshr_b32 s40, s47, 1')
    A('s_lshl_b32 s40, s40, 2')
    A('s_add_u32 s55, s49, s40')
    A(f's_add_u32 s55, s55, {flag_base(ST_PROJ, 0)}')
    A(f's_and_b32 s40, {s(S_IDX)}, 15')
    A('s_lshl_b32 s40, s40, 2')
    A('s_add_u32 s30, s49, s40')
    A(f's_add_u32 s30, s30, {flag_base(ST_OUT, 0)}')
    A(f's_add_u32 s64, s49, {flag_base(ST_RL, 0) - RING * 1024}')
    A('s_sub_u32 s64, s64, s29')
    ao_role(A, 2, end, s_pure=91, wout=ring(A, 62, 27, 8 * PSEG), bp=(64, 4))

    A.label(L['gu'])
    ptr_srd(A, SRD_A, KA_WG, WGU_BYTES)
    ptr_srd(A, SRD_B, KA_WU, WGU_BYTES)
    A(f's_lshl_b32 s24, {s(S_IDX)}, 8')
    A('s_lshl_b32 s40, s3, 6')
    A('s_add_u32 s24, s24, s40')
    A('s_mov_b32 s25, s24')
    A(f's_lshl_b32 s26, {s(S_LAYER)}, 22')
    A(f's_add_u32 s26, s26, {XN + 2 * MB}')
    A(f's_lshl_b32 s27, {s(S_IDX)}, 13')
    A('s_lshl_b32 s40, s3, 11')
    A('s_add_u32 s27, s27, s40')
    A(f's_add_u32 s27, s27, {HB}')
    A(f's_lshl_b32 s40, {s(S_LAYER)}, 23')
    A('s_add_u32 s27, s27, s40')
    A('s_mov_b32 s28, 64')
    A(f's_add_u32 {s(G_FIN)}, s46, {flag_base(ST_RL, 0)}')
    own_flag(ST_GU)
    A(f's_mov_b32 s54, {flag_base(ST_DN, 0) - flag_base(ST_RL, 0) - RING * 1024}')
    gemm_role(A, 32, 'gu', 3584, SRD_A, SRD_B, 32768, 224 * 512, end,
              flags=dict(n=4, fin_step=1024, fout_step=1024, poll_in=True, wout=ring(A, 52, 27, 224 * 512),
                         bp=(54, 8)),
              s_pure=91)

    A.label(L['dn'])
    ptr_srd(A, SRD_A, KA_WD, WGU_BYTES)
    A(f's_and_b32 s41, {s(S_IDX)}, 1')
    A(f's_lshr_b32 s42, {s(S_IDX)}, 1')
    A(f's_mul_i32 s24, s42, {448 * 1024}')
    A('s_lshl_b32 s40, s41, 9')
    A('s_add_u32 s24, s24, s40')
    A('s_lshl_b32 s40, s3, 7')
    A('s_add_u32 s24, s24, s40')
    A('s_add_u32 s25, s24, 64')
    A(f's_mul_i32 s26, s42, {28 * 1024}')
    A(f's_add_u32 s26, s26, {HB}')
    A(f's_lshl_b32 s40, {s(S_LAYER)}, 23')
    A('s_add_u32 s26, s26, s40')
    part_out(PD, 23)
    A('s_mov_b32 s28, 64')
    A(f's_mul_i32 {s(G_FIN)}, s42, 7')
    A(f's_lshr_b32 {s(G_FIN)}, {s(G_FIN)}, 1')
    A(f's_lshl_b32 {s(G_FIN)}, {s(G_FIN)}, 2')
    A(f's_add_u32 {s(G_FIN)}, {s(G_FIN)}, s46')
    A(f's_add_u32 {s(G_FIN)}, {s(G_FIN)}, {flag_base(ST_GU, 0)}')
    own_flag(ST_DN)
    A(f's_add_u32 s54, s46, {flag_base(ST_RL2, 0) - RING * 1024}')
    A(f's_sub_u32 s54, s54, {s(G_FIN)}')
    gemm_role(A, 28, 'part', 1024, SRD_A, SRD_A, 224 * 512, 4 * PSEG, end,
              flags=dict(n=4, fin_step=1024, fout_step=1024, poll_in=True, win=ring(A, 52, 26, 224 * 512),
                         wout=ring(A, 53, 27, 4 * PSEG), bp=(54, 4)), s_pure=91)

    for name, pbase, kbn, st_in, nfl, st_out in (('rl', PO, 8, ST_OUT, 16, ST_RL), ('rl2', PD, 4, ST_DN, 8, ST_RL2)):
        A.label(L[name])
        l1 = A.newlabel('rl_l1')
        A(f's_lshl_b32 s25, {s(S_IDX)}, 13')
        A('s_mov_b32 s26, s25')
        A(f's_lshr_b32 s41, {s(S_IDX)}, 2')
        A(f's_and_b32 s42, {s(S_IDX)}, 3')
        A(f's_mul_i32 s24, s41, {kbn * PSEG}')
        A('s_lshl_b32 s40, s42, 13')
        A('s_add_u32 s24, s24, s40')
        A(f's_add_u32 s24, s24, {pbase}')
        A(f's_lshl_b32 s40, {s(S_LAYER)}, {24 if kbn == 8 else 23}')
        A('s_add_u32 s24, s24, s40')
        A('s_lshl_b32 s27, s41, 15')
        A('s_lshl_b32 s40, s42, 7')
        A('s_add_u32 s27, s27, s40')
        A('s_mov_b32 s28, 32')
        A('s_lshl_b32 s41, s41, 10')
        A('s_add_u32 s41, s41, s46')
        A(f's_add_u32 s29, s41, {flag_base(st_in, 0)}')
        A('s_lshl_b32 s40, s42, 2')
        A('s_add_u32 s30, s41, s40')
        A(f's_add_u32 s30, s30, {flag_base(st_out, 0)}')
        A(f's_cmp_eq_u32 {s(S_LAYER)}, 1')
        A(f's_cbranch_scc1 {l1}')
        for layer in (0, 1):
            which = layer * 2 + (0 if name == 'rl' else 1)
            if layer == 1:
                A.label(l1)
            if which == 0:
                ptr_srd(A, SRD_A, KA_X, X_BYTES)
            if which == 3:
                ptr_srd(A, SRD_B, KA_OUT, X_BYTES)
            if which > 0:
                A(f's_add_u32 s25, s25, {XR + (which - 1) * 2 * MB}')
            if which < 3:
                A(f's_add_u32 s26, s26, {XR + which * 2 * MB}')
            A(f's_add_u32 s27, s27, {XN + ((which + 1) & 3) * 2 * MB}')
            (rl_role, rlw_role, rl8_role)[TUNE.get('rlw', 2)](A, kbn, SRD_A if which == 0 else SRD_WS, SRD_B if which == 3 else SRD_WS, which < 3,
                    dict(p=2 * kbn * PSEG, x=65536, xn=65536), end,
                    flags=dict(n=nfl, fin_step=2048, fout_step=2048, poll_in=True, signal=True, pair=True,
                               win=ring(A, 52, 24, kbn * PSEG)),
                    xin_sc1=which > 0, xout_sc1=which < 3)

    A.label(L['team'])
    load_srds(A, [(SRD_A, KA_WQ, WQKV_BYTES), (SRD_B, KA_WK, WQKV_BYTES),
                  (SRD_C, KA_WV, WQKV_BYTES), (SRD_D, KA_WO, WQKV_BYTES), (SRD_M0, KA_MEM0, 8192)])
    A(f's_lshr_b32 {s(S_LAYER)}, {s(S_SLOT)}, 5')
    A(f's_and_b32 {s(M_ME)}, {s(S_SLOT)}, 31')
    A(f's_lshl_b32 s40, {s(M_ME)}, 13')
    A(f's_lshl_b32 s41, {s(S_LAYER)}, 24')
    A('s_add_u32 s40, s40, s41')
    A(f's_add_u32 {s(M_K)}, s40, {KB}')
    A(f's_add_u32 {s(M_V)}, s40, {VT}')
    A(f's_lshl_b32 s40, {s(M_ME)}, 11')
    A(f's_lshl_b32 s41, {s(S_LAYER)}, 22')
    A('s_add_u32 s40, s40, s41')
    A(f's_add_u32 {s(M_KM)}, s40, {KM}')
    A(f's_add_u32 {s(M_VM)}, s40, {VM}')
    A(f's_lshl_b32 s40, {s(S_LAYER)}, 20')
    A(f's_add_u32 {s(M_TP)}, s40, {TP}')
    A(f's_lshl_b32 s40, {s(S_LAYER)}, 15')
    A(f's_add_u32 {s(M_TM)}, s40, {TM}')
    A(f's_lshl_b32 s41, {s(S_LAYER)}, 16')
    A(f's_lshr_b32 s40, {s(M_ME)}, 1')
    A('s_lshl_b32 s40, s40, 2')
    A('s_add_u32 s40, s40, s41')
    A(f's_add_u32 {s(M_FPR)}, s40, {flag_base(ST_PROJ, 0) + 64}')
    A(f's_lshl_b32 s40, {s(M_ME)}, 4')
    A('s_add_u32 s40, s40, s41')
    A(f's_add_u32 {s(M_FOUT)}, s40, {flag_base(ST_TEAM, 0)}')

    def purity(A):
        xcd_pure(A, end, M_FAST, 20, 21)
        wait_init(A, end, 20, 21)

    team_role(A, end, flags=dict(poll_in=True, signal=True), force_slow=force_slow, purity=purity, tune=tune,
              stamp=stamp)
```

```python
import struct
from asmdsl import v, a, s
from layout import *

S_WG, S_WAVE = 2, 3
SRD_WS, SRD_A, SRD_B, SRD_C, SRD_D = 4, 8, 12, 16, 20
SPIN_LIMIT = 1 << 17


def f32bits(x):
    return struct.unpack('<I', struct.pack('<f', x))[0]


def srd(i):
    return s(i, 4)


def load_srds(A, items):
    for sreg, off, nb in items:
        A(f's_load_dwordx2 {s(sreg, 2)}, s[0:1], {off}')
    A('s_waitcnt lgkmcnt(0)')
    for sreg, off, nb in items:
        A(f's_mov_b32 {s(sreg + 2)}, {nb}')
        A(f's_mov_b32 {s(sreg + 3)}, 0x00020000')


def wave_setup(A):
    A('v_lshrrev_b32 v3, 6, v0')
    A('v_and_b32 v2, 63, v0')
    A(f'v_readfirstlane_b32 {s(S_WAVE)}, v3')
    A('v_lshlrev_b32 v1, 4, v2')


PROFILE = [False]
GSTAMP = [0]
TUNE = {}


LOCAL = [False]


def emit_signal(A, sflag, vone):
    if PROFILE[0]:
        A('s_memrealtime s[100:101]')
        A('s_waitcnt lgkmcnt(0)')
        A('s_or_b32 s100, s100, 1')
        A(f'v_mov_b32 {v(vone)}, s100')
    A('s_mov_b64 exec, 1')
    A(f'buffer_store_dword {v(vone)}, off, {srd(SRD_WS)}, {s(sflag)}{"" if LOCAL[0] else " sc1"}')
    A('s_mov_b64 exec, -1')


def adv(A, sreg, step, wrap=None):
    A(f's_add_u32 {s(sreg)}, {s(sreg)}, {step}')
    if wrap:
        lim, span = wrap
        A(f's_cmp_ge_u32 {s(sreg)}, {s(lim)}')
        A(f's_cselect_b32 s78, {span}, 0')
        A(f's_sub_u32 {s(sreg)}, {s(sreg)}, s78')


def bp_setup(A, vfull, vbase, n, bp, vt):
    sdelta, cnt = bp
    A(f'v_subrev_u32 {v(vt)}, {n}, v2')
    A(f'v_cmp_gt_u32 vcc, {cnt}, {v(vt)}')
    A(f'v_lshlrev_b32 {v(vt)}, 2, {v(vt)}')
    A(f'v_add_u32 {v(vt)}, {s(sdelta)}, {v(vt)}')
    A(f'v_cndmask_b32 {v(vfull)}, {v(vbase)}, {v(vt)}, vcc')


def bp_switch(A, vfl, vfull, sseq, first):
    A(f's_cmp_ge_u32 {s(sseq)}, {first}')
    A('s_cselect_b64 vcc, -1, 0')
    A(f'v_cndmask_b32 {v(vfl)}, {v(vfl)}, {v(vfull)}, vcc')


def mfma_plan(NK, lag, depth, ring):
    if lag is None:
        seq = [(n // NK, n % NK, n % ring) for n in range(2 * NK)]
        rd = [(n % NK, n % ring) for n in range(2 * NK)]
        first_use = list(range(2 * NK))
    else:
        order = []
        for i in range(NK + lag):
            if i < NK:
                order.append((0, i))
            if i >= lag:
                order.append((1, i - lag))
        seq = [(t, c, c % ring) for t, c in order]
        rd = [(c, c % ring) for c in range(NK)]
        first_use = [order.index((0, c)) for c in range(NK)]
        last_use = [order.index((1, c)) for c in range(NK)]
    NS = len(seq)
    issue = []
    for r in range(len(rd)):
        at = max(-1, first_use[r] - depth)
        if lag is not None and r >= ring:
            at = max(at, last_use[r - ring] + 1)
        issue.append(at)
    pre = [rd[r] for r in range(len(rd)) if issue[r] < 0]
    reads = {n: [rd[r] for r in range(len(rd)) if issue[r] == n] for n in range(NS)}
    waits = {}
    for r in range(len(rd)):
        n = first_use[r]
        waits[n] = sum(1 for q in range(r + 1, len(rd)) if issue[q] <= n)
    t0_done = max(n for n in range(NS) if seq[n][0] == 0)
    return seq, pre, reads, waits, t0_done


def pstamp(A, i, vtmp):
    if PROFILE[0]:
        A('s_lshl_b32 s79, s96, 5')
        A(f's_add_u32 s79, s79, {TCTL + 135168 + 4 * i}')
        emit_signal(A, 79, vtmp)


def emit_poll_issue(A, vdst, voff, sflag):
    A(f'buffer_load_dword {v(vdst)}, {v(voff)}, {srd(SRD_WS)}, {s(sflag)} offen sc1')


def emit_poll_check(A, vdst):
    A(f'v_cmp_ne_u32 vcc, 0, {v(vdst)}')
    A('s_cmp_eq_u64 vcc, exec')


def emit_poll_block(A, vdst, voff, sflag, scnt, fail_label, sleep=2, pend=None):
    top = A.newlabel('poll')
    done = A.newlabel('polld')
    A(f's_mov_b32 {s(scnt)}, 0')
    A.label(top)
    emit_poll_issue(A, vdst, voff, sflag)
    A('s_waitcnt vmcnt(0)')
    if pend:
        sp, sf, fstep, vone = pend
        ns = A.newlabel('pnos')
        A(f's_cmp_eq_u32 {s(sp)}, 0')
        A(f's_cbranch_scc1 {ns}')
        emit_signal(A, sf, vone)
        A(f's_add_u32 {s(sf)}, {s(sf)}, {fstep}')
        A(f's_mov_b32 {s(sp)}, 0')
        A.label(ns)
    emit_poll_check(A, vdst)
    A(f's_cbranch_scc1 {done}')
    A(f's_sleep {sleep}')
    A(f's_add_u32 {s(scnt)}, {s(scnt)}, 1')
    A(f's_cmp_lt_u32 {s(scnt)}, {SPIN_LIMIT}')
    A(f's_cbranch_scc1 {top}')
    A(f's_branch {fail_label}')
    A.label(done)


L_SYNC = 160 * 1024 - 256


def sync_setup(A, vaddr, vc1, lds=L_SYNC):
    A(f'v_mov_b32 {v(vaddr)}, {lds}')
    A(f'v_mov_b32 {v(vc1)}, 0')
    A(f'ds_write_b32 {v(vaddr)}, {v(vc1)}')
    A(f'ds_write_b32 {v(vaddr)}, {v(vc1)} offset:4')
    A(f'ds_write_b32 {v(vaddr)}, {v(vc1)} offset:8')
    A('s_waitcnt lgkmcnt(0)')
    A(f'v_mov_b32 {v(vc1)}, 1')
    A(f'v_mov_b32 {v(vaddr + 1)}, {lds}')


def emit_signal_agg(A, sflag, vone, vaddr, vc1, vtmp, stmp, drain=False):
    sk = A.newlabel('agg')
    A('s_mov_b64 exec, 1')
    A(f'ds_add_rtn_u32 {v(vtmp)}, {v(vaddr + 1)}, {v(vc1)}')
    A('s_waitcnt lgkmcnt(0)')
    A(f'v_readfirstlane_b32 {s(stmp)}, {v(vtmp)}')
    A('s_mov_b64 exec, -1')
    A(f'v_xor_b32 {v(vaddr + 1)}, 8, {v(vaddr + 1)}')
    A(f's_and_b32 {s(stmp)}, {s(stmp)}, 3')
    A(f's_cmp_lg_u32 {s(stmp)}, 3')
    A(f's_cbranch_scc1 {sk}')
    emit_signal(A, sflag, vone)
    if drain:
        j = A.newlabel('aggj')
        A('s_waitcnt vmcnt(1)')
        A(f's_branch {j}')
        A.label(sk)
        A('s_waitcnt vmcnt(0)')
        A.label(j)
    else:
        A.label(sk)


def emit_post_ready(A, sseq, vaddr, vtmp):
    sk = A.newlabel('post')
    A(f's_cmp_lg_u32 {s(S_WAVE)}, 0')
    A(f's_cbranch_scc1 {sk}')
    A(f'v_mov_b32 {v(vtmp)}, {s(sseq)}')
    A(f'ds_write_b32 {v(vaddr)}, {v(vtmp)} offset:4')
    A('s_waitcnt lgkmcnt(0)')
    A.label(sk)


def emit_wait_ready(A, vdst, voff, sflag, sseq, scnt, stmp, vaddr, fail_label, sleep=2):
    oth = A.newlabel('wro')
    done = A.newlabel('wrd')
    A(f's_cmp_lg_u32 {s(S_WAVE)}, 0')
    A(f's_cbranch_scc1 {oth}')
    emit_poll_block(A, vdst, voff, sflag, scnt, fail_label, sleep=sleep)
    A(f'v_mov_b32 {v(vdst)}, {s(sseq)}')
    A(f'ds_write_b32 {v(vaddr)}, {v(vdst)} offset:4')
    A('s_waitcnt lgkmcnt(0)')
    A(f's_branch {done}')
    A.label(oth)
    A(f's_mov_b32 {s(scnt)}, 0')
    lp = A.newlabel('wrl')
    A.label(lp)
    A(f'ds_read_b32 {v(vdst)}, {v(vaddr)} offset:4')
    A(f's_add_u32 {s(scnt)}, {s(scnt)}, 1')
    A(f's_cmp_gt_u32 {s(scnt)}, {SPIN_LIMIT * 16}')
    A(f's_cbranch_scc1 {fail_label}')
    A('s_waitcnt lgkmcnt(0)')
    A(f'v_readfirstlane_b32 {s(stmp)}, {v(vdst)}')
    A(f's_cmp_ge_u32 {s(stmp)}, {s(sseq)}')
    A(f's_cbranch_scc1 {done}')
    A('s_sleep 1')
    A(f's_branch {lp}')
    A.label(done)


G_W0, G_W1, G_IN, G_OUT, G_CNT, G_FIN, G_FOUT = 24, 25, 26, 27, 28, 29, 30
G_T0, G_T1, G_PREF, G_PEND, G_SPIN, G_M0 = 31, 32, 33, 34, 35, 36


def gemm_setup(A, NK, mode, wstride, srd0, srd1):
    vL16, vLane = 1, 2
    vT0, vT1, vT2 = 3, 4, 5
    vW, vTr, vRd, vOut, vOut2, vDma, vFl, vFv, vOne = 6, 7, 8, 9, 10, 11, 12, 13, 14
    D = 4
    R = D + 1
    FR = 16
    ACC = [40, 56]
    TMP = 72
    phi_cols = mode != 'v'
    A(f'v_lshrrev_b32 {v(vT0)}, 2, {v(vLane)}')
    A(f's_mov_b32 {s(G_T0)}, {wstride}')
    A(f'v_mul_lo_u32 {v(vW)}, {v(vT0)}, {s(G_T0)}')
    A(f'v_and_b32 {v(vT0)}, 3, {v(vLane)}')
    A(f'v_lshl_add_u32 {v(vW)}, {v(vT0)}, 4, {v(vW)}')
    A(f'v_bfe_u32 {v(vT1)}, {v(vLane)}, 2, 2')
    A(f'v_lshrrev_b32 {v(vT2)}, 5, {v(vLane)}')
    A(f'v_lshl_add_u32 {v(vT1)}, {v(vT2)}, 3, {v(vT1)}')
    A(f'v_lshlrev_b32 {v(vTr)}, 6, {v(vT1)}')
    A(f'v_bfe_u32 {v(vT1)}, {v(vLane)}, 4, 1')
    A(f'v_lshl_add_u32 {v(vTr)}, {v(vT1)}, 5, {v(vTr)}')
    if phi_cols:
        A(f'v_and_b32 {v(vT1)}, 1, {v(vLane)}')
        A(f'v_lshl_add_u32 {v(vTr)}, {v(vT1)}, 4, {v(vTr)}')
        A(f'v_bfe_u32 {v(vT1)}, {v(vLane)}, 1, 1')
        A(f'v_lshl_add_u32 {v(vTr)}, {v(vT1)}, 3, {v(vTr)}')
    else:
        A(f'v_lshl_add_u32 {v(vTr)}, {v(vT0)}, 3, {v(vTr)}')
    A(f's_lshl_b32 {s(G_T0)}, {s(S_WAVE)}, 15')
    A(f'v_add_u32 {v(vTr)}, {s(G_T0)}, {v(vTr)}')
    A(f'v_mov_b32 {v(vOne)}, 1')
    rounds = [list(range(c, min(c + 8, NK))) for c in range(0, NK, 8)]

    def issue_round(r):
        A(f's_lshl_b32 {s(G_M0)}, {s(S_WAVE)}, 15')
        A(f's_add_u32 m0, {s(G_M0)}, {(r & 1) * 16384}')
        first = True
        for c in rounds[r]:
            for t in (0, 1):
                if not first:
                    A('s_add_u32 m0, m0, 1024')
                first = False
                sw = G_W0 if t == 0 else G_W1
                A(f'buffer_load_dwordx4 {v(vW)}, {srd(srd0 if t == 0 else srd1)}, {s(sw)} offen lds')
                A(f's_add_u32 {s(sw)}, {s(sw)}, {16 * wstride}')

    def read_round(r):
        for ci, c in enumerate(rounds[r]):
            for t in (0, 1):
                base = (r & 1) * 16384 + (ci * 2 + t) * 1024
                ar = (t * 32 + c) * 4
                A(f'ds_read_b64_tr_b16 {a(ar, 2)}, {v(vTr)} offset:{base}')
                A(f'ds_read_b64_tr_b16 {a(ar + 2, 2)}, {v(vTr)} offset:{base + 256}')
        A('s_waitcnt lgkmcnt(0)')

    nr = len(rounds)
    issue_round(0)
    if nr > 1:
        issue_round(1)
    for r in range(nr):
        nxt = 2 * len(rounds[r + 1]) if r + 1 < nr else 0
        A(f's_waitcnt vmcnt({nxt})')
        read_round(r)
        if r + 2 < nr:
            issue_round(r + 2)
    if mode == 'v':
        A(f'v_and_b32 {v(vT0)}, 0x33, {v(vLane)}')
        A(f'v_bfe_u32 {v(vT1)}, {v(vLane)}, 2, 1')
        A(f'v_lshl_or_b32 {v(vT0)}, {v(vT1)}, 3, {v(vT0)}')
        A(f'v_bfe_u32 {v(vT1)}, {v(vLane)}, 3, 1')
        A(f'v_lshl_or_b32 {v(vT0)}, {v(vT1)}, 2, {v(vT0)}')
        A(f'v_lshlrev_b32 {v(vRd)}, 4, {v(vT0)}')
        A(f'v_and_b32 {v(vT0)}, 31, {v(vLane)}')
        A(f'v_lshlrev_b32 {v(vOut)}, 4, {v(vT0)}')
        A(f'v_lshrrev_b32 {v(vT1)}, 5, {v(vLane)}')
        A(f'v_lshl_add_u32 {v(vOut)}, {v(vT1)}, 11, {v(vOut)}')
        A(f'v_add_u32 {v(vOut2)}, 4096, {v(vOut)}')
    else:
        A(f'v_mov_b32 {v(vRd)}, {v(vL16)}')
        if mode == 'part':
            A(f'v_bfe_u32 {v(vT0)}, {v(vLane)}, 2, 3')
            A(f'v_lshlrev_b32 {v(vOut)}, 12, {v(vT0)}')
            A(f'v_lshrrev_b32 {v(vT1)}, 5, {v(vLane)}')
            A(f'v_lshl_add_u32 {v(vOut)}, {v(vT1)}, 6, {v(vOut)}')
            A(f'v_and_b32 {v(vT0)}, 3, {v(vLane)}')
            A(f'v_lshl_add_u32 {v(vOut)}, {v(vT0)}, 4, {v(vOut)}')
        else:
            A(f'v_mov_b32 {v(vOut)}, {v(vL16)}')
    if mode == 'gu':
        c0 = -2.0 * 0.7978845608028654 * 1.4426950408889634
        A(f's_mov_b32 s40, {f32bits(c0 * 0.044715):#x}')
        A(f'v_mov_b32 {v(vT2)}, {f32bits(c0):#x}')


RING = 8
OOB = 0x7ff00000


def gemm_loop(A, NK, mode, in_step, out_step, fail, flags=None, sc1=True):
    vL16, vLane = 1, 2
    vT0, vT1, vT2 = 3, 4, 5
    vW, vTr, vRd, vOut, vOut2, vDma, vFl, vFv, vOne = 6, 7, 8, 9, 10, 11, 12, 13, 14
    D = 4
    R = D + 1
    FR = 16
    ACC = [40, 56]
    TMP = 72
    SC = ' sc1' if sc1 else ''
    SS = '' if LOCAL[0] else SC
    G_SRC, G_SEQ = 37, 38
    vSy, vC1, vSt = 36, 38, 39
    per_wave = NK // 4
    assert NK % 4 == 0
    A(f's_lshl_b32 {s(G_T0)}, {s(S_WAVE)}, 10')
    A(f'v_add_u32 {v(vDma)}, {s(G_T0)}, {v(vL16)}')
    A(f's_mov_b32 {s(G_M0)}, {s(G_T0)}')
    vFl2 = 15
    if flags:
        A(f'v_min_u32 {v(vFl)}, {flags["n"] - 1}, {v(vLane)}')
        A(f'v_lshlrev_b32 {v(vFl)}, 2, {v(vFl)}')
        if flags.get('bp'):
            bp_setup(A, vFl2, vFl, flags['n'], flags['bp'], vT0)

    def dma_piece(j):
        if j == 0:
            A(f's_mov_b32 m0, {s(G_M0)}')
        else:
            A('s_add_u32 m0, m0, 4096')
            A(f's_add_u32 {s(G_SRC)}, {s(G_SRC)}, 4096')
        A(f'buffer_load_dwordx4 {v(vDma)}, {srd(SRD_WS)}, {s(G_SRC)} offen{SC} lds')

    def advance():
        adv(A, G_IN, in_step, flags.get('win') if flags else None)
        A(f's_xor_b32 {s(G_M0)}, {s(G_M0)}, 32768')
        if poll_in:
            A(f's_add_u32 {s(G_FIN)}, {s(G_FIN)}, {flags["fin_step"]}')
            A(f's_add_u32 {s(G_SEQ)}, {s(G_SEQ)}, 1')
            if flags.get('bp'):
                bp_switch(A, vFl, vFl2, G_SEQ, RING + 1)

    HP = PROFILE[0] and flags

    def hstamp(i):
        if HP:
            A(f's_memrealtime {s(60 + 2 * i, 2)}')

    def hflush():
        if HP:
            sk = A.newlabel('hs')
            A('s_waitcnt lgkmcnt(0)')
            A(f's_cmp_lg_u32 {s(S_WAVE)}, 0')
            A(f's_cbranch_scc1 {sk}')
            A(f's_and_b32 s66, {s(G_FOUT)}, 0xff')
            A(f's_andn2_b32 s67, {s(G_FOUT)}, 0xff')
            A('s_mul_i32 s66, s66, 3')
            A('s_add_u32 s66, s66, s67')
            A('s_add_u32 s66, s66, 256')
            A('s_mov_b64 exec, 1')
            for i in range(3):
                A(f'v_mov_b32 {v(vSt)}, {s(60 + 2 * i)}')
                A(f'buffer_store_dword {v(vSt)}, off, {srd(SRD_WS)}, s66 offset:{4 * i}')
            A('s_mov_b64 exec, -1')
            A.label(sk)

    def signal(drain=False):
        emit_signal_agg(A, G_FOUT, vOne, vSy, vC1, vSt, G_T0, drain)
        A(f's_add_u32 {s(G_FOUT)}, {s(G_FOUT)}, {flags["fout_step"]}')
        A(f's_mov_b32 {s(G_PEND)}, 0')

    def issue_dma():
        hstamp(0)
        A(f's_mov_b32 {s(G_SRC)}, {s(G_IN)}')
        for j in range(per_wave):
            dma_piece(j)
        advance()

    NST = 2 if (mode == 'gu' or not TUNE.get('kmaj', 0)) else 4
    poll_in = bool(flags and flags.get('poll_in', True))
    A(f'v_and_b32 {v(vRd)}, 0x7fff, {v(vRd)}')
    if flags:
        sync_setup(A, vSy, vC1)
        A(f's_mov_b32 {s(G_SEQ)}, 1')
    A('s_barrier')
    if poll_in:
        emit_wait_ready(A, vFv, vFl, G_FIN, G_SEQ, G_SPIN, G_T0, vSy, fail, sleep=8)
    issue_dma()
    A(f's_mov_b32 {s(G_PEND)}, 0')
    A('s_waitcnt vmcnt(0)')
    top = A.newlabel('gtop')
    A.label(top)
    GS = GSTAMP[0]
    if GS:
        A('s_mov_b64 s[72:73], s[60:61]')
        A('s_mov_b64 s[74:75], s[70:71]')
        A('s_memtime s[60:61]')
        A('s_memrealtime s[70:71]')
    A(f's_waitcnt vmcnt({NST})')
    if GS:
        A('s_memtime s[62:63]')
    A('s_barrier')
    if GS:
        A('s_memtime s[64:65]')
    hstamp(1)

    NS = 2 * NK
    D2, R2 = 7, 8
    FR2 = 96

    lag = None if (mode == 'gu' or not TUNE.get('kmaj', 0)) else 4
    seq, pre, reads, waits, t0_done = mfma_plan(NK, lag, D2, R2)

    def rd(c, slot):
        A(f'ds_read_b128 {v(FR2 + slot * 4, 4)}, {v(vRd)} offset:{c * 1024}')

    for x in pre:
        rd(*x)
    A(f's_sub_u32 {s(G_CNT)}, {s(G_CNT)}, 1')
    ev = {}

    def at(n, fn):
        ev.setdefault(n, []).append(fn)

    nvm = [0]

    def piece():
        A(f'buffer_load_dwordx4 {v(vDma)}, {srd(SRD_WS)}, {s(G_SRC)} offen{SC} lds')
        A('s_add_u32 m0, m0, 4096')
        A(f's_add_u32 {s(G_SRC)}, {s(G_SRC)}, 4096')
        nvm[0] += 1

    def poll():
        emit_poll_issue(A, vFv, vFl, G_FIN)
        nvm[0] += 1

    def evaluate():
        A(f'v_cmp_ne_u32 vcc, 0, {v(vFv)}')
        A('s_cmp_eq_u64 vcc, exec')
        A(f's_cselect_b32 {s(G_T0)}, {s(G_PREF)}, 1')
        A(f's_cmp_eq_u32 {s(G_T0)}, 0')
        A(f's_cselect_b32 {s(G_SRC)}, {s(G_IN)}, {OOB}')
        A(f's_cselect_b32 m0, {s(G_M0)}, 65536')
        A(f's_cselect_b32 {s(G_PREF)}, 1, {s(G_PREF)}')

    def sig1():
        A(f's_waitcnt vmcnt({nvm[0]})')
        A(f'v_mov_b32 {v(vC1)}, {s(G_PEND)}')
        A('s_mov_b64 exec, 1')
        A(f'ds_add_rtn_u32 {v(vSt)}, {v(vSy + 1)}, {v(vC1)}')
        A('s_mov_b64 exec, -1')

    def sig2():
        A(f'v_readfirstlane_b32 {s(G_T0)}, {v(vSt)}')
        A(f's_lshl_b32 {s(G_T1)}, {s(G_PEND)}, 3')
        A(f'v_xor_b32 {v(vSy + 1)}, {s(G_T1)}, {v(vSy + 1)}')
        A(f'v_mov_b32 {v(vC1)}, 1')
        A(f's_and_b32 {s(G_T0)}, {s(G_T0)}, 3')
        A(f's_add_u32 {s(G_T0)}, {s(G_T0)}, {s(G_PEND)}')
        A(f's_cmp_eq_u32 {s(G_T0)}, 4')
        A(f's_cselect_b32 {s(G_T0)}, {s(G_FOUT)}, {OOB}')
        emit_signal(A, G_T0, vOne)
        nvm[0] += 1
        A(f's_mul_i32 {s(G_T1)}, {s(G_PEND)}, {flags["fout_step"]}')
        A(f's_add_u32 {s(G_FOUT)}, {s(G_FOUT)}, {s(G_T1)}')
        A(f's_mov_b32 {s(G_PEND)}, 0')

    if not poll_in:
        A(f's_cmp_eq_u32 {s(G_CNT)}, 0')
        A(f's_cselect_b32 {s(G_SRC)}, {OOB}, {s(G_IN)}')
        A(f's_mov_b32 m0, {s(G_M0)}')
        for j in range(per_wave):
            at(2 + 3 * j, piece)
    else:
        A(f'v_mov_b32 {v(vFv)}, 0')
        poll()
        A(f's_cmp_eq_u32 {s(G_CNT)}, 0')
        A(f's_cselect_b32 {s(G_PREF)}, 2, 0')
        e1, e2 = TUNE.get('e1', 18 if NK == 32 else 14), NS - 2 * per_wave - 6
        at(e1, evaluate)
        for j in range(per_wave):
            at(e1 + 1 + 2 * j, piece)
        at(e1 + 2, poll)
        at(e2 - 14, poll)
        at(e2, evaluate)
        for j in range(per_wave):
            at(e2 + 1 + 2 * j, piece)
        at(e2 + 2, poll)
        at(NS - 6, poll)
    if flags:
        sn = TUNE.get('sn', 18)
        at(sn, sig1)
        at(sn + D2 + 3, sig2)

    def store(t, f, d):
        if mode == 'qk':
            return (f'buffer_store_dwordx4 {v(d, 4)}, {v(vOut)}, {srd(SRD_WS)}, {s(G_OUT)} offen '
                    f'offset:{(t * 2 + f) * 1024}{SS}')
        if mode == 'part':
            return (f'buffer_store_dwordx4 {v(d, 4)}, {v(vOut)}, {srd(SRD_WS)}, {s(G_OUT)} offen '
                    f'offset:{(t * 2 + f) * 128}{SS}')
        return (f'buffer_store_dwordx4 {v(d, 4)}, {v(vOut if f == 0 else vOut2)}, {srd(SRD_WS)}, '
                f'{s(G_OUT)} offen offset:{t * 512}{SS}')

    def cvt_tile(t):
        out = []
        for f in (0, 1):
            d = TMP + (t * 2 + f) * 4
            for j in range(4):
                r0 = ACC[t] + f * 8 + 2 * j
                out.append(f'v_cvt_pk_bf16_f32 {v(d + j)}, {v(r0)}, {v(r0 + 1)}')
            out.append(store(t, f, d))
        return out

    if mode == 'gu':
        G, U, T1 = ACC[0], ACC[1], TMP
        early = []
        for q in range(4):
            idx = range(q * 4, q * 4 + 4)
            early += [f'v_mul_f32 {v(T1 + i)}, {v(G + i)}, {v(G + i)}' for i in idx]
            early += [f'v_fma_f32 {v(T1 + i)}, {v(T1 + i)}, s40, {v(vT2)}' for i in idx]
            early += [f'v_mul_f32 {v(T1 + i)}, {v(T1 + i)}, {v(G + i)}' for i in idx]
            early += [f'v_exp_f32 {v(T1 + i)}, {v(T1 + i)}' for i in idx]
            early += [f'v_add_f32 {v(T1 + i)}, 1.0, {v(T1 + i)}' for i in idx]
            early += [f'v_rcp_f32 {v(T1 + i)}, {v(T1 + i)}' for i in idx]
            early += [f'v_mul_f32 {v(T1 + i)}, {v(T1 + i)}, {v(G + i)}' for i in idx]
        per = 4
    else:
        early = cvt_tile(0)
        per = 2 if lag is None else 4
    for n in range(NS):
        t, c, slot = seq[n]
        for x in reads[n]:
            rd(*x)
        if n in waits:
            A(f's_waitcnt lgkmcnt({waits[n]})')
        f = v(FR2 + slot * 4, 4)
        w = a((t * 32 + c) * 4, 4)
        cin = '0' if c == 0 else v(ACC[t], 16)
        if mode == 'v':
            A(f'v_mfma_f32_32x32x16_bf16 {v(ACC[t], 16)}, {f}, {w}, {cin}')
        else:
            A(f'v_mfma_f32_32x32x16_bf16 {v(ACC[t], 16)}, {w}, {f}, {cin}')
        if n >= t0_done + (4 if lag is None else 2):
            for _ in range(per):
                if early:
                    x = early.pop(0)
                    A(x)
                    if x.startswith('buffer_store'):
                        nvm[0] += 1
        for fn in ev.get(n, []):
            fn()
    for x in early:
        A(x)
        if x.startswith('buffer_store'):
            nvm[0] += 1
    A(f'v_xor_b32 {v(vRd)}, 32768, {v(vRd)}')
    if GS:
        A('s_memtime s[66:67]')
    if mode == 'gu':
        for f in (0, 1):
            for i in range(f * 8, f * 8 + 8):
                A(f'v_mul_f32 {v(T1 + i)}, {v(T1 + i)}, {v(U + i)}')
            d = TMP + 16 + f * 4
            for j in range(4):
                A(f'v_cvt_pk_bf16_f32 {v(d + j)}, {v(T1 + f * 8 + 2 * j)}, {v(T1 + f * 8 + 2 * j + 1)}')
            A(f'buffer_store_dwordx4 {v(d, 4)}, {v(vOut)}, {srd(SRD_WS)}, {s(G_OUT)} offen '
              f'offset:{f * 1024}{SS}')
    else:
        for x in cvt_tile(1):
            A(x)
    if GS:
        A('s_memtime s[68:69]')
        sk = A.newlabel('gsk')
        A('s_waitcnt lgkmcnt(0)')
        A(f's_cmp_lg_u32 {s(G_CNT)}, {GS}')
        A(f's_cbranch_scc1 {sk}')
        A('s_lshl_b32 s76, s2, 2')
        A('s_add_u32 s76, s76, s3')
        A('s_lshl_b32 s76, s76, 6')
        A(f's_add_u32 s76, s76, {TCTL + 65536}')
        A('s_mov_b64 exec, 1')
        for i, r in enumerate((60, 62, 64, 66, 68, 70, 72, 74)):
            A(f'v_mov_b32 {v(vT0)}, s{r}')
            A(f'buffer_store_dword {v(vT0)}, off, {srd(SRD_WS)}, s76 offset:{4 * i}')
        A('s_mov_b64 exec, -1')
        A('s_waitcnt vmcnt(0)')
        A.label(sk)
    hstamp(2)
    hflush()
    adv(A, G_OUT, out_step, flags.get('wout') if flags else None)
    if flags:
        A(f's_mov_b32 {s(G_PEND)}, 1')
    last = A.newlabel('glast')
    A(f's_cmp_eq_u32 {s(G_CNT)}, 0')
    A(f's_cbranch_scc1 {last}')
    if poll_in:
        blk = A.newlabel('gblk')
        A(f's_cmp_eq_u32 {s(G_PREF)}, 0')
        A(f's_cbranch_scc1 {blk}')
        emit_post_ready(A, G_SEQ, vSy, vSt)
        advance()
        A(f's_branch {top}')
        A.label(blk)
        blk2 = A.newlabel('gblk2')
        A(f's_waitcnt vmcnt({NST})')
        emit_poll_check(A, vFv)
        A(f's_cbranch_scc0 {blk2}')
        emit_post_ready(A, G_SEQ, vSy, vSt)
        issue_dma()
        A(f's_waitcnt vmcnt({per_wave})')
        signal(drain=True)
        A(f's_branch {top}')
        A.label(blk2)
        A('s_waitcnt vmcnt(0)')
        signal()
        emit_wait_ready(A, vFv, vFl, G_FIN, G_SEQ, G_SPIN, G_T0, vSy, fail, sleep=TUNE.get('sl', 2))
        issue_dma()
        A('s_waitcnt vmcnt(0)')
    else:
        advance()
    A(f's_branch {top}')
    A.label(last)
    if flags:
        A('s_waitcnt vmcnt(0)')
        signal()


def gemm_role(A, NK, mode, wstride, srd0, srd1, in_step, out_step, end_label, flags=None, sc1=True,
              s_pure=None):
    gemm_setup(A, NK, mode, wstride, srd0, srd1)
    if s_pure is not None:
        gl = A.newlabel('gg')
        A(f's_cmp_eq_u32 {s(s_pure)}, 0')
        A(f's_cbranch_scc1 {gl}')
        LOCAL[0] = True
        gemm_loop(A, NK, mode, in_step, out_step, end_label, flags, sc1)
        LOCAL[0] = False
        A(f's_branch {end_label}')
        A.label(gl)
    gemm_loop(A, NK, mode, in_step, out_step, end_label, flags, sc1)
    A(f's_branch {end_label}')


PSEG = 32768


def rl_role(A, KBN, srd_xin, srd_xout, do_ln, steps, end_label, flags=None, sc1=True, xin_sc1=True,
            xout_sc1=True, burst=0, between=None):
    R_P, R_XI, R_XO, R_XN, R_CNT, R_FIN, R_FOUT, R_T0, R_PREF, R_PEND, R_SPIN = \
        24, 25, 26, 27, 28, 29, 30, 31, 33, 34, 35
    vLane = 2
    vT0, vT1, vT2 = 3, 4, 5
    vP, vX, vN, vLw, vLr, vFl, vFv, vOne = 6, 7, 8, 9, 10, 11, 12, 13
    XF = 16
    PK = 24
    PN = 28
    ST = 32
    AC = 44
    UP = 52
    SETS = [60, 60 + 4 + 4 * KBN]
    vSy, vC1, vSt = 14, 4, 5
    R_SEQ = 36
    SC = ' sc1' if sc1 else ''
    A(f'v_and_b32 {v(vT0)}, 3, v0')
    A(f'v_lshrrev_b32 {v(vT1)}, 2, v0')
    A(f'v_lshlrev_b32 {v(vP)}, 4, v0')
    A(f'v_lshlrev_b32 {v(vX)}, 10, {v(vT0)}')
    A(f'v_lshl_add_u32 {v(vX)}, {v(vT1)}, 4, {v(vX)}')
    A(f'v_lshlrev_b32 {v(vN)}, 9, {v(vT1)}')
    A(f'v_lshl_add_u32 {v(vN)}, {v(vT0)}, 4, {v(vN)}')
    A(f'v_lshlrev_b32 {v(vLr)}, 4, {v(vT0)}')
    A(f's_lshl_b32 {s(R_T0)}, {s(S_WAVE)}, 2')
    A(f'v_add_u32 {v(vLw)}, {s(R_T0)}, {v(vLr)}')
    A(f'v_mov_b32 {v(vOne)}, 1')
    A(f's_mov_b32 s40, 0xffff0000')
    poll_in = bool(flags and flags.get('poll_in', True))
    sig = bool(flags and flags.get('signal', True))
    if flags:
        A(f'v_min_u32 {v(vFl)}, {flags["n"] - 1}, {v(vLane)}')
        A(f'v_lshlrev_b32 {v(vFl)}, 2, {v(vFl)}')
    if flags:
        sync_setup(A, vSy, vC1)
        A(f's_mov_b32 {s(R_SEQ)}, 1')
        A('s_barrier')

    def signal():
        emit_signal_agg(A, R_FOUT, vOne, vSy, vC1, vSt, R_T0)
        A(f's_add_u32 {s(R_FOUT)}, {s(R_FOUT)}, {flags["fout_step"]}')
        A(f's_mov_b32 {s(R_PEND)}, 0')

    def loads(S):
        A(f'buffer_load_dwordx4 {v(S, 4)}, {v(vX)}, {srd(srd_xin)}, {s(R_XI)} offen{" sc1" if xin_sc1 else ""}')
        A(f's_mov_b32 {s(R_T0)}, {s(R_P)}')
        for kb in range(KBN):
            A(f'buffer_load_dwordx4 {v(S + 4 + kb * 4, 4)}, {v(vP)}, {srd(SRD_WS)}, {s(R_T0)} offen{SC}')
            if kb + 1 < KBN:
                A(f's_add_u32 {s(R_T0)}, {s(R_T0)}, {PSEG}')
        A(f's_add_u32 {s(R_P)}, {s(R_P)}, {steps["p"]}')
        A(f's_add_u32 {s(R_XI)}, {s(R_XI)}, {steps["x"]}')
        if poll_in:
            A(f's_add_u32 {s(R_FIN)}, {s(R_FIN)}, {flags["fin_step"]}')
            A(f's_add_u32 {s(R_SEQ)}, {s(R_SEQ)}, 1')

    def unpack(dst, src):
        for j in range(4):
            A(f'v_lshlrev_b32 {v(dst + 2 * j)}, 16, {v(src + j)}')
            A(f'v_and_b32 {v(dst + 2 * j + 1)}, s40, {v(src + j)}')

    def pack(dst, src):
        for j in range(4):
            A(f'v_cvt_pk_bf16_f32 {v(dst + j)}, {v(src + 2 * j)}, {v(src + 2 * j + 1)}')

    def row_reduce(r, ldsoff):
        t = ST + 7
        A(f'v_add_f32_dpp {v(r)}, {v(r)}, {v(r)} row_ror:4 row_mask:0xf bank_mask:0xf')
        A(f'v_add_f32_dpp {v(r)}, {v(r)}, {v(r)} row_ror:8 row_mask:0xf bank_mask:0xf')
        A(f'v_mov_b32 {v(t)}, {v(r)}')
        A(f'v_permlane16_swap_b32 {v(r)}, {v(t)}')
        A(f'v_add_f32 {v(r)}, {v(r)}, {v(t)}')
        A(f'v_mov_b32 {v(t)}, {v(r)}')
        A(f'v_permlane32_swap_b32 {v(r)}, {v(t)}')
        A(f'v_add_f32 {v(r)}, {v(r)}, {v(t)}')
        A(f'ds_write_b32 {v(vLw)}, {v(r)} offset:{ldsoff}')
        A('s_waitcnt lgkmcnt(0)')
        A('s_barrier')
        A(f'ds_read_b128 {v(ST + 8, 4)}, {v(vLr)} offset:{ldsoff}')
        A('s_waitcnt lgkmcnt(0)')
        A(f'v_add_f32 {v(ST + 8)}, {v(ST + 8)}, {v(ST + 9)}')
        A(f'v_add_f32 {v(ST + 10)}, {v(ST + 10)}, {v(ST + 11)}')
        A(f'v_add_f32 {v(r)}, {v(ST + 8)}, {v(ST + 10)}')

    def round_bf16(r):
        A(f'v_cvt_pk_bf16_f32 {v(r)}, {v(r)}, {v(r)}')
        A(f'v_lshlrev_b32 {v(r)}, 16, {v(r)}')

    def compute(S):
        unpack(XF, S)
        if KBN:
            unpack(AC, S + 4)
            for kb in range(1, KBN):
                unpack(UP, S + 4 + kb * 4)
                for j in range(8):
                    A(f'v_add_f32 {v(AC + j)}, {v(AC + j)}, {v(UP + j)}')
            pack(PK, AC)
            unpack(AC, PK)
            for j in range(8):
                A(f'v_add_f32 {v(XF + j)}, {v(XF + j)}, {v(AC + j)}')
            pack(PK, XF)
            A(f'buffer_store_dwordx4 {v(PK, 4)}, {v(vX)}, {srd(srd_xout)}, {s(R_XO)} offen'
              f'{" sc1" if xout_sc1 else ""}')
            if do_ln:
                unpack(XF, PK)
        if do_ln:
            m, q = ST, ST + 1
            A(f'v_add_f32 {v(m)}, {v(XF)}, {v(XF + 1)}')
            A(f'v_add_f32 {v(q)}, {v(XF + 2)}, {v(XF + 3)}')
            A(f'v_add_f32 {v(ST + 2)}, {v(XF + 4)}, {v(XF + 5)}')
            A(f'v_add_f32 {v(ST + 3)}, {v(XF + 6)}, {v(XF + 7)}')
            A(f'v_add_f32 {v(m)}, {v(m)}, {v(q)}')
            A(f'v_add_f32 {v(ST + 2)}, {v(ST + 2)}, {v(ST + 3)}')
            A(f'v_add_f32 {v(m)}, {v(m)}, {v(ST + 2)}')
            row_reduce(m, 0)
            A(f'v_mul_f32 {v(m)}, {f32bits(1.0 / 512):#x}, {v(m)}')
            for j in range(8):
                A(f'v_sub_f32 {v(AC + j)}, {v(XF + j)}, {v(m)}')
            A(f'v_mul_f32 {v(q)}, {v(AC)}, {v(AC)}')
            for j in range(1, 8):
                A(f'v_fmac_f32 {v(q)}, {v(AC + j)}, {v(AC + j)}')
            row_reduce(q, 64)
            A(f'v_mul_f32 {v(q)}, {f32bits(1.0 / 512):#x}, {v(q)}')
            round_bf16(q)
            A(f'v_add_f32 {v(q)}, {f32bits(1e-5):#x}, {v(q)}')
            round_bf16(q)
            A(f'v_sqrt_f32 {v(q)}, {v(q)}')
            round_bf16(q)
            A(f'v_rcp_f32 {v(q)}, {v(q)}')
            round_bf16(m)
            for j in range(8):
                A(f'v_sub_f32 {v(AC + j)}, {v(XF + j)}, {v(m)}')
            pack(PN, AC)
            unpack(AC, PN)
            for j in range(8):
                A(f'v_mul_f32 {v(AC + j)}, {v(AC + j)}, {v(q)}')
            pack(PN, AC)
            A(f'buffer_store_dwordx4 {v(PN, 4)}, {v(vN)}, {srd(SRD_WS)}, {s(R_XN)} offen{SC}')
        A(f's_add_u32 {s(R_XO)}, {s(R_XO)}, {steps["x"]}')
        A(f's_add_u32 {s(R_XN)}, {s(R_XN)}, {steps["xn"]}')

    if burst:
        assert KBN == 0
        for i in range(burst):
            loads(64 + 4 * i)
        nb = between() if between else 0
        for i in range(burst):
            A(f's_waitcnt vmcnt({burst - 1 + nb})')
            compute(64 + 4 * i)
        A(f's_branch {end_label}')
        return
    if flags and flags.get('pair'):
        top = A.newlabel('rlptop')
        A.label(top)
        emit_wait_ready(A, vFv, vFl, R_FIN, R_SEQ, R_SPIN, R_T0, vSy, end_label, sleep=TUNE.get('sl', 3))
        st2 = dict(steps)
        steps.update(p=4096, x=4096, xn=64)
        fs = flags['fin_step']
        flags['fin_step'] = 0
        loads(SETS[0])
        steps.update(p=st2['p'] - 4096, x=st2['x'] - 4096)
        flags['fin_step'] = fs
        loads(SETS[1])
        steps.update(p=4096, x=4096, xn=64)
        A(f's_waitcnt vmcnt({KBN + 1})')
        compute(SETS[0])
        steps.update(x=st2['x'] - 4096, xn=st2['xn'] - 64)
        A(f's_waitcnt vmcnt({2 if do_ln else 1})')
        compute(SETS[1])
        steps.update(st2)
        if sig:
            A('s_waitcnt vmcnt(0)')
            signal()
        A(f's_sub_u32 {s(R_CNT)}, {s(R_CNT)}, 1')
        A(f's_cmp_lg_u32 {s(R_CNT)}, 0')
        A(f's_cbranch_scc1 {top}')
        A(f's_branch {end_label}')
        return
    A(f's_mov_b32 {s(R_PEND)}, 0')
    if poll_in:
        emit_wait_ready(A, vFv, vFl, R_FIN, R_SEQ, R_SPIN, R_T0, vSy, end_label, sleep=8)
    loads(SETS[0])
    top = A.newlabel('rltop')
    last = A.newlabel('rllast')
    A.label(top)
    for u in (0, 1):
        S, O = SETS[u], SETS[1 - u]
        A(f's_sub_u32 {s(R_CNT)}, {s(R_CNT)}, 1')
        if poll_in:
            emit_poll_issue(A, vFv, vFl, R_FIN)
        A('s_waitcnt vmcnt(0)')
        if sig:
            ns = A.newlabel('rlns')
            A(f's_cmp_eq_u32 {s(R_PEND)}, 0')
            A(f's_cbranch_scc1 {ns}')
            signal()
            A.label(ns)
        nopf = A.newlabel('rlnopf')
        A(f's_mov_b32 {s(R_PREF)}, 0')
        A(f's_cmp_eq_u32 {s(R_CNT)}, 0')
        A(f's_cbranch_scc1 {nopf}')
        if poll_in:
            emit_poll_check(A, vFv)
            A(f's_cbranch_scc0 {nopf}')
            emit_post_ready(A, R_SEQ, vSy, vSt)
        loads(O)
        A(f's_mov_b32 {s(R_PREF)}, 1')
        A.label(nopf)
        compute(S)
        A(f's_mov_b32 {s(R_PEND)}, 1')
        A(f's_cmp_eq_u32 {s(R_CNT)}, 0')
        A(f's_cbranch_scc1 {last}')
        if poll_in:
            nx = A.newlabel('rlnx')
            A(f's_cmp_eq_u32 {s(R_PREF)}, 1')
            A(f's_cbranch_scc1 {nx}')
            if sig:
                A('s_waitcnt vmcnt(0)')
                signal()
            emit_wait_ready(A, vFv, vFl, R_FIN, R_SEQ, R_SPIN, R_T0, vSy, end_label, sleep=2)
            loads(O)
            A.label(nx)
    A(f's_branch {top}')
    A.label(last)
    if sig:
        A('s_waitcnt vmcnt(0)')
        signal()
    A(f's_branch {end_label}')


def att_role(A, segstep, end_label, flags=None, sc1=True):
    T_Q, T_K, T_V, T_KM, T_CNT, T_FIN, T_FOUT, T_VM, T_O, T_FPR, T_T0, T_SPIN = \
        24, 25, 26, 27, 28, 29, 30, 31, 32, 33, 34, 35
    vL16, vLane = 1, 2
    vT0, vT1, vT2 = 3, 4, 5
    vK, vKM, vV, vVM, vFl, vFv, vOne, vFp = 6, 7, 8, 9, 10, 11, 12, 13
    BIAS = 16
    QF, KF, KMF, VF, VMF = 32, 64, 96, 128, 160
    SX, SM = 176, 192
    PB = 208
    OA = 32
    OP = 220
    SC = ' sc1' if sc1 else ''
    scale_log2e = (128 ** -0.5) * 1.4426950408889634
    A(f'v_and_b32 {v(vT0)}, 0x13, {v(vLane)}')
    A(f'v_bfe_u32 {v(vT1)}, {v(vLane)}, 2, 1')
    A(f'v_lshl_or_b32 {v(vT0)}, {v(vT1)}, 3, {v(vT0)}')
    A(f'v_bfe_u32 {v(vT1)}, {v(vLane)}, 3, 1')
    A(f'v_lshl_or_b32 {v(vT0)}, {v(vT1)}, 2, {v(vT0)}')
    A(f'v_lshrrev_b32 {v(vT1)}, 5, {v(vLane)}')
    A(f'v_lshlrev_b32 {v(vK)}, 4, {v(vT0)}')
    A(f'v_lshl_add_u32 {v(vK)}, {v(vT1)}, 9, {v(vK)}')
    A(f'v_lshlrev_b32 {v(vV)}, 4, {v(vT0)}')
    A(f'v_lshl_add_u32 {v(vV)}, {v(vT1)}, 11, {v(vV)}')
    A(f'v_lshlrev_b32 {v(vVM)}, 3, {v(vT0)}')
    A(f'v_lshl_add_u32 {v(vVM)}, {v(vT1)}, 10, {v(vVM)}')
    A(f'v_and_b32 {v(vT2)}, 7, {v(vLane)}')
    A(f'v_lshlrev_b32 {v(vKM)}, 4, {v(vT2)}')
    A(f'v_lshl_add_u32 {v(vKM)}, {v(vT1)}, 7, {v(vKM)}')
    A(f'v_and_b32 {v(vT2)}, 31, {v(vLane)}')
    A(f'v_lshlrev_b32 {v(vT1)}, 3, {v(vT1)}')
    A(f'v_sub_u32 {v(vT2)}, {v(vT2)}, {v(vT1)}')
    A(f'v_mov_b32 {v(vT0)}, {f32bits(-1e30):#x}')
    for i in range(16):
        A(f'v_cmp_gt_i32 vcc, {16 * (i >> 3) + (i & 7)}, {v(vT2)}')
        A(f'v_cndmask_b32 {v(BIAS + i)}, 0, {v(vT0)}, vcc')
    for T in range(4):
        A(f'v_mov_b32 {v(VMF + T * 4 + 2)}, 0')
        A(f'v_mov_b32 {v(VMF + T * 4 + 3)}, 0')
    A(f'v_mov_b32 {v(PB + 10)}, 0')
    A(f'v_mov_b32 {v(PB + 11)}, 0')
    A(f'v_mov_b32 {v(vOne)}, 1')
    A(f's_mov_b32 s40, {f32bits(scale_log2e):#x}')
    if flags:
        A(f'v_min_u32 {v(vFl)}, {flags["n"] - 1}, {v(vLane)}')
        A(f'v_lshlrev_b32 {v(vFl)}, 2, {v(vFl)}')
        if True:
            A(f'v_min_u32 {v(vT0)}, 2, {v(vLane)}')
            A(f'v_lshlrev_b32 {v(vFp)}, 6, {v(vT0)}')
    T_PEND = 36
    A(f's_mov_b32 {s(T_PEND)}, 0')
    top = A.newlabel('atop')
    A.label(top)
    if flags:
        emit_poll_block(A, vFv, vFp, T_FPR, T_SPIN, end_label, sleep=8,
                        pend=(T_PEND, T_FOUT, 1024 * segstep, vOne))
        A(f's_add_u32 {s(T_FPR)}, {s(T_FPR)}, {1024 * segstep}')

    def ld8(dst, voff, soff):
        A(f's_add_u32 {s(T_T0)}, {s(soff)}, 4096')
        for c in range(8):
            so = soff if c < 4 else T_T0
            A(f'buffer_load_dwordx4 {v(dst + c * 4, 4)}, {v(voff)}, {srd(SRD_WS)}, {s(so)} offen '
              f'offset:{(c & 3) * 1024}{SC}')

    ld8(KF, vK, T_K)
    ld8(QF, vL16, T_Q)
    A(f's_add_u32 {s(T_T0)}, {s(T_V)}, 4096')
    for T in range(4):
        for f in (0, 1):
            so = T_V if f == 0 else T_T0
            A(f'buffer_load_dwordx4 {v(VF + (T * 2 + f) * 4, 4)}, {v(vV)}, {srd(SRD_WS)}, {s(so)} offen '
              f'offset:{T * 512}{SC}')
    for c in range(8):
        A(f's_waitcnt vmcnt({8 + 7 - c})')
        cin = '0' if c == 0 else v(SX, 16)
        A(f'v_mfma_f32_32x32x16_bf16 {v(SX, 16)}, {v(KF + c * 4, 4)}, {v(QF + c * 4, 4)}, {cin}')
    if flags:
        emit_poll_block(A, vFv, vFl, T_FIN, T_SPIN, end_label, sleep=3)
        A(f's_add_u32 {s(T_FIN)}, {s(T_FIN)}, {1024 * segstep}')
    for c in range(8):
        A(f'buffer_load_dwordx4 {v(KMF + c * 4, 4)}, {v(vKM)}, {srd(SRD_WS)}, {s(T_KM)} offen '
          f'offset:{c * 256}{SC}')
    for T in range(4):
        A(f'buffer_load_dwordx2 {v(VMF + T * 4, 2)}, {v(vVM)}, {srd(SRD_WS)}, {s(T_VM)} offen '
          f'offset:{T * 256}{SC}')
    for i in range(16):
        A(f'v_fma_f32 {v(SX + i)}, {v(SX + i)}, s40, {v(BIAS + i)}')
    mx = vT0
    A(f'v_max3_f32 {v(mx)}, {v(SX)}, {v(SX + 1)}, {v(SX + 2)}')
    for i in range(3, 15, 2):
        A(f'v_max3_f32 {v(mx)}, {v(mx)}, {v(SX + i)}, {v(SX + i + 1)}')
    A(f'v_max_f32 {v(mx)}, {v(mx)}, {v(SX + 15)}')
    for c in range(8):
        A(f's_waitcnt vmcnt({4 + 7 - c})')
        cin = '0' if c == 0 else v(SM, 16)
        A(f'v_mfma_f32_32x32x16_bf16 {v(SM, 16)}, {v(KMF + c * 4, 4)}, {v(QF + c * 4, 4)}, {cin}')
    for i in range(4):
        A(f'v_mul_f32 {v(SM + i)}, s40, {v(SM + i)}')
    A(f'v_max3_f32 {v(mx)}, {v(mx)}, {v(SM)}, {v(SM + 1)}')
    A(f'v_max3_f32 {v(mx)}, {v(mx)}, {v(SM + 2)}, {v(SM + 3)}')
    A(f'v_mov_b32 {v(vT1)}, {v(mx)}')
    A(f'v_permlane32_swap_b32 {v(mx)}, {v(vT1)}')
    A(f'v_max_f32 {v(mx)}, {v(mx)}, {v(vT1)}')
    vals = [SX + i for i in range(16)] + [SM + i for i in range(4)]
    for r in vals:
        A(f'v_sub_f32 {v(r)}, {v(r)}, {v(mx)}')
    for r in vals:
        A(f'v_exp_f32 {v(r)}, {v(r)}')
    sm = vT1
    A(f'v_add_f32 {v(sm)}, {v(vals[0])}, {v(vals[1])}')
    A(f'v_add_f32 {v(vT2)}, {v(vals[2])}, {v(vals[3])}')
    for i in range(4, 20, 2):
        A(f'v_add_f32 {v(sm)}, {v(sm)}, {v(vals[i])}')
        A(f'v_add_f32 {v(vT2)}, {v(vT2)}, {v(vals[i + 1])}')
    A(f'v_add_f32 {v(sm)}, {v(sm)}, {v(vT2)}')
    A(f'v_mov_b32 {v(vT2)}, {v(sm)}')
    A(f'v_permlane32_swap_b32 {v(sm)}, {v(vT2)}')
    A(f'v_add_f32 {v(sm)}, {v(sm)}, {v(vT2)}')
    A(f'v_rcp_f32 {v(sm)}, {v(sm)}')
    for r in vals:
        A(f'v_mul_f32 {v(r)}, {v(r)}, {v(sm)}')
    for j in range(10):
        A(f'v_cvt_pk_bf16_f32 {v(PB + j)}, {v(vals[2 * j])}, {v(vals[2 * j + 1])}')
    A('s_waitcnt vmcnt(0)')
    for T in range(4):
        o = v(OA + T * 16, 16)
        A(f'v_mfma_f32_32x32x16_bf16 {o}, {v(VF + T * 8, 4)}, {v(PB, 4)}, 0')
        A(f'v_mfma_f32_32x32x16_bf16 {o}, {v(VF + T * 8 + 4, 4)}, {v(PB + 4, 4)}, {o}')
        A(f'v_mfma_f32_32x32x16_bf16 {o}, {v(VMF + T * 4, 4)}, {v(PB + 8, 4)}, {o}')
    A(f's_add_u32 {s(T_T0)}, {s(T_O)}, 4096')
    for T in range(4):
        for f in (0, 1):
            n = T * 2 + f
            d = KMF + n * 4
            for j in range(4):
                r0 = OA + T * 16 + f * 8 + 2 * j
                A(f'v_cvt_pk_bf16_f32 {v(d + j)}, {v(r0)}, {v(r0 + 1)}')
            so = T_O if n < 4 else T_T0
            A(f'buffer_store_dwordx4 {v(d, 4)}, {v(vL16)}, {srd(SRD_WS)}, {s(so)} offen '
              f'offset:{(n & 3) * 1024}{SC}')
    A(f's_mov_b32 {s(T_PEND)}, 1')
    for r, st in ((T_Q, 262144), (T_K, 262144), (T_V, 262144), (T_KM, 65536), (T_VM, 65536), (T_O, 262144)):
        A(f's_add_u32 {s(r)}, {s(r)}, {st * segstep}')
    A(f's_sub_u32 {s(T_CNT)}, {s(T_CNT)}, 1')
    A(f's_cmp_lg_u32 {s(T_CNT)}, 0')
    A(f's_cbranch_scc1 {top}')
    if flags:
        A('s_waitcnt vmcnt(0)')
        emit_signal(A, T_FOUT, vOne)
    A(f's_branch {end_label}')


def ao_role(A, segstep, end_label, s_pure=None, wout=None, bp=None):
    gemm_setup(A, 32, 'part', 1024, SRD_A, SRD_A)
    T_Q, T_K, T_V, T_KM, T_VM, T_FPR = 50, 51, 52, 53, 54, 55
    T_OUT, T_CNT, T_FIN, T_FOUT = 27, 28, 29, 30
    T_T0, T_T1, T_SPIN, T_PREF, T_PEND = 31, 32, 35, 33, 34
    P_Q, P_K, P_V = 56, 58, 60
    vL16, vLane = 1, 2
    vT0, vT1, vT2 = 3, 4, 5
    vK, vKM, vV, vVM, vFl, vFv, vOne, vFp, vOut, vLw = 6, 7, 8, 9, 10, 11, 12, 13, 14, 15
    BIAS = 16
    QF, KF, KMF, VF, VMF = 32, 64, 96, 128, 160
    SX, SM = 176, 192
    PB = 208
    OA = 32
    TMP = 220
    vSy, vC1, vSt, vRd, vFq = 236, 238, 239, 240, 241
    SC = ' sc1'
    scale_log2e = (128 ** -0.5) * 1.4426950408889634
    A(f'v_mov_b32 {v(vOut)}, v9')
    A(f'v_and_b32 {v(vT0)}, 0x13, {v(vLane)}')
    A(f'v_bfe_u32 {v(vT1)}, {v(vLane)}, 2, 1')
    A(f'v_lshl_or_b32 {v(vT0)}, {v(vT1)}, 3, {v(vT0)}')
    A(f'v_bfe_u32 {v(vT1)}, {v(vLane)}, 3, 1')
    A(f'v_lshl_or_b32 {v(vT0)}, {v(vT1)}, 2, {v(vT0)}')
    A(f'v_lshrrev_b32 {v(vT1)}, 5, {v(vLane)}')
    A(f'v_lshlrev_b32 {v(vK)}, 4, {v(vT0)}')
    A(f'v_lshl_add_u32 {v(vK)}, {v(vT1)}, 9, {v(vK)}')
    A(f'v_lshlrev_b32 {v(vV)}, 4, {v(vT0)}')
    A(f'v_lshl_add_u32 {v(vV)}, {v(vT1)}, 11, {v(vV)}')
    A(f'v_lshlrev_b32 {v(vVM)}, 3, {v(vT0)}')
    A(f'v_lshl_add_u32 {v(vVM)}, {v(vT1)}, 10, {v(vVM)}')
    A(f'v_and_b32 {v(vT2)}, 7, {v(vLane)}')
    A(f'v_lshlrev_b32 {v(vKM)}, 4, {v(vT2)}')
    A(f'v_lshl_add_u32 {v(vKM)}, {v(vT1)}, 7, {v(vKM)}')
    A(f'v_and_b32 {v(vT2)}, 31, {v(vLane)}')
    A(f'v_lshlrev_b32 {v(vT1)}, 3, {v(vT1)}')
    A(f'v_sub_u32 {v(vT2)}, {v(vT2)}, {v(vT1)}')
    A(f'v_mov_b32 {v(vT0)}, {f32bits(-1e30):#x}')
    for i in range(16):
        A(f'v_cmp_gt_i32 vcc, {16 * (i >> 3) + (i & 7)}, {v(vT2)}')
        A(f'v_cndmask_b32 {v(BIAS + i)}, 0, {v(vT0)}, vcc')
    for T in range(4):
        A(f'v_mov_b32 {v(VMF + T * 4 + 2)}, 0')
        A(f'v_mov_b32 {v(VMF + T * 4 + 3)}, 0')
    A(f'v_mov_b32 {v(PB + 10)}, 0')
    A(f'v_mov_b32 {v(PB + 11)}, 0')
    A(f'v_mov_b32 {v(vOne)}, 1')
    A(f's_mov_b32 s40, {f32bits(scale_log2e):#x}')
    A(f'v_mov_b32 {v(vFl)}, 0')
    vFl2, T_SEQ = 242, 63
    A(f's_mov_b32 {s(T_SEQ)}, 0')
    bp_setup(A, vFl2, vFl, 1, bp, vT0)
    A(f'v_min_u32 {v(vT0)}, 2, {v(vLane)}')
    A(f'v_lshlrev_b32 {v(vFp)}, 6, {v(vT0)}')
    A(f's_lshl_b32 {s(T_T0)}, {s(S_WAVE)}, 13')
    A(f'v_add_u32 {v(vLw)}, {s(T_T0)}, {v(vL16)}')
    A(f'v_mov_b32 {v(vRd)}, {v(vL16)}')
    sync_setup(A, vSy, vC1)
    A('s_barrier')

    def set_src(real):
        for p, r in ((P_Q, T_Q), (P_K, T_K), (P_V, T_V)):
            if real is None:
                A(f's_mov_b32 {s(p)}, {s(r)}')
            else:
                A(f's_cselect_b32 {s(p)}, {s(r)}, {OOB}')
        for p in (P_Q, P_K, P_V):
            A(f's_add_u32 {s(p + 1)}, {s(p)}, 4096')

    def load_list():
        L = []
        for c in range(8):
            L.append(f'buffer_load_dwordx4 {v(KF + c * 4, 4)}, {v(vK)}, {srd(SRD_WS)}, {s(P_K + (c >> 2))} offen '
                     f'offset:{(c & 3) * 1024}{SC}')
            L.append(f'buffer_load_dwordx4 {v(QF + c * 4, 4)}, {v(vL16)}, {srd(SRD_WS)}, {s(P_Q + (c >> 2))} offen '
                     f'offset:{(c & 3) * 1024}{SC}')
        for T in range(4):
            for f in (0, 1):
                L.append(f'buffer_load_dwordx4 {v(VF + (T * 2 + f) * 4, 4)}, {v(vV)}, {srd(SRD_WS)}, '
                         f'{s(P_V + f)} offen offset:{T * 512}{SC}')
        return L

    def adv_in():
        for r in (T_Q, T_K, T_V):
            A(f's_add_u32 {s(r)}, {s(r)}, {262144 * segstep}')
        A(f's_add_u32 {s(T_FPR)}, {s(T_FPR)}, {1024 * segstep}')

    def body():
        emit_poll_block(A, vFv, vFp, T_FPR, T_SPIN, end_label, sleep=8)
        set_src(None)
        for x in load_list():
            A(x)
        adv_in()
        A(f's_mov_b32 {s(T_PEND)}, 0')

        def signal():
            emit_signal_agg(A, T_FOUT, vOne, vSy, vC1, vSt, T_T0)
            A(f's_add_u32 {s(T_FOUT)}, {s(T_FOUT)}, {1024 * segstep}')
            A(f's_mov_b32 {s(T_PEND)}, 0')

        top = A.newlabel('aotop')
        A.label(top)
        A(f's_sub_u32 {s(T_CNT)}, {s(T_CNT)}, 1')
        emit_poll_issue(A, vFv, vFl, T_FIN)
        A('s_waitcnt vmcnt(9)')
        for c in range(8):
            cin = '0' if c == 0 else v(SX, 16)
            A(f'v_mfma_f32_32x32x16_bf16 {v(SX, 16)}, {v(KF + c * 4, 4)}, {v(QF + c * 4, 4)}, {cin}')
        for i in range(16):
            A(f'v_fma_f32 {v(SX + i)}, {v(SX + i)}, s40, {v(BIAS + i)}')
        mx = vT0
        A(f'v_max3_f32 {v(mx)}, {v(SX)}, {v(SX + 1)}, {v(SX + 2)}')
        for i in range(3, 15, 2):
            A(f'v_max3_f32 {v(mx)}, {v(mx)}, {v(SX + i)}, {v(SX + i + 1)}')
        A(f'v_max_f32 {v(mx)}, {v(mx)}, {v(SX + 15)}')
        A('s_waitcnt vmcnt(0)')
        ns = A.newlabel('aons')
        A(f's_cmp_eq_u32 {s(T_PEND)}, 0')
        A(f's_cbranch_scc1 {ns}')
        signal()
        A.label(ns)
        go = A.newlabel('aogo')
        emit_poll_check(A, vFv)
        A(f's_cbranch_scc1 {go}')
        emit_poll_block(A, vFv, vFl, T_FIN, T_SPIN, end_label, sleep=TUNE.get('sla', 2))
        A.label(go)
        A(f's_add_u32 {s(T_FIN)}, {s(T_FIN)}, {1024 * segstep}')
        A(f's_add_u32 {s(T_SEQ)}, {s(T_SEQ)}, 1')
        bp_switch(A, vFl, vFl2, T_SEQ, RING // segstep)
        for c in range(8):
            A(f'buffer_load_dwordx4 {v(KMF + c * 4, 4)}, {v(vKM)}, {srd(SRD_WS)}, {s(T_KM)} offen '
              f'offset:{c * 256}{SC}')
        for T in range(4):
            A(f'buffer_load_dwordx2 {v(VMF + T * 4, 2)}, {v(vVM)}, {srd(SRD_WS)}, {s(T_VM)} offen '
              f'offset:{T * 256}{SC}')
        emit_poll_issue(A, vFq, vFp, T_FPR)
        A(f's_add_u32 {s(T_KM)}, {s(T_KM)}, {65536 * segstep}')
        A(f's_add_u32 {s(T_VM)}, {s(T_VM)}, {65536 * segstep}')
        for c in range(8):
            A(f's_waitcnt vmcnt({5 + 7 - c})')
            cin = '0' if c == 0 else v(SM, 16)
            A(f'v_mfma_f32_32x32x16_bf16 {v(SM, 16)}, {v(KMF + c * 4, 4)}, {v(QF + c * 4, 4)}, {cin}')
        for i in range(4):
            A(f'v_mul_f32 {v(SM + i)}, s40, {v(SM + i)}')
        A(f'v_max3_f32 {v(mx)}, {v(mx)}, {v(SM)}, {v(SM + 1)}')
        A(f'v_max3_f32 {v(mx)}, {v(mx)}, {v(SM + 2)}, {v(SM + 3)}')
        A(f'v_mov_b32 {v(vT1)}, {v(mx)}')
        A(f'v_permlane32_swap_b32 {v(mx)}, {v(vT1)}')
        A(f'v_max_f32 {v(mx)}, {v(mx)}, {v(vT1)}')
        vals = [SX + i for i in range(16)] + [SM + i for i in range(4)]
        for r in vals:
            A(f'v_sub_f32 {v(r)}, {v(r)}, {v(mx)}')
        for r in vals:
            A(f'v_exp_f32 {v(r)}, {v(r)}')
        sm = vT1
        A(f'v_add_f32 {v(sm)}, {v(vals[0])}, {v(vals[1])}')
        A(f'v_add_f32 {v(vT2)}, {v(vals[2])}, {v(vals[3])}')
        for i in range(4, 20, 2):
            A(f'v_add_f32 {v(sm)}, {v(sm)}, {v(vals[i])}')
            A(f'v_add_f32 {v(vT2)}, {v(vT2)}, {v(vals[i + 1])}')
        A(f'v_add_f32 {v(sm)}, {v(sm)}, {v(vT2)}')
        A(f'v_mov_b32 {v(vT2)}, {v(sm)}')
        A(f'v_permlane32_swap_b32 {v(sm)}, {v(vT2)}')
        A(f'v_add_f32 {v(sm)}, {v(sm)}, {v(vT2)}')
        A(f'v_rcp_f32 {v(sm)}, {v(sm)}')
        for r in vals:
            A(f'v_mul_f32 {v(r)}, {v(r)}, {v(sm)}')
        for j in range(10):
            A(f'v_cvt_pk_bf16_f32 {v(PB + j)}, {v(vals[2 * j])}, {v(vals[2 * j + 1])}')
        A('s_waitcnt vmcnt(0)')

        def pack(T):
            out = []
            for f in (0, 1):
                n = T * 2 + f
                d = KMF + n * 4
                for j in range(4):
                    r0 = OA + T * 16 + f * 8 + 2 * j
                    out.append(f'v_cvt_pk_bf16_f32 {v(d + j)}, {v(r0)}, {v(r0 + 1)}')
                out.append(f'ds_write_b128 {v(vLw)}, {v(d, 4)} offset:{n * 1024}')
            return out

        fill = []
        for T in range(4):
            o = v(OA + T * 16, 16)
            for m in (f'v_mfma_f32_32x32x16_bf16 {o}, {v(VF + T * 8, 4)}, {v(PB, 4)}, 0',
                      f'v_mfma_f32_32x32x16_bf16 {o}, {v(VF + T * 8 + 4, 4)}, {v(PB + 4, 4)}, {o}',
                      f'v_mfma_f32_32x32x16_bf16 {o}, {v(VMF + T * 4, 4)}, {v(PB + 8, 4)}, {o}'):
                A(m)
                for _ in range(4):
                    if fill:
                        A(fill.pop(0))
            if T >= 1:
                fill += pack(T - 1)
        emit_poll_check(A, vFq)
        A(f's_cselect_b32 {s(T_PREF)}, 1, 0')
        A(f's_cmp_eq_u32 {s(T_CNT)}, 0')
        A(f's_cselect_b32 {s(T_PREF)}, 0, {s(T_PREF)}')
        A(f's_cmp_eq_u32 {s(T_PREF)}, 1')
        set_src(True)
        for x in fill + pack(3):
            A(x)
        A('s_waitcnt lgkmcnt(0)')
        A('s_barrier')
        NK, NS, D2, R2 = 32, 64, 7, 8
        ACC = [SX, SM]

        lag = 4 if TUNE.get('kmaj', 0) else None
        seq, pre, reads, waits, t0_done = mfma_plan(NK, lag, D2, R2)

        def rd(c, slot):
            A(f'ds_read_b128 {v(KMF + slot * 4, 4)}, {v(vRd)} offset:{c * 1024}')

        def cvt_tile(t):
            out = []
            for f in (0, 1):
                d = TMP + (t * 2 + f) * 4
                for j in range(4):
                    r0 = ACC[t] + f * 8 + 2 * j
                    out.append(f'v_cvt_pk_bf16_f32 {v(d + j)}, {v(r0)}, {v(r0 + 1)}')
                out.append(f'buffer_store_dwordx4 {v(d, 4)}, {v(vOut)}, {srd(SRD_WS)}, {s(T_OUT)} offen '
                           f'offset:{(t * 2 + f) * 128}{"" if LOCAL[0] else SC}')
            return out

        for x in pre:
            rd(*x)
        pl = load_list()
        early = cvt_tile(0)
        for n in range(NS):
            t, c, slot = seq[n]
            for x in reads[n]:
                rd(*x)
            if n in waits:
                A(f's_waitcnt lgkmcnt({waits[n]})')
            cin = '0' if c == 0 else v(ACC[t], 16)
            A(f'v_mfma_f32_32x32x16_bf16 {v(ACC[t], 16)}, {a((t * 32 + c) * 4, 4)}, '
              f'{v(KMF + slot * 4, 4)}, {cin}')
            if pl and (n % 2 == 0):
                A(pl.pop(0))
            if n >= t0_done + (4 if lag is None else 2):
                for _ in range(2 if lag is None else 4):
                    if early:
                        A(early.pop(0))
        assert not pl
        for x in early:
            A(x)
        A(f'v_xor_b32 {v(vRd)}, 32768, {v(vRd)}')
        A(f'v_xor_b32 {v(vLw)}, 32768, {v(vLw)}')
        for x in cvt_tile(1):
            A(x)
        adv(A, T_OUT, 8 * PSEG * segstep, wout)
        A(f's_mov_b32 {s(T_PEND)}, 1')
        pf = A.newlabel('aopf')
        A(f's_cmp_eq_u32 {s(T_PREF)}, 1')
        A(f's_cbranch_scc1 {pf}')
        A('s_waitcnt vmcnt(0)')
        signal()
        A(f's_cmp_eq_u32 {s(T_CNT)}, 0')
        A(f's_cbranch_scc1 {end_label}')
        emit_poll_block(A, vFv, vFp, T_FPR, T_SPIN, end_label, sleep=4)
        set_src(None)
        for x in load_list():
            A(x)
        A.label(pf)
        adv_in()
        A(f's_branch {top}')

    if s_pure is not None:
        gl = A.newlabel('aog')
        A(f's_cmp_eq_u32 {s(s_pure)}, 0')
        A(f's_cbranch_scc1 {gl}')
        LOCAL[0] = True
        body()
        LOCAL[0] = False
        A.label(gl)
    body()


def ln_wave(A, srd_x, s_x, s_xn, ntask, x_step, xn_step, between=None):
    vLane = 2
    vX, vN, m, q, t = 6, 7, 8, 9, 10
    XF, PN = 16, 48
    LD = 64
    A(f'v_and_b32 v3, 3, {v(vLane)}')
    A(f'v_lshrrev_b32 v4, 2, {v(vLane)}')
    A(f'v_lshlrev_b32 {v(vX)}, 10, v3')
    A(f'v_lshl_add_u32 {v(vX)}, v4, 4, {v(vX)}')
    A(f'v_lshlrev_b32 {v(vN)}, 9, v4')
    A(f'v_lshl_add_u32 {v(vN)}, v3, 4, {v(vN)}')
    A('s_mov_b32 s40, 0xffff0000')
    for i in range(ntask):
        for j in range(4):
            A(f'buffer_load_dwordx4 {v(LD + i * 16 + j * 4, 4)}, {v(vX)}, {srd(srd_x)}, {s(s_x)} offen offset:{j * 256}')
        A(f's_add_u32 {s(s_x)}, {s(s_x)}, {x_step}')
    nb = between() if between else 0

    def reduce(r):
        A(f'v_add_f32_dpp {v(r)}, {v(r)}, {v(r)} row_ror:4 row_mask:0xf bank_mask:0xf')
        A(f'v_add_f32_dpp {v(r)}, {v(r)}, {v(r)} row_ror:8 row_mask:0xf bank_mask:0xf')
        A(f'v_mov_b32 {v(t)}, {v(r)}')
        A(f'v_permlane16_swap_b32 {v(r)}, {v(t)}')
        A(f'v_add_f32 {v(r)}, {v(r)}, {v(t)}')
        A(f'v_mov_b32 {v(t)}, {v(r)}')
        A(f'v_permlane32_swap_b32 {v(r)}, {v(t)}')
        A(f'v_add_f32 {v(r)}, {v(r)}, {v(t)}')

    def rb(r):
        A(f'v_cvt_pk_bf16_f32 {v(r)}, {v(r)}, {v(r)}')
        A(f'v_lshlrev_b32 {v(r)}, 16, {v(r)}')

    for i in range(ntask):
        S = LD + i * 16
        A(f's_waitcnt vmcnt({4 * (ntask - 1) + nb})')
        for j in range(16):
            A(f'v_lshlrev_b32 {v(XF + 2 * j)}, 16, {v(S + j)}')
            A(f'v_and_b32 {v(XF + 2 * j + 1)}, s40, {v(S + j)}')
        A(f'v_add_f32 {v(m)}, {v(XF)}, {v(XF + 1)}')
        A(f'v_add_f32 {v(q)}, {v(XF + 2)}, {v(XF + 3)}')
        for j in range(4, 32, 2):
            A(f'v_add_f32 {v(m)}, {v(m)}, {v(XF + j)}')
            A(f'v_add_f32 {v(q)}, {v(q)}, {v(XF + j + 1)}')
        A(f'v_add_f32 {v(m)}, {v(m)}, {v(q)}')
        reduce(m)
        A(f'v_mul_f32 {v(m)}, {f32bits(1.0 / 512):#x}, {v(m)}')
        A(f'v_mov_b32 {v(q)}, 0')
        A(f'v_mov_b32 v11, 0')
        for j in range(0, 32, 2):
            A(f'v_sub_f32 v12, {v(XF + j)}, {v(m)}')
            A(f'v_sub_f32 v13, {v(XF + j + 1)}, {v(m)}')
            A(f'v_fmac_f32 {v(q)}, v12, v12')
            A(f'v_fmac_f32 v11, v13, v13')
        A(f'v_add_f32 {v(q)}, {v(q)}, v11')
        reduce(q)
        A(f'v_mul_f32 {v(q)}, {f32bits(1.0 / 512):#x}, {v(q)}')
        rb(q)
        A(f'v_add_f32 {v(q)}, {f32bits(1e-5):#x}, {v(q)}')
        rb(q)
        A(f'v_sqrt_f32 {v(q)}, {v(q)}')
        rb(q)
        A(f'v_rcp_f32 {v(q)}, {v(q)}')
        rb(m)
        for j in range(32):
            A(f'v_sub_f32 {v(XF + j)}, {v(XF + j)}, {v(m)}')
        for j in range(16):
            A(f'v_cvt_pk_bf16_f32 {v(S + j)}, {v(XF + 2 * j)}, {v(XF + 2 * j + 1)}')
        for j in range(16):
            A(f'v_lshlrev_b32 {v(XF + 2 * j)}, 16, {v(S + j)}')
            A(f'v_and_b32 {v(XF + 2 * j + 1)}, s40, {v(S + j)}')
        for j in range(32):
            A(f'v_mul_f32 {v(XF + j)}, {v(XF + j)}, {v(q)}')
        for j in range(16):
            A(f'v_cvt_pk_bf16_f32 {v(S + j)}, {v(XF + 2 * j)}, {v(XF + 2 * j + 1)}')
        for j in range(4):
            A(f's_add_u32 s41, {s(s_xn)}, {j * 8192}')
            A(f'buffer_store_dwordx4 {v(S + j * 4, 4)}, {v(vN)}, {srd(SRD_WS)}, s41 offen sc1')
        A(f's_add_u32 {s(s_xn)}, {s(s_xn)}, {xn_step}')


def rlw_role(A, KBN, srd_xin, srd_xout, do_ln, steps, end_label, flags, xin_sc1=True, xout_sc1=True):
    R_P, R_XI, R_XO, R_XN, R_CNT, R_FIN, R_FOUT, R_T0, R_SPIN, R_SEQ = 24, 25, 26, 27, 28, 29, 30, 31, 35, 36
    vLane = 2
    vP, vX, vN, vFl, vFv, vOne = 6, 7, 8, 11, 12, 13
    vSy, vC1, vSt = 14, 4, 5
    m, q, t, q2, d0, d1 = 16, 17, 18, 19, 20, 21
    XF, AC, UP, PK = 24, 40, 56, 64
    LD = 72
    sig = flags.get('signal', True)
    A(f'v_and_b32 v3, 1, {v(vLane)}')
    A(f'v_lshrrev_b32 v4, 1, {v(vLane)}')
    A(f's_lshl_b32 {s(R_T0)}, {s(S_WAVE)}, 1')
    A(f'v_add_u32 v3, {s(R_T0)}, v3')
    A(f'v_lshlrev_b32 {v(vX)}, 10, v3')
    A(f'v_lshl_add_u32 {v(vX)}, v4, 4, {v(vX)}')
    A(f'v_lshlrev_b32 {v(vN)}, 9, v4')
    A(f'v_lshl_add_u32 {v(vN)}, v3, 4, {v(vN)}')
    A(f'v_lshrrev_b32 v5, 2, v3')
    A(f'v_lshlrev_b32 {v(vP)}, 12, v5')
    A(f'v_lshl_add_u32 {v(vP)}, v4, 6, {v(vP)}')
    A(f'v_and_b32 v5, 3, v3')
    A(f'v_lshl_add_u32 {v(vP)}, v5, 4, {v(vP)}')
    A(f'v_mov_b32 {v(vOne)}, 1')
    A('s_mov_b32 s40, 0xffff0000')
    A(f'v_min_u32 {v(vFl)}, {flags["n"] - 1}, {v(vLane)}')
    A(f'v_lshlrev_b32 {v(vFl)}, 2, {v(vFl)}')
    sync_setup(A, vSy, vC1)
    A(f's_mov_b32 {s(R_SEQ)}, 1')
    A('s_barrier')

    def unpack(dst, src, n):
        for j in range(n):
            A(f'v_lshlrev_b32 {v(dst + 2 * j)}, 16, {v(src + j)}')
            A(f'v_and_b32 {v(dst + 2 * j + 1)}, s40, {v(src + j)}')

    def pack(dst, src, n):
        for j in range(n):
            A(f'v_cvt_pk_bf16_f32 {v(dst + j)}, {v(src + 2 * j)}, {v(src + 2 * j + 1)}')

    def reduce(r):
        for sh in (2, 4, 8):
            A(f'v_add_f32_dpp {v(r)}, {v(r)}, {v(r)} row_ror:{sh} row_mask:0xf bank_mask:0xf')
        A(f'v_mov_b32 {v(t)}, {v(r)}')
        A(f'v_permlane16_swap_b32 {v(r)}, {v(t)}')
        A(f'v_add_f32 {v(r)}, {v(r)}, {v(t)}')
        A(f'v_mov_b32 {v(t)}, {v(r)}')
        A(f'v_permlane32_swap_b32 {v(r)}, {v(t)}')
        A(f'v_add_f32 {v(r)}, {v(r)}, {v(t)}')

    def rb(r):
        A(f'v_cvt_pk_bf16_f32 {v(r)}, {v(r)}, {v(r)}')
        A(f'v_lshlrev_b32 {v(r)}, 16, {v(r)}')

    top = A.newlabel('rwtop')
    A.label(top)
    xs = ' sc1' if xin_sc1 else ''
    if not xin_sc1:
        for j in (0, 1):
            A(f'buffer_load_dwordx4 {v(LD + j * 4, 4)}, {v(vX)}, {srd(srd_xin)}, {s(R_XI)} offen offset:{j * 512}')
    emit_wait_ready(A, vFv, vFl, R_FIN, R_SEQ, R_SPIN, R_T0, vSy, end_label, sleep=TUNE.get('sl', 3))
    A(f's_mov_b32 {s(R_T0)}, {s(R_P)}')
    for kb in range(KBN):
        for j in (0, 1):
            A(f'buffer_load_dwordx4 {v(LD + 8 + kb * 8 + j * 4, 4)}, {v(vP)}, {srd(SRD_WS)}, {s(R_T0)} offen '
              f'offset:{j * 2048} sc1')
        if kb + 1 < KBN:
            A(f's_add_u32 {s(R_T0)}, {s(R_T0)}, {PSEG}')
    nx = 0
    if xin_sc1:
        nx = 2
        for j in (0, 1):
            A(f'buffer_load_dwordx4 {v(LD + j * 4, 4)}, {v(vX)}, {srd(srd_xin)}, {s(R_XI)} offen '
              f'offset:{j * 512}{xs}')
    A(f's_add_u32 {s(R_P)}, {s(R_P)}, {steps["p"]}')
    A(f's_add_u32 {s(R_XI)}, {s(R_XI)}, {steps["x"]}')
    A(f's_add_u32 {s(R_FIN)}, {s(R_FIN)}, {flags["fin_step"]}')
    A(f's_add_u32 {s(R_SEQ)}, {s(R_SEQ)}, 1')
    for kb in range(KBN):
        A(f's_waitcnt vmcnt({2 * (KBN - 1 - kb) + nx})')
        if kb == 0:
            unpack(AC, LD + 8, 8)
        else:
            for j in (0, 1):
                unpack(UP, LD + 8 + kb * 8 + j * 4, 4)
                for e in range(8):
                    A(f'v_add_f32 {v(AC + j * 8 + e)}, {v(AC + j * 8 + e)}, {v(UP + e)}')
    pack(PK, AC, 8)
    unpack(AC, PK, 8)
    A('s_waitcnt vmcnt(0)')
    unpack(XF, LD, 8)
    for e in range(16):
        A(f'v_add_f32 {v(XF + e)}, {v(XF + e)}, {v(AC + e)}')
    pack(PK, XF, 8)
    for j in (0, 1):
        A(f'buffer_store_dwordx4 {v(PK + j * 4, 4)}, {v(vX)}, {srd(srd_xout)}, {s(R_XO)} offen offset:{j * 512}'
          f'{" sc1" if xout_sc1 else ""}')
    if do_ln:
        unpack(XF, PK, 8)
        A(f'v_add_f32 {v(m)}, {v(XF)}, {v(XF + 1)}')
        A(f'v_add_f32 {v(q)}, {v(XF + 2)}, {v(XF + 3)}')
        for e in range(4, 16, 2):
            A(f'v_add_f32 {v(m)}, {v(m)}, {v(XF + e)}')
            A(f'v_add_f32 {v(q)}, {v(q)}, {v(XF + e + 1)}')
        A(f'v_add_f32 {v(m)}, {v(m)}, {v(q)}')
        reduce(m)
        A(f'v_mul_f32 {v(m)}, {f32bits(1.0 / 512):#x}, {v(m)}')
        for e in range(16):
            A(f'v_sub_f32 {v(AC + e)}, {v(XF + e)}, {v(m)}')
        A(f'v_mul_f32 {v(q)}, {v(AC)}, {v(AC)}')
        A(f'v_mul_f32 {v(q2)}, {v(AC + 1)}, {v(AC + 1)}')
        for e in range(2, 16, 2):
            A(f'v_fmac_f32 {v(q)}, {v(AC + e)}, {v(AC + e)}')
            A(f'v_fmac_f32 {v(q2)}, {v(AC + e + 1)}, {v(AC + e + 1)}')
        A(f'v_add_f32 {v(q)}, {v(q)}, {v(q2)}')
        rb(m)
        reduce(q)
        for e in range(16):
            A(f'v_sub_f32 {v(AC + e)}, {v(XF + e)}, {v(m)}')
        A(f'v_mul_f32 {v(q)}, {f32bits(1.0 / 512):#x}, {v(q)}')
        rb(q)
        A(f'v_add_f32 {v(q)}, {f32bits(1e-5):#x}, {v(q)}')
        rb(q)
        A(f'v_sqrt_f32 {v(q)}, {v(q)}')
        rb(q)
        A(f'v_rcp_f32 {v(q)}, {v(q)}')
        pack(LD, AC, 8)
        unpack(AC, LD, 8)
        for e in range(16):
            A(f'v_mul_f32 {v(AC + e)}, {v(AC + e)}, {v(q)}')
        pack(LD, AC, 8)
        A(f's_add_u32 {s(R_T0)}, {s(R_XN)}, 16384')
        A(f'buffer_store_dwordx4 {v(LD, 4)}, {v(vN)}, {srd(SRD_WS)}, {s(R_XN)} offen sc1')
        A(f'buffer_store_dwordx4 {v(LD + 4, 4)}, {v(vN)}, {srd(SRD_WS)}, {s(R_T0)} offen sc1')
    A(f's_add_u32 {s(R_XO)}, {s(R_XO)}, {steps["x"]}')
    A(f's_add_u32 {s(R_XN)}, {s(R_XN)}, {steps["xn"]}')
    if sig:
        A('s_waitcnt vmcnt(0)')
        emit_signal_agg(A, R_FOUT, vOne, vSy, vC1, vSt, R_T0)
        A(f's_add_u32 {s(R_FOUT)}, {s(R_FOUT)}, {flags["fout_step"]}')
    A('s_barrier')
    A(f's_sub_u32 {s(R_CNT)}, {s(R_CNT)}, 1')
    A(f's_cmp_lg_u32 {s(R_CNT)}, 0')
    A(f's_cbranch_scc1 {top}')
    A(f's_branch {end_label}')


def rl8_role(A, KBN, srd_xin, srd_xout, do_ln, steps, end_label, flags, xin_sc1=True, xout_sc1=True):
    R_P, R_XI, R_XO, R_XN, R_CNT, R_FIN, R_FOUT, R_T0, R_SPIN, R_SEQ = 24, 25, 26, 27, 28, 29, 30, 31, 35, 36
    vLane = 2
    vP, vX, vN, vFl, vFv, vOne = 6, 7, 8, 11, 12, 13
    vSy, vC1, vSt = 14, 4, 5
    m, q, t, q2, d0, d1 = 16, 17, 18, 19, 20, 21
    XF, AC, UP, PK = 24, 40, 56, 64
    LD = 72
    sig = flags.get('signal', True)
    vLw, vLr = 9, 10
    A('v_and_b32 v3, 7, v0')
    A('v_lshrrev_b32 v4, 3, v0')
    A(f'v_lshlrev_b32 {v(vLr)}, 4, v3')
    A(f's_lshl_b32 {s(R_T0)}, {s(S_WAVE)}, 2')
    A(f'v_add_u32 {v(vLw)}, {s(R_T0)}, {v(vLr)}')
    A(f'v_lshlrev_b32 {v(vX)}, 10, v3')
    A(f'v_lshl_add_u32 {v(vX)}, v4, 4, {v(vX)}')
    A(f'v_lshlrev_b32 {v(vN)}, 9, v4')
    A(f'v_lshl_add_u32 {v(vN)}, v3, 4, {v(vN)}')
    A(f'v_lshrrev_b32 v5, 2, v3')
    A(f'v_lshlrev_b32 {v(vP)}, 12, v5')
    A(f'v_lshl_add_u32 {v(vP)}, v4, 6, {v(vP)}')
    A(f'v_and_b32 v5, 3, v3')
    A(f'v_lshl_add_u32 {v(vP)}, v5, 4, {v(vP)}')
    A(f'v_mov_b32 {v(vOne)}, 1')
    A('s_mov_b32 s40, 0xffff0000')
    A(f'v_min_u32 {v(vFl)}, {flags["n"] - 1}, {v(vLane)}')
    A(f'v_lshlrev_b32 {v(vFl)}, 2, {v(vFl)}')
    sync_setup(A, vSy, vC1)
    A(f's_mov_b32 {s(R_SEQ)}, 1')
    A('s_barrier')

    def unpack(dst, src, n):
        for j in range(n):
            A(f'v_lshlrev_b32 {v(dst + 2 * j)}, 16, {v(src + j)}')
            A(f'v_and_b32 {v(dst + 2 * j + 1)}, s40, {v(src + j)}')

    def pack(dst, src, n):
        for j in range(n):
            A(f'v_cvt_pk_bf16_f32 {v(dst + j)}, {v(src + 2 * j)}, {v(src + 2 * j + 1)}')

    nred = [0]

    def reduce(r):
        off = 128 * nred[0]
        nred[0] += 1
        A(f'v_add_f32_dpp {v(r)}, {v(r)}, {v(r)} row_ror:8 row_mask:0xf bank_mask:0xf')
        A(f'v_mov_b32 {v(t)}, {v(r)}')
        A(f'v_permlane16_swap_b32 {v(r)}, {v(t)}')
        A(f'v_add_f32 {v(r)}, {v(r)}, {v(t)}')
        A(f'v_mov_b32 {v(t)}, {v(r)}')
        A(f'v_permlane32_swap_b32 {v(r)}, {v(t)}')
        A(f'v_add_f32 {v(r)}, {v(r)}, {v(t)}')
        A(f'ds_write_b32 {v(vLw)}, {v(r)} offset:{off}')
        A('s_waitcnt lgkmcnt(0)')
        A('s_barrier')
        A(f'ds_read_b128 {v(UP, 4)}, {v(vLr)} offset:{off}')
        A('s_waitcnt lgkmcnt(0)')
        A(f'v_add_f32 {v(UP)}, {v(UP)}, {v(UP + 1)}')
        A(f'v_add_f32 {v(UP + 2)}, {v(UP + 2)}, {v(UP + 3)}')
        A(f'v_add_f32 {v(r)}, {v(UP)}, {v(UP + 2)}')

    def rb(r):
        A(f'v_cvt_pk_bf16_f32 {v(r)}, {v(r)}, {v(r)}')
        A(f'v_lshlrev_b32 {v(r)}, 16, {v(r)}')

    top = A.newlabel('rwtop')
    A.label(top)
    xs = ' sc1' if xin_sc1 else ''
    if not xin_sc1:
        for j in (0, 1):
            A(f'buffer_load_dwordx4 {v(LD + j * 4, 4)}, {v(vX)}, {srd(srd_xin)}, {s(R_XI)} offen offset:{j * 512}')
    emit_wait_ready(A, vFv, vFl, R_FIN, R_SEQ, R_SPIN, R_T0, vSy, end_label, sleep=TUNE.get('sl', 3))
    A(f's_mov_b32 {s(R_T0)}, {s(R_P)}')
    for kb in range(KBN):
        for j in (0, 1):
            A(f'buffer_load_dwordx4 {v(LD + 8 + kb * 8 + j * 4, 4)}, {v(vP)}, {srd(SRD_WS)}, {s(R_T0)} offen '
              f'offset:{j * 2048} sc1')
        if kb + 1 < KBN:
            A(f's_add_u32 {s(R_T0)}, {s(R_T0)}, {PSEG}')
    nx = 0
    if xin_sc1:
        nx = 2
        for j in (0, 1):
            A(f'buffer_load_dwordx4 {v(LD + j * 4, 4)}, {v(vX)}, {srd(srd_xin)}, {s(R_XI)} offen '
              f'offset:{j * 512}{xs}')
    adv(A, R_P, steps['p'], flags.get('win'))
    A(f's_add_u32 {s(R_XI)}, {s(R_XI)}, {steps["x"]}')
    A(f's_add_u32 {s(R_FIN)}, {s(R_FIN)}, {flags["fin_step"]}')
    A(f's_add_u32 {s(R_SEQ)}, {s(R_SEQ)}, 1')
    for kb in range(KBN):
        A(f's_waitcnt vmcnt({2 * (KBN - 1 - kb) + nx})')
        if kb == 0:
            unpack(AC, LD + 8, 8)
        else:
            for j in (0, 1):
                unpack(UP, LD + 8 + kb * 8 + j * 4, 4)
                for e in range(8):
                    A(f'v_add_f32 {v(AC + j * 8 + e)}, {v(AC + j * 8 + e)}, {v(UP + e)}')
    pack(PK, AC, 8)
    unpack(AC, PK, 8)
    A('s_waitcnt vmcnt(0)')
    unpack(XF, LD, 8)
    for e in range(16):
        A(f'v_add_f32 {v(XF + e)}, {v(XF + e)}, {v(AC + e)}')
    pack(PK, XF, 8)
    for j in (0, 1):
        A(f'buffer_store_dwordx4 {v(PK + j * 4, 4)}, {v(vX)}, {srd(srd_xout)}, {s(R_XO)} offen offset:{j * 512}'
          f'{" sc1" if xout_sc1 else ""}')
    if do_ln:
        unpack(XF, PK, 8)
        A(f'v_add_f32 {v(m)}, {v(XF)}, {v(XF + 1)}')
        A(f'v_add_f32 {v(q)}, {v(XF + 2)}, {v(XF + 3)}')
        for e in range(4, 16, 2):
            A(f'v_add_f32 {v(m)}, {v(m)}, {v(XF + e)}')
            A(f'v_add_f32 {v(q)}, {v(q)}, {v(XF + e + 1)}')
        A(f'v_add_f32 {v(m)}, {v(m)}, {v(q)}')
        reduce(m)
        A(f'v_mul_f32 {v(m)}, {f32bits(1.0 / 512):#x}, {v(m)}')
        for e in range(16):
            A(f'v_sub_f32 {v(AC + e)}, {v(XF + e)}, {v(m)}')
        A(f'v_mul_f32 {v(q)}, {v(AC)}, {v(AC)}')
        A(f'v_mul_f32 {v(q2)}, {v(AC + 1)}, {v(AC + 1)}')
        for e in range(2, 16, 2):
            A(f'v_fmac_f32 {v(q)}, {v(AC + e)}, {v(AC + e)}')
            A(f'v_fmac_f32 {v(q2)}, {v(AC + e + 1)}, {v(AC + e + 1)}')
        A(f'v_add_f32 {v(q)}, {v(q)}, {v(q2)}')
        rb(m)
        reduce(q)
        for e in range(16):
            A(f'v_sub_f32 {v(AC + e)}, {v(XF + e)}, {v(m)}')
        A(f'v_mul_f32 {v(q)}, {f32bits(1.0 / 512):#x}, {v(q)}')
        rb(q)
        A(f'v_add_f32 {v(q)}, {f32bits(1e-5):#x}, {v(q)}')
        rb(q)
        A(f'v_sqrt_f32 {v(q)}, {v(q)}')
        rb(q)
        A(f'v_rcp_f32 {v(q)}, {v(q)}')
        pack(LD, AC, 8)
        unpack(AC, LD, 8)
        for e in range(16):
            A(f'v_mul_f32 {v(AC + e)}, {v(AC + e)}, {v(q)}')
        pack(LD, AC, 8)
        A(f's_add_u32 {s(R_T0)}, {s(R_XN)}, 16384')
        A(f'buffer_store_dwordx4 {v(LD, 4)}, {v(vN)}, {srd(SRD_WS)}, {s(R_XN)} offen sc1')
        A(f'buffer_store_dwordx4 {v(LD + 4, 4)}, {v(vN)}, {srd(SRD_WS)}, {s(R_T0)} offen sc1')
    A(f's_add_u32 {s(R_XO)}, {s(R_XO)}, {steps["x"]}')
    A(f's_add_u32 {s(R_XN)}, {s(R_XN)}, {steps["xn"]}')
    if sig:
        A('s_waitcnt vmcnt(0)')
        emit_signal_agg(A, R_FOUT, vOne, vSy, vC1, vSt, R_T0)
        A(f's_add_u32 {s(R_FOUT)}, {s(R_FOUT)}, {flags["fout_step"]}')
    A('s_barrier')
    A(f's_sub_u32 {s(R_CNT)}, {s(R_CNT)}, 1')
    A(f's_cmp_lg_u32 {s(R_CNT)}, 0')
    A(f's_cbranch_scc1 {top}')
    A(f's_branch {end_label}')
```

```python
from asmdsl import Asm, v, a, s
from layout import *
from roles import *
from team import *

X_BYTES = 2048 * 512 * 2
WQKV_BYTES = 512 * 4096 * 2
WGU_BYTES = 512 * 1792 * 2
SRD_DBG = 92
S_SLOT, S_LAYER, S_IDX, S_X = 96, 97, 98, 99

N_PROJ = 48
GROUP = [('rl2', 8), ('dn', 8), ('gu', 14), ('rl', 8), ('ao', 32)]
PCFG = {
    0: [[(0, 4, 3), (12, 3, 4), (24, 2, 10)], [(1, 4, 3), (13, 3, 4), (25, 2, 10), (44, 1, 20)],
        [(2, 4, 3), (14, 3, 4)], [(3, 4, 3)]],
    1: [[(0, 3, 7), (21, 2, 10)], [(1, 3, 7), (22, 2, 10), (41, 1, 23)], [(2, 3, 7)], []],
    2: [[(0, 2, 6), (12, 2, 12)], [(13, 2, 12), (36, 1, 28)], [(1, 2, 6)], []],
    4: [[(0, 3, 9), (27, 2, 6)], [(1, 3, 9), (28, 2, 6), (39, 1, 25)], [(2, 3, 9)], []],
    5: [[(0, 3, 9), (27, 2, 7)], [(1, 3, 9), (28, 2, 7), (41, 1, 23)], [(2, 3, 9)], []],
    3: [[(0, 1, 4), (4, 3, 5), (19, 2, 9)], [(5, 3, 5), (20, 2, 9), (37, 1, 27)], [(6, 3, 5)], []],
}
for PASSES in PCFG.values():
    assert sorted(st + sd * i for p in PASSES for st, sd, c in p for i in range(c)) == list(range(64))
GN = sum(n for _, n in GROUP)


N_INIT = 64


def read_counts(A, vdst, fail, vt=3):
    A(f'v_and_b32 {v(vt)}, 7, v2')
    A(f'v_lshlrev_b32 {v(vt)}, 2, {v(vt)}')
    A(f'v_cmp_ne_u32 vcc, 0, {v(vt)}')
    A(f'v_add_u32 {v(vdst)}, 128, {v(vt)}')
    A(f'v_cndmask_b32 {v(vt)}, 0, {v(vdst)}, vcc')
    A(f'buffer_load_dword {v(vdst)}, {v(vt)}, {srd(SRD_DBG)}, 0 offen sc1')
    A('s_waitcnt vmcnt(0)')
    for i in range(8):
        A(f'v_readlane_b32 s{80 + i}, {v(vdst)}, {i}')
    A('s_add_u32 s88, s80, s81')
    for i in range(2, 8):
        A(f's_add_u32 s88, s88, s{80 + i}')


def wait_init(A, fail, vt=3, vd=4):
    lp = A.newlabel('wi')
    dn = A.newlabel('wid')
    A(f'v_and_b32 {v(vt)}, 1, v2')
    A(f'v_lshlrev_b32 {v(vt)}, 7, {v(vt)}')
    A('s_mov_b32 s89, 0')
    A.label(lp)
    A(f'buffer_load_dword {v(vd)}, {v(vt)}, {srd(SRD_DBG)}, 0 offen offset:64 sc1')
    A('s_waitcnt vmcnt(0)')
    A(f'v_readlane_b32 s80, {v(vd)}, 0')
    A(f'v_readlane_b32 s81, {v(vd)}, 1')
    A('s_add_u32 s80, s80, s81')
    A(f's_cmp_ge_u32 s80, {N_INIT}')
    A(f's_cbranch_scc1 {dn}')
    A('s_sleep 8')
    A('s_add_u32 s89, s89, 1')
    A(f's_cmp_lt_u32 s89, {SPIN_LIMIT}')
    A(f's_cbranch_scc1 {lp}')
    A(f's_branch {fail}')
    A.label(dn)


def xcd_pure(A, end, sdst, vd, vt, force=False):
    lp = A.newlabel('pur')
    dn = A.newlabel('purd')
    A('s_mov_b32 s90, 0')
    A.label(lp)
    A('s_add_u32 s90, s90, 1')
    A(f's_cmp_gt_u32 s90, {SPIN_LIMIT}')
    A(f's_cbranch_scc1 {end}')
    read_counts(A, vd, end, vt)
    A(f's_lshr_b32 s89, {s(S_SLOT)}, 5')
    A(f'v_readlane_b32 s89, {v(vd)}, s89')
    A(f's_mov_b32 {s(sdst)}, {0 if force else 1}')
    A('s_cmp_ge_u32 s89, 32')
    A(f's_cbranch_scc1 {dn}')
    A(f's_mov_b32 {s(sdst)}, 0')
    A('s_cmp_lt_u32 s88, 256')
    A(f's_cbranch_scc1 {lp}')
    A.label(dn)


def init_work(A, end):
    A(f's_mov_b32 s42, {s(S_IDX)}')
    pstamp(A, 0, 120)

    def fills():
        A('v_lshlrev_b32 v100, 4, v0')
        for i in range(4):
            A(f'v_mov_b32 v{104 + i}, 0')
            A(f'v_mov_b32 v{108 + i}, -1')
        A('s_mov_b32 s43, s42')
        for u in range(256 // N_INIT):
            A('s_lshl_b32 s50, s43, 12')
            A(f'buffer_store_dwordx4 v[104:107], v100, {srd(SRD_WS)}, s50 offen sc1')
            A(f's_add_u32 s51, s50, {TM}')
            A('s_cmp_lt_u32 s43, 16')
            A(f's_cselect_b32 s51, s51, {OOB}')
            A(f'buffer_store_dwordx4 v[108:111], v100, {srd(SRD_WS)}, s51 offen sc1')
            A('s_lshl_b32 s50, s43, 13')
            A(f's_add_u32 s50, s50, {TP}')
            A(f'buffer_store_dwordx4 v[108:111], v100, {srd(SRD_WS)}, s50 offen sc1')
            A('s_add_u32 s50, s50, 4096')
            A(f'buffer_store_dwordx4 v[108:111], v100, {srd(SRD_WS)}, s50 offen sc1')
            A(f's_add_u32 s43, s43, {N_INIT}')
        return 4 * (256 // N_INIT)

    ptr_srd(A, SRD_A, KA_X, X_BYTES)
    A('s_lshl_b32 s24, s42, 2')
    A('s_add_u32 s24, s24, s3')
    A('s_lshl_b32 s25, s24, 12')
    A('s_lshr_b32 s27, s24, 3')
    A('s_lshl_b32 s27, s27, 15')
    A('s_and_b32 s31, s24, 7')
    A('s_lshl_b32 s31, s31, 6')
    A('s_add_u32 s27, s27, s31')
    A(f's_add_u32 s27, s27, {XN}')
    ln_wave(A, SRD_A, 25, 27, 2, 256 * 4096, 32 * 32768, between=fills)
    pstamp(A, 1, 120)
    A('s_waitcnt vmcnt(0)')
    pstamp(A, 2, 120)
    A('s_barrier')
    sk = A.newlabel('iws')
    A(f's_cmp_lg_u32 {s(S_WAVE)}, 0')
    A(f's_cbranch_scc1 {sk}')
    A(f's_and_b32 s40, {s(S_SLOT)}, 1')
    A('s_lshl_b32 s40, s40, 7')
    A('v_mov_b32 v4, 1')
    A('s_mov_b64 exec, 1')
    A(f'buffer_atomic_add v4, off, {srd(SRD_DBG)}, s40 offset:64 sc1')
    A('s_mov_b64 exec, -1')
    A.label(sk)


def assign_slot(A, end, fake_xcc=None):
    A(f's_getreg_b32 {s(S_X)}, hwreg(HW_REG_XCC_ID)')
    A(f's_and_b32 {s(S_X)}, {s(S_X)}, 7')
    if fake_xcc:
        A(fake_xcc)
    have = A.newlabel('tick')
    A(f's_cmp_lg_u32 {s(S_WAVE)}, 0')
    A(f's_cbranch_scc1 {have}')
    A(f's_lshl_b32 s40, {s(S_X)}, 2')
    A('s_add_u32 s40, s40, 128')
    A(f's_cmp_eq_u32 {s(S_X)}, 0')
    A('s_cselect_b32 s40, 0, s40')
    A('v_mov_b32 v4, 1')
    A('v_mov_b32 v5, 0')
    A('s_mov_b64 exec, 1')
    A(f'buffer_atomic_add v4, off, {srd(SRD_DBG)}, s40 sc0 sc1')
    A('s_waitcnt vmcnt(0)')
    A('ds_write_b32 v5, v4')
    A('s_mov_b64 exec, -1')
    A('s_waitcnt lgkmcnt(0)')
    A.label(have)
    A('s_barrier')
    A('v_mov_b32 v5, 0')
    A('ds_read_b32 v4, v5')
    A('s_waitcnt lgkmcnt(0)')
    A('v_readfirstlane_b32 s41, v4')
    A('s_barrier')
    A(f's_lshl_b32 {s(S_SLOT)}, {s(S_X)}, 5')
    A(f's_add_u32 {s(S_SLOT)}, {s(S_SLOT)}, s41')
    ok = A.newlabel('slotok')
    A('s_cmp_lt_u32 s41, 32')
    A(f's_cbranch_scc1 {ok}')
    lp = A.newlabel('surp')
    A('s_mov_b32 s42, 0')
    A.label(lp)
    A('s_add_u32 s42, s42, 1')
    A(f's_cmp_gt_u32 s42, {SPIN_LIMIT}')
    A(f's_cbranch_scc1 {end}')
    read_counts(A, 4, end)
    A('s_cmp_lt_u32 s88, 256')
    A(f's_cbranch_scc1 {lp}')
    A('s_sub_u32 s43, s41, 32')
    for i in range(8):
        A(f's_max_u32 s89, s{80 + i}, 32')
        A('s_sub_u32 s89, s89, 32')
        A(f's_cmp_gt_u32 {s(S_X)}, {i}')
        A('s_cselect_b32 s89, s89, 0')
        A('s_add_u32 s43, s43, s89')
    for i in range(8):
        nx = A.newlabel('hole')
        A(f's_min_u32 s89, s{80 + i}, 32')
        A('s_sub_u32 s90, 32, s89')
        A('s_cmp_lt_u32 s43, s90')
        A(f's_cbranch_scc0 {nx}')
        A(f's_add_u32 {s(S_SLOT)}, s89, s43')
        A(f's_add_u32 {s(S_SLOT)}, {s(S_SLOT)}, {i * 32}')
        A(f's_branch {ok}')
        A.label(nx)
        A('s_sub_u32 s43, s43, s90')
    A(f's_branch {end}')
    A.label(ok)


def ptr_srd(A, sreg, ka, nbytes):
    A(f's_load_dwordx2 {s(sreg, 2)}, s[0:1], {ka}')
    A('s_waitcnt lgkmcnt(0)')
    A(f's_mov_b32 {s(sreg + 2)}, {nbytes}')
    A(f's_mov_b32 {s(sreg + 3)}, 0x00020000')


def proj_params(A, layer, seg0, nseg, is_v):
    A(f's_mov_b32 {s(G_IN)}, {XN + layer * 4 * MB + seg0 * 32768}')
    A('s_lshl_b32 s27, s42, 14')
    if is_v:
        A('s_lshr_b32 s40, s3, 1')
        A('s_lshl_b32 s40, s40, 13')
        A('s_add_u32 s27, s27, s40')
        A('s_and_b32 s40, s3, 1')
        A('s_lshl_b32 s40, s40, 10')
        A('s_add_u32 s27, s27, s40')
        A(f's_add_u32 s27, s27, {VT + layer * 16 * MB + seg0 * 262144}')
    else:
        A('s_lshl_b32 s40, s3, 12')
        A('s_add_u32 s27, s27, s40')
        A('s_lshl_b32 s40, s43, 25')
        A('s_add_u32 s27, s27, s40')
        A(f's_add_u32 s27, s27, {QB + layer * 16 * MB + seg0 * 262144}')
    assert KB - QB == 1 << 25
    A(f's_mov_b32 {s(G_CNT)}, {nseg}')
    A(f's_mov_b32 {s(G_FIN)}, {flag_base(ST_RL2, 0) + seg0 * 1024}')
    A(f's_lshl_b32 {s(G_FOUT)}, s43, 6')
    A('s_lshl_b32 s40, s42, 2')
    A(f's_add_u32 {s(G_FOUT)}, {s(G_FOUT)}, s40')
    A(f's_add_u32 {s(G_FOUT)}, {s(G_FOUT)}, {flag_base(ST_PROJ, layer) + seg0 * 1024}')


def ring(A, lim, sreg, span):
    A(f's_add_u32 {s(lim)}, {s(sreg)}, {span * RING}')
    return (lim, span * RING)


def build_mega(K, force_slow=False, fake_xcc=None, tune=None, stamp=False):
    A = K.A
    end = K.end
    A('s_cmp_ge_u32 s2, 256')
    A(f's_cbranch_scc1 {end}')
    load_srds(A, [(SRD_WS, KA_WS, WS_BYTES), (SRD_DBG, KA_DBG, 256)])
    wave_setup(A)
    dstamp(A, 1, 4, (2, 0))
    if PROFILE[0]:
        A('s_lshl_b32 s40, s2, 2')
        A(f's_add_u32 s40, s40, {TCTL + 131072}')
        emit_signal(A, 40, 4)
    assign_slot(A, end, fake_xcc)
    if PROFILE[0]:
        A('s_lshl_b32 s40, s2, 2')
        A(f's_add_u32 s40, s40, {TCTL + 131072 + 1024}')
        emit_signal(A, 40, 4)
    L = {n: A.newlabel('r_' + n) for n in ('team', 'proj', 'init', 'group', 'ao', 'gu', 'dn', 'rl', 'rl2')}
    A(f's_cmp_lt_u32 {s(S_SLOT)}, 32')
    A(f's_cbranch_scc1 {L["team"]}')
    A('s_mov_b32 s44, 2')
    A(f's_sub_u32 s45, {s(S_SLOT)}, 32')
    A(f's_cmp_lt_u32 {s(S_SLOT)}, 64')
    A(f's_cbranch_scc1 {L["proj"]}')
    A(f's_and_b32 s40, {s(S_SLOT)}, 31')
    A(f's_lshr_b32 s41, {s(S_SLOT)}, 5')
    hi4 = A.newlabel('mx4')
    mdone = A.newlabel('mxd')
    A('s_cmp_ge_u32 s41, 4')
    A(f's_cbranch_scc1 {hi4}')
    A('s_sub_u32 s41, s41, 2')
    A(f's_mul_i32 s42, s41, {GN}')
    A(f's_add_u32 s42, s42, {N_PROJ}')
    A('s_lshl_b32 s43, s41, 1')
    A(f's_add_u32 s43, s43, {N_PROJ + 2 * GN - 30}')
    A('s_cmp_lt_u32 s40, 30')
    A('s_cselect_b32 s42, s42, s43')
    A(f's_add_u32 {s(S_IDX)}, s42, s40')
    A(f's_branch {mdone}')
    A.label(hi4)
    A('s_sub_u32 s41, s41, 4')
    A('s_lshr_b32 s42, s41, 1')
    A(f's_mul_i32 s42, s42, {GN}')
    A(f's_add_u32 s42, s42, {N_PROJ}')
    A('s_and_b32 s43, s41, 1')
    A('s_lshl_b32 s47, s43, 4')
    A('s_add_u32 s47, s47, s42')
    A('s_add_u32 s47, s47, 38')
    A('s_lshl_b32 s48, s43, 2')
    A('s_add_u32 s48, s48, s42')
    A('s_add_u32 s48, s48, 14')
    A('s_mul_i32 s49, s41, 12')
    A('s_sub_u32 s49, s49, 20')
    A('s_cmp_lt_u32 s40, 20')
    A('s_cselect_b32 s49, s48, s49')
    A('s_cmp_lt_u32 s40, 16')
    A('s_cselect_b32 s49, s47, s49')
    A(f's_add_u32 {s(S_IDX)}, s49, s40')
    A.label(mdone)
    A(f's_mov_b32 s44, 0')
    A(f's_mov_b32 s45, {s(S_IDX)}')
    A(f's_cmp_lt_u32 {s(S_IDX)}, {N_PROJ}')
    A(f's_cbranch_scc1 {L["proj"]}')
    A(f's_sub_u32 {s(S_IDX)}, {s(S_IDX)}, {N_PROJ}')
    A(f's_mov_b32 {s(S_LAYER)}, 0')
    A(f's_cmp_lt_u32 {s(S_IDX)}, {N_INIT}')
    A(f's_cbranch_scc1 {L["init"]}')
    A(f's_cmp_lt_u32 {s(S_IDX)}, {GN}')
    A(f's_cbranch_scc1 {L["group"]}')
    A(f's_sub_u32 {s(S_IDX)}, {s(S_IDX)}, {GN}')
    A(f's_mov_b32 {s(S_LAYER)}, 1')
    A('s_mov_b32 s44, 3')
    A(f's_sub_u32 s45, {s(S_IDX)}, {N_PROJ + 16 - 38}')
    A(f's_cmp_ge_u32 {s(S_IDX)}, {N_PROJ + 16}')
    A(f's_cbranch_scc1 {L["proj"]}')
    A(f's_mov_b32 s44, 1')
    A(f's_mov_b32 s45, {s(S_IDX)}')
    A(f's_cmp_lt_u32 {s(S_IDX)}, {N_PROJ}')
    A(f's_cbranch_scc1 {L["proj"]}')
    A('s_mov_b32 s44, 2')
    A(f's_sub_u32 s45, {s(S_IDX)}, 16')

    A.label(L['proj'])
    if not PCFG[TUNE.get('pcfg', 1)][3]:
        A('s_cmp_eq_u32 s44, 3')
        A(f's_cbranch_scc1 {L["group"]}')
    if TUNE.get('delay'):
        nd = A.newlabel('nodelay')
        A(f's_lshr_b32 s40, {TUNE["delay"]}, s44')
        A('s_and_b32 s40, s40, 1')
        A(f's_cbranch_scc0 {nd}')
        wait_init(A, end)
        A.label(nd)
    A('s_lshr_b32 s43, s45, 4')
    A('s_and_b32 s42, s45, 15')
    A('s_lshl_b32 s40, s43, 3')
    A(f's_add_u32 s40, s40, {KA_WQ}')
    A(f's_load_dwordx2 {s(SRD_A, 2)}, s[0:1], s40')
    A('s_waitcnt lgkmcnt(0)')
    A(f's_mov_b32 {s(SRD_A + 2)}, {WQKV_BYTES}')
    A(f's_mov_b32 {s(SRD_A + 3)}, 0x00020000')
    A('s_lshl_b32 s24, s42, 9')
    A('s_lshl_b32 s40, s3, 7')
    A('s_add_u32 s24, s24, s40')
    A('s_add_u32 s25, s24, 64')
    lv = A.newlabel('pv')
    A('s_cmp_eq_u32 s43, 2')
    A(f's_cbranch_scc1 {lv}')
    for is_v in (False, True):
        mode = 'v' if is_v else 'qk'
        if is_v:
            A.label(lv)
        pstamp(A, 5, 3)
        A('s_waitcnt vmcnt(0)')
        gemm_setup(A, 32, mode, 8192, SRD_A, SRD_A)
        pstamp(A, 6, 3)
        wait_init(A, end)
        pstamp(A, 7, 3)
        A('s_lshl_b32 s41, s44, 3')
        again = A.newlabel('pagain')
        l2 = A.newlabel('pl2')
        fin = A.newlabel('pfin')
        go = A.newlabel('pgo')
        A.label(again)
        for si, ps in enumerate(PCFG[TUNE.get('pcfg', 1)]):
            for pi, (st, sd, cnt) in enumerate(ps):
                A(f's_mov_b32 s50, {st | (sd << 8) | (cnt << 16)}')
                A(f's_cmp_eq_u32 s41, {si * 8 + pi}')
                A(f's_cbranch_scc1 {go}')
        A(f's_branch {fin}')
        A.label(go)
        proj_params(A, 0, 0, 1, is_v)
        A('s_and_b32 s51, s50, 255')
        A('s_lshl_b32 s40, s51, 15')
        A(f's_add_u32 {s(G_IN)}, {s(G_IN)}, s40')
        A('s_lshl_b32 s40, s51, 18')
        A(f's_add_u32 {s(G_OUT)}, {s(G_OUT)}, s40')
        A('s_lshl_b32 s40, s51, 10')
        A(f's_add_u32 {s(G_FOUT)}, {s(G_FOUT)}, s40')
        A('s_bfe_u32 s51, s50, 0x80008')
        A('s_lshl_b32 s47, s51, 15')
        A('s_lshl_b32 s48, s51, 18')
        A('s_lshl_b32 s49, s51, 10')
        A(f's_lshr_b32 {s(G_CNT)}, s50, 16')
        gemm_loop(A, 32, mode, 's47', 's48', end, flags=dict(n=1, fout_step='s49', poll_in=False))
        A('s_barrier')
        A('s_add_u32 s41, s41, 1')
        A(f's_branch {again}')
        A.label(fin)
        A('s_cmp_eq_u32 s44, 0')
        A(f's_cbranch_scc1 {l2}')
        A(f's_cmp_lt_u32 {s(S_SLOT)}, 64')
        A(f's_cbranch_scc1 {L["team"]}')
        A(f's_branch {L["group"]}')
        A.label(l2)
        proj_params(A, 1, 0, 64, is_v)
        gemm_loop(A, 32, mode, 32768, 262144, end,
                  flags=dict(n=4, fin_step=1024, fout_step=1024, poll_in=True))
        A(f's_branch {end}')

    A.label(L['init'])
    init_work(A, end)
    A('s_mov_b32 s44, 3')
    A(f's_mov_b32 s45, {s(S_IDX)}')
    A(f's_cmp_lt_u32 {s(S_IDX)}, 38')
    A(f's_cbranch_scc1 {L["proj"]}')
    A.label(L['group'])
    wait_init(A, end)
    xcd_pure(A, end, 91, 4, 3, force=force_slow or TUNE.get('noloc'))
    A(f's_lshl_b32 s46, {s(S_LAYER)}, 16')
    for name, n in GROUP:
        A(f's_cmp_lt_u32 {s(S_IDX)}, {n}')
        A(f's_cbranch_scc1 {L[name]}')
        A(f's_sub_u32 {s(S_IDX)}, {s(S_IDX)}, {n}')
    A(f's_branch {end}')

    def own_flag(stage):
        A(f's_lshl_b32 {s(G_FOUT)}, {s(S_IDX)}, 2')
        A(f's_add_u32 {s(G_FOUT)}, {s(G_FOUT)}, s46')
        A(f's_add_u32 {s(G_FOUT)}, {s(G_FOUT)}, {flag_base(stage, 0)}')

    def part_out(base, lsh):
        A('s_lshl_b32 s27, s42, 15')
        A(f's_lshl_b32 s40, {s(S_LAYER)}, {lsh}')
        A('s_add_u32 s27, s27, s40')
        A('s_lshl_b32 s40, s41, 11')
        A('s_add_u32 s27, s27, s40')
        A('s_lshl_b32 s40, s3, 9')
        A('s_add_u32 s27, s27, s40')
        A(f's_add_u32 s27, s27, {base}')

    A.label(L['ao'])
    ptr_srd(A, SRD_A, KA_WO, WQKV_BYTES)
    A(f's_and_b32 s41, {s(S_IDX)}, 1')
    A(f's_bfe_u32 s42, {s(S_IDX)}, 0x30001')
    A(f's_lshr_b32 s43, {s(S_IDX)}, 4')
    A('s_lshl_b32 s24, s42, 19')
    A('s_lshl_b32 s40, s41, 9')
    A('s_add_u32 s24, s24, s40')
    A('s_lshl_b32 s40, s3, 7')
    A('s_add_u32 s24, s24, s40')
    A('s_add_u32 s25, s24, 64')
    part_out(PO, 24)
    A(f's_mul_i32 s40, s43, {8 * PSEG}')
    A('s_add_u32 s27, s27, s40')
    A('s_mov_b32 s28, 32')
    A('s_lshl_b32 s47, s42, 2')
    A('s_add_u32 s47, s47, s3')
    A('s_lshl_b32 s48, s43, 5')
    A('s_add_u32 s48, s48, s47')
    A('s_lshl_b32 s40, s48, 13')
    A(f's_lshl_b32 s49, {s(S_LAYER)}, 24')
    A('s_add_u32 s40, s40, s49')
    A(f's_add_u32 s50, s40, {QB}')
    A(f's_add_u32 s51, s40, {KB}')
    A(f's_add_u32 s52, s40, {VT}')
    A('s_lshl_b32 s40, s48, 11')
    A(f's_lshl_b32 s49, {s(S_LAYER)}, 22')
    A('s_add_u32 s40, s40, s49')
    A(f's_add_u32 s53, s40, {KM}')
    A(f's_add_u32 s54, s40, {VM}')
    A('s_lshl_b32 s49, s43, 10')
    A('s_add_u32 s49, s49, s46')
    A('s_lshl_b32 s40, s47, 4')
    A('s_add_u32 s29, s49, s40')
    A(f's_add_u32 s29, s29, {flag_base(ST_TEAM, 0)}')
    A('s_lshr_b32 s40, s47, 1')
    A('s_lshl_b32 s40, s40, 2')
    A('s_add_u32 s55, s49, s40')
    A(f's_add_u32 s55, s55, {flag_base(ST_PROJ, 0)}')
    A(f's_and_b32 s40, {s(S_IDX)}, 15')
    A('s_lshl_b32 s40, s40, 2')
    A('s_add_u32 s30, s49, s40')
    A(f's_add_u32 s30, s30, {flag_base(ST_OUT, 0)}')
    A(f's_add_u32 s64, s49, {flag_base(ST_RL, 0) - RING * 1024}')
    A('s_sub_u32 s64, s64, s29')
    ao_role(A, 2, end, s_pure=91, wout=ring(A, 62, 27, 8 * PSEG), bp=(64, 4))

    A.label(L['gu'])
    ptr_srd(A, SRD_A, KA_WG, WGU_BYTES)
    ptr_srd(A, SRD_B, KA_WU, WGU_BYTES)
    A(f's_lshl_b32 s24, {s(S_IDX)}, 8')
    A('s_lshl_b32 s40, s3, 6')
    A('s_add_u32 s24, s24, s40')
    A('s_mov_b32 s25, s24')
    A(f's_lshl_b32 s26, {s(S_LAYER)}, 22')
    A(f's_add_u32 s26, s26, {XN + 2 * MB}')
    A(f's_lshl_b32 s27, {s(S_IDX)}, 13')
    A('s_lshl_b32 s40, s3, 11')
    A('s_add_u32 s27, s27, s40')
    A(f's_add_u32 s27, s27, {HB}')
    A(f's_lshl_b32 s40, {s(S_LAYER)}, 23')
    A('s_add_u32 s27, s27, s40')
    A('s_mov_b32 s28, 64')
    A(f's_add_u32 {s(G_FIN)}, s46, {flag_base(ST_RL, 0)}')
    own_flag(ST_GU)
    A(f's_mov_b32 s54, {flag_base(ST_DN, 0) - flag_base(ST_RL, 0) - RING * 1024}')
    gemm_role(A, 32, 'gu', 3584, SRD_A, SRD_B, 32768, 224 * 512, end,
              flags=dict(n=4, fin_step=1024, fout_step=1024, poll_in=True, wout=ring(A, 52, 27, 224 * 512),
                         bp=(54, 8)),
              s_pure=91)

    A.label(L['dn'])
    ptr_srd(A, SRD_A, KA_WD, WGU_BYTES)
    A(f's_and_b32 s41, {s(S_IDX)}, 1')
    A(f's_lshr_b32 s42, {s(S_IDX)}, 1')
    A(f's_mul_i32 s24, s42, {448 * 1024}')
    A('s_lshl_b32 s40, s41, 9')
    A('s_add_u32 s24, s24, s40')
    A('s_lshl_b32 s40, s3, 7')
    A('s_add_u32 s24, s24, s40')
    A('s_add_u32 s25, s24, 64')
    A(f's_mul_i32 s26, s42, {28 * 1024}')
    A(f's_add_u32 s26, s26, {HB}')
    A(f's_lshl_b32 s40, {s(S_LAYER)}, 23')
    A('s_add_u32 s26, s26, s40')
    part_out(PD, 23)
    A('s_mov_b32 s28, 64')
    A(f's_mul_i32 {s(G_FIN)}, s42, 7')
    A(f's_lshr_b32 {s(G_FIN)}, {s(G_FIN)}, 1')
    A(f's_lshl_b32 {s(G_FIN)}, {s(G_FIN)}, 2')
    A(f's_add_u32 {s(G_FIN)}, {s(G_FIN)}, s46')
    A(f's_add_u32 {s(G_FIN)}, {s(G_FIN)}, {flag_base(ST_GU, 0)}')
    own_flag(ST_DN)
    A(f's_add_u32 s54, s46, {flag_base(ST_RL2, 0) - RING * 1024}')
    A(f's_sub_u32 s54, s54, {s(G_FIN)}')
    gemm_role(A, 28, 'part', 1024, SRD_A, SRD_A, 224 * 512, 4 * PSEG, end,
              flags=dict(n=4, fin_step=1024, fout_step=1024, poll_in=True, win=ring(A, 52, 26, 224 * 512),
                         wout=ring(A, 53, 27, 4 * PSEG), bp=(54, 4)), s_pure=91)

    for name, pbase, kbn, st_in, nfl, st_out in (('rl', PO, 8, ST_OUT, 16, ST_RL), ('rl2', PD, 4, ST_DN, 8, ST_RL2)):
        A.label(L[name])
        l1 = A.newlabel('rl_l1')
        A(f's_lshl_b32 s25, {s(S_IDX)}, 13')
        A('s_mov_b32 s26, s25')
        A(f's_lshr_b32 s41, {s(S_IDX)}, 2')
        A(f's_and_b32 s42, {s(S_IDX)}, 3')
        A(f's_mul_i32 s24, s41, {kbn * PSEG}')
        A('s_lshl_b32 s40, s42, 13')
        A('s_add_u32 s24, s24, s40')
        A(f's_add_u32 s24, s24, {pbase}')
        A(f's_lshl_b32 s40, {s(S_LAYER)}, {24 if kbn == 8 else 23}')
        A('s_add_u32 s24, s24, s40')
        A('s_lshl_b32 s27, s41, 15')
        A('s_lshl_b32 s40, s42, 7')
        A('s_add_u32 s27, s27, s40')
        A('s_mov_b32 s28, 32')
        A('s_lshl_b32 s41, s41, 10')
        A('s_add_u32 s41, s41, s46')
        A(f's_add_u32 s29, s41, {flag_base(st_in, 0)}')
        A('s_lshl_b32 s40, s42, 2')
        A('s_add_u32 s30, s41, s40')
        A(f's_add_u32 s30, s30, {flag_base(st_out, 0)}')
        A(f's_cmp_eq_u32 {s(S_LAYER)}, 1')
        A(f's_cbranch_scc1 {l1}')
        for layer in (0, 1):
            which = layer * 2 + (0 if name == 'rl' else 1)
            if layer == 1:
                A.label(l1)
            if which == 0:
                ptr_srd(A, SRD_A, KA_X, X_BYTES)
            if which == 3:
                ptr_srd(A, SRD_B, KA_OUT, X_BYTES)
            if which > 0:
                A(f's_add_u32 s25, s25, {XR + (which - 1) * 2 * MB}')
            if which < 3:
                A(f's_add_u32 s26, s26, {XR + which * 2 * MB}')
            A(f's_add_u32 s27, s27, {XN + ((which + 1) & 3) * 2 * MB}')
            (rl_role, rlw_role, rl8_role)[TUNE.get('rlw', 2)](A, kbn, SRD_A if which == 0 else SRD_WS, SRD_B if which == 3 else SRD_WS, which < 3,
                    dict(p=2 * kbn * PSEG, x=65536, xn=65536), end,
                    flags=dict(n=nfl, fin_step=2048, fout_step=2048, poll_in=True, signal=True, pair=True,
                               win=ring(A, 52, 24, kbn * PSEG)),
                    xin_sc1=which > 0, xout_sc1=which < 3)

    A.label(L['team'])
    load_srds(A, [(SRD_A, KA_WQ, WQKV_BYTES), (SRD_B, KA_WK, WQKV_BYTES),
                  (SRD_C, KA_WV, WQKV_BYTES), (SRD_D, KA_WO, WQKV_BYTES), (SRD_M0, KA_MEM0, 8192)])
    A(f's_lshr_b32 {s(S_LAYER)}, {s(S_SLOT)}, 5')
    A(f's_and_b32 {s(M_ME)}, {s(S_SLOT)}, 31')
    A(f's_lshl_b32 s40, {s(M_ME)}, 13')
    A(f's_lshl_b32 s41, {s(S_LAYER)}, 24')
    A('s_add_u32 s40, s40, s41')
    A(f's_add_u32 {s(M_K)}, s40, {KB}')
    A(f's_add_u32 {s(M_V)}, s40, {VT}')
    A(f's_lshl_b32 s40, {s(M_ME)}, 11')
    A(f's_lshl_b32 s41, {s(S_LAYER)}, 22')
    A('s_add_u32 s40, s40, s41')
    A(f's_add_u32 {s(M_KM)}, s40, {KM}')
    A(f's_add_u32 {s(M_VM)}, s40, {VM}')
    A(f's_lshl_b32 s40, {s(S_LAYER)}, 20')
    A(f's_add_u32 {s(M_TP)}, s40, {TP}')
    A(f's_lshl_b32 s40, {s(S_LAYER)}, 15')
    A(f's_add_u32 {s(M_TM)}, s40, {TM}')
    A(f's_lshl_b32 s41, {s(S_LAYER)}, 16')
    A(f's_lshr_b32 s40, {s(M_ME)}, 1')
    A('s_lshl_b32 s40, s40, 2')
    A('s_add_u32 s40, s40, s41')
    A(f's_add_u32 {s(M_FPR)}, s40, {flag_base(ST_PROJ, 0) + 64}')
    A(f's_lshl_b32 s40, {s(M_ME)}, 4')
    A('s_add_u32 s40, s40, s41')
    A(f's_add_u32 {s(M_FOUT)}, s40, {flag_base(ST_TEAM, 0)}')

    def purity(A):
        xcd_pure(A, end, M_FAST, 20, 21)
        wait_init(A, end, 20, 21)
        if TUNE.get('warm', 1):
            A('v_lshlrev_b32 v20, 7, v2')
            A(f's_lshl_b32 s40, {s(M_ME)}, 13')
            A(f's_lshl_b32 s41, {s(S_WAVE)}, 18')
            A('s_add_u32 s40, s40, s41')
            A(f's_add_u32 s40, s40, {s(M_TP)}')
            A(f'buffer_load_dword v21, v20, {srd(SRD_WS)}, s40 offen sc1')
            A(f's_lshl_b32 s41, {s(S_WAVE)}, 13')
            A(f's_add_u32 s40, s41, {s(M_TM)}')
            A(f'buffer_load_dword v41, v20, {srd(SRD_WS)}, s40 offen sc1')
            A('s_waitcnt vmcnt(0)')

    team_role(A, end, flags=dict(poll_in=True, signal=True), force_slow=force_slow, purity=purity, tune=tune,
              stamp=stamp)
```

```python
import struct
from asmdsl import v, a, s
from layout import *

S_WG, S_WAVE = 2, 3
SRD_WS, SRD_A, SRD_B, SRD_C, SRD_D = 4, 8, 12, 16, 20
SPIN_LIMIT = 1 << 17


def f32bits(x):
    return struct.unpack('<I', struct.pack('<f', x))[0]


def srd(i):
    return s(i, 4)


def load_srds(A, items):
    for sreg, off, nb in items:
        A(f's_load_dwordx2 {s(sreg, 2)}, s[0:1], {off}')
    A('s_waitcnt lgkmcnt(0)')
    for sreg, off, nb in items:
        A(f's_mov_b32 {s(sreg + 2)}, {nb}')
        A(f's_mov_b32 {s(sreg + 3)}, 0x00020000')


def wave_setup(A):
    A('v_lshrrev_b32 v3, 6, v0')
    A('v_and_b32 v2, 63, v0')
    A(f'v_readfirstlane_b32 {s(S_WAVE)}, v3')
    A('v_lshlrev_b32 v1, 4, v2')


PROFILE = [False]
LIGHT = [True]
GSTAMP = [0]
TUNE = {}


LOCAL = [False]


def emit_signal(A, sflag, vone):
    if PROFILE[0] == 1 or (PROFILE[0] == 2 and LIGHT[0]):
        A('s_memrealtime s[100:101]')
        A('s_waitcnt lgkmcnt(0)')
        A('s_or_b32 s100, s100, 1')
        A(f'v_mov_b32 {v(vone)}, s100')
    A('s_mov_b64 exec, 1')
    A(f'buffer_store_dword {v(vone)}, off, {srd(SRD_WS)}, {s(sflag)}{"" if LOCAL[0] else " sc1"}')
    A('s_mov_b64 exec, -1')


def adv(A, sreg, step, wrap=None):
    A(f's_add_u32 {s(sreg)}, {s(sreg)}, {step}')
    if wrap:
        lim, span = wrap
        A(f's_cmp_ge_u32 {s(sreg)}, {s(lim)}')
        A(f's_cselect_b32 s78, {span}, 0')
        A(f's_sub_u32 {s(sreg)}, {s(sreg)}, s78')


def bp_setup(A, vfull, vbase, n, bp, vt):
    sdelta, cnt = bp
    A(f'v_subrev_u32 {v(vt)}, {n}, v2')
    A(f'v_cmp_gt_u32 vcc, {cnt}, {v(vt)}')
    A(f'v_lshlrev_b32 {v(vt)}, 2, {v(vt)}')
    A(f'v_add_u32 {v(vt)}, {s(sdelta)}, {v(vt)}')
    A(f'v_cndmask_b32 {v(vfull)}, {v(vbase)}, {v(vt)}, vcc')


def bp_switch(A, vfl, vfull, sseq, first):
    A(f's_cmp_ge_u32 {s(sseq)}, {first}')
    A('s_cselect_b64 vcc, -1, 0')
    A(f'v_cndmask_b32 {v(vfl)}, {v(vfl)}, {v(vfull)}, vcc')


def mfma_plan(NK, lag, depth, ring):
    if lag is None:
        seq = [(n // NK, n % NK, n % ring) for n in range(2 * NK)]
        rd = [(n % NK, n % ring) for n in range(2 * NK)]
        first_use = list(range(2 * NK))
    else:
        order = []
        for i in range(NK + lag):
            if i < NK:
                order.append((0, i))
            if i >= lag:
                order.append((1, i - lag))
        seq = [(t, c, c % ring) for t, c in order]
        rd = [(c, c % ring) for c in range(NK)]
        first_use = [order.index((0, c)) for c in range(NK)]
        last_use = [order.index((1, c)) for c in range(NK)]
    NS = len(seq)
    issue = []
    for r in range(len(rd)):
        at = max(-1, first_use[r] - depth)
        if lag is not None and r >= ring:
            at = max(at, last_use[r - ring] + 1)
        issue.append(at)
    pre = [rd[r] for r in range(len(rd)) if issue[r] < 0]
    reads = {n: [rd[r] for r in range(len(rd)) if issue[r] == n] for n in range(NS)}
    waits = {}
    for r in range(len(rd)):
        n = first_use[r]
        waits[n] = sum(1 for q in range(r + 1, len(rd)) if issue[q] <= n)
    t0_done = max(n for n in range(NS) if seq[n][0] == 0)
    return seq, pre, reads, waits, t0_done


def pstamp(A, i, vtmp):
    if PROFILE[0]:
        A('s_lshl_b32 s79, s96, 5')
        A(f's_add_u32 s79, s79, {TCTL + 135168 + 4 * i}')
        emit_signal(A, 79, vtmp)


def emit_poll_issue(A, vdst, voff, sflag):
    A(f'buffer_load_dword {v(vdst)}, {v(voff)}, {srd(SRD_WS)}, {s(sflag)} offen sc1')


def emit_poll_check(A, vdst):
    A(f'v_cmp_ne_u32 vcc, 0, {v(vdst)}')
    A('s_cmp_eq_u64 vcc, exec')


def emit_poll_block(A, vdst, voff, sflag, scnt, fail_label, sleep=2, pend=None):
    top = A.newlabel('poll')
    done = A.newlabel('polld')
    A(f's_mov_b32 {s(scnt)}, 0')
    A.label(top)
    emit_poll_issue(A, vdst, voff, sflag)
    A('s_waitcnt vmcnt(0)')
    if pend:
        sp, sf, fstep, vone = pend
        ns = A.newlabel('pnos')
        A(f's_cmp_eq_u32 {s(sp)}, 0')
        A(f's_cbranch_scc1 {ns}')
        emit_signal(A, sf, vone)
        A(f's_add_u32 {s(sf)}, {s(sf)}, {fstep}')
        A(f's_mov_b32 {s(sp)}, 0')
        A.label(ns)
    emit_poll_check(A, vdst)
    A(f's_cbranch_scc1 {done}')
    A(f's_sleep {sleep}')
    A(f's_add_u32 {s(scnt)}, {s(scnt)}, 1')
    A(f's_cmp_lt_u32 {s(scnt)}, {SPIN_LIMIT}')
    A(f's_cbranch_scc1 {top}')
    A(f's_branch {fail_label}')
    A.label(done)


L_SYNC = 160 * 1024 - 256


def sync_setup(A, vaddr, vc1, lds=L_SYNC):
    A(f'v_mov_b32 {v(vaddr)}, {lds}')
    A(f'v_mov_b32 {v(vc1)}, 0')
    A(f'ds_write_b32 {v(vaddr)}, {v(vc1)}')
    A(f'ds_write_b32 {v(vaddr)}, {v(vc1)} offset:4')
    A(f'ds_write_b32 {v(vaddr)}, {v(vc1)} offset:8')
    A('s_waitcnt lgkmcnt(0)')
    A(f'v_mov_b32 {v(vc1)}, 1')
    A(f'v_mov_b32 {v(vaddr + 1)}, {lds}')


def emit_signal_agg(A, sflag, vone, vaddr, vc1, vtmp, stmp, drain=False):
    sk = A.newlabel('agg')
    A('s_mov_b64 exec, 1')
    A(f'ds_add_rtn_u32 {v(vtmp)}, {v(vaddr + 1)}, {v(vc1)}')
    A('s_waitcnt lgkmcnt(0)')
    A(f'v_readfirstlane_b32 {s(stmp)}, {v(vtmp)}')
    A('s_mov_b64 exec, -1')
    A(f'v_xor_b32 {v(vaddr + 1)}, 8, {v(vaddr + 1)}')
    A(f's_and_b32 {s(stmp)}, {s(stmp)}, 3')
    A(f's_cmp_lg_u32 {s(stmp)}, 3')
    A(f's_cbranch_scc1 {sk}')
    emit_signal(A, sflag, vone)
    if drain:
        j = A.newlabel('aggj')
        A('s_waitcnt vmcnt(1)')
        A(f's_branch {j}')
        A.label(sk)
        A('s_waitcnt vmcnt(0)')
        A.label(j)
    else:
        A.label(sk)


def emit_post_ready(A, sseq, vaddr, vtmp):
    sk = A.newlabel('post')
    A(f's_cmp_lg_u32 {s(S_WAVE)}, 0')
    A(f's_cbranch_scc1 {sk}')
    A(f'v_mov_b32 {v(vtmp)}, {s(sseq)}')
    A(f'ds_write_b32 {v(vaddr)}, {v(vtmp)} offset:4')
    A('s_waitcnt lgkmcnt(0)')
    A.label(sk)


def emit_wait_ready(A, vdst, voff, sflag, sseq, scnt, stmp, vaddr, fail_label, sleep=2):
    oth = A.newlabel('wro')
    done = A.newlabel('wrd')
    A(f's_cmp_lg_u32 {s(S_WAVE)}, 0')
    A(f's_cbranch_scc1 {oth}')
    emit_poll_block(A, vdst, voff, sflag, scnt, fail_label, sleep=sleep)
    A(f'v_mov_b32 {v(vdst)}, {s(sseq)}')
    A(f'ds_write_b32 {v(vaddr)}, {v(vdst)} offset:4')
    A('s_waitcnt lgkmcnt(0)')
    A(f's_branch {done}')
    A.label(oth)
    A(f's_mov_b32 {s(scnt)}, 0')
    lp = A.newlabel('wrl')
    A.label(lp)
    A(f'ds_read_b32 {v(vdst)}, {v(vaddr)} offset:4')
    A(f's_add_u32 {s(scnt)}, {s(scnt)}, 1')
    A(f's_cmp_gt_u32 {s(scnt)}, {SPIN_LIMIT * 16}')
    A(f's_cbranch_scc1 {fail_label}')
    A('s_waitcnt lgkmcnt(0)')
    A(f'v_readfirstlane_b32 {s(stmp)}, {v(vdst)}')
    A(f's_cmp_ge_u32 {s(stmp)}, {s(sseq)}')
    A(f's_cbranch_scc1 {done}')
    A(f's_sleep {TUNE.get("lsl", 1)}')
    A(f's_branch {lp}')
    A.label(done)


G_W0, G_W1, G_IN, G_OUT, G_CNT, G_FIN, G_FOUT = 24, 25, 26, 27, 28, 29, 30
G_T0, G_T1, G_PREF, G_PEND, G_SPIN, G_M0 = 31, 32, 33, 34, 35, 36


def gemm_setup(A, NK, mode, wstride, srd0, srd1):
    vL16, vLane = 1, 2
    vT0, vT1, vT2 = 3, 4, 5
    vW, vTr, vRd, vOut, vOut2, vDma, vFl, vFv, vOne = 6, 7, 8, 9, 10, 11, 12, 13, 14
    D = 4
    R = D + 1
    FR = 16
    ACC = [40, 56]
    TMP = 72
    phi_cols = mode != 'v'
    A(f'v_lshrrev_b32 {v(vT0)}, 2, {v(vLane)}')
    A(f's_mov_b32 {s(G_T0)}, {wstride}')
    A(f'v_mul_lo_u32 {v(vW)}, {v(vT0)}, {s(G_T0)}')
    A(f'v_and_b32 {v(vT0)}, 3, {v(vLane)}')
    A(f'v_lshl_add_u32 {v(vW)}, {v(vT0)}, 4, {v(vW)}')
    A(f'v_bfe_u32 {v(vT1)}, {v(vLane)}, 2, 2')
    A(f'v_lshrrev_b32 {v(vT2)}, 5, {v(vLane)}')
    A(f'v_lshl_add_u32 {v(vT1)}, {v(vT2)}, 3, {v(vT1)}')
    A(f'v_lshlrev_b32 {v(vTr)}, 6, {v(vT1)}')
    A(f'v_bfe_u32 {v(vT1)}, {v(vLane)}, 4, 1')
    A(f'v_lshl_add_u32 {v(vTr)}, {v(vT1)}, 5, {v(vTr)}')
    if phi_cols:
        A(f'v_and_b32 {v(vT1)}, 1, {v(vLane)}')
        A(f'v_lshl_add_u32 {v(vTr)}, {v(vT1)}, 4, {v(vTr)}')
        A(f'v_bfe_u32 {v(vT1)}, {v(vLane)}, 1, 1')
        A(f'v_lshl_add_u32 {v(vTr)}, {v(vT1)}, 3, {v(vTr)}')
    else:
        A(f'v_lshl_add_u32 {v(vTr)}, {v(vT0)}, 3, {v(vTr)}')
    A(f's_lshl_b32 {s(G_T0)}, {s(S_WAVE)}, 15')
    A(f'v_add_u32 {v(vTr)}, {s(G_T0)}, {v(vTr)}')
    A(f'v_mov_b32 {v(vOne)}, 1')
    rounds = [list(range(c, min(c + 8, NK))) for c in range(0, NK, 8)]

    def issue_round(r):
        A(f's_lshl_b32 {s(G_M0)}, {s(S_WAVE)}, 15')
        A(f's_add_u32 m0, {s(G_M0)}, {(r & 1) * 16384}')
        first = True
        for c in rounds[r]:
            for t in (0, 1):
                if not first:
                    A('s_add_u32 m0, m0, 1024')
                first = False
                sw = G_W0 if t == 0 else G_W1
                A(f'buffer_load_dwordx4 {v(vW)}, {srd(srd0 if t == 0 else srd1)}, {s(sw)} offen lds')
                A(f's_add_u32 {s(sw)}, {s(sw)}, {16 * wstride}')

    def read_round(r):
        for ci, c in enumerate(rounds[r]):
            for t in (0, 1):
                base = (r & 1) * 16384 + (ci * 2 + t) * 1024
                ar = (t * 32 + c) * 4
                A(f'ds_read_b64_tr_b16 {a(ar, 2)}, {v(vTr)} offset:{base}')
                A(f'ds_read_b64_tr_b16 {a(ar + 2, 2)}, {v(vTr)} offset:{base + 256}')
        A('s_waitcnt lgkmcnt(0)')

    nr = len(rounds)
    issue_round(0)
    if nr > 1:
        issue_round(1)
    for r in range(nr):
        nxt = 2 * len(rounds[r + 1]) if r + 1 < nr else 0
        A(f's_waitcnt vmcnt({nxt})')
        read_round(r)
        if r + 2 < nr:
            issue_round(r + 2)
    if mode == 'v':
        A(f'v_and_b32 {v(vT0)}, 0x33, {v(vLane)}')
        A(f'v_bfe_u32 {v(vT1)}, {v(vLane)}, 2, 1')
        A(f'v_lshl_or_b32 {v(vT0)}, {v(vT1)}, 3, {v(vT0)}')
        A(f'v_bfe_u32 {v(vT1)}, {v(vLane)}, 3, 1')
        A(f'v_lshl_or_b32 {v(vT0)}, {v(vT1)}, 2, {v(vT0)}')
        A(f'v_lshlrev_b32 {v(vRd)}, 4, {v(vT0)}')
        A(f'v_and_b32 {v(vT0)}, 31, {v(vLane)}')
        A(f'v_lshlrev_b32 {v(vOut)}, 4, {v(vT0)}')
        A(f'v_lshrrev_b32 {v(vT1)}, 5, {v(vLane)}')
        A(f'v_lshl_add_u32 {v(vOut)}, {v(vT1)}, 11, {v(vOut)}')
        A(f'v_add_u32 {v(vOut2)}, 4096, {v(vOut)}')
    else:
        A(f'v_mov_b32 {v(vRd)}, {v(vL16)}')
        if mode == 'part':
            A(f'v_bfe_u32 {v(vT0)}, {v(vLane)}, 2, 3')
            A(f'v_lshlrev_b32 {v(vOut)}, 12, {v(vT0)}')
            A(f'v_lshrrev_b32 {v(vT1)}, 5, {v(vLane)}')
            A(f'v_lshl_add_u32 {v(vOut)}, {v(vT1)}, 6, {v(vOut)}')
            A(f'v_and_b32 {v(vT0)}, 3, {v(vLane)}')
            A(f'v_lshl_add_u32 {v(vOut)}, {v(vT0)}, 4, {v(vOut)}')
        else:
            A(f'v_mov_b32 {v(vOut)}, {v(vL16)}')
    if mode == 'gu':
        c0 = -2.0 * 0.7978845608028654 * 1.4426950408889634
        A(f's_mov_b32 s40, {f32bits(c0 * 0.044715):#x}')
        A(f'v_mov_b32 {v(vT2)}, {f32bits(c0):#x}')


RING = 8
OOB = 0x7ff00000


def gemm_loop(*a, **k):
    LIGHT[0] = False
    gemm_loop_(*a, **k)
    LIGHT[0] = True


def gemm_loop_(A, NK, mode, in_step, out_step, fail, flags=None, sc1=True):
    vL16, vLane = 1, 2
    vT0, vT1, vT2 = 3, 4, 5
    vW, vTr, vRd, vOut, vOut2, vDma, vFl, vFv, vOne = 6, 7, 8, 9, 10, 11, 12, 13, 14
    D = 4
    R = D + 1
    FR = 16
    ACC = [40, 56]
    TMP = 72
    SC = ' sc1' if sc1 else ''
    SS = '' if LOCAL[0] else SC
    G_SRC, G_SEQ = 37, 38
    vSy, vC1, vSt = 36, 38, 39
    per_wave = NK // 4
    assert NK % 4 == 0
    A(f's_lshl_b32 {s(G_T0)}, {s(S_WAVE)}, 10')
    A(f'v_add_u32 {v(vDma)}, {s(G_T0)}, {v(vL16)}')
    A(f's_mov_b32 {s(G_M0)}, {s(G_T0)}')
    vFl2 = 15
    if flags:
        A(f'v_min_u32 {v(vFl)}, {flags["n"] - 1}, {v(vLane)}')
        A(f'v_lshlrev_b32 {v(vFl)}, 2, {v(vFl)}')
        if flags.get('bp'):
            bp_setup(A, vFl2, vFl, flags['n'], flags['bp'], vT0)

    def dma_piece(j):
        if j == 0:
            A(f's_mov_b32 m0, {s(G_M0)}')
        else:
            A('s_add_u32 m0, m0, 4096')
            A(f's_add_u32 {s(G_SRC)}, {s(G_SRC)}, 4096')
        A(f'buffer_load_dwordx4 {v(vDma)}, {srd(SRD_WS)}, {s(G_SRC)} offen{SC} lds')

    def advance():
        adv(A, G_IN, in_step, flags.get('win') if flags else None)
        A(f's_xor_b32 {s(G_M0)}, {s(G_M0)}, 32768')
        if poll_in:
            A(f's_add_u32 {s(G_FIN)}, {s(G_FIN)}, {flags["fin_step"]}')
            A(f's_add_u32 {s(G_SEQ)}, {s(G_SEQ)}, 1')
            if flags.get('bp'):
                bp_switch(A, vFl, vFl2, G_SEQ, RING + 1)

    HP = PROFILE[0] == 1 and flags

    def hstamp(i):
        if HP:
            A(f's_memrealtime {s(60 + 2 * i, 2)}')

    def hflush():
        if HP:
            sk = A.newlabel('hs')
            A('s_waitcnt lgkmcnt(0)')
            A(f's_cmp_lg_u32 {s(S_WAVE)}, 0')
            A(f's_cbranch_scc1 {sk}')
            A(f's_and_b32 s66, {s(G_FOUT)}, 0xff')
            A(f's_andn2_b32 s67, {s(G_FOUT)}, 0xff')
            A('s_mul_i32 s66, s66, 3')
            A('s_add_u32 s66, s66, s67')
            A('s_add_u32 s66, s66, 256')
            A('s_mov_b64 exec, 1')
            for i in range(3):
                A(f'v_mov_b32 {v(vSt)}, {s(60 + 2 * i)}')
                A(f'buffer_store_dword {v(vSt)}, off, {srd(SRD_WS)}, s66 offset:{4 * i}')
            A('s_mov_b64 exec, -1')
            A.label(sk)

    def signal(drain=False):
        emit_signal_agg(A, G_FOUT, vOne, vSy, vC1, vSt, G_T0, drain)
        A(f's_add_u32 {s(G_FOUT)}, {s(G_FOUT)}, {flags["fout_step"]}')
        A(f's_mov_b32 {s(G_PEND)}, 0')

    def issue_dma():
        hstamp(0)
        A(f's_mov_b32 {s(G_SRC)}, {s(G_IN)}')
        for j in range(per_wave):
            dma_piece(j)
        advance()

    NST = 2 if (mode == 'gu' or not TUNE.get('kmaj', 1)) else 4
    poll_in = bool(flags and flags.get('poll_in', True))
    A(f'v_and_b32 {v(vRd)}, 0x7fff, {v(vRd)}')
    if flags:
        sync_setup(A, vSy, vC1)
        A(f's_mov_b32 {s(G_SEQ)}, 1')
    A('s_barrier')
    if poll_in:
        emit_wait_ready(A, vFv, vFl, G_FIN, G_SEQ, G_SPIN, G_T0, vSy, fail, sleep=8)
    issue_dma()
    A(f's_mov_b32 {s(G_PEND)}, 0')
    A('s_waitcnt vmcnt(0)')
    top = A.newlabel('gtop')
    A.label(top)
    GS = GSTAMP[0]
    if GS:
        A('s_mov_b64 s[72:73], s[60:61]')
        A('s_mov_b64 s[74:75], s[70:71]')
        A('s_memtime s[60:61]')
        A('s_memrealtime s[70:71]')
    A(f's_waitcnt vmcnt({NST})')
    if GS:
        A('s_memtime s[62:63]')
    A('s_barrier')
    if GS:
        A('s_memtime s[64:65]')
    hstamp(1)

    NS = 2 * NK
    D2, R2 = 7, 8
    FR2 = 96

    lag = None if (mode == 'gu' or not TUNE.get('kmaj', 1)) else 4
    seq, pre, reads, waits, t0_done = mfma_plan(NK, lag, D2, R2)

    def rd(c, slot):
        A(f'ds_read_b128 {v(FR2 + slot * 4, 4)}, {v(vRd)} offset:{c * 1024}')

    for x in pre:
        rd(*x)
    A(f's_sub_u32 {s(G_CNT)}, {s(G_CNT)}, 1')
    ev = {}

    def at(n, fn):
        ev.setdefault(n, []).append(fn)

    nvm = [0]

    def piece():
        A(f'buffer_load_dwordx4 {v(vDma)}, {srd(SRD_WS)}, {s(G_SRC)} offen{SC} lds')
        A('s_add_u32 m0, m0, 4096')
        A(f's_add_u32 {s(G_SRC)}, {s(G_SRC)}, 4096')
        nvm[0] += 1

    def poll():
        emit_poll_issue(A, vFv, vFl, G_FIN)
        nvm[0] += 1

    def evaluate():
        A(f'v_cmp_ne_u32 vcc, 0, {v(vFv)}')
        A('s_cmp_eq_u64 vcc, exec')
        A(f's_cselect_b32 {s(G_T0)}, {s(G_PREF)}, 1')
        A(f's_cmp_eq_u32 {s(G_T0)}, 0')
        A(f's_cselect_b32 {s(G_SRC)}, {s(G_IN)}, {OOB}')
        A(f's_cselect_b32 m0, {s(G_M0)}, 65536')
        A(f's_cselect_b32 {s(G_PREF)}, 1, {s(G_PREF)}')

    def sig1():
        A(f's_waitcnt vmcnt({nvm[0]})')
        A(f'v_mov_b32 {v(vC1)}, {s(G_PEND)}')
        A('s_mov_b64 exec, 1')
        A(f'ds_add_rtn_u32 {v(vSt)}, {v(vSy + 1)}, {v(vC1)}')
        A('s_mov_b64 exec, -1')

    def sig2():
        A(f'v_readfirstlane_b32 {s(G_T0)}, {v(vSt)}')
        A(f's_lshl_b32 {s(G_T1)}, {s(G_PEND)}, 3')
        A(f'v_xor_b32 {v(vSy + 1)}, {s(G_T1)}, {v(vSy + 1)}')
        A(f'v_mov_b32 {v(vC1)}, 1')
        A(f's_and_b32 {s(G_T0)}, {s(G_T0)}, 3')
        A(f's_add_u32 {s(G_T0)}, {s(G_T0)}, {s(G_PEND)}')
        A(f's_cmp_eq_u32 {s(G_T0)}, 4')
        A(f's_cselect_b32 {s(G_T0)}, {s(G_FOUT)}, {OOB}')
        emit_signal(A, G_T0, vOne)
        nvm[0] += 1
        A(f's_mul_i32 {s(G_T1)}, {s(G_PEND)}, {flags["fout_step"]}')
        A(f's_add_u32 {s(G_FOUT)}, {s(G_FOUT)}, {s(G_T1)}')
        A(f's_mov_b32 {s(G_PEND)}, 0')

    if not poll_in:
        A(f's_cmp_eq_u32 {s(G_CNT)}, 0')
        A(f's_cselect_b32 {s(G_SRC)}, {OOB}, {s(G_IN)}')
        A(f's_mov_b32 m0, {s(G_M0)}')
        for j in range(per_wave):
            at(2 + 3 * j, piece)
    else:
        A(f'v_mov_b32 {v(vFv)}, 0')
        poll()
        A(f's_cmp_eq_u32 {s(G_CNT)}, 0')
        A(f's_cselect_b32 {s(G_PREF)}, 2, 0')
        e1, e2 = TUNE.get('e1', 18 if NK == 32 else 14), NS - 2 * per_wave - 6
        one = TUNE.get('onewin', 2) == 2 or (mode == 'gu' and TUNE.get('onewin', 2))
        at(e1, evaluate)
        for j in range(per_wave):
            at(e1 + 1 + 2 * j, piece)
        if one:
            at(6, poll)
            at(NS - 20, poll)
        else:
            at(e1 + 2, poll)
            at(e2 - 14, poll)
            at(e2, evaluate)
            for j in range(per_wave):
                at(e2 + 1 + 2 * j, piece)
            at(e2 + 2, poll)
        at(NS - 6, poll)
    if flags:
        sn = TUNE.get('sn', 18)
        at(sn, sig1)
        at(sn + D2 + 3, sig2)

    def store(t, f, d):
        if mode == 'qk':
            return (f'buffer_store_dwordx4 {v(d, 4)}, {v(vOut)}, {srd(SRD_WS)}, {s(G_OUT)} offen '
                    f'offset:{(t * 2 + f) * 1024}{SS}')
        if mode == 'part':
            return (f'buffer_store_dwordx4 {v(d, 4)}, {v(vOut)}, {srd(SRD_WS)}, {s(G_OUT)} offen '
                    f'offset:{(t * 2 + f) * 128}{SS}')
        return (f'buffer_store_dwordx4 {v(d, 4)}, {v(vOut if f == 0 else vOut2)}, {srd(SRD_WS)}, '
                f'{s(G_OUT)} offen offset:{t * 512}{SS}')

    def cvt_tile(t):
        out = []
        for f in (0, 1):
            d = TMP + (t * 2 + f) * 4
            for j in range(4):
                r0 = ACC[t] + f * 8 + 2 * j
                out.append(f'v_cvt_pk_bf16_f32 {v(d + j)}, {v(r0)}, {v(r0 + 1)}')
            out.append(store(t, f, d))
        return out

    if mode == 'gu':
        G, U, T1 = ACC[0], ACC[1], TMP
        stages = [lambda i: f'v_mul_f32 {v(T1 + i)}, {v(G + i)}, {v(G + i)}',
                  lambda i: f'v_fma_f32 {v(T1 + i)}, {v(T1 + i)}, s40, {v(vT2)}',
                  lambda i: f'v_mul_f32 {v(T1 + i)}, {v(T1 + i)}, {v(G + i)}',
                  lambda i: f'v_exp_f32 {v(T1 + i)}, {v(T1 + i)}',
                  lambda i: f'v_add_f32 {v(T1 + i)}, 1.0, {v(T1 + i)}',
                  lambda i: f'v_rcp_f32 {v(T1 + i)}, {v(T1 + i)}',
                  lambda i: f'v_mul_f32 {v(T1 + i)}, {v(T1 + i)}, {v(G + i)}']
        early = [stages[k](w - k) for w in range(16 + 6) for k in (3, 0, 1, 2, 5, 4, 6) if 0 <= w - k < 16]
        per = 4
    else:
        early = cvt_tile(0)
        per = 2 if lag is None else 4
    for n in range(NS):
        t, c, slot = seq[n]
        for x in reads[n]:
            rd(*x)
        if n in waits:
            A(f's_waitcnt lgkmcnt({waits[n]})')
        f = v(FR2 + slot * 4, 4)
        w = a((t * 32 + c) * 4, 4)
        cin = '0' if c == 0 else v(ACC[t], 16)
        if TUNE.get('x16'):
            for hh in (0, 1):
                d16 = v(ACC[t] + ((c & 1) * 2 + hh) * 4, 4)
                A(f'v_mfma_f32_16x16x32_bf16 {d16}, {w}, {f}, {"0" if c < 2 else d16}')
        elif mode == 'v':
            A(f'v_mfma_f32_32x32x16_bf16 {v(ACC[t], 16)}, {f}, {w}, {cin}')
        else:
            A(f'v_mfma_f32_32x32x16_bf16 {v(ACC[t], 16)}, {w}, {f}, {cin}')
        if n >= t0_done + (4 if lag is None else 2):
            for _ in range(per):
                if early:
                    x = early.pop(0)
                    A(x)
                    if x.startswith('buffer_store'):
                        nvm[0] += 1
        for fn in ev.get(n, []):
            fn()
    for x in early:
        A(x)
        if x.startswith('buffer_store'):
            nvm[0] += 1
    A(f'v_xor_b32 {v(vRd)}, 32768, {v(vRd)}')
    if GS:
        A('s_memtime s[66:67]')
    if mode == 'gu':
        for f in (0, 1):
            for i in range(f * 8, f * 8 + 8):
                A(f'v_mul_f32 {v(T1 + i)}, {v(T1 + i)}, {v(U + i)}')
            d = TMP + 16 + f * 4
            for j in range(4):
                A(f'v_cvt_pk_bf16_f32 {v(d + j)}, {v(T1 + f * 8 + 2 * j)}, {v(T1 + f * 8 + 2 * j + 1)}')
            A(f'buffer_store_dwordx4 {v(d, 4)}, {v(vOut)}, {srd(SRD_WS)}, {s(G_OUT)} offen '
              f'offset:{f * 1024}{SS}')
    else:
        for x in cvt_tile(1):
            A(x)
    if GS:
        A('s_memtime s[68:69]')
        sk = A.newlabel('gsk')
        A('s_waitcnt lgkmcnt(0)')
        A(f's_cmp_lg_u32 {s(G_CNT)}, {GS}')
        A(f's_cbranch_scc1 {sk}')
        A('s_lshl_b32 s76, s96, 2')
        A('s_add_u32 s76, s76, s3')
        A('s_lshl_b32 s76, s76, 6')
        A(f's_add_u32 s76, s76, {TCTL + 65536}')
        A('s_mov_b64 exec, 1')
        for i, r in enumerate((60, 62, 64, 66, 68, 70, 72, 74)):
            A(f'v_mov_b32 {v(vT0)}, s{r}')
            A(f'buffer_store_dword {v(vT0)}, off, {srd(SRD_WS)}, s76 offset:{4 * i}')
        A('s_mov_b64 exec, -1')
        A('s_waitcnt vmcnt(0)')
        A.label(sk)
    hstamp(2)
    hflush()
    adv(A, G_OUT, out_step, flags.get('wout') if flags else None)
    if flags:
        A(f's_mov_b32 {s(G_PEND)}, 1')
    last = A.newlabel('glast')
    A(f's_cmp_eq_u32 {s(G_CNT)}, 0')
    A(f's_cbranch_scc1 {last}')
    if poll_in:
        blk = A.newlabel('gblk')
        A(f's_cmp_eq_u32 {s(G_PREF)}, 0')
        A(f's_cbranch_scc1 {blk}')
        emit_post_ready(A, G_SEQ, vSy, vSt)
        advance()
        A(f's_branch {top}')
        A.label(blk)
        blk2 = A.newlabel('gblk2')
        A(f's_waitcnt vmcnt({NST})')
        emit_poll_check(A, vFv)
        A(f's_cbranch_scc0 {blk2}')
        emit_post_ready(A, G_SEQ, vSy, vSt)
        issue_dma()
        A(f's_waitcnt vmcnt({per_wave})')
        signal(drain=True)
        A(f's_branch {top}')
        A.label(blk2)
        A('s_waitcnt vmcnt(0)')
        signal()
        emit_wait_ready(A, vFv, vFl, G_FIN, G_SEQ, G_SPIN, G_T0, vSy, fail, sleep=TUNE.get('sl', 2))
        issue_dma()
        A('s_waitcnt vmcnt(0)')
    else:
        advance()
    A(f's_branch {top}')
    A.label(last)
    if flags:
        A('s_waitcnt vmcnt(0)')
        signal()


def gemm_role(A, NK, mode, wstride, srd0, srd1, in_step, out_step, end_label, flags=None, sc1=True,
              s_pure=None):
    gemm_setup(A, NK, mode, wstride, srd0, srd1)
    if s_pure is not None:
        gl = A.newlabel('gg')
        A(f's_cmp_eq_u32 {s(s_pure)}, 0')
        A(f's_cbranch_scc1 {gl}')
        LOCAL[0] = True
        gemm_loop(A, NK, mode, in_step, out_step, end_label, flags, sc1)
        LOCAL[0] = False
        A(f's_branch {end_label}')
        A.label(gl)
    gemm_loop(A, NK, mode, in_step, out_step, end_label, flags, sc1)
    A(f's_branch {end_label}')


PSEG = 32768


def rl_role(A, KBN, srd_xin, srd_xout, do_ln, steps, end_label, flags=None, sc1=True, xin_sc1=True,
            xout_sc1=True, burst=0, between=None):
    R_P, R_XI, R_XO, R_XN, R_CNT, R_FIN, R_FOUT, R_T0, R_PREF, R_PEND, R_SPIN = \
        24, 25, 26, 27, 28, 29, 30, 31, 33, 34, 35
    vLane = 2
    vT0, vT1, vT2 = 3, 4, 5
    vP, vX, vN, vLw, vLr, vFl, vFv, vOne = 6, 7, 8, 9, 10, 11, 12, 13
    XF = 16
    PK = 24
    PN = 28
    ST = 32
    AC = 44
    UP = 52
    SETS = [60, 60 + 4 + 4 * KBN]
    vSy, vC1, vSt = 14, 4, 5
    R_SEQ = 36
    SC = ' sc1' if sc1 else ''
    A(f'v_and_b32 {v(vT0)}, 3, v0')
    A(f'v_lshrrev_b32 {v(vT1)}, 2, v0')
    A(f'v_lshlrev_b32 {v(vP)}, 4, v0')
    A(f'v_lshlrev_b32 {v(vX)}, 10, {v(vT0)}')
    A(f'v_lshl_add_u32 {v(vX)}, {v(vT1)}, 4, {v(vX)}')
    A(f'v_lshlrev_b32 {v(vN)}, 9, {v(vT1)}')
    A(f'v_lshl_add_u32 {v(vN)}, {v(vT0)}, 4, {v(vN)}')
    A(f'v_lshlrev_b32 {v(vLr)}, 4, {v(vT0)}')
    A(f's_lshl_b32 {s(R_T0)}, {s(S_WAVE)}, 2')
    A(f'v_add_u32 {v(vLw)}, {s(R_T0)}, {v(vLr)}')
    A(f'v_mov_b32 {v(vOne)}, 1')
    A(f's_mov_b32 s40, 0xffff0000')
    poll_in = bool(flags and flags.get('poll_in', True))
    sig = bool(flags and flags.get('signal', True))
    if flags:
        A(f'v_min_u32 {v(vFl)}, {flags["n"] - 1}, {v(vLane)}')
        A(f'v_lshlrev_b32 {v(vFl)}, 2, {v(vFl)}')
    if flags:
        sync_setup(A, vSy, vC1)
        A(f's_mov_b32 {s(R_SEQ)}, 1')
        A('s_barrier')

    def signal():
        emit_signal_agg(A, R_FOUT, vOne, vSy, vC1, vSt, R_T0)
        A(f's_add_u32 {s(R_FOUT)}, {s(R_FOUT)}, {flags["fout_step"]}')
        A(f's_mov_b32 {s(R_PEND)}, 0')

    def loads(S):
        A(f'buffer_load_dwordx4 {v(S, 4)}, {v(vX)}, {srd(srd_xin)}, {s(R_XI)} offen{" sc1" if xin_sc1 else ""}')
        A(f's_mov_b32 {s(R_T0)}, {s(R_P)}')
        for kb in range(KBN):
            A(f'buffer_load_dwordx4 {v(S + 4 + kb * 4, 4)}, {v(vP)}, {srd(SRD_WS)}, {s(R_T0)} offen{SC}')
            if kb + 1 < KBN:
                A(f's_add_u32 {s(R_T0)}, {s(R_T0)}, {PSEG}')
        A(f's_add_u32 {s(R_P)}, {s(R_P)}, {steps["p"]}')
        A(f's_add_u32 {s(R_XI)}, {s(R_XI)}, {steps["x"]}')
        if poll_in:
            A(f's_add_u32 {s(R_FIN)}, {s(R_FIN)}, {flags["fin_step"]}')
            A(f's_add_u32 {s(R_SEQ)}, {s(R_SEQ)}, 1')

    def unpack(dst, src):
        for j in range(4):
            A(f'v_lshlrev_b32 {v(dst + 2 * j)}, 16, {v(src + j)}')
            A(f'v_and_b32 {v(dst + 2 * j + 1)}, s40, {v(src + j)}')

    def pack(dst, src):
        for j in range(4):
            A(f'v_cvt_pk_bf16_f32 {v(dst + j)}, {v(src + 2 * j)}, {v(src + 2 * j + 1)}')

    def row_reduce(r, ldsoff):
        t = ST + 7
        A(f'v_add_f32_dpp {v(r)}, {v(r)}, {v(r)} row_ror:4 row_mask:0xf bank_mask:0xf')
        A(f'v_add_f32_dpp {v(r)}, {v(r)}, {v(r)} row_ror:8 row_mask:0xf bank_mask:0xf')
        A(f'v_mov_b32 {v(t)}, {v(r)}')
        A(f'v_permlane16_swap_b32 {v(r)}, {v(t)}')
        A(f'v_add_f32 {v(r)}, {v(r)}, {v(t)}')
        A(f'v_mov_b32 {v(t)}, {v(r)}')
        A(f'v_permlane32_swap_b32 {v(r)}, {v(t)}')
        A(f'v_add_f32 {v(r)}, {v(r)}, {v(t)}')
        A(f'ds_write_b32 {v(vLw)}, {v(r)} offset:{ldsoff}')
        A('s_waitcnt lgkmcnt(0)')
        A('s_barrier')
        A(f'ds_read_b128 {v(ST + 8, 4)}, {v(vLr)} offset:{ldsoff}')
        A('s_waitcnt lgkmcnt(0)')
        A(f'v_add_f32 {v(ST + 8)}, {v(ST + 8)}, {v(ST + 9)}')
        A(f'v_add_f32 {v(ST + 10)}, {v(ST + 10)}, {v(ST + 11)}')
        A(f'v_add_f32 {v(r)}, {v(ST + 8)}, {v(ST + 10)}')

    def round_bf16(r):
        A(f'v_cvt_pk_bf16_f32 {v(r)}, {v(r)}, {v(r)}')
        A(f'v_lshlrev_b32 {v(r)}, 16, {v(r)}')

    def compute(S):
        unpack(XF, S)
        if KBN:
            unpack(AC, S + 4)
            for kb in range(1, KBN):
                unpack(UP, S + 4 + kb * 4)
                for j in range(8):
                    A(f'v_add_f32 {v(AC + j)}, {v(AC + j)}, {v(UP + j)}')
            pack(PK, AC)
            unpack(AC, PK)
            for j in range(8):
                A(f'v_add_f32 {v(XF + j)}, {v(XF + j)}, {v(AC + j)}')
            pack(PK, XF)
            A(f'buffer_store_dwordx4 {v(PK, 4)}, {v(vX)}, {srd(srd_xout)}, {s(R_XO)} offen'
              f'{" sc1" if xout_sc1 else ""}')
            if do_ln:
                unpack(XF, PK)
        if do_ln:
            m, q = ST, ST + 1
            A(f'v_add_f32 {v(m)}, {v(XF)}, {v(XF + 1)}')
            A(f'v_add_f32 {v(q)}, {v(XF + 2)}, {v(XF + 3)}')
            A(f'v_add_f32 {v(ST + 2)}, {v(XF + 4)}, {v(XF + 5)}')
            A(f'v_add_f32 {v(ST + 3)}, {v(XF + 6)}, {v(XF + 7)}')
            A(f'v_add_f32 {v(m)}, {v(m)}, {v(q)}')
            A(f'v_add_f32 {v(ST + 2)}, {v(ST + 2)}, {v(ST + 3)}')
            A(f'v_add_f32 {v(m)}, {v(m)}, {v(ST + 2)}')
            row_reduce(m, 0)
            A(f'v_mul_f32 {v(m)}, {f32bits(1.0 / 512):#x}, {v(m)}')
            for j in range(8):
                A(f'v_sub_f32 {v(AC + j)}, {v(XF + j)}, {v(m)}')
            A(f'v_mul_f32 {v(q)}, {v(AC)}, {v(AC)}')
            for j in range(1, 8):
                A(f'v_fmac_f32 {v(q)}, {v(AC + j)}, {v(AC + j)}')
            row_reduce(q, 64)
            A(f'v_mul_f32 {v(q)}, {f32bits(1.0 / 512):#x}, {v(q)}')
            round_bf16(q)
            A(f'v_add_f32 {v(q)}, {f32bits(1e-5):#x}, {v(q)}')
            round_bf16(q)
            A(f'v_sqrt_f32 {v(q)}, {v(q)}')
            round_bf16(q)
            A(f'v_rcp_f32 {v(q)}, {v(q)}')
            round_bf16(m)
            for j in range(8):
                A(f'v_sub_f32 {v(AC + j)}, {v(XF + j)}, {v(m)}')
            pack(PN, AC)
            unpack(AC, PN)
            for j in range(8):
                A(f'v_mul_f32 {v(AC + j)}, {v(AC + j)}, {v(q)}')
            pack(PN, AC)
            A(f'buffer_store_dwordx4 {v(PN, 4)}, {v(vN)}, {srd(SRD_WS)}, {s(R_XN)} offen{SC}')
        A(f's_add_u32 {s(R_XO)}, {s(R_XO)}, {steps["x"]}')
        A(f's_add_u32 {s(R_XN)}, {s(R_XN)}, {steps["xn"]}')

    if burst:
        assert KBN == 0
        for i in range(burst):
            loads(64 + 4 * i)
        nb = between() if between else 0
        for i in range(burst):
            A(f's_waitcnt vmcnt({burst - 1 + nb})')
            compute(64 + 4 * i)
        A(f's_branch {end_label}')
        return
    if flags and flags.get('pair'):
        top = A.newlabel('rlptop')
        A.label(top)
        emit_wait_ready(A, vFv, vFl, R_FIN, R_SEQ, R_SPIN, R_T0, vSy, end_label, sleep=TUNE.get('sl', 3))
        st2 = dict(steps)
        steps.update(p=4096, x=4096, xn=64)
        fs = flags['fin_step']
        flags['fin_step'] = 0
        loads(SETS[0])
        steps.update(p=st2['p'] - 4096, x=st2['x'] - 4096)
        flags['fin_step'] = fs
        loads(SETS[1])
        steps.update(p=4096, x=4096, xn=64)
        A(f's_waitcnt vmcnt({KBN + 1})')
        compute(SETS[0])
        steps.update(x=st2['x'] - 4096, xn=st2['xn'] - 64)
        A(f's_waitcnt vmcnt({2 if do_ln else 1})')
        compute(SETS[1])
        steps.update(st2)
        if sig:
            A('s_waitcnt vmcnt(0)')
            signal()
        A(f's_sub_u32 {s(R_CNT)}, {s(R_CNT)}, 1')
        A(f's_cmp_lg_u32 {s(R_CNT)}, 0')
        A(f's_cbranch_scc1 {top}')
        A(f's_branch {end_label}')
        return
    A(f's_mov_b32 {s(R_PEND)}, 0')
    if poll_in:
        emit_wait_ready(A, vFv, vFl, R_FIN, R_SEQ, R_SPIN, R_T0, vSy, end_label, sleep=8)
    loads(SETS[0])
    top = A.newlabel('rltop')
    last = A.newlabel('rllast')
    A.label(top)
    for u in (0, 1):
        S, O = SETS[u], SETS[1 - u]
        A(f's_sub_u32 {s(R_CNT)}, {s(R_CNT)}, 1')
        if poll_in:
            emit_poll_issue(A, vFv, vFl, R_FIN)
        A('s_waitcnt vmcnt(0)')
        if sig:
            ns = A.newlabel('rlns')
            A(f's_cmp_eq_u32 {s(R_PEND)}, 0')
            A(f's_cbranch_scc1 {ns}')
            signal()
            A.label(ns)
        nopf = A.newlabel('rlnopf')
        A(f's_mov_b32 {s(R_PREF)}, 0')
        A(f's_cmp_eq_u32 {s(R_CNT)}, 0')
        A(f's_cbranch_scc1 {nopf}')
        if poll_in:
            emit_poll_check(A, vFv)
            A(f's_cbranch_scc0 {nopf}')
            emit_post_ready(A, R_SEQ, vSy, vSt)
        loads(O)
        A(f's_mov_b32 {s(R_PREF)}, 1')
        A.label(nopf)
        compute(S)
        A(f's_mov_b32 {s(R_PEND)}, 1')
        A(f's_cmp_eq_u32 {s(R_CNT)}, 0')
        A(f's_cbranch_scc1 {last}')
        if poll_in:
            nx = A.newlabel('rlnx')
            A(f's_cmp_eq_u32 {s(R_PREF)}, 1')
            A(f's_cbranch_scc1 {nx}')
            if sig:
                A('s_waitcnt vmcnt(0)')
                signal()
            emit_wait_ready(A, vFv, vFl, R_FIN, R_SEQ, R_SPIN, R_T0, vSy, end_label, sleep=2)
            loads(O)
            A.label(nx)
    A(f's_branch {top}')
    A.label(last)
    if sig:
        A('s_waitcnt vmcnt(0)')
        signal()
    A(f's_branch {end_label}')


def att_role(A, segstep, end_label, flags=None, sc1=True):
    T_Q, T_K, T_V, T_KM, T_CNT, T_FIN, T_FOUT, T_VM, T_O, T_FPR, T_T0, T_SPIN = \
        24, 25, 26, 27, 28, 29, 30, 31, 32, 33, 34, 35
    vL16, vLane = 1, 2
    vT0, vT1, vT2 = 3, 4, 5
    vK, vKM, vV, vVM, vFl, vFv, vOne, vFp = 6, 7, 8, 9, 10, 11, 12, 13
    BIAS = 16
    QF, KF, KMF, VF, VMF = 32, 64, 96, 128, 160
    SX, SM = 176, 192
    PB = 208
    OA = 32
    OP = 220
    SC = ' sc1' if sc1 else ''
    scale_log2e = (128 ** -0.5) * 1.4426950408889634
    A(f'v_and_b32 {v(vT0)}, 0x13, {v(vLane)}')
    A(f'v_bfe_u32 {v(vT1)}, {v(vLane)}, 2, 1')
    A(f'v_lshl_or_b32 {v(vT0)}, {v(vT1)}, 3, {v(vT0)}')
    A(f'v_bfe_u32 {v(vT1)}, {v(vLane)}, 3, 1')
    A(f'v_lshl_or_b32 {v(vT0)}, {v(vT1)}, 2, {v(vT0)}')
    A(f'v_lshrrev_b32 {v(vT1)}, 5, {v(vLane)}')
    A(f'v_lshlrev_b32 {v(vK)}, 4, {v(vT0)}')
    A(f'v_lshl_add_u32 {v(vK)}, {v(vT1)}, 9, {v(vK)}')
    A(f'v_lshlrev_b32 {v(vV)}, 4, {v(vT0)}')
    A(f'v_lshl_add_u32 {v(vV)}, {v(vT1)}, 11, {v(vV)}')
    A(f'v_lshlrev_b32 {v(vVM)}, 3, {v(vT0)}')
    A(f'v_lshl_add_u32 {v(vVM)}, {v(vT1)}, 10, {v(vVM)}')
    A(f'v_and_b32 {v(vT2)}, 7, {v(vLane)}')
    A(f'v_lshlrev_b32 {v(vKM)}, 4, {v(vT2)}')
    A(f'v_lshl_add_u32 {v(vKM)}, {v(vT1)}, 7, {v(vKM)}')
    A(f'v_and_b32 {v(vT2)}, 31, {v(vLane)}')
    A(f'v_lshlrev_b32 {v(vT1)}, 3, {v(vT1)}')
    A(f'v_sub_u32 {v(vT2)}, {v(vT2)}, {v(vT1)}')
    A(f'v_mov_b32 {v(vT0)}, {f32bits(-1e30):#x}')
    for i in range(16):
        A(f'v_cmp_gt_i32 vcc, {16 * (i >> 3) + (i & 7)}, {v(vT2)}')
        A(f'v_cndmask_b32 {v(BIAS + i)}, 0, {v(vT0)}, vcc')
    for T in range(4):
        A(f'v_mov_b32 {v(VMF + T * 4 + 2)}, 0')
        A(f'v_mov_b32 {v(VMF + T * 4 + 3)}, 0')
    A(f'v_mov_b32 {v(PB + 10)}, 0')
    A(f'v_mov_b32 {v(PB + 11)}, 0')
    A(f'v_mov_b32 {v(vOne)}, 1')
    A(f's_mov_b32 s40, {f32bits(scale_log2e):#x}')
    if flags:
        A(f'v_min_u32 {v(vFl)}, {flags["n"] - 1}, {v(vLane)}')
        A(f'v_lshlrev_b32 {v(vFl)}, 2, {v(vFl)}')
        if True:
            A(f'v_min_u32 {v(vT0)}, 2, {v(vLane)}')
            A(f'v_lshlrev_b32 {v(vFp)}, 6, {v(vT0)}')
    T_PEND = 36
    A(f's_mov_b32 {s(T_PEND)}, 0')
    top = A.newlabel('atop')
    A.label(top)
    if flags:
        emit_poll_block(A, vFv, vFp, T_FPR, T_SPIN, end_label, sleep=8,
                        pend=(T_PEND, T_FOUT, 1024 * segstep, vOne))
        A(f's_add_u32 {s(T_FPR)}, {s(T_FPR)}, {1024 * segstep}')

    def ld8(dst, voff, soff):
        A(f's_add_u32 {s(T_T0)}, {s(soff)}, 4096')
        for c in range(8):
            so = soff if c < 4 else T_T0
            A(f'buffer_load_dwordx4 {v(dst + c * 4, 4)}, {v(voff)}, {srd(SRD_WS)}, {s(so)} offen '
              f'offset:{(c & 3) * 1024}{SC}')

    ld8(KF, vK, T_K)
    ld8(QF, vL16, T_Q)
    A(f's_add_u32 {s(T_T0)}, {s(T_V)}, 4096')
    for T in range(4):
        for f in (0, 1):
            so = T_V if f == 0 else T_T0
            A(f'buffer_load_dwordx4 {v(VF + (T * 2 + f) * 4, 4)}, {v(vV)}, {srd(SRD_WS)}, {s(so)} offen '
              f'offset:{T * 512}{SC}')
    for c in range(8):
        A(f's_waitcnt vmcnt({8 + 7 - c})')
        cin = '0' if c == 0 else v(SX, 16)
        A(f'v_mfma_f32_32x32x16_bf16 {v(SX, 16)}, {v(KF + c * 4, 4)}, {v(QF + c * 4, 4)}, {cin}')
    if flags:
        emit_poll_block(A, vFv, vFl, T_FIN, T_SPIN, end_label, sleep=3)
        A(f's_add_u32 {s(T_FIN)}, {s(T_FIN)}, {1024 * segstep}')
    for c in range(8):
        A(f'buffer_load_dwordx4 {v(KMF + c * 4, 4)}, {v(vKM)}, {srd(SRD_WS)}, {s(T_KM)} offen '
          f'offset:{c * 256}{SC}')
    for T in range(4):
        A(f'buffer_load_dwordx2 {v(VMF + T * 4, 2)}, {v(vVM)}, {srd(SRD_WS)}, {s(T_VM)} offen '
          f'offset:{T * 256}{SC}')
    for i in range(16):
        A(f'v_fma_f32 {v(SX + i)}, {v(SX + i)}, s40, {v(BIAS + i)}')
    mx = vT0
    A(f'v_max3_f32 {v(mx)}, {v(SX)}, {v(SX + 1)}, {v(SX + 2)}')
    for i in range(3, 15, 2):
        A(f'v_max3_f32 {v(mx)}, {v(mx)}, {v(SX + i)}, {v(SX + i + 1)}')
    A(f'v_max_f32 {v(mx)}, {v(mx)}, {v(SX + 15)}')
    for c in range(8):
        A(f's_waitcnt vmcnt({4 + 7 - c})')
        cin = '0' if c == 0 else v(SM, 16)
        A(f'v_mfma_f32_32x32x16_bf16 {v(SM, 16)}, {v(KMF + c * 4, 4)}, {v(QF + c * 4, 4)}, {cin}')
    for i in range(4):
        A(f'v_mul_f32 {v(SM + i)}, s40, {v(SM + i)}')
    A(f'v_max3_f32 {v(mx)}, {v(mx)}, {v(SM)}, {v(SM + 1)}')
    A(f'v_max3_f32 {v(mx)}, {v(mx)}, {v(SM + 2)}, {v(SM + 3)}')
    A(f'v_mov_b32 {v(vT1)}, {v(mx)}')
    A(f'v_permlane32_swap_b32 {v(mx)}, {v(vT1)}')
    A(f'v_max_f32 {v(mx)}, {v(mx)}, {v(vT1)}')
    vals = [SX + i for i in range(16)] + [SM + i for i in range(4)]
    for r in vals:
        A(f'v_sub_f32 {v(r)}, {v(r)}, {v(mx)}')
    for r in vals:
        A(f'v_exp_f32 {v(r)}, {v(r)}')
    sm = vT1
    A(f'v_add_f32 {v(sm)}, {v(vals[0])}, {v(vals[1])}')
    A(f'v_add_f32 {v(vT2)}, {v(vals[2])}, {v(vals[3])}')
    for i in range(4, 20, 2):
        A(f'v_add_f32 {v(sm)}, {v(sm)}, {v(vals[i])}')
        A(f'v_add_f32 {v(vT2)}, {v(vT2)}, {v(vals[i + 1])}')
    A(f'v_add_f32 {v(sm)}, {v(sm)}, {v(vT2)}')
    A(f'v_mov_b32 {v(vT2)}, {v(sm)}')
    A(f'v_permlane32_swap_b32 {v(sm)}, {v(vT2)}')
    A(f'v_add_f32 {v(sm)}, {v(sm)}, {v(vT2)}')
    A(f'v_rcp_f32 {v(sm)}, {v(sm)}')
    for r in vals:
        A(f'v_mul_f32 {v(r)}, {v(r)}, {v(sm)}')
    for j in range(10):
        A(f'v_cvt_pk_bf16_f32 {v(PB + j)}, {v(vals[2 * j])}, {v(vals[2 * j + 1])}')
    A('s_waitcnt vmcnt(0)')
    for T in range(4):
        o = v(OA + T * 16, 16)
        A(f'v_mfma_f32_32x32x16_bf16 {o}, {v(VF + T * 8, 4)}, {v(PB, 4)}, 0')
        A(f'v_mfma_f32_32x32x16_bf16 {o}, {v(VF + T * 8 + 4, 4)}, {v(PB + 4, 4)}, {o}')
        A(f'v_mfma_f32_32x32x16_bf16 {o}, {v(VMF + T * 4, 4)}, {v(PB + 8, 4)}, {o}')
    A(f's_add_u32 {s(T_T0)}, {s(T_O)}, 4096')
    for T in range(4):
        for f in (0, 1):
            n = T * 2 + f
            d = KMF + n * 4
            for j in range(4):
                r0 = OA + T * 16 + f * 8 + 2 * j
                A(f'v_cvt_pk_bf16_f32 {v(d + j)}, {v(r0)}, {v(r0 + 1)}')
            so = T_O if n < 4 else T_T0
            A(f'buffer_store_dwordx4 {v(d, 4)}, {v(vL16)}, {srd(SRD_WS)}, {s(so)} offen '
              f'offset:{(n & 3) * 1024}{SC}')
    A(f's_mov_b32 {s(T_PEND)}, 1')
    for r, st in ((T_Q, 262144), (T_K, 262144), (T_V, 262144), (T_KM, 65536), (T_VM, 65536), (T_O, 262144)):
        A(f's_add_u32 {s(r)}, {s(r)}, {st * segstep}')
    A(f's_sub_u32 {s(T_CNT)}, {s(T_CNT)}, 1')
    A(f's_cmp_lg_u32 {s(T_CNT)}, 0')
    A(f's_cbranch_scc1 {top}')
    if flags:
        A('s_waitcnt vmcnt(0)')
        emit_signal(A, T_FOUT, vOne)
    A(f's_branch {end_label}')


def ao_role(A, segstep, end_label, s_pure=None, wout=None, bp=None):
    gemm_setup(A, 32, 'part', 1024, SRD_A, SRD_A)
    T_Q, T_K, T_V, T_KM, T_VM, T_FPR = 50, 51, 52, 53, 54, 55
    T_OUT, T_CNT, T_FIN, T_FOUT = 27, 28, 29, 30
    T_T0, T_T1, T_SPIN, T_PREF, T_PEND = 31, 32, 35, 33, 34
    P_Q, P_K, P_V = 56, 58, 60
    vL16, vLane = 1, 2
    vT0, vT1, vT2 = 3, 4, 5
    vK, vKM, vV, vVM, vFl, vFv, vOne, vFp, vOut, vLw = 6, 7, 8, 9, 10, 11, 12, 13, 14, 15
    BIAS = 16
    QF, KF, KMF, VF, VMF = 32, 64, 96, 128, 160
    SX, SM = 176, 192
    PB = 208
    OA = 32
    TMP = 220
    vSy, vC1, vSt, vRd, vFq = 236, 238, 239, 240, 241
    SC = ' sc1'
    scale_log2e = (128 ** -0.5) * 1.4426950408889634
    A(f'v_mov_b32 {v(vOut)}, v9')
    A(f'v_and_b32 {v(vT0)}, 0x13, {v(vLane)}')
    A(f'v_bfe_u32 {v(vT1)}, {v(vLane)}, 2, 1')
    A(f'v_lshl_or_b32 {v(vT0)}, {v(vT1)}, 3, {v(vT0)}')
    A(f'v_bfe_u32 {v(vT1)}, {v(vLane)}, 3, 1')
    A(f'v_lshl_or_b32 {v(vT0)}, {v(vT1)}, 2, {v(vT0)}')
    A(f'v_lshrrev_b32 {v(vT1)}, 5, {v(vLane)}')
    A(f'v_lshlrev_b32 {v(vK)}, 4, {v(vT0)}')
    A(f'v_lshl_add_u32 {v(vK)}, {v(vT1)}, 9, {v(vK)}')
    A(f'v_lshlrev_b32 {v(vV)}, 4, {v(vT0)}')
    A(f'v_lshl_add_u32 {v(vV)}, {v(vT1)}, 11, {v(vV)}')
    A(f'v_lshlrev_b32 {v(vVM)}, 3, {v(vT0)}')
    A(f'v_lshl_add_u32 {v(vVM)}, {v(vT1)}, 10, {v(vVM)}')
    A(f'v_and_b32 {v(vT2)}, 7, {v(vLane)}')
    A(f'v_lshlrev_b32 {v(vKM)}, 4, {v(vT2)}')
    A(f'v_lshl_add_u32 {v(vKM)}, {v(vT1)}, 7, {v(vKM)}')
    A(f'v_and_b32 {v(vT2)}, 31, {v(vLane)}')
    A(f'v_lshlrev_b32 {v(vT1)}, 3, {v(vT1)}')
    A(f'v_sub_u32 {v(vT2)}, {v(vT2)}, {v(vT1)}')
    A(f'v_mov_b32 {v(vT0)}, {f32bits(-1e30):#x}')
    for i in range(16):
        A(f'v_cmp_gt_i32 vcc, {16 * (i >> 3) + (i & 7)}, {v(vT2)}')
        A(f'v_cndmask_b32 {v(BIAS + i)}, 0, {v(vT0)}, vcc')
    for T in range(4):
        A(f'v_mov_b32 {v(VMF + T * 4 + 2)}, 0')
        A(f'v_mov_b32 {v(VMF + T * 4 + 3)}, 0')
    A(f'v_mov_b32 {v(PB + 10)}, 0')
    A(f'v_mov_b32 {v(PB + 11)}, 0')
    A(f'v_mov_b32 {v(vOne)}, 1')
    A(f's_mov_b32 s40, {f32bits(scale_log2e):#x}')
    A(f'v_mov_b32 {v(vFl)}, 0')
    vFl2, T_SEQ = 242, 63
    A(f's_mov_b32 {s(T_SEQ)}, 0')
    bp_setup(A, vFl2, vFl, 1, bp, vT0)
    A(f'v_min_u32 {v(vT0)}, 2, {v(vLane)}')
    A(f'v_lshlrev_b32 {v(vFp)}, 6, {v(vT0)}')
    A(f's_lshl_b32 {s(T_T0)}, {s(S_WAVE)}, 13')
    A(f'v_add_u32 {v(vLw)}, {s(T_T0)}, {v(vL16)}')
    A(f'v_mov_b32 {v(vRd)}, {v(vL16)}')
    sync_setup(A, vSy, vC1)
    A('s_barrier')

    def set_src(real):
        for p, r in ((P_Q, T_Q), (P_K, T_K), (P_V, T_V)):
            if real is None:
                A(f's_mov_b32 {s(p)}, {s(r)}')
            else:
                A(f's_cselect_b32 {s(p)}, {s(r)}, {OOB}')
        for p in (P_Q, P_K, P_V):
            A(f's_add_u32 {s(p + 1)}, {s(p)}, 4096')

    def load_list():
        L = []
        for c in range(8):
            L.append(f'buffer_load_dwordx4 {v(KF + c * 4, 4)}, {v(vK)}, {srd(SRD_WS)}, {s(P_K + (c >> 2))} offen '
                     f'offset:{(c & 3) * 1024}{SC}')
            L.append(f'buffer_load_dwordx4 {v(QF + c * 4, 4)}, {v(vL16)}, {srd(SRD_WS)}, {s(P_Q + (c >> 2))} offen '
                     f'offset:{(c & 3) * 1024}{SC}')
        for T in range(4):
            for f in (0, 1):
                L.append(f'buffer_load_dwordx4 {v(VF + (T * 2 + f) * 4, 4)}, {v(vV)}, {srd(SRD_WS)}, '
                         f'{s(P_V + f)} offen offset:{T * 512}{SC}')
        return L

    def adv_in():
        for r in (T_Q, T_K, T_V):
            A(f's_add_u32 {s(r)}, {s(r)}, {262144 * segstep}')
        A(f's_add_u32 {s(T_FPR)}, {s(T_FPR)}, {1024 * segstep}')

    def body():
        emit_poll_block(A, vFv, vFp, T_FPR, T_SPIN, end_label, sleep=8)
        set_src(None)
        for x in load_list():
            A(x)
        adv_in()
        A(f's_mov_b32 {s(T_PEND)}, 0')

        def signal():
            emit_signal_agg(A, T_FOUT, vOne, vSy, vC1, vSt, T_T0)
            A(f's_add_u32 {s(T_FOUT)}, {s(T_FOUT)}, {1024 * segstep}')
            A(f's_mov_b32 {s(T_PEND)}, 0')

        top = A.newlabel('aotop')
        A.label(top)
        A(f's_sub_u32 {s(T_CNT)}, {s(T_CNT)}, 1')
        emit_poll_issue(A, vFv, vFl, T_FIN)
        A('s_waitcnt vmcnt(9)')
        for c in range(8):
            cin = '0' if c == 0 else v(SX, 16)
            A(f'v_mfma_f32_32x32x16_bf16 {v(SX, 16)}, {v(KF + c * 4, 4)}, {v(QF + c * 4, 4)}, {cin}')
        for i in range(16):
            A(f'v_fma_f32 {v(SX + i)}, {v(SX + i)}, s40, {v(BIAS + i)}')
        mx = vT0
        A(f'v_max3_f32 {v(mx)}, {v(SX)}, {v(SX + 1)}, {v(SX + 2)}')
        for i in range(3, 15, 2):
            A(f'v_max3_f32 {v(mx)}, {v(mx)}, {v(SX + i)}, {v(SX + i + 1)}')
        A(f'v_max_f32 {v(mx)}, {v(mx)}, {v(SX + 15)}')
        A('s_waitcnt vmcnt(0)')
        ns = A.newlabel('aons')
        A(f's_cmp_eq_u32 {s(T_PEND)}, 0')
        A(f's_cbranch_scc1 {ns}')
        signal()
        A.label(ns)
        go = A.newlabel('aogo')
        emit_poll_check(A, vFv)
        A(f's_cbranch_scc1 {go}')
        emit_poll_block(A, vFv, vFl, T_FIN, T_SPIN, end_label, sleep=TUNE.get('sla', 2))
        A.label(go)
        A(f's_add_u32 {s(T_FIN)}, {s(T_FIN)}, {1024 * segstep}')
        A(f's_add_u32 {s(T_SEQ)}, {s(T_SEQ)}, 1')
        bp_switch(A, vFl, vFl2, T_SEQ, RING // segstep)
        for c in range(8):
            A(f'buffer_load_dwordx4 {v(KMF + c * 4, 4)}, {v(vKM)}, {srd(SRD_WS)}, {s(T_KM)} offen '
              f'offset:{c * 256}{SC}')
        for T in range(4):
            A(f'buffer_load_dwordx2 {v(VMF + T * 4, 2)}, {v(vVM)}, {srd(SRD_WS)}, {s(T_VM)} offen '
              f'offset:{T * 256}{SC}')
        emit_poll_issue(A, vFq, vFp, T_FPR)
        A(f's_add_u32 {s(T_KM)}, {s(T_KM)}, {65536 * segstep}')
        A(f's_add_u32 {s(T_VM)}, {s(T_VM)}, {65536 * segstep}')
        for c in range(8):
            A(f's_waitcnt vmcnt({5 + 7 - c})')
            cin = '0' if c == 0 else v(SM, 16)
            A(f'v_mfma_f32_32x32x16_bf16 {v(SM, 16)}, {v(KMF + c * 4, 4)}, {v(QF + c * 4, 4)}, {cin}')
        for i in range(4):
            A(f'v_mul_f32 {v(SM + i)}, s40, {v(SM + i)}')
        A(f'v_max3_f32 {v(mx)}, {v(mx)}, {v(SM)}, {v(SM + 1)}')
        A(f'v_max3_f32 {v(mx)}, {v(mx)}, {v(SM + 2)}, {v(SM + 3)}')
        A(f'v_mov_b32 {v(vT1)}, {v(mx)}')
        A(f'v_permlane32_swap_b32 {v(mx)}, {v(vT1)}')
        A(f'v_max_f32 {v(mx)}, {v(mx)}, {v(vT1)}')
        vals = [SX + i for i in range(16)] + [SM + i for i in range(4)]
        for r in vals:
            A(f'v_sub_f32 {v(r)}, {v(r)}, {v(mx)}')
        for r in vals:
            A(f'v_exp_f32 {v(r)}, {v(r)}')
        sm = vT1
        A(f'v_add_f32 {v(sm)}, {v(vals[0])}, {v(vals[1])}')
        A(f'v_add_f32 {v(vT2)}, {v(vals[2])}, {v(vals[3])}')
        for i in range(4, 20, 2):
            A(f'v_add_f32 {v(sm)}, {v(sm)}, {v(vals[i])}')
            A(f'v_add_f32 {v(vT2)}, {v(vT2)}, {v(vals[i + 1])}')
        A(f'v_add_f32 {v(sm)}, {v(sm)}, {v(vT2)}')
        A(f'v_mov_b32 {v(vT2)}, {v(sm)}')
        A(f'v_permlane32_swap_b32 {v(sm)}, {v(vT2)}')
        A(f'v_add_f32 {v(sm)}, {v(sm)}, {v(vT2)}')
        A(f'v_rcp_f32 {v(sm)}, {v(sm)}')
        for r in vals:
            A(f'v_mul_f32 {v(r)}, {v(r)}, {v(sm)}')
        for j in range(10):
            A(f'v_cvt_pk_bf16_f32 {v(PB + j)}, {v(vals[2 * j])}, {v(vals[2 * j + 1])}')
        A('s_waitcnt vmcnt(0)')

        def pack(T):
            out = []
            for f in (0, 1):
                n = T * 2 + f
                d = KMF + n * 4
                for j in range(4):
                    r0 = OA + T * 16 + f * 8 + 2 * j
                    out.append(f'v_cvt_pk_bf16_f32 {v(d + j)}, {v(r0)}, {v(r0 + 1)}')
                out.append(f'ds_write_b128 {v(vLw)}, {v(d, 4)} offset:{n * 1024}')
            return out

        fill = []
        for T in range(4):
            o = v(OA + T * 16, 16)
            for m in (f'v_mfma_f32_32x32x16_bf16 {o}, {v(VF + T * 8, 4)}, {v(PB, 4)}, 0',
                      f'v_mfma_f32_32x32x16_bf16 {o}, {v(VF + T * 8 + 4, 4)}, {v(PB + 4, 4)}, {o}',
                      f'v_mfma_f32_32x32x16_bf16 {o}, {v(VMF + T * 4, 4)}, {v(PB + 8, 4)}, {o}'):
                A(m)
                for _ in range(4):
                    if fill:
                        A(fill.pop(0))
            if T >= 1:
                fill += pack(T - 1)
        emit_poll_check(A, vFq)
        A(f's_cselect_b32 {s(T_PREF)}, 1, 0')
        A(f's_cmp_eq_u32 {s(T_CNT)}, 0')
        A(f's_cselect_b32 {s(T_PREF)}, 0, {s(T_PREF)}')
        A(f's_cmp_eq_u32 {s(T_PREF)}, 1')
        set_src(True)
        for x in fill + pack(3):
            A(x)
        A('s_waitcnt lgkmcnt(0)')
        A('s_barrier')
        NK, NS, D2, R2 = 32, 64, 7, 8
        ACC = [SX, SM]

        lag = 4 if TUNE.get('kmaj', 1) else None
        seq, pre, reads, waits, t0_done = mfma_plan(NK, lag, D2, R2)

        def rd(c, slot):
            A(f'ds_read_b128 {v(KMF + slot * 4, 4)}, {v(vRd)} offset:{c * 1024}')

        def cvt_tile(t):
            out = []
            for f in (0, 1):
                d = TMP + (t * 2 + f) * 4
                for j in range(4):
                    r0 = ACC[t] + f * 8 + 2 * j
                    out.append(f'v_cvt_pk_bf16_f32 {v(d + j)}, {v(r0)}, {v(r0 + 1)}')
                out.append(f'buffer_store_dwordx4 {v(d, 4)}, {v(vOut)}, {srd(SRD_WS)}, {s(T_OUT)} offen '
                           f'offset:{(t * 2 + f) * 128}{"" if LOCAL[0] else SC}')
            return out

        for x in pre:
            rd(*x)
        pl = load_list()
        early = cvt_tile(0)
        for n in range(NS):
            t, c, slot = seq[n]
            for x in reads[n]:
                rd(*x)
            if n in waits:
                A(f's_waitcnt lgkmcnt({waits[n]})')
            cin = '0' if c == 0 else v(ACC[t], 16)
            A(f'v_mfma_f32_32x32x16_bf16 {v(ACC[t], 16)}, {a((t * 32 + c) * 4, 4)}, '
              f'{v(KMF + slot * 4, 4)}, {cin}')
            if pl and (n % 2 == 0):
                A(pl.pop(0))
            if n >= t0_done + (4 if lag is None else 2):
                for _ in range(2 if lag is None else 4):
                    if early:
                        A(early.pop(0))
        assert not pl
        for x in early:
            A(x)
        A(f'v_xor_b32 {v(vRd)}, 32768, {v(vRd)}')
        A(f'v_xor_b32 {v(vLw)}, 32768, {v(vLw)}')
        for x in cvt_tile(1):
            A(x)
        adv(A, T_OUT, 8 * PSEG * segstep, wout)
        A(f's_mov_b32 {s(T_PEND)}, 1')
        pf = A.newlabel('aopf')
        A(f's_cmp_eq_u32 {s(T_PREF)}, 1')
        A(f's_cbranch_scc1 {pf}')
        A('s_waitcnt vmcnt(0)')
        signal()
        A(f's_cmp_eq_u32 {s(T_CNT)}, 0')
        A(f's_cbranch_scc1 {end_label}')
        emit_poll_block(A, vFv, vFp, T_FPR, T_SPIN, end_label, sleep=4)
        set_src(None)
        for x in load_list():
            A(x)
        A.label(pf)
        adv_in()
        A(f's_branch {top}')

    if s_pure is not None:
        gl = A.newlabel('aog')
        A(f's_cmp_eq_u32 {s(s_pure)}, 0')
        A(f's_cbranch_scc1 {gl}')
        LOCAL[0] = True
        body()
        LOCAL[0] = False
        A.label(gl)
    body()


def ln_wave(A, srd_x, s_x, s_xn, ntask, x_step, xn_step, between=None):
    vLane = 2
    vX, vN, m, q, t = 6, 7, 8, 9, 10
    XF, PN = 16, 48
    LD = 64
    A(f'v_and_b32 v3, 3, {v(vLane)}')
    A(f'v_lshrrev_b32 v4, 2, {v(vLane)}')
    A(f'v_lshlrev_b32 {v(vX)}, 10, v3')
    A(f'v_lshl_add_u32 {v(vX)}, v4, 4, {v(vX)}')
    A(f'v_lshlrev_b32 {v(vN)}, 9, v4')
    A(f'v_lshl_add_u32 {v(vN)}, v3, 4, {v(vN)}')
    A('s_mov_b32 s40, 0xffff0000')
    for i in range(ntask):
        for j in range(4):
            A(f'buffer_load_dwordx4 {v(LD + i * 16 + j * 4, 4)}, {v(vX)}, {srd(srd_x)}, {s(s_x)} offen offset:{j * 256}')
        A(f's_add_u32 {s(s_x)}, {s(s_x)}, {x_step}')
    nb = between() if between else 0

    def reduce(r):
        A(f'v_add_f32_dpp {v(r)}, {v(r)}, {v(r)} row_ror:4 row_mask:0xf bank_mask:0xf')
        A(f'v_add_f32_dpp {v(r)}, {v(r)}, {v(r)} row_ror:8 row_mask:0xf bank_mask:0xf')
        A(f'v_mov_b32 {v(t)}, {v(r)}')
        A(f'v_permlane16_swap_b32 {v(r)}, {v(t)}')
        A(f'v_add_f32 {v(r)}, {v(r)}, {v(t)}')
        A(f'v_mov_b32 {v(t)}, {v(r)}')
        A(f'v_permlane32_swap_b32 {v(r)}, {v(t)}')
        A(f'v_add_f32 {v(r)}, {v(r)}, {v(t)}')

    def rb(r):
        A(f'v_cvt_pk_bf16_f32 {v(r)}, {v(r)}, {v(r)}')
        A(f'v_lshlrev_b32 {v(r)}, 16, {v(r)}')

    for i in range(ntask):
        S = LD + i * 16
        A(f's_waitcnt vmcnt({4 * (ntask - 1) + nb})')
        for j in range(16):
            A(f'v_lshlrev_b32 {v(XF + 2 * j)}, 16, {v(S + j)}')
            A(f'v_and_b32 {v(XF + 2 * j + 1)}, s40, {v(S + j)}')
        A(f'v_add_f32 {v(m)}, {v(XF)}, {v(XF + 1)}')
        A(f'v_add_f32 {v(q)}, {v(XF + 2)}, {v(XF + 3)}')
        for j in range(4, 32, 2):
            A(f'v_add_f32 {v(m)}, {v(m)}, {v(XF + j)}')
            A(f'v_add_f32 {v(q)}, {v(q)}, {v(XF + j + 1)}')
        A(f'v_add_f32 {v(m)}, {v(m)}, {v(q)}')
        reduce(m)
        A(f'v_mul_f32 {v(m)}, {f32bits(1.0 / 512):#x}, {v(m)}')
        A(f'v_mov_b32 {v(q)}, 0')
        A(f'v_mov_b32 v11, 0')
        for j in range(0, 32, 2):
            A(f'v_sub_f32 v12, {v(XF + j)}, {v(m)}')
            A(f'v_sub_f32 v13, {v(XF + j + 1)}, {v(m)}')
            A(f'v_fmac_f32 {v(q)}, v12, v12')
            A(f'v_fmac_f32 v11, v13, v13')
        A(f'v_add_f32 {v(q)}, {v(q)}, v11')
        reduce(q)
        A(f'v_mul_f32 {v(q)}, {f32bits(1.0 / 512):#x}, {v(q)}')
        rb(q)
        A(f'v_add_f32 {v(q)}, {f32bits(1e-5):#x}, {v(q)}')
        rb(q)
        A(f'v_sqrt_f32 {v(q)}, {v(q)}')
        rb(q)
        A(f'v_rcp_f32 {v(q)}, {v(q)}')
        rb(m)
        for j in range(32):
            A(f'v_sub_f32 {v(XF + j)}, {v(XF + j)}, {v(m)}')
        for j in range(16):
            A(f'v_cvt_pk_bf16_f32 {v(S + j)}, {v(XF + 2 * j)}, {v(XF + 2 * j + 1)}')
        for j in range(16):
            A(f'v_lshlrev_b32 {v(XF + 2 * j)}, 16, {v(S + j)}')
            A(f'v_and_b32 {v(XF + 2 * j + 1)}, s40, {v(S + j)}')
        for j in range(32):
            A(f'v_mul_f32 {v(XF + j)}, {v(XF + j)}, {v(q)}')
        for j in range(16):
            A(f'v_cvt_pk_bf16_f32 {v(S + j)}, {v(XF + 2 * j)}, {v(XF + 2 * j + 1)}')
        for j in range(4):
            A(f's_add_u32 s41, {s(s_xn)}, {j * 8192}')
            A(f'buffer_store_dwordx4 {v(S + j * 4, 4)}, {v(vN)}, {srd(SRD_WS)}, s41 offen sc1')
        A(f's_add_u32 {s(s_xn)}, {s(s_xn)}, {xn_step}')


def rlw_role(A, KBN, srd_xin, srd_xout, do_ln, steps, end_label, flags, xin_sc1=True, xout_sc1=True):
    R_P, R_XI, R_XO, R_XN, R_CNT, R_FIN, R_FOUT, R_T0, R_SPIN, R_SEQ = 24, 25, 26, 27, 28, 29, 30, 31, 35, 36
    vLane = 2
    vP, vX, vN, vFl, vFv, vOne = 6, 7, 8, 11, 12, 13
    vSy, vC1, vSt = 14, 4, 5
    m, q, t, q2, d0, d1 = 16, 17, 18, 19, 20, 21
    XF, AC, UP, PK = 24, 40, 56, 64
    LD = 72
    sig = flags.get('signal', True)
    A(f'v_and_b32 v3, 1, {v(vLane)}')
    A(f'v_lshrrev_b32 v4, 1, {v(vLane)}')
    A(f's_lshl_b32 {s(R_T0)}, {s(S_WAVE)}, 1')
    A(f'v_add_u32 v3, {s(R_T0)}, v3')
    A(f'v_lshlrev_b32 {v(vX)}, 10, v3')
    A(f'v_lshl_add_u32 {v(vX)}, v4, 4, {v(vX)}')
    A(f'v_lshlrev_b32 {v(vN)}, 9, v4')
    A(f'v_lshl_add_u32 {v(vN)}, v3, 4, {v(vN)}')
    A(f'v_lshrrev_b32 v5, 2, v3')
    A(f'v_lshlrev_b32 {v(vP)}, 12, v5')
    A(f'v_lshl_add_u32 {v(vP)}, v4, 6, {v(vP)}')
    A(f'v_and_b32 v5, 3, v3')
    A(f'v_lshl_add_u32 {v(vP)}, v5, 4, {v(vP)}')
    A(f'v_mov_b32 {v(vOne)}, 1')
    A('s_mov_b32 s40, 0xffff0000')
    A(f'v_min_u32 {v(vFl)}, {flags["n"] - 1}, {v(vLane)}')
    A(f'v_lshlrev_b32 {v(vFl)}, 2, {v(vFl)}')
    sync_setup(A, vSy, vC1)
    A(f's_mov_b32 {s(R_SEQ)}, 1')
    A('s_barrier')

    def unpack(dst, src, n):
        for j in range(n):
            A(f'v_lshlrev_b32 {v(dst + 2 * j)}, 16, {v(src + j)}')
            A(f'v_and_b32 {v(dst + 2 * j + 1)}, s40, {v(src + j)}')

    def pack(dst, src, n):
        for j in range(n):
            A(f'v_cvt_pk_bf16_f32 {v(dst + j)}, {v(src + 2 * j)}, {v(src + 2 * j + 1)}')

    def reduce(r):
        for sh in (2, 4, 8):
            A(f'v_add_f32_dpp {v(r)}, {v(r)}, {v(r)} row_ror:{sh} row_mask:0xf bank_mask:0xf')
        A(f'v_mov_b32 {v(t)}, {v(r)}')
        A(f'v_permlane16_swap_b32 {v(r)}, {v(t)}')
        A(f'v_add_f32 {v(r)}, {v(r)}, {v(t)}')
        A(f'v_mov_b32 {v(t)}, {v(r)}')
        A(f'v_permlane32_swap_b32 {v(r)}, {v(t)}')
        A(f'v_add_f32 {v(r)}, {v(r)}, {v(t)}')

    def rb(r):
        A(f'v_cvt_pk_bf16_f32 {v(r)}, {v(r)}, {v(r)}')
        A(f'v_lshlrev_b32 {v(r)}, 16, {v(r)}')

    top = A.newlabel('rwtop')
    A.label(top)
    xs = ' sc1' if xin_sc1 else ''
    if not xin_sc1:
        for j in (0, 1):
            A(f'buffer_load_dwordx4 {v(LD + j * 4, 4)}, {v(vX)}, {srd(srd_xin)}, {s(R_XI)} offen offset:{j * 512}')
    emit_wait_ready(A, vFv, vFl, R_FIN, R_SEQ, R_SPIN, R_T0, vSy, end_label, sleep=TUNE.get('sl', 3))
    A(f's_mov_b32 {s(R_T0)}, {s(R_P)}')
    for kb in range(KBN):
        for j in (0, 1):
            A(f'buffer_load_dwordx4 {v(LD + 8 + kb * 8 + j * 4, 4)}, {v(vP)}, {srd(SRD_WS)}, {s(R_T0)} offen '
              f'offset:{j * 2048} sc1')
        if kb + 1 < KBN:
            A(f's_add_u32 {s(R_T0)}, {s(R_T0)}, {PSEG}')
    nx = 0
    if xin_sc1:
        nx = 2
        for j in (0, 1):
            A(f'buffer_load_dwordx4 {v(LD + j * 4, 4)}, {v(vX)}, {srd(srd_xin)}, {s(R_XI)} offen '
              f'offset:{j * 512}{xs}')
    A(f's_add_u32 {s(R_P)}, {s(R_P)}, {steps["p"]}')
    A(f's_add_u32 {s(R_XI)}, {s(R_XI)}, {steps["x"]}')
    A(f's_add_u32 {s(R_FIN)}, {s(R_FIN)}, {flags["fin_step"]}')
    A(f's_add_u32 {s(R_SEQ)}, {s(R_SEQ)}, 1')
    for kb in range(KBN):
        A(f's_waitcnt vmcnt({2 * (KBN - 1 - kb) + nx})')
        if kb == 0:
            unpack(AC, LD + 8, 8)
        else:
            for j in (0, 1):
                unpack(UP, LD + 8 + kb * 8 + j * 4, 4)
                for e in range(8):
                    A(f'v_add_f32 {v(AC + j * 8 + e)}, {v(AC + j * 8 + e)}, {v(UP + e)}')
    pack(PK, AC, 8)
    unpack(AC, PK, 8)
    A('s_waitcnt vmcnt(0)')
    unpack(XF, LD, 8)
    for e in range(16):
        A(f'v_add_f32 {v(XF + e)}, {v(XF + e)}, {v(AC + e)}')
    pack(PK, XF, 8)
    for j in (0, 1):
        A(f'buffer_store_dwordx4 {v(PK + j * 4, 4)}, {v(vX)}, {srd(srd_xout)}, {s(R_XO)} offen offset:{j * 512}'
          f'{" sc1" if xout_sc1 else ""}')
    if do_ln:
        unpack(XF, PK, 8)
        A(f'v_add_f32 {v(m)}, {v(XF)}, {v(XF + 1)}')
        A(f'v_add_f32 {v(q)}, {v(XF + 2)}, {v(XF + 3)}')
        for e in range(4, 16, 2):
            A(f'v_add_f32 {v(m)}, {v(m)}, {v(XF + e)}')
            A(f'v_add_f32 {v(q)}, {v(q)}, {v(XF + e + 1)}')
        A(f'v_add_f32 {v(m)}, {v(m)}, {v(q)}')
        reduce(m)
        A(f'v_mul_f32 {v(m)}, {f32bits(1.0 / 512):#x}, {v(m)}')
        for e in range(16):
            A(f'v_sub_f32 {v(AC + e)}, {v(XF + e)}, {v(m)}')
        A(f'v_mul_f32 {v(q)}, {v(AC)}, {v(AC)}')
        A(f'v_mul_f32 {v(q2)}, {v(AC + 1)}, {v(AC + 1)}')
        for e in range(2, 16, 2):
            A(f'v_fmac_f32 {v(q)}, {v(AC + e)}, {v(AC + e)}')
            A(f'v_fmac_f32 {v(q2)}, {v(AC + e + 1)}, {v(AC + e + 1)}')
        A(f'v_add_f32 {v(q)}, {v(q)}, {v(q2)}')
        rb(m)
        reduce(q)
        for e in range(16):
            A(f'v_sub_f32 {v(AC + e)}, {v(XF + e)}, {v(m)}')
        A(f'v_mul_f32 {v(q)}, {f32bits(1.0 / 512):#x}, {v(q)}')
        rb(q)
        A(f'v_add_f32 {v(q)}, {f32bits(1e-5):#x}, {v(q)}')
        rb(q)
        A(f'v_sqrt_f32 {v(q)}, {v(q)}')
        rb(q)
        A(f'v_rcp_f32 {v(q)}, {v(q)}')
        pack(LD, AC, 8)
        unpack(AC, LD, 8)
        for e in range(16):
            A(f'v_mul_f32 {v(AC + e)}, {v(AC + e)}, {v(q)}')
        pack(LD, AC, 8)
        A(f's_add_u32 {s(R_T0)}, {s(R_XN)}, 16384')
        A(f'buffer_store_dwordx4 {v(LD, 4)}, {v(vN)}, {srd(SRD_WS)}, {s(R_XN)} offen sc1')
        A(f'buffer_store_dwordx4 {v(LD + 4, 4)}, {v(vN)}, {srd(SRD_WS)}, {s(R_T0)} offen sc1')
    A(f's_add_u32 {s(R_XO)}, {s(R_XO)}, {steps["x"]}')
    A(f's_add_u32 {s(R_XN)}, {s(R_XN)}, {steps["xn"]}')
    if sig:
        A('s_waitcnt vmcnt(0)')
        emit_signal_agg(A, R_FOUT, vOne, vSy, vC1, vSt, R_T0)
        A(f's_add_u32 {s(R_FOUT)}, {s(R_FOUT)}, {flags["fout_step"]}')
    A('s_barrier')
    A(f's_sub_u32 {s(R_CNT)}, {s(R_CNT)}, 1')
    A(f's_cmp_lg_u32 {s(R_CNT)}, 0')
    A(f's_cbranch_scc1 {top}')
    A(f's_branch {end_label}')


def rl8_role(A, KBN, srd_xin, srd_xout, do_ln, steps, end_label, flags, xin_sc1=True, xout_sc1=True):
    R_P, R_XI, R_XO, R_XN, R_CNT, R_FIN, R_FOUT, R_T0, R_SPIN, R_SEQ = 24, 25, 26, 27, 28, 29, 30, 31, 35, 36
    vLane = 2
    vP, vX, vN, vFl, vFv, vOne = 6, 7, 8, 11, 12, 13
    vSy, vC1, vSt = 14, 4, 5
    m, q, t, q2, d0, d1 = 16, 17, 18, 19, 20, 21
    XF, AC, UP, PK = 24, 40, 56, 64
    LD = 72
    sig = flags.get('signal', True)
    vLw, vLr = 9, 10
    A('v_and_b32 v3, 7, v0')
    A('v_lshrrev_b32 v4, 3, v0')
    A(f'v_lshlrev_b32 {v(vLr)}, 4, v3')
    A(f's_lshl_b32 {s(R_T0)}, {s(S_WAVE)}, 2')
    A(f'v_add_u32 {v(vLw)}, {s(R_T0)}, {v(vLr)}')
    A(f'v_lshlrev_b32 {v(vX)}, 10, v3')
    A(f'v_lshl_add_u32 {v(vX)}, v4, 4, {v(vX)}')
    A(f'v_lshlrev_b32 {v(vN)}, 9, v4')
    A(f'v_lshl_add_u32 {v(vN)}, v3, 4, {v(vN)}')
    A(f'v_lshrrev_b32 v5, 2, v3')
    A(f'v_lshlrev_b32 {v(vP)}, 12, v5')
    A(f'v_lshl_add_u32 {v(vP)}, v4, 6, {v(vP)}')
    A(f'v_and_b32 v5, 3, v3')
    A(f'v_lshl_add_u32 {v(vP)}, v5, 4, {v(vP)}')
    A(f'v_mov_b32 {v(vOne)}, 1')
    A('s_mov_b32 s40, 0xffff0000')
    A(f'v_min_u32 {v(vFl)}, {flags["n"] - 1}, {v(vLane)}')
    A(f'v_lshlrev_b32 {v(vFl)}, 2, {v(vFl)}')
    sync_setup(A, vSy, vC1)
    A(f's_mov_b32 {s(R_SEQ)}, 1')
    A('s_barrier')

    def unpack(dst, src, n):
        for j in range(n):
            A(f'v_lshlrev_b32 {v(dst + 2 * j)}, 16, {v(src + j)}')
            A(f'v_and_b32 {v(dst + 2 * j + 1)}, s40, {v(src + j)}')

    def pack(dst, src, n):
        for j in range(n):
            A(f'v_cvt_pk_bf16_f32 {v(dst + j)}, {v(src + 2 * j)}, {v(src + 2 * j + 1)}')

    nred = [0]

    def reduce(r):
        off = 128 * nred[0]
        nred[0] += 1
        A(f'v_add_f32_dpp {v(r)}, {v(r)}, {v(r)} row_ror:8 row_mask:0xf bank_mask:0xf')
        A(f'v_mov_b32 {v(t)}, {v(r)}')
        A(f'v_permlane16_swap_b32 {v(r)}, {v(t)}')
        A(f'v_add_f32 {v(r)}, {v(r)}, {v(t)}')
        A(f'v_mov_b32 {v(t)}, {v(r)}')
        A(f'v_permlane32_swap_b32 {v(r)}, {v(t)}')
        A(f'v_add_f32 {v(r)}, {v(r)}, {v(t)}')
        A(f'ds_write_b32 {v(vLw)}, {v(r)} offset:{off}')
        A('s_waitcnt lgkmcnt(0)')
        A('s_barrier')
        A(f'ds_read_b128 {v(UP, 4)}, {v(vLr)} offset:{off}')
        A('s_waitcnt lgkmcnt(0)')
        A(f'v_add_f32 {v(UP)}, {v(UP)}, {v(UP + 1)}')
        A(f'v_add_f32 {v(UP + 2)}, {v(UP + 2)}, {v(UP + 3)}')
        A(f'v_add_f32 {v(r)}, {v(UP)}, {v(UP + 2)}')

    def rb(r):
        A(f'v_cvt_pk_bf16_f32 {v(r)}, {v(r)}, {v(r)}')
        A(f'v_lshlrev_b32 {v(r)}, 16, {v(r)}')

    top = A.newlabel('rwtop')
    A.label(top)
    xs = ' sc1' if xin_sc1 else ''
    if not xin_sc1:
        for j in (0, 1):
            A(f'buffer_load_dwordx4 {v(LD + j * 4, 4)}, {v(vX)}, {srd(srd_xin)}, {s(R_XI)} offen offset:{j * 512}')
    emit_wait_ready(A, vFv, vFl, R_FIN, R_SEQ, R_SPIN, R_T0, vSy, end_label, sleep=TUNE.get('sl', 3))
    A(f's_mov_b32 {s(R_T0)}, {s(R_P)}')
    for kb in range(KBN):
        for j in (0, 1):
            A(f'buffer_load_dwordx4 {v(LD + 8 + kb * 8 + j * 4, 4)}, {v(vP)}, {srd(SRD_WS)}, {s(R_T0)} offen '
              f'offset:{j * 2048} sc1')
        if kb + 1 < KBN:
            A(f's_add_u32 {s(R_T0)}, {s(R_T0)}, {PSEG}')
    nx = 0
    if xin_sc1:
        nx = 2
        for j in (0, 1):
            A(f'buffer_load_dwordx4 {v(LD + j * 4, 4)}, {v(vX)}, {srd(srd_xin)}, {s(R_XI)} offen '
              f'offset:{j * 512}{xs}')
    adv(A, R_P, steps['p'], flags.get('win'))
    A(f's_add_u32 {s(R_XI)}, {s(R_XI)}, {steps["x"]}')
    A(f's_add_u32 {s(R_FIN)}, {s(R_FIN)}, {flags["fin_step"]}')
    A(f's_add_u32 {s(R_SEQ)}, {s(R_SEQ)}, 1')
    for kb in range(KBN):
        A(f's_waitcnt vmcnt({2 * (KBN - 1 - kb) + nx})')
        if kb == 0:
            unpack(AC, LD + 8, 8)
        else:
            for j in (0, 1):
                unpack(UP, LD + 8 + kb * 8 + j * 4, 4)
                for e in range(8):
                    A(f'v_add_f32 {v(AC + j * 8 + e)}, {v(AC + j * 8 + e)}, {v(UP + e)}')
    pack(PK, AC, 8)
    unpack(AC, PK, 8)
    A('s_waitcnt vmcnt(0)')
    unpack(XF, LD, 8)
    for e in range(16):
        A(f'v_add_f32 {v(XF + e)}, {v(XF + e)}, {v(AC + e)}')
    pack(PK, XF, 8)
    for j in (0, 1):
        A(f'buffer_store_dwordx4 {v(PK + j * 4, 4)}, {v(vX)}, {srd(srd_xout)}, {s(R_XO)} offen offset:{j * 512}'
          f'{" sc1" if xout_sc1 else ""}')
    if do_ln:
        unpack(XF, PK, 8)
        A(f'v_add_f32 {v(m)}, {v(XF)}, {v(XF + 1)}')
        A(f'v_add_f32 {v(q)}, {v(XF + 2)}, {v(XF + 3)}')
        for e in range(4, 16, 2):
            A(f'v_add_f32 {v(m)}, {v(m)}, {v(XF + e)}')
            A(f'v_add_f32 {v(q)}, {v(q)}, {v(XF + e + 1)}')
        A(f'v_add_f32 {v(m)}, {v(m)}, {v(q)}')
        reduce(m)
        A(f'v_mul_f32 {v(m)}, {f32bits(1.0 / 512):#x}, {v(m)}')
        for e in range(16):
            A(f'v_sub_f32 {v(AC + e)}, {v(XF + e)}, {v(m)}')
        A(f'v_mul_f32 {v(q)}, {v(AC)}, {v(AC)}')
        A(f'v_mul_f32 {v(q2)}, {v(AC + 1)}, {v(AC + 1)}')
        for e in range(2, 16, 2):
            A(f'v_fmac_f32 {v(q)}, {v(AC + e)}, {v(AC + e)}')
            A(f'v_fmac_f32 {v(q2)}, {v(AC + e + 1)}, {v(AC + e + 1)}')
        A(f'v_add_f32 {v(q)}, {v(q)}, {v(q2)}')
        rb(m)
        reduce(q)
        for e in range(16):
            A(f'v_sub_f32 {v(AC + e)}, {v(XF + e)}, {v(m)}')
        A(f'v_mul_f32 {v(q)}, {f32bits(1.0 / 512):#x}, {v(q)}')
        rb(q)
        A(f'v_add_f32 {v(q)}, {f32bits(1e-5):#x}, {v(q)}')
        rb(q)
        A(f'v_sqrt_f32 {v(q)}, {v(q)}')
        rb(q)
        A(f'v_rcp_f32 {v(q)}, {v(q)}')
        pack(LD, AC, 8)
        unpack(AC, LD, 8)
        for e in range(16):
            A(f'v_mul_f32 {v(AC + e)}, {v(AC + e)}, {v(q)}')
        pack(LD, AC, 8)
        A(f's_add_u32 {s(R_T0)}, {s(R_XN)}, 16384')
        A(f'buffer_store_dwordx4 {v(LD, 4)}, {v(vN)}, {srd(SRD_WS)}, {s(R_XN)} offen sc1')
        A(f'buffer_store_dwordx4 {v(LD + 4, 4)}, {v(vN)}, {srd(SRD_WS)}, {s(R_T0)} offen sc1')
    A(f's_add_u32 {s(R_XO)}, {s(R_XO)}, {steps["x"]}')
    A(f's_add_u32 {s(R_XN)}, {s(R_XN)}, {steps["xn"]}')
    if sig:
        A('s_waitcnt vmcnt(0)')
        emit_signal_agg(A, R_FOUT, vOne, vSy, vC1, vSt, R_T0)
        A(f's_add_u32 {s(R_FOUT)}, {s(R_FOUT)}, {flags["fout_step"]}')
    A('s_barrier')
    A(f's_sub_u32 {s(R_CNT)}, {s(R_CNT)}, 1')
    A(f's_cmp_lg_u32 {s(R_CNT)}, 0')
    A(f's_cbranch_scc1 {top}')
    A(f's_branch {end_label}')
```

```python
from asmdsl import v, a, s
from layout import *
from roles import *

M_ME, M_K, M_V, M_KM, M_VM, M_TP, M_TM, M_CTL, M_FPR, M_FOUT = 24, 25, 26, 27, 28, 29, 30, 31, 32, 33
M_STEP, M_T0, M_T1, M_T2, M_SPIN = 34, 35, 36, 37, 38
M_PW, M_PR, M_MP, M_MRS, M_MRD = 39, 40, 41, 42, 43
SRD_M0 = 44
M_PUBX = 48
M_ODD = 52
M_C = 54
M_PW2 = 56
M_XCC = 57
M_FAST = 59
M_PRO, M_SIG = 90, 91
M_SRC, M_EXP, M_DST, M_HS = 50, 51, 55, 58
M_FP2 = 58
M_CAR = 57
M_PROMPT = 31
M_FOK = 59
M_K2, M_EXO, M_SIG2 = 50, 27, 28

STAMP_NAMES = []
L_MEM = 131072
L_KX = L_MEM + 8192
L_VX = L_KX + 8192
L_QK = L_VX + 8192
L_O = L_QK + 4096
L_SEL = L_O + 2048
L_END = L_SEL + 1024

vOne, vL16, vLane = 0, 1, 2
vTouch = 2
vIdx, vWl, vHi, vQKw, vQr, vKMr, vOw, vPw, vPub, vHD, vVMw, vFl, vTa, vFv, vVr, vMw, vEx = range(3, 20)
t0, t1, t2, t3 = 20, 21, 22, 23
VX = 24
MF = 32
ACC = 64
S1 = 88
E = 120
QA, KA, VA = ACC, ACC + 8, ACC + 16
ONES = E + 4

RBLOCKS = ([('q', i) for i in (0, 2, 1, 3, 5, 7)] + [('k', i) for i in (0, 2, 1, 3, 5, 7)]
           + [('v', i) for i in (0, 2, 1, 3, 4, 6, 5, 7)]
           + [('o', 1, 0), ('o', 1, 1), ('o', 2, 0), ('o', 2, 1)])
LBLOCKS = [('q', 4), ('q', 6), ('k', 4), ('k', 6), ('o', 0, 0), ('o', 0, 1), ('o', 3, 0), ('o', 3, 1)]


def rreg(blk, t, n=8, off=0):
    r = (RBLOCKS.index(blk) * 2 + t) * 8 + off
    return a(r, n) if r < 256 else v(128 + r - 256, n)


def loff(blk, t):
    return LBLOCKS.index(blk) * 4096 + t * 2048


def hi(x):
    return x - L_MEM


def team_role(A, end_label, flags=None, force_slow=False, nsteps=NSEG, stamp=False, purity='ctl', tune=None):
    tune = tune or {}
    vS, vZ, vCh, vWq, vWoD, vTr0, vTr1 = 32, 33, 34, 35, 36, 37, 38
    A(f'v_bfe_u32 {v(vS)}, {v(vLane)}, 2, 1')
    A(f'v_bfe_u32 {v(t0)}, {v(vLane)}, 5, 1')
    A(f'v_lshl_add_u32 {v(vS)}, {v(t0)}, 1, {v(vS)}')
    A(f'v_bfe_u32 {v(t0)}, {v(vLane)}, 4, 1')
    A(f'v_lshl_add_u32 {v(vS)}, {v(t0)}, 2, {v(vS)}')
    A(f'v_bfe_u32 {v(vZ)}, {v(vLane)}, 3, 1')
    A(f'v_and_b32 {v(vCh)}, 3, {v(vLane)}')
    A(f'v_lshlrev_b32 {v(t0)}, 1, {v(t0)}')
    A(f'v_xor_b32 {v(vCh)}, {v(vCh)}, {v(t0)}')
    A(f'v_lshl_add_u32 {v(t1)}, {v(vS)}, 4, {v(vZ)}')
    A(f'v_lshlrev_b32 {v(vWq)}, 13, {v(t1)}')
    A(f'v_lshl_add_u32 {v(vWq)}, {v(vCh)}, 4, {v(vWq)}')
    A(f'v_lshl_add_u32 {v(t1)}, {v(vZ)}, 3, {v(vS)}')
    A(f'v_lshlrev_b32 {v(vWoD)}, 10, {v(t1)}')
    A(f'v_lshl_add_u32 {v(vWoD)}, {v(vCh)}, 4, {v(vWoD)}')
    A(f'v_bfe_u32 {v(t0)}, {v(vLane)}, 2, 3')
    A(f'v_bfe_u32 {v(t1)}, {v(vLane)}, 5, 1')
    A(f'v_lshl_add_u32 {v(t0)}, {v(t1)}, 4, {v(t0)}')
    A(f'v_lshlrev_b32 {v(vTr0)}, 6, {v(t0)}')
    A(f'v_and_b32 {v(t0)}, 3, {v(vLane)}')
    A(f'v_lshl_add_u32 {v(vTr0)}, {v(t0)}, 3, {v(vTr0)}')
    A(f'v_bfe_u32 {v(t1)}, {v(vLane)}, 4, 1')
    A(f'v_lshl_add_u32 {v(vTr0)}, {v(t1)}, 5, {v(vTr0)}')
    A(f's_lshl_b32 {s(M_T0)}, {s(S_WAVE)}, 15')
    A(f'v_add_u32 {v(vTr0)}, {s(M_T0)}, {v(vTr0)}')
    A(f'v_xor_b32 {v(vTr1)}, 32, {v(vTr0)}')
    A(f'v_add_u32 {v(vWl)}, {s(M_T0)}, {v(vL16)}')

    if purity == 'ctl':
        A(f's_getreg_b32 {s(M_XCC)}, hwreg(HW_REG_XCC_ID)')
        A(f's_and_b32 {s(M_XCC)}, {s(M_XCC)}, 15')
        A(f's_add_u32 {s(M_XCC)}, {s(M_XCC)}, 1')
        A(f'v_mov_b32 {v(t0)}, {s(M_XCC)}')
        A(f's_lshl_b32 {s(M_T0)}, {s(M_ME)}, 2')
        A(f's_add_u32 {s(M_T0)}, {s(M_T0)}, {s(M_CTL)}')
        A('s_mov_b64 exec, 1')
        A(f'buffer_store_dword {v(t0)}, off, {srd(SRD_WS)}, {s(M_T0)} sc1')
        A('s_mov_b64 exec, -1')

    A(f's_lshl_b32 {s(M_T2)}, {s(M_ME)}, 8')
    A(f's_lshl_b32 {s(M_T0)}, {s(S_WAVE)}, 6')
    A(f's_add_u32 {s(M_T2)}, {s(M_T2)}, {s(M_T0)}')
    A(f's_lshl_b32 {s(M_T1)}, {s(M_ME)}, 17')
    A(f's_lshl_b32 {s(M_T0)}, {s(S_WAVE)}, 8')
    A(f's_add_u32 {s(M_T1)}, {s(M_T1)}, {s(M_T0)}')
    def early_consts():
        n_, G_, hi_, row_ = 44, 45, 46, 47
        A(f'v_and_b32 {v(n_)}, 15, {v(vLane)}')
        A(f'v_lshrrev_b32 {v(G_)}, 4, {v(vLane)}')
        A(f'v_and_b32 {v(hi_)}, 1, {v(vLane)}')
        A(f'v_lshrrev_b32 {v(row_)}, 1, {v(n_)}')
        A(f'v_cmp_eq_u32 {s(M_ODD, 2)}, 1, {v(hi_)}')
        A(f'v_mov_b32 {v(t0)}, 0x4444')
        A(f'v_mov_b32 {v(t1)}, 0xeeee')
        A(f'v_cndmask_b32 {v(vIdx)}, {v(t0)}, {v(t1)}, {s(M_ODD, 2)}')
        A(f'v_add_u32 {v(vHi)}, {L_MEM}, {v(vL16)}')
        A(f's_lshl_b32 {s(M_T0)}, {s(S_WAVE)}, 11')
        A(f'v_add_u32 {v(vMw)}, {s(M_T0)}, {v(vHi)}')
        A(f's_add_u32 {s(M_DST)}, {s(M_T0)}, {L_KX}')
        A(f'v_lshlrev_b32 {v(vVr)}, 11, {v(G_)}')
        A(f'v_lshl_add_u32 {v(vVr)}, {v(n_)}, 4, {v(vVr)}')
        A(f's_lshl_b32 {s(M_T0)}, {s(S_WAVE)}, 9')
        A(f'v_add_u32 {v(vVr)}, {s(M_T0)}, {v(vVr)}')
        A(f's_lshl_b32 {s(M_T0)}, {s(S_WAVE)}, 10')
        A(f's_add_u32 {s(M_T0)}, {s(M_T0)}, {L_QK}')
        A(f'v_add_u32 {v(vEx)}, {s(M_T0)}, {v(vL16)}')
        A(f's_cmp_ge_u32 {s(S_WAVE)}, 2')
        A(f's_cselect_b32 {s(M_EXP)}, {s(M_KM)}, {s(M_VM)}')
        A(f's_and_b32 {s(M_T0)}, {s(S_WAVE)}, 1')
        A(f's_lshl_b32 {s(M_T0)}, {s(M_T0)}, 10')
        A(f's_add_u32 {s(M_EXP)}, {s(M_EXP)}, {s(M_T0)}')
        A(f'v_lshrrev_b32 {v(t0)}, 3, {v(n_)}')
        A(f'v_lshlrev_b32 {v(vQKw)}, 7, {v(t0)}')
        A(f'v_lshl_add_u32 {v(vQKw)}, {v(G_)}, 5, {v(vQKw)}')
        A(f'v_and_b32 {v(t0)}, 7, {v(n_)}')
        A(f'v_lshl_add_u32 {v(vQKw)}, {v(t0)}, 1, {v(vQKw)}')
        A(f's_lshl_b32 {s(M_T0)}, {s(S_WAVE)}, 9')
        A(f's_add_u32 {s(M_T0)}, {s(M_T0)}, {L_QK}')
        A(f'v_add_u32 {v(vQKw)}, {s(M_T0)}, {v(vQKw)}')
        A(f'v_lshl_add_u32 {v(t0)}, {v(G_)}, 3, {v(row_)}')
        A(f'v_lshlrev_b32 {v(vQr)}, 4, {v(t0)}')
        A(f'v_add_u32 {v(vQr)}, {L_QK}, {v(vQr)}')
        A(f'v_lshrrev_b32 {v(t0)}, 2, {v(n_)}')
        A(f'v_lshl_add_u32 {v(t0)}, {v(t0)}, 1, {v(hi_)}')
        A(f'v_lshl_add_u32 {v(t1)}, {v(G_)}, 3, {v(t0)}')
        A(f'v_lshlrev_b32 {v(vKMr)}, 4, {v(t1)}')
        A(f'v_add_u32 {v(vKMr)}, {L_QK + 2048}, {v(vKMr)}')
        A(f'v_lshlrev_b32 {v(vOw)}, 8, {v(hi_)}')
        A(f'v_lshl_add_u32 {v(vOw)}, {v(row_)}, 5, {v(vOw)}')
        A(f'v_lshl_add_u32 {v(vOw)}, {v(G_)}, 3, {v(vOw)}')
        A(f's_lshl_b32 {s(M_T0)}, {s(S_WAVE)}, 9')
        A(f's_add_u32 {s(M_T0)}, {s(M_T0)}, {L_O}')
        A(f'v_add_u32 {v(vOw)}, {s(M_T0)}, {v(vOw)}')
        A(f'v_lshrrev_b32 {v(t0)}, 2, {v(n_)}')
        A(f'v_lshlrev_b32 {v(vPw)}, 14, {v(t0)}')
        A(f'v_lshrrev_b32 {v(t0)}, 1, {v(G_)}')
        A(f'v_lshl_add_u32 {v(vPw)}, {v(t0)}, 13, {v(vPw)}')
        A(f'v_and_b32 {v(t0)}, 1, {v(G_)}')
        A(f'v_lshl_add_u32 {v(vPw)}, {v(t0)}, 11, {v(vPw)}')
        A(f'v_and_b32 {v(t0)}, 3, {v(n_)}')
        A(f'v_lshl_add_u32 {v(vPw)}, {v(t0)}, 4, {v(vPw)}')
        A(f's_lshl_b32 {s(M_T0)}, {s(S_WAVE)}, 16')
        A(f'v_add_u32 {v(vPw)}, {s(M_T0)}, {v(vPw)}')
        A(f'v_bfe_u32 {v(t0)}, {v(n_)}, 1, 1')
        A(f'v_lshlrev_b32 {v(vPub)}, 8, {v(t0)}')
        A(f'v_lshl_add_u32 {v(vPub)}, {v(hi_)}, 4, {v(vPub)}')
        A(f'v_and_b32 {v(t0)}, 1, {v(G_)}')
        A(f'v_lshl_add_u32 {v(vPub)}, {v(t0)}, 5, {v(vPub)}')
        A(f's_lshr_b32 {s(M_T0)}, {s(M_ME)}, 1')
        A(f's_lshl_b32 {s(M_T0)}, {s(M_T0)}, 9')
        A(f's_and_b32 {s(M_T1)}, {s(M_ME)}, 1')
        A(f's_lshl_b32 {s(M_T1)}, {s(M_T1)}, 7')
        A(f's_add_u32 {s(M_T0)}, {s(M_T0)}, {s(M_T1)}')
        A(f's_and_b32 {s(M_T1)}, {s(S_WAVE)}, 1')
        A(f's_lshl_b32 {s(M_T1)}, {s(M_T1)}, 6')
        A(f's_add_u32 {s(M_T0)}, {s(M_T0)}, {s(M_T1)}')
        A(f's_lshr_b32 {s(M_T1)}, {s(S_WAVE)}, 1')
        A(f's_lshl_b32 {s(M_T1)}, {s(M_T1)}, 3')
        A(f's_add_u32 {s(M_T0)}, {s(M_T0)}, {s(M_T1)}')
        A(f'v_add_u32 {v(vPub)}, {s(M_T0)}, {v(vPub)}')
        if tune.get('pubY'):
            A(f'v_lshrrev_b32 {v(t0)}, 2, {v(n_)}')
            A(f'v_lshlrev_b32 {v(vPw)}, 14, {v(t0)}')
            A(f'v_lshl_add_u32 {v(vPw)}, {v(G_)}, 12, {v(vPw)}')
            A(f'v_and_b32 {v(t0)}, 3, {v(n_)}')
            A(f'v_lshl_add_u32 {v(vPw)}, {v(t0)}, 4, {v(vPw)}')
            A(f's_lshl_b32 {s(M_T0)}, {s(S_WAVE)}, 16')
            A(f'v_add_u32 {v(vPw)}, {s(M_T0)}, {v(vPw)}')
            A(f'v_bfe_u32 {v(t0)}, {v(n_)}, 1, 1')
            A(f'v_lshlrev_b32 {v(vPub)}, 8, {v(t0)}')
            A(f'v_lshl_add_u32 {v(vPub)}, {v(hi_)}, 4, {v(vPub)}')
            A(f'v_and_b32 {v(t0)}, 1, {v(G_)}')
            A(f'v_lshl_add_u32 {v(vPub)}, {v(t0)}, 3, {v(vPub)}')
            A(f's_lshr_b32 {s(M_T0)}, {s(M_ME)}, 1')
            A(f's_lshl_b32 {s(M_T0)}, {s(M_T0)}, 9')
            A(f's_and_b32 {s(M_T1)}, {s(M_ME)}, 1')
            A(f's_lshl_b32 {s(M_T1)}, {s(M_T1)}, 7')
            A(f's_add_u32 {s(M_T0)}, {s(M_T0)}, {s(M_T1)}')
            A(f's_lshl_b32 {s(M_T1)}, {s(S_WAVE)}, 5')
            A(f's_add_u32 {s(M_T0)}, {s(M_T0)}, {s(M_T1)}')
            A(f'v_add_u32 {v(vPub)}, {s(M_T0)}, {v(vPub)}')
        A(f's_mov_b32 {s(M_PUBX)}, 0x000f000f')
        A(f's_mov_b32 {s(M_PUBX + 1)}, 0')
        A(f'v_lshrrev_b32 {v(t0)}, 2, {v(n_)}')
        A(f'v_lshlrev_b32 {v(vHD)}, 7, {v(t0)}')
        A(f'v_and_b32 {v(t0)}, 3, {v(n_)}')
        A(f'v_lshl_add_u32 {v(vHD)}, {v(t0)}, 4, {v(vHD)}')
        A(f'v_lshl_add_u32 {v(vHD)}, {v(G_)}, 9, {v(vHD)}')
        A(f's_lshl_b32 {s(M_T0)}, {s(S_WAVE)}, 11')
        A(f'v_add_u32 {v(vHD)}, {s(M_T0)}, {v(vHD)}')
        A(f'v_lshrrev_b32 {v(t0)}, 1, {v(G_)}')
        A(f'v_lshlrev_b32 {v(vVMw)}, 10, {v(t0)}')
        A(f'v_lshl_add_u32 {v(vVMw)}, {v(n_)}, 3, {v(vVMw)}')
        A(f'v_and_b32 {v(t0)}, 1, {v(G_)}')
        A(f'v_lshl_add_u32 {v(vVMw)}, {v(t0)}, 2, {v(vVMw)}')
        A(f's_lshl_b32 {s(M_T0)}, {s(S_WAVE)}, 8')
        A(f's_add_u32 {s(M_T0)}, {s(M_T0)}, {L_QK}')
        A(f'v_add_u32 {v(vVMw)}, {s(M_T0)}, {v(vVMw)}')
        A(f'v_lshlrev_b32 {v(vTa)}, 7, {v(n_)}')
        A(f's_lshl_b32 {s(M_T0)}, {s(S_WAVE)}, 11')
        A(f's_add_u32 {s(M_T0)}, {s(M_T0)}, 262144')
        A(f'v_add_u32 {v(vTa)}, {s(M_T0)}, {v(vTa)}')
        A(f'v_and_b32 {v(t0)}, 1, {v(G_)}')
        A(f'v_lshl_add_u32 {v(vTa)}, {v(t0)}, 25, {v(vTa)}')
        assert VT - KB == 1 << 25
        for u in range(4):
            A(f'v_cmp_eq_u32 vcc, {2 * u}, {v(n_)}')
            A(f'v_mov_b32 {v(t0)}, 0x3f80')
            A(f'v_cndmask_b32 {v(48 + u)}, 0, {v(t0)}, vcc')
            A(f'v_cmp_eq_u32 vcc, {2 * u + 1}, {v(n_)}')
            A(f'v_mov_b32 {v(t0)}, 0x3f800000')
            A(f'v_cndmask_b32 {v(48 + u)}, {v(48 + u)}, {v(t0)}, vcc')
            A(f'v_mov_b32 {v(ONES + u)}, 0x3f803f80')
        A(f's_mov_b32 {s(M_C)}, {f32bits((128 ** -0.5) * 1.4426950408889634):#x}')
        A(f'v_lshlrev_b32 {v(vFl)}, 6, {v(hi_)}')
        A(f'v_lshlrev_b32 {v(t2)}, 10, {v(row_)}')
        A(f'v_lshl_add_u32 {v(t0)}, {v(G_)}, 1, {v(hi_)}')
        A(f'v_lshl_add_u32 {v(t2)}, {v(t0)}, 1, {v(t2)}')
        A(f's_lshl_b32 {s(M_T0)}, {s(S_WAVE)}, 8')
        A(f'v_add_u32 {v(t2)}, {s(M_T0)}, {v(t2)}')
        for f in (0, 1):
            for sl in range(8):
                A(f'buffer_load_ushort {v(96 + f * 8 + sl)}, {v(t2)}, {srd(SRD_M0)}, 0 offen '
                  f'offset:{f * 16 + sl * 32}')

    def late_consts():
        A(f'ds_write_b128 {v(vHi)}, {v(48, 4)} offset:{hi(L_SEL)}')
        for r in range(8):
            A(f'v_lshl_or_b32 {v(MF + r)}, {v(96 + 2 * r + 1)}, 16, {v(96 + 2 * r)}')
        A(f's_lshl_b32 {s(M_T0)}, {s(S_WAVE)}, 11')
        A(f'v_add_u32 {v(t2)}, {s(M_T0)}, {v(vHi)}')
        A(f'ds_write_b128 {v(t2)}, {v(MF, 4)}')
        A(f'ds_write_b128 {v(t2)}, {v(MF + 4, 4)} offset:1024')
        A(f'v_lshlrev_b32 {v(t3)}, 2, {v(vLane)}')
        A(f'v_and_b32 {v(t3)}, 127, {v(t3)}')
        A(f'v_mov_b32 {v(vOne)}, 1')
        A(f'v_mov_b32 {v(vFv)}, 0')
        A(f's_mov_b32 {s(M_STEP)}, 0')

    A(f's_lshl_b32 {s(M_SPIN)}, {s(S_WAVE)}, 15')
    A(f's_lshl_b32 {s(M_STEP)}, {s(S_WAVE)}, 13')
    A(f's_add_u32 {s(M_STEP)}, {s(M_STEP)}, {L_MEM}')
    vTx0, vTx1 = 39, 40
    A(f's_sub_u32 {s(M_T0)}, {s(M_STEP)}, {s(M_SPIN)}')
    A(f'v_add_u32 {v(vTx0)}, {s(M_T0)}, {v(vTr0)}')
    A(f'v_xor_b32 {v(vTx1)}, 32, {v(vTx0)}')
    order = RBLOCKS + LBLOCKS
    NSL = 10
    slot_of = {}
    for n, blk in enumerate(RBLOCKS):
        slot_of[blk] = n % NSL
    for n, blk in enumerate(LBLOCKS):
        slot_of[blk] = n

    A(f's_and_b32 {s(M_PR)}, {s(S_WAVE)}, 1')
    A(f's_lshl_b32 {s(M_PR)}, {s(M_PR)}, 12')
    A(f's_and_b32 {s(M_MP)}, {s(S_WAVE)}, 2')

    def issue(pair):
        sl = slot_of[pair[0]]
        for p, blk in enumerate(pair):
            base, off = (M_SPIN, sl * 4096) if sl < 8 else (M_STEP, (sl - 8) * 4096)
            if blk[0] == 'o':
                A(f's_add_u32 m0, {s(base)}, {off + p * 4096}')
            else:
                A(f's_xor_b32 {s(M_T0)}, {s(M_PR)}, {p * 4096}')
                A(f's_add_u32 {s(M_T0)}, {s(M_T0)}, {s(base)}')
                A(f's_add_u32 m0, {s(M_T0)}, {off}')
            for d in range(4):
                if d:
                    A('s_add_u32 m0, m0, 1024')
                if blk[0] == 'o':
                    _, tp, ks = blk
                    A(f's_add_u32 {s(M_T0)}, {s(M_T1)}, {tp * 64 + (64 * ks + 16 * d) * 1024}')
                    A(f'buffer_load_dwordx4 {v(vWoD)}, {srd(SRD_D)}, {s(M_T0)} offen lds')
                else:
                    m, i = blk
                    if d == 0:
                        A(f's_xor_b32 {s(M_PW)}, {s(M_MP)}, {i >> 1}')
                        A(f's_lshl_b32 {s(M_PW)}, {s(M_PW)}, 20')
                        A(f's_add_u32 {s(M_PW)}, {s(M_PW)}, {s(M_T2)}')
                    A(f's_add_u32 {s(M_T0)}, {s(M_PW)}, {(8 * (i & 1) + 2 * d) * 8192}')
                    A(f'buffer_load_dwordx4 {v(vWq)}, {srd(dict(q=SRD_A, k=SRD_B, v=SRD_C)[m])}, '
                      f'{s(M_T0)} offen lds')

    def consume(blk):
        sl = slot_of[blk]
        a0, a1, base = (vTr0, vTr1, sl * 4096) if sl < 8 else (vTx0, vTx1, (sl - 8) * 4096)
        isl = blk in LBLOCKS
        for t in (0, 1):
            for half in (0, 1):
                for pp in (0, 1):
                    o = half * 4 + pp * 2
                    dst = v(64 + t * 8 + o, 2) if isl else rreg(blk, t, 2, o)
                    A(f'ds_read_b64_tr_b16 {dst}, {v(a0 if t == 0 else a1)} offset:{base + half * 2048 + pp * 512}')
        A('s_waitcnt lgkmcnt(0)')
        if isl:
            for q in range(4):
                A(f'ds_write_b128 {v(vWl)}, {v(64 + q * 4, 4)} offset:{base + q * 1024}')
            A('s_waitcnt lgkmcnt(0)')

    busy = {}
    pairs = [tuple(order[n:n + 2]) for n in range(0, len(order), 2)]
    pending = list(pairs)
    inflight = []

    def try_issue():
        for pr in list(pending):
            sl = slot_of[pr[0]]
            if sl in busy:
                continue
            if any(slot_of[b[0]] == sl and pending.index(b) < pending.index(pr) for b in pending):
                continue
            issue(pr)
            busy[sl] = pr
            inflight.append(pr)
            pending.remove(pr)

    pstamp(A, 0, 41)
    A('s_waitcnt vmcnt(0)')
    try_issue()
    A(f's_mov_b64 s[60:61], s[{M_T1}:{M_T2}]')
    early_consts()
    A(f's_mov_b64 s[{M_T1}:{M_T2}], s[60:61]')
    while inflight:
        pr = inflight.pop(0)
        A(f's_waitcnt vmcnt({8 * len(inflight) + (16 if pairs.index(pr) < NSL // 2 else 0)})')
        consume(pr[0])
        consume(pr[1])
        if pr[0] in RBLOCKS:
            del busy[slot_of[pr[0]]]
        try_issue()
    assert not pending
    pstamp(A, 1, 41)
    A('s_barrier')
    if callable(purity):
        purity(A)

    pstamp(A, 2, 41)
    late_consts()
    pstamp(A, 3, 41)
    slow = A.newlabel('tslow')
    P = dict(flags=flags, end_label=end_label, nsteps=nsteps, stamp=stamp, tune=tune)
    if purity == 'ctl':
        emit_poll_block(A, t0, t3, M_CTL, M_SPIN, end_label)
        A(f'v_cmp_eq_u32 vcc, {s(M_XCC)}, {v(t0)}')
        A('s_cmp_eq_u64 vcc, exec')
    else:
        A(f's_cmp_eq_u32 {s(M_FAST)}, 1')
    if not force_slow:
        A(f's_cbranch_scc0 {slow}')
        team_loop(A, P, fast=True)
    A.label(slow)
    team_loop(A, P, fast=False)


def team_loop(A, P, fast):
    flags, end_label, nsteps, tune = P['flags'], P['end_label'], P['nsteps'], P['tune']
    XS = '' if fast else ' sc1'
    poll_in = bool(flags and flags.get('poll_in'))
    has_sig = bool(flags and flags.get('signal'))

    def smf(acc, af, b):
        return f'v_smfmac_f32_16x16x64_bf16 {v(acc, 4)}, {v(af, 4)}, {b}, {v(vIdx)}'

    def zero(r, n):
        return [f'v_mov_b64 {v(r + i, 2)}, 0' for i in range(0, n, 2)]

    def emit(lst):
        for x in lst:
            for y in x.split('|'):
                A(y)

    def mix(ms, fs, per=2):
        for m in ms:
            A(m)
            for _ in range(per):
                if fs:
                    emit([fs.pop(0)])

    def lread(blk, t, reg):
        return [f'ds_read_b128 {v(reg, 4)}, {v(vWl)} offset:{loff(blk, t)}',
                f'ds_read_b128 {v(reg + 4, 4)}, {v(vWl)} offset:{loff(blk, t) + 1024}']

    nst = [0]

    def st(name):
        if P['stamp']:
            A(f'{"s_memrealtime" if tune.get("rt") else "s_memtime"} {s(60 + 2 * nst[0], 2)}')
            if fast:
                STAMP_NAMES.append(name)
            nst[0] += 1

    def st_flush():
        if not P['stamp']:
            return
        sk = A.newlabel('tsk')
        A(f's_cmp_lg_u32 {s(M_STEP)}, {P["stamp"]}')
        A(f's_cbranch_scc1 {sk}')
        A('s_waitcnt lgkmcnt(0)')
        A(f's_lshl_b32 {s(M_T0)}, {s(M_ME)}, 2')
        A(f's_add_u32 {s(M_T0)}, {s(M_T0)}, {s(S_WAVE)}')
        A(f's_lshl_b32 {s(M_T0)}, {s(M_T0)}, 7')
        A(f's_add_u32 {s(M_T0)}, {s(M_T0)}, {TCTL + 4096}')
        A('s_mov_b64 exec, 1')
        for i in range(nst[0]):
            A(f'v_mov_b32 {v(VX)}, {s(60 + 2 * i)}')
            A(f'buffer_store_dword {v(VX)}, off, {srd(SRD_WS)}, {s(M_T0)} offset:{4 * i}')
        A('s_mov_b64 exec, -1')
        A('s_waitcnt vmcnt(0)')
        A.label(sk)

    def prep_step():
        emit(zero(ACC, 24))
        for i in (4, 6):
            for t in (0, 1):
                emit(lread(('q', i), t, S1 + (i - 4 + t) * 8))
        A(f's_and_b32 {s(M_T0)}, {s(M_STEP)}, 3')
        A(f's_lshl_b32 {s(M_T0)}, {s(M_T0)}, 18')
        A(f's_add_u32 {s(M_T0)}, {s(M_T0)}, {s(M_TP)}')
        A(f's_lshl_b32 {s(M_T1)}, {s(M_ME)}, 6')
        A(f's_add_u32 {s(M_PW)}, {s(M_T0)}, {s(M_T1)}')
        A(f's_add_u32 {s(M_PW2)}, {s(M_PW)}, 4096')
        A(f's_lshl_b32 {s(M_T1)}, {s(M_ME)}, 13')
        A(f's_add_u32 {s(M_PR)}, {s(M_T0)}, {s(M_T1)}')
        A(f's_lshl_b32 {s(M_T1)}, {s(S_WAVE)}, 11')
        A(f's_add_u32 {s(M_PR)}, {s(M_PR)}, {s(M_T1)}')
        A(f's_add_u32 {s(M_T0)}, {s(M_STEP)}, 1')
        A(f's_and_b32 {s(M_T0)}, {s(M_T0)}, 3')
        A(f's_lshl_b32 {s(M_T0)}, {s(M_T0)}, 13')
        A(f's_add_u32 {s(M_MP)}, {s(M_T0)}, {s(M_TM)}')
        A(f's_xor_b32 {s(M_MRS)}, {s(M_MP)}, {2 << 13}')
        A(f's_sub_u32 {s(M_K2)}, {s(M_K)}, {1024 - 64}')

    NEG = E

    def wait_flags():
        if poll_in:
            ok = A.newlabel('tfok')
            A(f's_cmp_lg_u32 {s(S_WAVE)}, 3')
            A(f's_cbranch_scc1 {ok}')
            emit_poll_check(A, vFv)
            A(f's_cbranch_scc1 {ok}')
            emit_poll_block(A, vFv, vFl, M_FPR, M_SPIN, end_label, sleep=4)
            A.label(ok)
            A(f's_add_u32 {s(M_FPR)}, {s(M_FPR)}, 1024')
            A(f's_cmp_eq_u32 {s(S_WAVE)}, 3')
            A(f's_cselect_b32 {s(M_FP2)}, {s(M_FPR)}, {OOB}')

    EXR = t0

    assert TM % 32768 == 0
    top = A.newlabel('ttop')
    A(f's_mov_b32 {s(M_SIG)}, {OOB}')
    A(f's_mov_b32 {s(M_SIG2)}, {OOB}')
    A(f's_mov_b32 {s(M_CAR)}, {OOB}')
    A(f's_mov_b32 {s(M_PROMPT)}, 0')
    A(f's_mov_b32 {s(M_PRO)}, {OOB}')
    A(f's_mov_b32 {s(M_EXO)}, {OOB}')
    A(f's_mov_b32 m0, {s(M_DST)}')
    wait_flags()
    pstamp(A, 4, 41)
    prep_step()
    A(f's_branch {top}')
    p2 = A.newlabel('tp2')
    p2b = A.newlabel('tp2b')
    fslow = A.newlabel('tfslow')
    c0 = VX

    def p2_loads():
        for j in range(2):
            A(f'buffer_load_dwordx4 {v(MF + j * 4, 4)}, {v(vL16)}, {srd(SRD_WS)}, {s(M_MRD)} offen '
              f'offset:{j * 1024} sc1')

    A.label(p2)
    p2_loads()
    A('s_mov_b64 exec, -1')
    A(f's_add_u32 {s(M_SPIN)}, {s(M_SPIN)}, 1')
    A(f's_cmp_gt_u32 {s(M_SPIN)}, {SPIN_LIMIT * 4}')
    A(f's_cbranch_scc1 {end_label}')
    A.label(p2b)
    for j in range(2):
        A(f's_waitcnt vmcnt({1 - j})')
        A(f'ds_write_b128 {v(vMw)}, {v(MF + j * 4, 4)} offset:{j * 1024}')
        r = MF + j * 4
        if j == 0:
            A(f'v_max3_u32 {v(c0)}, {v(r)}, {v(r + 1)}, {v(r + 2)}')
            A(f'v_max_u32 {v(c0)}, {v(c0)}, {v(r + 3)}')
        else:
            A(f'v_max3_u32 {v(c0)}, {v(c0)}, {v(r)}, {v(r + 1)}')
            A(f'v_max3_u32 {v(c0)}, {v(c0)}, {v(r + 2)}, {v(r + 3)}')
    A(f'v_cmp_eq_u32 vcc, -1, {v(c0)}')
    A('s_mov_b64 exec, vcc')
    A(f's_cbranch_vccnz {p2}')
    A('s_mov_b64 exec, -1')
    if P['stamp']:
        A(f'{"s_memrealtime" if tune.get("rt") else "s_memtime"} {s(60 + 2 * 14, 2)}')
        nst[0] = 15
        st_flush()
        nst[0] = 0
    if poll_in:
        A(f's_cmp_eq_u32 {s(M_FOK)}, 0')
        A(f's_cbranch_scc1 {fslow}')
    A.label(top)
    st('top')
    def qq(i, t):
        b = v(S1 + (i - 4 + t) * 8, 8) if i in (4, 6) else rreg(('q', i), t)
        return smf(QA + t * 4, MF + i * 4, b)

    def kq(i, t):
        b = v(S1 + (i - 4 + t) * 8, 8) if i in (4, 6) else rreg(('k', i), t)
        return smf(KA + t * 4, MF + i * 4, b)

    def vq(i, t):
        return smf(VA + t * 4, MF + i * 4, rreg(('v', i), t))

    def epi(acc, sel):
        f = []
        for t in (0, 1):
            r = acc + t * 4
            f += [f'v_add_f32 {v(r)}, {v(r)}, {v(r + 1)}', f'v_add_f32 {v(r + 2)}, {v(r + 2)}, {v(r + 3)}',
                  f'v_cvt_pk_bf16_f32 {v(r)}, {v(r)}, {v(r + 2)}|'
                  f'ds_write_b16 {v(vQKw)}, {v(r)} offset:{sel * 2048 + t * 256}|'
                  f'ds_write_b16_d16_hi {v(vQKw)}, {v(r)} offset:{sel * 2048 + t * 256 + 16}']
        return f

    km_ = [kq(i, t) for i in (2, 3, 4, 6, 5, 7) for t in (0, 1)]
    vs_ = [vq(i, t) for i in range(2, 8) for t in (0, 1)]
    KXR, QF = S1, S1 + 16
    nyoung = 4
    early_sig = has_sig and tune.get('sigpos', 'b2k') == 'early'
    hyb = has_sig and tune.get('sigpos', 'b2k') == 'hyb'
    xa = [VX, VX + 1, VX + 2]
    A(qq(0, 0))
    A(f'v_xor_b32 {v(xa[0])}, 2048, {v(vMw)}')
    A(qq(0, 1))
    A(f'v_xor_b32 {v(xa[1])}, 4096, {v(vMw)}')
    A(f'v_xor_b32 {v(xa[2])}, 6144, {v(vMw)}')
    A('s_waitcnt lgkmcnt(0)')
    A('s_barrier')
    st('B1')
    qorder = (4, 6, 2, 3, 5, 7)
    for i in qorder:
        A(f'ds_read_b128 {v(MF + i * 4, 4)}, {v(xa[(i >> 1) - 1])} offset:{(i & 1) * 1024}')
    kl = []
    for i in (4, 6):
        for t in (0, 1):
            kl += lread(('k', i), t, S1 + (i - 4 + t) * 8)
    own = [qq(1, 0), qq(1, 1)] + [kq(i, t) for i in (0, 1) for t in (0, 1)] + [vq(i, t) for i in (0, 1) for t in (0, 1)]
    A(own[0])
    A(f'buffer_load_dwordx4 {v(vHD)}, {srd(SRD_WS)}, {s(M_K)} offen sc1 lds')
    emit(own[1:4])
    A(f'buffer_load_dwordx4 {v(vHD)}, {srd(SRD_WS)}, {s(M_K2)} offen offset:1024 sc1 lds')
    emit(own[4:7])
    A(f'buffer_store_dwordx4 {v(EXR, 4)}, {v(vL16)}, {srd(SRD_WS)}, {s(M_EXO)} offen sc1')
    emit(own[7:9])
    if early_sig:
        emit_signal(A, M_SIG, vOne)
        nyoung += 1
    if hyb:
        emit_signal(A, M_SIG2, vOne)
        nyoung += 1
    A(own[9])
    ops = {1: [f'buffer_load_dwordx4 {v(VX, 4)}, {v(vVr)}, {srd(SRD_WS)}, {s(M_V)} offen sc1'],
           3: [f'buffer_load_dwordx4 {v(VX + 4, 4)}, {v(vVr)}, {srd(SRD_WS)}, {s(M_V)} offen offset:256 sc1'],
           5: [f'buffer_load_dword {v(vTouch)}, {v(vTa)}, {srd(SRD_WS)}, {s(M_K)} offen sc1']}
    kops = {}
    if poll_in:
        kops[2] = [f'buffer_load_dword {v(vFv)}, {v(vFl)}, {srd(SRD_WS)}, {s(M_FP2)} offen sc1']
        nyoung += 1
    nk = 0
    for n, i in enumerate(qorder):
        A(f's_waitcnt lgkmcnt({5 - n + nk})')
        A(qq(i, 0))
        if n in (1, 2):
            emit(kl[(n - 1) * 4:(n - 1) * 4 + 2])
        A(qq(i, 1))
        if n in (1, 2):
            emit(kl[(n - 1) * 4 + 2:(n - 1) * 4 + 4])
            nk += 4
        emit(ops.get(n, []))
    st('Qissued')
    fq = epi(QA, 0)
    for n in range(11):
        if n == 4:
            A('s_waitcnt lgkmcnt(0)')
        A(km_[n])
        if 4 <= n < 10:
            emit([fq.pop(0)])
        emit(kops.get(n, []))
    A(f's_waitcnt vmcnt({nyoung}) lgkmcnt(0)')
    A('s_barrier')
    st('B2q')
    rq = [f'ds_read_b128 {v(QF, 4)}, {v(vQr)}']
    rq += [f'ds_read_b128 {v(KXR + f * 4, 4)}, {v(vHi)} offset:{hi(L_KX) + f * 1024}' for f in range(2)]
    rq += [f'ds_read_b128 {v(QF + 4, 4)}, {v(vQr)} offset:512']
    rq += [f'ds_read_b128 {v(KXR + f * 4, 4)}, {v(vHi)} offset:{hi(L_KX) + f * 1024}' for f in range(2, 4)]
    rq += [f'ds_read_b128 {v(QF + ks * 4, 4)}, {v(vQr)} offset:{ks * 512}' for ks in (2, 3)]
    emit(rq[0:2])
    rq = rq[2:]
    mix([km_[11]] + vs_[0:2], rq, 2)
    A(vs_[2])
    A(f'buffer_store_dwordx4 {v(NEG, 4)}, {v(vL16)}, {srd(SRD_WS)}, {s(M_PRO)} offen offset:1024{XS}')
    A(vs_[3])
    st('Kissued')
    SX = QA
    SMA = E

    def sx(ks, t):
        cin = '0' if ks == 0 else v(SX + t * 4, 4)
        return (f'v_mfma_f32_16x16x32_bf16 {v(SX + t * 4, 4)}, {v(KXR + ((ks & 1) * 2 + t) * 4, 4)}, '
                f'{v(QF + ks * 4, 4)}, {cin}')

    fk = epi(KA, 1)
    A('s_waitcnt lgkmcnt(2)')
    mix([sx(0, 0), sx(0, 1)], fk, 2)
    A(f'ds_read_b128 {v(KXR, 4)}, {v(vHi)} offset:{hi(L_KX) + 4096}')
    A(f'ds_read_b128 {v(KXR + 4, 4)}, {v(vHi)} offset:{hi(L_KX) + 5120}')
    mix([sx(1, 0), sx(1, 1)], fk, 2)
    assert not fk
    A(f'ds_read_b128 {v(KXR + 8, 4)}, {v(vHi)} offset:{hi(L_KX) + 6144}')
    A(f'ds_read_b128 {v(KXR + 12, 4)}, {v(vHi)} offset:{hi(L_KX) + 7168}')
    emit(vs_[4:6])
    if hyb:
        hw = A.newlabel('thw')
        hb = A.newlabel('thb')
        A(f's_cmp_eq_u32 {s(M_PROMPT)}, 1')
        A(f's_cbranch_scc1 {hw}')
        A.label(hb)
        A('s_waitcnt lgkmcnt(2)')
    else:
        A('s_waitcnt lgkmcnt(2)' if early_sig else f's_waitcnt vmcnt({nyoung}) lgkmcnt(2)')
    A('s_barrier')
    st('B2k')
    KMF = MF
    rk = [f'ds_read_b128 {v(KMF + ks * 4, 4)}, {v(vKMr)} offset:{ks * 512}' for ks in range(4)]
    emit(rk[0:2])
    A(sx(2, 0))
    emit(rk[2:4])
    A(sx(2, 1))
    if has_sig and not early_sig:
        emit_signal(A, M_SIG, vOne)
    A('s_waitcnt lgkmcnt(4)')
    A(sx(3, 0))
    A(f'buffer_store_dwordx4 {v(NEG, 4)}, {v(vL16)}, {srd(SRD_WS)}, {s(M_PRO)} offen{XS}')
    A(sx(3, 1))
    A(vs_[6])

    def sm(ks):
        cin = '0' if ks == 0 else v(SMA, 4)
        return f'v_mfma_f32_16x16x32_bf16 {v(SMA, 4)}, {v(KMF + ks * 4, 4)}, {v(QF + ks * 4, 4)}, {cin}'

    mt, m2 = t0, t1
    tv = [SX + i for i in range(8)]
    PB = KA
    LT = KA + 4
    ft = [f'v_max3_f32 {v(mt)}, {v(tv[0])}, {v(tv[1])}, {v(tv[2])}',
          f'v_max3_f32 {v(m2)}, {v(tv[3])}, {v(tv[4])}, {v(tv[5])}',
          f'v_max3_f32 {v(mt)}, {v(mt)}, {v(tv[6])}, {v(tv[7])}']
    A('s_waitcnt lgkmcnt(0)')
    A(sm(0))
    A(sm(1))
    A(sm(2))
    mix([sm(3)], ft, 2)
    st('Smissued')
    fl = []
    for ks in (0, 1):
        for t in (0, 1):
            fl += lread(('o', 0, ks), t, S1 + (t * 2 + ks) * 8)
    A(vs_[7])
    emit(ft)
    emit(fl[0:4])
    A(vs_[8])
    A(f'v_max3_f32 {v(m2)}, {v(m2)}, {v(SMA)}, {v(SMA + 1)}')
    A(f'v_max_f32 {v(mt)}, {v(mt)}, {v(m2)}')
    A(f'v_mov_b32 {v(m2)}, {v(mt)}')
    A(vs_[9])
    emit(fl[4:6])
    A(f'v_permlane16_swap_b32 {v(mt)}, {v(m2)}')
    A(f'v_max_f32 {v(mt)}, {v(mt)}, {v(m2)}')
    A(f'v_mov_b32 {v(m2)}, {v(mt)}')
    A(vs_[10])
    emit(fl[6:8])
    A(f'v_permlane32_swap_b32 {v(mt)}, {v(m2)}')
    A(f'v_max_f32 {v(mt)}, {v(mt)}, {v(m2)}')
    A(vs_[11])
    A(f'v_mul_f32 {v(mt)}, {s(M_C)}, {v(mt)}')
    for r in tv:
        A(f'v_fma_f32 {v(r)}, {v(r)}, {s(M_C)}, -{v(mt)}')
    for r in tv:
        A(f'v_exp_f32 {v(r)}, {v(r)}')
    A(f'v_fma_f32 {v(SMA)}, {v(SMA)}, {s(M_C)}, -{v(mt)}')
    for j in range(4):
        A(f'v_cvt_pk_bf16_f32 {v(PB + j)}, {v(tv[2 * j])}, {v(tv[2 * j + 1])}')
    A(f'v_fma_f32 {v(SMA + 1)}, {v(SMA + 1)}, {s(M_C)}, -{v(mt)}')
    A(f'v_exp_f32 {v(SMA)}, {v(SMA)}')
    OT = QA
    PM = SMA + 2
    A(f's_waitcnt vmcnt({3 + (1 if poll_in else 0) + (1 if has_sig and not early_sig else 0)})')
    A(f'v_mfma_f32_16x16x32_bf16 {v(LT, 4)}, {v(ONES, 4)}, {v(PB, 4)}, 0')
    A(f'v_exp_f32 {v(SMA + 1)}, {v(SMA + 1)}')
    A(f'v_mfma_f32_16x16x32_bf16 {v(OT, 4)}, {v(VX, 4)}, {v(PB, 4)}, 0')
    A(f'v_cvt_pk_bf16_f32 {v(t2)}, {v(SMA)}, {v(SMA + 1)}')
    A(f'v_add_f32 {v(VA)}, {v(VA)}, {v(VA + 1)}')
    A(f'v_mfma_f32_16x16x32_bf16 {v(OT + 4, 4)}, {v(VX + 4, 4)}, {v(PB, 4)}, 0')
    A(f'v_cndmask_b32 {v(PM)}, {v(t2)}, 0, {s(M_ODD, 2)}')
    A(f'v_cndmask_b32 {v(PM + 1)}, 0, {v(t2)}, {s(M_ODD, 2)}')
    A(f'v_add_f32 {v(VA + 2)}, {v(VA + 2)}, {v(VA + 3)}')
    A(f'v_add_f32 {v(VA + 4)}, {v(VA + 4)}, {v(VA + 5)}')
    A(f'v_mfma_f32_16x16x16_bf16 {v(LT, 4)}, {v(ONES, 2)}, {v(PM, 2)}, {v(LT, 4)}')
    A(f'v_add_f32 {v(VA + 6)}, {v(VA + 6)}, {v(VA + 7)}')
    A(f'v_cvt_pk_bf16_f32 {v(VA)}, {v(VA)}, {v(VA + 2)}')
    A(f'v_cvt_pk_bf16_f32 {v(VA + 1)}, {v(VA + 4)}, {v(VA + 6)}')
    st('softdone')
    for t in (0, 1):
        A(f'ds_write_b32 {v(vVMw)}, {v(VA + t)} offset:{t * 128}')
    A(f'v_mfma_f32_16x16x16_bf16 {v(OT, 4)}, {v(VA, 2)}, {v(PM, 2)}, {v(OT, 4)}')
    A(f'v_mfma_f32_16x16x16_bf16 {v(OT + 4, 4)}, {v(VA, 2)}, {v(PM, 2)}, {v(OT + 4, 4)}')
    A(f'v_rcp_f32 {v(LT)}, {v(LT)}')
    for ks in (0, 1):
        emit(lread(('o', 3, ks), 0, MF + ks * 8))
    emit(zero(MF + 16, 6))
    for r in range(4):
        A(f'v_cndmask_b32 {v(OT + r)}, {v(OT + r)}, {v(OT + 4 + r)}, {s(M_ODD, 2)}')
    for r in range(4):
        A(f'v_mul_f32 {v(OT + r)}, {v(OT + r)}, {v(LT)}')
    A(f'v_cvt_pk_bf16_f32 {v(t2)}, {v(OT)}, {v(OT + 1)}')
    A(f'v_cvt_pk_bf16_f32 {v(t3)}, {v(OT + 2)}, {v(OT + 3)}')
    A(f'ds_write_b64 {v(vOw)}, {v(t2, 2)}')
    emit(zero(KA, 16))
    st('preB3')
    if tune.get('xs'):
        A(f's_sleep {tune["xs"]}')
    A('s_waitcnt lgkmcnt(0)')
    A('s_barrier')
    st('B3')
    done = A.newlabel('tdone')
    OF = VX
    A(f'ds_read_b128 {v(OF, 4)}, {v(vHi)} offset:{hi(L_O)}')
    A(f'ds_read_b128 {v(OF + 4, 4)}, {v(vHi)} offset:{hi(L_O) + 1024}')
    A(f's_cmp_ge_u32 {s(M_STEP)}, {nsteps - 1}')
    A(f's_cbranch_scc1 {done}')
    emit(zero(MF + 22, 10))
    oacc = [KA, KA + 4, VA, VA + 4, MF + 16, MF + 20, MF + 24, MF + 28]

    def wo(i, ks):
        if i < 2:
            return v(S1 + (i * 2 + ks) * 8, 8)
        if i < 6:
            return rreg(('o', i >> 1, ks), i & 1)
        if i == 6:
            return v(MF + ks * 8, 8)
        return v(S1 + ks * 8, 8)

    om = [smf(oacc[i], OF + ks * 4, wo(i, ks)) for i in range(8) for ks in (0, 1)]
    PK = QA

    def oadd(i):
        r = oacc[i]
        return [f'v_add_f32 {v(r)}, {v(r)}, {v(r + 1)}', f'v_add_f32 {v(r + 2)}, {v(r + 2)}, {v(r + 3)}']

    def opack(h, half):
        i0 = 4 * h + 2 * half
        f = []
        for rr in (0, 1):
            d = PK + h * 4 + rr * 2 + half
            f.append(f'v_cvt_pk_bf16_f32 {v(d)}, {v(oacc[i0] + rr * 2)}, {v(oacc[i0 + 1] + rr * 2)}')
        for rr in (0, 1):
            d = PK + h * 4 + rr * 2 + half
            f.append(f'v_min_u32 {v(d)}, -2, {v(d)}')
        return f

    def pstore(h):
        return (f'buffer_store_dwordx4 {v(PK + h * 4, 4)}, {v(vPw)}, {srd(SRD_WS)}, '
                f'{s(M_PW if h == 0 else M_PW2)} offen{XS}')

    if tune.get('pubY'):
        def opack(h, half):
            u = 2 * h + half
            f = []
            for rr in (0, 1):
                d = PK + rr * 4 + u
                f.append(f'v_cvt_pk_bf16_f32 {v(d)}, {v(oacc[2 * u] + rr * 2)}, {v(oacc[2 * u + 1] + rr * 2)}')
            for rr in (0, 1):
                d = PK + rr * 4 + u
                f.append(f'v_min_u32 {v(d)}, -2, {v(d)}')
            return f

        def pstore(h):
            if h == 0:
                return 's_nop 0'
            return '|'.join(f'buffer_store_dwordx4 {v(PK + rr * 4, 4)}, {v(vPw)}, {srd(SRD_WS)}, {s(M_PW)} offen '
                            f'offset:{rr * 2048}{XS}' for rr in (0, 1))

    A('s_waitcnt lgkmcnt(1)')
    A(om[0])
    A('s_waitcnt lgkmcnt(0)')
    A(om[1])
    f7 = lread(('o', 3, 0), 1, S1) + lread(('o', 3, 1), 1, S1 + 8)
    mix(om[2:4], f7, 2)
    A(om[4])
    SELR = S1 + 16
    A(f'ds_read_b128 {v(SELR, 4)}, {v(vHi)} offset:{hi(L_SEL)}')
    fo = oadd(0) + oadd(1) + opack(0, 0) + oadd(2) + oadd(3) + opack(0, 1) + [pstore(0)] + oadd(4)
    mix(om[5:14], fo, 2)
    A('s_waitcnt lgkmcnt(0)')
    fo += oadd(5) + opack(1, 0)
    mix(om[14:16], fo, 2)
    st('outissued')
    emit(fo)
    emit(oadd(6) + oadd(7) + opack(1, 1) + [pstore(1)])
    st('pstored')
    RD, RA = MF, MF + 8
    A(f'v_mov_b64 {v(NEG, 2)}, -1')
    A(f'v_mov_b64 {v(NEG + 2, 2)}, -1')
    A(f's_mov_b32 {s(M_SPIN)}, 0')
    if tune.get('d1'):
        A(f's_sleep {tune["d1"]}')
    p1 = A.newlabel('tp1')
    A.label(p1)
    A(f'buffer_load_dwordx4 {v(RD, 4)}, {v(vL16)}, {srd(SRD_WS)}, {s(M_PR)} offen sc1')
    A(f'buffer_load_dwordx4 {v(RD + 4, 4)}, {v(vL16)}, {srd(SRD_WS)}, {s(M_PR)} offen offset:1024 sc1')
    A('s_mov_b64 exec, -1')
    A(f's_add_u32 {s(M_SPIN)}, {s(M_SPIN)}, 1')
    A(f's_cmp_gt_u32 {s(M_SPIN)}, {SPIN_LIMIT * 4}')
    A(f's_cbranch_scc1 {end_label}')
    A('s_waitcnt vmcnt(0)')
    A(f'v_mfma_f32_16x16x32_bf16 {v(RA, 4)}, {v(SELR, 4)}, {v(RD, 4)}, 0')
    A(f'v_max3_u32 {v(t0)}, {v(RD)}, {v(RD + 1)}, {v(RD + 2)}')
    A(f'v_max3_u32 {v(t1)}, {v(RD + 3)}, {v(RD + 4)}, {v(RD + 5)}')
    A(f'v_mfma_f32_16x16x32_bf16 {v(RA, 4)}, {v(SELR, 4)}, {v(RD + 4, 4)}, {v(RA, 4)}')
    A(f'v_max3_u32 {v(t0)}, {v(t0)}, {v(RD + 6)}, {v(RD + 7)}')
    A(f'v_max_u32 {v(t0)}, {v(t0)}, {v(t1)}')
    A(f'v_cmp_eq_u32 vcc, -1, {v(t0)}')
    A('s_mov_b64 exec, vcc')
    A(f's_cbranch_vccnz {p1}')
    A('s_mov_b64 exec, -1')
    st('p1ok')
    for sh in (4, 8):
        for r in range(4):
            A(f'v_add_f32_dpp {v(RA + r)}, {v(RA + r)}, {v(RA + r)} row_ror:{sh} row_mask:0xf bank_mask:0xf')
    A(f'v_cvt_pk_bf16_f32 {v(t0)}, {v(RA)}, {v(RA + 1)}')
    A(f'v_cvt_pk_bf16_f32 {v(t1)}, {v(RA + 2)}, {v(RA + 3)}')
    A(f'v_min_u32 {v(t0)}, -2, {v(t0)}')
    A(f'v_min_u32 {v(t1)}, -2, {v(t1)}')
    A(f's_mov_b64 exec, {s(M_PUBX, 2)}')
    A(f'buffer_store_dwordx2 {v(t0, 2)}, {v(vPub)}, {srd(SRD_WS)}, {s(M_MP)} offen{XS}')
    A(f'buffer_store_dwordx2 {v(NEG, 2)}, {v(vPub)}, {srd(SRD_WS)}, {s(M_MRS)} offen{XS}')
    A('s_mov_b64 exec, -1')
    st('published')
    A(f's_add_u32 {s(M_STEP)}, {s(M_STEP)}, 1')
    A(f's_lshl_b32 {s(M_T1)}, {s(S_WAVE)}, 11')
    A(f's_add_u32 {s(M_MRD)}, {s(M_MP)}, {s(M_T1)}')
    A(f's_mov_b32 {s(M_SPIN)}, 0')
    p2_loads()
    A(f'ds_read_b128 {v(EXR, 4)}, {v(vEx)}')
    A(f's_cmp_eq_u32 {s(S_WAVE)}, 2')
    if early_sig:
        A(f's_mov_b32 {s(M_SIG)}, {s(M_SIG2)}')
        A(f's_cselect_b32 {s(M_SIG2)}, {s(M_FOUT)}, {OOB}')
    elif hyb:
        A(f's_cselect_b32 {s(M_T0)}, {s(M_FOUT)}, {OOB}')
        A(f's_mov_b32 {s(M_SIG2)}, {s(M_CAR)}')
        A(f's_sub_u32 {s(M_T1)}, {s(M_STEP)}, {tune.get("h0", 8)}')
        A(f's_cmp_lt_u32 {s(M_T1)}, {tune.get("h1", 59) - tune.get("h0", 8)}')
        A(f's_cselect_b32 {s(M_CAR)}, {s(M_T0)}, {OOB}')
        A(f's_cselect_b32 {s(M_SIG)}, {OOB}, {s(M_T0)}')
        A(f's_cselect_b32 {s(M_PROMPT)}, 0, 1')
    else:
        A(f's_cselect_b32 {s(M_SIG)}, {s(M_FOUT)}, {OOB}')
    A(f's_add_u32 {s(M_FOUT)}, {s(M_FOUT)}, 1024')
    A(f's_mov_b32 {s(M_EXO)}, {s(M_EXP)}')
    A(f's_add_u32 {s(M_EXP)}, {s(M_EXP)}, 65536')
    A(f's_mov_b32 {s(M_PRO)}, {s(M_PR)}')
    if not tune.get('x_nokv'):
        A(f's_add_u32 {s(M_K)}, {s(M_K)}, 262144')
        A(f's_add_u32 {s(M_V)}, {s(M_V)}, 262144')
    if tune.get('x_noexp'):
        A(f's_mov_b32 {s(M_EXO)}, {OOB}')
    prep_step()
    if poll_in:
        A(f'v_cmp_ne_u32 vcc, 0, {v(vFv)}')
        A('s_cmp_eq_u64 vcc, exec')
        A(f's_cselect_b32 {s(M_FOK)}, 1, 0')
        A(f's_cmp_lg_u32 {s(S_WAVE)}, 3')
        A(f's_cselect_b32 {s(M_FOK)}, 1, {s(M_FOK)}')
        A(f's_add_u32 {s(M_FP2)}, {s(M_FPR)}, 1024')
        A(f's_cselect_b32 {s(M_T0)}, 0, 0')
        A(f's_cmp_eq_u32 {s(S_WAVE)}, 3')
        A(f's_cselect_b32 {s(M_FP2)}, {s(M_FP2)}, {OOB}')
        A(f's_add_u32 {s(M_FPR)}, {s(M_FPR)}, 1024')
    A(f's_branch {p2b}')
    if poll_in:
        A.label(fslow)
        A(f's_sub_u32 {s(M_T2)}, {s(M_FPR)}, 1024')
        emit_poll_block(A, vFv, vFl, M_T2, M_SPIN, end_label, sleep=4)
        A(f's_branch {top}')
    if hyb:
        A.label(hw)
        A(f's_waitcnt vmcnt({nyoung})')
        A(f's_branch {hb}')
    A.label(done)
    A(f'ds_read_b128 {v(EXR, 4)}, {v(vEx)}')
    A('s_waitcnt lgkmcnt(0)')
    A(f'buffer_store_dwordx4 {v(EXR, 4)}, {v(vL16)}, {srd(SRD_WS)}, {s(M_EXP)} offen sc1')
    if has_sig:
        A('s_waitcnt vmcnt(0)')
        A('s_barrier')
        A(f's_cmp_lg_u32 {s(S_WAVE)}, 2')
        A(f's_cbranch_scc1 {end_label}')
        if early_sig:
            emit_signal(A, M_SIG2, vOne)
        emit_signal(A, M_FOUT, vOne)
    A(f's_branch {end_label}')
```

```python
import struct
from asmdsl import v, a, s
from layout import *

S_WG, S_WAVE = 2, 3
SRD_WS, SRD_A, SRD_B, SRD_C, SRD_D = 4, 8, 12, 16, 20
SPIN_LIMIT = 1 << 17


def f32bits(x):
    return struct.unpack('<I', struct.pack('<f', x))[0]


def srd(i):
    return s(i, 4)


def load_srds(A, items):
    for sreg, off, nb in items:
        A(f's_load_dwordx2 {s(sreg, 2)}, s[0:1], {off}')
    A('s_waitcnt lgkmcnt(0)')
    for sreg, off, nb in items:
        A(f's_mov_b32 {s(sreg + 2)}, {nb}')
        A(f's_mov_b32 {s(sreg + 3)}, 0x00020000')


def wave_setup(A):
    A('v_lshrrev_b32 v3, 6, v0')
    A('v_and_b32 v2, 63, v0')
    A(f'v_readfirstlane_b32 {s(S_WAVE)}, v3')
    A('v_lshlrev_b32 v1, 4, v2')


PROFILE = [False]
LIGHT = [True]
GSTAMP = [0]
TUNE = {}


LOCAL = [False]


def emit_signal(A, sflag, vone):
    if PROFILE[0] == 1 or (PROFILE[0] == 2 and LIGHT[0]):
        A('s_memrealtime s[100:101]')
        A('s_waitcnt lgkmcnt(0)')
        A('s_or_b32 s100, s100, 1')
        A(f'v_mov_b32 {v(vone)}, s100')
    A('s_mov_b64 exec, 1')
    A(f'buffer_store_dword {v(vone)}, off, {srd(SRD_WS)}, {s(sflag)}{"" if LOCAL[0] else " sc1"}')
    A('s_mov_b64 exec, -1')


def adv(A, sreg, step, wrap=None):
    A(f's_add_u32 {s(sreg)}, {s(sreg)}, {step}')
    if wrap:
        lim, span = wrap
        A(f's_cmp_ge_u32 {s(sreg)}, {s(lim)}')
        A(f's_cselect_b32 s78, {span}, 0')
        A(f's_sub_u32 {s(sreg)}, {s(sreg)}, s78')


def bp_setup(A, vfull, vbase, n, bp, vt):
    sdelta, cnt = bp
    A(f'v_subrev_u32 {v(vt)}, {n}, v2')
    A(f'v_cmp_gt_u32 vcc, {cnt}, {v(vt)}')
    A(f'v_lshlrev_b32 {v(vt)}, 2, {v(vt)}')
    A(f'v_add_u32 {v(vt)}, {s(sdelta)}, {v(vt)}')
    A(f'v_cndmask_b32 {v(vfull)}, {v(vbase)}, {v(vt)}, vcc')


def bp_switch(A, vfl, vfull, sseq, first):
    A(f's_cmp_ge_u32 {s(sseq)}, {first}')
    A('s_cselect_b64 vcc, -1, 0')
    A(f'v_cndmask_b32 {v(vfl)}, {v(vfl)}, {v(vfull)}, vcc')


def mfma_plan(NK, lag, depth, ring):
    if lag is None:
        seq = [(n // NK, n % NK, n % ring) for n in range(2 * NK)]
        rd = [(n % NK, n % ring) for n in range(2 * NK)]
        first_use = list(range(2 * NK))
    else:
        order = []
        for i in range(NK + lag):
            if i < NK:
                order.append((0, i))
            if i >= lag:
                order.append((1, i - lag))
        seq = [(t, c, c % ring) for t, c in order]
        rd = [(c, c % ring) for c in range(NK)]
        first_use = [order.index((0, c)) for c in range(NK)]
        last_use = [order.index((1, c)) for c in range(NK)]
    NS = len(seq)
    issue = []
    for r in range(len(rd)):
        at = max(-1, first_use[r] - depth)
        if lag is not None and r >= ring:
            at = max(at, last_use[r - ring] + 1)
        issue.append(at)
    pre = [rd[r] for r in range(len(rd)) if issue[r] < 0]
    reads = {n: [rd[r] for r in range(len(rd)) if issue[r] == n] for n in range(NS)}
    waits = {}
    for r in range(len(rd)):
        n = first_use[r]
        waits[n] = sum(1 for q in range(r + 1, len(rd)) if issue[q] <= n)
    t0_done = max(n for n in range(NS) if seq[n][0] == 0)
    return seq, pre, reads, waits, t0_done


DBGT = [False]


def dstamp(A, word, vtmp, cond=None, cyc=False):
    if not DBGT[0]:
        return
    sk = A.newlabel('dst')
    if cond:
        A(f's_cmp_lg_u32 {s(cond[0])}, {cond[1]}')
        A(f's_cbranch_scc1 {sk}')
    A(f'{"s_memtime" if cyc else "s_memrealtime"} s[100:101]')
    A('s_waitcnt lgkmcnt(0)')
    A(f'v_mov_b32 {v(vtmp)}, s100')
    A('s_mov_b64 exec, 1')
    A(f'buffer_store_dword {v(vtmp)}, off, s[92:95], 0 offset:{4 * word} sc1')
    A('s_mov_b64 exec, -1')
    A('s_waitcnt vmcnt(0)')
    A.label(sk)


def pstamp(A, i, vtmp):
    if PROFILE[0]:
        A('s_lshl_b32 s79, s96, 5')
        A(f's_add_u32 s79, s79, {TCTL + 135168 + 4 * i}')
        emit_signal(A, 79, vtmp)


def emit_poll_issue(A, vdst, voff, sflag):
    A(f'buffer_load_dword {v(vdst)}, {v(voff)}, {srd(SRD_WS)}, {s(sflag)} offen sc1')


def emit_poll_check(A, vdst):
    A(f'v_cmp_ne_u32 vcc, 0, {v(vdst)}')
    A('s_cmp_eq_u64 vcc, exec')


def emit_poll_block(A, vdst, voff, sflag, scnt, fail_label, sleep=2, pend=None):
    top = A.newlabel('poll')
    done = A.newlabel('polld')
    A(f's_mov_b32 {s(scnt)}, 0')
    A.label(top)
    emit_poll_issue(A, vdst, voff, sflag)
    A('s_waitcnt vmcnt(0)')
    if pend:
        sp, sf, fstep, vone = pend
        ns = A.newlabel('pnos')
        A(f's_cmp_eq_u32 {s(sp)}, 0')
        A(f's_cbranch_scc1 {ns}')
        emit_signal(A, sf, vone)
        A(f's_add_u32 {s(sf)}, {s(sf)}, {fstep}')
        A(f's_mov_b32 {s(sp)}, 0')
        A.label(ns)
    emit_poll_check(A, vdst)
    A(f's_cbranch_scc1 {done}')
    A(f's_sleep {sleep}')
    A(f's_add_u32 {s(scnt)}, {s(scnt)}, 1')
    A(f's_cmp_lt_u32 {s(scnt)}, {SPIN_LIMIT}')
    A(f's_cbranch_scc1 {top}')
    A(f's_branch {fail_label}')
    A.label(done)


L_SYNC = 160 * 1024 - 256


def sync_setup(A, vaddr, vc1, lds=L_SYNC):
    A(f'v_mov_b32 {v(vaddr)}, {lds}')
    A(f'v_mov_b32 {v(vc1)}, 0')
    A(f'ds_write_b32 {v(vaddr)}, {v(vc1)}')
    A(f'ds_write_b32 {v(vaddr)}, {v(vc1)} offset:4')
    A(f'ds_write_b32 {v(vaddr)}, {v(vc1)} offset:8')
    A('s_waitcnt lgkmcnt(0)')
    A(f'v_mov_b32 {v(vc1)}, 1')
    A(f'v_mov_b32 {v(vaddr + 1)}, {lds}')


def emit_signal_agg(A, sflag, vone, vaddr, vc1, vtmp, stmp, drain=False):
    sk = A.newlabel('agg')
    A('s_mov_b64 exec, 1')
    A(f'ds_add_rtn_u32 {v(vtmp)}, {v(vaddr + 1)}, {v(vc1)}')
    A('s_waitcnt lgkmcnt(0)')
    A(f'v_readfirstlane_b32 {s(stmp)}, {v(vtmp)}')
    A('s_mov_b64 exec, -1')
    A(f'v_xor_b32 {v(vaddr + 1)}, 8, {v(vaddr + 1)}')
    A(f's_and_b32 {s(stmp)}, {s(stmp)}, 3')
    A(f's_cmp_lg_u32 {s(stmp)}, 3')
    A(f's_cbranch_scc1 {sk}')
    emit_signal(A, sflag, vone)
    if drain:
        j = A.newlabel('aggj')
        A('s_waitcnt vmcnt(1)')
        A(f's_branch {j}')
        A.label(sk)
        A('s_waitcnt vmcnt(0)')
        A.label(j)
    else:
        A.label(sk)


def emit_post_ready(A, sseq, vaddr, vtmp):
    sk = A.newlabel('post')
    A(f's_cmp_lg_u32 {s(S_WAVE)}, 0')
    A(f's_cbranch_scc1 {sk}')
    A(f'v_mov_b32 {v(vtmp)}, {s(sseq)}')
    A(f'ds_write_b32 {v(vaddr)}, {v(vtmp)} offset:4')
    A('s_waitcnt lgkmcnt(0)')
    A.label(sk)


def emit_wait_ready(A, vdst, voff, sflag, sseq, scnt, stmp, vaddr, fail_label, sleep=2):
    oth = A.newlabel('wro')
    done = A.newlabel('wrd')
    A(f's_cmp_lg_u32 {s(S_WAVE)}, 0')
    A(f's_cbranch_scc1 {oth}')
    emit_poll_block(A, vdst, voff, sflag, scnt, fail_label, sleep=sleep)
    A(f'v_mov_b32 {v(vdst)}, {s(sseq)}')
    A(f'ds_write_b32 {v(vaddr)}, {v(vdst)} offset:4')
    A('s_waitcnt lgkmcnt(0)')
    A(f's_branch {done}')
    A.label(oth)
    A(f's_mov_b32 {s(scnt)}, 0')
    lp = A.newlabel('wrl')
    A.label(lp)
    A(f'ds_read_b32 {v(vdst)}, {v(vaddr)} offset:4')
    A(f's_add_u32 {s(scnt)}, {s(scnt)}, 1')
    A(f's_cmp_gt_u32 {s(scnt)}, {SPIN_LIMIT * 16}')
    A(f's_cbranch_scc1 {fail_label}')
    A('s_waitcnt lgkmcnt(0)')
    A(f'v_readfirstlane_b32 {s(stmp)}, {v(vdst)}')
    A(f's_cmp_ge_u32 {s(stmp)}, {s(sseq)}')
    A(f's_cbranch_scc1 {done}')
    A(f's_sleep {TUNE.get("lsl", 1)}')
    A(f's_branch {lp}')
    A.label(done)


G_W0, G_W1, G_IN, G_OUT, G_CNT, G_FIN, G_FOUT = 24, 25, 26, 27, 28, 29, 30
G_T0, G_T1, G_PREF, G_PEND, G_SPIN, G_M0 = 31, 32, 33, 34, 35, 36


def gemm_setup(A, NK, mode, wstride, srd0, srd1):
    vL16, vLane = 1, 2
    vT0, vT1, vT2 = 3, 4, 5
    vW, vTr, vRd, vOut, vOut2, vDma, vFl, vFv, vOne = 6, 7, 8, 9, 10, 11, 12, 13, 14
    D = 4
    R = D + 1
    FR = 16
    ACC = [40, 56]
    TMP = 72
    phi_cols = mode != 'v'
    A(f'v_lshrrev_b32 {v(vT0)}, 2, {v(vLane)}')
    A(f's_mov_b32 {s(G_T0)}, {wstride}')
    A(f'v_mul_lo_u32 {v(vW)}, {v(vT0)}, {s(G_T0)}')
    A(f'v_and_b32 {v(vT0)}, 3, {v(vLane)}')
    A(f'v_lshl_add_u32 {v(vW)}, {v(vT0)}, 4, {v(vW)}')
    A(f'v_bfe_u32 {v(vT1)}, {v(vLane)}, 2, 2')
    A(f'v_lshrrev_b32 {v(vT2)}, 5, {v(vLane)}')
    A(f'v_lshl_add_u32 {v(vT1)}, {v(vT2)}, 3, {v(vT1)}')
    A(f'v_lshlrev_b32 {v(vTr)}, 6, {v(vT1)}')
    A(f'v_bfe_u32 {v(vT1)}, {v(vLane)}, 4, 1')
    A(f'v_lshl_add_u32 {v(vTr)}, {v(vT1)}, 5, {v(vTr)}')
    if phi_cols:
        A(f'v_and_b32 {v(vT1)}, 1, {v(vLane)}')
        A(f'v_lshl_add_u32 {v(vTr)}, {v(vT1)}, 4, {v(vTr)}')
        A(f'v_bfe_u32 {v(vT1)}, {v(vLane)}, 1, 1')
        A(f'v_lshl_add_u32 {v(vTr)}, {v(vT1)}, 3, {v(vTr)}')
    else:
        A(f'v_lshl_add_u32 {v(vTr)}, {v(vT0)}, 3, {v(vTr)}')
    A(f's_lshl_b32 {s(G_T0)}, {s(S_WAVE)}, 15')
    A(f'v_add_u32 {v(vTr)}, {s(G_T0)}, {v(vTr)}')
    A(f'v_mov_b32 {v(vOne)}, 1')
    rounds = [list(range(c, min(c + 8, NK))) for c in range(0, NK, 8)]

    def issue_round(r):
        A(f's_lshl_b32 {s(G_M0)}, {s(S_WAVE)}, 15')
        A(f's_add_u32 m0, {s(G_M0)}, {(r & 1) * 16384}')
        first = True
        for c in rounds[r]:
            for t in (0, 1):
                if not first:
                    A('s_add_u32 m0, m0, 1024')
                first = False
                sw = G_W0 if t == 0 else G_W1
                A(f'buffer_load_dwordx4 {v(vW)}, {srd(srd0 if t == 0 else srd1)}, {s(sw)} offen lds')
                A(f's_add_u32 {s(sw)}, {s(sw)}, {16 * wstride}')

    def read_round(r):
        for ci, c in enumerate(rounds[r]):
            for t in (0, 1):
                base = (r & 1) * 16384 + (ci * 2 + t) * 1024
                ar = (t * 32 + c) * 4
                A(f'ds_read_b64_tr_b16 {a(ar, 2)}, {v(vTr)} offset:{base}')
                A(f'ds_read_b64_tr_b16 {a(ar + 2, 2)}, {v(vTr)} offset:{base + 256}')
        A('s_waitcnt lgkmcnt(0)')

    nr = len(rounds)
    issue_round(0)
    if nr > 1:
        issue_round(1)
    for r in range(nr):
        nxt = 2 * len(rounds[r + 1]) if r + 1 < nr else 0
        A(f's_waitcnt vmcnt({nxt})')
        read_round(r)
        if r + 2 < nr:
            issue_round(r + 2)
    if mode == 'v':
        A(f'v_and_b32 {v(vT0)}, 0x33, {v(vLane)}')
        A(f'v_bfe_u32 {v(vT1)}, {v(vLane)}, 2, 1')
        A(f'v_lshl_or_b32 {v(vT0)}, {v(vT1)}, 3, {v(vT0)}')
        A(f'v_bfe_u32 {v(vT1)}, {v(vLane)}, 3, 1')
        A(f'v_lshl_or_b32 {v(vT0)}, {v(vT1)}, 2, {v(vT0)}')
        A(f'v_lshlrev_b32 {v(vRd)}, 4, {v(vT0)}')
        A(f'v_and_b32 {v(vT0)}, 31, {v(vLane)}')
        A(f'v_lshlrev_b32 {v(vOut)}, 4, {v(vT0)}')
        A(f'v_lshrrev_b32 {v(vT1)}, 5, {v(vLane)}')
        A(f'v_lshl_add_u32 {v(vOut)}, {v(vT1)}, 11, {v(vOut)}')
        A(f'v_add_u32 {v(vOut2)}, 4096, {v(vOut)}')
    else:
        A(f'v_mov_b32 {v(vRd)}, {v(vL16)}')
        if mode == 'part':
            A(f'v_bfe_u32 {v(vT0)}, {v(vLane)}, 2, 3')
            A(f'v_lshlrev_b32 {v(vOut)}, 12, {v(vT0)}')
            A(f'v_lshrrev_b32 {v(vT1)}, 5, {v(vLane)}')
            A(f'v_lshl_add_u32 {v(vOut)}, {v(vT1)}, 6, {v(vOut)}')
            A(f'v_and_b32 {v(vT0)}, 3, {v(vLane)}')
            A(f'v_lshl_add_u32 {v(vOut)}, {v(vT0)}, 4, {v(vOut)}')
        else:
            A(f'v_mov_b32 {v(vOut)}, {v(vL16)}')
    if mode == 'gu':
        c0 = -2.0 * 0.7978845608028654 * 1.4426950408889634
        A(f's_mov_b32 s40, {f32bits(c0 * 0.044715):#x}')
        A(f'v_mov_b32 {v(vT2)}, {f32bits(c0):#x}')


RING = 8
OOB = 0x7ff00000


def gemm_loop(*a, **k):
    LIGHT[0] = False
    gemm_loop_(*a, **k)
    LIGHT[0] = True


def gemm_loop_(A, NK, mode, in_step, out_step, fail, flags=None, sc1=True):
    vL16, vLane = 1, 2
    vT0, vT1, vT2 = 3, 4, 5
    vW, vTr, vRd, vOut, vOut2, vDma, vFl, vFv, vOne = 6, 7, 8, 9, 10, 11, 12, 13, 14
    D = 4
    R = D + 1
    FR = 16
    ACC = [40, 56]
    TMP = 72
    SC = ' sc1' if sc1 else ''
    SS = '' if LOCAL[0] else SC
    G_SRC, G_SEQ = 37, 38
    vSy, vC1, vSt = 36, 38, 39
    per_wave = NK // 4
    assert NK % 4 == 0
    A(f's_lshl_b32 {s(G_T0)}, {s(S_WAVE)}, 10')
    A(f'v_add_u32 {v(vDma)}, {s(G_T0)}, {v(vL16)}')
    A(f's_mov_b32 {s(G_M0)}, {s(G_T0)}')
    vFl2 = 15
    if flags:
        A(f'v_min_u32 {v(vFl)}, {flags["n"] - 1}, {v(vLane)}')
        A(f'v_lshlrev_b32 {v(vFl)}, 2, {v(vFl)}')
        if flags.get('bp'):
            bp_setup(A, vFl2, vFl, flags['n'], flags['bp'], vT0)

    def dma_piece(j):
        if j == 0:
            A(f's_mov_b32 m0, {s(G_M0)}')
        else:
            A('s_add_u32 m0, m0, 4096')
            A(f's_add_u32 {s(G_SRC)}, {s(G_SRC)}, 4096')
        A(f'buffer_load_dwordx4 {v(vDma)}, {srd(SRD_WS)}, {s(G_SRC)} offen{SC} lds')

    def advance():
        adv(A, G_IN, in_step, flags.get('win') if flags else None)
        A(f's_xor_b32 {s(G_M0)}, {s(G_M0)}, 32768')
        if poll_in:
            A(f's_add_u32 {s(G_FIN)}, {s(G_FIN)}, {flags["fin_step"]}')
            A(f's_add_u32 {s(G_SEQ)}, {s(G_SEQ)}, 1')
            if flags.get('bp'):
                bp_switch(A, vFl, vFl2, G_SEQ, RING + 1)

    HP = PROFILE[0] == 1 and flags

    def hstamp(i):
        if HP:
            A(f's_memrealtime {s(60 + 2 * i, 2)}')

    def hflush():
        if HP:
            sk = A.newlabel('hs')
            A('s_waitcnt lgkmcnt(0)')
            A(f's_cmp_lg_u32 {s(S_WAVE)}, 0')
            A(f's_cbranch_scc1 {sk}')
            A(f's_and_b32 s66, {s(G_FOUT)}, 0xff')
            A(f's_andn2_b32 s67, {s(G_FOUT)}, 0xff')
            A('s_mul_i32 s66, s66, 3')
            A('s_add_u32 s66, s66, s67')
            A('s_add_u32 s66, s66, 256')
            A('s_mov_b64 exec, 1')
            for i in range(3):
                A(f'v_mov_b32 {v(vSt)}, {s(60 + 2 * i)}')
                A(f'buffer_store_dword {v(vSt)}, off, {srd(SRD_WS)}, s66 offset:{4 * i}')
            A('s_mov_b64 exec, -1')
            A.label(sk)

    def signal(drain=False):
        emit_signal_agg(A, G_FOUT, vOne, vSy, vC1, vSt, G_T0, drain)
        A(f's_add_u32 {s(G_FOUT)}, {s(G_FOUT)}, {flags["fout_step"]}')
        A(f's_mov_b32 {s(G_PEND)}, 0')

    def issue_dma():
        hstamp(0)
        A(f's_mov_b32 {s(G_SRC)}, {s(G_IN)}')
        for j in range(per_wave):
            dma_piece(j)
        advance()

    NST = 2 if (mode == 'gu' or not TUNE.get('kmaj', 0)) else 4
    poll_in = bool(flags and flags.get('poll_in', True))
    A(f'v_and_b32 {v(vRd)}, 0x7fff, {v(vRd)}')
    if flags:
        sync_setup(A, vSy, vC1)
        A(f's_mov_b32 {s(G_SEQ)}, 1')
    A('s_barrier')
    if poll_in:
        emit_wait_ready(A, vFv, vFl, G_FIN, G_SEQ, G_SPIN, G_T0, vSy, fail, sleep=8)
    issue_dma()
    A(f's_mov_b32 {s(G_PEND)}, 0')
    A('s_waitcnt vmcnt(0)')
    top = A.newlabel('gtop')
    A.label(top)
    GS = GSTAMP[0]
    if GS:
        A('s_mov_b64 s[72:73], s[60:61]')
        A('s_mov_b64 s[74:75], s[70:71]')
        A('s_memtime s[60:61]')
        A('s_memrealtime s[70:71]')
    A(f's_waitcnt vmcnt({NST})')
    if GS:
        A('s_memtime s[62:63]')
    A('s_barrier')
    if GS:
        A('s_memtime s[64:65]')
    hstamp(1)

    NS = 2 * NK
    D2, R2 = 7, 8
    FR2 = 96

    lag = None if (mode == 'gu' or not TUNE.get('kmaj', 0)) else 4
    seq, pre, reads, waits, t0_done = mfma_plan(NK, lag, D2, R2)

    def rd(c, slot):
        A(f'ds_read_b128 {v(FR2 + slot * 4, 4)}, {v(vRd)} offset:{c * 1024}')

    for x in pre:
        rd(*x)
    A(f's_sub_u32 {s(G_CNT)}, {s(G_CNT)}, 1')
    ev = {}

    def at(n, fn):
        ev.setdefault(n, []).append(fn)

    nvm = [0]

    def piece():
        A(f'buffer_load_dwordx4 {v(vDma)}, {srd(SRD_WS)}, {s(G_SRC)} offen{SC} lds')
        A('s_add_u32 m0, m0, 4096')
        A(f's_add_u32 {s(G_SRC)}, {s(G_SRC)}, 4096')
        nvm[0] += 1

    def poll():
        emit_poll_issue(A, vFv, vFl, G_FIN)
        nvm[0] += 1

    def evaluate():
        A(f'v_cmp_ne_u32 vcc, 0, {v(vFv)}')
        A('s_cmp_eq_u64 vcc, exec')
        A(f's_cselect_b32 {s(G_T0)}, {s(G_PREF)}, 1')
        A(f's_cmp_eq_u32 {s(G_T0)}, 0')
        A(f's_cselect_b32 {s(G_SRC)}, {s(G_IN)}, {OOB}')
        A(f's_cselect_b32 m0, {s(G_M0)}, 65536')
        A(f's_cselect_b32 {s(G_PREF)}, 1, {s(G_PREF)}')

    def sig1():
        A(f's_waitcnt vmcnt({nvm[0]})')
        A(f'v_mov_b32 {v(vC1)}, {s(G_PEND)}')
        A('s_mov_b64 exec, 1')
        A(f'ds_add_rtn_u32 {v(vSt)}, {v(vSy + 1)}, {v(vC1)}')
        A('s_mov_b64 exec, -1')

    def sig2():
        A(f'v_readfirstlane_b32 {s(G_T0)}, {v(vSt)}')
        A(f's_lshl_b32 {s(G_T1)}, {s(G_PEND)}, 3')
        A(f'v_xor_b32 {v(vSy + 1)}, {s(G_T1)}, {v(vSy + 1)}')
        A(f'v_mov_b32 {v(vC1)}, 1')
        A(f's_and_b32 {s(G_T0)}, {s(G_T0)}, 3')
        A(f's_add_u32 {s(G_T0)}, {s(G_T0)}, {s(G_PEND)}')
        A(f's_cmp_eq_u32 {s(G_T0)}, 4')
        A(f's_cselect_b32 {s(G_T0)}, {s(G_FOUT)}, {OOB}')
        emit_signal(A, G_T0, vOne)
        nvm[0] += 1
        A(f's_mul_i32 {s(G_T1)}, {s(G_PEND)}, {flags["fout_step"]}')
        A(f's_add_u32 {s(G_FOUT)}, {s(G_FOUT)}, {s(G_T1)}')
        A(f's_mov_b32 {s(G_PEND)}, 0')

    if not poll_in:
        A(f's_cmp_eq_u32 {s(G_CNT)}, 0')
        A(f's_cselect_b32 {s(G_SRC)}, {OOB}, {s(G_IN)}')
        A(f's_mov_b32 m0, {s(G_M0)}')
        for j in range(per_wave):
            at(2 + 3 * j, piece)
    else:
        A(f'v_mov_b32 {v(vFv)}, 0')
        poll()
        A(f's_cmp_eq_u32 {s(G_CNT)}, 0')
        A(f's_cselect_b32 {s(G_PREF)}, 2, 0')
        e1, e2 = TUNE.get('e1', 18 if NK == 32 else 14), NS - 2 * per_wave - 6
        one = TUNE.get('onewin', 2) == 2 or (mode == 'gu' and TUNE.get('onewin', 2))
        at(e1, evaluate)
        for j in range(per_wave):
            at(e1 + 1 + 2 * j, piece)
        if one:
            at(6, poll)
            at(NS - 20, poll)
        else:
            at(e1 + 2, poll)
            at(e2 - 14, poll)
            at(e2, evaluate)
            for j in range(per_wave):
                at(e2 + 1 + 2 * j, piece)
            at(e2 + 2, poll)
        at(NS - 6, poll)
    if flags:
        sn = TUNE.get('sn', 18)
        at(sn, sig1)
        at(sn + D2 + 3, sig2)

    def store(t, f, d):
        if mode == 'qk':
            return (f'buffer_store_dwordx4 {v(d, 4)}, {v(vOut)}, {srd(SRD_WS)}, {s(G_OUT)} offen '
                    f'offset:{(t * 2 + f) * 1024}{SS}')
        if mode == 'part':
            return (f'buffer_store_dwordx4 {v(d, 4)}, {v(vOut)}, {srd(SRD_WS)}, {s(G_OUT)} offen '
                    f'offset:{(t * 2 + f) * 128}{SS}')
        return (f'buffer_store_dwordx4 {v(d, 4)}, {v(vOut if f == 0 else vOut2)}, {srd(SRD_WS)}, '
                f'{s(G_OUT)} offen offset:{t * 512}{SS}')

    def cvt_tile(t):
        out = []
        for f in (0, 1):
            d = TMP + (t * 2 + f) * 4
            for j in range(4):
                r0 = ACC[t] + f * 8 + 2 * j
                out.append(f'v_cvt_pk_bf16_f32 {v(d + j)}, {v(r0)}, {v(r0 + 1)}')
            out.append(store(t, f, d))
        return out

    if mode == 'gu':
        G, U, T1 = ACC[0], ACC[1], TMP
        stages = [lambda i: f'v_mul_f32 {v(T1 + i)}, {v(G + i)}, {v(G + i)}',
                  lambda i: f'v_fma_f32 {v(T1 + i)}, {v(T1 + i)}, s40, {v(vT2)}',
                  lambda i: f'v_mul_f32 {v(T1 + i)}, {v(T1 + i)}, {v(G + i)}',
                  lambda i: f'v_exp_f32 {v(T1 + i)}, {v(T1 + i)}',
                  lambda i: f'v_add_f32 {v(T1 + i)}, 1.0, {v(T1 + i)}',
                  lambda i: f'v_rcp_f32 {v(T1 + i)}, {v(T1 + i)}',
                  lambda i: f'v_mul_f32 {v(T1 + i)}, {v(T1 + i)}, {v(G + i)}']
        early = [stages[k](w - k) for w in range(16 + 6) for k in (3, 0, 1, 2, 5, 4, 6) if 0 <= w - k < 16]
        per = 4
    else:
        early = cvt_tile(0)
        per = 2 if lag is None else 4
    for n in range(NS):
        t, c, slot = seq[n]
        for x in reads[n]:
            rd(*x)
        if n in waits:
            A(f's_waitcnt lgkmcnt({waits[n]})')
        f = v(FR2 + slot * 4, 4)
        w = a((t * 32 + c) * 4, 4)
        cin = '0' if c == 0 else v(ACC[t], 16)
        if TUNE.get('x16'):
            for hh in (0, 1):
                d16 = v(ACC[t] + ((c & 1) * 2 + hh) * 4, 4)
                A(f'v_mfma_f32_16x16x32_bf16 {d16}, {w}, {f}, {"0" if c < 2 else d16}')
        elif mode == 'v':
            A(f'v_mfma_f32_32x32x16_bf16 {v(ACC[t], 16)}, {f}, {w}, {cin}')
        else:
            A(f'v_mfma_f32_32x32x16_bf16 {v(ACC[t], 16)}, {w}, {f}, {cin}')
        if n >= t0_done + (4 if lag is None else 2):
            for _ in range(per):
                if early:
                    x = early.pop(0)
                    A(x)
                    if x.startswith('buffer_store'):
                        nvm[0] += 1
        for fn in ev.get(n, []):
            fn()
    for x in early:
        A(x)
        if x.startswith('buffer_store'):
            nvm[0] += 1
    A(f'v_xor_b32 {v(vRd)}, 32768, {v(vRd)}')
    if GS:
        A('s_memtime s[66:67]')
    if mode == 'gu':
        for f in (0, 1):
            for i in range(f * 8, f * 8 + 8):
                A(f'v_mul_f32 {v(T1 + i)}, {v(T1 + i)}, {v(U + i)}')
            d = TMP + 16 + f * 4
            for j in range(4):
                A(f'v_cvt_pk_bf16_f32 {v(d + j)}, {v(T1 + f * 8 + 2 * j)}, {v(T1 + f * 8 + 2 * j + 1)}')
            A(f'buffer_store_dwordx4 {v(d, 4)}, {v(vOut)}, {srd(SRD_WS)}, {s(G_OUT)} offen '
              f'offset:{f * 1024}{SS}')
    else:
        for x in cvt_tile(1):
            A(x)
    if GS:
        A('s_memtime s[68:69]')
        sk = A.newlabel('gsk')
        A('s_waitcnt lgkmcnt(0)')
        A(f's_cmp_lg_u32 {s(G_CNT)}, {GS}')
        A(f's_cbranch_scc1 {sk}')
        A('s_lshl_b32 s76, s96, 2')
        A('s_add_u32 s76, s76, s3')
        A('s_lshl_b32 s76, s76, 6')
        A(f's_add_u32 s76, s76, {TCTL + 65536}')
        A('s_mov_b64 exec, 1')
        for i, r in enumerate((60, 62, 64, 66, 68, 70, 72, 74)):
            A(f'v_mov_b32 {v(vT0)}, s{r}')
            A(f'buffer_store_dword {v(vT0)}, off, {srd(SRD_WS)}, s76 offset:{4 * i}')
        A('s_mov_b64 exec, -1')
        A('s_waitcnt vmcnt(0)')
        A.label(sk)
    hstamp(2)
    hflush()
    adv(A, G_OUT, out_step, flags.get('wout') if flags else None)
    if flags:
        A(f's_mov_b32 {s(G_PEND)}, 1')
    last = A.newlabel('glast')
    A(f's_cmp_eq_u32 {s(G_CNT)}, 0')
    A(f's_cbranch_scc1 {last}')
    if poll_in:
        blk = A.newlabel('gblk')
        A(f's_cmp_eq_u32 {s(G_PREF)}, 0')
        A(f's_cbranch_scc1 {blk}')
        emit_post_ready(A, G_SEQ, vSy, vSt)
        advance()
        A(f's_branch {top}')
        A.label(blk)
        blk2 = A.newlabel('gblk2')
        A(f's_waitcnt vmcnt({NST})')
        emit_poll_check(A, vFv)
        A(f's_cbranch_scc0 {blk2}')
        emit_post_ready(A, G_SEQ, vSy, vSt)
        issue_dma()
        A(f's_waitcnt vmcnt({per_wave})')
        signal(drain=True)
        A(f's_branch {top}')
        A.label(blk2)
        A('s_waitcnt vmcnt(0)')
        signal()
        emit_wait_ready(A, vFv, vFl, G_FIN, G_SEQ, G_SPIN, G_T0, vSy, fail, sleep=TUNE.get('sl', 2))
        issue_dma()
        A('s_waitcnt vmcnt(0)')
    else:
        advance()
    A(f's_branch {top}')
    A.label(last)
    if flags:
        A('s_waitcnt vmcnt(0)')
        signal()


def gemm_role(A, NK, mode, wstride, srd0, srd1, in_step, out_step, end_label, flags=None, sc1=True,
              s_pure=None):
    gemm_setup(A, NK, mode, wstride, srd0, srd1)
    if s_pure is not None:
        gl = A.newlabel('gg')
        A(f's_cmp_eq_u32 {s(s_pure)}, 0')
        A(f's_cbranch_scc1 {gl}')
        LOCAL[0] = True
        gemm_loop(A, NK, mode, in_step, out_step, end_label, flags, sc1)
        LOCAL[0] = False
        A(f's_branch {end_label}')
        A.label(gl)
    gemm_loop(A, NK, mode, in_step, out_step, end_label, flags, sc1)
    A(f's_branch {end_label}')


PSEG = 32768


def rl_role(A, KBN, srd_xin, srd_xout, do_ln, steps, end_label, flags=None, sc1=True, xin_sc1=True,
            xout_sc1=True, burst=0, between=None):
    R_P, R_XI, R_XO, R_XN, R_CNT, R_FIN, R_FOUT, R_T0, R_PREF, R_PEND, R_SPIN = \
        24, 25, 26, 27, 28, 29, 30, 31, 33, 34, 35
    vLane = 2
    vT0, vT1, vT2 = 3, 4, 5
    vP, vX, vN, vLw, vLr, vFl, vFv, vOne = 6, 7, 8, 9, 10, 11, 12, 13
    XF = 16
    PK = 24
    PN = 28
    ST = 32
    AC = 44
    UP = 52
    SETS = [60, 60 + 4 + 4 * KBN]
    vSy, vC1, vSt = 14, 4, 5
    R_SEQ = 36
    SC = ' sc1' if sc1 else ''
    A(f'v_and_b32 {v(vT0)}, 3, v0')
    A(f'v_lshrrev_b32 {v(vT1)}, 2, v0')
    A(f'v_lshlrev_b32 {v(vP)}, 4, v0')
    A(f'v_lshlrev_b32 {v(vX)}, 10, {v(vT0)}')
    A(f'v_lshl_add_u32 {v(vX)}, {v(vT1)}, 4, {v(vX)}')
    A(f'v_lshlrev_b32 {v(vN)}, 9, {v(vT1)}')
    A(f'v_lshl_add_u32 {v(vN)}, {v(vT0)}, 4, {v(vN)}')
    A(f'v_lshlrev_b32 {v(vLr)}, 4, {v(vT0)}')
    A(f's_lshl_b32 {s(R_T0)}, {s(S_WAVE)}, 2')
    A(f'v_add_u32 {v(vLw)}, {s(R_T0)}, {v(vLr)}')
    A(f'v_mov_b32 {v(vOne)}, 1')
    A(f's_mov_b32 s40, 0xffff0000')
    poll_in = bool(flags and flags.get('poll_in', True))
    sig = bool(flags and flags.get('signal', True))
    if flags:
        A(f'v_min_u32 {v(vFl)}, {flags["n"] - 1}, {v(vLane)}')
        A(f'v_lshlrev_b32 {v(vFl)}, 2, {v(vFl)}')
    if flags:
        sync_setup(A, vSy, vC1)
        A(f's_mov_b32 {s(R_SEQ)}, 1')
        A('s_barrier')

    def signal():
        emit_signal_agg(A, R_FOUT, vOne, vSy, vC1, vSt, R_T0)
        A(f's_add_u32 {s(R_FOUT)}, {s(R_FOUT)}, {flags["fout_step"]}')
        A(f's_mov_b32 {s(R_PEND)}, 0')

    def loads(S):
        A(f'buffer_load_dwordx4 {v(S, 4)}, {v(vX)}, {srd(srd_xin)}, {s(R_XI)} offen{" sc1" if xin_sc1 else ""}')
        A(f's_mov_b32 {s(R_T0)}, {s(R_P)}')
        for kb in range(KBN):
            A(f'buffer_load_dwordx4 {v(S + 4 + kb * 4, 4)}, {v(vP)}, {srd(SRD_WS)}, {s(R_T0)} offen{SC}')
            if kb + 1 < KBN:
                A(f's_add_u32 {s(R_T0)}, {s(R_T0)}, {PSEG}')
        A(f's_add_u32 {s(R_P)}, {s(R_P)}, {steps["p"]}')
        A(f's_add_u32 {s(R_XI)}, {s(R_XI)}, {steps["x"]}')
        if poll_in:
            A(f's_add_u32 {s(R_FIN)}, {s(R_FIN)}, {flags["fin_step"]}')
            A(f's_add_u32 {s(R_SEQ)}, {s(R_SEQ)}, 1')

    def unpack(dst, src):
        for j in range(4):
            A(f'v_lshlrev_b32 {v(dst + 2 * j)}, 16, {v(src + j)}')
            A(f'v_and_b32 {v(dst + 2 * j + 1)}, s40, {v(src + j)}')

    def pack(dst, src):
        for j in range(4):
            A(f'v_cvt_pk_bf16_f32 {v(dst + j)}, {v(src + 2 * j)}, {v(src + 2 * j + 1)}')

    def row_reduce(r, ldsoff):
        t = ST + 7
        A(f'v_add_f32_dpp {v(r)}, {v(r)}, {v(r)} row_ror:4 row_mask:0xf bank_mask:0xf')
        A(f'v_add_f32_dpp {v(r)}, {v(r)}, {v(r)} row_ror:8 row_mask:0xf bank_mask:0xf')
        A(f'v_mov_b32 {v(t)}, {v(r)}')
        A(f'v_permlane16_swap_b32 {v(r)}, {v(t)}')
        A(f'v_add_f32 {v(r)}, {v(r)}, {v(t)}')
        A(f'v_mov_b32 {v(t)}, {v(r)}')
        A(f'v_permlane32_swap_b32 {v(r)}, {v(t)}')
        A(f'v_add_f32 {v(r)}, {v(r)}, {v(t)}')
        A(f'ds_write_b32 {v(vLw)}, {v(r)} offset:{ldsoff}')
        A('s_waitcnt lgkmcnt(0)')
        A('s_barrier')
        A(f'ds_read_b128 {v(ST + 8, 4)}, {v(vLr)} offset:{ldsoff}')
        A('s_waitcnt lgkmcnt(0)')
        A(f'v_add_f32 {v(ST + 8)}, {v(ST + 8)}, {v(ST + 9)}')
        A(f'v_add_f32 {v(ST + 10)}, {v(ST + 10)}, {v(ST + 11)}')
        A(f'v_add_f32 {v(r)}, {v(ST + 8)}, {v(ST + 10)}')

    def round_bf16(r):
        A(f'v_cvt_pk_bf16_f32 {v(r)}, {v(r)}, {v(r)}')
        A(f'v_lshlrev_b32 {v(r)}, 16, {v(r)}')

    def compute(S):
        unpack(XF, S)
        if KBN:
            unpack(AC, S + 4)
            for kb in range(1, KBN):
                unpack(UP, S + 4 + kb * 4)
                for j in range(8):
                    A(f'v_add_f32 {v(AC + j)}, {v(AC + j)}, {v(UP + j)}')
            pack(PK, AC)
            unpack(AC, PK)
            for j in range(8):
                A(f'v_add_f32 {v(XF + j)}, {v(XF + j)}, {v(AC + j)}')
            pack(PK, XF)
            A(f'buffer_store_dwordx4 {v(PK, 4)}, {v(vX)}, {srd(srd_xout)}, {s(R_XO)} offen'
              f'{" sc1" if xout_sc1 else ""}')
            if do_ln:
                unpack(XF, PK)
        if do_ln:
            m, q = ST, ST + 1
            A(f'v_add_f32 {v(m)}, {v(XF)}, {v(XF + 1)}')
            A(f'v_add_f32 {v(q)}, {v(XF + 2)}, {v(XF + 3)}')
            A(f'v_add_f32 {v(ST + 2)}, {v(XF + 4)}, {v(XF + 5)}')
            A(f'v_add_f32 {v(ST + 3)}, {v(XF + 6)}, {v(XF + 7)}')
            A(f'v_add_f32 {v(m)}, {v(m)}, {v(q)}')
            A(f'v_add_f32 {v(ST + 2)}, {v(ST + 2)}, {v(ST + 3)}')
            A(f'v_add_f32 {v(m)}, {v(m)}, {v(ST + 2)}')
            row_reduce(m, 0)
            A(f'v_mul_f32 {v(m)}, {f32bits(1.0 / 512):#x}, {v(m)}')
            for j in range(8):
                A(f'v_sub_f32 {v(AC + j)}, {v(XF + j)}, {v(m)}')
            A(f'v_mul_f32 {v(q)}, {v(AC)}, {v(AC)}')
            for j in range(1, 8):
                A(f'v_fmac_f32 {v(q)}, {v(AC + j)}, {v(AC + j)}')
            row_reduce(q, 64)
            A(f'v_mul_f32 {v(q)}, {f32bits(1.0 / 512):#x}, {v(q)}')
            round_bf16(q)
            A(f'v_add_f32 {v(q)}, {f32bits(1e-5):#x}, {v(q)}')
            round_bf16(q)
            A(f'v_sqrt_f32 {v(q)}, {v(q)}')
            round_bf16(q)
            A(f'v_rcp_f32 {v(q)}, {v(q)}')
            round_bf16(m)
            for j in range(8):
                A(f'v_sub_f32 {v(AC + j)}, {v(XF + j)}, {v(m)}')
            pack(PN, AC)
            unpack(AC, PN)
            for j in range(8):
                A(f'v_mul_f32 {v(AC + j)}, {v(AC + j)}, {v(q)}')
            pack(PN, AC)
            A(f'buffer_store_dwordx4 {v(PN, 4)}, {v(vN)}, {srd(SRD_WS)}, {s(R_XN)} offen{SC}')
        A(f's_add_u32 {s(R_XO)}, {s(R_XO)}, {steps["x"]}')
        A(f's_add_u32 {s(R_XN)}, {s(R_XN)}, {steps["xn"]}')

    if burst:
        assert KBN == 0
        for i in range(burst):
            loads(64 + 4 * i)
        nb = between() if between else 0
        for i in range(burst):
            A(f's_waitcnt vmcnt({burst - 1 + nb})')
            compute(64 + 4 * i)
        A(f's_branch {end_label}')
        return
    if flags and flags.get('pair'):
        top = A.newlabel('rlptop')
        A.label(top)
        emit_wait_ready(A, vFv, vFl, R_FIN, R_SEQ, R_SPIN, R_T0, vSy, end_label, sleep=TUNE.get('sl', 3))
        st2 = dict(steps)
        steps.update(p=4096, x=4096, xn=64)
        fs = flags['fin_step']
        flags['fin_step'] = 0
        loads(SETS[0])
        steps.update(p=st2['p'] - 4096, x=st2['x'] - 4096)
        flags['fin_step'] = fs
        loads(SETS[1])
        steps.update(p=4096, x=4096, xn=64)
        A(f's_waitcnt vmcnt({KBN + 1})')
        compute(SETS[0])
        steps.update(x=st2['x'] - 4096, xn=st2['xn'] - 64)
        A(f's_waitcnt vmcnt({2 if do_ln else 1})')
        compute(SETS[1])
        steps.update(st2)
        if sig:
            A('s_waitcnt vmcnt(0)')
            signal()
        A(f's_sub_u32 {s(R_CNT)}, {s(R_CNT)}, 1')
        A(f's_cmp_lg_u32 {s(R_CNT)}, 0')
        A(f's_cbranch_scc1 {top}')
        A(f's_branch {end_label}')
        return
    A(f's_mov_b32 {s(R_PEND)}, 0')
    if poll_in:
        emit_wait_ready(A, vFv, vFl, R_FIN, R_SEQ, R_SPIN, R_T0, vSy, end_label, sleep=8)
    loads(SETS[0])
    top = A.newlabel('rltop')
    last = A.newlabel('rllast')
    A.label(top)
    for u in (0, 1):
        S, O = SETS[u], SETS[1 - u]
        A(f's_sub_u32 {s(R_CNT)}, {s(R_CNT)}, 1')
        if poll_in:
            emit_poll_issue(A, vFv, vFl, R_FIN)
        A('s_waitcnt vmcnt(0)')
        if sig:
            ns = A.newlabel('rlns')
            A(f's_cmp_eq_u32 {s(R_PEND)}, 0')
            A(f's_cbranch_scc1 {ns}')
            signal()
            A.label(ns)
        nopf = A.newlabel('rlnopf')
        A(f's_mov_b32 {s(R_PREF)}, 0')
        A(f's_cmp_eq_u32 {s(R_CNT)}, 0')
        A(f's_cbranch_scc1 {nopf}')
        if poll_in:
            emit_poll_check(A, vFv)
            A(f's_cbranch_scc0 {nopf}')
            emit_post_ready(A, R_SEQ, vSy, vSt)
        loads(O)
        A(f's_mov_b32 {s(R_PREF)}, 1')
        A.label(nopf)
        compute(S)
        A(f's_mov_b32 {s(R_PEND)}, 1')
        A(f's_cmp_eq_u32 {s(R_CNT)}, 0')
        A(f's_cbranch_scc1 {last}')
        if poll_in:
            nx = A.newlabel('rlnx')
            A(f's_cmp_eq_u32 {s(R_PREF)}, 1')
            A(f's_cbranch_scc1 {nx}')
            if sig:
                A('s_waitcnt vmcnt(0)')
                signal()
            emit_wait_ready(A, vFv, vFl, R_FIN, R_SEQ, R_SPIN, R_T0, vSy, end_label, sleep=2)
            loads(O)
            A.label(nx)
    A(f's_branch {top}')
    A.label(last)
    if sig:
        A('s_waitcnt vmcnt(0)')
        signal()
    A(f's_branch {end_label}')


def att_role(A, segstep, end_label, flags=None, sc1=True):
    T_Q, T_K, T_V, T_KM, T_CNT, T_FIN, T_FOUT, T_VM, T_O, T_FPR, T_T0, T_SPIN = \
        24, 25, 26, 27, 28, 29, 30, 31, 32, 33, 34, 35
    vL16, vLane = 1, 2
    vT0, vT1, vT2 = 3, 4, 5
    vK, vKM, vV, vVM, vFl, vFv, vOne, vFp = 6, 7, 8, 9, 10, 11, 12, 13
    BIAS = 16
    QF, KF, KMF, VF, VMF = 32, 64, 96, 128, 160
    SX, SM = 176, 192
    PB = 208
    OA = 32
    OP = 220
    SC = ' sc1' if sc1 else ''
    scale_log2e = (128 ** -0.5) * 1.4426950408889634
    A(f'v_and_b32 {v(vT0)}, 0x13, {v(vLane)}')
    A(f'v_bfe_u32 {v(vT1)}, {v(vLane)}, 2, 1')
    A(f'v_lshl_or_b32 {v(vT0)}, {v(vT1)}, 3, {v(vT0)}')
    A(f'v_bfe_u32 {v(vT1)}, {v(vLane)}, 3, 1')
    A(f'v_lshl_or_b32 {v(vT0)}, {v(vT1)}, 2, {v(vT0)}')
    A(f'v_lshrrev_b32 {v(vT1)}, 5, {v(vLane)}')
    A(f'v_lshlrev_b32 {v(vK)}, 4, {v(vT0)}')
    A(f'v_lshl_add_u32 {v(vK)}, {v(vT1)}, 9, {v(vK)}')
    A(f'v_lshlrev_b32 {v(vV)}, 4, {v(vT0)}')
    A(f'v_lshl_add_u32 {v(vV)}, {v(vT1)}, 11, {v(vV)}')
    A(f'v_lshlrev_b32 {v(vVM)}, 3, {v(vT0)}')
    A(f'v_lshl_add_u32 {v(vVM)}, {v(vT1)}, 10, {v(vVM)}')
    A(f'v_and_b32 {v(vT2)}, 7, {v(vLane)}')
    A(f'v_lshlrev_b32 {v(vKM)}, 4, {v(vT2)}')
    A(f'v_lshl_add_u32 {v(vKM)}, {v(vT1)}, 7, {v(vKM)}')
    A(f'v_and_b32 {v(vT2)}, 31, {v(vLane)}')
    A(f'v_lshlrev_b32 {v(vT1)}, 3, {v(vT1)}')
    A(f'v_sub_u32 {v(vT2)}, {v(vT2)}, {v(vT1)}')
    A(f'v_mov_b32 {v(vT0)}, {f32bits(-1e30):#x}')
    for i in range(16):
        A(f'v_cmp_gt_i32 vcc, {16 * (i >> 3) + (i & 7)}, {v(vT2)}')
        A(f'v_cndmask_b32 {v(BIAS + i)}, 0, {v(vT0)}, vcc')
    for T in range(4):
        A(f'v_mov_b32 {v(VMF + T * 4 + 2)}, 0')
        A(f'v_mov_b32 {v(VMF + T * 4 + 3)}, 0')
    A(f'v_mov_b32 {v(PB + 10)}, 0')
    A(f'v_mov_b32 {v(PB + 11)}, 0')
    A(f'v_mov_b32 {v(vOne)}, 1')
    A(f's_mov_b32 s40, {f32bits(scale_log2e):#x}')
    if flags:
        A(f'v_min_u32 {v(vFl)}, {flags["n"] - 1}, {v(vLane)}')
        A(f'v_lshlrev_b32 {v(vFl)}, 2, {v(vFl)}')
        if True:
            A(f'v_min_u32 {v(vT0)}, 2, {v(vLane)}')
            A(f'v_lshlrev_b32 {v(vFp)}, 6, {v(vT0)}')
    T_PEND = 36
    A(f's_mov_b32 {s(T_PEND)}, 0')
    top = A.newlabel('atop')
    A.label(top)
    if flags:
        emit_poll_block(A, vFv, vFp, T_FPR, T_SPIN, end_label, sleep=8,
                        pend=(T_PEND, T_FOUT, 1024 * segstep, vOne))
        A(f's_add_u32 {s(T_FPR)}, {s(T_FPR)}, {1024 * segstep}')

    def ld8(dst, voff, soff):
        A(f's_add_u32 {s(T_T0)}, {s(soff)}, 4096')
        for c in range(8):
            so = soff if c < 4 else T_T0
            A(f'buffer_load_dwordx4 {v(dst + c * 4, 4)}, {v(voff)}, {srd(SRD_WS)}, {s(so)} offen '
              f'offset:{(c & 3) * 1024}{SC}')

    ld8(KF, vK, T_K)
    ld8(QF, vL16, T_Q)
    A(f's_add_u32 {s(T_T0)}, {s(T_V)}, 4096')
    for T in range(4):
        for f in (0, 1):
            so = T_V if f == 0 else T_T0
            A(f'buffer_load_dwordx4 {v(VF + (T * 2 + f) * 4, 4)}, {v(vV)}, {srd(SRD_WS)}, {s(so)} offen '
              f'offset:{T * 512}{SC}')
    for c in range(8):
        A(f's_waitcnt vmcnt({8 + 7 - c})')
        cin = '0' if c == 0 else v(SX, 16)
        A(f'v_mfma_f32_32x32x16_bf16 {v(SX, 16)}, {v(KF + c * 4, 4)}, {v(QF + c * 4, 4)}, {cin}')
    if flags:
        emit_poll_block(A, vFv, vFl, T_FIN, T_SPIN, end_label, sleep=3)
        A(f's_add_u32 {s(T_FIN)}, {s(T_FIN)}, {1024 * segstep}')
    for c in range(8):
        A(f'buffer_load_dwordx4 {v(KMF + c * 4, 4)}, {v(vKM)}, {srd(SRD_WS)}, {s(T_KM)} offen '
          f'offset:{c * 256}{SC}')
    for T in range(4):
        A(f'buffer_load_dwordx2 {v(VMF + T * 4, 2)}, {v(vVM)}, {srd(SRD_WS)}, {s(T_VM)} offen '
          f'offset:{T * 256}{SC}')
    for i in range(16):
        A(f'v_fma_f32 {v(SX + i)}, {v(SX + i)}, s40, {v(BIAS + i)}')
    mx = vT0
    A(f'v_max3_f32 {v(mx)}, {v(SX)}, {v(SX + 1)}, {v(SX + 2)}')
    for i in range(3, 15, 2):
        A(f'v_max3_f32 {v(mx)}, {v(mx)}, {v(SX + i)}, {v(SX + i + 1)}')
    A(f'v_max_f32 {v(mx)}, {v(mx)}, {v(SX + 15)}')
    for c in range(8):
        A(f's_waitcnt vmcnt({4 + 7 - c})')
        cin = '0' if c == 0 else v(SM, 16)
        A(f'v_mfma_f32_32x32x16_bf16 {v(SM, 16)}, {v(KMF + c * 4, 4)}, {v(QF + c * 4, 4)}, {cin}')
    for i in range(4):
        A(f'v_mul_f32 {v(SM + i)}, s40, {v(SM + i)}')
    A(f'v_max3_f32 {v(mx)}, {v(mx)}, {v(SM)}, {v(SM + 1)}')
    A(f'v_max3_f32 {v(mx)}, {v(mx)}, {v(SM + 2)}, {v(SM + 3)}')
    A(f'v_mov_b32 {v(vT1)}, {v(mx)}')
    A(f'v_permlane32_swap_b32 {v(mx)}, {v(vT1)}')
    A(f'v_max_f32 {v(mx)}, {v(mx)}, {v(vT1)}')
    vals = [SX + i for i in range(16)] + [SM + i for i in range(4)]
    for r in vals:
        A(f'v_sub_f32 {v(r)}, {v(r)}, {v(mx)}')
    for r in vals:
        A(f'v_exp_f32 {v(r)}, {v(r)}')
    sm = vT1
    A(f'v_add_f32 {v(sm)}, {v(vals[0])}, {v(vals[1])}')
    A(f'v_add_f32 {v(vT2)}, {v(vals[2])}, {v(vals[3])}')
    for i in range(4, 20, 2):
        A(f'v_add_f32 {v(sm)}, {v(sm)}, {v(vals[i])}')
        A(f'v_add_f32 {v(vT2)}, {v(vT2)}, {v(vals[i + 1])}')
    A(f'v_add_f32 {v(sm)}, {v(sm)}, {v(vT2)}')
    A(f'v_mov_b32 {v(vT2)}, {v(sm)}')
    A(f'v_permlane32_swap_b32 {v(sm)}, {v(vT2)}')
    A(f'v_add_f32 {v(sm)}, {v(sm)}, {v(vT2)}')
    A(f'v_rcp_f32 {v(sm)}, {v(sm)}')
    for r in vals:
        A(f'v_mul_f32 {v(r)}, {v(r)}, {v(sm)}')
    for j in range(10):
        A(f'v_cvt_pk_bf16_f32 {v(PB + j)}, {v(vals[2 * j])}, {v(vals[2 * j + 1])}')
    A('s_waitcnt vmcnt(0)')
    for T in range(4):
        o = v(OA + T * 16, 16)
        A(f'v_mfma_f32_32x32x16_bf16 {o}, {v(VF + T * 8, 4)}, {v(PB, 4)}, 0')
        A(f'v_mfma_f32_32x32x16_bf16 {o}, {v(VF + T * 8 + 4, 4)}, {v(PB + 4, 4)}, {o}')
        A(f'v_mfma_f32_32x32x16_bf16 {o}, {v(VMF + T * 4, 4)}, {v(PB + 8, 4)}, {o}')
    A(f's_add_u32 {s(T_T0)}, {s(T_O)}, 4096')
    for T in range(4):
        for f in (0, 1):
            n = T * 2 + f
            d = KMF + n * 4
            for j in range(4):
                r0 = OA + T * 16 + f * 8 + 2 * j
                A(f'v_cvt_pk_bf16_f32 {v(d + j)}, {v(r0)}, {v(r0 + 1)}')
            so = T_O if n < 4 else T_T0
            A(f'buffer_store_dwordx4 {v(d, 4)}, {v(vL16)}, {srd(SRD_WS)}, {s(so)} offen '
              f'offset:{(n & 3) * 1024}{SC}')
    A(f's_mov_b32 {s(T_PEND)}, 1')
    for r, st in ((T_Q, 262144), (T_K, 262144), (T_V, 262144), (T_KM, 65536), (T_VM, 65536), (T_O, 262144)):
        A(f's_add_u32 {s(r)}, {s(r)}, {st * segstep}')
    A(f's_sub_u32 {s(T_CNT)}, {s(T_CNT)}, 1')
    A(f's_cmp_lg_u32 {s(T_CNT)}, 0')
    A(f's_cbranch_scc1 {top}')
    if flags:
        A('s_waitcnt vmcnt(0)')
        emit_signal(A, T_FOUT, vOne)
    A(f's_branch {end_label}')


def ao_role(A, segstep, end_label, s_pure=None, wout=None, bp=None):
    gemm_setup(A, 32, 'part', 1024, SRD_A, SRD_A)
    T_Q, T_K, T_V, T_KM, T_VM, T_FPR = 50, 51, 52, 53, 54, 55
    T_OUT, T_CNT, T_FIN, T_FOUT = 27, 28, 29, 30
    T_T0, T_T1, T_SPIN, T_PREF, T_PEND = 31, 32, 35, 33, 34
    P_Q, P_K, P_V = 56, 58, 60
    vL16, vLane = 1, 2
    vT0, vT1, vT2 = 3, 4, 5
    vK, vKM, vV, vVM, vFl, vFv, vOne, vFp, vOut, vLw = 6, 7, 8, 9, 10, 11, 12, 13, 14, 15
    BIAS = 16
    QF, KF, KMF, VF, VMF = 32, 64, 96, 128, 160
    SX, SM = 176, 192
    PB = 208
    OA = 32
    TMP = 220
    vSy, vC1, vSt, vRd, vFq = 236, 238, 239, 240, 241
    SC = ' sc1'
    scale_log2e = (128 ** -0.5) * 1.4426950408889634
    A(f'v_mov_b32 {v(vOut)}, v9')
    A(f'v_and_b32 {v(vT0)}, 0x13, {v(vLane)}')
    A(f'v_bfe_u32 {v(vT1)}, {v(vLane)}, 2, 1')
    A(f'v_lshl_or_b32 {v(vT0)}, {v(vT1)}, 3, {v(vT0)}')
    A(f'v_bfe_u32 {v(vT1)}, {v(vLane)}, 3, 1')
    A(f'v_lshl_or_b32 {v(vT0)}, {v(vT1)}, 2, {v(vT0)}')
    A(f'v_lshrrev_b32 {v(vT1)}, 5, {v(vLane)}')
    A(f'v_lshlrev_b32 {v(vK)}, 4, {v(vT0)}')
    A(f'v_lshl_add_u32 {v(vK)}, {v(vT1)}, 9, {v(vK)}')
    A(f'v_lshlrev_b32 {v(vV)}, 4, {v(vT0)}')
    A(f'v_lshl_add_u32 {v(vV)}, {v(vT1)}, 11, {v(vV)}')
    A(f'v_lshlrev_b32 {v(vVM)}, 3, {v(vT0)}')
    A(f'v_lshl_add_u32 {v(vVM)}, {v(vT1)}, 10, {v(vVM)}')
    A(f'v_and_b32 {v(vT2)}, 7, {v(vLane)}')
    A(f'v_lshlrev_b32 {v(vKM)}, 4, {v(vT2)}')
    A(f'v_lshl_add_u32 {v(vKM)}, {v(vT1)}, 7, {v(vKM)}')
    A(f'v_and_b32 {v(vT2)}, 31, {v(vLane)}')
    A(f'v_lshlrev_b32 {v(vT1)}, 3, {v(vT1)}')
    A(f'v_sub_u32 {v(vT2)}, {v(vT2)}, {v(vT1)}')
    A(f'v_mov_b32 {v(vT0)}, {f32bits(-1e30):#x}')
    for i in range(16):
        A(f'v_cmp_gt_i32 vcc, {16 * (i >> 3) + (i & 7)}, {v(vT2)}')
        A(f'v_cndmask_b32 {v(BIAS + i)}, 0, {v(vT0)}, vcc')
    for T in range(4):
        A(f'v_mov_b32 {v(VMF + T * 4 + 2)}, 0')
        A(f'v_mov_b32 {v(VMF + T * 4 + 3)}, 0')
    A(f'v_mov_b32 {v(PB + 10)}, 0')
    A(f'v_mov_b32 {v(PB + 11)}, 0')
    A(f'v_mov_b32 {v(vOne)}, 1')
    A(f's_mov_b32 s40, {f32bits(scale_log2e):#x}')
    A(f'v_mov_b32 {v(vFl)}, 0')
    vFl2, T_SEQ = 242, 63
    A(f's_mov_b32 {s(T_SEQ)}, 0')
    bp_setup(A, vFl2, vFl, 1, bp, vT0)
    A(f'v_min_u32 {v(vT0)}, 2, {v(vLane)}')
    A(f'v_lshlrev_b32 {v(vFp)}, 6, {v(vT0)}')
    A(f's_lshl_b32 {s(T_T0)}, {s(S_WAVE)}, 13')
    A(f'v_add_u32 {v(vLw)}, {s(T_T0)}, {v(vL16)}')
    A(f'v_mov_b32 {v(vRd)}, {v(vL16)}')
    sync_setup(A, vSy, vC1)
    A('s_barrier')

    def set_src(real):
        for p, r in ((P_Q, T_Q), (P_K, T_K), (P_V, T_V)):
            if real is None:
                A(f's_mov_b32 {s(p)}, {s(r)}')
            else:
                A(f's_cselect_b32 {s(p)}, {s(r)}, {OOB}')
        for p in (P_Q, P_K, P_V):
            A(f's_add_u32 {s(p + 1)}, {s(p)}, 4096')

    def load_list():
        L = []
        for c in range(8):
            L.append(f'buffer_load_dwordx4 {v(KF + c * 4, 4)}, {v(vK)}, {srd(SRD_WS)}, {s(P_K + (c >> 2))} offen '
                     f'offset:{(c & 3) * 1024}{SC}')
            L.append(f'buffer_load_dwordx4 {v(QF + c * 4, 4)}, {v(vL16)}, {srd(SRD_WS)}, {s(P_Q + (c >> 2))} offen '
                     f'offset:{(c & 3) * 1024}{SC}')
        for T in range(4):
            for f in (0, 1):
                L.append(f'buffer_load_dwordx4 {v(VF + (T * 2 + f) * 4, 4)}, {v(vV)}, {srd(SRD_WS)}, '
                         f'{s(P_V + f)} offen offset:{T * 512}{SC}')
        return L

    def adv_in():
        for r in (T_Q, T_K, T_V):
            A(f's_add_u32 {s(r)}, {s(r)}, {262144 * segstep}')
        A(f's_add_u32 {s(T_FPR)}, {s(T_FPR)}, {1024 * segstep}')

    def body():
        emit_poll_block(A, vFv, vFp, T_FPR, T_SPIN, end_label, sleep=8)
        set_src(None)
        for x in load_list():
            A(x)
        adv_in()
        A(f's_mov_b32 {s(T_PEND)}, 0')

        def signal():
            emit_signal_agg(A, T_FOUT, vOne, vSy, vC1, vSt, T_T0)
            A(f's_add_u32 {s(T_FOUT)}, {s(T_FOUT)}, {1024 * segstep}')
            A(f's_mov_b32 {s(T_PEND)}, 0')

        top = A.newlabel('aotop')
        A.label(top)
        A(f's_sub_u32 {s(T_CNT)}, {s(T_CNT)}, 1')
        emit_poll_issue(A, vFv, vFl, T_FIN)
        A('s_waitcnt vmcnt(9)')
        for c in range(8):
            cin = '0' if c == 0 else v(SX, 16)
            A(f'v_mfma_f32_32x32x16_bf16 {v(SX, 16)}, {v(KF + c * 4, 4)}, {v(QF + c * 4, 4)}, {cin}')
        for i in range(16):
            A(f'v_fma_f32 {v(SX + i)}, {v(SX + i)}, s40, {v(BIAS + i)}')
        mx = vT0
        A(f'v_max3_f32 {v(mx)}, {v(SX)}, {v(SX + 1)}, {v(SX + 2)}')
        for i in range(3, 15, 2):
            A(f'v_max3_f32 {v(mx)}, {v(mx)}, {v(SX + i)}, {v(SX + i + 1)}')
        A(f'v_max_f32 {v(mx)}, {v(mx)}, {v(SX + 15)}')
        A('s_waitcnt vmcnt(0)')
        ns = A.newlabel('aons')
        A(f's_cmp_eq_u32 {s(T_PEND)}, 0')
        A(f's_cbranch_scc1 {ns}')
        signal()
        A.label(ns)
        go = A.newlabel('aogo')
        emit_poll_check(A, vFv)
        A(f's_cbranch_scc1 {go}')
        emit_poll_block(A, vFv, vFl, T_FIN, T_SPIN, end_label, sleep=TUNE.get('sla', 2))
        A.label(go)
        A(f's_add_u32 {s(T_FIN)}, {s(T_FIN)}, {1024 * segstep}')
        A(f's_add_u32 {s(T_SEQ)}, {s(T_SEQ)}, 1')
        bp_switch(A, vFl, vFl2, T_SEQ, RING // segstep)
        for c in range(8):
            A(f'buffer_load_dwordx4 {v(KMF + c * 4, 4)}, {v(vKM)}, {srd(SRD_WS)}, {s(T_KM)} offen '
              f'offset:{c * 256}{SC}')
        for T in range(4):
            A(f'buffer_load_dwordx2 {v(VMF + T * 4, 2)}, {v(vVM)}, {srd(SRD_WS)}, {s(T_VM)} offen '
              f'offset:{T * 256}{SC}')
        emit_poll_issue(A, vFq, vFp, T_FPR)
        A(f's_add_u32 {s(T_KM)}, {s(T_KM)}, {65536 * segstep}')
        A(f's_add_u32 {s(T_VM)}, {s(T_VM)}, {65536 * segstep}')
        for c in range(8):
            A(f's_waitcnt vmcnt({5 + 7 - c})')
            cin = '0' if c == 0 else v(SM, 16)
            A(f'v_mfma_f32_32x32x16_bf16 {v(SM, 16)}, {v(KMF + c * 4, 4)}, {v(QF + c * 4, 4)}, {cin}')
        for i in range(4):
            A(f'v_mul_f32 {v(SM + i)}, s40, {v(SM + i)}')
        A(f'v_max3_f32 {v(mx)}, {v(mx)}, {v(SM)}, {v(SM + 1)}')
        A(f'v_max3_f32 {v(mx)}, {v(mx)}, {v(SM + 2)}, {v(SM + 3)}')
        A(f'v_mov_b32 {v(vT1)}, {v(mx)}')
        A(f'v_permlane32_swap_b32 {v(mx)}, {v(vT1)}')
        A(f'v_max_f32 {v(mx)}, {v(mx)}, {v(vT1)}')
        vals = [SX + i for i in range(16)] + [SM + i for i in range(4)]
        for r in vals:
            A(f'v_sub_f32 {v(r)}, {v(r)}, {v(mx)}')
        for r in vals:
            A(f'v_exp_f32 {v(r)}, {v(r)}')
        sm = vT1
        A(f'v_add_f32 {v(sm)}, {v(vals[0])}, {v(vals[1])}')
        A(f'v_add_f32 {v(vT2)}, {v(vals[2])}, {v(vals[3])}')
        for i in range(4, 20, 2):
            A(f'v_add_f32 {v(sm)}, {v(sm)}, {v(vals[i])}')
            A(f'v_add_f32 {v(vT2)}, {v(vT2)}, {v(vals[i + 1])}')
        A(f'v_add_f32 {v(sm)}, {v(sm)}, {v(vT2)}')
        A(f'v_mov_b32 {v(vT2)}, {v(sm)}')
        A(f'v_permlane32_swap_b32 {v(sm)}, {v(vT2)}')
        A(f'v_add_f32 {v(sm)}, {v(sm)}, {v(vT2)}')
        A(f'v_rcp_f32 {v(sm)}, {v(sm)}')
        for r in vals:
            A(f'v_mul_f32 {v(r)}, {v(r)}, {v(sm)}')
        for j in range(10):
            A(f'v_cvt_pk_bf16_f32 {v(PB + j)}, {v(vals[2 * j])}, {v(vals[2 * j + 1])}')
        A('s_waitcnt vmcnt(0)')

        def pack(T):
            out = []
            for f in (0, 1):
                n = T * 2 + f
                d = KMF + n * 4
                for j in range(4):
                    r0 = OA + T * 16 + f * 8 + 2 * j
                    out.append(f'v_cvt_pk_bf16_f32 {v(d + j)}, {v(r0)}, {v(r0 + 1)}')
                out.append(f'ds_write_b128 {v(vLw)}, {v(d, 4)} offset:{n * 1024}')
            return out

        fill = []
        for T in range(4):
            o = v(OA + T * 16, 16)
            for m in (f'v_mfma_f32_32x32x16_bf16 {o}, {v(VF + T * 8, 4)}, {v(PB, 4)}, 0',
                      f'v_mfma_f32_32x32x16_bf16 {o}, {v(VF + T * 8 + 4, 4)}, {v(PB + 4, 4)}, {o}',
                      f'v_mfma_f32_32x32x16_bf16 {o}, {v(VMF + T * 4, 4)}, {v(PB + 8, 4)}, {o}'):
                A(m)
                for _ in range(4):
                    if fill:
                        A(fill.pop(0))
            if T >= 1:
                fill += pack(T - 1)
        emit_poll_check(A, vFq)
        A(f's_cselect_b32 {s(T_PREF)}, 1, 0')
        A(f's_cmp_eq_u32 {s(T_CNT)}, 0')
        A(f's_cselect_b32 {s(T_PREF)}, 0, {s(T_PREF)}')
        A(f's_cmp_eq_u32 {s(T_PREF)}, 1')
        set_src(True)
        for x in fill + pack(3):
            A(x)
        A('s_waitcnt lgkmcnt(0)')
        A('s_barrier')
        NK, NS, D2, R2 = 32, 64, 7, 8
        ACC = [SX, SM]

        lag = 4 if TUNE.get('kmaj', 0) else None
        seq, pre, reads, waits, t0_done = mfma_plan(NK, lag, D2, R2)

        def rd(c, slot):
            A(f'ds_read_b128 {v(KMF + slot * 4, 4)}, {v(vRd)} offset:{c * 1024}')

        def cvt_tile(t):
            out = []
            for f in (0, 1):
                d = TMP + (t * 2 + f) * 4
                for j in range(4):
                    r0 = ACC[t] + f * 8 + 2 * j
                    out.append(f'v_cvt_pk_bf16_f32 {v(d + j)}, {v(r0)}, {v(r0 + 1)}')
                out.append(f'buffer_store_dwordx4 {v(d, 4)}, {v(vOut)}, {srd(SRD_WS)}, {s(T_OUT)} offen '
                           f'offset:{(t * 2 + f) * 128}{"" if LOCAL[0] else SC}')
            return out

        for x in pre:
            rd(*x)
        pl = load_list()
        early = cvt_tile(0)
        for n in range(NS):
            t, c, slot = seq[n]
            for x in reads[n]:
                rd(*x)
            if n in waits:
                A(f's_waitcnt lgkmcnt({waits[n]})')
            cin = '0' if c == 0 else v(ACC[t], 16)
            A(f'v_mfma_f32_32x32x16_bf16 {v(ACC[t], 16)}, {a((t * 32 + c) * 4, 4)}, '
              f'{v(KMF + slot * 4, 4)}, {cin}')
            if pl and (n % 2 == 0):
                A(pl.pop(0))
            if n >= t0_done + (4 if lag is None else 2):
                for _ in range(2 if lag is None else 4):
                    if early:
                        A(early.pop(0))
        assert not pl
        for x in early:
            A(x)
        A(f'v_xor_b32 {v(vRd)}, 32768, {v(vRd)}')
        A(f'v_xor_b32 {v(vLw)}, 32768, {v(vLw)}')
        for x in cvt_tile(1):
            A(x)
        adv(A, T_OUT, 8 * PSEG * segstep, wout)
        A(f's_mov_b32 {s(T_PEND)}, 1')
        pf = A.newlabel('aopf')
        A(f's_cmp_eq_u32 {s(T_PREF)}, 1')
        A(f's_cbranch_scc1 {pf}')
        A('s_waitcnt vmcnt(0)')
        signal()
        A(f's_cmp_eq_u32 {s(T_CNT)}, 0')
        A(f's_cbranch_scc1 {end_label}')
        emit_poll_block(A, vFv, vFp, T_FPR, T_SPIN, end_label, sleep=4)
        set_src(None)
        for x in load_list():
            A(x)
        A.label(pf)
        adv_in()
        A(f's_branch {top}')

    if s_pure is not None:
        gl = A.newlabel('aog')
        A(f's_cmp_eq_u32 {s(s_pure)}, 0')
        A(f's_cbranch_scc1 {gl}')
        LOCAL[0] = True
        body()
        LOCAL[0] = False
        A.label(gl)
    body()


def ln_wave(A, srd_x, s_x, s_xn, ntask, x_step, xn_step, between=None):
    vLane = 2
    vX, vN, m, q, t = 6, 7, 8, 9, 10
    XF, PN = 16, 48
    LD = 64
    A(f'v_and_b32 v3, 3, {v(vLane)}')
    A(f'v_lshrrev_b32 v4, 2, {v(vLane)}')
    A(f'v_lshlrev_b32 {v(vX)}, 10, v3')
    A(f'v_lshl_add_u32 {v(vX)}, v4, 4, {v(vX)}')
    A(f'v_lshlrev_b32 {v(vN)}, 9, v4')
    A(f'v_lshl_add_u32 {v(vN)}, v3, 4, {v(vN)}')
    A('s_mov_b32 s40, 0xffff0000')
    for i in range(ntask):
        for j in range(4):
            A(f'buffer_load_dwordx4 {v(LD + i * 16 + j * 4, 4)}, {v(vX)}, {srd(srd_x)}, {s(s_x)} offen offset:{j * 256}')
        A(f's_add_u32 {s(s_x)}, {s(s_x)}, {x_step}')
    nb = between() if between else 0

    def reduce(r):
        A(f'v_add_f32_dpp {v(r)}, {v(r)}, {v(r)} row_ror:4 row_mask:0xf bank_mask:0xf')
        A(f'v_add_f32_dpp {v(r)}, {v(r)}, {v(r)} row_ror:8 row_mask:0xf bank_mask:0xf')
        A(f'v_mov_b32 {v(t)}, {v(r)}')
        A(f'v_permlane16_swap_b32 {v(r)}, {v(t)}')
        A(f'v_add_f32 {v(r)}, {v(r)}, {v(t)}')
        A(f'v_mov_b32 {v(t)}, {v(r)}')
        A(f'v_permlane32_swap_b32 {v(r)}, {v(t)}')
        A(f'v_add_f32 {v(r)}, {v(r)}, {v(t)}')

    def rb(r):
        A(f'v_cvt_pk_bf16_f32 {v(r)}, {v(r)}, {v(r)}')
        A(f'v_lshlrev_b32 {v(r)}, 16, {v(r)}')

    for i in range(ntask):
        S = LD + i * 16
        A(f's_waitcnt vmcnt({4 * (ntask - 1) + nb})')
        for j in range(16):
            A(f'v_lshlrev_b32 {v(XF + 2 * j)}, 16, {v(S + j)}')
            A(f'v_and_b32 {v(XF + 2 * j + 1)}, s40, {v(S + j)}')
        A(f'v_add_f32 {v(m)}, {v(XF)}, {v(XF + 1)}')
        A(f'v_add_f32 {v(q)}, {v(XF + 2)}, {v(XF + 3)}')
        for j in range(4, 32, 2):
            A(f'v_add_f32 {v(m)}, {v(m)}, {v(XF + j)}')
            A(f'v_add_f32 {v(q)}, {v(q)}, {v(XF + j + 1)}')
        A(f'v_add_f32 {v(m)}, {v(m)}, {v(q)}')
        reduce(m)
        A(f'v_mul_f32 {v(m)}, {f32bits(1.0 / 512):#x}, {v(m)}')
        A(f'v_mov_b32 {v(q)}, 0')
        A(f'v_mov_b32 v11, 0')
        for j in range(0, 32, 2):
            A(f'v_sub_f32 v12, {v(XF + j)}, {v(m)}')
            A(f'v_sub_f32 v13, {v(XF + j + 1)}, {v(m)}')
            A(f'v_fmac_f32 {v(q)}, v12, v12')
            A(f'v_fmac_f32 v11, v13, v13')
        A(f'v_add_f32 {v(q)}, {v(q)}, v11')
        reduce(q)
        A(f'v_mul_f32 {v(q)}, {f32bits(1.0 / 512):#x}, {v(q)}')
        rb(q)
        A(f'v_add_f32 {v(q)}, {f32bits(1e-5):#x}, {v(q)}')
        rb(q)
        A(f'v_sqrt_f32 {v(q)}, {v(q)}')
        rb(q)
        A(f'v_rcp_f32 {v(q)}, {v(q)}')
        rb(m)
        for j in range(32):
            A(f'v_sub_f32 {v(XF + j)}, {v(XF + j)}, {v(m)}')
        for j in range(16):
            A(f'v_cvt_pk_bf16_f32 {v(S + j)}, {v(XF + 2 * j)}, {v(XF + 2 * j + 1)}')
        for j in range(16):
            A(f'v_lshlrev_b32 {v(XF + 2 * j)}, 16, {v(S + j)}')
            A(f'v_and_b32 {v(XF + 2 * j + 1)}, s40, {v(S + j)}')
        for j in range(32):
            A(f'v_mul_f32 {v(XF + j)}, {v(XF + j)}, {v(q)}')
        for j in range(16):
            A(f'v_cvt_pk_bf16_f32 {v(S + j)}, {v(XF + 2 * j)}, {v(XF + 2 * j + 1)}')
        for j in range(4):
            A(f's_add_u32 s41, {s(s_xn)}, {j * 8192}')
            A(f'buffer_store_dwordx4 {v(S + j * 4, 4)}, {v(vN)}, {srd(SRD_WS)}, s41 offen sc1')
        A(f's_add_u32 {s(s_xn)}, {s(s_xn)}, {xn_step}')


def rlw_role(A, KBN, srd_xin, srd_xout, do_ln, steps, end_label, flags, xin_sc1=True, xout_sc1=True):
    R_P, R_XI, R_XO, R_XN, R_CNT, R_FIN, R_FOUT, R_T0, R_SPIN, R_SEQ = 24, 25, 26, 27, 28, 29, 30, 31, 35, 36
    vLane = 2
    vP, vX, vN, vFl, vFv, vOne = 6, 7, 8, 11, 12, 13
    vSy, vC1, vSt = 14, 4, 5
    m, q, t, q2, d0, d1 = 16, 17, 18, 19, 20, 21
    XF, AC, UP, PK = 24, 40, 56, 64
    LD = 72
    sig = flags.get('signal', True)
    A(f'v_and_b32 v3, 1, {v(vLane)}')
    A(f'v_lshrrev_b32 v4, 1, {v(vLane)}')
    A(f's_lshl_b32 {s(R_T0)}, {s(S_WAVE)}, 1')
    A(f'v_add_u32 v3, {s(R_T0)}, v3')
    A(f'v_lshlrev_b32 {v(vX)}, 10, v3')
    A(f'v_lshl_add_u32 {v(vX)}, v4, 4, {v(vX)}')
    A(f'v_lshlrev_b32 {v(vN)}, 9, v4')
    A(f'v_lshl_add_u32 {v(vN)}, v3, 4, {v(vN)}')
    A(f'v_lshrrev_b32 v5, 2, v3')
    A(f'v_lshlrev_b32 {v(vP)}, 12, v5')
    A(f'v_lshl_add_u32 {v(vP)}, v4, 6, {v(vP)}')
    A(f'v_and_b32 v5, 3, v3')
    A(f'v_lshl_add_u32 {v(vP)}, v5, 4, {v(vP)}')
    A(f'v_mov_b32 {v(vOne)}, 1')
    A('s_mov_b32 s40, 0xffff0000')
    A(f'v_min_u32 {v(vFl)}, {flags["n"] - 1}, {v(vLane)}')
    A(f'v_lshlrev_b32 {v(vFl)}, 2, {v(vFl)}')
    sync_setup(A, vSy, vC1)
    A(f's_mov_b32 {s(R_SEQ)}, 1')
    A('s_barrier')

    def unpack(dst, src, n):
        for j in range(n):
            A(f'v_lshlrev_b32 {v(dst + 2 * j)}, 16, {v(src + j)}')
            A(f'v_and_b32 {v(dst + 2 * j + 1)}, s40, {v(src + j)}')

    def pack(dst, src, n):
        for j in range(n):
            A(f'v_cvt_pk_bf16_f32 {v(dst + j)}, {v(src + 2 * j)}, {v(src + 2 * j + 1)}')

    def reduce(r):
        for sh in (2, 4, 8):
            A(f'v_add_f32_dpp {v(r)}, {v(r)}, {v(r)} row_ror:{sh} row_mask:0xf bank_mask:0xf')
        A(f'v_mov_b32 {v(t)}, {v(r)}')
        A(f'v_permlane16_swap_b32 {v(r)}, {v(t)}')
        A(f'v_add_f32 {v(r)}, {v(r)}, {v(t)}')
        A(f'v_mov_b32 {v(t)}, {v(r)}')
        A(f'v_permlane32_swap_b32 {v(r)}, {v(t)}')
        A(f'v_add_f32 {v(r)}, {v(r)}, {v(t)}')

    def rb(r):
        A(f'v_cvt_pk_bf16_f32 {v(r)}, {v(r)}, {v(r)}')
        A(f'v_lshlrev_b32 {v(r)}, 16, {v(r)}')

    top = A.newlabel('rwtop')
    A.label(top)
    xs = ' sc1' if xin_sc1 else ''
    if not xin_sc1:
        for j in (0, 1):
            A(f'buffer_load_dwordx4 {v(LD + j * 4, 4)}, {v(vX)}, {srd(srd_xin)}, {s(R_XI)} offen offset:{j * 512}')
    emit_wait_ready(A, vFv, vFl, R_FIN, R_SEQ, R_SPIN, R_T0, vSy, end_label, sleep=TUNE.get('sl', 3))
    A(f's_mov_b32 {s(R_T0)}, {s(R_P)}')
    for kb in range(KBN):
        for j in (0, 1):
            A(f'buffer_load_dwordx4 {v(LD + 8 + kb * 8 + j * 4, 4)}, {v(vP)}, {srd(SRD_WS)}, {s(R_T0)} offen '
              f'offset:{j * 2048} sc1')
        if kb + 1 < KBN:
            A(f's_add_u32 {s(R_T0)}, {s(R_T0)}, {PSEG}')
    nx = 0
    if xin_sc1:
        nx = 2
        for j in (0, 1):
            A(f'buffer_load_dwordx4 {v(LD + j * 4, 4)}, {v(vX)}, {srd(srd_xin)}, {s(R_XI)} offen '
              f'offset:{j * 512}{xs}')
    A(f's_add_u32 {s(R_P)}, {s(R_P)}, {steps["p"]}')
    A(f's_add_u32 {s(R_XI)}, {s(R_XI)}, {steps["x"]}')
    A(f's_add_u32 {s(R_FIN)}, {s(R_FIN)}, {flags["fin_step"]}')
    A(f's_add_u32 {s(R_SEQ)}, {s(R_SEQ)}, 1')
    for kb in range(KBN):
        A(f's_waitcnt vmcnt({2 * (KBN - 1 - kb) + nx})')
        if kb == 0:
            unpack(AC, LD + 8, 8)
        else:
            for j in (0, 1):
                unpack(UP, LD + 8 + kb * 8 + j * 4, 4)
                for e in range(8):
                    A(f'v_add_f32 {v(AC + j * 8 + e)}, {v(AC + j * 8 + e)}, {v(UP + e)}')
    pack(PK, AC, 8)
    unpack(AC, PK, 8)
    A('s_waitcnt vmcnt(0)')
    unpack(XF, LD, 8)
    for e in range(16):
        A(f'v_add_f32 {v(XF + e)}, {v(XF + e)}, {v(AC + e)}')
    pack(PK, XF, 8)
    for j in (0, 1):
        A(f'buffer_store_dwordx4 {v(PK + j * 4, 4)}, {v(vX)}, {srd(srd_xout)}, {s(R_XO)} offen offset:{j * 512}'
          f'{" sc1" if xout_sc1 else ""}')
    if do_ln:
        unpack(XF, PK, 8)
        A(f'v_add_f32 {v(m)}, {v(XF)}, {v(XF + 1)}')
        A(f'v_add_f32 {v(q)}, {v(XF + 2)}, {v(XF + 3)}')
        for e in range(4, 16, 2):
            A(f'v_add_f32 {v(m)}, {v(m)}, {v(XF + e)}')
            A(f'v_add_f32 {v(q)}, {v(q)}, {v(XF + e + 1)}')
        A(f'v_add_f32 {v(m)}, {v(m)}, {v(q)}')
        reduce(m)
        A(f'v_mul_f32 {v(m)}, {f32bits(1.0 / 512):#x}, {v(m)}')
        for e in range(16):
            A(f'v_sub_f32 {v(AC + e)}, {v(XF + e)}, {v(m)}')
        A(f'v_mul_f32 {v(q)}, {v(AC)}, {v(AC)}')
        A(f'v_mul_f32 {v(q2)}, {v(AC + 1)}, {v(AC + 1)}')
        for e in range(2, 16, 2):
            A(f'v_fmac_f32 {v(q)}, {v(AC + e)}, {v(AC + e)}')
            A(f'v_fmac_f32 {v(q2)}, {v(AC + e + 1)}, {v(AC + e + 1)}')
        A(f'v_add_f32 {v(q)}, {v(q)}, {v(q2)}')
        rb(m)
        reduce(q)
        for e in range(16):
            A(f'v_sub_f32 {v(AC + e)}, {v(XF + e)}, {v(m)}')
        A(f'v_mul_f32 {v(q)}, {f32bits(1.0 / 512):#x}, {v(q)}')
        rb(q)
        A(f'v_add_f32 {v(q)}, {f32bits(1e-5):#x}, {v(q)}')
        rb(q)
        A(f'v_sqrt_f32 {v(q)}, {v(q)}')
        rb(q)
        A(f'v_rcp_f32 {v(q)}, {v(q)}')
        pack(LD, AC, 8)
        unpack(AC, LD, 8)
        for e in range(16):
            A(f'v_mul_f32 {v(AC + e)}, {v(AC + e)}, {v(q)}')
        pack(LD, AC, 8)
        A(f's_add_u32 {s(R_T0)}, {s(R_XN)}, 16384')
        A(f'buffer_store_dwordx4 {v(LD, 4)}, {v(vN)}, {srd(SRD_WS)}, {s(R_XN)} offen sc1')
        A(f'buffer_store_dwordx4 {v(LD + 4, 4)}, {v(vN)}, {srd(SRD_WS)}, {s(R_T0)} offen sc1')
    A(f's_add_u32 {s(R_XO)}, {s(R_XO)}, {steps["x"]}')
    A(f's_add_u32 {s(R_XN)}, {s(R_XN)}, {steps["xn"]}')
    if sig:
        A('s_waitcnt vmcnt(0)')
        emit_signal_agg(A, R_FOUT, vOne, vSy, vC1, vSt, R_T0)
        A(f's_add_u32 {s(R_FOUT)}, {s(R_FOUT)}, {flags["fout_step"]}')
    A('s_barrier')
    A(f's_sub_u32 {s(R_CNT)}, {s(R_CNT)}, 1')
    A(f's_cmp_lg_u32 {s(R_CNT)}, 0')
    A(f's_cbranch_scc1 {top}')
    A(f's_branch {end_label}')


def rl8_role(A, KBN, srd_xin, srd_xout, do_ln, steps, end_label, flags, xin_sc1=True, xout_sc1=True):
    R_P, R_XI, R_XO, R_XN, R_CNT, R_FIN, R_FOUT, R_T0, R_SPIN, R_SEQ = 24, 25, 26, 27, 28, 29, 30, 31, 35, 36
    vLane = 2
    vP, vX, vN, vFl, vFv, vOne = 6, 7, 8, 11, 12, 13
    vSy, vC1, vSt = 14, 4, 5
    m, q, t, q2, d0, d1 = 16, 17, 18, 19, 20, 21
    XF, AC, UP, PK = 24, 40, 56, 64
    LD = 72
    sig = flags.get('signal', True)
    vLw, vLr = 9, 10
    A('v_and_b32 v3, 7, v0')
    A('v_lshrrev_b32 v4, 3, v0')
    A(f'v_lshlrev_b32 {v(vLr)}, 4, v3')
    A(f's_lshl_b32 {s(R_T0)}, {s(S_WAVE)}, 2')
    A(f'v_add_u32 {v(vLw)}, {s(R_T0)}, {v(vLr)}')
    A(f'v_lshlrev_b32 {v(vX)}, 10, v3')
    A(f'v_lshl_add_u32 {v(vX)}, v4, 4, {v(vX)}')
    A(f'v_lshlrev_b32 {v(vN)}, 9, v4')
    A(f'v_lshl_add_u32 {v(vN)}, v3, 4, {v(vN)}')
    A(f'v_lshrrev_b32 v5, 2, v3')
    A(f'v_lshlrev_b32 {v(vP)}, 12, v5')
    A(f'v_lshl_add_u32 {v(vP)}, v4, 6, {v(vP)}')
    A(f'v_and_b32 v5, 3, v3')
    A(f'v_lshl_add_u32 {v(vP)}, v5, 4, {v(vP)}')
    A(f'v_mov_b32 {v(vOne)}, 1')
    A('s_mov_b32 s40, 0xffff0000')
    A(f'v_min_u32 {v(vFl)}, {flags["n"] - 1}, {v(vLane)}')
    A(f'v_lshlrev_b32 {v(vFl)}, 2, {v(vFl)}')
    sync_setup(A, vSy, vC1)
    A(f's_mov_b32 {s(R_SEQ)}, 1')
    A('s_barrier')

    def unpack(dst, src, n):
        for j in range(n):
            A(f'v_lshlrev_b32 {v(dst + 2 * j)}, 16, {v(src + j)}')
            A(f'v_and_b32 {v(dst + 2 * j + 1)}, s40, {v(src + j)}')

    def pack(dst, src, n):
        for j in range(n):
            A(f'v_cvt_pk_bf16_f32 {v(dst + j)}, {v(src + 2 * j)}, {v(src + 2 * j + 1)}')

    nred = [0]

    def reduce(r):
        off = 128 * nred[0]
        nred[0] += 1
        A(f'v_add_f32_dpp {v(r)}, {v(r)}, {v(r)} row_ror:8 row_mask:0xf bank_mask:0xf')
        A(f'v_mov_b32 {v(t)}, {v(r)}')
        A(f'v_permlane16_swap_b32 {v(r)}, {v(t)}')
        A(f'v_add_f32 {v(r)}, {v(r)}, {v(t)}')
        A(f'v_mov_b32 {v(t)}, {v(r)}')
        A(f'v_permlane32_swap_b32 {v(r)}, {v(t)}')
        A(f'v_add_f32 {v(r)}, {v(r)}, {v(t)}')
        A(f'ds_write_b32 {v(vLw)}, {v(r)} offset:{off}')
        A('s_waitcnt lgkmcnt(0)')
        A('s_barrier')
        A(f'ds_read_b128 {v(UP, 4)}, {v(vLr)} offset:{off}')
        A('s_waitcnt lgkmcnt(0)')
        A(f'v_add_f32 {v(UP)}, {v(UP)}, {v(UP + 1)}')
        A(f'v_add_f32 {v(UP + 2)}, {v(UP + 2)}, {v(UP + 3)}')
        A(f'v_add_f32 {v(r)}, {v(UP)}, {v(UP + 2)}')

    def rb(r):
        A(f'v_cvt_pk_bf16_f32 {v(r)}, {v(r)}, {v(r)}')
        A(f'v_lshlrev_b32 {v(r)}, 16, {v(r)}')

    top = A.newlabel('rwtop')
    A.label(top)
    xs = ' sc1' if xin_sc1 else ''
    if not xin_sc1:
        for j in (0, 1):
            A(f'buffer_load_dwordx4 {v(LD + j * 4, 4)}, {v(vX)}, {srd(srd_xin)}, {s(R_XI)} offen offset:{j * 512}')
    emit_wait_ready(A, vFv, vFl, R_FIN, R_SEQ, R_SPIN, R_T0, vSy, end_label, sleep=TUNE.get('sl', 3))
    A(f's_mov_b32 {s(R_T0)}, {s(R_P)}')
    for kb in range(KBN):
        for j in (0, 1):
            A(f'buffer_load_dwordx4 {v(LD + 8 + kb * 8 + j * 4, 4)}, {v(vP)}, {srd(SRD_WS)}, {s(R_T0)} offen '
              f'offset:{j * 2048} sc1')
        if kb + 1 < KBN:
            A(f's_add_u32 {s(R_T0)}, {s(R_T0)}, {PSEG}')
    nx = 0
    if xin_sc1:
        nx = 2
        for j in (0, 1):
            A(f'buffer_load_dwordx4 {v(LD + j * 4, 4)}, {v(vX)}, {srd(srd_xin)}, {s(R_XI)} offen '
              f'offset:{j * 512}{xs}')
    adv(A, R_P, steps['p'], flags.get('win'))
    A(f's_add_u32 {s(R_XI)}, {s(R_XI)}, {steps["x"]}')
    A(f's_add_u32 {s(R_FIN)}, {s(R_FIN)}, {flags["fin_step"]}')
    A(f's_add_u32 {s(R_SEQ)}, {s(R_SEQ)}, 1')
    for kb in range(KBN):
        A(f's_waitcnt vmcnt({2 * (KBN - 1 - kb) + nx})')
        if kb == 0:
            unpack(AC, LD + 8, 8)
        else:
            for j in (0, 1):
                unpack(UP, LD + 8 + kb * 8 + j * 4, 4)
                for e in range(8):
                    A(f'v_add_f32 {v(AC + j * 8 + e)}, {v(AC + j * 8 + e)}, {v(UP + e)}')
    pack(PK, AC, 8)
    unpack(AC, PK, 8)
    A('s_waitcnt vmcnt(0)')
    unpack(XF, LD, 8)
    for e in range(16):
        A(f'v_add_f32 {v(XF + e)}, {v(XF + e)}, {v(AC + e)}')
    pack(PK, XF, 8)
    for j in (0, 1):
        A(f'buffer_store_dwordx4 {v(PK + j * 4, 4)}, {v(vX)}, {srd(srd_xout)}, {s(R_XO)} offen offset:{j * 512}'
          f'{" sc1" if xout_sc1 else ""}')
    if do_ln:
        unpack(XF, PK, 8)
        A(f'v_add_f32 {v(m)}, {v(XF)}, {v(XF + 1)}')
        A(f'v_add_f32 {v(q)}, {v(XF + 2)}, {v(XF + 3)}')
        for e in range(4, 16, 2):
            A(f'v_add_f32 {v(m)}, {v(m)}, {v(XF + e)}')
            A(f'v_add_f32 {v(q)}, {v(q)}, {v(XF + e + 1)}')
        A(f'v_add_f32 {v(m)}, {v(m)}, {v(q)}')
        reduce(m)
        A(f'v_mul_f32 {v(m)}, {f32bits(1.0 / 512):#x}, {v(m)}')
        for e in range(16):
            A(f'v_sub_f32 {v(AC + e)}, {v(XF + e)}, {v(m)}')
        A(f'v_mul_f32 {v(q)}, {v(AC)}, {v(AC)}')
        A(f'v_mul_f32 {v(q2)}, {v(AC + 1)}, {v(AC + 1)}')
        for e in range(2, 16, 2):
            A(f'v_fmac_f32 {v(q)}, {v(AC + e)}, {v(AC + e)}')
            A(f'v_fmac_f32 {v(q2)}, {v(AC + e + 1)}, {v(AC + e + 1)}')
        A(f'v_add_f32 {v(q)}, {v(q)}, {v(q2)}')
        rb(m)
        reduce(q)
        for e in range(16):
            A(f'v_sub_f32 {v(AC + e)}, {v(XF + e)}, {v(m)}')
        A(f'v_mul_f32 {v(q)}, {f32bits(1.0 / 512):#x}, {v(q)}')
        rb(q)
        A(f'v_add_f32 {v(q)}, {f32bits(1e-5):#x}, {v(q)}')
        rb(q)
        A(f'v_sqrt_f32 {v(q)}, {v(q)}')
        rb(q)
        A(f'v_rcp_f32 {v(q)}, {v(q)}')
        pack(LD, AC, 8)
        unpack(AC, LD, 8)
        for e in range(16):
            A(f'v_mul_f32 {v(AC + e)}, {v(AC + e)}, {v(q)}')
        pack(LD, AC, 8)
        A(f's_add_u32 {s(R_T0)}, {s(R_XN)}, 16384')
        A(f'buffer_store_dwordx4 {v(LD, 4)}, {v(vN)}, {srd(SRD_WS)}, {s(R_XN)} offen sc1')
        A(f'buffer_store_dwordx4 {v(LD + 4, 4)}, {v(vN)}, {srd(SRD_WS)}, {s(R_T0)} offen sc1')
    A(f's_add_u32 {s(R_XO)}, {s(R_XO)}, {steps["x"]}')
    A(f's_add_u32 {s(R_XN)}, {s(R_XN)}, {steps["xn"]}')
    if sig:
        A('s_waitcnt vmcnt(0)')
        emit_signal_agg(A, R_FOUT, vOne, vSy, vC1, vSt, R_T0)
        A(f's_add_u32 {s(R_FOUT)}, {s(R_FOUT)}, {flags["fout_step"]}')
    A('s_barrier')
    A(f's_sub_u32 {s(R_CNT)}, {s(R_CNT)}, 1')
    A(f's_cmp_lg_u32 {s(R_CNT)}, 0')
    A(f's_cbranch_scc1 {top}')
    dstamp(A, 6, 3, (96, 96 + 7))
    A(f's_branch {end_label}')
```

```python
from asmdsl import v, a, s
from layout import *
from roles import *

M_ME, M_K, M_V, M_KM, M_VM, M_TP, M_TM, M_CTL, M_FPR, M_FOUT = 24, 25, 26, 27, 28, 29, 30, 31, 32, 33
M_STEP, M_T0, M_T1, M_T2, M_SPIN = 34, 35, 36, 37, 38
M_PW, M_PR, M_MP, M_MRS, M_MRD = 39, 40, 41, 42, 43
SRD_M0 = 44
M_PUBX = 48
M_ODD = 52
M_C = 54
M_PW2 = 56
M_XCC = 57
M_FAST = 59
M_PRO, M_SIG = 90, 91
M_SRC, M_EXP, M_DST, M_HS = 50, 51, 55, 58
M_FP2 = 58
M_CAR = 57
M_PROMPT = 31
M_FOK = 59
M_K2, M_EXO, M_SIG2 = 50, 27, 28

STAMP_NAMES = []
L_MEM = 131072
L_KX = L_MEM + 8192
L_VX = L_KX + 8192
L_QK = L_VX + 8192
L_O = L_QK + 4096
L_SEL = L_O + 2048
L_END = L_SEL + 1024

vOne, vL16, vLane = 0, 1, 2
vTouch = 2
vIdx, vWl, vHi, vQKw, vQr, vKMr, vOw, vPw, vPub, vHD, vVMw, vFl, vTa, vFv, vVr, vMw, vEx = range(3, 20)
t0, t1, t2, t3 = 20, 21, 22, 23
VX = 24
MF = 32
ACC = 64
S1 = 88
E = 120
QA, KA, VA = ACC, ACC + 8, ACC + 16
ONES = E + 4

RBLOCKS = ([('q', i) for i in (0, 2, 1, 3, 5, 7)] + [('k', i) for i in (0, 2, 1, 3, 5, 7)]
           + [('v', i) for i in (0, 2, 1, 3, 4, 6, 5, 7)]
           + [('o', 1, 0), ('o', 1, 1), ('o', 2, 0), ('o', 2, 1)])
LBLOCKS = [('q', 4), ('q', 6), ('k', 4), ('k', 6), ('o', 0, 0), ('o', 0, 1), ('o', 3, 0), ('o', 3, 1)]


def rreg(blk, t, n=8, off=0):
    r = (RBLOCKS.index(blk) * 2 + t) * 8 + off
    return a(r, n) if r < 256 else v(128 + r - 256, n)


def loff(blk, t):
    return LBLOCKS.index(blk) * 4096 + t * 2048


def hi(x):
    return x - L_MEM


def team_role(A, end_label, flags=None, force_slow=False, nsteps=NSEG, stamp=False, purity='ctl', tune=None):
    tune = tune or {}
    vS, vZ, vCh, vWq, vWoD, vTr0, vTr1 = 32, 33, 34, 35, 36, 37, 38
    A(f'v_bfe_u32 {v(vS)}, {v(vLane)}, 2, 1')
    A(f'v_bfe_u32 {v(t0)}, {v(vLane)}, 5, 1')
    A(f'v_lshl_add_u32 {v(vS)}, {v(t0)}, 1, {v(vS)}')
    A(f'v_bfe_u32 {v(t0)}, {v(vLane)}, 4, 1')
    A(f'v_lshl_add_u32 {v(vS)}, {v(t0)}, 2, {v(vS)}')
    A(f'v_bfe_u32 {v(vZ)}, {v(vLane)}, 3, 1')
    A(f'v_and_b32 {v(vCh)}, 3, {v(vLane)}')
    A(f'v_lshlrev_b32 {v(t0)}, 1, {v(t0)}')
    A(f'v_xor_b32 {v(vCh)}, {v(vCh)}, {v(t0)}')
    A(f'v_lshl_add_u32 {v(t1)}, {v(vS)}, 4, {v(vZ)}')
    A(f'v_lshlrev_b32 {v(vWq)}, 13, {v(t1)}')
    A(f'v_lshl_add_u32 {v(vWq)}, {v(vCh)}, 4, {v(vWq)}')
    A(f'v_lshl_add_u32 {v(t1)}, {v(vZ)}, 3, {v(vS)}')
    A(f'v_lshlrev_b32 {v(vWoD)}, 10, {v(t1)}')
    A(f'v_lshl_add_u32 {v(vWoD)}, {v(vCh)}, 4, {v(vWoD)}')
    A(f'v_bfe_u32 {v(t0)}, {v(vLane)}, 2, 3')
    A(f'v_bfe_u32 {v(t1)}, {v(vLane)}, 5, 1')
    A(f'v_lshl_add_u32 {v(t0)}, {v(t1)}, 4, {v(t0)}')
    A(f'v_lshlrev_b32 {v(vTr0)}, 6, {v(t0)}')
    A(f'v_and_b32 {v(t0)}, 3, {v(vLane)}')
    A(f'v_lshl_add_u32 {v(vTr0)}, {v(t0)}, 3, {v(vTr0)}')
    A(f'v_bfe_u32 {v(t1)}, {v(vLane)}, 4, 1')
    A(f'v_lshl_add_u32 {v(vTr0)}, {v(t1)}, 5, {v(vTr0)}')
    A(f's_lshl_b32 {s(M_T0)}, {s(S_WAVE)}, 15')
    A(f'v_add_u32 {v(vTr0)}, {s(M_T0)}, {v(vTr0)}')
    A(f'v_xor_b32 {v(vTr1)}, 32, {v(vTr0)}')
    A(f'v_add_u32 {v(vWl)}, {s(M_T0)}, {v(vL16)}')

    if purity == 'ctl':
        A(f's_getreg_b32 {s(M_XCC)}, hwreg(HW_REG_XCC_ID)')
        A(f's_and_b32 {s(M_XCC)}, {s(M_XCC)}, 15')
        A(f's_add_u32 {s(M_XCC)}, {s(M_XCC)}, 1')
        A(f'v_mov_b32 {v(t0)}, {s(M_XCC)}')
        A(f's_lshl_b32 {s(M_T0)}, {s(M_ME)}, 2')
        A(f's_add_u32 {s(M_T0)}, {s(M_T0)}, {s(M_CTL)}')
        A('s_mov_b64 exec, 1')
        A(f'buffer_store_dword {v(t0)}, off, {srd(SRD_WS)}, {s(M_T0)} sc1')
        A('s_mov_b64 exec, -1')

    A(f's_lshl_b32 {s(M_T2)}, {s(M_ME)}, 8')
    A(f's_lshl_b32 {s(M_T0)}, {s(S_WAVE)}, 6')
    A(f's_add_u32 {s(M_T2)}, {s(M_T2)}, {s(M_T0)}')
    A(f's_lshl_b32 {s(M_T1)}, {s(M_ME)}, 17')
    A(f's_lshl_b32 {s(M_T0)}, {s(S_WAVE)}, 8')
    A(f's_add_u32 {s(M_T1)}, {s(M_T1)}, {s(M_T0)}')
    def early_consts():
        n_, G_, hi_, row_ = 44, 45, 46, 47
        A(f'v_and_b32 {v(n_)}, 15, {v(vLane)}')
        A(f'v_lshrrev_b32 {v(G_)}, 4, {v(vLane)}')
        A(f'v_and_b32 {v(hi_)}, 1, {v(vLane)}')
        A(f'v_lshrrev_b32 {v(row_)}, 1, {v(n_)}')
        A(f'v_cmp_eq_u32 {s(M_ODD, 2)}, 1, {v(hi_)}')
        A(f'v_mov_b32 {v(t0)}, 0x4444')
        A(f'v_mov_b32 {v(t1)}, 0xeeee')
        A(f'v_cndmask_b32 {v(vIdx)}, {v(t0)}, {v(t1)}, {s(M_ODD, 2)}')
        A(f'v_add_u32 {v(vHi)}, {L_MEM}, {v(vL16)}')
        A(f's_lshl_b32 {s(M_T0)}, {s(S_WAVE)}, 11')
        A(f'v_add_u32 {v(vMw)}, {s(M_T0)}, {v(vHi)}')
        A(f's_add_u32 {s(M_DST)}, {s(M_T0)}, {L_KX}')
        A(f'v_lshlrev_b32 {v(vVr)}, 11, {v(G_)}')
        A(f'v_lshl_add_u32 {v(vVr)}, {v(n_)}, 4, {v(vVr)}')
        A(f's_lshl_b32 {s(M_T0)}, {s(S_WAVE)}, 9')
        A(f'v_add_u32 {v(vVr)}, {s(M_T0)}, {v(vVr)}')
        A(f's_lshl_b32 {s(M_T0)}, {s(S_WAVE)}, 10')
        A(f's_add_u32 {s(M_T0)}, {s(M_T0)}, {L_QK}')
        A(f'v_add_u32 {v(vEx)}, {s(M_T0)}, {v(vL16)}')
        A(f's_cmp_ge_u32 {s(S_WAVE)}, 2')
        A(f's_cselect_b32 {s(M_EXP)}, {s(M_KM)}, {s(M_VM)}')
        A(f's_and_b32 {s(M_T0)}, {s(S_WAVE)}, 1')
        A(f's_lshl_b32 {s(M_T0)}, {s(M_T0)}, 10')
        A(f's_add_u32 {s(M_EXP)}, {s(M_EXP)}, {s(M_T0)}')
        A(f'v_lshrrev_b32 {v(t0)}, 3, {v(n_)}')
        A(f'v_lshlrev_b32 {v(vQKw)}, 7, {v(t0)}')
        A(f'v_lshl_add_u32 {v(vQKw)}, {v(G_)}, 5, {v(vQKw)}')
        A(f'v_and_b32 {v(t0)}, 7, {v(n_)}')
        A(f'v_lshl_add_u32 {v(vQKw)}, {v(t0)}, 1, {v(vQKw)}')
        A(f's_lshl_b32 {s(M_T0)}, {s(S_WAVE)}, 9')
        A(f's_add_u32 {s(M_T0)}, {s(M_T0)}, {L_QK}')
        A(f'v_add_u32 {v(vQKw)}, {s(M_T0)}, {v(vQKw)}')
        A(f'v_lshl_add_u32 {v(t0)}, {v(G_)}, 3, {v(row_)}')
        A(f'v_lshlrev_b32 {v(vQr)}, 4, {v(t0)}')
        A(f'v_add_u32 {v(vQr)}, {L_QK}, {v(vQr)}')
        A(f'v_lshrrev_b32 {v(t0)}, 2, {v(n_)}')
        A(f'v_lshl_add_u32 {v(t0)}, {v(t0)}, 1, {v(hi_)}')
        A(f'v_lshl_add_u32 {v(t1)}, {v(G_)}, 3, {v(t0)}')
        A(f'v_lshlrev_b32 {v(vKMr)}, 4, {v(t1)}')
        A(f'v_add_u32 {v(vKMr)}, {L_QK + 2048}, {v(vKMr)}')
        A(f'v_lshlrev_b32 {v(vOw)}, 8, {v(hi_)}')
        A(f'v_lshl_add_u32 {v(vOw)}, {v(row_)}, 5, {v(vOw)}')
        A(f'v_lshl_add_u32 {v(vOw)}, {v(G_)}, 3, {v(vOw)}')
        A(f's_lshl_b32 {s(M_T0)}, {s(S_WAVE)}, 9')
        A(f's_add_u32 {s(M_T0)}, {s(M_T0)}, {L_O}')
        A(f'v_add_u32 {v(vOw)}, {s(M_T0)}, {v(vOw)}')
        A(f'v_lshrrev_b32 {v(t0)}, 2, {v(n_)}')
        A(f'v_lshlrev_b32 {v(vPw)}, 14, {v(t0)}')
        A(f'v_lshrrev_b32 {v(t0)}, 1, {v(G_)}')
        A(f'v_lshl_add_u32 {v(vPw)}, {v(t0)}, 13, {v(vPw)}')
        A(f'v_and_b32 {v(t0)}, 1, {v(G_)}')
        A(f'v_lshl_add_u32 {v(vPw)}, {v(t0)}, 11, {v(vPw)}')
        A(f'v_and_b32 {v(t0)}, 3, {v(n_)}')
        A(f'v_lshl_add_u32 {v(vPw)}, {v(t0)}, 4, {v(vPw)}')
        A(f's_lshl_b32 {s(M_T0)}, {s(S_WAVE)}, 16')
        A(f'v_add_u32 {v(vPw)}, {s(M_T0)}, {v(vPw)}')
        A(f'v_bfe_u32 {v(t0)}, {v(n_)}, 1, 1')
        A(f'v_lshlrev_b32 {v(vPub)}, 8, {v(t0)}')
        A(f'v_lshl_add_u32 {v(vPub)}, {v(hi_)}, 4, {v(vPub)}')
        A(f'v_and_b32 {v(t0)}, 1, {v(G_)}')
        A(f'v_lshl_add_u32 {v(vPub)}, {v(t0)}, 5, {v(vPub)}')
        A(f's_lshr_b32 {s(M_T0)}, {s(M_ME)}, 1')
        A(f's_lshl_b32 {s(M_T0)}, {s(M_T0)}, 9')
        A(f's_and_b32 {s(M_T1)}, {s(M_ME)}, 1')
        A(f's_lshl_b32 {s(M_T1)}, {s(M_T1)}, 7')
        A(f's_add_u32 {s(M_T0)}, {s(M_T0)}, {s(M_T1)}')
        A(f's_and_b32 {s(M_T1)}, {s(S_WAVE)}, 1')
        A(f's_lshl_b32 {s(M_T1)}, {s(M_T1)}, 6')
        A(f's_add_u32 {s(M_T0)}, {s(M_T0)}, {s(M_T1)}')
        A(f's_lshr_b32 {s(M_T1)}, {s(S_WAVE)}, 1')
        A(f's_lshl_b32 {s(M_T1)}, {s(M_T1)}, 3')
        A(f's_add_u32 {s(M_T0)}, {s(M_T0)}, {s(M_T1)}')
        A(f'v_add_u32 {v(vPub)}, {s(M_T0)}, {v(vPub)}')
        if tune.get('pubY'):
            A(f'v_lshrrev_b32 {v(t0)}, 2, {v(n_)}')
            A(f'v_lshlrev_b32 {v(vPw)}, 14, {v(t0)}')
            A(f'v_lshl_add_u32 {v(vPw)}, {v(G_)}, 12, {v(vPw)}')
            A(f'v_and_b32 {v(t0)}, 3, {v(n_)}')
            A(f'v_lshl_add_u32 {v(vPw)}, {v(t0)}, 4, {v(vPw)}')
            A(f's_lshl_b32 {s(M_T0)}, {s(S_WAVE)}, 16')
            A(f'v_add_u32 {v(vPw)}, {s(M_T0)}, {v(vPw)}')
            A(f'v_bfe_u32 {v(t0)}, {v(n_)}, 1, 1')
            A(f'v_lshlrev_b32 {v(vPub)}, 8, {v(t0)}')
            A(f'v_lshl_add_u32 {v(vPub)}, {v(hi_)}, 4, {v(vPub)}')
            A(f'v_and_b32 {v(t0)}, 1, {v(G_)}')
            A(f'v_lshl_add_u32 {v(vPub)}, {v(t0)}, 3, {v(vPub)}')
            A(f's_lshr_b32 {s(M_T0)}, {s(M_ME)}, 1')
            A(f's_lshl_b32 {s(M_T0)}, {s(M_T0)}, 9')
            A(f's_and_b32 {s(M_T1)}, {s(M_ME)}, 1')
            A(f's_lshl_b32 {s(M_T1)}, {s(M_T1)}, 7')
            A(f's_add_u32 {s(M_T0)}, {s(M_T0)}, {s(M_T1)}')
            A(f's_lshl_b32 {s(M_T1)}, {s(S_WAVE)}, 5')
            A(f's_add_u32 {s(M_T0)}, {s(M_T0)}, {s(M_T1)}')
            A(f'v_add_u32 {v(vPub)}, {s(M_T0)}, {v(vPub)}')
        A(f's_mov_b32 {s(M_PUBX)}, 0x000f000f')
        A(f's_mov_b32 {s(M_PUBX + 1)}, 0')
        A(f'v_lshrrev_b32 {v(t0)}, 2, {v(n_)}')
        A(f'v_lshlrev_b32 {v(vHD)}, 7, {v(t0)}')
        A(f'v_and_b32 {v(t0)}, 3, {v(n_)}')
        A(f'v_lshl_add_u32 {v(vHD)}, {v(t0)}, 4, {v(vHD)}')
        A(f'v_lshl_add_u32 {v(vHD)}, {v(G_)}, 9, {v(vHD)}')
        A(f's_lshl_b32 {s(M_T0)}, {s(S_WAVE)}, 11')
        A(f'v_add_u32 {v(vHD)}, {s(M_T0)}, {v(vHD)}')
        A(f'v_lshrrev_b32 {v(t0)}, 1, {v(G_)}')
        A(f'v_lshlrev_b32 {v(vVMw)}, 10, {v(t0)}')
        A(f'v_lshl_add_u32 {v(vVMw)}, {v(n_)}, 3, {v(vVMw)}')
        A(f'v_and_b32 {v(t0)}, 1, {v(G_)}')
        A(f'v_lshl_add_u32 {v(vVMw)}, {v(t0)}, 2, {v(vVMw)}')
        A(f's_lshl_b32 {s(M_T0)}, {s(S_WAVE)}, 8')
        A(f's_add_u32 {s(M_T0)}, {s(M_T0)}, {L_QK}')
        A(f'v_add_u32 {v(vVMw)}, {s(M_T0)}, {v(vVMw)}')
        A(f'v_lshlrev_b32 {v(vTa)}, 7, {v(n_)}')
        A(f's_lshl_b32 {s(M_T0)}, {s(S_WAVE)}, 11')
        A(f's_add_u32 {s(M_T0)}, {s(M_T0)}, 262144')
        A(f'v_add_u32 {v(vTa)}, {s(M_T0)}, {v(vTa)}')
        A(f'v_and_b32 {v(t0)}, 1, {v(G_)}')
        A(f'v_lshl_add_u32 {v(vTa)}, {v(t0)}, 25, {v(vTa)}')
        assert VT - KB == 1 << 25
        for u in range(4):
            A(f'v_cmp_eq_u32 vcc, {2 * u}, {v(n_)}')
            A(f'v_mov_b32 {v(t0)}, 0x3f80')
            A(f'v_cndmask_b32 {v(48 + u)}, 0, {v(t0)}, vcc')
            A(f'v_cmp_eq_u32 vcc, {2 * u + 1}, {v(n_)}')
            A(f'v_mov_b32 {v(t0)}, 0x3f800000')
            A(f'v_cndmask_b32 {v(48 + u)}, {v(48 + u)}, {v(t0)}, vcc')
            A(f'v_mov_b32 {v(ONES + u)}, 0x3f803f80')
        A(f's_mov_b32 {s(M_C)}, {f32bits((128 ** -0.5) * 1.4426950408889634):#x}')
        A(f'v_lshlrev_b32 {v(vFl)}, 6, {v(hi_)}')
        A(f'v_lshlrev_b32 {v(t2)}, 10, {v(row_)}')
        A(f'v_lshl_add_u32 {v(t0)}, {v(G_)}, 1, {v(hi_)}')
        A(f'v_lshl_add_u32 {v(t2)}, {v(t0)}, 1, {v(t2)}')
        A(f's_lshl_b32 {s(M_T0)}, {s(S_WAVE)}, 8')
        A(f'v_add_u32 {v(t2)}, {s(M_T0)}, {v(t2)}')
        for f in (0, 1):
            for sl in range(8):
                A(f'buffer_load_ushort {v(96 + f * 8 + sl)}, {v(t2)}, {srd(SRD_M0)}, 0 offen '
                  f'offset:{f * 16 + sl * 32}')

    def late_consts():
        A(f'ds_write_b128 {v(vHi)}, {v(48, 4)} offset:{hi(L_SEL)}')
        for r in range(8):
            A(f'v_lshl_or_b32 {v(MF + r)}, {v(96 + 2 * r + 1)}, 16, {v(96 + 2 * r)}')
        A(f's_lshl_b32 {s(M_T0)}, {s(S_WAVE)}, 11')
        A(f'v_add_u32 {v(t2)}, {s(M_T0)}, {v(vHi)}')
        A(f'ds_write_b128 {v(t2)}, {v(MF, 4)}')
        A(f'ds_write_b128 {v(t2)}, {v(MF + 4, 4)} offset:1024')
        A(f'v_lshlrev_b32 {v(t3)}, 2, {v(vLane)}')
        A(f'v_and_b32 {v(t3)}, 127, {v(t3)}')
        A(f'v_mov_b32 {v(vOne)}, 1')
        A(f'v_mov_b32 {v(vFv)}, 0')
        A(f's_mov_b32 {s(M_STEP)}, 0')

    A(f's_lshl_b32 {s(M_SPIN)}, {s(S_WAVE)}, 15')
    A(f's_lshl_b32 {s(M_STEP)}, {s(S_WAVE)}, 13')
    A(f's_add_u32 {s(M_STEP)}, {s(M_STEP)}, {L_MEM}')
    vTx0, vTx1 = 39, 40
    A(f's_sub_u32 {s(M_T0)}, {s(M_STEP)}, {s(M_SPIN)}')
    A(f'v_add_u32 {v(vTx0)}, {s(M_T0)}, {v(vTr0)}')
    A(f'v_xor_b32 {v(vTx1)}, 32, {v(vTx0)}')
    order = RBLOCKS + LBLOCKS
    NSL = 10
    slot_of = {}
    for n, blk in enumerate(RBLOCKS):
        slot_of[blk] = n % NSL
    for n, blk in enumerate(LBLOCKS):
        slot_of[blk] = n

    A(f's_and_b32 {s(M_PR)}, {s(S_WAVE)}, 1')
    A(f's_lshl_b32 {s(M_PR)}, {s(M_PR)}, 12')
    A(f's_and_b32 {s(M_MP)}, {s(S_WAVE)}, 2')

    def issue(pair):
        sl = slot_of[pair[0]]
        for p, blk in enumerate(pair):
            base, off = (M_SPIN, sl * 4096) if sl < 8 else (M_STEP, (sl - 8) * 4096)
            if blk[0] == 'o':
                A(f's_add_u32 m0, {s(base)}, {off + p * 4096}')
            else:
                A(f's_xor_b32 {s(M_T0)}, {s(M_PR)}, {p * 4096}')
                A(f's_add_u32 {s(M_T0)}, {s(M_T0)}, {s(base)}')
                A(f's_add_u32 m0, {s(M_T0)}, {off}')
            for d in range(4):
                if d:
                    A('s_add_u32 m0, m0, 1024')
                if blk[0] == 'o':
                    _, tp, ks = blk
                    A(f's_add_u32 {s(M_T0)}, {s(M_T1)}, {tp * 64 + (64 * ks + 16 * d) * 1024}')
                    A(f'buffer_load_dwordx4 {v(vWoD)}, {srd(SRD_D)}, {s(M_T0)} offen lds')
                else:
                    m, i = blk
                    if d == 0:
                        A(f's_xor_b32 {s(M_PW)}, {s(M_MP)}, {i >> 1}')
                        A(f's_lshl_b32 {s(M_PW)}, {s(M_PW)}, 20')
                        A(f's_add_u32 {s(M_PW)}, {s(M_PW)}, {s(M_T2)}')
                    A(f's_add_u32 {s(M_T0)}, {s(M_PW)}, {(8 * (i & 1) + 2 * d) * 8192}')
                    A(f'buffer_load_dwordx4 {v(vWq)}, {srd(dict(q=SRD_A, k=SRD_B, v=SRD_C)[m])}, '
                      f'{s(M_T0)} offen lds')

    def consume(blk):
        sl = slot_of[blk]
        a0, a1, base = (vTr0, vTr1, sl * 4096) if sl < 8 else (vTx0, vTx1, (sl - 8) * 4096)
        isl = blk in LBLOCKS
        for t in (0, 1):
            for half in (0, 1):
                for pp in (0, 1):
                    o = half * 4 + pp * 2
                    dst = v(64 + t * 8 + o, 2) if isl else rreg(blk, t, 2, o)
                    A(f'ds_read_b64_tr_b16 {dst}, {v(a0 if t == 0 else a1)} offset:{base + half * 2048 + pp * 512}')
        A('s_waitcnt lgkmcnt(0)')
        if isl:
            for q in range(4):
                A(f'ds_write_b128 {v(vWl)}, {v(64 + q * 4, 4)} offset:{base + q * 1024}')
            A('s_waitcnt lgkmcnt(0)')

    busy = {}
    pairs = [tuple(order[n:n + 2]) for n in range(0, len(order), 2)]
    pending = list(pairs)
    inflight = []

    def try_issue():
        for pr in list(pending):
            sl = slot_of[pr[0]]
            if sl in busy:
                continue
            if any(slot_of[b[0]] == sl and pending.index(b) < pending.index(pr) for b in pending):
                continue
            issue(pr)
            busy[sl] = pr
            inflight.append(pr)
            pending.remove(pr)

    pstamp(A, 0, 41)
    A('s_waitcnt vmcnt(0)')
    try_issue()
    A(f's_mov_b64 s[60:61], s[{M_T1}:{M_T2}]')
    early_consts()
    A(f's_mov_b64 s[{M_T1}:{M_T2}], s[60:61]')
    while inflight:
        pr = inflight.pop(0)
        A(f's_waitcnt vmcnt({8 * len(inflight) + (16 if pairs.index(pr) < NSL // 2 else 0)})')
        consume(pr[0])
        consume(pr[1])
        if pr[0] in RBLOCKS:
            del busy[slot_of[pr[0]]]
        try_issue()
    assert not pending
    pstamp(A, 1, 41)
    A('s_barrier')
    if callable(purity):
        purity(A)

    pstamp(A, 2, 41)
    late_consts()
    pstamp(A, 3, 41)
    slow = A.newlabel('tslow')
    P = dict(flags=flags, end_label=end_label, nsteps=nsteps, stamp=stamp, tune=tune)
    if purity == 'ctl':
        emit_poll_block(A, t0, t3, M_CTL, M_SPIN, end_label)
        A(f'v_cmp_eq_u32 vcc, {s(M_XCC)}, {v(t0)}')
        A('s_cmp_eq_u64 vcc, exec')
    else:
        A(f's_cmp_eq_u32 {s(M_FAST)}, 1')
    if not force_slow:
        A(f's_cbranch_scc0 {slow}')
        team_loop(A, P, fast=True)
    A.label(slow)
    team_loop(A, P, fast=False)


def team_loop(A, P, fast):
    flags, end_label, nsteps, tune = P['flags'], P['end_label'], P['nsteps'], P['tune']
    XS = '' if fast else ' sc1'
    poll_in = bool(flags and flags.get('poll_in'))
    has_sig = bool(flags and flags.get('signal'))

    def smf(acc, af, b):
        return f'v_smfmac_f32_16x16x64_bf16 {v(acc, 4)}, {v(af, 4)}, {b}, {v(vIdx)}'

    def zero(r, n):
        return [f'v_mov_b64 {v(r + i, 2)}, 0' for i in range(0, n, 2)]

    def emit(lst):
        for x in lst:
            for y in x.split('|'):
                A(y)

    def mix(ms, fs, per=2):
        for m in ms:
            A(m)
            for _ in range(per):
                if fs:
                    emit([fs.pop(0)])

    def lread(blk, t, reg):
        return [f'ds_read_b128 {v(reg, 4)}, {v(vWl)} offset:{loff(blk, t)}',
                f'ds_read_b128 {v(reg + 4, 4)}, {v(vWl)} offset:{loff(blk, t) + 1024}']

    nst = [0]

    def st(name):
        if P['stamp']:
            A(f'{"s_memrealtime" if tune.get("rt") else "s_memtime"} {s(60 + 2 * nst[0], 2)}')
            if fast:
                STAMP_NAMES.append(name)
            nst[0] += 1

    def st_flush():
        if not P['stamp']:
            return
        sk = A.newlabel('tsk')
        A(f's_cmp_lg_u32 {s(M_STEP)}, {P["stamp"]}')
        A(f's_cbranch_scc1 {sk}')
        A('s_waitcnt lgkmcnt(0)')
        A(f's_lshl_b32 {s(M_T0)}, {s(M_ME)}, 2')
        A(f's_add_u32 {s(M_T0)}, {s(M_T0)}, {s(S_WAVE)}')
        A(f's_lshl_b32 {s(M_T0)}, {s(M_T0)}, 7')
        A(f's_add_u32 {s(M_T0)}, {s(M_T0)}, {TCTL + 4096}')
        A('s_mov_b64 exec, 1')
        for i in range(nst[0]):
            A(f'v_mov_b32 {v(VX)}, {s(60 + 2 * i)}')
            A(f'buffer_store_dword {v(VX)}, off, {srd(SRD_WS)}, {s(M_T0)} offset:{4 * i}')
        A('s_mov_b64 exec, -1')
        A('s_waitcnt vmcnt(0)')
        A.label(sk)

    def prep_step():
        emit(zero(ACC, 24))
        for i in (4, 6):
            for t in (0, 1):
                emit(lread(('q', i), t, S1 + (i - 4 + t) * 8))
        A(f's_and_b32 {s(M_T0)}, {s(M_STEP)}, 3')
        A(f's_lshl_b32 {s(M_T0)}, {s(M_T0)}, 18')
        A(f's_add_u32 {s(M_T0)}, {s(M_T0)}, {s(M_TP)}')
        A(f's_lshl_b32 {s(M_T1)}, {s(M_ME)}, 6')
        A(f's_add_u32 {s(M_PW)}, {s(M_T0)}, {s(M_T1)}')
        A(f's_add_u32 {s(M_PW2)}, {s(M_PW)}, 4096')
        A(f's_lshl_b32 {s(M_T1)}, {s(M_ME)}, 13')
        A(f's_add_u32 {s(M_PR)}, {s(M_T0)}, {s(M_T1)}')
        A(f's_lshl_b32 {s(M_T1)}, {s(S_WAVE)}, 11')
        A(f's_add_u32 {s(M_PR)}, {s(M_PR)}, {s(M_T1)}')
        A(f's_add_u32 {s(M_T0)}, {s(M_STEP)}, 1')
        A(f's_and_b32 {s(M_T0)}, {s(M_T0)}, 3')
        A(f's_lshl_b32 {s(M_T0)}, {s(M_T0)}, 13')
        A(f's_add_u32 {s(M_MP)}, {s(M_T0)}, {s(M_TM)}')
        A(f's_xor_b32 {s(M_MRS)}, {s(M_MP)}, {2 << 13}')
        A(f's_sub_u32 {s(M_K2)}, {s(M_K)}, {1024 - 64}')

    NEG = E

    def wait_flags():
        if poll_in:
            ok = A.newlabel('tfok')
            A(f's_cmp_lg_u32 {s(S_WAVE)}, 3')
            A(f's_cbranch_scc1 {ok}')
            emit_poll_check(A, vFv)
            A(f's_cbranch_scc1 {ok}')
            emit_poll_block(A, vFv, vFl, M_FPR, M_SPIN, end_label, sleep=4)
            A.label(ok)
            A(f's_add_u32 {s(M_FPR)}, {s(M_FPR)}, 1024')
            A(f's_cmp_eq_u32 {s(S_WAVE)}, 3')
            A(f's_cselect_b32 {s(M_FP2)}, {s(M_FPR)}, {OOB}')

    EXR = t0

    assert TM % 32768 == 0
    top = A.newlabel('ttop')
    A(f's_mov_b32 {s(M_SIG)}, {OOB}')
    A(f's_mov_b32 {s(M_SIG2)}, {OOB}')
    A(f's_mov_b32 {s(M_CAR)}, {OOB}')
    A(f's_mov_b32 {s(M_PROMPT)}, 0')
    A(f's_mov_b32 {s(M_PRO)}, {OOB}')
    A(f's_mov_b32 {s(M_EXO)}, {OOB}')
    A(f's_mov_b32 m0, {s(M_DST)}')
    wait_flags()
    pstamp(A, 4, 41)
    dstamp(A, 2, 41, (96, 0))
    dstamp(A, 7, 41, (96, 0), cyc=True)
    dstamp(A, 4, 41, (96, 32))
    prep_step()
    A(f's_branch {top}')
    p2 = A.newlabel('tp2')
    p2b = A.newlabel('tp2b')
    fslow = A.newlabel('tfslow')
    c0 = VX

    def p2_loads():
        for j in range(2):
            A(f'buffer_load_dwordx4 {v(MF + j * 4, 4)}, {v(vL16)}, {srd(SRD_WS)}, {s(M_MRD)} offen '
              f'offset:{j * 1024} sc1')

    A.label(p2)
    p2_loads()
    A('s_mov_b64 exec, -1')
    A(f's_add_u32 {s(M_SPIN)}, {s(M_SPIN)}, 1')
    A(f's_cmp_gt_u32 {s(M_SPIN)}, {SPIN_LIMIT * 4}')
    A(f's_cbranch_scc1 {end_label}')
    A.label(p2b)
    for j in range(2):
        A(f's_waitcnt vmcnt({1 - j})')
        A(f'ds_write_b128 {v(vMw)}, {v(MF + j * 4, 4)} offset:{j * 1024}')
        r = MF + j * 4
        if j == 0:
            A(f'v_max3_u32 {v(c0)}, {v(r)}, {v(r + 1)}, {v(r + 2)}')
            A(f'v_max_u32 {v(c0)}, {v(c0)}, {v(r + 3)}')
        else:
            A(f'v_max3_u32 {v(c0)}, {v(c0)}, {v(r)}, {v(r + 1)}')
            A(f'v_max3_u32 {v(c0)}, {v(c0)}, {v(r + 2)}, {v(r + 3)}')
    A(f'v_cmp_eq_u32 vcc, -1, {v(c0)}')
    A('s_mov_b64 exec, vcc')
    A(f's_cbranch_vccnz {p2}')
    A('s_mov_b64 exec, -1')
    if P['stamp']:
        A(f'{"s_memrealtime" if tune.get("rt") else "s_memtime"} {s(60 + 2 * 14, 2)}')
        nst[0] = 15
        st_flush()
        nst[0] = 0
    if poll_in:
        A(f's_cmp_eq_u32 {s(M_FOK)}, 0')
        A(f's_cbranch_scc1 {fslow}')
    A.label(top)
    st('top')
    def qq(i, t):
        b = v(S1 + (i - 4 + t) * 8, 8) if i in (4, 6) else rreg(('q', i), t)
        return smf(QA + t * 4, MF + i * 4, b)

    def kq(i, t):
        b = v(S1 + (i - 4 + t) * 8, 8) if i in (4, 6) else rreg(('k', i), t)
        return smf(KA + t * 4, MF + i * 4, b)

    def vq(i, t):
        return smf(VA + t * 4, MF + i * 4, rreg(('v', i), t))

    def epi(acc, sel):
        f = []
        for t in (0, 1):
            r = acc + t * 4
            f += [f'v_add_f32 {v(r)}, {v(r)}, {v(r + 1)}', f'v_add_f32 {v(r + 2)}, {v(r + 2)}, {v(r + 3)}',
                  f'v_cvt_pk_bf16_f32 {v(r)}, {v(r)}, {v(r + 2)}|'
                  f'ds_write_b16 {v(vQKw)}, {v(r)} offset:{sel * 2048 + t * 256}|'
                  f'ds_write_b16_d16_hi {v(vQKw)}, {v(r)} offset:{sel * 2048 + t * 256 + 16}']
        return f

    km_ = [kq(i, t) for i in (2, 3, 4, 6, 5, 7) for t in (0, 1)]
    vs_ = [vq(i, t) for i in range(2, 8) for t in (0, 1)]
    KXR, QF = S1, S1 + 16
    nyoung = 4
    early_sig = has_sig and tune.get('sigpos', 'b2k') == 'early'
    hyb = has_sig and tune.get('sigpos', 'b2k') == 'hyb'
    xa = [VX, VX + 1, VX + 2]
    A(qq(0, 0))
    A(f'v_xor_b32 {v(xa[0])}, 2048, {v(vMw)}')
    A(qq(0, 1))
    A(f'v_xor_b32 {v(xa[1])}, 4096, {v(vMw)}')
    A(f'v_xor_b32 {v(xa[2])}, 6144, {v(vMw)}')
    A('s_waitcnt lgkmcnt(0)')
    A('s_barrier')
    st('B1')
    qorder = (4, 6, 2, 3, 5, 7)
    for i in qorder:
        A(f'ds_read_b128 {v(MF + i * 4, 4)}, {v(xa[(i >> 1) - 1])} offset:{(i & 1) * 1024}')
    kl = []
    for i in (4, 6):
        for t in (0, 1):
            kl += lread(('k', i), t, S1 + (i - 4 + t) * 8)
    own = [qq(1, 0), qq(1, 1)] + [kq(i, t) for i in (0, 1) for t in (0, 1)] + [vq(i, t) for i in (0, 1) for t in (0, 1)]
    A(own[0])
    A(f'buffer_load_dwordx4 {v(vHD)}, {srd(SRD_WS)}, {s(M_K)} offen sc1 lds')
    emit(own[1:4])
    A(f'buffer_load_dwordx4 {v(vHD)}, {srd(SRD_WS)}, {s(M_K2)} offen offset:1024 sc1 lds')
    emit(own[4:7])
    A(f'buffer_store_dwordx4 {v(EXR, 4)}, {v(vL16)}, {srd(SRD_WS)}, {s(M_EXO)} offen sc1')
    emit(own[7:9])
    if early_sig:
        emit_signal(A, M_SIG, vOne)
        nyoung += 1
    if hyb:
        emit_signal(A, M_SIG2, vOne)
        nyoung += 1
    A(own[9])
    ops = {1: [f'buffer_load_dwordx4 {v(VX, 4)}, {v(vVr)}, {srd(SRD_WS)}, {s(M_V)} offen sc1'],
           3: [f'buffer_load_dwordx4 {v(VX + 4, 4)}, {v(vVr)}, {srd(SRD_WS)}, {s(M_V)} offen offset:256 sc1'],
           5: [f'buffer_load_dword {v(vTouch)}, {v(vTa)}, {srd(SRD_WS)}, {s(M_K)} offen sc1']}
    kops = {}
    if poll_in:
        kops[2] = [f'buffer_load_dword {v(vFv)}, {v(vFl)}, {srd(SRD_WS)}, {s(M_FP2)} offen sc1']
        nyoung += 1
    nk = 0
    for n, i in enumerate(qorder):
        A(f's_waitcnt lgkmcnt({5 - n + nk})')
        A(qq(i, 0))
        if n in (1, 2):
            emit(kl[(n - 1) * 4:(n - 1) * 4 + 2])
        A(qq(i, 1))
        if n in (1, 2):
            emit(kl[(n - 1) * 4 + 2:(n - 1) * 4 + 4])
            nk += 4
        emit(ops.get(n, []))
    st('Qissued')
    fq = epi(QA, 0)
    for n in range(11):
        if n == 4:
            A('s_waitcnt lgkmcnt(0)')
        A(km_[n])
        if 4 <= n < 10:
            emit([fq.pop(0)])
        emit(kops.get(n, []))
    A(f's_waitcnt vmcnt({nyoung}) lgkmcnt(0)')
    A('s_barrier')
    st('B2q')
    rq = [f'ds_read_b128 {v(QF, 4)}, {v(vQr)}']
    rq += [f'ds_read_b128 {v(KXR + f * 4, 4)}, {v(vHi)} offset:{hi(L_KX) + f * 1024}' for f in range(2)]
    rq += [f'ds_read_b128 {v(QF + 4, 4)}, {v(vQr)} offset:512']
    rq += [f'ds_read_b128 {v(KXR + f * 4, 4)}, {v(vHi)} offset:{hi(L_KX) + f * 1024}' for f in range(2, 4)]
    rq += [f'ds_read_b128 {v(QF + ks * 4, 4)}, {v(vQr)} offset:{ks * 512}' for ks in (2, 3)]
    emit(rq[0:2])
    rq = rq[2:]
    mix([km_[11]] + vs_[0:2], rq, 2)
    A(vs_[2])
    A(f'buffer_store_dwordx4 {v(NEG, 4)}, {v(vL16)}, {srd(SRD_WS)}, {s(M_PRO)} offen offset:1024{XS}')
    A(vs_[3])
    st('Kissued')
    SX = QA
    SMA = E

    def sx(ks, t):
        cin = '0' if ks == 0 else v(SX + t * 4, 4)
        return (f'v_mfma_f32_16x16x32_bf16 {v(SX + t * 4, 4)}, {v(KXR + ((ks & 1) * 2 + t) * 4, 4)}, '
                f'{v(QF + ks * 4, 4)}, {cin}')

    fk = epi(KA, 1)
    A('s_waitcnt lgkmcnt(2)')
    mix([sx(0, 0), sx(0, 1)], fk, 2)
    A(f'ds_read_b128 {v(KXR, 4)}, {v(vHi)} offset:{hi(L_KX) + 4096}')
    A(f'ds_read_b128 {v(KXR + 4, 4)}, {v(vHi)} offset:{hi(L_KX) + 5120}')
    mix([sx(1, 0), sx(1, 1)], fk, 2)
    assert not fk
    A(f'ds_read_b128 {v(KXR + 8, 4)}, {v(vHi)} offset:{hi(L_KX) + 6144}')
    A(f'ds_read_b128 {v(KXR + 12, 4)}, {v(vHi)} offset:{hi(L_KX) + 7168}')
    emit(vs_[4:6])
    if hyb:
        hw = A.newlabel('thw')
        hb = A.newlabel('thb')
        A(f's_cmp_eq_u32 {s(M_PROMPT)}, 1')
        A(f's_cbranch_scc1 {hw}')
        A.label(hb)
        A('s_waitcnt lgkmcnt(2)')
    else:
        A('s_waitcnt lgkmcnt(2)' if early_sig else f's_waitcnt vmcnt({nyoung}) lgkmcnt(2)')
    A('s_barrier')
    st('B2k')
    KMF = MF
    rk = [f'ds_read_b128 {v(KMF + ks * 4, 4)}, {v(vKMr)} offset:{ks * 512}' for ks in range(4)]
    emit(rk[0:2])
    A(sx(2, 0))
    emit(rk[2:4])
    A(sx(2, 1))
    if has_sig and not early_sig:
        emit_signal(A, M_SIG, vOne)
    A('s_waitcnt lgkmcnt(4)')
    A(sx(3, 0))
    A(f'buffer_store_dwordx4 {v(NEG, 4)}, {v(vL16)}, {srd(SRD_WS)}, {s(M_PRO)} offen{XS}')
    A(sx(3, 1))
    A(vs_[6])

    def sm(ks):
        cin = '0' if ks == 0 else v(SMA, 4)
        return f'v_mfma_f32_16x16x32_bf16 {v(SMA, 4)}, {v(KMF + ks * 4, 4)}, {v(QF + ks * 4, 4)}, {cin}'

    mt, m2 = t0, t1
    tv = [SX + i for i in range(8)]
    PB = KA
    LT = KA + 4
    ft = [f'v_max3_f32 {v(mt)}, {v(tv[0])}, {v(tv[1])}, {v(tv[2])}',
          f'v_max3_f32 {v(m2)}, {v(tv[3])}, {v(tv[4])}, {v(tv[5])}',
          f'v_max3_f32 {v(mt)}, {v(mt)}, {v(tv[6])}, {v(tv[7])}']
    A('s_waitcnt lgkmcnt(0)')
    A(sm(0))
    A(sm(1))
    A(sm(2))
    mix([sm(3)], ft, 2)
    st('Smissued')
    fl = []
    for ks in (0, 1):
        for t in (0, 1):
            fl += lread(('o', 0, ks), t, S1 + (t * 2 + ks) * 8)
    A(vs_[7])
    emit(ft)
    emit(fl[0:4])
    A(vs_[8])
    A(f'v_max3_f32 {v(m2)}, {v(m2)}, {v(SMA)}, {v(SMA + 1)}')
    A(f'v_max_f32 {v(mt)}, {v(mt)}, {v(m2)}')
    A(f'v_mov_b32 {v(m2)}, {v(mt)}')
    A(vs_[9])
    emit(fl[4:6])
    A(f'v_permlane16_swap_b32 {v(mt)}, {v(m2)}')
    A(f'v_max_f32 {v(mt)}, {v(mt)}, {v(m2)}')
    A(f'v_mov_b32 {v(m2)}, {v(mt)}')
    A(vs_[10])
    emit(fl[6:8])
    A(f'v_permlane32_swap_b32 {v(mt)}, {v(m2)}')
    A(f'v_max_f32 {v(mt)}, {v(mt)}, {v(m2)}')
    A(vs_[11])
    A(f'v_mul_f32 {v(mt)}, {s(M_C)}, {v(mt)}')
    for r in tv:
        A(f'v_fma_f32 {v(r)}, {v(r)}, {s(M_C)}, -{v(mt)}')
    for r in tv:
        A(f'v_exp_f32 {v(r)}, {v(r)}')
    A(f'v_fma_f32 {v(SMA)}, {v(SMA)}, {s(M_C)}, -{v(mt)}')
    for j in range(4):
        A(f'v_cvt_pk_bf16_f32 {v(PB + j)}, {v(tv[2 * j])}, {v(tv[2 * j + 1])}')
    A(f'v_fma_f32 {v(SMA + 1)}, {v(SMA + 1)}, {s(M_C)}, -{v(mt)}')
    A(f'v_exp_f32 {v(SMA)}, {v(SMA)}')
    OT = QA
    PM = SMA + 2
    A(f's_waitcnt vmcnt({3 + (1 if poll_in else 0) + (1 if has_sig and not early_sig else 0)})')
    A(f'v_mfma_f32_16x16x32_bf16 {v(LT, 4)}, {v(ONES, 4)}, {v(PB, 4)}, 0')
    A(f'v_exp_f32 {v(SMA + 1)}, {v(SMA + 1)}')
    A(f'v_mfma_f32_16x16x32_bf16 {v(OT, 4)}, {v(VX, 4)}, {v(PB, 4)}, 0')
    A(f'v_cvt_pk_bf16_f32 {v(t2)}, {v(SMA)}, {v(SMA + 1)}')
    A(f'v_add_f32 {v(VA)}, {v(VA)}, {v(VA + 1)}')
    A(f'v_mfma_f32_16x16x32_bf16 {v(OT + 4, 4)}, {v(VX + 4, 4)}, {v(PB, 4)}, 0')
    A(f'v_cndmask_b32 {v(PM)}, {v(t2)}, 0, {s(M_ODD, 2)}')
    A(f'v_cndmask_b32 {v(PM + 1)}, 0, {v(t2)}, {s(M_ODD, 2)}')
    A(f'v_add_f32 {v(VA + 2)}, {v(VA + 2)}, {v(VA + 3)}')
    A(f'v_add_f32 {v(VA + 4)}, {v(VA + 4)}, {v(VA + 5)}')
    A(f'v_mfma_f32_16x16x16_bf16 {v(LT, 4)}, {v(ONES, 2)}, {v(PM, 2)}, {v(LT, 4)}')
    A(f'v_add_f32 {v(VA + 6)}, {v(VA + 6)}, {v(VA + 7)}')
    A(f'v_cvt_pk_bf16_f32 {v(VA)}, {v(VA)}, {v(VA + 2)}')
    A(f'v_cvt_pk_bf16_f32 {v(VA + 1)}, {v(VA + 4)}, {v(VA + 6)}')
    st('softdone')
    for t in (0, 1):
        A(f'ds_write_b32 {v(vVMw)}, {v(VA + t)} offset:{t * 128}')
    A(f'v_mfma_f32_16x16x16_bf16 {v(OT, 4)}, {v(VA, 2)}, {v(PM, 2)}, {v(OT, 4)}')
    A(f'v_mfma_f32_16x16x16_bf16 {v(OT + 4, 4)}, {v(VA, 2)}, {v(PM, 2)}, {v(OT + 4, 4)}')
    A(f'v_rcp_f32 {v(LT)}, {v(LT)}')
    for ks in (0, 1):
        emit(lread(('o', 3, ks), 0, MF + ks * 8))
    emit(zero(MF + 16, 6))
    for r in range(4):
        A(f'v_cndmask_b32 {v(OT + r)}, {v(OT + r)}, {v(OT + 4 + r)}, {s(M_ODD, 2)}')
    for r in range(4):
        A(f'v_mul_f32 {v(OT + r)}, {v(OT + r)}, {v(LT)}')
    A(f'v_cvt_pk_bf16_f32 {v(t2)}, {v(OT)}, {v(OT + 1)}')
    A(f'v_cvt_pk_bf16_f32 {v(t3)}, {v(OT + 2)}, {v(OT + 3)}')
    A(f'ds_write_b64 {v(vOw)}, {v(t2, 2)}')
    emit(zero(KA, 16))
    st('preB3')
    if tune.get('xs'):
        A(f's_sleep {tune["xs"]}')
    A('s_waitcnt lgkmcnt(0)')
    A('s_barrier')
    st('B3')
    done = A.newlabel('tdone')
    OF = VX
    A(f'ds_read_b128 {v(OF, 4)}, {v(vHi)} offset:{hi(L_O)}')
    A(f'ds_read_b128 {v(OF + 4, 4)}, {v(vHi)} offset:{hi(L_O) + 1024}')
    A(f's_cmp_ge_u32 {s(M_STEP)}, {nsteps - 1}')
    A(f's_cbranch_scc1 {done}')
    emit(zero(MF + 22, 10))
    oacc = [KA, KA + 4, VA, VA + 4, MF + 16, MF + 20, MF + 24, MF + 28]

    def wo(i, ks):
        if i < 2:
            return v(S1 + (i * 2 + ks) * 8, 8)
        if i < 6:
            return rreg(('o', i >> 1, ks), i & 1)
        if i == 6:
            return v(MF + ks * 8, 8)
        return v(S1 + ks * 8, 8)

    om = [smf(oacc[i], OF + ks * 4, wo(i, ks)) for i in range(8) for ks in (0, 1)]
    PK = QA

    def oadd(i):
        r = oacc[i]
        return [f'v_add_f32 {v(r)}, {v(r)}, {v(r + 1)}', f'v_add_f32 {v(r + 2)}, {v(r + 2)}, {v(r + 3)}']

    def opack(h, half):
        i0 = 4 * h + 2 * half
        f = []
        for rr in (0, 1):
            d = PK + h * 4 + rr * 2 + half
            f.append(f'v_cvt_pk_bf16_f32 {v(d)}, {v(oacc[i0] + rr * 2)}, {v(oacc[i0 + 1] + rr * 2)}')
        for rr in (0, 1):
            d = PK + h * 4 + rr * 2 + half
            f.append(f'v_min_u32 {v(d)}, -2, {v(d)}')
        return f

    def pstore(h):
        return (f'buffer_store_dwordx4 {v(PK + h * 4, 4)}, {v(vPw)}, {srd(SRD_WS)}, '
                f'{s(M_PW if h == 0 else M_PW2)} offen{XS}')

    if tune.get('pubY'):
        def opack(h, half):
            u = 2 * h + half
            f = []
            for rr in (0, 1):
                d = PK + rr * 4 + u
                f.append(f'v_cvt_pk_bf16_f32 {v(d)}, {v(oacc[2 * u] + rr * 2)}, {v(oacc[2 * u + 1] + rr * 2)}')
            for rr in (0, 1):
                d = PK + rr * 4 + u
                f.append(f'v_min_u32 {v(d)}, -2, {v(d)}')
            return f

        def pstore(h):
            if h == 0:
                return 's_nop 0'
            return '|'.join(f'buffer_store_dwordx4 {v(PK + rr * 4, 4)}, {v(vPw)}, {srd(SRD_WS)}, {s(M_PW)} offen '
                            f'offset:{rr * 2048}{XS}' for rr in (0, 1))

    A('s_waitcnt lgkmcnt(1)')
    A(om[0])
    A('s_waitcnt lgkmcnt(0)')
    A(om[1])
    f7 = lread(('o', 3, 0), 1, S1) + lread(('o', 3, 1), 1, S1 + 8)
    mix(om[2:4], f7, 2)
    A(om[4])
    SELR = S1 + 16
    A(f'ds_read_b128 {v(SELR, 4)}, {v(vHi)} offset:{hi(L_SEL)}')
    fo = oadd(0) + oadd(1) + opack(0, 0) + oadd(2) + oadd(3) + opack(0, 1) + [pstore(0)] + oadd(4)
    mix(om[5:14], fo, 2)
    A('s_waitcnt lgkmcnt(0)')
    fo += oadd(5) + opack(1, 0)
    mix(om[14:16], fo, 2)
    st('outissued')
    emit(fo)
    emit(oadd(6) + oadd(7) + opack(1, 1) + [pstore(1)])
    st('pstored')
    RD, RA = MF, MF + 8
    A(f'v_mov_b64 {v(NEG, 2)}, -1')
    A(f'v_mov_b64 {v(NEG + 2, 2)}, -1')
    A(f's_mov_b32 {s(M_SPIN)}, 0')
    if tune.get('d1'):
        A(f's_sleep {tune["d1"]}')
    p1 = A.newlabel('tp1')
    A.label(p1)
    A(f'buffer_load_dwordx4 {v(RD, 4)}, {v(vL16)}, {srd(SRD_WS)}, {s(M_PR)} offen sc1')
    A(f'buffer_load_dwordx4 {v(RD + 4, 4)}, {v(vL16)}, {srd(SRD_WS)}, {s(M_PR)} offen offset:1024 sc1')
    A('s_mov_b64 exec, -1')
    A(f's_add_u32 {s(M_SPIN)}, {s(M_SPIN)}, 1')
    A(f's_cmp_gt_u32 {s(M_SPIN)}, {SPIN_LIMIT * 4}')
    A(f's_cbranch_scc1 {end_label}')
    A('s_waitcnt vmcnt(0)')
    A(f'v_mfma_f32_16x16x32_bf16 {v(RA, 4)}, {v(SELR, 4)}, {v(RD, 4)}, 0')
    A(f'v_max3_u32 {v(t0)}, {v(RD)}, {v(RD + 1)}, {v(RD + 2)}')
    A(f'v_max3_u32 {v(t1)}, {v(RD + 3)}, {v(RD + 4)}, {v(RD + 5)}')
    A(f'v_mfma_f32_16x16x32_bf16 {v(RA, 4)}, {v(SELR, 4)}, {v(RD + 4, 4)}, {v(RA, 4)}')
    A(f'v_max3_u32 {v(t0)}, {v(t0)}, {v(RD + 6)}, {v(RD + 7)}')
    A(f'v_max_u32 {v(t0)}, {v(t0)}, {v(t1)}')
    A(f'v_cmp_eq_u32 vcc, -1, {v(t0)}')
    A('s_mov_b64 exec, vcc')
    A(f's_cbranch_vccnz {p1}')
    A('s_mov_b64 exec, -1')
    st('p1ok')
    for sh in (4, 8):
        for r in range(4):
            A(f'v_add_f32_dpp {v(RA + r)}, {v(RA + r)}, {v(RA + r)} row_ror:{sh} row_mask:0xf bank_mask:0xf')
    A(f'v_cvt_pk_bf16_f32 {v(t0)}, {v(RA)}, {v(RA + 1)}')
    A(f'v_cvt_pk_bf16_f32 {v(t1)}, {v(RA + 2)}, {v(RA + 3)}')
    A(f'v_min_u32 {v(t0)}, -2, {v(t0)}')
    A(f'v_min_u32 {v(t1)}, -2, {v(t1)}')
    A(f's_mov_b64 exec, {s(M_PUBX, 2)}')
    A(f'buffer_store_dwordx2 {v(t0, 2)}, {v(vPub)}, {srd(SRD_WS)}, {s(M_MP)} offen{XS}')
    A(f'buffer_store_dwordx2 {v(NEG, 2)}, {v(vPub)}, {srd(SRD_WS)}, {s(M_MRS)} offen{XS}')
    A('s_mov_b64 exec, -1')
    st('published')
    A(f's_add_u32 {s(M_STEP)}, {s(M_STEP)}, 1')
    A(f's_lshl_b32 {s(M_T1)}, {s(S_WAVE)}, 11')
    A(f's_add_u32 {s(M_MRD)}, {s(M_MP)}, {s(M_T1)}')
    A(f's_mov_b32 {s(M_SPIN)}, 0')
    p2_loads()
    A(f'ds_read_b128 {v(EXR, 4)}, {v(vEx)}')
    A(f's_cmp_eq_u32 {s(S_WAVE)}, 2')
    if early_sig:
        A(f's_mov_b32 {s(M_SIG)}, {s(M_SIG2)}')
        A(f's_cselect_b32 {s(M_SIG2)}, {s(M_FOUT)}, {OOB}')
    elif hyb:
        A(f's_cselect_b32 {s(M_T0)}, {s(M_FOUT)}, {OOB}')
        A(f's_mov_b32 {s(M_SIG2)}, {s(M_CAR)}')
        A(f's_sub_u32 {s(M_T1)}, {s(M_STEP)}, {tune.get("h0", 8)}')
        A(f's_cmp_lt_u32 {s(M_T1)}, {tune.get("h1", 59) - tune.get("h0", 8)}')
        A(f's_cselect_b32 {s(M_CAR)}, {s(M_T0)}, {OOB}')
        A(f's_cselect_b32 {s(M_SIG)}, {OOB}, {s(M_T0)}')
        A(f's_cselect_b32 {s(M_PROMPT)}, 0, 1')
    else:
        A(f's_cselect_b32 {s(M_SIG)}, {s(M_FOUT)}, {OOB}')
    A(f's_add_u32 {s(M_FOUT)}, {s(M_FOUT)}, 1024')
    A(f's_mov_b32 {s(M_EXO)}, {s(M_EXP)}')
    A(f's_add_u32 {s(M_EXP)}, {s(M_EXP)}, 65536')
    A(f's_mov_b32 {s(M_PRO)}, {s(M_PR)}')
    if not tune.get('x_nokv'):
        A(f's_add_u32 {s(M_K)}, {s(M_K)}, 262144')
        A(f's_add_u32 {s(M_V)}, {s(M_V)}, 262144')
    if tune.get('x_noexp'):
        A(f's_mov_b32 {s(M_EXO)}, {OOB}')
    prep_step()
    if poll_in:
        A(f'v_cmp_ne_u32 vcc, 0, {v(vFv)}')
        A('s_cmp_eq_u64 vcc, exec')
        A(f's_cselect_b32 {s(M_FOK)}, 1, 0')
        A(f's_cmp_lg_u32 {s(S_WAVE)}, 3')
        A(f's_cselect_b32 {s(M_FOK)}, 1, {s(M_FOK)}')
        A(f's_add_u32 {s(M_FP2)}, {s(M_FPR)}, 1024')
        A(f's_cselect_b32 {s(M_T0)}, 0, 0')
        A(f's_cmp_eq_u32 {s(S_WAVE)}, 3')
        A(f's_cselect_b32 {s(M_FP2)}, {s(M_FP2)}, {OOB}')
        A(f's_add_u32 {s(M_FPR)}, {s(M_FPR)}, 1024')
    A(f's_branch {p2b}')
    if poll_in:
        A.label(fslow)
        A(f's_sub_u32 {s(M_T2)}, {s(M_FPR)}, 1024')
        emit_poll_block(A, vFv, vFl, M_T2, M_SPIN, end_label, sleep=4)
        A(f's_branch {top}')
    if hyb:
        A.label(hw)
        A(f's_waitcnt vmcnt({nyoung})')
        A(f's_branch {hb}')
    A.label(done)
    dstamp(A, 3, 41, (96, 0))
    dstamp(A, 8, 41, (96, 0), cyc=True)
    dstamp(A, 5, 41, (96, 32))
    A(f'ds_read_b128 {v(EXR, 4)}, {v(vEx)}')
    A('s_waitcnt lgkmcnt(0)')
    A(f'buffer_store_dwordx4 {v(EXR, 4)}, {v(vL16)}, {srd(SRD_WS)}, {s(M_EXP)} offen sc1')
    if has_sig:
        A('s_waitcnt vmcnt(0)')
        A('s_barrier')
        A(f's_cmp_lg_u32 {s(S_WAVE)}, 2')
        A(f's_cbranch_scc1 {end_label}')
        if early_sig:
            emit_signal(A, M_SIG2, vOne)
        emit_signal(A, M_FOUT, vOne)
    A(f's_branch {end_label}')
```

```python
from asmdsl import v, a, s
from layout import *
from roles import *

M_ME, M_K, M_V, M_KM, M_VM, M_TP, M_TM, M_CTL, M_FPR, M_FOUT = 24, 25, 26, 27, 28, 29, 30, 31, 32, 33
M_STEP, M_T0, M_T1, M_T2, M_SPIN = 34, 35, 36, 37, 38
M_PW, M_PR, M_MP, M_MRS, M_MRD = 39, 40, 41, 42, 43
SRD_M0 = 44
M_PUBX = 48
M_ODD = 52
M_C = 54
M_PW2 = 56
M_XCC = 57
M_FAST = 59
M_PRO, M_SIG = 90, 91
M_SRC, M_EXP, M_DST, M_HS = 50, 51, 55, 58
M_FP2 = 58
M_CAR = 57
M_PROMPT = 31
M_FOK = 59
M_K2, M_EXO, M_SIG2 = 50, 27, 28

STAMP_NAMES = []
L_MEM = 131072
L_KX = L_MEM + 8192
L_VX = L_KX + 8192
L_QK = L_VX + 8192
L_O = L_QK + 4096
L_SEL = L_O + 2048
L_END = L_SEL + 1024

vOne, vL16, vLane = 0, 1, 2
vTouch = 2
vIdx, vWl, vHi, vQKw, vQr, vKMr, vOw, vPw, vPub, vHD, vVMw, vFl, vTa, vFv, vVr, vMw, vEx = range(3, 20)
t0, t1, t2, t3 = 20, 21, 22, 23
VX = 24
MF = 32
ACC = 64
S1 = 88
E = 120
QA, KA, VA = ACC, ACC + 8, ACC + 16
ONES = E + 4

RBLOCKS = ([('q', i) for i in (0, 2, 1, 3, 5, 7)] + [('k', i) for i in (0, 2, 1, 3, 5, 7)]
           + [('v', i) for i in (0, 2, 1, 3, 4, 6, 5, 7)]
           + [('o', 1, 0), ('o', 1, 1), ('o', 2, 0), ('o', 2, 1)])
LBLOCKS = [('q', 4), ('q', 6), ('k', 4), ('k', 6), ('o', 0, 0), ('o', 0, 1), ('o', 3, 0), ('o', 3, 1)]


def rreg(blk, t, n=8, off=0):
    r = (RBLOCKS.index(blk) * 2 + t) * 8 + off
    return a(r, n) if r < 256 else v(128 + r - 256, n)


def loff(blk, t):
    return LBLOCKS.index(blk) * 4096 + t * 2048


def hi(x):
    return x - L_MEM


def team_role(A, end_label, flags=None, force_slow=False, nsteps=NSEG, stamp=False, purity='ctl', tune=None):
    tune = tune or {}
    vS, vZ, vCh, vWq, vWoD, vTr0, vTr1 = 32, 33, 34, 35, 36, 37, 38
    A(f'v_bfe_u32 {v(vS)}, {v(vLane)}, 2, 1')
    A(f'v_bfe_u32 {v(t0)}, {v(vLane)}, 5, 1')
    A(f'v_lshl_add_u32 {v(vS)}, {v(t0)}, 1, {v(vS)}')
    A(f'v_bfe_u32 {v(t0)}, {v(vLane)}, 4, 1')
    A(f'v_lshl_add_u32 {v(vS)}, {v(t0)}, 2, {v(vS)}')
    A(f'v_bfe_u32 {v(vZ)}, {v(vLane)}, 3, 1')
    A(f'v_and_b32 {v(vCh)}, 3, {v(vLane)}')
    A(f'v_lshlrev_b32 {v(t0)}, 1, {v(t0)}')
    A(f'v_xor_b32 {v(vCh)}, {v(vCh)}, {v(t0)}')
    A(f'v_lshl_add_u32 {v(t1)}, {v(vS)}, 4, {v(vZ)}')
    A(f'v_lshlrev_b32 {v(vWq)}, 13, {v(t1)}')
    A(f'v_lshl_add_u32 {v(vWq)}, {v(vCh)}, 4, {v(vWq)}')
    A(f'v_lshl_add_u32 {v(t1)}, {v(vZ)}, 3, {v(vS)}')
    A(f'v_lshlrev_b32 {v(vWoD)}, 10, {v(t1)}')
    A(f'v_lshl_add_u32 {v(vWoD)}, {v(vCh)}, 4, {v(vWoD)}')
    A(f'v_bfe_u32 {v(t0)}, {v(vLane)}, 2, 3')
    A(f'v_bfe_u32 {v(t1)}, {v(vLane)}, 5, 1')
    A(f'v_lshl_add_u32 {v(t0)}, {v(t1)}, 4, {v(t0)}')
    A(f'v_lshlrev_b32 {v(vTr0)}, 6, {v(t0)}')
    A(f'v_and_b32 {v(t0)}, 3, {v(vLane)}')
    A(f'v_lshl_add_u32 {v(vTr0)}, {v(t0)}, 3, {v(vTr0)}')
    A(f'v_bfe_u32 {v(t1)}, {v(vLane)}, 4, 1')
    A(f'v_lshl_add_u32 {v(vTr0)}, {v(t1)}, 5, {v(vTr0)}')
    A(f's_lshl_b32 {s(M_T0)}, {s(S_WAVE)}, 15')
    A(f'v_add_u32 {v(vTr0)}, {s(M_T0)}, {v(vTr0)}')
    A(f'v_xor_b32 {v(vTr1)}, 32, {v(vTr0)}')
    A(f'v_add_u32 {v(vWl)}, {s(M_T0)}, {v(vL16)}')

    if purity == 'ctl':
        A(f's_getreg_b32 {s(M_XCC)}, hwreg(HW_REG_XCC_ID)')
        A(f's_and_b32 {s(M_XCC)}, {s(M_XCC)}, 15')
        A(f's_add_u32 {s(M_XCC)}, {s(M_XCC)}, 1')
        A(f'v_mov_b32 {v(t0)}, {s(M_XCC)}')
        A(f's_lshl_b32 {s(M_T0)}, {s(M_ME)}, 2')
        A(f's_add_u32 {s(M_T0)}, {s(M_T0)}, {s(M_CTL)}')
        A('s_mov_b64 exec, 1')
        A(f'buffer_store_dword {v(t0)}, off, {srd(SRD_WS)}, {s(M_T0)} sc1')
        A('s_mov_b64 exec, -1')

    A(f's_lshl_b32 {s(M_T2)}, {s(M_ME)}, 8')
    A(f's_lshl_b32 {s(M_T0)}, {s(S_WAVE)}, 6')
    A(f's_add_u32 {s(M_T2)}, {s(M_T2)}, {s(M_T0)}')
    A(f's_lshl_b32 {s(M_T1)}, {s(M_ME)}, 17')
    A(f's_lshl_b32 {s(M_T0)}, {s(S_WAVE)}, 8')
    A(f's_add_u32 {s(M_T1)}, {s(M_T1)}, {s(M_T0)}')
    def early_consts():
        n_, G_, hi_, row_ = 44, 45, 46, 47
        A(f'v_and_b32 {v(n_)}, 15, {v(vLane)}')
        A(f'v_lshrrev_b32 {v(G_)}, 4, {v(vLane)}')
        A(f'v_and_b32 {v(hi_)}, 1, {v(vLane)}')
        A(f'v_lshrrev_b32 {v(row_)}, 1, {v(n_)}')
        A(f'v_cmp_eq_u32 {s(M_ODD, 2)}, 1, {v(hi_)}')
        A(f'v_mov_b32 {v(t0)}, 0x4444')
        A(f'v_mov_b32 {v(t1)}, 0xeeee')
        A(f'v_cndmask_b32 {v(vIdx)}, {v(t0)}, {v(t1)}, {s(M_ODD, 2)}')
        A(f'v_add_u32 {v(vHi)}, {L_MEM}, {v(vL16)}')
        A(f's_lshl_b32 {s(M_T0)}, {s(S_WAVE)}, 11')
        A(f'v_add_u32 {v(vMw)}, {s(M_T0)}, {v(vHi)}')
        A(f's_add_u32 {s(M_DST)}, {s(M_T0)}, {L_KX}')
        A(f'v_lshlrev_b32 {v(vVr)}, 11, {v(G_)}')
        A(f'v_lshl_add_u32 {v(vVr)}, {v(n_)}, 4, {v(vVr)}')
        A(f's_lshl_b32 {s(M_T0)}, {s(S_WAVE)}, 9')
        A(f'v_add_u32 {v(vVr)}, {s(M_T0)}, {v(vVr)}')
        A(f's_lshl_b32 {s(M_T0)}, {s(S_WAVE)}, 10')
        A(f's_add_u32 {s(M_T0)}, {s(M_T0)}, {L_QK}')
        A(f'v_add_u32 {v(vEx)}, {s(M_T0)}, {v(vL16)}')
        A(f's_cmp_ge_u32 {s(S_WAVE)}, 2')
        A(f's_cselect_b32 {s(M_EXP)}, {s(M_KM)}, {s(M_VM)}')
        A(f's_and_b32 {s(M_T0)}, {s(S_WAVE)}, 1')
        A(f's_lshl_b32 {s(M_T0)}, {s(M_T0)}, 10')
        A(f's_add_u32 {s(M_EXP)}, {s(M_EXP)}, {s(M_T0)}')
        A(f'v_lshrrev_b32 {v(t0)}, 3, {v(n_)}')
        A(f'v_lshlrev_b32 {v(vQKw)}, 7, {v(t0)}')
        A(f'v_lshl_add_u32 {v(vQKw)}, {v(G_)}, 5, {v(vQKw)}')
        A(f'v_and_b32 {v(t0)}, 7, {v(n_)}')
        A(f'v_lshl_add_u32 {v(vQKw)}, {v(t0)}, 1, {v(vQKw)}')
        A(f's_lshl_b32 {s(M_T0)}, {s(S_WAVE)}, 9')
        A(f's_add_u32 {s(M_T0)}, {s(M_T0)}, {L_QK}')
        A(f'v_add_u32 {v(vQKw)}, {s(M_T0)}, {v(vQKw)}')
        A(f'v_lshl_add_u32 {v(t0)}, {v(G_)}, 3, {v(row_)}')
        A(f'v_lshlrev_b32 {v(vQr)}, 4, {v(t0)}')
        A(f'v_add_u32 {v(vQr)}, {L_QK}, {v(vQr)}')
        A(f'v_lshrrev_b32 {v(t0)}, 2, {v(n_)}')
        A(f'v_lshl_add_u32 {v(t0)}, {v(t0)}, 1, {v(hi_)}')
        A(f'v_lshl_add_u32 {v(t1)}, {v(G_)}, 3, {v(t0)}')
        A(f'v_lshlrev_b32 {v(vKMr)}, 4, {v(t1)}')
        A(f'v_add_u32 {v(vKMr)}, {L_QK + 2048}, {v(vKMr)}')
        A(f'v_lshlrev_b32 {v(vOw)}, 8, {v(hi_)}')
        A(f'v_lshl_add_u32 {v(vOw)}, {v(row_)}, 5, {v(vOw)}')
        A(f'v_lshl_add_u32 {v(vOw)}, {v(G_)}, 3, {v(vOw)}')
        A(f's_lshl_b32 {s(M_T0)}, {s(S_WAVE)}, 9')
        A(f's_add_u32 {s(M_T0)}, {s(M_T0)}, {L_O}')
        A(f'v_add_u32 {v(vOw)}, {s(M_T0)}, {v(vOw)}')
        A(f'v_lshrrev_b32 {v(t0)}, 2, {v(n_)}')
        A(f'v_lshlrev_b32 {v(vPw)}, 14, {v(t0)}')
        A(f'v_lshrrev_b32 {v(t0)}, 1, {v(G_)}')
        A(f'v_lshl_add_u32 {v(vPw)}, {v(t0)}, 13, {v(vPw)}')
        A(f'v_and_b32 {v(t0)}, 1, {v(G_)}')
        A(f'v_lshl_add_u32 {v(vPw)}, {v(t0)}, 11, {v(vPw)}')
        A(f'v_and_b32 {v(t0)}, 3, {v(n_)}')
        A(f'v_lshl_add_u32 {v(vPw)}, {v(t0)}, 4, {v(vPw)}')
        A(f's_lshl_b32 {s(M_T0)}, {s(S_WAVE)}, 16')
        A(f'v_add_u32 {v(vPw)}, {s(M_T0)}, {v(vPw)}')
        A(f'v_bfe_u32 {v(t0)}, {v(n_)}, 1, 1')
        A(f'v_lshlrev_b32 {v(vPub)}, 8, {v(t0)}')
        A(f'v_lshl_add_u32 {v(vPub)}, {v(hi_)}, 4, {v(vPub)}')
        A(f'v_and_b32 {v(t0)}, 1, {v(G_)}')
        A(f'v_lshl_add_u32 {v(vPub)}, {v(t0)}, 5, {v(vPub)}')
        A(f's_lshr_b32 {s(M_T0)}, {s(M_ME)}, 1')
        A(f's_lshl_b32 {s(M_T0)}, {s(M_T0)}, 9')
        A(f's_and_b32 {s(M_T1)}, {s(M_ME)}, 1')
        A(f's_lshl_b32 {s(M_T1)}, {s(M_T1)}, 7')
        A(f's_add_u32 {s(M_T0)}, {s(M_T0)}, {s(M_T1)}')
        A(f's_and_b32 {s(M_T1)}, {s(S_WAVE)}, 1')
        A(f's_lshl_b32 {s(M_T1)}, {s(M_T1)}, 6')
        A(f's_add_u32 {s(M_T0)}, {s(M_T0)}, {s(M_T1)}')
        A(f's_lshr_b32 {s(M_T1)}, {s(S_WAVE)}, 1')
        A(f's_lshl_b32 {s(M_T1)}, {s(M_T1)}, 3')
        A(f's_add_u32 {s(M_T0)}, {s(M_T0)}, {s(M_T1)}')
        A(f'v_add_u32 {v(vPub)}, {s(M_T0)}, {v(vPub)}')
        if tune.get('pubY'):
            A(f'v_lshrrev_b32 {v(t0)}, 2, {v(n_)}')
            A(f'v_lshlrev_b32 {v(vPw)}, 14, {v(t0)}')
            A(f'v_lshl_add_u32 {v(vPw)}, {v(G_)}, 12, {v(vPw)}')
            A(f'v_and_b32 {v(t0)}, 3, {v(n_)}')
            A(f'v_lshl_add_u32 {v(vPw)}, {v(t0)}, 4, {v(vPw)}')
            A(f's_lshl_b32 {s(M_T0)}, {s(S_WAVE)}, 16')
            A(f'v_add_u32 {v(vPw)}, {s(M_T0)}, {v(vPw)}')
            A(f'v_bfe_u32 {v(t0)}, {v(n_)}, 1, 1')
            A(f'v_lshlrev_b32 {v(vPub)}, 8, {v(t0)}')
            A(f'v_lshl_add_u32 {v(vPub)}, {v(hi_)}, 4, {v(vPub)}')
            A(f'v_and_b32 {v(t0)}, 1, {v(G_)}')
            A(f'v_lshl_add_u32 {v(vPub)}, {v(t0)}, 3, {v(vPub)}')
            A(f's_lshr_b32 {s(M_T0)}, {s(M_ME)}, 1')
            A(f's_lshl_b32 {s(M_T0)}, {s(M_T0)}, 9')
            A(f's_and_b32 {s(M_T1)}, {s(M_ME)}, 1')
            A(f's_lshl_b32 {s(M_T1)}, {s(M_T1)}, 7')
            A(f's_add_u32 {s(M_T0)}, {s(M_T0)}, {s(M_T1)}')
            A(f's_lshl_b32 {s(M_T1)}, {s(S_WAVE)}, 5')
            A(f's_add_u32 {s(M_T0)}, {s(M_T0)}, {s(M_T1)}')
            A(f'v_add_u32 {v(vPub)}, {s(M_T0)}, {v(vPub)}')
        A(f's_mov_b32 {s(M_PUBX)}, 0x000f000f')
        A(f's_mov_b32 {s(M_PUBX + 1)}, 0')
        A(f'v_lshrrev_b32 {v(t0)}, 2, {v(n_)}')
        A(f'v_lshlrev_b32 {v(vHD)}, 7, {v(t0)}')
        A(f'v_and_b32 {v(t0)}, 3, {v(n_)}')
        A(f'v_lshl_add_u32 {v(vHD)}, {v(t0)}, 4, {v(vHD)}')
        A(f'v_lshl_add_u32 {v(vHD)}, {v(G_)}, 9, {v(vHD)}')
        A(f's_lshl_b32 {s(M_T0)}, {s(S_WAVE)}, 11')
        A(f'v_add_u32 {v(vHD)}, {s(M_T0)}, {v(vHD)}')
        A(f'v_lshrrev_b32 {v(t0)}, 1, {v(G_)}')
        A(f'v_lshlrev_b32 {v(vVMw)}, 10, {v(t0)}')
        A(f'v_lshl_add_u32 {v(vVMw)}, {v(n_)}, 3, {v(vVMw)}')
        A(f'v_and_b32 {v(t0)}, 1, {v(G_)}')
        A(f'v_lshl_add_u32 {v(vVMw)}, {v(t0)}, 2, {v(vVMw)}')
        A(f's_lshl_b32 {s(M_T0)}, {s(S_WAVE)}, 8')
        A(f's_add_u32 {s(M_T0)}, {s(M_T0)}, {L_QK}')
        A(f'v_add_u32 {v(vVMw)}, {s(M_T0)}, {v(vVMw)}')
        A(f'v_lshlrev_b32 {v(vTa)}, 7, {v(n_)}')
        A(f's_lshl_b32 {s(M_T0)}, {s(S_WAVE)}, 11')
        A(f's_add_u32 {s(M_T0)}, {s(M_T0)}, 262144')
        A(f'v_add_u32 {v(vTa)}, {s(M_T0)}, {v(vTa)}')
        A(f'v_and_b32 {v(t0)}, 1, {v(G_)}')
        A(f'v_lshl_add_u32 {v(vTa)}, {v(t0)}, 25, {v(vTa)}')
        assert VT - KB == 1 << 25
        for u in range(4):
            A(f'v_cmp_eq_u32 vcc, {2 * u}, {v(n_)}')
            A(f'v_mov_b32 {v(t0)}, 0x3f80')
            A(f'v_cndmask_b32 {v(48 + u)}, 0, {v(t0)}, vcc')
            A(f'v_cmp_eq_u32 vcc, {2 * u + 1}, {v(n_)}')
            A(f'v_mov_b32 {v(t0)}, 0x3f800000')
            A(f'v_cndmask_b32 {v(48 + u)}, {v(48 + u)}, {v(t0)}, vcc')
            A(f'v_mov_b32 {v(ONES + u)}, 0x3f803f80')
        A(f's_mov_b32 {s(M_C)}, {f32bits((128 ** -0.5) * 1.4426950408889634):#x}')
        A(f'v_lshlrev_b32 {v(vFl)}, 6, {v(hi_)}')
        A(f'v_lshlrev_b32 {v(t2)}, 10, {v(row_)}')
        A(f'v_lshl_add_u32 {v(t0)}, {v(G_)}, 1, {v(hi_)}')
        A(f'v_lshl_add_u32 {v(t2)}, {v(t0)}, 1, {v(t2)}')
        A(f's_lshl_b32 {s(M_T0)}, {s(S_WAVE)}, 8')
        A(f'v_add_u32 {v(t2)}, {s(M_T0)}, {v(t2)}')
        for f in (0, 1):
            for sl in range(8):
                A(f'buffer_load_ushort {v(96 + f * 8 + sl)}, {v(t2)}, {srd(SRD_M0)}, 0 offen '
                  f'offset:{f * 16 + sl * 32}')

    def late_consts():
        A(f'ds_write_b128 {v(vHi)}, {v(48, 4)} offset:{hi(L_SEL)}')
        for r in range(8):
            A(f'v_lshl_or_b32 {v(MF + r)}, {v(96 + 2 * r + 1)}, 16, {v(96 + 2 * r)}')
        A(f's_lshl_b32 {s(M_T0)}, {s(S_WAVE)}, 11')
        A(f'v_add_u32 {v(t2)}, {s(M_T0)}, {v(vHi)}')
        A(f'ds_write_b128 {v(t2)}, {v(MF, 4)}')
        A(f'ds_write_b128 {v(t2)}, {v(MF + 4, 4)} offset:1024')
        A(f'v_lshlrev_b32 {v(t3)}, 2, {v(vLane)}')
        A(f'v_and_b32 {v(t3)}, 127, {v(t3)}')
        A(f'v_mov_b32 {v(vOne)}, 1')
        A(f'v_mov_b32 {v(vFv)}, 0')
        A(f's_mov_b32 {s(M_STEP)}, 0')

    A(f's_lshl_b32 {s(M_SPIN)}, {s(S_WAVE)}, 15')
    A(f's_lshl_b32 {s(M_STEP)}, {s(S_WAVE)}, 13')
    A(f's_add_u32 {s(M_STEP)}, {s(M_STEP)}, {L_MEM}')
    vTx0, vTx1 = 39, 40
    A(f's_sub_u32 {s(M_T0)}, {s(M_STEP)}, {s(M_SPIN)}')
    A(f'v_add_u32 {v(vTx0)}, {s(M_T0)}, {v(vTr0)}')
    A(f'v_xor_b32 {v(vTx1)}, 32, {v(vTx0)}')
    order = RBLOCKS + LBLOCKS
    NSL = 10
    MAXFL = tune.get('maxfl', 5)
    slot_of = {}
    for n, blk in enumerate(RBLOCKS):
        slot_of[blk] = n % NSL
    for n, blk in enumerate(LBLOCKS):
        slot_of[blk] = n

    A(f's_and_b32 {s(M_PR)}, {s(S_WAVE)}, 1')
    A(f's_lshl_b32 {s(M_PR)}, {s(M_PR)}, 12')
    A(f's_and_b32 {s(M_MP)}, {s(S_WAVE)}, 2')

    def issue(pair):
        sl = slot_of[pair[0]]
        for p, blk in enumerate(pair):
            base, off = (M_SPIN, sl * 4096) if sl < 8 else (M_STEP, (sl - 8) * 4096)
            if blk[0] == 'o':
                A(f's_add_u32 m0, {s(base)}, {off + p * 4096}')
            else:
                A(f's_xor_b32 {s(M_T0)}, {s(M_PR)}, {p * 4096}')
                A(f's_add_u32 {s(M_T0)}, {s(M_T0)}, {s(base)}')
                A(f's_add_u32 m0, {s(M_T0)}, {off}')
            for d in range(4):
                if d:
                    A('s_add_u32 m0, m0, 1024')
                if blk[0] == 'o':
                    _, tp, ks = blk
                    A(f's_add_u32 {s(M_T0)}, {s(M_T1)}, {tp * 64 + (64 * ks + 16 * d) * 1024}')
                    A(f'buffer_load_dwordx4 {v(vWoD)}, {srd(SRD_D)}, {s(M_T0)} offen lds')
                else:
                    m, i = blk
                    if d == 0:
                        A(f's_xor_b32 {s(M_PW)}, {s(M_MP)}, {i >> 1}')
                        A(f's_lshl_b32 {s(M_PW)}, {s(M_PW)}, 20')
                        A(f's_add_u32 {s(M_PW)}, {s(M_PW)}, {s(M_T2)}')
                    A(f's_add_u32 {s(M_T0)}, {s(M_PW)}, {(8 * (i & 1) + 2 * d) * 8192}')
                    A(f'buffer_load_dwordx4 {v(vWq)}, {srd(dict(q=SRD_A, k=SRD_B, v=SRD_C)[m])}, '
                      f'{s(M_T0)} offen lds')

    def consume(blk):
        sl = slot_of[blk]
        a0, a1, base = (vTr0, vTr1, sl * 4096) if sl < 8 else (vTx0, vTx1, (sl - 8) * 4096)
        isl = blk in LBLOCKS
        for t in (0, 1):
            for half in (0, 1):
                for pp in (0, 1):
                    o = half * 4 + pp * 2
                    dst = v(64 + t * 8 + o, 2) if isl else rreg(blk, t, 2, o)
                    A(f'ds_read_b64_tr_b16 {dst}, {v(a0 if t == 0 else a1)} offset:{base + half * 2048 + pp * 512}')
        A('s_waitcnt lgkmcnt(0)')
        if isl:
            for q in range(4):
                A(f'ds_write_b128 {v(vWl)}, {v(64 + q * 4, 4)} offset:{base + q * 1024}')
            A('s_waitcnt lgkmcnt(0)')

    busy = {}
    pairs = [tuple(order[n:n + 2]) for n in range(0, len(order), 2)]
    pending = list(pairs)
    inflight = []

    def try_issue():
        for pr in list(pending):
            sl = slot_of[pr[0]]
            if len(inflight) >= MAXFL:
                break
            if sl in busy:
                continue
            if any(slot_of[b[0]] == sl and pending.index(b) < pending.index(pr) for b in pending):
                continue
            issue(pr)
            busy[sl] = pr
            inflight.append(pr)
            pending.remove(pr)

    pstamp(A, 0, 41)
    A('s_waitcnt vmcnt(0)')
    try_issue()
    A(f's_mov_b64 s[60:61], s[{M_T1}:{M_T2}]')
    early_consts()
    A(f's_mov_b64 s[{M_T1}:{M_T2}], s[60:61]')
    while inflight:
        pr = inflight.pop(0)
        A(f's_waitcnt vmcnt({8 * len(inflight) + (16 if pairs.index(pr) < MAXFL else 0)})')
        consume(pr[0])
        consume(pr[1])
        if pr[0] in RBLOCKS:
            del busy[slot_of[pr[0]]]
        try_issue()
    assert not pending
    pstamp(A, 1, 41)
    A('s_barrier')
    if callable(purity):
        purity(A)

    pstamp(A, 2, 41)
    late_consts()
    pstamp(A, 3, 41)
    slow = A.newlabel('tslow')
    P = dict(flags=flags, end_label=end_label, nsteps=nsteps, stamp=stamp, tune=tune)
    if purity == 'ctl':
        emit_poll_block(A, t0, t3, M_CTL, M_SPIN, end_label)
        A(f'v_cmp_eq_u32 vcc, {s(M_XCC)}, {v(t0)}')
        A('s_cmp_eq_u64 vcc, exec')
    else:
        A(f's_cmp_eq_u32 {s(M_FAST)}, 1')
    if not force_slow:
        A(f's_cbranch_scc0 {slow}')
        team_loop(A, P, fast=True)
    A.label(slow)
    team_loop(A, P, fast=False)


def team_loop(A, P, fast):
    flags, end_label, nsteps, tune = P['flags'], P['end_label'], P['nsteps'], P['tune']
    XS = '' if fast else ' sc1'
    poll_in = bool(flags and flags.get('poll_in'))
    has_sig = bool(flags and flags.get('signal'))

    def smf(acc, af, b):
        return f'v_smfmac_f32_16x16x64_bf16 {v(acc, 4)}, {v(af, 4)}, {b}, {v(vIdx)}'

    def zero(r, n):
        return [f'v_mov_b64 {v(r + i, 2)}, 0' for i in range(0, n, 2)]

    def emit(lst):
        for x in lst:
            for y in x.split('|'):
                A(y)

    def mix(ms, fs, per=2):
        for m in ms:
            A(m)
            for _ in range(per):
                if fs:
                    emit([fs.pop(0)])

    def lread(blk, t, reg):
        return [f'ds_read_b128 {v(reg, 4)}, {v(vWl)} offset:{loff(blk, t)}',
                f'ds_read_b128 {v(reg + 4, 4)}, {v(vWl)} offset:{loff(blk, t) + 1024}']

    nst = [0]

    def st(name):
        if P['stamp']:
            A(f'{"s_memrealtime" if tune.get("rt") else "s_memtime"} {s(60 + 2 * nst[0], 2)}')
            if fast:
                STAMP_NAMES.append(name)
            nst[0] += 1

    def st_flush():
        if not P['stamp']:
            return
        sk = A.newlabel('tsk')
        A(f's_cmp_lg_u32 {s(M_STEP)}, {P["stamp"]}')
        A(f's_cbranch_scc1 {sk}')
        A('s_waitcnt lgkmcnt(0)')
        A(f's_lshl_b32 {s(M_T0)}, {s(M_ME)}, 2')
        A(f's_add_u32 {s(M_T0)}, {s(M_T0)}, {s(S_WAVE)}')
        A(f's_lshl_b32 {s(M_T0)}, {s(M_T0)}, 7')
        A(f's_add_u32 {s(M_T0)}, {s(M_T0)}, {TCTL + 4096}')
        A('s_mov_b64 exec, 1')
        for i in range(nst[0]):
            A(f'v_mov_b32 {v(VX)}, {s(60 + 2 * i)}')
            A(f'buffer_store_dword {v(VX)}, off, {srd(SRD_WS)}, {s(M_T0)} offset:{4 * i}')
        A('s_mov_b64 exec, -1')
        A('s_waitcnt vmcnt(0)')
        A.label(sk)

    def prep_step():
        emit(zero(ACC, 24))
        for i in (4, 6):
            for t in (0, 1):
                emit(lread(('q', i), t, S1 + (i - 4 + t) * 8))
        A(f's_and_b32 {s(M_T0)}, {s(M_STEP)}, 3')
        A(f's_lshl_b32 {s(M_T0)}, {s(M_T0)}, 18')
        A(f's_add_u32 {s(M_T0)}, {s(M_T0)}, {s(M_TP)}')
        A(f's_lshl_b32 {s(M_T1)}, {s(M_ME)}, 6')
        A(f's_add_u32 {s(M_PW)}, {s(M_T0)}, {s(M_T1)}')
        A(f's_add_u32 {s(M_PW2)}, {s(M_PW)}, 4096')
        A(f's_lshl_b32 {s(M_T1)}, {s(M_ME)}, 13')
        A(f's_add_u32 {s(M_PR)}, {s(M_T0)}, {s(M_T1)}')
        A(f's_lshl_b32 {s(M_T1)}, {s(S_WAVE)}, 11')
        A(f's_add_u32 {s(M_PR)}, {s(M_PR)}, {s(M_T1)}')
        A(f's_add_u32 {s(M_T0)}, {s(M_STEP)}, 1')
        A(f's_and_b32 {s(M_T0)}, {s(M_T0)}, 3')
        A(f's_lshl_b32 {s(M_T0)}, {s(M_T0)}, 13')
        A(f's_add_u32 {s(M_MP)}, {s(M_T0)}, {s(M_TM)}')
        A(f's_xor_b32 {s(M_MRS)}, {s(M_MP)}, {2 << 13}')
        A(f's_sub_u32 {s(M_K2)}, {s(M_K)}, {1024 - 64}')

    NEG = E

    def wait_flags():
        if poll_in:
            ok = A.newlabel('tfok')
            A(f's_cmp_lg_u32 {s(S_WAVE)}, 3')
            A(f's_cbranch_scc1 {ok}')
            emit_poll_check(A, vFv)
            A(f's_cbranch_scc1 {ok}')
            emit_poll_block(A, vFv, vFl, M_FPR, M_SPIN, end_label, sleep=4)
            A.label(ok)
            A(f's_add_u32 {s(M_FPR)}, {s(M_FPR)}, 1024')
            A(f's_cmp_eq_u32 {s(S_WAVE)}, 3')
            A(f's_cselect_b32 {s(M_FP2)}, {s(M_FPR)}, {OOB}')

    EXR = t0

    assert TM % 32768 == 0
    top = A.newlabel('ttop')
    A(f's_mov_b32 {s(M_SIG)}, {OOB}')
    A(f's_mov_b32 {s(M_SIG2)}, {OOB}')
    A(f's_mov_b32 {s(M_CAR)}, {OOB}')
    A(f's_mov_b32 {s(M_PROMPT)}, 0')
    A(f's_mov_b32 {s(M_PRO)}, {OOB}')
    A(f's_mov_b32 {s(M_EXO)}, {OOB}')
    A(f's_mov_b32 m0, {s(M_DST)}')
    wait_flags()
    pstamp(A, 4, 41)
    dstamp(A, 2, 41, (96, 0))
    dstamp(A, 7, 41, (96, 0), cyc=True)
    dstamp(A, 4, 41, (96, 32))
    prep_step()
    A(f's_branch {top}')
    p2 = A.newlabel('tp2')
    p2b = A.newlabel('tp2b')
    fslow = A.newlabel('tfslow')
    c0 = VX

    def p2_loads():
        for j in range(2):
            A(f'buffer_load_dwordx4 {v(MF + j * 4, 4)}, {v(vL16)}, {srd(SRD_WS)}, {s(M_MRD)} offen '
              f'offset:{j * 1024} sc1')

    A.label(p2)
    p2_loads()
    A('s_mov_b64 exec, -1')
    A(f's_add_u32 {s(M_SPIN)}, {s(M_SPIN)}, 1')
    A(f's_cmp_gt_u32 {s(M_SPIN)}, {SPIN_LIMIT * 4}')
    A(f's_cbranch_scc1 {end_label}')
    A.label(p2b)
    for j in range(2):
        A(f's_waitcnt vmcnt({1 - j})')
        A(f'ds_write_b128 {v(vMw)}, {v(MF + j * 4, 4)} offset:{j * 1024}')
        r = MF + j * 4
        if j == 0:
            A(f'v_max3_u32 {v(c0)}, {v(r)}, {v(r + 1)}, {v(r + 2)}')
            A(f'v_max_u32 {v(c0)}, {v(c0)}, {v(r + 3)}')
        else:
            A(f'v_max3_u32 {v(c0)}, {v(c0)}, {v(r)}, {v(r + 1)}')
            A(f'v_max3_u32 {v(c0)}, {v(c0)}, {v(r + 2)}, {v(r + 3)}')
    A(f'v_cmp_eq_u32 vcc, -1, {v(c0)}')
    A('s_mov_b64 exec, vcc')
    A(f's_cbranch_vccnz {p2}')
    A('s_mov_b64 exec, -1')
    if P['stamp']:
        A(f'{"s_memrealtime" if tune.get("rt") else "s_memtime"} {s(60 + 2 * 14, 2)}')
        nst[0] = 15
        st_flush()
        nst[0] = 0
    if poll_in:
        A(f's_cmp_eq_u32 {s(M_FOK)}, 0')
        A(f's_cbranch_scc1 {fslow}')
    A.label(top)
    st('top')
    def qq(i, t):
        b = v(S1 + (i - 4 + t) * 8, 8) if i in (4, 6) else rreg(('q', i), t)
        return smf(QA + t * 4, MF + i * 4, b)

    def kq(i, t):
        b = v(S1 + (i - 4 + t) * 8, 8) if i in (4, 6) else rreg(('k', i), t)
        return smf(KA + t * 4, MF + i * 4, b)

    def vq(i, t):
        return smf(VA + t * 4, MF + i * 4, rreg(('v', i), t))

    def epi(acc, sel):
        f = []
        for t in (0, 1):
            r = acc + t * 4
            f += [f'v_add_f32 {v(r)}, {v(r)}, {v(r + 1)}', f'v_add_f32 {v(r + 2)}, {v(r + 2)}, {v(r + 3)}',
                  f'v_cvt_pk_bf16_f32 {v(r)}, {v(r)}, {v(r + 2)}|'
                  f'ds_write_b16 {v(vQKw)}, {v(r)} offset:{sel * 2048 + t * 256}|'
                  f'ds_write_b16_d16_hi {v(vQKw)}, {v(r)} offset:{sel * 2048 + t * 256 + 16}']
        return f

    km_ = [kq(i, t) for i in (2, 3, 4, 6, 5, 7) for t in (0, 1)]
    vs_ = [vq(i, t) for i in range(2, 8) for t in (0, 1)]
    KXR, QF = S1, S1 + 16
    nyoung = 4
    early_sig = has_sig and tune.get('sigpos', 'b2k') == 'early'
    hyb = has_sig and tune.get('sigpos', 'b2k') == 'hyb'
    xa = [VX, VX + 1, VX + 2]
    A(qq(0, 0))
    A(f'v_xor_b32 {v(xa[0])}, 2048, {v(vMw)}')
    A(qq(0, 1))
    A(f'v_xor_b32 {v(xa[1])}, 4096, {v(vMw)}')
    A(f'v_xor_b32 {v(xa[2])}, 6144, {v(vMw)}')
    A('s_waitcnt lgkmcnt(0)')
    A('s_barrier')
    st('B1')
    qorder = (4, 6, 2, 3, 5, 7)
    for i in qorder:
        A(f'ds_read_b128 {v(MF + i * 4, 4)}, {v(xa[(i >> 1) - 1])} offset:{(i & 1) * 1024}')
    kl = []
    for i in (4, 6):
        for t in (0, 1):
            kl += lread(('k', i), t, S1 + (i - 4 + t) * 8)
    own = [qq(1, 0), qq(1, 1)] + [kq(i, t) for i in (0, 1) for t in (0, 1)] + [vq(i, t) for i in (0, 1) for t in (0, 1)]
    A(own[0])
    A(f'buffer_load_dwordx4 {v(vHD)}, {srd(SRD_WS)}, {s(M_K)} offen sc1 lds')
    emit(own[1:4])
    A(f'buffer_load_dwordx4 {v(vHD)}, {srd(SRD_WS)}, {s(M_K2)} offen offset:1024 sc1 lds')
    emit(own[4:7])
    A(f'buffer_store_dwordx4 {v(EXR, 4)}, {v(vL16)}, {srd(SRD_WS)}, {s(M_EXO)} offen sc1')
    emit(own[7:9])
    if early_sig:
        emit_signal(A, M_SIG, vOne)
        nyoung += 1
    if hyb:
        emit_signal(A, M_SIG2, vOne)
        nyoung += 1
    A(own[9])
    ops = {1: [f'buffer_load_dwordx4 {v(VX, 4)}, {v(vVr)}, {srd(SRD_WS)}, {s(M_V)} offen sc1'],
           3: [f'buffer_load_dwordx4 {v(VX + 4, 4)}, {v(vVr)}, {srd(SRD_WS)}, {s(M_V)} offen offset:256 sc1'],
           5: [f'buffer_load_dword {v(vTouch)}, {v(vTa)}, {srd(SRD_WS)}, {s(M_K)} offen sc1']}
    kops = {}
    if poll_in:
        kops[2] = [f'buffer_load_dword {v(vFv)}, {v(vFl)}, {srd(SRD_WS)}, {s(M_FP2)} offen sc1']
        nyoung += 1
    nk = 0
    for n, i in enumerate(qorder):
        A(f's_waitcnt lgkmcnt({5 - n + nk})')
        A(qq(i, 0))
        if n in (1, 2):
            emit(kl[(n - 1) * 4:(n - 1) * 4 + 2])
        A(qq(i, 1))
        if n in (1, 2):
            emit(kl[(n - 1) * 4 + 2:(n - 1) * 4 + 4])
            nk += 4
        emit(ops.get(n, []))
    st('Qissued')
    fq = epi(QA, 0)
    for n in range(11):
        if n == 4:
            A('s_waitcnt lgkmcnt(0)')
        A(km_[n])
        if 4 <= n < 10:
            emit([fq.pop(0)])
        emit(kops.get(n, []))
    A(f's_waitcnt vmcnt({nyoung}) lgkmcnt(0)')
    A('s_barrier')
    st('B2q')
    rq = [f'ds_read_b128 {v(QF, 4)}, {v(vQr)}']
    rq += [f'ds_read_b128 {v(KXR + f * 4, 4)}, {v(vHi)} offset:{hi(L_KX) + f * 1024}' for f in range(2)]
    rq += [f'ds_read_b128 {v(QF + 4, 4)}, {v(vQr)} offset:512']
    rq += [f'ds_read_b128 {v(KXR + f * 4, 4)}, {v(vHi)} offset:{hi(L_KX) + f * 1024}' for f in range(2, 4)]
    rq += [f'ds_read_b128 {v(QF + ks * 4, 4)}, {v(vQr)} offset:{ks * 512}' for ks in (2, 3)]
    emit(rq[0:2])
    rq = rq[2:]
    mix([km_[11]] + vs_[0:2], rq, 2)
    A(vs_[2])
    A(f'buffer_store_dwordx4 {v(NEG, 4)}, {v(vL16)}, {srd(SRD_WS)}, {s(M_PRO)} offen offset:1024{XS}')
    A(vs_[3])
    st('Kissued')
    SX = QA
    SMA = E

    def sx(ks, t):
        cin = '0' if ks == 0 else v(SX + t * 4, 4)
        return (f'v_mfma_f32_16x16x32_bf16 {v(SX + t * 4, 4)}, {v(KXR + ((ks & 1) * 2 + t) * 4, 4)}, '
                f'{v(QF + ks * 4, 4)}, {cin}')

    fk = epi(KA, 1)
    A('s_waitcnt lgkmcnt(2)')
    mix([sx(0, 0), sx(0, 1)], fk, 2)
    A(f'ds_read_b128 {v(KXR, 4)}, {v(vHi)} offset:{hi(L_KX) + 4096}')
    A(f'ds_read_b128 {v(KXR + 4, 4)}, {v(vHi)} offset:{hi(L_KX) + 5120}')
    mix([sx(1, 0), sx(1, 1)], fk, 2)
    assert not fk
    A(f'ds_read_b128 {v(KXR + 8, 4)}, {v(vHi)} offset:{hi(L_KX) + 6144}')
    A(f'ds_read_b128 {v(KXR + 12, 4)}, {v(vHi)} offset:{hi(L_KX) + 7168}')
    emit(vs_[4:6])
    if hyb:
        hw = A.newlabel('thw')
        hb = A.newlabel('thb')
        A(f's_cmp_eq_u32 {s(M_PROMPT)}, 1')
        A(f's_cbranch_scc1 {hw}')
        A.label(hb)
        A('s_waitcnt lgkmcnt(2)')
    else:
        A('s_waitcnt lgkmcnt(2)' if early_sig else f's_waitcnt vmcnt({nyoung}) lgkmcnt(2)')
    A('s_barrier')
    st('B2k')
    KMF = MF
    rk = [f'ds_read_b128 {v(KMF + ks * 4, 4)}, {v(vKMr)} offset:{ks * 512}' for ks in range(4)]
    emit(rk[0:2])
    A(sx(2, 0))
    emit(rk[2:4])
    A(sx(2, 1))
    if has_sig and not early_sig:
        emit_signal(A, M_SIG, vOne)
    A('s_waitcnt lgkmcnt(4)')
    A(sx(3, 0))
    A(f'buffer_store_dwordx4 {v(NEG, 4)}, {v(vL16)}, {srd(SRD_WS)}, {s(M_PRO)} offen{XS}')
    A(sx(3, 1))
    A(vs_[6])

    def sm(ks):
        cin = '0' if ks == 0 else v(SMA, 4)
        return f'v_mfma_f32_16x16x32_bf16 {v(SMA, 4)}, {v(KMF + ks * 4, 4)}, {v(QF + ks * 4, 4)}, {cin}'

    mt, m2 = t0, t1
    tv = [SX + i for i in range(8)]
    PB = KA
    LT = KA + 4
    ft = [f'v_max3_f32 {v(mt)}, {v(tv[0])}, {v(tv[1])}, {v(tv[2])}',
          f'v_max3_f32 {v(m2)}, {v(tv[3])}, {v(tv[4])}, {v(tv[5])}',
          f'v_max3_f32 {v(mt)}, {v(mt)}, {v(tv[6])}, {v(tv[7])}']
    A('s_waitcnt lgkmcnt(0)')
    A(sm(0))
    A(sm(1))
    A(sm(2))
    mix([sm(3)], ft, 2)
    st('Smissued')
    fl = []
    for ks in (0, 1):
        for t in (0, 1):
            fl += lread(('o', 0, ks), t, S1 + (t * 2 + ks) * 8)
    A(vs_[7])
    emit(ft)
    emit(fl[0:4])
    A(vs_[8])
    A(f'v_max3_f32 {v(m2)}, {v(m2)}, {v(SMA)}, {v(SMA + 1)}')
    A(f'v_max_f32 {v(mt)}, {v(mt)}, {v(m2)}')
    A(f'v_mov_b32 {v(m2)}, {v(mt)}')
    A(vs_[9])
    emit(fl[4:6])
    A(f'v_permlane16_swap_b32 {v(mt)}, {v(m2)}')
    A(f'v_max_f32 {v(mt)}, {v(mt)}, {v(m2)}')
    A(f'v_mov_b32 {v(m2)}, {v(mt)}')
    A(vs_[10])
    emit(fl[6:8])
    A(f'v_permlane32_swap_b32 {v(mt)}, {v(m2)}')
    A(f'v_max_f32 {v(mt)}, {v(mt)}, {v(m2)}')
    A(vs_[11])
    A(f'v_mul_f32 {v(mt)}, {s(M_C)}, {v(mt)}')
    for r in tv:
        A(f'v_fma_f32 {v(r)}, {v(r)}, {s(M_C)}, -{v(mt)}')
    for r in tv:
        A(f'v_exp_f32 {v(r)}, {v(r)}')
    A(f'v_fma_f32 {v(SMA)}, {v(SMA)}, {s(M_C)}, -{v(mt)}')
    for j in range(4):
        A(f'v_cvt_pk_bf16_f32 {v(PB + j)}, {v(tv[2 * j])}, {v(tv[2 * j + 1])}')
    A(f'v_fma_f32 {v(SMA + 1)}, {v(SMA + 1)}, {s(M_C)}, -{v(mt)}')
    A(f'v_exp_f32 {v(SMA)}, {v(SMA)}')
    OT = QA
    PM = SMA + 2
    A(f's_waitcnt vmcnt({3 + (1 if poll_in else 0) + (1 if has_sig and not early_sig else 0)})')
    A(f'v_mfma_f32_16x16x32_bf16 {v(LT, 4)}, {v(ONES, 4)}, {v(PB, 4)}, 0')
    A(f'v_exp_f32 {v(SMA + 1)}, {v(SMA + 1)}')
    A(f'v_mfma_f32_16x16x32_bf16 {v(OT, 4)}, {v(VX, 4)}, {v(PB, 4)}, 0')
    A(f'v_cvt_pk_bf16_f32 {v(t2)}, {v(SMA)}, {v(SMA + 1)}')
    A(f'v_add_f32 {v(VA)}, {v(VA)}, {v(VA + 1)}')
    A(f'v_mfma_f32_16x16x32_bf16 {v(OT + 4, 4)}, {v(VX + 4, 4)}, {v(PB, 4)}, 0')
    A(f'v_cndmask_b32 {v(PM)}, {v(t2)}, 0, {s(M_ODD, 2)}')
    A(f'v_cndmask_b32 {v(PM + 1)}, 0, {v(t2)}, {s(M_ODD, 2)}')
    A(f'v_add_f32 {v(VA + 2)}, {v(VA + 2)}, {v(VA + 3)}')
    A(f'v_add_f32 {v(VA + 4)}, {v(VA + 4)}, {v(VA + 5)}')
    A(f'v_mfma_f32_16x16x16_bf16 {v(LT, 4)}, {v(ONES, 2)}, {v(PM, 2)}, {v(LT, 4)}')
    A(f'v_add_f32 {v(VA + 6)}, {v(VA + 6)}, {v(VA + 7)}')
    A(f'v_cvt_pk_bf16_f32 {v(VA)}, {v(VA)}, {v(VA + 2)}')
    A(f'v_cvt_pk_bf16_f32 {v(VA + 1)}, {v(VA + 4)}, {v(VA + 6)}')
    st('softdone')
    for t in (0, 1):
        A(f'ds_write_b32 {v(vVMw)}, {v(VA + t)} offset:{t * 128}')
    A(f'v_mfma_f32_16x16x16_bf16 {v(OT, 4)}, {v(VA, 2)}, {v(PM, 2)}, {v(OT, 4)}')
    A(f'v_mfma_f32_16x16x16_bf16 {v(OT + 4, 4)}, {v(VA, 2)}, {v(PM, 2)}, {v(OT + 4, 4)}')
    A(f'v_rcp_f32 {v(LT)}, {v(LT)}')
    for ks in (0, 1):
        emit(lread(('o', 3, ks), 0, MF + ks * 8))
    emit(zero(MF + 16, 6))
    for r in range(4):
        A(f'v_cndmask_b32 {v(OT + r)}, {v(OT + r)}, {v(OT + 4 + r)}, {s(M_ODD, 2)}')
    for r in range(4):
        A(f'v_mul_f32 {v(OT + r)}, {v(OT + r)}, {v(LT)}')
    A(f'v_cvt_pk_bf16_f32 {v(t2)}, {v(OT)}, {v(OT + 1)}')
    A(f'v_cvt_pk_bf16_f32 {v(t3)}, {v(OT + 2)}, {v(OT + 3)}')
    A(f'ds_write_b64 {v(vOw)}, {v(t2, 2)}')
    emit(zero(KA, 16))
    st('preB3')
    if tune.get('xs'):
        A(f's_sleep {tune["xs"]}')
    A('s_waitcnt lgkmcnt(0)')
    A('s_barrier')
    st('B3')
    done = A.newlabel('tdone')
    OF = VX
    A(f'ds_read_b128 {v(OF, 4)}, {v(vHi)} offset:{hi(L_O)}')
    A(f'ds_read_b128 {v(OF + 4, 4)}, {v(vHi)} offset:{hi(L_O) + 1024}')
    A(f's_cmp_ge_u32 {s(M_STEP)}, {nsteps - 1}')
    A(f's_cbranch_scc1 {done}')
    emit(zero(MF + 22, 10))
    oacc = [KA, KA + 4, VA, VA + 4, MF + 16, MF + 20, MF + 24, MF + 28]

    def wo(i, ks):
        if i < 2:
            return v(S1 + (i * 2 + ks) * 8, 8)
        if i < 6:
            return rreg(('o', i >> 1, ks), i & 1)
        if i == 6:
            return v(MF + ks * 8, 8)
        return v(S1 + ks * 8, 8)

    om = [smf(oacc[i], OF + ks * 4, wo(i, ks)) for i in range(8) for ks in (0, 1)]
    PK = QA

    def oadd(i):
        r = oacc[i]
        return [f'v_add_f32 {v(r)}, {v(r)}, {v(r + 1)}', f'v_add_f32 {v(r + 2)}, {v(r + 2)}, {v(r + 3)}']

    def opack(h, half):
        i0 = 4 * h + 2 * half
        f = []
        for rr in (0, 1):
            d = PK + h * 4 + rr * 2 + half
            f.append(f'v_cvt_pk_bf16_f32 {v(d)}, {v(oacc[i0] + rr * 2)}, {v(oacc[i0 + 1] + rr * 2)}')
        for rr in (0, 1):
            d = PK + h * 4 + rr * 2 + half
            f.append(f'v_min_u32 {v(d)}, -2, {v(d)}')
        return f

    def pstore(h):
        return (f'buffer_store_dwordx4 {v(PK + h * 4, 4)}, {v(vPw)}, {srd(SRD_WS)}, '
                f'{s(M_PW if h == 0 else M_PW2)} offen{XS}')

    if tune.get('pubY'):
        def opack(h, half):
            u = 2 * h + half
            f = []
            for rr in (0, 1):
                d = PK + rr * 4 + u
                f.append(f'v_cvt_pk_bf16_f32 {v(d)}, {v(oacc[2 * u] + rr * 2)}, {v(oacc[2 * u + 1] + rr * 2)}')
            for rr in (0, 1):
                d = PK + rr * 4 + u
                f.append(f'v_min_u32 {v(d)}, -2, {v(d)}')
            return f

        def pstore(h):
            if h == 0:
                return 's_nop 0'
            return '|'.join(f'buffer_store_dwordx4 {v(PK + rr * 4, 4)}, {v(vPw)}, {srd(SRD_WS)}, {s(M_PW)} offen '
                            f'offset:{rr * 2048}{XS}' for rr in (0, 1))

    A('s_waitcnt lgkmcnt(1)')
    A(om[0])
    A('s_waitcnt lgkmcnt(0)')
    A(om[1])
    f7 = lread(('o', 3, 0), 1, S1) + lread(('o', 3, 1), 1, S1 + 8)
    mix(om[2:4], f7, 2)
    A(om[4])
    SELR = S1 + 16
    A(f'ds_read_b128 {v(SELR, 4)}, {v(vHi)} offset:{hi(L_SEL)}')
    fo = oadd(0) + oadd(1) + opack(0, 0) + oadd(2) + oadd(3) + opack(0, 1) + [pstore(0)] + oadd(4)
    mix(om[5:14], fo, 2)
    A('s_waitcnt lgkmcnt(0)')
    fo += oadd(5) + opack(1, 0)
    mix(om[14:16], fo, 2)
    st('outissued')
    emit(fo)
    emit(oadd(6) + oadd(7) + opack(1, 1) + [pstore(1)])
    st('pstored')
    RD, RA = MF, MF + 8
    A(f'v_mov_b64 {v(NEG, 2)}, -1')
    A(f'v_mov_b64 {v(NEG + 2, 2)}, -1')
    A(f's_mov_b32 {s(M_SPIN)}, 0')
    if tune.get('d1'):
        A(f's_sleep {tune["d1"]}')
    p1 = A.newlabel('tp1')
    A.label(p1)
    A(f'buffer_load_dwordx4 {v(RD, 4)}, {v(vL16)}, {srd(SRD_WS)}, {s(M_PR)} offen sc1')
    A(f'buffer_load_dwordx4 {v(RD + 4, 4)}, {v(vL16)}, {srd(SRD_WS)}, {s(M_PR)} offen offset:1024 sc1')
    A('s_mov_b64 exec, -1')
    A(f's_add_u32 {s(M_SPIN)}, {s(M_SPIN)}, 1')
    A(f's_cmp_gt_u32 {s(M_SPIN)}, {SPIN_LIMIT * 4}')
    A(f's_cbranch_scc1 {end_label}')
    A('s_waitcnt vmcnt(0)')
    A(f'v_mfma_f32_16x16x32_bf16 {v(RA, 4)}, {v(SELR, 4)}, {v(RD, 4)}, 0')
    A(f'v_max3_u32 {v(t0)}, {v(RD)}, {v(RD + 1)}, {v(RD + 2)}')
    A(f'v_max3_u32 {v(t1)}, {v(RD + 3)}, {v(RD + 4)}, {v(RD + 5)}')
    A(f'v_mfma_f32_16x16x32_bf16 {v(RA, 4)}, {v(SELR, 4)}, {v(RD + 4, 4)}, {v(RA, 4)}')
    A(f'v_max3_u32 {v(t0)}, {v(t0)}, {v(RD + 6)}, {v(RD + 7)}')
    A(f'v_max_u32 {v(t0)}, {v(t0)}, {v(t1)}')
    A(f'v_cmp_eq_u32 vcc, -1, {v(t0)}')
    A('s_mov_b64 exec, vcc')
    A(f's_cbranch_vccnz {p1}')
    A('s_mov_b64 exec, -1')
    st('p1ok')
    for sh in (4, 8):
        for r in range(4):
            A(f'v_add_f32_dpp {v(RA + r)}, {v(RA + r)}, {v(RA + r)} row_ror:{sh} row_mask:0xf bank_mask:0xf')
    A(f'v_cvt_pk_bf16_f32 {v(t0)}, {v(RA)}, {v(RA + 1)}')
    A(f'v_cvt_pk_bf16_f32 {v(t1)}, {v(RA + 2)}, {v(RA + 3)}')
    A(f'v_min_u32 {v(t0)}, -2, {v(t0)}')
    A(f'v_min_u32 {v(t1)}, -2, {v(t1)}')
    A(f's_mov_b64 exec, {s(M_PUBX, 2)}')
    A(f'buffer_store_dwordx2 {v(t0, 2)}, {v(vPub)}, {srd(SRD_WS)}, {s(M_MP)} offen{XS}')
    A(f'buffer_store_dwordx2 {v(NEG, 2)}, {v(vPub)}, {srd(SRD_WS)}, {s(M_MRS)} offen{XS}')
    A('s_mov_b64 exec, -1')
    st('published')
    A(f's_add_u32 {s(M_STEP)}, {s(M_STEP)}, 1')
    A(f's_lshl_b32 {s(M_T1)}, {s(S_WAVE)}, 11')
    A(f's_add_u32 {s(M_MRD)}, {s(M_MP)}, {s(M_T1)}')
    A(f's_mov_b32 {s(M_SPIN)}, 0')
    p2_loads()
    A(f'ds_read_b128 {v(EXR, 4)}, {v(vEx)}')
    A(f's_cmp_eq_u32 {s(S_WAVE)}, 2')
    if early_sig:
        A(f's_mov_b32 {s(M_SIG)}, {s(M_SIG2)}')
        A(f's_cselect_b32 {s(M_SIG2)}, {s(M_FOUT)}, {OOB}')
    elif hyb:
        A(f's_cselect_b32 {s(M_T0)}, {s(M_FOUT)}, {OOB}')
        A(f's_mov_b32 {s(M_SIG2)}, {s(M_CAR)}')
        A(f's_sub_u32 {s(M_T1)}, {s(M_STEP)}, {tune.get("h0", 8)}')
        A(f's_cmp_lt_u32 {s(M_T1)}, {tune.get("h1", 59) - tune.get("h0", 8)}')
        A(f's_cselect_b32 {s(M_CAR)}, {s(M_T0)}, {OOB}')
        A(f's_cselect_b32 {s(M_SIG)}, {OOB}, {s(M_T0)}')
        A(f's_cselect_b32 {s(M_PROMPT)}, 0, 1')
    else:
        A(f's_cselect_b32 {s(M_SIG)}, {s(M_FOUT)}, {OOB}')
    A(f's_add_u32 {s(M_FOUT)}, {s(M_FOUT)}, 1024')
    A(f's_mov_b32 {s(M_EXO)}, {s(M_EXP)}')
    A(f's_add_u32 {s(M_EXP)}, {s(M_EXP)}, 65536')
    A(f's_mov_b32 {s(M_PRO)}, {s(M_PR)}')
    if not tune.get('x_nokv'):
        A(f's_add_u32 {s(M_K)}, {s(M_K)}, 262144')
        A(f's_add_u32 {s(M_V)}, {s(M_V)}, 262144')
    if tune.get('x_noexp'):
        A(f's_mov_b32 {s(M_EXO)}, {OOB}')
    prep_step()
    if poll_in:
        A(f'v_cmp_ne_u32 vcc, 0, {v(vFv)}')
        A('s_cmp_eq_u64 vcc, exec')
        A(f's_cselect_b32 {s(M_FOK)}, 1, 0')
        A(f's_cmp_lg_u32 {s(S_WAVE)}, 3')
        A(f's_cselect_b32 {s(M_FOK)}, 1, {s(M_FOK)}')
        A(f's_add_u32 {s(M_FP2)}, {s(M_FPR)}, 1024')
        A(f's_cselect_b32 {s(M_T0)}, 0, 0')
        A(f's_cmp_eq_u32 {s(S_WAVE)}, 3')
        A(f's_cselect_b32 {s(M_FP2)}, {s(M_FP2)}, {OOB}')
        A(f's_add_u32 {s(M_FPR)}, {s(M_FPR)}, 1024')
    A(f's_branch {p2b}')
    if poll_in:
        A.label(fslow)
        A(f's_sub_u32 {s(M_T2)}, {s(M_FPR)}, 1024')
        emit_poll_block(A, vFv, vFl, M_T2, M_SPIN, end_label, sleep=4)
        A(f's_branch {top}')
    if hyb:
        A.label(hw)
        A(f's_waitcnt vmcnt({nyoung})')
        A(f's_branch {hb}')
    A.label(done)
    dstamp(A, 3, 41, (96, 0))
    dstamp(A, 8, 41, (96, 0), cyc=True)
    dstamp(A, 5, 41, (96, 32))
    A(f'ds_read_b128 {v(EXR, 4)}, {v(vEx)}')
    A('s_waitcnt lgkmcnt(0)')
    A(f'buffer_store_dwordx4 {v(EXR, 4)}, {v(vL16)}, {srd(SRD_WS)}, {s(M_EXP)} offen sc1')
    if has_sig:
        A('s_waitcnt vmcnt(0)')
        A('s_barrier')
        A(f's_cmp_lg_u32 {s(S_WAVE)}, 2')
        A(f's_cbranch_scc1 {end_label}')
        if early_sig:
            emit_signal(A, M_SIG2, vOne)
        emit_signal(A, M_FOUT, vOne)
    A(f's_branch {end_label}')
```

```python
from asmdsl import Asm, v, a, s
from layout import *
from roles import *
from team import *

X_BYTES = 2048 * 512 * 2
WQKV_BYTES = 512 * 4096 * 2
WGU_BYTES = 512 * 1792 * 2
SRD_DBG = 92
S_SLOT, S_LAYER, S_IDX, S_X = 96, 97, 98, 99

N_PROJ = 48
GROUP = [('rl2', 8), ('dn', 8), ('gu', 14), ('rl', 8), ('ao', 32)]
PCFG = {
    0: [[(0, 4, 3), (12, 3, 4), (24, 2, 10)], [(1, 4, 3), (13, 3, 4), (25, 2, 10), (44, 1, 20)],
        [(2, 4, 3), (14, 3, 4)], [(3, 4, 3)]],
    1: [[(0, 3, 7), (21, 2, 10)], [(1, 3, 7), (22, 2, 10), (41, 1, 23)], [(2, 3, 7)], []],
    2: [[(0, 2, 6), (12, 2, 12)], [(13, 2, 12), (36, 1, 28)], [(1, 2, 6)], []],
    4: [[(0, 3, 9), (27, 2, 6)], [(1, 3, 9), (28, 2, 6), (39, 1, 25)], [(2, 3, 9)], []],
    5: [[(0, 3, 9), (27, 2, 7)], [(1, 3, 9), (28, 2, 7), (41, 1, 23)], [(2, 3, 9)], []],
    6: [[(0, 3, 5), (15, 2, 11)], [(1, 3, 5), (16, 2, 11), (37, 1, 27)], [(2, 3, 5)], []],
    7: [[(0, 4, 3), (12, 3, 2), (18, 2, 11)], [(1, 4, 3), (13, 3, 2), (19, 2, 11), (40, 1, 24)],
        [(2, 4, 3), (14, 3, 2)], [(3, 4, 3)]],
    8: [[(0, 3, 3), (9, 2, 12)], [(1, 3, 3), (10, 2, 12), (33, 1, 31)], [(2, 3, 3)], []],
    9: [[(0, 3, 5), (15, 2, 9)], [(1, 3, 5), (16, 2, 9), (33, 1, 31)], [(2, 3, 5)], []],
    10: [[(0, 3, 4), (12, 2, 9)], [(1, 3, 4), (13, 2, 9), (30, 1, 34)], [(2, 3, 4)], []],
    3: [[(0, 1, 4), (4, 3, 5), (19, 2, 9)], [(5, 3, 5), (20, 2, 9), (37, 1, 27)], [(6, 3, 5)], []],
}
for PASSES in PCFG.values():
    assert sorted(st + sd * i for p in PASSES for st, sd, c in p for i in range(c)) == list(range(64))
GN = sum(n for _, n in GROUP)


N_INIT = 64


def read_counts(A, vdst, fail, vt=3):
    A(f'v_and_b32 {v(vt)}, 7, v2')
    A(f'v_lshlrev_b32 {v(vt)}, 2, {v(vt)}')
    A(f'v_cmp_ne_u32 vcc, 0, {v(vt)}')
    A(f'v_add_u32 {v(vdst)}, 128, {v(vt)}')
    A(f'v_cndmask_b32 {v(vt)}, 0, {v(vdst)}, vcc')
    A(f'buffer_load_dword {v(vdst)}, {v(vt)}, {srd(SRD_DBG)}, 0 offen sc1')
    A('s_waitcnt vmcnt(0)')
    for i in range(8):
        A(f'v_readlane_b32 s{80 + i}, {v(vdst)}, {i}')
    A('s_add_u32 s88, s80, s81')
    for i in range(2, 8):
        A(f's_add_u32 s88, s88, s{80 + i}')


def wait_init(A, fail, vt=3, vd=4):
    lp = A.newlabel('wi')
    dn = A.newlabel('wid')
    A(f'v_and_b32 {v(vt)}, 1, v2')
    A(f'v_lshlrev_b32 {v(vt)}, 7, {v(vt)}')
    A('s_mov_b32 s89, 0')
    A.label(lp)
    A(f'buffer_load_dword {v(vd)}, {v(vt)}, {srd(SRD_DBG)}, 0 offen offset:64 sc1')
    A('s_waitcnt vmcnt(0)')
    A(f'v_readlane_b32 s80, {v(vd)}, 0')
    A(f'v_readlane_b32 s81, {v(vd)}, 1')
    A('s_add_u32 s80, s80, s81')
    A(f's_cmp_ge_u32 s80, {N_INIT}')
    A(f's_cbranch_scc1 {dn}')
    A('s_sleep 8')
    A('s_add_u32 s89, s89, 1')
    A(f's_cmp_lt_u32 s89, {SPIN_LIMIT}')
    A(f's_cbranch_scc1 {lp}')
    A(f's_branch {fail}')
    A.label(dn)


def xcd_pure(A, end, sdst, vd, vt, force=False):
    lp = A.newlabel('pur')
    dn = A.newlabel('purd')
    A('s_mov_b32 s90, 0')
    A.label(lp)
    A('s_add_u32 s90, s90, 1')
    A(f's_cmp_gt_u32 s90, {SPIN_LIMIT}')
    A(f's_cbranch_scc1 {end}')
    read_counts(A, vd, end, vt)
    A(f's_lshr_b32 s89, {s(S_SLOT)}, 5')
    A(f'v_readlane_b32 s89, {v(vd)}, s89')
    A(f's_mov_b32 {s(sdst)}, {0 if force else 1}')
    A('s_cmp_ge_u32 s89, 32')
    A(f's_cbranch_scc1 {dn}')
    A(f's_mov_b32 {s(sdst)}, 0')
    A('s_cmp_lt_u32 s88, 256')
    A(f's_cbranch_scc1 {lp}')
    A.label(dn)


def init_work(A, end):
    A(f's_mov_b32 s42, {s(S_IDX)}')
    pstamp(A, 0, 120)

    def fills():
        A('v_lshlrev_b32 v100, 4, v0')
        for i in range(4):
            A(f'v_mov_b32 v{104 + i}, 0')
            A(f'v_mov_b32 v{108 + i}, -1')
        A('s_mov_b32 s43, s42')
        for u in range(256 // N_INIT):
            A('s_lshl_b32 s50, s43, 12')
            A(f'buffer_store_dwordx4 v[104:107], v100, {srd(SRD_WS)}, s50 offen sc1')
            A(f's_add_u32 s51, s50, {TM}')
            A('s_cmp_lt_u32 s43, 16')
            A(f's_cselect_b32 s51, s51, {OOB}')
            A(f'buffer_store_dwordx4 v[108:111], v100, {srd(SRD_WS)}, s51 offen sc1')
            A('s_lshl_b32 s50, s43, 13')
            A(f's_add_u32 s50, s50, {TP}')
            A(f'buffer_store_dwordx4 v[108:111], v100, {srd(SRD_WS)}, s50 offen sc1')
            A('s_add_u32 s50, s50, 4096')
            A(f'buffer_store_dwordx4 v[108:111], v100, {srd(SRD_WS)}, s50 offen sc1')
            A(f's_add_u32 s43, s43, {N_INIT}')
        return 4 * (256 // N_INIT)

    ptr_srd(A, SRD_A, KA_X, X_BYTES)
    A('s_lshl_b32 s24, s42, 2')
    A('s_add_u32 s24, s24, s3')
    A('s_lshl_b32 s25, s24, 12')
    A('s_lshr_b32 s27, s24, 3')
    A('s_lshl_b32 s27, s27, 15')
    A('s_and_b32 s31, s24, 7')
    A('s_lshl_b32 s31, s31, 6')
    A('s_add_u32 s27, s27, s31')
    A(f's_add_u32 s27, s27, {XN}')
    ln_wave(A, SRD_A, 25, 27, 2, 256 * 4096, 32 * 32768, between=fills)
    pstamp(A, 1, 120)
    A('s_waitcnt vmcnt(0)')
    pstamp(A, 2, 120)
    A('s_barrier')
    sk = A.newlabel('iws')
    A(f's_cmp_lg_u32 {s(S_WAVE)}, 0')
    A(f's_cbranch_scc1 {sk}')
    A(f's_and_b32 s40, {s(S_SLOT)}, 1')
    A('s_lshl_b32 s40, s40, 7')
    A('v_mov_b32 v4, 1')
    A('s_mov_b64 exec, 1')
    A(f'buffer_atomic_add v4, off, {srd(SRD_DBG)}, s40 offset:64 sc1')
    A('s_mov_b64 exec, -1')
    A.label(sk)


def assign_slot(A, end, fake_xcc=None):
    A(f's_getreg_b32 {s(S_X)}, hwreg(HW_REG_XCC_ID)')
    A(f's_and_b32 {s(S_X)}, {s(S_X)}, 7')
    if fake_xcc:
        A(fake_xcc)
    have = A.newlabel('tick')
    A(f's_cmp_lg_u32 {s(S_WAVE)}, 0')
    A(f's_cbranch_scc1 {have}')
    A(f's_lshl_b32 s40, {s(S_X)}, 2')
    A('s_add_u32 s40, s40, 128')
    A(f's_cmp_eq_u32 {s(S_X)}, 0')
    A('s_cselect_b32 s40, 0, s40')
    A('v_mov_b32 v4, 1')
    A('v_mov_b32 v5, 0')
    A('s_mov_b64 exec, 1')
    A(f'buffer_atomic_add v4, off, {srd(SRD_DBG)}, s40 sc0 sc1')
    A('s_waitcnt vmcnt(0)')
    A('ds_write_b32 v5, v4')
    A('s_mov_b64 exec, -1')
    A('s_waitcnt lgkmcnt(0)')
    A.label(have)
    A('s_barrier')
    A('v_mov_b32 v5, 0')
    A('ds_read_b32 v4, v5')
    A('s_waitcnt lgkmcnt(0)')
    A('v_readfirstlane_b32 s41, v4')
    A('s_barrier')
    A(f's_lshl_b32 {s(S_SLOT)}, {s(S_X)}, 5')
    A(f's_add_u32 {s(S_SLOT)}, {s(S_SLOT)}, s41')
    ok = A.newlabel('slotok')
    A('s_cmp_lt_u32 s41, 32')
    A(f's_cbranch_scc1 {ok}')
    lp = A.newlabel('surp')
    A('s_mov_b32 s42, 0')
    A.label(lp)
    A('s_add_u32 s42, s42, 1')
    A(f's_cmp_gt_u32 s42, {SPIN_LIMIT}')
    A(f's_cbranch_scc1 {end}')
    read_counts(A, 4, end)
    A('s_cmp_lt_u32 s88, 256')
    A(f's_cbranch_scc1 {lp}')
    A('s_sub_u32 s43, s41, 32')
    for i in range(8):
        A(f's_max_u32 s89, s{80 + i}, 32')
        A('s_sub_u32 s89, s89, 32')
        A(f's_cmp_gt_u32 {s(S_X)}, {i}')
        A('s_cselect_b32 s89, s89, 0')
        A('s_add_u32 s43, s43, s89')
    for i in range(8):
        nx = A.newlabel('hole')
        A(f's_min_u32 s89, s{80 + i}, 32')
        A('s_sub_u32 s90, 32, s89')
        A('s_cmp_lt_u32 s43, s90')
        A(f's_cbranch_scc0 {nx}')
        A(f's_add_u32 {s(S_SLOT)}, s89, s43')
        A(f's_add_u32 {s(S_SLOT)}, {s(S_SLOT)}, {i * 32}')
        A(f's_branch {ok}')
        A.label(nx)
        A('s_sub_u32 s43, s43, s90')
    A(f's_branch {end}')
    A.label(ok)


def ptr_srd(A, sreg, ka, nbytes):
    A(f's_load_dwordx2 {s(sreg, 2)}, s[0:1], {ka}')
    A('s_waitcnt lgkmcnt(0)')
    A(f's_mov_b32 {s(sreg + 2)}, {nbytes}')
    A(f's_mov_b32 {s(sreg + 3)}, 0x00020000')


def proj_params(A, layer, seg0, nseg, is_v):
    A(f's_mov_b32 {s(G_IN)}, {XN + layer * 4 * MB * LS() + seg0 * 32768}')
    A('s_lshl_b32 s27, s42, 14')
    if is_v:
        A('s_lshr_b32 s40, s3, 1')
        A('s_lshl_b32 s40, s40, 13')
        A('s_add_u32 s27, s27, s40')
        A('s_and_b32 s40, s3, 1')
        A('s_lshl_b32 s40, s40, 10')
        A('s_add_u32 s27, s27, s40')
        A(f's_add_u32 s27, s27, {VT + layer * 16 * MB * LS() + seg0 * 262144}')
    else:
        A('s_lshl_b32 s40, s3, 12')
        A('s_add_u32 s27, s27, s40')
        A('s_lshl_b32 s40, s43, 25')
        A('s_add_u32 s27, s27, s40')
        A(f's_add_u32 s27, s27, {QB + layer * 16 * MB * LS() + seg0 * 262144}')
    assert KB - QB == 1 << 25
    A(f's_mov_b32 {s(G_CNT)}, {nseg}')
    A(f's_mov_b32 {s(G_FIN)}, {flag_base(ST_RL2, 0) + seg0 * 1024}')
    A(f's_lshl_b32 {s(G_FOUT)}, s43, 6')
    A('s_lshl_b32 s40, s42, 2')
    A(f's_add_u32 {s(G_FOUT)}, {s(G_FOUT)}, s40')
    A(f's_add_u32 {s(G_FOUT)}, {s(G_FOUT)}, {flag_base(ST_PROJ, layer) + seg0 * 1024}')


def LS():
    return 0 if TUNE.get('share') else 1


def ring(A, lim, sreg, span):
    A(f's_add_u32 {s(lim)}, {s(sreg)}, {span * RING}')
    return (lim, span * RING)


def build_mega(K, force_slow=False, fake_xcc=None, tune=None, stamp=False):
    A = K.A
    end = K.end
    A('s_cmp_ge_u32 s2, 256')
    A(f's_cbranch_scc1 {end}')
    load_srds(A, [(SRD_WS, KA_WS, WS_BYTES), (SRD_DBG, KA_DBG, 256)])
    wave_setup(A)
    dstamp(A, 1, 4, (2, 0))
    if PROFILE[0]:
        A('s_lshl_b32 s40, s2, 2')
        A(f's_add_u32 s40, s40, {TCTL + 131072}')
        emit_signal(A, 40, 4)
    assign_slot(A, end, fake_xcc)
    if PROFILE[0]:
        A('s_lshl_b32 s40, s2, 2')
        A(f's_add_u32 s40, s40, {TCTL + 131072 + 1024}')
        emit_signal(A, 40, 4)
    L = {n: A.newlabel('r_' + n) for n in ('team', 'proj', 'init', 'group', 'ao', 'gu', 'dn', 'rl', 'rl2')}
    A(f's_cmp_lt_u32 {s(S_SLOT)}, 32')
    A(f's_cbranch_scc1 {L["team"]}')
    A('s_mov_b32 s44, 2')
    A(f's_sub_u32 s45, {s(S_SLOT)}, 32')
    A(f's_cmp_lt_u32 {s(S_SLOT)}, 64')
    A(f's_cbranch_scc1 {L["proj"]}')
    A(f's_and_b32 s40, {s(S_SLOT)}, 31')
    A(f's_lshr_b32 s41, {s(S_SLOT)}, 5')
    hi4 = A.newlabel('mx4')
    mdone = A.newlabel('mxd')
    A('s_cmp_ge_u32 s41, 4')
    A(f's_cbranch_scc1 {hi4}')
    A('s_sub_u32 s41, s41, 2')
    A(f's_mul_i32 s42, s41, {GN}')
    A(f's_add_u32 s42, s42, {N_PROJ}')
    A('s_lshl_b32 s43, s41, 1')
    A(f's_add_u32 s43, s43, {N_PROJ + 2 * GN - 30}')
    A('s_cmp_lt_u32 s40, 30')
    A('s_cselect_b32 s42, s42, s43')
    A(f's_add_u32 {s(S_IDX)}, s42, s40')
    A(f's_branch {mdone}')
    A.label(hi4)
    A('s_sub_u32 s41, s41, 4')
    A('s_lshr_b32 s42, s41, 1')
    A(f's_mul_i32 s42, s42, {GN}')
    A(f's_add_u32 s42, s42, {N_PROJ}')
    A('s_and_b32 s43, s41, 1')
    A('s_lshl_b32 s47, s43, 4')
    A('s_add_u32 s47, s47, s42')
    A('s_add_u32 s47, s47, 38')
    A('s_lshl_b32 s48, s43, 2')
    A('s_add_u32 s48, s48, s42')
    A('s_add_u32 s48, s48, 14')
    A('s_mul_i32 s49, s41, 12')
    A('s_sub_u32 s49, s49, 20')
    A('s_cmp_lt_u32 s40, 20')
    A('s_cselect_b32 s49, s48, s49')
    A('s_cmp_lt_u32 s40, 16')
    A('s_cselect_b32 s49, s47, s49')
    A(f's_add_u32 {s(S_IDX)}, s49, s40')
    A.label(mdone)
    A(f's_mov_b32 s44, 0')
    A(f's_mov_b32 s45, {s(S_IDX)}')
    A(f's_cmp_lt_u32 {s(S_IDX)}, {N_PROJ}')
    A(f's_cbranch_scc1 {L["proj"]}')
    A(f's_sub_u32 {s(S_IDX)}, {s(S_IDX)}, {N_PROJ}')
    A(f's_mov_b32 {s(S_LAYER)}, 0')
    A(f's_cmp_lt_u32 {s(S_IDX)}, {N_INIT}')
    A(f's_cbranch_scc1 {L["init"]}')
    A(f's_cmp_lt_u32 {s(S_IDX)}, {GN}')
    A(f's_cbranch_scc1 {L["group"]}')
    A(f's_sub_u32 {s(S_IDX)}, {s(S_IDX)}, {GN}')
    A(f's_mov_b32 {s(S_LAYER)}, 1')
    A('s_mov_b32 s44, 3')
    A(f's_sub_u32 s45, {s(S_IDX)}, {N_PROJ + 16 - 38}')
    A(f's_cmp_ge_u32 {s(S_IDX)}, {N_PROJ + 16}')
    A(f's_cbranch_scc1 {L["proj"]}')
    A(f's_mov_b32 s44, 1')
    A(f's_mov_b32 s45, {s(S_IDX)}')
    A(f's_cmp_lt_u32 {s(S_IDX)}, {N_PROJ}')
    A(f's_cbranch_scc1 {L["proj"]}')
    A('s_mov_b32 s44, 2')
    A(f's_sub_u32 s45, {s(S_IDX)}, 16')

    A.label(L['proj'])
    if not PCFG[TUNE.get('pcfg', 1)][3]:
        A('s_cmp_eq_u32 s44, 3')
        A(f's_cbranch_scc1 {L["group"]}')
    if TUNE.get('delay'):
        nd = A.newlabel('nodelay')
        A(f's_lshr_b32 s40, {TUNE["delay"]}, s44')
        A('s_and_b32 s40, s40, 1')
        A(f's_cbranch_scc0 {nd}')
        wait_init(A, end)
        A.label(nd)
    A('s_lshr_b32 s43, s45, 4')
    A('s_and_b32 s42, s45, 15')
    A('s_lshl_b32 s40, s43, 3')
    A(f's_add_u32 s40, s40, {KA_WQ}')
    A(f's_load_dwordx2 {s(SRD_A, 2)}, s[0:1], s40')
    A('s_waitcnt lgkmcnt(0)')
    A(f's_mov_b32 {s(SRD_A + 2)}, {WQKV_BYTES}')
    A(f's_mov_b32 {s(SRD_A + 3)}, 0x00020000')
    A('s_lshl_b32 s24, s42, 9')
    A('s_lshl_b32 s40, s3, 7')
    A('s_add_u32 s24, s24, s40')
    A('s_add_u32 s25, s24, 64')
    lv = A.newlabel('pv')
    A('s_cmp_eq_u32 s43, 2')
    A(f's_cbranch_scc1 {lv}')
    for is_v in (False, True):
        mode = 'v' if is_v else 'qk'
        if is_v:
            A.label(lv)
        pstamp(A, 5, 3)
        A('s_waitcnt vmcnt(0)')
        gemm_setup(A, 32, mode, 8192, SRD_A, SRD_A)
        pstamp(A, 6, 3)
        wait_init(A, end)
        pstamp(A, 7, 3)
        A('s_lshl_b32 s41, s44, 3')
        again = A.newlabel('pagain')
        l2 = A.newlabel('pl2')
        fin = A.newlabel('pfin')
        go = A.newlabel('pgo')
        A.label(again)
        for si, ps in enumerate(PCFG[TUNE.get('pcfg', 1)]):
            for pi, (st, sd, cnt) in enumerate(ps):
                A(f's_mov_b32 s50, {st | (sd << 8) | (cnt << 16)}')
                A(f's_cmp_eq_u32 s41, {si * 8 + pi}')
                A(f's_cbranch_scc1 {go}')
        A(f's_branch {fin}')
        A.label(go)
        proj_params(A, 0, 0, 1, is_v)
        A('s_and_b32 s51, s50, 255')
        A('s_lshl_b32 s40, s51, 15')
        A(f's_add_u32 {s(G_IN)}, {s(G_IN)}, s40')
        A('s_lshl_b32 s40, s51, 18')
        A(f's_add_u32 {s(G_OUT)}, {s(G_OUT)}, s40')
        A('s_lshl_b32 s40, s51, 10')
        A(f's_add_u32 {s(G_FOUT)}, {s(G_FOUT)}, s40')
        A('s_bfe_u32 s51, s50, 0x80008')
        A('s_lshl_b32 s47, s51, 15')
        A('s_lshl_b32 s48, s51, 18')
        A('s_lshl_b32 s49, s51, 10')
        A(f's_lshr_b32 {s(G_CNT)}, s50, 16')
        gemm_loop(A, 32, mode, 's47', 's48', end, flags=dict(n=1, fout_step='s49', poll_in=False))
        A('s_barrier')
        A('s_add_u32 s41, s41, 1')
        A(f's_branch {again}')
        A.label(fin)
        A('s_cmp_eq_u32 s44, 0')
        A(f's_cbranch_scc1 {l2}')
        A(f's_cmp_lt_u32 {s(S_SLOT)}, 64')
        A(f's_cbranch_scc1 {L["team"]}')
        A(f's_branch {L["group"]}')
        A.label(l2)
        proj_params(A, 1, 0, 64, is_v)
        gemm_loop(A, 32, mode, 32768, 262144, end,
                  flags=dict(n=4, fin_step=1024, fout_step=1024, poll_in=True))
        A(f's_branch {end}')

    A.label(L['init'])
    init_work(A, end)
    A('s_mov_b32 s44, 3')
    A(f's_mov_b32 s45, {s(S_IDX)}')
    A(f's_cmp_lt_u32 {s(S_IDX)}, 38')
    A(f's_cbranch_scc1 {L["proj"]}')
    A.label(L['group'])
    wait_init(A, end)
    xcd_pure(A, end, 91, 4, 3, force=force_slow or TUNE.get('noloc'))
    A(f's_lshl_b32 s46, {s(S_LAYER)}, 16')
    for name, n in GROUP:
        A(f's_cmp_lt_u32 {s(S_IDX)}, {n}')
        A(f's_cbranch_scc1 {L[name]}')
        A(f's_sub_u32 {s(S_IDX)}, {s(S_IDX)}, {n}')
    A(f's_branch {end}')

    def own_flag(stage):
        A(f's_lshl_b32 {s(G_FOUT)}, {s(S_IDX)}, 2')
        A(f's_add_u32 {s(G_FOUT)}, {s(G_FOUT)}, s46')
        A(f's_add_u32 {s(G_FOUT)}, {s(G_FOUT)}, {flag_base(stage, 0)}')

    def part_out(base, lsh):
        A('s_lshl_b32 s27, s42, 15')
        A(f's_lshl_b32 s40, {s(S_LAYER)}, {lsh}')
        A('s_add_u32 s27, s27, s40')
        A('s_lshl_b32 s40, s41, 11')
        A('s_add_u32 s27, s27, s40')
        A('s_lshl_b32 s40, s3, 9')
        A('s_add_u32 s27, s27, s40')
        A(f's_add_u32 s27, s27, {base}')

    A.label(L['ao'])
    ptr_srd(A, SRD_A, KA_WO, WQKV_BYTES)
    A(f's_and_b32 s41, {s(S_IDX)}, 1')
    A(f's_bfe_u32 s42, {s(S_IDX)}, 0x30001')
    A(f's_lshr_b32 s43, {s(S_IDX)}, 4')
    A('s_lshl_b32 s24, s42, 19')
    A('s_lshl_b32 s40, s41, 9')
    A('s_add_u32 s24, s24, s40')
    A('s_lshl_b32 s40, s3, 7')
    A('s_add_u32 s24, s24, s40')
    A('s_add_u32 s25, s24, 64')
    part_out(PO, 24)
    A(f's_mul_i32 s40, s43, {8 * PSEG}')
    A('s_add_u32 s27, s27, s40')
    A('s_mov_b32 s28, 32')
    A('s_lshl_b32 s47, s42, 2')
    A('s_add_u32 s47, s47, s3')
    A('s_lshl_b32 s48, s43, 5')
    A('s_add_u32 s48, s48, s47')
    A('s_lshl_b32 s40, s48, 13')
    A(f's_mul_i32 s49, {s(S_LAYER)}, {(1 << 24) * LS()}')
    A('s_add_u32 s40, s40, s49')
    A(f's_add_u32 s50, s40, {QB}')
    A(f's_add_u32 s51, s40, {KB}')
    A(f's_add_u32 s52, s40, {VT}')
    A('s_lshl_b32 s40, s48, 11')
    A(f's_mul_i32 s49, {s(S_LAYER)}, {(1 << 22) * LS()}')
    A('s_add_u32 s40, s40, s49')
    A(f's_add_u32 s53, s40, {KM}')
    A(f's_add_u32 s54, s40, {VM}')
    A('s_lshl_b32 s49, s43, 10')
    A('s_add_u32 s49, s49, s46')
    A('s_lshl_b32 s40, s47, 4')
    A('s_add_u32 s29, s49, s40')
    A(f's_add_u32 s29, s29, {flag_base(ST_TEAM, 0)}')
    A('s_lshr_b32 s40, s47, 1')
    A('s_lshl_b32 s40, s40, 2')
    A('s_add_u32 s55, s49, s40')
    A(f's_add_u32 s55, s55, {flag_base(ST_PROJ, 0)}')
    A(f's_and_b32 s40, {s(S_IDX)}, 15')
    A('s_lshl_b32 s40, s40, 2')
    A('s_add_u32 s30, s49, s40')
    A(f's_add_u32 s30, s30, {flag_base(ST_OUT, 0)}')
    A(f's_add_u32 s64, s49, {flag_base(ST_RL, 0) - RING * 1024}')
    A('s_sub_u32 s64, s64, s29')
    ao_role(A, 2, end, s_pure=91, wout=ring(A, 62, 27, 8 * PSEG), bp=(64, 4))

    A.label(L['gu'])
    ptr_srd(A, SRD_A, KA_WG, WGU_BYTES)
    ptr_srd(A, SRD_B, KA_WU, WGU_BYTES)
    A(f's_lshl_b32 s24, {s(S_IDX)}, 8')
    A('s_lshl_b32 s40, s3, 6')
    A('s_add_u32 s24, s24, s40')
    A('s_mov_b32 s25, s24')
    A(f's_mul_i32 s26, {s(S_LAYER)}, {(1 << 22) * LS()}')
    A(f's_add_u32 s26, s26, {XN + 2 * MB}')
    A(f's_lshl_b32 s27, {s(S_IDX)}, 13')
    A('s_lshl_b32 s40, s3, 11')
    A('s_add_u32 s27, s27, s40')
    A(f's_add_u32 s27, s27, {HB}')
    A(f's_lshl_b32 s40, {s(S_LAYER)}, 23')
    A('s_add_u32 s27, s27, s40')
    A('s_mov_b32 s28, 64')
    A(f's_add_u32 {s(G_FIN)}, s46, {flag_base(ST_RL, 0)}')
    own_flag(ST_GU)
    A(f's_mov_b32 s54, {flag_base(ST_DN, 0) - flag_base(ST_RL, 0) - RING * 1024}')
    gemm_role(A, 32, 'gu', 3584, SRD_A, SRD_B, 32768, 224 * 512, end,
              flags=dict(n=4, fin_step=1024, fout_step=1024, poll_in=True, wout=ring(A, 52, 27, 224 * 512),
                         bp=(54, 8)),
              s_pure=91)

    A.label(L['dn'])
    ptr_srd(A, SRD_A, KA_WD, WGU_BYTES)
    A(f's_and_b32 s41, {s(S_IDX)}, 1')
    A(f's_lshr_b32 s42, {s(S_IDX)}, 1')
    A(f's_mul_i32 s24, s42, {448 * 1024}')
    A('s_lshl_b32 s40, s41, 9')
    A('s_add_u32 s24, s24, s40')
    A('s_lshl_b32 s40, s3, 7')
    A('s_add_u32 s24, s24, s40')
    A('s_add_u32 s25, s24, 64')
    A(f's_mul_i32 s26, s42, {28 * 1024}')
    A(f's_add_u32 s26, s26, {HB}')
    A(f's_lshl_b32 s40, {s(S_LAYER)}, 23')
    A('s_add_u32 s26, s26, s40')
    part_out(PD, 23)
    A('s_mov_b32 s28, 64')
    A(f's_mul_i32 {s(G_FIN)}, s42, 7')
    A(f's_lshr_b32 {s(G_FIN)}, {s(G_FIN)}, 1')
    A(f's_lshl_b32 {s(G_FIN)}, {s(G_FIN)}, 2')
    A(f's_add_u32 {s(G_FIN)}, {s(G_FIN)}, s46')
    A(f's_add_u32 {s(G_FIN)}, {s(G_FIN)}, {flag_base(ST_GU, 0)}')
    own_flag(ST_DN)
    A(f's_add_u32 s54, s46, {flag_base(ST_RL2, 0) - RING * 1024}')
    A(f's_sub_u32 s54, s54, {s(G_FIN)}')
    gemm_role(A, 28, 'part', 1024, SRD_A, SRD_A, 224 * 512, 4 * PSEG, end,
              flags=dict(n=4, fin_step=1024, fout_step=1024, poll_in=True, win=ring(A, 52, 26, 224 * 512),
                         wout=ring(A, 53, 27, 4 * PSEG), bp=(54, 4)), s_pure=91)

    for name, pbase, kbn, st_in, nfl, st_out in (('rl', PO, 8, ST_OUT, 16, ST_RL), ('rl2', PD, 4, ST_DN, 8, ST_RL2)):
        A.label(L[name])
        l1 = A.newlabel('rl_l1')
        A(f's_lshl_b32 s25, {s(S_IDX)}, 13')
        A('s_mov_b32 s26, s25')
        A(f's_lshr_b32 s41, {s(S_IDX)}, 2')
        A(f's_and_b32 s42, {s(S_IDX)}, 3')
        A(f's_mul_i32 s24, s41, {kbn * PSEG}')
        A('s_lshl_b32 s40, s42, 13')
        A('s_add_u32 s24, s24, s40')
        A(f's_add_u32 s24, s24, {pbase}')
        A(f's_lshl_b32 s40, {s(S_LAYER)}, {24 if kbn == 8 else 23}')
        A('s_add_u32 s24, s24, s40')
        A('s_lshl_b32 s27, s41, 15')
        A('s_lshl_b32 s40, s42, 7')
        A('s_add_u32 s27, s27, s40')
        A('s_mov_b32 s28, 32')
        A('s_lshl_b32 s41, s41, 10')
        A('s_add_u32 s41, s41, s46')
        A(f's_add_u32 s29, s41, {flag_base(st_in, 0)}')
        A('s_lshl_b32 s40, s42, 2')
        A('s_add_u32 s30, s41, s40')
        A(f's_add_u32 s30, s30, {flag_base(st_out, 0)}')
        A(f's_cmp_eq_u32 {s(S_LAYER)}, 1')
        A(f's_cbranch_scc1 {l1}')
        for layer in (0, 1):
            which = layer * 2 + (0 if name == 'rl' else 1)
            if layer == 1:
                A.label(l1)
            if which == 0:
                ptr_srd(A, SRD_A, KA_X, X_BYTES)
            if which == 3:
                ptr_srd(A, SRD_B, KA_OUT, X_BYTES)
            if which > 0:
                A(f's_add_u32 s25, s25, {XR + (which - 1) * 2 * MB}')
            if which < 3:
                A(f's_add_u32 s26, s26, {XR + which * 2 * MB}')
            A(f's_add_u32 s27, s27, {XN + ((which + 1) & (3 if LS() else 1)) * 2 * MB}')
            (rl_role, rlw_role, rl8_role)[TUNE.get('rlw', 2)](A, kbn, SRD_A if which == 0 else SRD_WS, SRD_B if which == 3 else SRD_WS, which < 3,
                    dict(p=2 * kbn * PSEG, x=65536, xn=65536), end,
                    flags=dict(n=nfl, fin_step=2048, fout_step=2048, poll_in=True, signal=True, pair=True,
                               win=ring(A, 52, 24, kbn * PSEG)),
                    xin_sc1=which > 0, xout_sc1=which < 3)

    A.label(L['team'])
    load_srds(A, [(SRD_A, KA_WQ, WQKV_BYTES), (SRD_B, KA_WK, WQKV_BYTES),
                  (SRD_C, KA_WV, WQKV_BYTES), (SRD_D, KA_WO, WQKV_BYTES), (SRD_M0, KA_MEM0, 8192)])
    A(f's_lshr_b32 {s(S_LAYER)}, {s(S_SLOT)}, 5')
    A(f's_and_b32 {s(M_ME)}, {s(S_SLOT)}, 31')
    A(f's_lshl_b32 s40, {s(M_ME)}, 13')
    A(f's_mul_i32 s41, {s(S_LAYER)}, {(1 << 24) * LS()}')
    A('s_add_u32 s40, s40, s41')
    A(f's_add_u32 {s(M_K)}, s40, {KB}')
    A(f's_add_u32 {s(M_V)}, s40, {VT}')
    A(f's_lshl_b32 s40, {s(M_ME)}, 11')
    A(f's_mul_i32 s41, {s(S_LAYER)}, {(1 << 22) * LS()}')
    A('s_add_u32 s40, s40, s41')
    A(f's_add_u32 {s(M_KM)}, s40, {KM}')
    A(f's_add_u32 {s(M_VM)}, s40, {VM}')
    A(f's_lshl_b32 s40, {s(S_LAYER)}, 20')
    A(f's_add_u32 {s(M_TP)}, s40, {TP}')
    A(f's_lshl_b32 s40, {s(S_LAYER)}, 15')
    A(f's_add_u32 {s(M_TM)}, s40, {TM}')
    A(f's_lshl_b32 s41, {s(S_LAYER)}, 16')
    A(f's_lshr_b32 s40, {s(M_ME)}, 1')
    A('s_lshl_b32 s40, s40, 2')
    A('s_add_u32 s40, s40, s41')
    A(f's_add_u32 {s(M_FPR)}, s40, {flag_base(ST_PROJ, 0) + 64}')
    A(f's_lshl_b32 s40, {s(M_ME)}, 4')
    A('s_add_u32 s40, s40, s41')
    A(f's_add_u32 {s(M_FOUT)}, s40, {flag_base(ST_TEAM, 0)}')

    def purity(A):
        xcd_pure(A, end, M_FAST, 20, 21)
        wait_init(A, end, 20, 21)
        if TUNE.get('warm', 1):
            A('v_lshlrev_b32 v20, 7, v2')
            A(f's_lshl_b32 s40, {s(M_ME)}, 13')
            A(f's_lshl_b32 s41, {s(S_WAVE)}, 18')
            A('s_add_u32 s40, s40, s41')
            A(f's_add_u32 s40, s40, {s(M_TP)}')
            A(f'buffer_load_dword v21, v20, {srd(SRD_WS)}, s40 offen sc1')
            A(f's_lshl_b32 s41, {s(S_WAVE)}, 13')
            A(f's_add_u32 s40, s41, {s(M_TM)}')
            A(f'buffer_load_dword v41, v20, {srd(SRD_WS)}, s40 offen sc1')
            A('s_waitcnt vmcnt(0)')

    team_role(A, end, flags=dict(poll_in=True, signal=True), force_slow=force_slow, purity=purity, tune=tune,
              stamp=stamp)
```

```python
from asmdsl import Asm, v, a, s
from layout import *
from roles import *
from team import *

X_BYTES = 2048 * 512 * 2
WQKV_BYTES = 512 * 4096 * 2
WGU_BYTES = 512 * 1792 * 2
SRD_DBG = 92
S_SLOT, S_LAYER, S_IDX, S_X = 96, 97, 98, 99

N_PROJ = 48
GROUP = [('rl2', 8), ('dn', 8), ('gu', 14), ('rl', 8), ('ao', 32)]
PCFG = {
    0: [[(0, 4, 3), (12, 3, 4), (24, 2, 10)], [(1, 4, 3), (13, 3, 4), (25, 2, 10), (44, 1, 20)],
        [(2, 4, 3), (14, 3, 4)], [(3, 4, 3)]],
    1: [[(0, 3, 7), (21, 2, 10)], [(1, 3, 7), (22, 2, 10), (41, 1, 23)], [(2, 3, 7)], []],
    2: [[(0, 2, 6), (12, 2, 12)], [(13, 2, 12), (36, 1, 28)], [(1, 2, 6)], []],
    4: [[(0, 3, 9), (27, 2, 6)], [(1, 3, 9), (28, 2, 6), (39, 1, 25)], [(2, 3, 9)], []],
    5: [[(0, 3, 9), (27, 2, 7)], [(1, 3, 9), (28, 2, 7), (41, 1, 23)], [(2, 3, 9)], []],
    6: [[(0, 3, 5), (15, 2, 11)], [(1, 3, 5), (16, 2, 11), (37, 1, 27)], [(2, 3, 5)], []],
    7: [[(0, 4, 3), (12, 3, 2), (18, 2, 11)], [(1, 4, 3), (13, 3, 2), (19, 2, 11), (40, 1, 24)],
        [(2, 4, 3), (14, 3, 2)], [(3, 4, 3)]],
    8: [[(0, 3, 3), (9, 2, 12)], [(1, 3, 3), (10, 2, 12), (33, 1, 31)], [(2, 3, 3)], []],
    9: [[(0, 3, 5), (15, 2, 9)], [(1, 3, 5), (16, 2, 9), (33, 1, 31)], [(2, 3, 5)], []],
    10: [[(0, 3, 4), (12, 2, 9)], [(1, 3, 4), (13, 2, 9), (30, 1, 34)], [(2, 3, 4)], []],
    3: [[(0, 1, 4), (4, 3, 5), (19, 2, 9)], [(5, 3, 5), (20, 2, 9), (37, 1, 27)], [(6, 3, 5)], []],
}
PSPLIT = {
    0: ([[(0, 3, 5), (15, 2, 11)], [(1, 3, 5), (16, 2, 11), (37, 1, 27)], [(2, 3, 5)], []],
        [[(0, 3, 16)], [(1, 3, 16), (48, 2, 8)], [(2, 3, 16), (49, 2, 8)], []]),
    1: ([[(0, 3, 5), (15, 2, 9)], [(1, 3, 5), (16, 2, 9), (33, 1, 31)], [(2, 3, 5)], []],
        [[(0, 3, 14)], [(1, 3, 14), (42, 2, 11)], [(2, 3, 14), (43, 2, 11)], []]),
    2: ([[(0, 3, 7), (21, 2, 9)], [(1, 3, 7), (22, 2, 9), (39, 1, 25)], [(2, 3, 7)], []],
        [[(0, 3, 16)], [(1, 3, 16), (48, 2, 8)], [(2, 3, 16), (49, 2, 8)], []]),
}
for PASSES in list(PCFG.values()) + [x for p in PSPLIT.values() for x in p]:
    assert sorted(st + sd * i for p in PASSES for st, sd, c in p for i in range(c)) == list(range(64))
GN = sum(n for _, n in GROUP)


N_INIT = 64


def read_counts(A, vdst, fail, vt=3):
    A(f'v_and_b32 {v(vt)}, 7, v2')
    A(f'v_lshlrev_b32 {v(vt)}, 2, {v(vt)}')
    A(f'v_cmp_ne_u32 vcc, 0, {v(vt)}')
    A(f'v_add_u32 {v(vdst)}, 128, {v(vt)}')
    A(f'v_cndmask_b32 {v(vt)}, 0, {v(vdst)}, vcc')
    A(f'buffer_load_dword {v(vdst)}, {v(vt)}, {srd(SRD_DBG)}, 0 offen sc1')
    A('s_waitcnt vmcnt(0)')
    for i in range(8):
        A(f'v_readlane_b32 s{80 + i}, {v(vdst)}, {i}')
    A('s_add_u32 s88, s80, s81')
    for i in range(2, 8):
        A(f's_add_u32 s88, s88, s{80 + i}')


def wait_init(A, fail, vt=3, vd=4):
    lp = A.newlabel('wi')
    dn = A.newlabel('wid')
    A(f'v_and_b32 {v(vt)}, 1, v2')
    A(f'v_lshlrev_b32 {v(vt)}, 7, {v(vt)}')
    A('s_mov_b32 s89, 0')
    A.label(lp)
    A(f'buffer_load_dword {v(vd)}, {v(vt)}, {srd(SRD_DBG)}, 0 offen offset:64 sc1')
    A('s_waitcnt vmcnt(0)')
    A(f'v_readlane_b32 s80, {v(vd)}, 0')
    A(f'v_readlane_b32 s81, {v(vd)}, 1')
    A('s_add_u32 s80, s80, s81')
    A(f's_cmp_ge_u32 s80, {N_INIT}')
    A(f's_cbranch_scc1 {dn}')
    A('s_sleep 8')
    A('s_add_u32 s89, s89, 1')
    A(f's_cmp_lt_u32 s89, {SPIN_LIMIT}')
    A(f's_cbranch_scc1 {lp}')
    A(f's_branch {fail}')
    A.label(dn)


def xcd_pure(A, end, sdst, vd, vt, force=False):
    lp = A.newlabel('pur')
    dn = A.newlabel('purd')
    A('s_mov_b32 s90, 0')
    A.label(lp)
    A('s_add_u32 s90, s90, 1')
    A(f's_cmp_gt_u32 s90, {SPIN_LIMIT}')
    A(f's_cbranch_scc1 {end}')
    read_counts(A, vd, end, vt)
    A(f's_lshr_b32 s89, {s(S_SLOT)}, 5')
    A(f'v_readlane_b32 s89, {v(vd)}, s89')
    A(f's_mov_b32 {s(sdst)}, {0 if force else 1}')
    A('s_cmp_ge_u32 s89, 32')
    A(f's_cbranch_scc1 {dn}')
    A(f's_mov_b32 {s(sdst)}, 0')
    A('s_cmp_lt_u32 s88, 256')
    A(f's_cbranch_scc1 {lp}')
    A.label(dn)


def init_work(A, end):
    A(f's_mov_b32 s42, {s(S_IDX)}')
    pstamp(A, 0, 120)

    def fills():
        A('v_lshlrev_b32 v100, 4, v0')
        for i in range(4):
            A(f'v_mov_b32 v{104 + i}, 0')
            A(f'v_mov_b32 v{108 + i}, -1')
        A('s_mov_b32 s43, s42')
        for u in range(256 // N_INIT):
            A('s_lshl_b32 s50, s43, 12')
            A(f'buffer_store_dwordx4 v[104:107], v100, {srd(SRD_WS)}, s50 offen sc1')
            A(f's_add_u32 s51, s50, {TM}')
            A('s_cmp_lt_u32 s43, 16')
            A(f's_cselect_b32 s51, s51, {OOB}')
            A(f'buffer_store_dwordx4 v[108:111], v100, {srd(SRD_WS)}, s51 offen sc1')
            A('s_lshl_b32 s50, s43, 13')
            A(f's_add_u32 s50, s50, {TP}')
            A(f'buffer_store_dwordx4 v[108:111], v100, {srd(SRD_WS)}, s50 offen sc1')
            A('s_add_u32 s50, s50, 4096')
            A(f'buffer_store_dwordx4 v[108:111], v100, {srd(SRD_WS)}, s50 offen sc1')
            A(f's_add_u32 s43, s43, {N_INIT}')
        return 4 * (256 // N_INIT)

    ptr_srd(A, SRD_A, KA_X, X_BYTES)
    A('s_lshl_b32 s24, s42, 2')
    A('s_add_u32 s24, s24, s3')
    A('s_lshl_b32 s25, s24, 12')
    A('s_lshr_b32 s27, s24, 3')
    A('s_lshl_b32 s27, s27, 15')
    A('s_and_b32 s31, s24, 7')
    A('s_lshl_b32 s31, s31, 6')
    A('s_add_u32 s27, s27, s31')
    A(f's_add_u32 s27, s27, {XN}')
    ln_wave(A, SRD_A, 25, 27, 2, 256 * 4096, 32 * 32768, between=fills)
    pstamp(A, 1, 120)
    A('s_waitcnt vmcnt(0)')
    pstamp(A, 2, 120)
    A('s_barrier')
    sk = A.newlabel('iws')
    A(f's_cmp_lg_u32 {s(S_WAVE)}, 0')
    A(f's_cbranch_scc1 {sk}')
    A(f's_and_b32 s40, {s(S_SLOT)}, 1')
    A('s_lshl_b32 s40, s40, 7')
    A('v_mov_b32 v4, 1')
    A('s_mov_b64 exec, 1')
    A(f'buffer_atomic_add v4, off, {srd(SRD_DBG)}, s40 offset:64 sc1')
    A('s_mov_b64 exec, -1')
    A.label(sk)


def assign_slot(A, end, fake_xcc=None):
    A(f's_getreg_b32 {s(S_X)}, hwreg(HW_REG_XCC_ID)')
    A(f's_and_b32 {s(S_X)}, {s(S_X)}, 7')
    if fake_xcc:
        A(fake_xcc)
    have = A.newlabel('tick')
    A(f's_cmp_lg_u32 {s(S_WAVE)}, 0')
    A(f's_cbranch_scc1 {have}')
    A(f's_lshl_b32 s40, {s(S_X)}, 2')
    A('s_add_u32 s40, s40, 128')
    A(f's_cmp_eq_u32 {s(S_X)}, 0')
    A('s_cselect_b32 s40, 0, s40')
    A('v_mov_b32 v4, 1')
    A('v_mov_b32 v5, 0')
    A('s_mov_b64 exec, 1')
    A(f'buffer_atomic_add v4, off, {srd(SRD_DBG)}, s40 sc0 sc1')
    A('s_waitcnt vmcnt(0)')
    A('ds_write_b32 v5, v4')
    A('s_mov_b64 exec, -1')
    A('s_waitcnt lgkmcnt(0)')
    A.label(have)
    A('s_barrier')
    A('v_mov_b32 v5, 0')
    A('ds_read_b32 v4, v5')
    A('s_waitcnt lgkmcnt(0)')
    A('v_readfirstlane_b32 s41, v4')
    A('s_barrier')
    A(f's_lshl_b32 {s(S_SLOT)}, {s(S_X)}, 5')
    A(f's_add_u32 {s(S_SLOT)}, {s(S_SLOT)}, s41')
    ok = A.newlabel('slotok')
    A('s_cmp_lt_u32 s41, 32')
    A(f's_cbranch_scc1 {ok}')
    lp = A.newlabel('surp')
    A('s_mov_b32 s42, 0')
    A.label(lp)
    A('s_add_u32 s42, s42, 1')
    A(f's_cmp_gt_u32 s42, {SPIN_LIMIT}')
    A(f's_cbranch_scc1 {end}')
    read_counts(A, 4, end)
    A('s_cmp_lt_u32 s88, 256')
    A(f's_cbranch_scc1 {lp}')
    A('s_sub_u32 s43, s41, 32')
    for i in range(8):
        A(f's_max_u32 s89, s{80 + i}, 32')
        A('s_sub_u32 s89, s89, 32')
        A(f's_cmp_gt_u32 {s(S_X)}, {i}')
        A('s_cselect_b32 s89, s89, 0')
        A('s_add_u32 s43, s43, s89')
    for i in range(8):
        nx = A.newlabel('hole')
        A(f's_min_u32 s89, s{80 + i}, 32')
        A('s_sub_u32 s90, 32, s89')
        A('s_cmp_lt_u32 s43, s90')
        A(f's_cbranch_scc0 {nx}')
        A(f's_add_u32 {s(S_SLOT)}, s89, s43')
        A(f's_add_u32 {s(S_SLOT)}, {s(S_SLOT)}, {i * 32}')
        A(f's_branch {ok}')
        A.label(nx)
        A('s_sub_u32 s43, s43, s90')
    A(f's_branch {end}')
    A.label(ok)


def ptr_srd(A, sreg, ka, nbytes):
    A(f's_load_dwordx2 {s(sreg, 2)}, s[0:1], {ka}')
    A('s_waitcnt lgkmcnt(0)')
    A(f's_mov_b32 {s(sreg + 2)}, {nbytes}')
    A(f's_mov_b32 {s(sreg + 3)}, 0x00020000')


def proj_params(A, layer, seg0, nseg, is_v):
    A(f's_mov_b32 {s(G_IN)}, {XN + layer * 4 * MB * LS() + seg0 * 32768}')
    A('s_lshl_b32 s27, s42, 14')
    if is_v:
        A('s_lshr_b32 s40, s3, 1')
        A('s_lshl_b32 s40, s40, 13')
        A('s_add_u32 s27, s27, s40')
        A('s_and_b32 s40, s3, 1')
        A('s_lshl_b32 s40, s40, 10')
        A('s_add_u32 s27, s27, s40')
        A(f's_add_u32 s27, s27, {VT + layer * 16 * MB * LS() + seg0 * 262144}')
    else:
        A('s_lshl_b32 s40, s3, 12')
        A('s_add_u32 s27, s27, s40')
        A('s_lshl_b32 s40, s43, 25')
        A('s_add_u32 s27, s27, s40')
        A(f's_add_u32 s27, s27, {QB + layer * 16 * MB * LS() + seg0 * 262144}')
    assert KB - QB == 1 << 25
    A(f's_mov_b32 {s(G_CNT)}, {nseg}')
    A(f's_mov_b32 {s(G_FIN)}, {flag_base(ST_RL2, 0) + seg0 * 1024}')
    A(f's_lshl_b32 {s(G_FOUT)}, s43, 6')
    A('s_lshl_b32 s40, s42, 2')
    A(f's_add_u32 {s(G_FOUT)}, {s(G_FOUT)}, s40')
    A(f's_add_u32 {s(G_FOUT)}, {s(G_FOUT)}, {flag_base(ST_PROJ, layer) + seg0 * 1024}')


def LS():
    return 0 if TUNE.get('share') else 1


def ring(A, lim, sreg, span):
    A(f's_add_u32 {s(lim)}, {s(sreg)}, {span * RING}')
    return (lim, span * RING)


def build_mega(K, force_slow=False, fake_xcc=None, tune=None, stamp=False):
    A = K.A
    end = K.end
    A('s_cmp_ge_u32 s2, 256')
    A(f's_cbranch_scc1 {end}')
    load_srds(A, [(SRD_WS, KA_WS, WS_BYTES), (SRD_DBG, KA_DBG, 256)])
    wave_setup(A)
    dstamp(A, 1, 4, (2, 0))
    if PROFILE[0]:
        A('s_lshl_b32 s40, s2, 2')
        A(f's_add_u32 s40, s40, {TCTL + 131072}')
        emit_signal(A, 40, 4)
    assign_slot(A, end, fake_xcc)
    if PROFILE[0]:
        A('s_lshl_b32 s40, s2, 2')
        A(f's_add_u32 s40, s40, {TCTL + 131072 + 1024}')
        emit_signal(A, 40, 4)
    L = {n: A.newlabel('r_' + n) for n in ('team', 'proj', 'init', 'group', 'ao', 'gu', 'dn', 'rl', 'rl2')}
    A(f's_cmp_lt_u32 {s(S_SLOT)}, 32')
    A(f's_cbranch_scc1 {L["team"]}')
    A('s_mov_b32 s44, 2')
    A(f's_sub_u32 s45, {s(S_SLOT)}, 32')
    A(f's_cmp_lt_u32 {s(S_SLOT)}, 64')
    A(f's_cbranch_scc1 {L["proj"]}')
    A(f's_and_b32 s40, {s(S_SLOT)}, 31')
    A(f's_lshr_b32 s41, {s(S_SLOT)}, 5')
    hi4 = A.newlabel('mx4')
    mdone = A.newlabel('mxd')
    A('s_cmp_ge_u32 s41, 4')
    A(f's_cbranch_scc1 {hi4}')
    A('s_sub_u32 s41, s41, 2')
    A(f's_mul_i32 s42, s41, {GN}')
    A(f's_add_u32 s42, s42, {N_PROJ}')
    A('s_lshl_b32 s43, s41, 1')
    A(f's_add_u32 s43, s43, {N_PROJ + 2 * GN - 30}')
    A('s_cmp_lt_u32 s40, 30')
    A('s_cselect_b32 s42, s42, s43')
    A(f's_add_u32 {s(S_IDX)}, s42, s40')
    A(f's_branch {mdone}')
    A.label(hi4)
    A('s_sub_u32 s41, s41, 4')
    A('s_lshr_b32 s42, s41, 1')
    A(f's_mul_i32 s42, s42, {GN}')
    A(f's_add_u32 s42, s42, {N_PROJ}')
    A('s_and_b32 s43, s41, 1')
    A('s_lshl_b32 s47, s43, 4')
    A('s_add_u32 s47, s47, s42')
    A('s_add_u32 s47, s47, 38')
    A('s_lshl_b32 s48, s43, 2')
    A('s_add_u32 s48, s48, s42')
    A('s_add_u32 s48, s48, 14')
    A('s_mul_i32 s49, s41, 12')
    A('s_sub_u32 s49, s49, 20')
    A('s_cmp_lt_u32 s40, 20')
    A('s_cselect_b32 s49, s48, s49')
    A('s_cmp_lt_u32 s40, 16')
    A('s_cselect_b32 s49, s47, s49')
    A(f's_add_u32 {s(S_IDX)}, s49, s40')
    A.label(mdone)
    A(f's_mov_b32 s44, 0')
    A(f's_mov_b32 s45, {s(S_IDX)}')
    A(f's_cmp_lt_u32 {s(S_IDX)}, {N_PROJ}')
    A(f's_cbranch_scc1 {L["proj"]}')
    A(f's_sub_u32 {s(S_IDX)}, {s(S_IDX)}, {N_PROJ}')
    A(f's_mov_b32 {s(S_LAYER)}, 0')
    A(f's_cmp_lt_u32 {s(S_IDX)}, {N_INIT}')
    A(f's_cbranch_scc1 {L["init"]}')
    A(f's_cmp_lt_u32 {s(S_IDX)}, {GN}')
    A(f's_cbranch_scc1 {L["group"]}')
    A(f's_sub_u32 {s(S_IDX)}, {s(S_IDX)}, {GN}')
    A(f's_mov_b32 {s(S_LAYER)}, 1')
    if 'psplit' in TUNE:
        A('s_mov_b32 s44, 1')
        A(f's_mov_b32 s45, {s(S_IDX)}')
        A(f's_cmp_lt_u32 {s(S_IDX)}, 30')
        A(f's_cbranch_scc1 {L["proj"]}')
        A(f's_add_u32 s45, {s(S_IDX)}, 2')
        A(f's_cmp_lt_u32 {s(S_IDX)}, 46')
        A(f's_cbranch_scc1 {L["proj"]}')
        A('s_mov_b32 s44, 2')
        A(f's_sub_u32 s45, {s(S_IDX)}, 14')
        A(f's_cmp_lt_u32 {s(S_IDX)}, 62')
        A(f's_cbranch_scc1 {L["proj"]}')
        A('s_mov_b32 s44, 1')
        A(f's_sub_u32 s45, {s(S_IDX)}, 40')
        A(f's_sub_u32 s40, {s(S_IDX)}, 70')
        A('s_cmp_lt_u32 s40, 2')
        A(f's_cbranch_scc0 {L["group"]}')
    else:
        A('s_mov_b32 s44, 3')
        A(f's_sub_u32 s45, {s(S_IDX)}, {N_PROJ + 16 - 38}')
        A(f's_cmp_ge_u32 {s(S_IDX)}, {N_PROJ + 16}')
        A(f's_cbranch_scc1 {L["proj"]}')
        A(f's_mov_b32 s44, 1')
        A(f's_mov_b32 s45, {s(S_IDX)}')
        A(f's_cmp_lt_u32 {s(S_IDX)}, {N_PROJ}')
        A(f's_cbranch_scc1 {L["proj"]}')
        A('s_mov_b32 s44, 2')
        A(f's_sub_u32 s45, {s(S_IDX)}, 16')

    A.label(L['proj'])
    if not PCFG[TUNE.get('pcfg', 1)][3]:
        A('s_cmp_eq_u32 s44, 3')
        A(f's_cbranch_scc1 {L["group"]}')
    if TUNE.get('delay'):
        nd = A.newlabel('nodelay')
        A(f's_lshr_b32 s40, {TUNE["delay"]}, s44')
        A('s_and_b32 s40, s40, 1')
        A(f's_cbranch_scc0 {nd}')
        wait_init(A, end)
        A.label(nd)
    A('s_lshr_b32 s43, s45, 4')
    A('s_and_b32 s42, s45, 15')
    A('s_lshl_b32 s40, s43, 3')
    A(f's_add_u32 s40, s40, {KA_WQ}')
    A(f's_load_dwordx2 {s(SRD_A, 2)}, s[0:1], s40')
    A('s_waitcnt lgkmcnt(0)')
    A(f's_mov_b32 {s(SRD_A + 2)}, {WQKV_BYTES}')
    A(f's_mov_b32 {s(SRD_A + 3)}, 0x00020000')
    A('s_lshl_b32 s24, s42, 9')
    A('s_lshl_b32 s40, s3, 7')
    A('s_add_u32 s24, s24, s40')
    A('s_add_u32 s25, s24, 64')
    lv = A.newlabel('pv')
    A('s_cmp_eq_u32 s43, 2')
    A(f's_cbranch_scc1 {lv}')
    for is_v in (False, True):
        mode = 'v' if is_v else 'qk'
        if is_v:
            A.label(lv)
        pstamp(A, 5, 3)
        A('s_waitcnt vmcnt(0)')
        gemm_setup(A, 32, mode, 8192, SRD_A, SRD_A)
        pstamp(A, 6, 3)
        wait_init(A, end)
        pstamp(A, 7, 3)
        A('s_lshl_b32 s41, s44, 3')
        again = A.newlabel('pagain')
        l2 = A.newlabel('pl2')
        fin = A.newlabel('pfin')
        go = A.newlabel('pgo')
        A.label(again)
        for si, ps in enumerate(PSPLIT[TUNE['psplit']][is_v] if 'psplit' in TUNE else PCFG[TUNE.get('pcfg', 1)]):
            for pi, (st, sd, cnt) in enumerate(ps):
                A(f's_mov_b32 s50, {st | (sd << 8) | (cnt << 16)}')
                A(f's_cmp_eq_u32 s41, {si * 8 + pi}')
                A(f's_cbranch_scc1 {go}')
        A(f's_branch {fin}')
        A.label(go)
        proj_params(A, 0, 0, 1, is_v)
        A('s_and_b32 s51, s50, 255')
        A('s_lshl_b32 s40, s51, 15')
        A(f's_add_u32 {s(G_IN)}, {s(G_IN)}, s40')
        A('s_lshl_b32 s40, s51, 18')
        A(f's_add_u32 {s(G_OUT)}, {s(G_OUT)}, s40')
        A('s_lshl_b32 s40, s51, 10')
        A(f's_add_u32 {s(G_FOUT)}, {s(G_FOUT)}, s40')
        A('s_bfe_u32 s51, s50, 0x80008')
        A('s_lshl_b32 s47, s51, 15')
        A('s_lshl_b32 s48, s51, 18')
        A('s_lshl_b32 s49, s51, 10')
        A(f's_lshr_b32 {s(G_CNT)}, s50, 16')
        gemm_loop(A, 32, mode, 's47', 's48', end, flags=dict(n=1, fout_step='s49', poll_in=False))
        A('s_barrier')
        A('s_add_u32 s41, s41, 1')
        A(f's_branch {again}')
        A.label(fin)
        A('s_cmp_eq_u32 s44, 0')
        A(f's_cbranch_scc1 {l2}')
        A(f's_cmp_lt_u32 {s(S_SLOT)}, 64')
        A(f's_cbranch_scc1 {L["team"]}')
        A(f's_branch {L["group"]}')
        A.label(l2)
        proj_params(A, 1, 0, 64, is_v)
        gemm_loop(A, 32, mode, 32768, 262144, end,
                  flags=dict(n=4, fin_step=1024, fout_step=1024, poll_in=True))
        A(f's_branch {end}')

    A.label(L['init'])
    init_work(A, end)
    A('s_mov_b32 s44, 3')
    A(f's_mov_b32 s45, {s(S_IDX)}')
    A(f's_cmp_lt_u32 {s(S_IDX)}, 38')
    A(f's_cbranch_scc1 {L["proj"]}')
    A.label(L['group'])
    wait_init(A, end)
    xcd_pure(A, end, 91, 4, 3, force=force_slow or TUNE.get('noloc'))
    A(f's_lshl_b32 s46, {s(S_LAYER)}, 16')
    for name, n in GROUP:
        A(f's_cmp_lt_u32 {s(S_IDX)}, {n}')
        A(f's_cbranch_scc1 {L[name]}')
        A(f's_sub_u32 {s(S_IDX)}, {s(S_IDX)}, {n}')
    A(f's_branch {end}')

    def own_flag(stage):
        A(f's_lshl_b32 {s(G_FOUT)}, {s(S_IDX)}, 2')
        A(f's_add_u32 {s(G_FOUT)}, {s(G_FOUT)}, s46')
        A(f's_add_u32 {s(G_FOUT)}, {s(G_FOUT)}, {flag_base(stage, 0)}')

    def part_out(base, lsh):
        A('s_lshl_b32 s27, s42, 15')
        A(f's_lshl_b32 s40, {s(S_LAYER)}, {lsh}')
        A('s_add_u32 s27, s27, s40')
        A('s_lshl_b32 s40, s41, 11')
        A('s_add_u32 s27, s27, s40')
        A('s_lshl_b32 s40, s3, 9')
        A('s_add_u32 s27, s27, s40')
        A(f's_add_u32 s27, s27, {base}')

    A.label(L['ao'])
    ptr_srd(A, SRD_A, KA_WO, WQKV_BYTES)
    A(f's_and_b32 s41, {s(S_IDX)}, 1')
    A(f's_bfe_u32 s42, {s(S_IDX)}, 0x30001')
    A(f's_lshr_b32 s43, {s(S_IDX)}, 4')
    A('s_lshl_b32 s24, s42, 19')
    A('s_lshl_b32 s40, s41, 9')
    A('s_add_u32 s24, s24, s40')
    A('s_lshl_b32 s40, s3, 7')
    A('s_add_u32 s24, s24, s40')
    A('s_add_u32 s25, s24, 64')
    part_out(PO, 24)
    A(f's_mul_i32 s40, s43, {8 * PSEG}')
    A('s_add_u32 s27, s27, s40')
    A('s_mov_b32 s28, 32')
    A('s_lshl_b32 s47, s42, 2')
    A('s_add_u32 s47, s47, s3')
    A('s_lshl_b32 s48, s43, 5')
    A('s_add_u32 s48, s48, s47')
    A('s_lshl_b32 s40, s48, 13')
    A(f's_mul_i32 s49, {s(S_LAYER)}, {(1 << 24) * LS()}')
    A('s_add_u32 s40, s40, s49')
    A(f's_add_u32 s50, s40, {QB}')
    A(f's_add_u32 s51, s40, {KB}')
    A(f's_add_u32 s52, s40, {VT}')
    A('s_lshl_b32 s40, s48, 11')
    A(f's_mul_i32 s49, {s(S_LAYER)}, {(1 << 22) * LS()}')
    A('s_add_u32 s40, s40, s49')
    A(f's_add_u32 s53, s40, {KM}')
    A(f's_add_u32 s54, s40, {VM}')
    A('s_lshl_b32 s49, s43, 10')
    A('s_add_u32 s49, s49, s46')
    A('s_lshl_b32 s40, s47, 4')
    A('s_add_u32 s29, s49, s40')
    A(f's_add_u32 s29, s29, {flag_base(ST_TEAM, 0)}')
    A('s_lshr_b32 s40, s47, 1')
    A('s_lshl_b32 s40, s40, 2')
    A('s_add_u32 s55, s49, s40')
    A(f's_add_u32 s55, s55, {flag_base(ST_PROJ, 0)}')
    A(f's_and_b32 s40, {s(S_IDX)}, 15')
    A('s_lshl_b32 s40, s40, 2')
    A('s_add_u32 s30, s49, s40')
    A(f's_add_u32 s30, s30, {flag_base(ST_OUT, 0)}')
    A(f's_add_u32 s64, s49, {flag_base(ST_RL, 0) - RING * 1024}')
    A('s_sub_u32 s64, s64, s29')
    ao_role(A, 2, end, s_pure=91, wout=ring(A, 62, 27, 8 * PSEG), bp=(64, 4))

    A.label(L['gu'])
    ptr_srd(A, SRD_A, KA_WG, WGU_BYTES)
    ptr_srd(A, SRD_B, KA_WU, WGU_BYTES)
    A(f's_lshl_b32 s24, {s(S_IDX)}, 8')
    A('s_lshl_b32 s40, s3, 6')
    A('s_add_u32 s24, s24, s40')
    A('s_mov_b32 s25, s24')
    A(f's_mul_i32 s26, {s(S_LAYER)}, {(1 << 22) * LS()}')
    A(f's_add_u32 s26, s26, {XN + 2 * MB}')
    A(f's_lshl_b32 s27, {s(S_IDX)}, 13')
    A('s_lshl_b32 s40, s3, 11')
    A('s_add_u32 s27, s27, s40')
    A(f's_add_u32 s27, s27, {HB}')
    A(f's_lshl_b32 s40, {s(S_LAYER)}, 23')
    A('s_add_u32 s27, s27, s40')
    A('s_mov_b32 s28, 64')
    A(f's_add_u32 {s(G_FIN)}, s46, {flag_base(ST_RL, 0)}')
    own_flag(ST_GU)
    A(f's_mov_b32 s54, {flag_base(ST_DN, 0) - flag_base(ST_RL, 0) - RING * 1024}')
    gemm_role(A, 32, 'gu', 3584, SRD_A, SRD_B, 32768, 224 * 512, end,
              flags=dict(n=4, fin_step=1024, fout_step=1024, poll_in=True, wout=ring(A, 52, 27, 224 * 512),
                         bp=(54, 8)),
              s_pure=91)

    A.label(L['dn'])
    ptr_srd(A, SRD_A, KA_WD, WGU_BYTES)
    A(f's_and_b32 s41, {s(S_IDX)}, 1')
    A(f's_lshr_b32 s42, {s(S_IDX)}, 1')
    A(f's_mul_i32 s24, s42, {448 * 1024}')
    A('s_lshl_b32 s40, s41, 9')
    A('s_add_u32 s24, s24, s40')
    A('s_lshl_b32 s40, s3, 7')
    A('s_add_u32 s24, s24, s40')
    A('s_add_u32 s25, s24, 64')
    A(f's_mul_i32 s26, s42, {28 * 1024}')
    A(f's_add_u32 s26, s26, {HB}')
    A(f's_lshl_b32 s40, {s(S_LAYER)}, 23')
    A('s_add_u32 s26, s26, s40')
    part_out(PD, 23)
    A('s_mov_b32 s28, 64')
    A(f's_mul_i32 {s(G_FIN)}, s42, 7')
    A(f's_lshr_b32 {s(G_FIN)}, {s(G_FIN)}, 1')
    A(f's_lshl_b32 {s(G_FIN)}, {s(G_FIN)}, 2')
    A(f's_add_u32 {s(G_FIN)}, {s(G_FIN)}, s46')
    A(f's_add_u32 {s(G_FIN)}, {s(G_FIN)}, {flag_base(ST_GU, 0)}')
    own_flag(ST_DN)
    A(f's_add_u32 s54, s46, {flag_base(ST_RL2, 0) - RING * 1024}')
    A(f's_sub_u32 s54, s54, {s(G_FIN)}')
    gemm_role(A, 28, 'part', 1024, SRD_A, SRD_A, 224 * 512, 4 * PSEG, end,
              flags=dict(n=4, fin_step=1024, fout_step=1024, poll_in=True, win=ring(A, 52, 26, 224 * 512),
                         wout=ring(A, 53, 27, 4 * PSEG), bp=(54, 4)), s_pure=91)

    for name, pbase, kbn, st_in, nfl, st_out in (('rl', PO, 8, ST_OUT, 16, ST_RL), ('rl2', PD, 4, ST_DN, 8, ST_RL2)):
        A.label(L[name])
        l1 = A.newlabel('rl_l1')
        A(f's_lshl_b32 s25, {s(S_IDX)}, 13')
        A('s_mov_b32 s26, s25')
        A(f's_lshr_b32 s41, {s(S_IDX)}, 2')
        A(f's_and_b32 s42, {s(S_IDX)}, 3')
        A(f's_mul_i32 s24, s41, {kbn * PSEG}')
        A('s_lshl_b32 s40, s42, 13')
        A('s_add_u32 s24, s24, s40')
        A(f's_add_u32 s24, s24, {pbase}')
        A(f's_lshl_b32 s40, {s(S_LAYER)}, {24 if kbn == 8 else 23}')
        A('s_add_u32 s24, s24, s40')
        A('s_lshl_b32 s27, s41, 15')
        A('s_lshl_b32 s40, s42, 7')
        A('s_add_u32 s27, s27, s40')
        A('s_mov_b32 s28, 32')
        A('s_lshl_b32 s41, s41, 10')
        A('s_add_u32 s41, s41, s46')
        A(f's_add_u32 s29, s41, {flag_base(st_in, 0)}')
        A('s_lshl_b32 s40, s42, 2')
        A('s_add_u32 s30, s41, s40')
        A(f's_add_u32 s30, s30, {flag_base(st_out, 0)}')
        A(f's_cmp_eq_u32 {s(S_LAYER)}, 1')
        A(f's_cbranch_scc1 {l1}')
        for layer in (0, 1):
            which = layer * 2 + (0 if name == 'rl' else 1)
            if layer == 1:
                A.label(l1)
            if which == 0:
                ptr_srd(A, SRD_A, KA_X, X_BYTES)
            if which == 3:
                ptr_srd(A, SRD_B, KA_OUT, X_BYTES)
            if which > 0:
                A(f's_add_u32 s25, s25, {XR + (which - 1) * 2 * MB}')
            if which < 3:
                A(f's_add_u32 s26, s26, {XR + which * 2 * MB}')
            A(f's_add_u32 s27, s27, {XN + ((which + 1) & (3 if LS() else 1)) * 2 * MB}')
            (rl_role, rlw_role, rl8_role)[TUNE.get('rlw', 2)](A, kbn, SRD_A if which == 0 else SRD_WS, SRD_B if which == 3 else SRD_WS, which < 3,
                    dict(p=2 * kbn * PSEG, x=65536, xn=65536), end,
                    flags=dict(n=nfl, fin_step=2048, fout_step=2048, poll_in=True, signal=True, pair=True,
                               win=ring(A, 52, 24, kbn * PSEG)),
                    xin_sc1=which > 0, xout_sc1=which < 3)

    A.label(L['team'])
    load_srds(A, [(SRD_A, KA_WQ, WQKV_BYTES), (SRD_B, KA_WK, WQKV_BYTES),
                  (SRD_C, KA_WV, WQKV_BYTES), (SRD_D, KA_WO, WQKV_BYTES), (SRD_M0, KA_MEM0, 8192)])
    A(f's_lshr_b32 {s(S_LAYER)}, {s(S_SLOT)}, 5')
    A(f's_and_b32 {s(M_ME)}, {s(S_SLOT)}, 31')
    A(f's_lshl_b32 s40, {s(M_ME)}, 13')
    A(f's_mul_i32 s41, {s(S_LAYER)}, {(1 << 24) * LS()}')
    A('s_add_u32 s40, s40, s41')
    A(f's_add_u32 {s(M_K)}, s40, {KB}')
    A(f's_add_u32 {s(M_V)}, s40, {VT}')
    A(f's_lshl_b32 s40, {s(M_ME)}, 11')
    A(f's_mul_i32 s41, {s(S_LAYER)}, {(1 << 22) * LS()}')
    A('s_add_u32 s40, s40, s41')
    A(f's_add_u32 {s(M_KM)}, s40, {KM}')
    A(f's_add_u32 {s(M_VM)}, s40, {VM}')
    A(f's_lshl_b32 s40, {s(S_LAYER)}, 20')
    A(f's_add_u32 {s(M_TP)}, s40, {TP}')
    A(f's_lshl_b32 s40, {s(S_LAYER)}, 15')
    A(f's_add_u32 {s(M_TM)}, s40, {TM}')
    A(f's_lshl_b32 s41, {s(S_LAYER)}, 16')
    A(f's_lshr_b32 s40, {s(M_ME)}, 1')
    A('s_lshl_b32 s40, s40, 2')
    A('s_add_u32 s40, s40, s41')
    A(f's_add_u32 {s(M_FPR)}, s40, {flag_base(ST_PROJ, 0) + 64}')
    A(f's_lshl_b32 s40, {s(M_ME)}, 4')
    A('s_add_u32 s40, s40, s41')
    A(f's_add_u32 {s(M_FOUT)}, s40, {flag_base(ST_TEAM, 0)}')

    def purity(A):
        xcd_pure(A, end, M_FAST, 20, 21)
        wait_init(A, end, 20, 21)
        if TUNE.get('warm', 1):
            A('v_lshlrev_b32 v20, 7, v2')
            A(f's_lshl_b32 s40, {s(M_ME)}, 13')
            A(f's_lshl_b32 s41, {s(S_WAVE)}, 18')
            A('s_add_u32 s40, s40, s41')
            A(f's_add_u32 s40, s40, {s(M_TP)}')
            A(f'buffer_load_dword v21, v20, {srd(SRD_WS)}, s40 offen sc1')
            A(f's_lshl_b32 s41, {s(S_WAVE)}, 13')
            A(f's_add_u32 s40, s41, {s(M_TM)}')
            A(f'buffer_load_dword v41, v20, {srd(SRD_WS)}, s40 offen sc1')
            A('s_waitcnt vmcnt(0)')

    team_role(A, end, flags=dict(poll_in=True, signal=True), force_slow=force_slow, purity=purity, tune=tune,
              stamp=stamp)
```

```python
from asmdsl import v, a, s
from layout import *
from roles import *

M_ME, M_K, M_V, M_KM, M_VM, M_TP, M_TM, M_CTL, M_FPR, M_FOUT = 24, 25, 26, 27, 28, 29, 30, 31, 32, 33
M_STEP, M_T0, M_T1, M_T2, M_SPIN = 34, 35, 36, 37, 38
M_PW, M_PR, M_MP, M_MRS, M_MRD = 39, 40, 41, 42, 43
SRD_M0 = 44
M_PUBX = 48
M_ODD = 52
M_C = 54
M_PW2 = 56
M_XCC = 57
M_FAST = 59
M_PRO, M_SIG = 90, 91
M_SRC, M_EXP, M_DST, M_HS = 50, 51, 55, 58
M_FP2 = 58
M_CAR = 57
M_PROMPT = 31
M_FOK = 59
M_K2, M_EXO, M_SIG2 = 50, 27, 28

STAMP_NAMES = []
L_MEM = 131072
L_KX = L_MEM + 8192
L_VX = L_KX + 8192
L_QK = L_VX + 8192
L_O = L_QK + 4096
L_SEL = L_O + 2048
L_END = L_SEL + 1024

vOne, vL16, vLane = 0, 1, 2
vTouch = 2
vIdx, vWl, vHi, vQKw, vQr, vKMr, vOw, vPw, vPub, vHD, vVMw, vFl, vTa, vFv, vVr, vMw, vEx = range(3, 20)
t0, t1, t2, t3 = 20, 21, 22, 23
VX = 24
MF = 32
ACC = 64
S1 = 88
E = 120
QA, KA, VA = ACC, ACC + 8, ACC + 16
ONES = E + 4

RBLOCKS = ([('q', i) for i in (0, 2, 1, 3, 5, 7)] + [('k', i) for i in (0, 2, 1, 3, 5, 7)]
           + [('v', i) for i in (0, 2, 1, 3, 4, 6, 5, 7)]
           + [('o', 1, 0), ('o', 1, 1), ('o', 2, 0), ('o', 2, 1)])
LBLOCKS = [('q', 4), ('q', 6), ('k', 4), ('k', 6), ('o', 0, 0), ('o', 0, 1), ('o', 3, 0), ('o', 3, 1)]


def rreg(blk, t, n=8, off=0):
    r = (RBLOCKS.index(blk) * 2 + t) * 8 + off
    return a(r, n) if r < 256 else v(128 + r - 256, n)


def loff(blk, t):
    return LBLOCKS.index(blk) * 4096 + t * 2048


def hi(x):
    return x - L_MEM


def team_role(A, end_label, flags=None, force_slow=False, nsteps=NSEG, stamp=False, purity='ctl', tune=None):
    tune = tune or {}
    vS, vZ, vCh, vWq, vWoD, vTr0, vTr1 = 32, 33, 34, 35, 36, 37, 38
    A(f'v_bfe_u32 {v(vS)}, {v(vLane)}, 2, 1')
    A(f'v_bfe_u32 {v(t0)}, {v(vLane)}, 5, 1')
    A(f'v_lshl_add_u32 {v(vS)}, {v(t0)}, 1, {v(vS)}')
    A(f'v_bfe_u32 {v(t0)}, {v(vLane)}, 4, 1')
    A(f'v_lshl_add_u32 {v(vS)}, {v(t0)}, 2, {v(vS)}')
    A(f'v_bfe_u32 {v(vZ)}, {v(vLane)}, 3, 1')
    A(f'v_and_b32 {v(vCh)}, 3, {v(vLane)}')
    A(f'v_lshlrev_b32 {v(t0)}, 1, {v(t0)}')
    A(f'v_xor_b32 {v(vCh)}, {v(vCh)}, {v(t0)}')
    A(f'v_lshl_add_u32 {v(t1)}, {v(vS)}, 4, {v(vZ)}')
    A(f'v_lshlrev_b32 {v(vWq)}, 13, {v(t1)}')
    A(f'v_lshl_add_u32 {v(vWq)}, {v(vCh)}, 4, {v(vWq)}')
    A(f'v_lshl_add_u32 {v(t1)}, {v(vZ)}, 3, {v(vS)}')
    A(f'v_lshlrev_b32 {v(vWoD)}, 10, {v(t1)}')
    A(f'v_lshl_add_u32 {v(vWoD)}, {v(vCh)}, 4, {v(vWoD)}')
    A(f'v_bfe_u32 {v(t0)}, {v(vLane)}, 2, 3')
    A(f'v_bfe_u32 {v(t1)}, {v(vLane)}, 5, 1')
    A(f'v_lshl_add_u32 {v(t0)}, {v(t1)}, 4, {v(t0)}')
    A(f'v_lshlrev_b32 {v(vTr0)}, 6, {v(t0)}')
    A(f'v_and_b32 {v(t0)}, 3, {v(vLane)}')
    A(f'v_lshl_add_u32 {v(vTr0)}, {v(t0)}, 3, {v(vTr0)}')
    A(f'v_bfe_u32 {v(t1)}, {v(vLane)}, 4, 1')
    A(f'v_lshl_add_u32 {v(vTr0)}, {v(t1)}, 5, {v(vTr0)}')
    A(f's_lshl_b32 {s(M_T0)}, {s(S_WAVE)}, 15')
    A(f'v_add_u32 {v(vTr0)}, {s(M_T0)}, {v(vTr0)}')
    A(f'v_xor_b32 {v(vTr1)}, 32, {v(vTr0)}')
    A(f'v_add_u32 {v(vWl)}, {s(M_T0)}, {v(vL16)}')

    if purity == 'ctl':
        A(f's_getreg_b32 {s(M_XCC)}, hwreg(HW_REG_XCC_ID)')
        A(f's_and_b32 {s(M_XCC)}, {s(M_XCC)}, 15')
        A(f's_add_u32 {s(M_XCC)}, {s(M_XCC)}, 1')
        A(f'v_mov_b32 {v(t0)}, {s(M_XCC)}')
        A(f's_lshl_b32 {s(M_T0)}, {s(M_ME)}, 2')
        A(f's_add_u32 {s(M_T0)}, {s(M_T0)}, {s(M_CTL)}')
        A('s_mov_b64 exec, 1')
        A(f'buffer_store_dword {v(t0)}, off, {srd(SRD_WS)}, {s(M_T0)} sc1')
        A('s_mov_b64 exec, -1')

    A(f's_lshl_b32 {s(M_T2)}, {s(M_ME)}, 8')
    A(f's_lshl_b32 {s(M_T0)}, {s(S_WAVE)}, 6')
    A(f's_add_u32 {s(M_T2)}, {s(M_T2)}, {s(M_T0)}')
    A(f's_lshl_b32 {s(M_T1)}, {s(M_ME)}, 17')
    A(f's_lshl_b32 {s(M_T0)}, {s(S_WAVE)}, 8')
    A(f's_add_u32 {s(M_T1)}, {s(M_T1)}, {s(M_T0)}')
    def early_consts():
        n_, G_, hi_, row_ = 44, 45, 46, 47
        A(f'v_and_b32 {v(n_)}, 15, {v(vLane)}')
        A(f'v_lshrrev_b32 {v(G_)}, 4, {v(vLane)}')
        A(f'v_and_b32 {v(hi_)}, 1, {v(vLane)}')
        A(f'v_lshrrev_b32 {v(row_)}, 1, {v(n_)}')
        A(f'v_cmp_eq_u32 {s(M_ODD, 2)}, 1, {v(hi_)}')
        A(f'v_mov_b32 {v(t0)}, 0x4444')
        A(f'v_mov_b32 {v(t1)}, 0xeeee')
        A(f'v_cndmask_b32 {v(vIdx)}, {v(t0)}, {v(t1)}, {s(M_ODD, 2)}')
        A(f'v_add_u32 {v(vHi)}, {L_MEM}, {v(vL16)}')
        A(f's_lshl_b32 {s(M_T0)}, {s(S_WAVE)}, 11')
        A(f'v_add_u32 {v(vMw)}, {s(M_T0)}, {v(vHi)}')
        A(f's_add_u32 {s(M_DST)}, {s(M_T0)}, {L_KX}')
        A(f'v_lshlrev_b32 {v(vVr)}, 11, {v(G_)}')
        A(f'v_lshl_add_u32 {v(vVr)}, {v(n_)}, 4, {v(vVr)}')
        A(f's_lshl_b32 {s(M_T0)}, {s(S_WAVE)}, 9')
        A(f'v_add_u32 {v(vVr)}, {s(M_T0)}, {v(vVr)}')
        A(f's_lshl_b32 {s(M_T0)}, {s(S_WAVE)}, 10')
        A(f's_add_u32 {s(M_T0)}, {s(M_T0)}, {L_QK}')
        A(f'v_add_u32 {v(vEx)}, {s(M_T0)}, {v(vL16)}')
        A(f's_cmp_ge_u32 {s(S_WAVE)}, 2')
        A(f's_cselect_b32 {s(M_EXP)}, {s(M_KM)}, {s(M_VM)}')
        A(f's_and_b32 {s(M_T0)}, {s(S_WAVE)}, 1')
        A(f's_lshl_b32 {s(M_T0)}, {s(M_T0)}, 10')
        A(f's_add_u32 {s(M_EXP)}, {s(M_EXP)}, {s(M_T0)}')
        A(f'v_lshrrev_b32 {v(t0)}, 3, {v(n_)}')
        A(f'v_lshlrev_b32 {v(vQKw)}, 7, {v(t0)}')
        A(f'v_lshl_add_u32 {v(vQKw)}, {v(G_)}, 5, {v(vQKw)}')
        A(f'v_and_b32 {v(t0)}, 7, {v(n_)}')
        A(f'v_lshl_add_u32 {v(vQKw)}, {v(t0)}, 1, {v(vQKw)}')
        A(f's_lshl_b32 {s(M_T0)}, {s(S_WAVE)}, 9')
        A(f's_add_u32 {s(M_T0)}, {s(M_T0)}, {L_QK}')
        A(f'v_add_u32 {v(vQKw)}, {s(M_T0)}, {v(vQKw)}')
        A(f'v_lshl_add_u32 {v(t0)}, {v(G_)}, 3, {v(row_)}')
        A(f'v_lshlrev_b32 {v(vQr)}, 4, {v(t0)}')
        A(f'v_add_u32 {v(vQr)}, {L_QK}, {v(vQr)}')
        A(f'v_lshrrev_b32 {v(t0)}, 2, {v(n_)}')
        A(f'v_lshl_add_u32 {v(t0)}, {v(t0)}, 1, {v(hi_)}')
        A(f'v_lshl_add_u32 {v(t1)}, {v(G_)}, 3, {v(t0)}')
        A(f'v_lshlrev_b32 {v(vKMr)}, 4, {v(t1)}')
        A(f'v_add_u32 {v(vKMr)}, {L_QK + 2048}, {v(vKMr)}')
        A(f'v_lshlrev_b32 {v(vOw)}, 8, {v(hi_)}')
        A(f'v_lshl_add_u32 {v(vOw)}, {v(row_)}, 5, {v(vOw)}')
        A(f'v_lshl_add_u32 {v(vOw)}, {v(G_)}, 3, {v(vOw)}')
        A(f's_lshl_b32 {s(M_T0)}, {s(S_WAVE)}, 9')
        A(f's_add_u32 {s(M_T0)}, {s(M_T0)}, {L_O}')
        A(f'v_add_u32 {v(vOw)}, {s(M_T0)}, {v(vOw)}')
        A(f'v_lshrrev_b32 {v(t0)}, 2, {v(n_)}')
        A(f'v_lshlrev_b32 {v(vPw)}, 14, {v(t0)}')
        A(f'v_lshrrev_b32 {v(t0)}, 1, {v(G_)}')
        A(f'v_lshl_add_u32 {v(vPw)}, {v(t0)}, 13, {v(vPw)}')
        A(f'v_and_b32 {v(t0)}, 1, {v(G_)}')
        A(f'v_lshl_add_u32 {v(vPw)}, {v(t0)}, 11, {v(vPw)}')
        A(f'v_and_b32 {v(t0)}, 3, {v(n_)}')
        A(f'v_lshl_add_u32 {v(vPw)}, {v(t0)}, 4, {v(vPw)}')
        A(f's_lshl_b32 {s(M_T0)}, {s(S_WAVE)}, 16')
        A(f'v_add_u32 {v(vPw)}, {s(M_T0)}, {v(vPw)}')
        A(f'v_bfe_u32 {v(t0)}, {v(n_)}, 1, 1')
        A(f'v_lshlrev_b32 {v(vPub)}, 8, {v(t0)}')
        A(f'v_lshl_add_u32 {v(vPub)}, {v(hi_)}, 4, {v(vPub)}')
        A(f'v_and_b32 {v(t0)}, 1, {v(G_)}')
        A(f'v_lshl_add_u32 {v(vPub)}, {v(t0)}, 5, {v(vPub)}')
        A(f's_lshr_b32 {s(M_T0)}, {s(M_ME)}, 1')
        A(f's_lshl_b32 {s(M_T0)}, {s(M_T0)}, 9')
        A(f's_and_b32 {s(M_T1)}, {s(M_ME)}, 1')
        A(f's_lshl_b32 {s(M_T1)}, {s(M_T1)}, 7')
        A(f's_add_u32 {s(M_T0)}, {s(M_T0)}, {s(M_T1)}')
        A(f's_and_b32 {s(M_T1)}, {s(S_WAVE)}, 1')
        A(f's_lshl_b32 {s(M_T1)}, {s(M_T1)}, 6')
        A(f's_add_u32 {s(M_T0)}, {s(M_T0)}, {s(M_T1)}')
        A(f's_lshr_b32 {s(M_T1)}, {s(S_WAVE)}, 1')
        A(f's_lshl_b32 {s(M_T1)}, {s(M_T1)}, 3')
        A(f's_add_u32 {s(M_T0)}, {s(M_T0)}, {s(M_T1)}')
        A(f'v_add_u32 {v(vPub)}, {s(M_T0)}, {v(vPub)}')
        if tune.get('pubY'):
            A(f'v_lshrrev_b32 {v(t0)}, 2, {v(n_)}')
            A(f'v_lshlrev_b32 {v(vPw)}, 14, {v(t0)}')
            A(f'v_lshl_add_u32 {v(vPw)}, {v(G_)}, 12, {v(vPw)}')
            A(f'v_and_b32 {v(t0)}, 3, {v(n_)}')
            A(f'v_lshl_add_u32 {v(vPw)}, {v(t0)}, 4, {v(vPw)}')
            A(f's_lshl_b32 {s(M_T0)}, {s(S_WAVE)}, 16')
            A(f'v_add_u32 {v(vPw)}, {s(M_T0)}, {v(vPw)}')
            A(f'v_bfe_u32 {v(t0)}, {v(n_)}, 1, 1')
            A(f'v_lshlrev_b32 {v(vPub)}, 8, {v(t0)}')
            A(f'v_lshl_add_u32 {v(vPub)}, {v(hi_)}, 4, {v(vPub)}')
            A(f'v_and_b32 {v(t0)}, 1, {v(G_)}')
            A(f'v_lshl_add_u32 {v(vPub)}, {v(t0)}, 3, {v(vPub)}')
            A(f's_lshr_b32 {s(M_T0)}, {s(M_ME)}, 1')
            A(f's_lshl_b32 {s(M_T0)}, {s(M_T0)}, 9')
            A(f's_and_b32 {s(M_T1)}, {s(M_ME)}, 1')
            A(f's_lshl_b32 {s(M_T1)}, {s(M_T1)}, 7')
            A(f's_add_u32 {s(M_T0)}, {s(M_T0)}, {s(M_T1)}')
            A(f's_lshl_b32 {s(M_T1)}, {s(S_WAVE)}, 5')
            A(f's_add_u32 {s(M_T0)}, {s(M_T0)}, {s(M_T1)}')
            A(f'v_add_u32 {v(vPub)}, {s(M_T0)}, {v(vPub)}')
        A(f's_mov_b32 {s(M_PUBX)}, 0x000f000f')
        A(f's_mov_b32 {s(M_PUBX + 1)}, 0')
        A(f'v_lshrrev_b32 {v(t0)}, 2, {v(n_)}')
        A(f'v_lshlrev_b32 {v(vHD)}, 7, {v(t0)}')
        A(f'v_and_b32 {v(t0)}, 3, {v(n_)}')
        A(f'v_lshl_add_u32 {v(vHD)}, {v(t0)}, 4, {v(vHD)}')
        A(f'v_lshl_add_u32 {v(vHD)}, {v(G_)}, 9, {v(vHD)}')
        A(f's_lshl_b32 {s(M_T0)}, {s(S_WAVE)}, 11')
        A(f'v_add_u32 {v(vHD)}, {s(M_T0)}, {v(vHD)}')
        A(f'v_lshrrev_b32 {v(t0)}, 1, {v(G_)}')
        A(f'v_lshlrev_b32 {v(vVMw)}, 10, {v(t0)}')
        A(f'v_lshl_add_u32 {v(vVMw)}, {v(n_)}, 3, {v(vVMw)}')
        A(f'v_and_b32 {v(t0)}, 1, {v(G_)}')
        A(f'v_lshl_add_u32 {v(vVMw)}, {v(t0)}, 2, {v(vVMw)}')
        A(f's_lshl_b32 {s(M_T0)}, {s(S_WAVE)}, 8')
        A(f's_add_u32 {s(M_T0)}, {s(M_T0)}, {L_QK}')
        A(f'v_add_u32 {v(vVMw)}, {s(M_T0)}, {v(vVMw)}')
        A(f'v_lshlrev_b32 {v(vTa)}, 7, {v(n_)}')
        A(f's_lshl_b32 {s(M_T0)}, {s(S_WAVE)}, 11')
        A(f's_add_u32 {s(M_T0)}, {s(M_T0)}, 262144')
        A(f'v_add_u32 {v(vTa)}, {s(M_T0)}, {v(vTa)}')
        A(f'v_and_b32 {v(t0)}, 1, {v(G_)}')
        A(f'v_lshl_add_u32 {v(vTa)}, {v(t0)}, 25, {v(vTa)}')
        assert VT - KB == 1 << 25
        for u in range(4):
            A(f'v_cmp_eq_u32 vcc, {2 * u}, {v(n_)}')
            A(f'v_mov_b32 {v(t0)}, 0x3f80')
            A(f'v_cndmask_b32 {v(48 + u)}, 0, {v(t0)}, vcc')
            A(f'v_cmp_eq_u32 vcc, {2 * u + 1}, {v(n_)}')
            A(f'v_mov_b32 {v(t0)}, 0x3f800000')
            A(f'v_cndmask_b32 {v(48 + u)}, {v(48 + u)}, {v(t0)}, vcc')
            A(f'v_mov_b32 {v(ONES + u)}, 0x3f803f80')
        A(f's_mov_b32 {s(M_C)}, {f32bits((128 ** -0.5) * 1.4426950408889634):#x}')
        A(f'v_lshlrev_b32 {v(vFl)}, 6, {v(hi_)}')
        A(f'v_lshlrev_b32 {v(t2)}, 10, {v(row_)}')
        A(f'v_lshl_add_u32 {v(t0)}, {v(G_)}, 1, {v(hi_)}')
        A(f'v_lshl_add_u32 {v(t2)}, {v(t0)}, 1, {v(t2)}')
        A(f's_lshl_b32 {s(M_T0)}, {s(S_WAVE)}, 8')
        A(f'v_add_u32 {v(t2)}, {s(M_T0)}, {v(t2)}')
        for f in (0, 1):
            for sl in range(8):
                A(f'buffer_load_ushort {v(96 + f * 8 + sl)}, {v(t2)}, {srd(SRD_M0)}, 0 offen '
                  f'offset:{f * 16 + sl * 32}')

    def late_consts():
        A(f'ds_write_b128 {v(vHi)}, {v(48, 4)} offset:{hi(L_SEL)}')
        for r in range(8):
            A(f'v_lshl_or_b32 {v(MF + r)}, {v(96 + 2 * r + 1)}, 16, {v(96 + 2 * r)}')
        A(f's_lshl_b32 {s(M_T0)}, {s(S_WAVE)}, 11')
        A(f'v_add_u32 {v(t2)}, {s(M_T0)}, {v(vHi)}')
        A(f'ds_write_b128 {v(t2)}, {v(MF, 4)}')
        A(f'ds_write_b128 {v(t2)}, {v(MF + 4, 4)} offset:1024')
        A(f'v_lshlrev_b32 {v(t3)}, 2, {v(vLane)}')
        A(f'v_and_b32 {v(t3)}, 127, {v(t3)}')
        A(f'v_mov_b32 {v(vOne)}, 1')
        A(f'v_mov_b32 {v(vFv)}, 0')
        A(f's_mov_b32 {s(M_STEP)}, 0')

    A(f's_lshl_b32 {s(M_SPIN)}, {s(S_WAVE)}, 15')
    A(f's_lshl_b32 {s(M_STEP)}, {s(S_WAVE)}, 13')
    A(f's_add_u32 {s(M_STEP)}, {s(M_STEP)}, {L_MEM}')
    vTx0, vTx1 = 39, 40
    A(f's_sub_u32 {s(M_T0)}, {s(M_STEP)}, {s(M_SPIN)}')
    A(f'v_add_u32 {v(vTx0)}, {s(M_T0)}, {v(vTr0)}')
    A(f'v_xor_b32 {v(vTx1)}, 32, {v(vTx0)}')
    order = RBLOCKS + LBLOCKS
    NSL = 10
    MAXFL = tune.get('maxfl', 5)
    slot_of = {}
    for n, blk in enumerate(RBLOCKS):
        slot_of[blk] = n % NSL
    for n, blk in enumerate(LBLOCKS):
        slot_of[blk] = n

    A(f's_and_b32 {s(M_PR)}, {s(S_WAVE)}, 1')
    A(f's_lshl_b32 {s(M_PR)}, {s(M_PR)}, 12')
    A(f's_and_b32 {s(M_MP)}, {s(S_WAVE)}, 2')

    def issue(pair):
        sl = slot_of[pair[0]]
        for p, blk in enumerate(pair):
            base, off = (M_SPIN, sl * 4096) if sl < 8 else (M_STEP, (sl - 8) * 4096)
            if blk[0] == 'o':
                A(f's_add_u32 m0, {s(base)}, {off + p * 4096}')
            else:
                A(f's_xor_b32 {s(M_T0)}, {s(M_PR)}, {p * 4096}')
                A(f's_add_u32 {s(M_T0)}, {s(M_T0)}, {s(base)}')
                A(f's_add_u32 m0, {s(M_T0)}, {off}')
            for d in range(4):
                if d:
                    A('s_add_u32 m0, m0, 1024')
                if blk[0] == 'o':
                    _, tp, ks = blk
                    A(f's_add_u32 {s(M_T0)}, {s(M_T1)}, {tp * 64 + (64 * ks + 16 * d) * 1024}')
                    A(f'buffer_load_dwordx4 {v(vWoD)}, {srd(SRD_D)}, {s(M_T0)} offen lds')
                else:
                    m, i = blk
                    if d == 0:
                        A(f's_xor_b32 {s(M_PW)}, {s(M_MP)}, {i >> 1}')
                        A(f's_lshl_b32 {s(M_PW)}, {s(M_PW)}, 20')
                        A(f's_add_u32 {s(M_PW)}, {s(M_PW)}, {s(M_T2)}')
                    A(f's_add_u32 {s(M_T0)}, {s(M_PW)}, {(8 * (i & 1) + 2 * d) * 8192}')
                    A(f'buffer_load_dwordx4 {v(vWq)}, {srd(dict(q=SRD_A, k=SRD_B, v=SRD_C)[m])}, '
                      f'{s(M_T0)} offen lds')

    def consume(blk):
        sl = slot_of[blk]
        a0, a1, base = (vTr0, vTr1, sl * 4096) if sl < 8 else (vTx0, vTx1, (sl - 8) * 4096)
        isl = blk in LBLOCKS
        for t in (0, 1):
            for half in (0, 1):
                for pp in (0, 1):
                    o = half * 4 + pp * 2
                    dst = v(64 + t * 8 + o, 2) if isl else rreg(blk, t, 2, o)
                    A(f'ds_read_b64_tr_b16 {dst}, {v(a0 if t == 0 else a1)} offset:{base + half * 2048 + pp * 512}')
        A('s_waitcnt lgkmcnt(0)')
        if isl:
            for q in range(4):
                A(f'ds_write_b128 {v(vWl)}, {v(64 + q * 4, 4)} offset:{base + q * 1024}')
            A('s_waitcnt lgkmcnt(0)')

    busy = {}
    pairs = [tuple(order[n:n + 2]) for n in range(0, len(order), 2)]
    pending = list(pairs)
    inflight = []

    def try_issue():
        for pr in list(pending):
            sl = slot_of[pr[0]]
            if len(inflight) >= MAXFL:
                break
            if sl in busy:
                continue
            if any(slot_of[b[0]] == sl and pending.index(b) < pending.index(pr) for b in pending):
                continue
            issue(pr)
            busy[sl] = pr
            inflight.append(pr)
            pending.remove(pr)

    pstamp(A, 0, 41)
    A('s_waitcnt vmcnt(0)')
    try_issue()
    A(f's_mov_b64 s[60:61], s[{M_T1}:{M_T2}]')
    early_consts()
    A(f's_mov_b64 s[{M_T1}:{M_T2}], s[60:61]')
    while inflight:
        pr = inflight.pop(0)
        A(f's_waitcnt vmcnt({8 * len(inflight) + (16 if pairs.index(pr) < MAXFL else 0)})')
        consume(pr[0])
        consume(pr[1])
        if pr[0] in RBLOCKS:
            del busy[slot_of[pr[0]]]
        try_issue()
    assert not pending
    pstamp(A, 1, 41)
    A('s_barrier')
    if callable(purity):
        purity(A)

    pstamp(A, 2, 41)
    late_consts()
    pstamp(A, 3, 41)
    slow = A.newlabel('tslow')
    P = dict(flags=flags, end_label=end_label, nsteps=nsteps, stamp=stamp, tune=tune)
    if purity == 'ctl':
        emit_poll_block(A, t0, t3, M_CTL, M_SPIN, end_label)
        A(f'v_cmp_eq_u32 vcc, {s(M_XCC)}, {v(t0)}')
        A('s_cmp_eq_u64 vcc, exec')
    else:
        A(f's_cmp_eq_u32 {s(M_FAST)}, 1')
    if not force_slow:
        A(f's_cbranch_scc0 {slow}')
        team_loop(A, P, fast=True)
    A.label(slow)
    team_loop(A, P, fast=False)


def team_loop(A, P, fast):
    flags, end_label, nsteps, tune = P['flags'], P['end_label'], P['nsteps'], P['tune']
    XS = '' if fast else ' sc1'
    poll_in = bool(flags and flags.get('poll_in'))
    has_sig = bool(flags and flags.get('signal'))

    def smf(acc, af, b):
        return f'v_smfmac_f32_16x16x64_bf16 {v(acc, 4)}, {v(af, 4)}, {b}, {v(vIdx)}'

    def zero(r, n):
        return [f'v_mov_b64 {v(r + i, 2)}, 0' for i in range(0, n, 2)]

    def emit(lst):
        for x in lst:
            for y in x.split('|'):
                A(y)

    def mix(ms, fs, per=2):
        for m in ms:
            A(m)
            for _ in range(per):
                if fs:
                    emit([fs.pop(0)])

    def lread(blk, t, reg):
        return [f'ds_read_b128 {v(reg, 4)}, {v(vWl)} offset:{loff(blk, t)}',
                f'ds_read_b128 {v(reg + 4, 4)}, {v(vWl)} offset:{loff(blk, t) + 1024}']

    nst = [0]

    def st(name):
        if P['stamp']:
            A(f'{"s_memrealtime" if tune.get("rt") else "s_memtime"} {s(60 + 2 * nst[0], 2)}')
            if fast:
                STAMP_NAMES.append(name)
            nst[0] += 1

    def st_flush():
        if not P['stamp']:
            return
        sk = A.newlabel('tsk')
        A(f's_cmp_lg_u32 {s(M_STEP)}, {P["stamp"]}')
        A(f's_cbranch_scc1 {sk}')
        A('s_waitcnt lgkmcnt(0)')
        A(f's_lshl_b32 {s(M_T0)}, {s(M_ME)}, 2')
        A(f's_add_u32 {s(M_T0)}, {s(M_T0)}, {s(S_WAVE)}')
        A(f's_lshl_b32 {s(M_T0)}, {s(M_T0)}, 7')
        A(f's_add_u32 {s(M_T0)}, {s(M_T0)}, {TCTL + 4096}')
        A('s_mov_b64 exec, 1')
        for i in range(nst[0]):
            A(f'v_mov_b32 {v(VX)}, {s(60 + 2 * i)}')
            A(f'buffer_store_dword {v(VX)}, off, {srd(SRD_WS)}, {s(M_T0)} offset:{4 * i}')
        A('s_mov_b64 exec, -1')
        A('s_waitcnt vmcnt(0)')
        A.label(sk)

    def prep_a():
        emit(zero(KA, 16))
        for t in (0, 1):
            emit(lread(('q', 4), t, S1 + t * 8))
        for t in (0, 1):
            emit(lread(('q', 6), t, S1 + (2 + t) * 8))
        emit(zero(QA, 8))
        A(f's_and_b32 {s(M_T2)}, {s(M_STEP)}, 3')
        A(f's_lshl_b32 {s(M_T2)}, {s(M_T2)}, 18')
        A(f's_add_u32 {s(M_T2)}, {s(M_T2)}, {s(M_TP)}')
        A(f's_lshl_b32 {s(M_T1)}, {s(M_ME)}, 6')
        A(f's_add_u32 {s(M_PW)}, {s(M_T2)}, {s(M_T1)}')
        A(f's_add_u32 {s(M_PW2)}, {s(M_PW)}, 4096')
        A(f's_lshl_b32 {s(M_T1)}, {s(M_ME)}, 13')
        A(f's_add_u32 {s(M_T2)}, {s(M_T2)}, {s(M_T1)}')
        A(f's_lshl_b32 {s(M_T1)}, {s(S_WAVE)}, 11')
        A(f's_add_u32 {s(M_T2)}, {s(M_T2)}, {s(M_T1)}')
        A(f's_sub_u32 {s(M_K2)}, {s(M_K)}, {1024 - 64}')

    def prep_b():
        A(f's_mov_b32 {s(M_PR)}, {s(M_T2)}')
        A(f's_add_u32 {s(M_T0)}, {s(M_STEP)}, 1')
        A(f's_and_b32 {s(M_T0)}, {s(M_T0)}, 3')
        A(f's_lshl_b32 {s(M_T0)}, {s(M_T0)}, 13')
        A(f's_add_u32 {s(M_MP)}, {s(M_T0)}, {s(M_TM)}')
        A(f's_xor_b32 {s(M_MRS)}, {s(M_MP)}, {2 << 13}')

    def prep_step():
        prep_a()
        prep_b()

    NEG = E

    def wait_flags():
        if poll_in:
            ok = A.newlabel('tfok')
            A(f's_cmp_lg_u32 {s(S_WAVE)}, 3')
            A(f's_cbranch_scc1 {ok}')
            emit_poll_check(A, vFv)
            A(f's_cbranch_scc1 {ok}')
            emit_poll_block(A, vFv, vFl, M_FPR, M_SPIN, end_label, sleep=4)
            A.label(ok)
            A(f's_add_u32 {s(M_FPR)}, {s(M_FPR)}, 1024')
            A(f's_cmp_eq_u32 {s(S_WAVE)}, 3')
            A(f's_cselect_b32 {s(M_FP2)}, {s(M_FPR)}, {OOB}')

    EXR = t0

    assert TM % 32768 == 0
    top = A.newlabel('ttop')
    A(f's_mov_b32 {s(M_SIG)}, {OOB}')
    A(f's_mov_b32 {s(M_SIG2)}, {OOB}')
    A(f's_mov_b32 {s(M_CAR)}, {OOB}')
    A(f's_mov_b32 {s(M_PROMPT)}, 0')
    A(f's_mov_b32 {s(M_PRO)}, {OOB}')
    A(f's_mov_b32 {s(M_EXO)}, {OOB}')
    A(f's_mov_b32 m0, {s(M_DST)}')
    wait_flags()
    pstamp(A, 4, 41)
    dstamp(A, 2, 41, (96, 0))
    dstamp(A, 7, 41, (96, 0), cyc=True)
    dstamp(A, 4, 41, (96, 32))
    prep_step()
    A(f's_branch {top}')
    p2 = A.newlabel('tp2')
    p2b = A.newlabel('tp2b')
    fslow = A.newlabel('tfslow')
    c0 = VX

    def p2_loads():
        for j in range(2):
            A(f'buffer_load_dwordx4 {v(MF + j * 4, 4)}, {v(vL16)}, {srd(SRD_WS)}, {s(M_MRD)} offen '
              f'offset:{j * 1024} sc1')

    A.label(p2)
    p2_loads()
    A('s_mov_b64 exec, -1')
    A(f's_add_u32 {s(M_SPIN)}, {s(M_SPIN)}, 1')
    A(f's_cmp_gt_u32 {s(M_SPIN)}, {SPIN_LIMIT * 4}')
    A(f's_cbranch_scc1 {end_label}')
    A.label(p2b)
    for j in range(2):
        A(f's_waitcnt vmcnt({1 - j})')
        A(f'ds_write_b128 {v(vMw)}, {v(MF + j * 4, 4)} offset:{j * 1024}')
        r = MF + j * 4
        if j == 0:
            A(f'v_max3_u32 {v(c0)}, {v(r)}, {v(r + 1)}, {v(r + 2)}')
            A(f'v_max_u32 {v(c0)}, {v(c0)}, {v(r + 3)}')
        else:
            A(f'v_max3_u32 {v(c0)}, {v(c0)}, {v(r)}, {v(r + 1)}')
            A(f'v_max3_u32 {v(c0)}, {v(c0)}, {v(r + 2)}, {v(r + 3)}')
    A(f'v_cmp_eq_u32 vcc, -1, {v(c0)}')
    A('s_mov_b64 exec, vcc')
    A(f's_cbranch_vccnz {p2}')
    A('s_mov_b64 exec, -1')
    if P['stamp']:
        A(f'{"s_memrealtime" if tune.get("rt") else "s_memtime"} {s(60 + 2 * 14, 2)}')
        nst[0] = 15
        st_flush()
        nst[0] = 0
    if poll_in:
        A(f's_cmp_eq_u32 {s(M_FOK)}, 0')
        A(f's_cbranch_scc1 {fslow}')
    A.label(top)
    st('top')
    def qq(i, t):
        b = v(S1 + (i - 4 + t) * 8, 8) if i in (4, 6) else rreg(('q', i), t)
        return smf(QA + t * 4, MF + i * 4, b)

    def kq(i, t):
        b = v(S1 + (i - 4 + t) * 8, 8) if i in (4, 6) else rreg(('k', i), t)
        return smf(KA + t * 4, MF + i * 4, b)

    def vq(i, t):
        return smf(VA + t * 4, MF + i * 4, rreg(('v', i), t))

    def epi(acc, sel):
        f = []
        for t in (0, 1):
            r = acc + t * 4
            f += [f'v_add_f32 {v(r)}, {v(r)}, {v(r + 1)}', f'v_add_f32 {v(r + 2)}, {v(r + 2)}, {v(r + 3)}',
                  f'v_cvt_pk_bf16_f32 {v(r)}, {v(r)}, {v(r + 2)}|'
                  f'ds_write_b16 {v(vQKw)}, {v(r)} offset:{sel * 2048 + t * 256}|'
                  f'ds_write_b16_d16_hi {v(vQKw)}, {v(r)} offset:{sel * 2048 + t * 256 + 16}']
        return f

    km_ = [kq(i, t) for i in (2, 3, 4, 6, 5, 7) for t in (0, 1)]
    vs_ = [vq(i, t) for i in range(2, 8) for t in (0, 1)]
    KXR, QF = S1, S1 + 16
    nyoung = 4
    early_sig = has_sig and tune.get('sigpos', 'b2k') == 'early'
    hyb = has_sig and tune.get('sigpos', 'b2k') == 'hyb'
    xa = [VX, VX + 1, VX + 2]
    A(qq(0, 0))
    A(f'v_xor_b32 {v(xa[0])}, 2048, {v(vMw)}')
    A(qq(0, 1))
    A(f'v_xor_b32 {v(xa[1])}, 4096, {v(vMw)}')
    A(f'v_xor_b32 {v(xa[2])}, 6144, {v(vMw)}')
    A('s_waitcnt lgkmcnt(0)')
    A('s_barrier')
    st('B1')
    qorder = (4, 6, 2, 3, 5, 7)
    for i in qorder:
        A(f'ds_read_b128 {v(MF + i * 4, 4)}, {v(xa[(i >> 1) - 1])} offset:{(i & 1) * 1024}')
    kl = []
    for i in (4, 6):
        for t in (0, 1):
            kl += lread(('k', i), t, S1 + (i - 4 + t) * 8)
    own = [qq(1, 0), qq(1, 1)] + [kq(i, t) for i in (0, 1) for t in (0, 1)] + [vq(i, t) for i in (0, 1) for t in (0, 1)]
    A(own[0])
    A(f'buffer_load_dwordx4 {v(vHD)}, {srd(SRD_WS)}, {s(M_K)} offen sc1 lds')
    emit(own[1:4])
    A(f'buffer_load_dwordx4 {v(vHD)}, {srd(SRD_WS)}, {s(M_K2)} offen offset:1024 sc1 lds')
    emit(own[4:7])
    A(f'buffer_store_dwordx4 {v(EXR, 4)}, {v(vL16)}, {srd(SRD_WS)}, {s(M_EXO)} offen sc1')
    emit(own[7:9])
    if early_sig:
        emit_signal(A, M_SIG, vOne)
        nyoung += 1
    if hyb:
        emit_signal(A, M_SIG2, vOne)
        nyoung += 1
    A(own[9])
    ops = {1: [f'buffer_load_dwordx4 {v(VX, 4)}, {v(vVr)}, {srd(SRD_WS)}, {s(M_V)} offen sc1'],
           3: [f'buffer_load_dwordx4 {v(VX + 4, 4)}, {v(vVr)}, {srd(SRD_WS)}, {s(M_V)} offen offset:256 sc1'],
           5: [f'buffer_load_dword {v(vTouch)}, {v(vTa)}, {srd(SRD_WS)}, {s(M_K)} offen sc1']}
    kops = {}
    if poll_in:
        kops[2] = [f'buffer_load_dword {v(vFv)}, {v(vFl)}, {srd(SRD_WS)}, {s(M_FP2)} offen sc1']
        nyoung += 1
    nk = 0
    for n, i in enumerate(qorder):
        A(f's_waitcnt lgkmcnt({5 - n + nk})')
        A(qq(i, 0))
        if n in (1, 2):
            emit(kl[(n - 1) * 4:(n - 1) * 4 + 2])
        A(qq(i, 1))
        if n in (1, 2):
            emit(kl[(n - 1) * 4 + 2:(n - 1) * 4 + 4])
            nk += 4
        emit(ops.get(n, []))
    st('Qissued')
    fq = epi(QA, 0)
    for n in range(11):
        if n == 4:
            A('s_waitcnt lgkmcnt(0)')
        A(km_[n])
        if 4 <= n < 10:
            emit([fq.pop(0)])
        emit(kops.get(n, []))
    A(f's_waitcnt vmcnt({nyoung}) lgkmcnt(0)')
    A('s_barrier')
    st('B2q')
    rq = [f'ds_read_b128 {v(QF, 4)}, {v(vQr)}']
    rq += [f'ds_read_b128 {v(KXR + f * 4, 4)}, {v(vHi)} offset:{hi(L_KX) + f * 1024}' for f in range(2)]
    rq += [f'ds_read_b128 {v(QF + 4, 4)}, {v(vQr)} offset:512']
    rq += [f'ds_read_b128 {v(KXR + f * 4, 4)}, {v(vHi)} offset:{hi(L_KX) + f * 1024}' for f in range(2, 4)]
    rq += [f'ds_read_b128 {v(QF + ks * 4, 4)}, {v(vQr)} offset:{ks * 512}' for ks in (2, 3)]
    emit(rq[0:2])
    rq = rq[2:]
    mix([km_[11]] + vs_[0:2], rq, 2)
    A(vs_[2])
    rsp = tune.get('rsp')
    if not rsp:
        A(f'buffer_store_dwordx4 {v(NEG, 4)}, {v(vL16)}, {srd(SRD_WS)}, {s(M_PRO)} offen offset:1024{XS}')
    A(vs_[3])
    st('Kissued')
    SX = QA
    SMA = E

    def sx(ks, t):
        cin = '0' if ks == 0 else v(SX + t * 4, 4)
        return (f'v_mfma_f32_16x16x32_bf16 {v(SX + t * 4, 4)}, {v(KXR + ((ks & 1) * 2 + t) * 4, 4)}, '
                f'{v(QF + ks * 4, 4)}, {cin}')

    fk = epi(KA, 1)
    A('s_waitcnt lgkmcnt(2)')
    mix([sx(0, 0), sx(0, 1)], fk, 2)
    A(f'ds_read_b128 {v(KXR, 4)}, {v(vHi)} offset:{hi(L_KX) + 4096}')
    A(f'ds_read_b128 {v(KXR + 4, 4)}, {v(vHi)} offset:{hi(L_KX) + 5120}')
    mix([sx(1, 0), sx(1, 1)], fk, 2)
    assert not fk
    A(f'ds_read_b128 {v(KXR + 8, 4)}, {v(vHi)} offset:{hi(L_KX) + 6144}')
    A(f'ds_read_b128 {v(KXR + 12, 4)}, {v(vHi)} offset:{hi(L_KX) + 7168}')
    emit(vs_[4:6])
    if hyb:
        hw = A.newlabel('thw')
        hb = A.newlabel('thb')
        A(f's_cmp_eq_u32 {s(M_PROMPT)}, 1')
        A(f's_cbranch_scc1 {hw}')
        A.label(hb)
        A('s_waitcnt lgkmcnt(2)')
    else:
        A('s_waitcnt lgkmcnt(2)' if early_sig else f's_waitcnt vmcnt({nyoung - (1 if rsp else 0)}) lgkmcnt(2)')
    A('s_barrier')
    st('B2k')
    KMF = MF
    rk = [f'ds_read_b128 {v(KMF + ks * 4, 4)}, {v(vKMr)} offset:{ks * 512}' for ks in range(4)]
    emit(rk[0:2])
    A(sx(2, 0))
    emit(rk[2:4])
    A(sx(2, 1))
    if has_sig and not early_sig:
        emit_signal(A, M_SIG, vOne)
    A('s_waitcnt lgkmcnt(4)')
    A(sx(3, 0))
    if not rsp:
        A(f'buffer_store_dwordx4 {v(NEG, 4)}, {v(vL16)}, {srd(SRD_WS)}, {s(M_PRO)} offen{XS}')
    A(sx(3, 1))
    A(vs_[6])

    def sm(ks):
        cin = '0' if ks == 0 else v(SMA, 4)
        return f'v_mfma_f32_16x16x32_bf16 {v(SMA, 4)}, {v(KMF + ks * 4, 4)}, {v(QF + ks * 4, 4)}, {cin}'

    mt, m2 = t0, t1
    tv = [SX + i for i in range(8)]
    PB = KA
    LT = KA + 4
    ft = [f'v_max3_f32 {v(mt)}, {v(tv[0])}, {v(tv[1])}, {v(tv[2])}',
          f'v_max3_f32 {v(m2)}, {v(tv[3])}, {v(tv[4])}, {v(tv[5])}',
          f'v_max3_f32 {v(mt)}, {v(mt)}, {v(tv[6])}, {v(tv[7])}']
    A('s_waitcnt lgkmcnt(0)')
    A(sm(0))
    A(sm(1))
    A(sm(2))
    mix([sm(3)], ft, 2)
    st('Smissued')
    fl = []
    for ks in (0, 1):
        for t in (0, 1):
            fl += lread(('o', 0, ks), t, S1 + (t * 2 + ks) * 8)
    A(vs_[7])
    emit(ft)
    emit(fl[0:4])
    A(vs_[8])
    A(f'v_max3_f32 {v(m2)}, {v(m2)}, {v(SMA)}, {v(SMA + 1)}')
    A(f'v_max_f32 {v(mt)}, {v(mt)}, {v(m2)}')
    A(f'v_mov_b32 {v(m2)}, {v(mt)}')
    A(vs_[9])
    emit(fl[4:6])
    A(f'v_permlane16_swap_b32 {v(mt)}, {v(m2)}')
    A(f'v_max_f32 {v(mt)}, {v(mt)}, {v(m2)}')
    A(f'v_mov_b32 {v(m2)}, {v(mt)}')
    A(vs_[10])
    emit(fl[6:8])
    A(f'v_permlane32_swap_b32 {v(mt)}, {v(m2)}')
    A(f'v_max_f32 {v(mt)}, {v(mt)}, {v(m2)}')
    A(vs_[11])
    A(f'v_mul_f32 {v(mt)}, {s(M_C)}, {v(mt)}')
    for r in tv:
        A(f'v_fma_f32 {v(r)}, {v(r)}, {s(M_C)}, -{v(mt)}')
    for r in tv:
        A(f'v_exp_f32 {v(r)}, {v(r)}')
    A(f'v_fma_f32 {v(SMA)}, {v(SMA)}, {s(M_C)}, -{v(mt)}')
    for j in range(4):
        A(f'v_cvt_pk_bf16_f32 {v(PB + j)}, {v(tv[2 * j])}, {v(tv[2 * j + 1])}')
    A(f'v_fma_f32 {v(SMA + 1)}, {v(SMA + 1)}, {s(M_C)}, -{v(mt)}')
    A(f'v_exp_f32 {v(SMA)}, {v(SMA)}')
    OT = QA
    PM = SMA + 2
    A(f's_waitcnt vmcnt({(1 if rsp else 3) + (1 if poll_in else 0) + (1 if has_sig and not early_sig else 0)})')
    A(f'v_mfma_f32_16x16x32_bf16 {v(LT, 4)}, {v(ONES, 4)}, {v(PB, 4)}, 0')
    A(f'v_exp_f32 {v(SMA + 1)}, {v(SMA + 1)}')
    A(f'v_mfma_f32_16x16x32_bf16 {v(OT, 4)}, {v(VX, 4)}, {v(PB, 4)}, 0')
    A(f'v_cvt_pk_bf16_f32 {v(t2)}, {v(SMA)}, {v(SMA + 1)}')
    A(f'v_add_f32 {v(VA)}, {v(VA)}, {v(VA + 1)}')
    A(f'v_mfma_f32_16x16x32_bf16 {v(OT + 4, 4)}, {v(VX + 4, 4)}, {v(PB, 4)}, 0')
    A(f'v_cndmask_b32 {v(PM)}, {v(t2)}, 0, {s(M_ODD, 2)}')
    A(f'v_cndmask_b32 {v(PM + 1)}, 0, {v(t2)}, {s(M_ODD, 2)}')
    A(f'v_add_f32 {v(VA + 2)}, {v(VA + 2)}, {v(VA + 3)}')
    A(f'v_add_f32 {v(VA + 4)}, {v(VA + 4)}, {v(VA + 5)}')
    A(f'v_mfma_f32_16x16x16_bf16 {v(LT, 4)}, {v(ONES, 2)}, {v(PM, 2)}, {v(LT, 4)}')
    A(f'v_add_f32 {v(VA + 6)}, {v(VA + 6)}, {v(VA + 7)}')
    A(f'v_cvt_pk_bf16_f32 {v(VA)}, {v(VA)}, {v(VA + 2)}')
    A(f'v_cvt_pk_bf16_f32 {v(VA + 1)}, {v(VA + 4)}, {v(VA + 6)}')
    st('softdone')
    for t in (0, 1):
        A(f'ds_write_b32 {v(vVMw)}, {v(VA + t)} offset:{t * 128}')
    A(f'v_mfma_f32_16x16x16_bf16 {v(OT, 4)}, {v(VA, 2)}, {v(PM, 2)}, {v(OT, 4)}')
    A(f'v_mfma_f32_16x16x16_bf16 {v(OT + 4, 4)}, {v(VA, 2)}, {v(PM, 2)}, {v(OT + 4, 4)}')
    A(f'v_rcp_f32 {v(LT)}, {v(LT)}')
    for ks in (0, 1):
        emit(lread(('o', 3, ks), 0, MF + ks * 8))
    emit(zero(MF + 16, 6))
    for r in range(4):
        A(f'v_cndmask_b32 {v(OT + r)}, {v(OT + r)}, {v(OT + 4 + r)}, {s(M_ODD, 2)}')
    for r in range(4):
        A(f'v_mul_f32 {v(OT + r)}, {v(OT + r)}, {v(LT)}')
    A(f'v_cvt_pk_bf16_f32 {v(t2)}, {v(OT)}, {v(OT + 1)}')
    A(f'v_cvt_pk_bf16_f32 {v(t3)}, {v(OT + 2)}, {v(OT + 3)}')
    A(f'ds_write_b64 {v(vOw)}, {v(t2, 2)}')
    emit(zero(KA, 16))
    st('preB3')
    if tune.get('xs'):
        A(f's_sleep {tune["xs"]}')
    A('s_waitcnt lgkmcnt(0)')
    A('s_barrier')
    st('B3')
    done = A.newlabel('tdone')
    OF = VX
    A(f'ds_read_b128 {v(OF, 4)}, {v(vHi)} offset:{hi(L_O)}')
    A(f'ds_read_b128 {v(OF + 4, 4)}, {v(vHi)} offset:{hi(L_O) + 1024}')
    A(f's_cmp_ge_u32 {s(M_STEP)}, {nsteps - 1}')
    A(f's_cbranch_scc1 {done}')
    emit(zero(MF + 22, 10))
    oacc = [KA, KA + 4, VA, VA + 4, MF + 16, MF + 20, MF + 24, MF + 28]

    def wo(i, ks):
        if i < 2:
            return v(S1 + (i * 2 + ks) * 8, 8)
        if i < 6:
            return rreg(('o', i >> 1, ks), i & 1)
        if i == 6:
            return v(MF + ks * 8, 8)
        return v(S1 + ks * 8, 8)

    om = [smf(oacc[i], OF + ks * 4, wo(i, ks)) for i in range(8) for ks in (0, 1)]
    PK = QA

    def oadd(i):
        r = oacc[i]
        return [f'v_add_f32 {v(r)}, {v(r)}, {v(r + 1)}', f'v_add_f32 {v(r + 2)}, {v(r + 2)}, {v(r + 3)}']

    def opack(h, half):
        i0 = 4 * h + 2 * half
        f = []
        for rr in (0, 1):
            d = PK + h * 4 + rr * 2 + half
            f.append(f'v_cvt_pk_bf16_f32 {v(d)}, {v(oacc[i0] + rr * 2)}, {v(oacc[i0 + 1] + rr * 2)}')
        for rr in (0, 1):
            d = PK + h * 4 + rr * 2 + half
            if not tune.get('nomin'):
                f.append(f'v_min_u32 {v(d)}, -2, {v(d)}')
        return f

    def pstore(h):
        return (f'buffer_store_dwordx4 {v(PK + h * 4, 4)}, {v(vPw)}, {srd(SRD_WS)}, '
                f'{s(M_PW if h == 0 else M_PW2)} offen{XS}')

    if tune.get('pubY'):
        def opack(h, half):
            u = 2 * h + half
            f = []
            for rr in (0, 1):
                d = PK + rr * 4 + u
                f.append(f'v_cvt_pk_bf16_f32 {v(d)}, {v(oacc[2 * u] + rr * 2)}, {v(oacc[2 * u + 1] + rr * 2)}')
            for rr in (0, 1):
                d = PK + rr * 4 + u
                f.append(f'v_min_u32 {v(d)}, -2, {v(d)}')
            return f

        def pstore(h):
            if h == 0:
                return 's_nop 0'
            return '|'.join(f'buffer_store_dwordx4 {v(PK + rr * 4, 4)}, {v(vPw)}, {srd(SRD_WS)}, {s(M_PW)} offen '
                            f'offset:{rr * 2048}{XS}' for rr in (0, 1))

    A('s_waitcnt lgkmcnt(1)')
    A(om[0])
    A('s_waitcnt lgkmcnt(0)')
    A(om[1])
    f7 = lread(('o', 3, 0), 1, S1) + lread(('o', 3, 1), 1, S1 + 8)
    mix(om[2:4], f7, 2)
    A(om[4])
    SELR = MF + 12
    fo = oadd(0) + oadd(1) + opack(0, 0) + oadd(2) + oadd(3) + opack(0, 1) + [pstore(0)] + oadd(4)
    mix(om[5:14], fo, 2)
    A('s_waitcnt lgkmcnt(0)')
    fo += oadd(5) + opack(1, 0)
    A(f'ds_read_b128 {v(SELR, 4)}, {v(vHi)} offset:{hi(L_SEL)}')
    mix(om[14:16], fo, 2)
    st('outissued')
    emit(fo)
    emit(oadd(6) + oadd(7) + opack(1, 1) + [pstore(1)])
    st('pstored')
    RD, RA = MF, MF + 8
    A(f'v_mov_b64 {v(NEG, 2)}, -1')
    A(f'v_mov_b64 {v(NEG + 2, 2)}, -1')
    A(f's_add_u32 {s(M_STEP)}, {s(M_STEP)}, 1')
    A(f's_lshl_b32 {s(M_T1)}, {s(S_WAVE)}, 11')
    A(f's_add_u32 {s(M_MRD)}, {s(M_MP)}, {s(M_T1)}')
    A(f's_cmp_eq_u32 {s(S_WAVE)}, 2')
    if early_sig:
        A(f's_mov_b32 {s(M_SIG)}, {s(M_SIG2)}')
        A(f's_cselect_b32 {s(M_SIG2)}, {s(M_FOUT)}, {OOB}')
    elif hyb:
        A(f's_cselect_b32 {s(M_T0)}, {s(M_FOUT)}, {OOB}')
        A(f's_mov_b32 {s(M_SIG2)}, {s(M_CAR)}')
        A(f's_sub_u32 {s(M_T1)}, {s(M_STEP)}, {tune.get("h0", 8)}')
        A(f's_cmp_lt_u32 {s(M_T1)}, {tune.get("h1", 59) - tune.get("h0", 8)}')
        A(f's_cselect_b32 {s(M_CAR)}, {s(M_T0)}, {OOB}')
        A(f's_cselect_b32 {s(M_SIG)}, {OOB}, {s(M_T0)}')
        A(f's_cselect_b32 {s(M_PROMPT)}, 0, 1')
    else:
        A(f's_cselect_b32 {s(M_SIG)}, {s(M_FOUT)}, {OOB}')
    A(f's_add_u32 {s(M_FOUT)}, {s(M_FOUT)}, 1024')
    A(f's_mov_b32 {s(M_EXO)}, {s(M_EXP)}')
    A(f's_add_u32 {s(M_EXP)}, {s(M_EXP)}, 65536')
    A(f's_mov_b32 {s(M_PRO)}, {s(M_PR)}')
    if not tune.get('x_nokv'):
        A(f's_add_u32 {s(M_K)}, {s(M_K)}, 262144')
        A(f's_add_u32 {s(M_V)}, {s(M_V)}, 262144')
    if tune.get('x_noexp'):
        A(f's_mov_b32 {s(M_EXO)}, {OOB}')
    prep_a()
    A(f's_mov_b32 {s(M_SPIN)}, 0')
    if tune.get('d1'):
        A(f's_sleep {tune["d1"]}')
    p1 = A.newlabel('tp1')
    A.label(p1)
    A(f'buffer_load_dwordx4 {v(RD, 4)}, {v(vL16)}, {srd(SRD_WS)}, {s(M_PR)} offen sc1')
    A(f'buffer_load_dwordx4 {v(RD + 4, 4)}, {v(vL16)}, {srd(SRD_WS)}, {s(M_PR)} offen offset:1024 sc1')
    A('s_mov_b64 exec, -1')
    A(f's_add_u32 {s(M_SPIN)}, {s(M_SPIN)}, 1')
    A(f's_cmp_gt_u32 {s(M_SPIN)}, {SPIN_LIMIT * 4}')
    A(f's_cbranch_scc1 {end_label}')
    A('s_waitcnt vmcnt(0) lgkmcnt(8)')
    A(f'v_mfma_f32_16x16x32_bf16 {v(RA, 4)}, {v(SELR, 4)}, {v(RD, 4)}, 0')
    A(f'v_max3_u32 {v(t0)}, {v(RD)}, {v(RD + 1)}, {v(RD + 2)}')
    A(f'v_max3_u32 {v(t1)}, {v(RD + 3)}, {v(RD + 4)}, {v(RD + 5)}')
    A(f'v_mfma_f32_16x16x32_bf16 {v(RA, 4)}, {v(SELR, 4)}, {v(RD + 4, 4)}, {v(RA, 4)}')
    A(f'v_max3_u32 {v(t0)}, {v(t0)}, {v(RD + 6)}, {v(RD + 7)}')
    A(f'v_max_u32 {v(t0)}, {v(t0)}, {v(t1)}')
    A(f'v_cmp_eq_u32 vcc, -1, {v(t0)}')
    A('s_mov_b64 exec, vcc')
    A(f's_cbranch_vccnz {p1}')
    A('s_mov_b64 exec, -1')
    st('p1ok')
    for sh in (4, 8):
        for r in range(4):
            A(f'v_add_f32_dpp {v(RA + r)}, {v(RA + r)}, {v(RA + r)} row_ror:{sh} row_mask:0xf bank_mask:0xf')
    A(f'v_cvt_pk_bf16_f32 {v(t0)}, {v(RA)}, {v(RA + 1)}')
    A(f'v_cvt_pk_bf16_f32 {v(t1)}, {v(RA + 2)}, {v(RA + 3)}')
    if not tune.get('nomin'):
        A(f'v_min_u32 {v(t0)}, -2, {v(t0)}')
        A(f'v_min_u32 {v(t1)}, -2, {v(t1)}')
    A(f's_mov_b64 exec, {s(M_PUBX, 2)}')
    A(f'buffer_store_dwordx2 {v(t0, 2)}, {v(vPub)}, {srd(SRD_WS)}, {s(M_MP)} offen{XS}')
    A(f'buffer_store_dwordx2 {v(NEG, 2)}, {v(vPub)}, {srd(SRD_WS)}, {s(M_MRS)} offen{XS}')
    A('s_mov_b64 exec, -1')
    st('published')
    A(f's_mov_b32 {s(M_SPIN)}, 0')
    if rsp:
        for j in range(2):
            A(f'buffer_store_dwordx4 {v(NEG, 4)}, {v(vL16)}, {srd(SRD_WS)}, {s(M_PR)} offen offset:{j * 1024}{XS}')
    if not tune.get('late2', 1):
        p2_loads()
    A(f'ds_read_b128 {v(EXR, 4)}, {v(vEx)}')
    prep_b()
    if poll_in:
        A(f'v_cmp_ne_u32 vcc, 0, {v(vFv)}')
        A('s_cmp_eq_u64 vcc, exec')
        A(f's_cselect_b32 {s(M_FOK)}, 1, 0')
        A(f's_cmp_lg_u32 {s(S_WAVE)}, 3')
        A(f's_cselect_b32 {s(M_FOK)}, 1, {s(M_FOK)}')
        A(f's_add_u32 {s(M_FP2)}, {s(M_FPR)}, 1024')
        A(f's_cselect_b32 {s(M_T0)}, 0, 0')
        A(f's_cmp_eq_u32 {s(S_WAVE)}, 3')
        A(f's_cselect_b32 {s(M_FP2)}, {s(M_FP2)}, {OOB}')
        A(f's_add_u32 {s(M_FPR)}, {s(M_FPR)}, 1024')
    if tune.get('bar2', 1):
        A('s_barrier')
    if tune.get('late2', 1):
        if tune.get('late2', 1) > 1:
            A(f's_sleep {tune.get("late2", 1) - 1}')
        p2_loads()
    A(f's_branch {p2b}')
    if poll_in:
        A.label(fslow)
        A(f's_sub_u32 {s(M_T2)}, {s(M_FPR)}, 1024')
        emit_poll_block(A, vFv, vFl, M_T2, M_SPIN, end_label, sleep=4)
        A(f's_branch {top}')
    if hyb:
        A.label(hw)
        A(f's_waitcnt vmcnt({nyoung})')
        A(f's_branch {hb}')
    A.label(done)
    dstamp(A, 3, 41, (96, 0))
    dstamp(A, 8, 41, (96, 0), cyc=True)
    dstamp(A, 5, 41, (96, 32))
    A(f'ds_read_b128 {v(EXR, 4)}, {v(vEx)}')
    A('s_waitcnt lgkmcnt(0)')
    A(f'buffer_store_dwordx4 {v(EXR, 4)}, {v(vL16)}, {srd(SRD_WS)}, {s(M_EXP)} offen sc1')
    if has_sig:
        A('s_waitcnt vmcnt(0)')
        A('s_barrier')
        A(f's_cmp_lg_u32 {s(S_WAVE)}, 2')
        A(f's_cbranch_scc1 {end_label}')
        if early_sig:
            emit_signal(A, M_SIG2, vOne)
        emit_signal(A, M_FOUT, vOne)
    A(f's_branch {end_label}')
```

```python
from asmdsl import v, a, s
from layout import *
from roles import *

M_ME, M_K, M_V, M_KM, M_VM, M_TP, M_TM, M_CTL, M_FPR, M_FOUT = 24, 25, 26, 27, 28, 29, 30, 31, 32, 33
M_STEP, M_T0, M_T1, M_T2, M_SPIN = 34, 35, 36, 37, 38
M_PW, M_PR, M_MP, M_MRS, M_MRD = 39, 40, 41, 42, 43
SRD_M0 = 44
M_PUBX = 48
M_ODD = 52
M_C = 54
M_PW2 = 56
M_XCC = 57
M_FAST = 59
M_PRO, M_SIG = 90, 91
M_SRC, M_EXP, M_DST, M_HS = 50, 51, 55, 58
M_FP2 = 58
M_CAR = 57
M_PROMPT = 31
M_FOK = 59
M_K2, M_EXO, M_SIG2 = 50, 27, 28

STAMP_NAMES = []
L_MEM = 131072
L_KX = L_MEM + 8192
L_VX = L_KX + 8192
L_QK = L_VX + 8192
L_O = L_QK + 4096
L_SEL = L_O + 2048
L_END = L_SEL + 1024

vOne, vL16, vLane = 0, 1, 2
vTouch = 2
vIdx, vWl, vHi, vQKw, vQr, vKMr, vOw, vPw, vPub, vHD, vVMw, vFl, vTa, vFv, vVr, vMw, vEx = range(3, 20)
t0, t1, t2, t3 = 20, 21, 22, 23
VX = 24
MF = 32
ACC = 64
S1 = 88
E = 120
QA, KA, VA = ACC, ACC + 8, ACC + 16
ONES = E + 4

RBLOCKS = ([('q', i) for i in (0, 2, 1, 3, 5, 7)] + [('k', i) for i in (0, 2, 1, 3, 5, 7)]
           + [('v', i) for i in (0, 2, 1, 3, 4, 6, 5, 7)]
           + [('o', 1, 0), ('o', 1, 1), ('o', 2, 0), ('o', 2, 1)])
LBLOCKS = [('q', 4), ('q', 6), ('k', 4), ('k', 6), ('o', 0, 0), ('o', 0, 1), ('o', 3, 0), ('o', 3, 1)]


def rreg(blk, t, n=8, off=0):
    r = (RBLOCKS.index(blk) * 2 + t) * 8 + off
    return a(r, n) if r < 256 else v(128 + r - 256, n)


def loff(blk, t):
    return LBLOCKS.index(blk) * 4096 + t * 2048


def hi(x):
    return x - L_MEM


def team_role(A, end_label, flags=None, force_slow=False, nsteps=NSEG, stamp=False, purity='ctl', tune=None):
    tune = tune or {}
    vS, vZ, vCh, vWq, vWoD, vTr0, vTr1 = 32, 33, 34, 35, 36, 37, 38
    A(f'v_bfe_u32 {v(vS)}, {v(vLane)}, 2, 1')
    A(f'v_bfe_u32 {v(t0)}, {v(vLane)}, 5, 1')
    A(f'v_lshl_add_u32 {v(vS)}, {v(t0)}, 1, {v(vS)}')
    A(f'v_bfe_u32 {v(t0)}, {v(vLane)}, 4, 1')
    A(f'v_lshl_add_u32 {v(vS)}, {v(t0)}, 2, {v(vS)}')
    A(f'v_bfe_u32 {v(vZ)}, {v(vLane)}, 3, 1')
    A(f'v_and_b32 {v(vCh)}, 3, {v(vLane)}')
    A(f'v_lshlrev_b32 {v(t0)}, 1, {v(t0)}')
    A(f'v_xor_b32 {v(vCh)}, {v(vCh)}, {v(t0)}')
    A(f'v_lshl_add_u32 {v(t1)}, {v(vS)}, 4, {v(vZ)}')
    A(f'v_lshlrev_b32 {v(vWq)}, 13, {v(t1)}')
    A(f'v_lshl_add_u32 {v(vWq)}, {v(vCh)}, 4, {v(vWq)}')
    A(f'v_lshl_add_u32 {v(t1)}, {v(vZ)}, 3, {v(vS)}')
    A(f'v_lshlrev_b32 {v(vWoD)}, 10, {v(t1)}')
    A(f'v_lshl_add_u32 {v(vWoD)}, {v(vCh)}, 4, {v(vWoD)}')
    A(f'v_bfe_u32 {v(t0)}, {v(vLane)}, 2, 3')
    A(f'v_bfe_u32 {v(t1)}, {v(vLane)}, 5, 1')
    A(f'v_lshl_add_u32 {v(t0)}, {v(t1)}, 4, {v(t0)}')
    A(f'v_lshlrev_b32 {v(vTr0)}, 6, {v(t0)}')
    A(f'v_and_b32 {v(t0)}, 3, {v(vLane)}')
    A(f'v_lshl_add_u32 {v(vTr0)}, {v(t0)}, 3, {v(vTr0)}')
    A(f'v_bfe_u32 {v(t1)}, {v(vLane)}, 4, 1')
    A(f'v_lshl_add_u32 {v(vTr0)}, {v(t1)}, 5, {v(vTr0)}')
    A(f's_lshl_b32 {s(M_T0)}, {s(S_WAVE)}, 15')
    A(f'v_add_u32 {v(vTr0)}, {s(M_T0)}, {v(vTr0)}')
    A(f'v_xor_b32 {v(vTr1)}, 32, {v(vTr0)}')
    A(f'v_add_u32 {v(vWl)}, {s(M_T0)}, {v(vL16)}')

    if purity == 'ctl':
        A(f's_getreg_b32 {s(M_XCC)}, hwreg(HW_REG_XCC_ID)')
        A(f's_and_b32 {s(M_XCC)}, {s(M_XCC)}, 15')
        A(f's_add_u32 {s(M_XCC)}, {s(M_XCC)}, 1')
        A(f'v_mov_b32 {v(t0)}, {s(M_XCC)}')
        A(f's_lshl_b32 {s(M_T0)}, {s(M_ME)}, 2')
        A(f's_add_u32 {s(M_T0)}, {s(M_T0)}, {s(M_CTL)}')
        A('s_mov_b64 exec, 1')
        A(f'buffer_store_dword {v(t0)}, off, {srd(SRD_WS)}, {s(M_T0)} sc1')
        A('s_mov_b64 exec, -1')

    A(f's_lshl_b32 {s(M_T2)}, {s(M_ME)}, 8')
    A(f's_lshl_b32 {s(M_T0)}, {s(S_WAVE)}, 6')
    A(f's_add_u32 {s(M_T2)}, {s(M_T2)}, {s(M_T0)}')
    A(f's_lshl_b32 {s(M_T1)}, {s(M_ME)}, 17')
    A(f's_lshl_b32 {s(M_T0)}, {s(S_WAVE)}, 8')
    A(f's_add_u32 {s(M_T1)}, {s(M_T1)}, {s(M_T0)}')
    def early_consts():
        n_, G_, hi_, row_ = 44, 45, 46, 47
        A(f'v_and_b32 {v(n_)}, 15, {v(vLane)}')
        A(f'v_lshrrev_b32 {v(G_)}, 4, {v(vLane)}')
        A(f'v_and_b32 {v(hi_)}, 1, {v(vLane)}')
        A(f'v_lshrrev_b32 {v(row_)}, 1, {v(n_)}')
        A(f'v_cmp_eq_u32 {s(M_ODD, 2)}, 1, {v(hi_)}')
        A(f'v_mov_b32 {v(t0)}, 0x4444')
        A(f'v_mov_b32 {v(t1)}, 0xeeee')
        A(f'v_cndmask_b32 {v(vIdx)}, {v(t0)}, {v(t1)}, {s(M_ODD, 2)}')
        A(f'v_add_u32 {v(vHi)}, {L_MEM}, {v(vL16)}')
        A(f's_lshl_b32 {s(M_T0)}, {s(S_WAVE)}, 11')
        A(f'v_add_u32 {v(vMw)}, {s(M_T0)}, {v(vHi)}')
        A(f's_add_u32 {s(M_DST)}, {s(M_T0)}, {L_KX}')
        A(f'v_lshlrev_b32 {v(vVr)}, 11, {v(G_)}')
        A(f'v_lshl_add_u32 {v(vVr)}, {v(n_)}, 4, {v(vVr)}')
        A(f's_lshl_b32 {s(M_T0)}, {s(S_WAVE)}, 9')
        A(f'v_add_u32 {v(vVr)}, {s(M_T0)}, {v(vVr)}')
        A(f's_lshl_b32 {s(M_T0)}, {s(S_WAVE)}, 10')
        A(f's_add_u32 {s(M_T0)}, {s(M_T0)}, {L_QK}')
        A(f'v_add_u32 {v(vEx)}, {s(M_T0)}, {v(vL16)}')
        A(f's_cmp_ge_u32 {s(S_WAVE)}, 2')
        A(f's_cselect_b32 {s(M_EXP)}, {s(M_KM)}, {s(M_VM)}')
        A(f's_and_b32 {s(M_T0)}, {s(S_WAVE)}, 1')
        A(f's_lshl_b32 {s(M_T0)}, {s(M_T0)}, 10')
        A(f's_add_u32 {s(M_EXP)}, {s(M_EXP)}, {s(M_T0)}')
        A(f'v_lshrrev_b32 {v(t0)}, 3, {v(n_)}')
        A(f'v_lshlrev_b32 {v(vQKw)}, 7, {v(t0)}')
        A(f'v_lshl_add_u32 {v(vQKw)}, {v(G_)}, 5, {v(vQKw)}')
        A(f'v_and_b32 {v(t0)}, 7, {v(n_)}')
        A(f'v_lshl_add_u32 {v(vQKw)}, {v(t0)}, 1, {v(vQKw)}')
        A(f's_lshl_b32 {s(M_T0)}, {s(S_WAVE)}, 9')
        A(f's_add_u32 {s(M_T0)}, {s(M_T0)}, {L_QK}')
        A(f'v_add_u32 {v(vQKw)}, {s(M_T0)}, {v(vQKw)}')
        A(f'v_lshl_add_u32 {v(t0)}, {v(G_)}, 3, {v(row_)}')
        A(f'v_lshlrev_b32 {v(vQr)}, 4, {v(t0)}')
        A(f'v_add_u32 {v(vQr)}, {L_QK}, {v(vQr)}')
        A(f'v_lshrrev_b32 {v(t0)}, 2, {v(n_)}')
        A(f'v_lshl_add_u32 {v(t0)}, {v(t0)}, 1, {v(hi_)}')
        A(f'v_lshl_add_u32 {v(t1)}, {v(G_)}, 3, {v(t0)}')
        A(f'v_lshlrev_b32 {v(vKMr)}, 4, {v(t1)}')
        A(f'v_add_u32 {v(vKMr)}, {L_QK + 2048}, {v(vKMr)}')
        A(f'v_lshlrev_b32 {v(vOw)}, 8, {v(hi_)}')
        A(f'v_lshl_add_u32 {v(vOw)}, {v(row_)}, 5, {v(vOw)}')
        A(f'v_lshl_add_u32 {v(vOw)}, {v(G_)}, 3, {v(vOw)}')
        A(f's_lshl_b32 {s(M_T0)}, {s(S_WAVE)}, 9')
        A(f's_add_u32 {s(M_T0)}, {s(M_T0)}, {L_O}')
        A(f'v_add_u32 {v(vOw)}, {s(M_T0)}, {v(vOw)}')
        A(f'v_lshrrev_b32 {v(t0)}, 2, {v(n_)}')
        A(f'v_lshlrev_b32 {v(vPw)}, 14, {v(t0)}')
        A(f'v_lshrrev_b32 {v(t0)}, 1, {v(G_)}')
        A(f'v_lshl_add_u32 {v(vPw)}, {v(t0)}, 13, {v(vPw)}')
        A(f'v_and_b32 {v(t0)}, 1, {v(G_)}')
        A(f'v_lshl_add_u32 {v(vPw)}, {v(t0)}, 11, {v(vPw)}')
        A(f'v_and_b32 {v(t0)}, 3, {v(n_)}')
        A(f'v_lshl_add_u32 {v(vPw)}, {v(t0)}, 4, {v(vPw)}')
        A(f's_lshl_b32 {s(M_T0)}, {s(S_WAVE)}, 16')
        A(f'v_add_u32 {v(vPw)}, {s(M_T0)}, {v(vPw)}')
        A(f'v_bfe_u32 {v(t0)}, {v(n_)}, 1, 1')
        A(f'v_lshlrev_b32 {v(vPub)}, 8, {v(t0)}')
        A(f'v_lshl_add_u32 {v(vPub)}, {v(hi_)}, 4, {v(vPub)}')
        A(f'v_and_b32 {v(t0)}, 1, {v(G_)}')
        A(f'v_lshl_add_u32 {v(vPub)}, {v(t0)}, 5, {v(vPub)}')
        A(f's_lshr_b32 {s(M_T0)}, {s(M_ME)}, 1')
        A(f's_lshl_b32 {s(M_T0)}, {s(M_T0)}, 9')
        A(f's_and_b32 {s(M_T1)}, {s(M_ME)}, 1')
        A(f's_lshl_b32 {s(M_T1)}, {s(M_T1)}, 7')
        A(f's_add_u32 {s(M_T0)}, {s(M_T0)}, {s(M_T1)}')
        A(f's_and_b32 {s(M_T1)}, {s(S_WAVE)}, 1')
        A(f's_lshl_b32 {s(M_T1)}, {s(M_T1)}, 6')
        A(f's_add_u32 {s(M_T0)}, {s(M_T0)}, {s(M_T1)}')
        A(f's_lshr_b32 {s(M_T1)}, {s(S_WAVE)}, 1')
        A(f's_lshl_b32 {s(M_T1)}, {s(M_T1)}, 3')
        A(f's_add_u32 {s(M_T0)}, {s(M_T0)}, {s(M_T1)}')
        A(f'v_add_u32 {v(vPub)}, {s(M_T0)}, {v(vPub)}')
        if tune.get('pubY'):
            A(f'v_lshrrev_b32 {v(t0)}, 2, {v(n_)}')
            A(f'v_lshlrev_b32 {v(vPw)}, 14, {v(t0)}')
            A(f'v_lshl_add_u32 {v(vPw)}, {v(G_)}, 12, {v(vPw)}')
            A(f'v_and_b32 {v(t0)}, 3, {v(n_)}')
            A(f'v_lshl_add_u32 {v(vPw)}, {v(t0)}, 4, {v(vPw)}')
            A(f's_lshl_b32 {s(M_T0)}, {s(S_WAVE)}, 16')
            A(f'v_add_u32 {v(vPw)}, {s(M_T0)}, {v(vPw)}')
            A(f'v_bfe_u32 {v(t0)}, {v(n_)}, 1, 1')
            A(f'v_lshlrev_b32 {v(vPub)}, 8, {v(t0)}')
            A(f'v_lshl_add_u32 {v(vPub)}, {v(hi_)}, 4, {v(vPub)}')
            A(f'v_and_b32 {v(t0)}, 1, {v(G_)}')
            A(f'v_lshl_add_u32 {v(vPub)}, {v(t0)}, 3, {v(vPub)}')
            A(f's_lshr_b32 {s(M_T0)}, {s(M_ME)}, 1')
            A(f's_lshl_b32 {s(M_T0)}, {s(M_T0)}, 9')
            A(f's_and_b32 {s(M_T1)}, {s(M_ME)}, 1')
            A(f's_lshl_b32 {s(M_T1)}, {s(M_T1)}, 7')
            A(f's_add_u32 {s(M_T0)}, {s(M_T0)}, {s(M_T1)}')
            A(f's_lshl_b32 {s(M_T1)}, {s(S_WAVE)}, 5')
            A(f's_add_u32 {s(M_T0)}, {s(M_T0)}, {s(M_T1)}')
            A(f'v_add_u32 {v(vPub)}, {s(M_T0)}, {v(vPub)}')
        A(f's_mov_b32 {s(M_PUBX)}, 0x000f000f')
        A(f's_mov_b32 {s(M_PUBX + 1)}, 0')
        A(f'v_lshrrev_b32 {v(t0)}, 2, {v(n_)}')
        A(f'v_lshlrev_b32 {v(vHD)}, 7, {v(t0)}')
        A(f'v_and_b32 {v(t0)}, 3, {v(n_)}')
        A(f'v_lshl_add_u32 {v(vHD)}, {v(t0)}, 4, {v(vHD)}')
        A(f'v_lshl_add_u32 {v(vHD)}, {v(G_)}, 9, {v(vHD)}')
        A(f's_lshl_b32 {s(M_T0)}, {s(S_WAVE)}, 11')
        A(f'v_add_u32 {v(vHD)}, {s(M_T0)}, {v(vHD)}')
        A(f'v_lshrrev_b32 {v(t0)}, 1, {v(G_)}')
        A(f'v_lshlrev_b32 {v(vVMw)}, 10, {v(t0)}')
        A(f'v_lshl_add_u32 {v(vVMw)}, {v(n_)}, 3, {v(vVMw)}')
        A(f'v_and_b32 {v(t0)}, 1, {v(G_)}')
        A(f'v_lshl_add_u32 {v(vVMw)}, {v(t0)}, 2, {v(vVMw)}')
        A(f's_lshl_b32 {s(M_T0)}, {s(S_WAVE)}, 8')
        A(f's_add_u32 {s(M_T0)}, {s(M_T0)}, {L_QK}')
        A(f'v_add_u32 {v(vVMw)}, {s(M_T0)}, {v(vVMw)}')
        A(f'v_lshlrev_b32 {v(vTa)}, 7, {v(n_)}')
        A(f's_lshl_b32 {s(M_T0)}, {s(S_WAVE)}, 11')
        A(f's_add_u32 {s(M_T0)}, {s(M_T0)}, 262144')
        A(f'v_add_u32 {v(vTa)}, {s(M_T0)}, {v(vTa)}')
        A(f'v_and_b32 {v(t0)}, 1, {v(G_)}')
        A(f'v_lshl_add_u32 {v(vTa)}, {v(t0)}, 25, {v(vTa)}')
        assert VT - KB == 1 << 25
        for u in range(4):
            A(f'v_cmp_eq_u32 vcc, {2 * u}, {v(n_)}')
            A(f'v_mov_b32 {v(t0)}, 0x3f80')
            A(f'v_cndmask_b32 {v(48 + u)}, 0, {v(t0)}, vcc')
            A(f'v_cmp_eq_u32 vcc, {2 * u + 1}, {v(n_)}')
            A(f'v_mov_b32 {v(t0)}, 0x3f800000')
            A(f'v_cndmask_b32 {v(48 + u)}, {v(48 + u)}, {v(t0)}, vcc')
            A(f'v_mov_b32 {v(ONES + u)}, 0x3f803f80')
        A(f's_mov_b32 {s(M_C)}, {f32bits((128 ** -0.5) * 1.4426950408889634):#x}')
        A(f'v_lshlrev_b32 {v(vFl)}, 6, {v(hi_)}')
        A(f'v_lshlrev_b32 {v(t2)}, 10, {v(row_)}')
        A(f'v_lshl_add_u32 {v(t0)}, {v(G_)}, 1, {v(hi_)}')
        A(f'v_lshl_add_u32 {v(t2)}, {v(t0)}, 1, {v(t2)}')
        A(f's_lshl_b32 {s(M_T0)}, {s(S_WAVE)}, 8')
        A(f'v_add_u32 {v(t2)}, {s(M_T0)}, {v(t2)}')
        for f in (0, 1):
            for sl in range(8):
                A(f'buffer_load_ushort {v(96 + f * 8 + sl)}, {v(t2)}, {srd(SRD_M0)}, 0 offen '
                  f'offset:{f * 16 + sl * 32}')

    def late_consts():
        A(f'ds_write_b128 {v(vHi)}, {v(48, 4)} offset:{hi(L_SEL)}')
        for r in range(8):
            A(f'v_lshl_or_b32 {v(MF + r)}, {v(96 + 2 * r + 1)}, 16, {v(96 + 2 * r)}')
        A(f's_lshl_b32 {s(M_T0)}, {s(S_WAVE)}, 11')
        A(f'v_add_u32 {v(t2)}, {s(M_T0)}, {v(vHi)}')
        A(f'ds_write_b128 {v(t2)}, {v(MF, 4)}')
        A(f'ds_write_b128 {v(t2)}, {v(MF + 4, 4)} offset:1024')
        A(f'v_lshlrev_b32 {v(t3)}, 2, {v(vLane)}')
        A(f'v_and_b32 {v(t3)}, 127, {v(t3)}')
        A(f'v_mov_b32 {v(vOne)}, 1')
        A(f'v_mov_b32 {v(vFv)}, 0')
        A(f's_mov_b32 {s(M_STEP)}, 0')

    A(f's_lshl_b32 {s(M_SPIN)}, {s(S_WAVE)}, 15')
    A(f's_lshl_b32 {s(M_STEP)}, {s(S_WAVE)}, 13')
    A(f's_add_u32 {s(M_STEP)}, {s(M_STEP)}, {L_MEM}')
    vTx0, vTx1 = 39, 40
    A(f's_sub_u32 {s(M_T0)}, {s(M_STEP)}, {s(M_SPIN)}')
    A(f'v_add_u32 {v(vTx0)}, {s(M_T0)}, {v(vTr0)}')
    A(f'v_xor_b32 {v(vTx1)}, 32, {v(vTx0)}')
    order = RBLOCKS + LBLOCKS
    NSL = 10
    MAXFL = tune.get('maxfl', 5)
    slot_of = {}
    for n, blk in enumerate(RBLOCKS):
        slot_of[blk] = n % NSL
    for n, blk in enumerate(LBLOCKS):
        slot_of[blk] = n

    A(f's_and_b32 {s(M_PR)}, {s(S_WAVE)}, 1')
    A(f's_lshl_b32 {s(M_PR)}, {s(M_PR)}, 12')
    A(f's_and_b32 {s(M_MP)}, {s(S_WAVE)}, 2')

    def issue(pair):
        sl = slot_of[pair[0]]
        for p, blk in enumerate(pair):
            base, off = (M_SPIN, sl * 4096) if sl < 8 else (M_STEP, (sl - 8) * 4096)
            if blk[0] == 'o':
                A(f's_add_u32 m0, {s(base)}, {off + p * 4096}')
            else:
                A(f's_xor_b32 {s(M_T0)}, {s(M_PR)}, {p * 4096}')
                A(f's_add_u32 {s(M_T0)}, {s(M_T0)}, {s(base)}')
                A(f's_add_u32 m0, {s(M_T0)}, {off}')
            for d in range(4):
                if d:
                    A('s_add_u32 m0, m0, 1024')
                if blk[0] == 'o':
                    _, tp, ks = blk
                    A(f's_add_u32 {s(M_T0)}, {s(M_T1)}, {tp * 64 + (64 * ks + 16 * d) * 1024}')
                    A(f'buffer_load_dwordx4 {v(vWoD)}, {srd(SRD_D)}, {s(M_T0)} offen lds')
                else:
                    m, i = blk
                    if d == 0:
                        A(f's_xor_b32 {s(M_PW)}, {s(M_MP)}, {i >> 1}')
                        A(f's_lshl_b32 {s(M_PW)}, {s(M_PW)}, 20')
                        A(f's_add_u32 {s(M_PW)}, {s(M_PW)}, {s(M_T2)}')
                    A(f's_add_u32 {s(M_T0)}, {s(M_PW)}, {(8 * (i & 1) + 2 * d) * 8192}')
                    A(f'buffer_load_dwordx4 {v(vWq)}, {srd(dict(q=SRD_A, k=SRD_B, v=SRD_C)[m])}, '
                      f'{s(M_T0)} offen lds')

    def consume(blk):
        sl = slot_of[blk]
        a0, a1, base = (vTr0, vTr1, sl * 4096) if sl < 8 else (vTx0, vTx1, (sl - 8) * 4096)
        isl = blk in LBLOCKS
        for t in (0, 1):
            for half in (0, 1):
                for pp in (0, 1):
                    o = half * 4 + pp * 2
                    dst = v(64 + t * 8 + o, 2) if isl else rreg(blk, t, 2, o)
                    A(f'ds_read_b64_tr_b16 {dst}, {v(a0 if t == 0 else a1)} offset:{base + half * 2048 + pp * 512}')
        A('s_waitcnt lgkmcnt(0)')
        if isl:
            for q in range(4):
                A(f'ds_write_b128 {v(vWl)}, {v(64 + q * 4, 4)} offset:{base + q * 1024}')
            A('s_waitcnt lgkmcnt(0)')

    busy = {}
    pairs = [tuple(order[n:n + 2]) for n in range(0, len(order), 2)]
    pending = list(pairs)
    inflight = []

    def try_issue():
        for pr in list(pending):
            sl = slot_of[pr[0]]
            if len(inflight) >= MAXFL:
                break
            if sl in busy:
                continue
            if any(slot_of[b[0]] == sl and pending.index(b) < pending.index(pr) for b in pending):
                continue
            issue(pr)
            busy[sl] = pr
            inflight.append(pr)
            pending.remove(pr)

    pstamp(A, 0, 41)
    A('s_waitcnt vmcnt(0)')
    try_issue()
    A(f's_mov_b64 s[60:61], s[{M_T1}:{M_T2}]')
    early_consts()
    A(f's_mov_b64 s[{M_T1}:{M_T2}], s[60:61]')
    while inflight:
        pr = inflight.pop(0)
        A(f's_waitcnt vmcnt({8 * len(inflight) + (16 if pairs.index(pr) < MAXFL else 0)})')
        consume(pr[0])
        consume(pr[1])
        if pr[0] in RBLOCKS:
            del busy[slot_of[pr[0]]]
        try_issue()
    assert not pending
    pstamp(A, 1, 41)
    A('s_barrier')
    if callable(purity):
        purity(A)

    pstamp(A, 2, 41)
    late_consts()
    pstamp(A, 3, 41)
    slow = A.newlabel('tslow')
    P = dict(flags=flags, end_label=end_label, nsteps=nsteps, stamp=stamp, tune=tune)
    if purity == 'ctl':
        emit_poll_block(A, t0, t3, M_CTL, M_SPIN, end_label)
        A(f'v_cmp_eq_u32 vcc, {s(M_XCC)}, {v(t0)}')
        A('s_cmp_eq_u64 vcc, exec')
    else:
        A(f's_cmp_eq_u32 {s(M_FAST)}, 1')
    if not force_slow:
        A(f's_cbranch_scc0 {slow}')
        team_loop(A, P, fast=True)
    A.label(slow)
    team_loop(A, P, fast=False)


def team_loop(A, P, fast):
    flags, end_label, nsteps, tune = P['flags'], P['end_label'], P['nsteps'], P['tune']
    XS = '' if fast else ' sc1'
    poll_in = bool(flags and flags.get('poll_in'))
    has_sig = bool(flags and flags.get('signal'))

    def smf(acc, af, b):
        return f'v_smfmac_f32_16x16x64_bf16 {v(acc, 4)}, {v(af, 4)}, {b}, {v(vIdx)}'

    def zero(r, n):
        return [f'v_mov_b64 {v(r + i, 2)}, 0' for i in range(0, n, 2)]

    def emit(lst):
        for x in lst:
            for y in x.split('|'):
                A(y)

    def mix(ms, fs, per=2):
        for m in ms:
            A(m)
            for _ in range(per):
                if fs:
                    emit([fs.pop(0)])

    def lread(blk, t, reg):
        return [f'ds_read_b128 {v(reg, 4)}, {v(vWl)} offset:{loff(blk, t)}',
                f'ds_read_b128 {v(reg + 4, 4)}, {v(vWl)} offset:{loff(blk, t) + 1024}']

    nst = [0]

    def st(name):
        if P['stamp']:
            A(f'{"s_memrealtime" if tune.get("rt") else "s_memtime"} {s(60 + 2 * nst[0], 2)}')
            if fast:
                STAMP_NAMES.append(name)
            nst[0] += 1

    def st_flush():
        if not P['stamp']:
            return
        sk = A.newlabel('tsk')
        A(f's_cmp_lg_u32 {s(M_STEP)}, {P["stamp"]}')
        A(f's_cbranch_scc1 {sk}')
        A('s_waitcnt lgkmcnt(0)')
        A(f's_lshl_b32 {s(M_T0)}, {s(M_ME)}, 2')
        A(f's_add_u32 {s(M_T0)}, {s(M_T0)}, {s(S_WAVE)}')
        A(f's_lshl_b32 {s(M_T0)}, {s(M_T0)}, 7')
        A(f's_add_u32 {s(M_T0)}, {s(M_T0)}, {TCTL + 4096}')
        A('s_mov_b64 exec, 1')
        for i in range(nst[0]):
            A(f'v_mov_b32 {v(VX)}, {s(60 + 2 * i)}')
            A(f'buffer_store_dword {v(VX)}, off, {srd(SRD_WS)}, {s(M_T0)} offset:{4 * i}')
        A('s_mov_b64 exec, -1')
        A('s_waitcnt vmcnt(0)')
        A.label(sk)

    def prep_a():
        emit(zero(KA, 16))
        for t in (0, 1):
            emit(lread(('q', 4), t, S1 + t * 8))
        for t in (0, 1):
            emit(lread(('q', 6), t, S1 + (2 + t) * 8))
        emit(zero(QA, 8))
        A(f's_and_b32 {s(M_T2)}, {s(M_STEP)}, 3')
        A(f's_lshl_b32 {s(M_T2)}, {s(M_T2)}, 18')
        A(f's_add_u32 {s(M_T2)}, {s(M_T2)}, {s(M_TP)}')
        A(f's_lshl_b32 {s(M_T1)}, {s(M_ME)}, 6')
        A(f's_add_u32 {s(M_PW)}, {s(M_T2)}, {s(M_T1)}')
        A(f's_add_u32 {s(M_PW2)}, {s(M_PW)}, 4096')
        A(f's_lshl_b32 {s(M_T1)}, {s(M_ME)}, 13')
        A(f's_add_u32 {s(M_T2)}, {s(M_T2)}, {s(M_T1)}')
        A(f's_lshl_b32 {s(M_T1)}, {s(S_WAVE)}, 11')
        A(f's_add_u32 {s(M_T2)}, {s(M_T2)}, {s(M_T1)}')
        A(f's_sub_u32 {s(M_K2)}, {s(M_K)}, {1024 - 64}')

    def prep_b():
        A(f's_mov_b32 {s(M_PR)}, {s(M_T2)}')
        A(f's_add_u32 {s(M_T0)}, {s(M_STEP)}, 1')
        A(f's_and_b32 {s(M_T0)}, {s(M_T0)}, 3')
        A(f's_lshl_b32 {s(M_T0)}, {s(M_T0)}, 13')
        A(f's_add_u32 {s(M_MP)}, {s(M_T0)}, {s(M_TM)}')
        A(f's_xor_b32 {s(M_MRS)}, {s(M_MP)}, {2 << 13}')

    def prep_step():
        prep_a()
        prep_b()

    NEG = E

    def wait_flags():
        if poll_in:
            ok = A.newlabel('tfok')
            A(f's_cmp_lg_u32 {s(S_WAVE)}, 3')
            A(f's_cbranch_scc1 {ok}')
            emit_poll_check(A, vFv)
            A(f's_cbranch_scc1 {ok}')
            emit_poll_block(A, vFv, vFl, M_FPR, M_SPIN, end_label, sleep=4)
            A.label(ok)
            A(f's_add_u32 {s(M_FPR)}, {s(M_FPR)}, 1024')
            A(f's_cmp_eq_u32 {s(S_WAVE)}, 3')
            A(f's_cselect_b32 {s(M_FP2)}, {s(M_FPR)}, {OOB}')

    EXR = t0

    assert TM % 32768 == 0
    top = A.newlabel('ttop')
    A(f's_mov_b32 {s(M_SIG)}, {OOB}')
    A(f's_mov_b32 {s(M_SIG2)}, {OOB}')
    A(f's_mov_b32 {s(M_CAR)}, {OOB}')
    A(f's_mov_b32 {s(M_PROMPT)}, 0')
    A(f's_mov_b32 {s(M_PRO)}, {OOB}')
    A(f's_mov_b32 {s(M_EXO)}, {OOB}')
    A(f's_mov_b32 m0, {s(M_DST)}')
    wait_flags()
    pstamp(A, 4, 41)
    dstamp(A, 2, 41, (96, 0))
    dstamp(A, 7, 41, (96, 0), cyc=True)
    dstamp(A, 4, 41, (96, 32))
    prep_step()
    A(f's_branch {top}')
    p2 = A.newlabel('tp2')
    p2b = A.newlabel('tp2b')
    fslow = A.newlabel('tfslow')
    c0 = VX

    def p2_loads():
        for j in range(2):
            A(f'buffer_load_dwordx4 {v(MF + j * 4, 4)}, {v(vL16)}, {srd(SRD_WS)}, {s(M_MRD)} offen '
              f'offset:{j * 1024} sc1')

    A.label(p2)
    p2_loads()
    A('s_mov_b64 exec, -1')
    A(f's_add_u32 {s(M_SPIN)}, {s(M_SPIN)}, 1')
    A(f's_cmp_gt_u32 {s(M_SPIN)}, {SPIN_LIMIT * 4}')
    A(f's_cbranch_scc1 {end_label}')
    A.label(p2b)
    for j in range(2):
        A(f's_waitcnt vmcnt({1 - j})')
        A(f'ds_write_b128 {v(vMw)}, {v(MF + j * 4, 4)} offset:{j * 1024}')
        r = MF + j * 4
        if j == 0:
            A(f'v_max3_u32 {v(c0)}, {v(r)}, {v(r + 1)}, {v(r + 2)}')
            A(f'v_max_u32 {v(c0)}, {v(c0)}, {v(r + 3)}')
        else:
            A(f'v_max3_u32 {v(c0)}, {v(c0)}, {v(r)}, {v(r + 1)}')
            A(f'v_max3_u32 {v(c0)}, {v(c0)}, {v(r + 2)}, {v(r + 3)}')
    A(f'v_cmp_eq_u32 vcc, -1, {v(c0)}')
    p2r = A.newlabel('tp2r')
    p2k = A.newlabel('tp2k')
    if tune.get('pp', 0):
        A(f's_cbranch_vccnz {p2r}')
        A.label(p2k)
    else:
        A('s_mov_b64 exec, vcc')
        A(f's_cbranch_vccnz {p2}')
        A('s_mov_b64 exec, -1')
    if P['stamp']:
        A(f'{"s_memrealtime" if tune.get("rt") else "s_memtime"} {s(60 + 2 * 14, 2)}')
        nst[0] = 15
        st_flush()
        nst[0] = 0
    if poll_in:
        A(f's_cmp_eq_u32 {s(M_FOK)}, 0')
        A(f's_cbranch_scc1 {fslow}')
    A.label(top)
    st('top')
    def qq(i, t):
        b = v(S1 + (i - 4 + t) * 8, 8) if i in (4, 6) else rreg(('q', i), t)
        return smf(QA + t * 4, MF + i * 4, b)

    def kq(i, t):
        b = v(S1 + (i - 4 + t) * 8, 8) if i in (4, 6) else rreg(('k', i), t)
        return smf(KA + t * 4, MF + i * 4, b)

    def vq(i, t):
        return smf(VA + t * 4, MF + i * 4, rreg(('v', i), t))

    def epi(acc, sel):
        f = []
        for t in (0, 1):
            r = acc + t * 4
            f += [f'v_add_f32 {v(r)}, {v(r)}, {v(r + 1)}', f'v_add_f32 {v(r + 2)}, {v(r + 2)}, {v(r + 3)}',
                  f'v_cvt_pk_bf16_f32 {v(r)}, {v(r)}, {v(r + 2)}|'
                  f'ds_write_b16 {v(vQKw)}, {v(r)} offset:{sel * 2048 + t * 256}|'
                  f'ds_write_b16_d16_hi {v(vQKw)}, {v(r)} offset:{sel * 2048 + t * 256 + 16}']
        return f

    km_ = [kq(i, t) for i in (2, 3, 4, 6, 5, 7) for t in (0, 1)]
    vs_ = [vq(i, t) for i in range(2, 8) for t in (0, 1)]
    KXR, QF = S1, S1 + 16
    nyoung = 4
    early_sig = has_sig and tune.get('sigpos', 'b2k') == 'early'
    hyb = has_sig and tune.get('sigpos', 'b2k') == 'hyb'
    xa = [VX, VX + 1, VX + 2]
    A(qq(0, 0))
    A(f'v_xor_b32 {v(xa[0])}, 2048, {v(vMw)}')
    A(qq(0, 1))
    A(f'v_xor_b32 {v(xa[1])}, 4096, {v(vMw)}')
    A(f'v_xor_b32 {v(xa[2])}, 6144, {v(vMw)}')
    A('s_waitcnt lgkmcnt(0)')
    A('s_barrier')
    st('B1')
    qorder = (4, 6, 2, 3, 5, 7)
    for i in qorder:
        A(f'ds_read_b128 {v(MF + i * 4, 4)}, {v(xa[(i >> 1) - 1])} offset:{(i & 1) * 1024}')
    kl = []
    for i in (4, 6):
        for t in (0, 1):
            kl += lread(('k', i), t, S1 + (i - 4 + t) * 8)
    own = [qq(1, 0), qq(1, 1)] + [kq(i, t) for i in (0, 1) for t in (0, 1)] + [vq(i, t) for i in (0, 1) for t in (0, 1)]
    A(own[0])
    A(f'buffer_load_dwordx4 {v(vHD)}, {srd(SRD_WS)}, {s(M_K)} offen sc1 lds')
    emit(own[1:4])
    A(f'buffer_load_dwordx4 {v(vHD)}, {srd(SRD_WS)}, {s(M_K2)} offen offset:1024 sc1 lds')
    emit(own[4:7])
    A(f'buffer_store_dwordx4 {v(EXR, 4)}, {v(vL16)}, {srd(SRD_WS)}, {s(M_EXO)} offen sc1')
    emit(own[7:9])
    if early_sig:
        emit_signal(A, M_SIG, vOne)
        nyoung += 1
    if hyb:
        emit_signal(A, M_SIG2, vOne)
        nyoung += 1
    A(own[9])
    ops = {1: [f'buffer_load_dwordx4 {v(VX, 4)}, {v(vVr)}, {srd(SRD_WS)}, {s(M_V)} offen sc1'],
           3: [f'buffer_load_dwordx4 {v(VX + 4, 4)}, {v(vVr)}, {srd(SRD_WS)}, {s(M_V)} offen offset:256 sc1'],
           5: [f'buffer_load_dword {v(vTouch)}, {v(vTa)}, {srd(SRD_WS)}, {s(M_K)} offen sc1']}
    kops = {}
    if poll_in:
        kops[2] = [f'buffer_load_dword {v(vFv)}, {v(vFl)}, {srd(SRD_WS)}, {s(M_FP2)} offen sc1']
        nyoung += 1
    nk = 0
    for n, i in enumerate(qorder):
        A(f's_waitcnt lgkmcnt({5 - n + nk})')
        A(qq(i, 0))
        if n in (1, 2):
            emit(kl[(n - 1) * 4:(n - 1) * 4 + 2])
        A(qq(i, 1))
        if n in (1, 2):
            emit(kl[(n - 1) * 4 + 2:(n - 1) * 4 + 4])
            nk += 4
        emit(ops.get(n, []))
    st('Qissued')
    fq = epi(QA, 0)
    for n in range(11):
        if n == 4:
            A('s_waitcnt lgkmcnt(0)')
        A(km_[n])
        if 4 <= n < 10:
            emit([fq.pop(0)])
        emit(kops.get(n, []))
    A(f's_waitcnt vmcnt({nyoung}) lgkmcnt(0)')
    A('s_barrier')
    st('B2q')
    rq = [f'ds_read_b128 {v(QF, 4)}, {v(vQr)}']
    rq += [f'ds_read_b128 {v(KXR + f * 4, 4)}, {v(vHi)} offset:{hi(L_KX) + f * 1024}' for f in range(2)]
    rq += [f'ds_read_b128 {v(QF + 4, 4)}, {v(vQr)} offset:512']
    rq += [f'ds_read_b128 {v(KXR + f * 4, 4)}, {v(vHi)} offset:{hi(L_KX) + f * 1024}' for f in range(2, 4)]
    rq += [f'ds_read_b128 {v(QF + ks * 4, 4)}, {v(vQr)} offset:{ks * 512}' for ks in (2, 3)]
    emit(rq[0:2])
    rq = rq[2:]
    mix([km_[11]] + vs_[0:2], rq, 2)
    A(vs_[2])
    rsp = tune.get('rsp')
    if not rsp:
        A(f'buffer_store_dwordx4 {v(NEG, 4)}, {v(vL16)}, {srd(SRD_WS)}, {s(M_PRO)} offen offset:1024{XS}')
    A(vs_[3])
    st('Kissued')
    SX = QA
    SMA = E

    def sx(ks, t):
        cin = '0' if ks == 0 else v(SX + t * 4, 4)
        return (f'v_mfma_f32_16x16x32_bf16 {v(SX + t * 4, 4)}, {v(KXR + ((ks & 1) * 2 + t) * 4, 4)}, '
                f'{v(QF + ks * 4, 4)}, {cin}')

    fk = epi(KA, 1)
    A('s_waitcnt lgkmcnt(2)')
    mix([sx(0, 0), sx(0, 1)], fk, 2)
    A(f'ds_read_b128 {v(KXR, 4)}, {v(vHi)} offset:{hi(L_KX) + 4096}')
    A(f'ds_read_b128 {v(KXR + 4, 4)}, {v(vHi)} offset:{hi(L_KX) + 5120}')
    mix([sx(1, 0), sx(1, 1)], fk, 2)
    assert not fk
    A(f'ds_read_b128 {v(KXR + 8, 4)}, {v(vHi)} offset:{hi(L_KX) + 6144}')
    A(f'ds_read_b128 {v(KXR + 12, 4)}, {v(vHi)} offset:{hi(L_KX) + 7168}')
    emit(vs_[4:6])
    if hyb:
        hw = A.newlabel('thw')
        hb = A.newlabel('thb')
        A(f's_cmp_eq_u32 {s(M_PROMPT)}, 1')
        A(f's_cbranch_scc1 {hw}')
        A.label(hb)
        A('s_waitcnt lgkmcnt(2)')
    else:
        A('s_waitcnt lgkmcnt(2)' if early_sig else f's_waitcnt vmcnt({nyoung - (1 if rsp else 0)}) lgkmcnt(2)')
    A('s_barrier')
    st('B2k')
    KMF = MF
    rk = [f'ds_read_b128 {v(KMF + ks * 4, 4)}, {v(vKMr)} offset:{ks * 512}' for ks in range(4)]
    emit(rk[0:2])
    A(sx(2, 0))
    emit(rk[2:4])
    A(sx(2, 1))
    if has_sig and not early_sig:
        emit_signal(A, M_SIG, vOne)
    A('s_waitcnt lgkmcnt(4)')
    A(sx(3, 0))
    if not rsp:
        A(f'buffer_store_dwordx4 {v(NEG, 4)}, {v(vL16)}, {srd(SRD_WS)}, {s(M_PRO)} offen{XS}')
    A(sx(3, 1))
    A(vs_[6])

    def sm(ks):
        cin = '0' if ks == 0 else v(SMA, 4)
        return f'v_mfma_f32_16x16x32_bf16 {v(SMA, 4)}, {v(KMF + ks * 4, 4)}, {v(QF + ks * 4, 4)}, {cin}'

    mt, m2 = t0, t1
    tv = [SX + i for i in range(8)]
    PB = KA
    LT = KA + 4
    ft = [f'v_max3_f32 {v(mt)}, {v(tv[0])}, {v(tv[1])}, {v(tv[2])}',
          f'v_max3_f32 {v(m2)}, {v(tv[3])}, {v(tv[4])}, {v(tv[5])}',
          f'v_max3_f32 {v(mt)}, {v(mt)}, {v(tv[6])}, {v(tv[7])}']
    A('s_waitcnt lgkmcnt(0)')
    A(sm(0))
    A(sm(1))
    A(sm(2))
    mix([sm(3)], ft, 2)
    st('Smissued')
    fl = []
    for ks in (0, 1):
        for t in (0, 1):
            fl += lread(('o', 0, ks), t, S1 + (t * 2 + ks) * 8)
    A(vs_[7])
    emit(ft)
    emit(fl[0:4])
    A(vs_[8])
    A(f'v_max3_f32 {v(m2)}, {v(m2)}, {v(SMA)}, {v(SMA + 1)}')
    A(f'v_max_f32 {v(mt)}, {v(mt)}, {v(m2)}')
    A(f'v_mov_b32 {v(m2)}, {v(mt)}')
    A(vs_[9])
    emit(fl[4:6])
    A(f'v_permlane16_swap_b32 {v(mt)}, {v(m2)}')
    A(f'v_max_f32 {v(mt)}, {v(mt)}, {v(m2)}')
    A(f'v_mov_b32 {v(m2)}, {v(mt)}')
    A(vs_[10])
    emit(fl[6:8])
    A(f'v_permlane32_swap_b32 {v(mt)}, {v(m2)}')
    A(f'v_max_f32 {v(mt)}, {v(mt)}, {v(m2)}')
    A(vs_[11])
    A(f'v_mul_f32 {v(mt)}, {s(M_C)}, {v(mt)}')
    for r in tv:
        A(f'v_fma_f32 {v(r)}, {v(r)}, {s(M_C)}, -{v(mt)}')
    for r in tv:
        A(f'v_exp_f32 {v(r)}, {v(r)}')
    A(f'v_fma_f32 {v(SMA)}, {v(SMA)}, {s(M_C)}, -{v(mt)}')
    for j in range(4):
        A(f'v_cvt_pk_bf16_f32 {v(PB + j)}, {v(tv[2 * j])}, {v(tv[2 * j + 1])}')
    A(f'v_fma_f32 {v(SMA + 1)}, {v(SMA + 1)}, {s(M_C)}, -{v(mt)}')
    A(f'v_exp_f32 {v(SMA)}, {v(SMA)}')
    OT = QA
    PM = SMA + 2
    A(f's_waitcnt vmcnt({(1 if rsp else 3) + (1 if poll_in else 0) + (1 if has_sig and not early_sig else 0)})')
    A(f'v_mfma_f32_16x16x32_bf16 {v(LT, 4)}, {v(ONES, 4)}, {v(PB, 4)}, 0')
    A(f'v_exp_f32 {v(SMA + 1)}, {v(SMA + 1)}')
    A(f'v_mfma_f32_16x16x32_bf16 {v(OT, 4)}, {v(VX, 4)}, {v(PB, 4)}, 0')
    A(f'v_cvt_pk_bf16_f32 {v(t2)}, {v(SMA)}, {v(SMA + 1)}')
    A(f'v_add_f32 {v(VA)}, {v(VA)}, {v(VA + 1)}')
    A(f'v_mfma_f32_16x16x32_bf16 {v(OT + 4, 4)}, {v(VX + 4, 4)}, {v(PB, 4)}, 0')
    A(f'v_cndmask_b32 {v(PM)}, {v(t2)}, 0, {s(M_ODD, 2)}')
    A(f'v_cndmask_b32 {v(PM + 1)}, 0, {v(t2)}, {s(M_ODD, 2)}')
    A(f'v_add_f32 {v(VA + 2)}, {v(VA + 2)}, {v(VA + 3)}')
    A(f'v_add_f32 {v(VA + 4)}, {v(VA + 4)}, {v(VA + 5)}')
    A(f'v_mfma_f32_16x16x16_bf16 {v(LT, 4)}, {v(ONES, 2)}, {v(PM, 2)}, {v(LT, 4)}')
    A(f'v_add_f32 {v(VA + 6)}, {v(VA + 6)}, {v(VA + 7)}')
    A(f'v_cvt_pk_bf16_f32 {v(VA)}, {v(VA)}, {v(VA + 2)}')
    A(f'v_cvt_pk_bf16_f32 {v(VA + 1)}, {v(VA + 4)}, {v(VA + 6)}')
    st('softdone')
    for t in (0, 1):
        A(f'ds_write_b32 {v(vVMw)}, {v(VA + t)} offset:{t * 128}')
    A(f'v_mfma_f32_16x16x16_bf16 {v(OT, 4)}, {v(VA, 2)}, {v(PM, 2)}, {v(OT, 4)}')
    A(f'v_mfma_f32_16x16x16_bf16 {v(OT + 4, 4)}, {v(VA, 2)}, {v(PM, 2)}, {v(OT + 4, 4)}')
    A(f'v_rcp_f32 {v(LT)}, {v(LT)}')
    for ks in (0, 1):
        emit(lread(('o', 3, ks), 0, MF + ks * 8))
    emit(zero(MF + 16, 6))
    for r in range(4):
        A(f'v_cndmask_b32 {v(OT + r)}, {v(OT + r)}, {v(OT + 4 + r)}, {s(M_ODD, 2)}')
    for r in range(4):
        A(f'v_mul_f32 {v(OT + r)}, {v(OT + r)}, {v(LT)}')
    A(f'v_cvt_pk_bf16_f32 {v(t2)}, {v(OT)}, {v(OT + 1)}')
    A(f'v_cvt_pk_bf16_f32 {v(t3)}, {v(OT + 2)}, {v(OT + 3)}')
    A(f'ds_write_b64 {v(vOw)}, {v(t2, 2)}')
    emit(zero(KA, 16))
    st('preB3')
    if tune.get('xs'):
        A(f's_sleep {tune["xs"]}')
    A('s_waitcnt lgkmcnt(0)')
    A('s_barrier')
    st('B3')
    done = A.newlabel('tdone')
    OF = VX
    A(f'ds_read_b128 {v(OF, 4)}, {v(vHi)} offset:{hi(L_O)}')
    A(f'ds_read_b128 {v(OF + 4, 4)}, {v(vHi)} offset:{hi(L_O) + 1024}')
    A(f's_cmp_ge_u32 {s(M_STEP)}, {nsteps - 1}')
    A(f's_cbranch_scc1 {done}')
    emit(zero(MF + 22, 10))
    oacc = [KA, KA + 4, VA, VA + 4, MF + 16, MF + 20, MF + 24, MF + 28]

    def wo(i, ks):
        if i < 2:
            return v(S1 + (i * 2 + ks) * 8, 8)
        if i < 6:
            return rreg(('o', i >> 1, ks), i & 1)
        if i == 6:
            return v(MF + ks * 8, 8)
        return v(S1 + ks * 8, 8)

    om = [smf(oacc[i], OF + ks * 4, wo(i, ks)) for i in range(8) for ks in (0, 1)]
    PK = QA

    def oadd(i):
        r = oacc[i]
        return [f'v_add_f32 {v(r)}, {v(r)}, {v(r + 1)}', f'v_add_f32 {v(r + 2)}, {v(r + 2)}, {v(r + 3)}']

    def opack(h, half):
        i0 = 4 * h + 2 * half
        f = []
        for rr in (0, 1):
            d = PK + h * 4 + rr * 2 + half
            f.append(f'v_cvt_pk_bf16_f32 {v(d)}, {v(oacc[i0] + rr * 2)}, {v(oacc[i0 + 1] + rr * 2)}')
        for rr in (0, 1):
            d = PK + h * 4 + rr * 2 + half
            if not tune.get('nomin'):
                f.append(f'v_min_u32 {v(d)}, -2, {v(d)}')
        return f

    def pstore(h):
        return (f'buffer_store_dwordx4 {v(PK + h * 4, 4)}, {v(vPw)}, {srd(SRD_WS)}, '
                f'{s(M_PW if h == 0 else M_PW2)} offen{XS}')

    if tune.get('pubY'):
        def opack(h, half):
            u = 2 * h + half
            f = []
            for rr in (0, 1):
                d = PK + rr * 4 + u
                f.append(f'v_cvt_pk_bf16_f32 {v(d)}, {v(oacc[2 * u] + rr * 2)}, {v(oacc[2 * u + 1] + rr * 2)}')
            for rr in (0, 1):
                d = PK + rr * 4 + u
                f.append(f'v_min_u32 {v(d)}, -2, {v(d)}')
            return f

        def pstore(h):
            if h == 0:
                return 's_nop 0'
            return '|'.join(f'buffer_store_dwordx4 {v(PK + rr * 4, 4)}, {v(vPw)}, {srd(SRD_WS)}, {s(M_PW)} offen '
                            f'offset:{rr * 2048}{XS}' for rr in (0, 1))

    A('s_waitcnt lgkmcnt(1)')
    A(om[0])
    A('s_waitcnt lgkmcnt(0)')
    A(om[1])
    f7 = lread(('o', 3, 0), 1, S1) + lread(('o', 3, 1), 1, S1 + 8)
    mix(om[2:4], f7, 2)
    A(om[4])
    SELR = MF + 12
    fo = oadd(0) + oadd(1) + opack(0, 0) + oadd(2) + oadd(3) + opack(0, 1) + [pstore(0)] + oadd(4)
    mix(om[5:14], fo, 2)
    A('s_waitcnt lgkmcnt(0)')
    fo += oadd(5) + opack(1, 0)
    A(f'ds_read_b128 {v(SELR, 4)}, {v(vHi)} offset:{hi(L_SEL)}')
    mix(om[14:16], fo, 2)
    st('outissued')
    emit(fo)
    emit(oadd(6) + oadd(7) + opack(1, 1) + [pstore(1)])
    st('pstored')
    RD, RA = MF, MF + 8
    A(f'v_mov_b64 {v(NEG, 2)}, -1')
    A(f'v_mov_b64 {v(NEG + 2, 2)}, -1')
    A(f's_add_u32 {s(M_STEP)}, {s(M_STEP)}, 1')
    A(f's_lshl_b32 {s(M_T1)}, {s(S_WAVE)}, 11')
    A(f's_add_u32 {s(M_MRD)}, {s(M_MP)}, {s(M_T1)}')
    A(f's_cmp_eq_u32 {s(S_WAVE)}, 2')
    if early_sig:
        A(f's_mov_b32 {s(M_SIG)}, {s(M_SIG2)}')
        A(f's_cselect_b32 {s(M_SIG2)}, {s(M_FOUT)}, {OOB}')
    elif hyb:
        A(f's_cselect_b32 {s(M_T0)}, {s(M_FOUT)}, {OOB}')
        A(f's_mov_b32 {s(M_SIG2)}, {s(M_CAR)}')
        A(f's_sub_u32 {s(M_T1)}, {s(M_STEP)}, {tune.get("h0", 8)}')
        A(f's_cmp_lt_u32 {s(M_T1)}, {tune.get("h1", 59) - tune.get("h0", 8)}')
        A(f's_cselect_b32 {s(M_CAR)}, {s(M_T0)}, {OOB}')
        A(f's_cselect_b32 {s(M_SIG)}, {OOB}, {s(M_T0)}')
        A(f's_cselect_b32 {s(M_PROMPT)}, 0, 1')
    else:
        A(f's_cselect_b32 {s(M_SIG)}, {s(M_FOUT)}, {OOB}')
    A(f's_add_u32 {s(M_FOUT)}, {s(M_FOUT)}, 1024')
    A(f's_mov_b32 {s(M_EXO)}, {s(M_EXP)}')
    A(f's_add_u32 {s(M_EXP)}, {s(M_EXP)}, 65536')
    A(f's_mov_b32 {s(M_PRO)}, {s(M_PR)}')
    if not tune.get('x_nokv'):
        A(f's_add_u32 {s(M_K)}, {s(M_K)}, 262144')
        A(f's_add_u32 {s(M_V)}, {s(M_V)}, 262144')
    if tune.get('x_noexp'):
        A(f's_mov_b32 {s(M_EXO)}, {OOB}')
    prep_a()
    A(f's_mov_b32 {s(M_SPIN)}, 0')
    if tune.get('d1'):
        A(f's_sleep {tune["d1"]}')
    p1 = A.newlabel('tp1')
    A.label(p1)
    A(f'buffer_load_dwordx4 {v(RD, 4)}, {v(vL16)}, {srd(SRD_WS)}, {s(M_PR)} offen sc1')
    A(f'buffer_load_dwordx4 {v(RD + 4, 4)}, {v(vL16)}, {srd(SRD_WS)}, {s(M_PR)} offen offset:1024 sc1')
    A('s_mov_b64 exec, -1')
    A(f's_add_u32 {s(M_SPIN)}, {s(M_SPIN)}, 1')
    A(f's_cmp_gt_u32 {s(M_SPIN)}, {SPIN_LIMIT * 4}')
    A(f's_cbranch_scc1 {end_label}')
    A('s_waitcnt vmcnt(0) lgkmcnt(8)')
    A(f'v_mfma_f32_16x16x32_bf16 {v(RA, 4)}, {v(SELR, 4)}, {v(RD, 4)}, 0')
    A(f'v_max3_u32 {v(t0)}, {v(RD)}, {v(RD + 1)}, {v(RD + 2)}')
    A(f'v_max3_u32 {v(t1)}, {v(RD + 3)}, {v(RD + 4)}, {v(RD + 5)}')
    A(f'v_mfma_f32_16x16x32_bf16 {v(RA, 4)}, {v(SELR, 4)}, {v(RD + 4, 4)}, {v(RA, 4)}')
    A(f'v_max3_u32 {v(t0)}, {v(t0)}, {v(RD + 6)}, {v(RD + 7)}')
    A(f'v_max_u32 {v(t0)}, {v(t0)}, {v(t1)}')
    A(f'v_cmp_eq_u32 vcc, -1, {v(t0)}')
    p1r = A.newlabel('tp1r')
    p1k = A.newlabel('tp1k')
    if tune.get('pp', 0):
        A(f's_cbranch_vccnz {p1r}')
        A.label(p1k)
    else:
        A('s_mov_b64 exec, vcc')
        A(f's_cbranch_vccnz {p1}')
        A('s_mov_b64 exec, -1')
    st('p1ok')
    for sh in (4, 8):
        for r in range(4):
            A(f'v_add_f32_dpp {v(RA + r)}, {v(RA + r)}, {v(RA + r)} row_ror:{sh} row_mask:0xf bank_mask:0xf')
    A(f'v_cvt_pk_bf16_f32 {v(t0)}, {v(RA)}, {v(RA + 1)}')
    A(f'v_cvt_pk_bf16_f32 {v(t1)}, {v(RA + 2)}, {v(RA + 3)}')
    if not tune.get('nomin'):
        A(f'v_min_u32 {v(t0)}, -2, {v(t0)}')
        A(f'v_min_u32 {v(t1)}, -2, {v(t1)}')
    A(f's_mov_b64 exec, {s(M_PUBX, 2)}')
    A(f'buffer_store_dwordx2 {v(t0, 2)}, {v(vPub)}, {srd(SRD_WS)}, {s(M_MP)} offen{XS}')
    A(f'buffer_store_dwordx2 {v(NEG, 2)}, {v(vPub)}, {srd(SRD_WS)}, {s(M_MRS)} offen{XS}')
    A('s_mov_b64 exec, -1')
    st('published')
    A(f's_mov_b32 {s(M_SPIN)}, 0')
    if rsp:
        for j in range(2):
            A(f'buffer_store_dwordx4 {v(NEG, 4)}, {v(vL16)}, {srd(SRD_WS)}, {s(M_PR)} offen offset:{j * 1024}{XS}')
    if not tune.get('late2', 1):
        p2_loads()
    A(f'ds_read_b128 {v(EXR, 4)}, {v(vEx)}')
    prep_b()
    if poll_in:
        A(f'v_cmp_ne_u32 vcc, 0, {v(vFv)}')
        A('s_cmp_eq_u64 vcc, exec')
        A(f's_cselect_b32 {s(M_FOK)}, 1, 0')
        A(f's_cmp_lg_u32 {s(S_WAVE)}, 3')
        A(f's_cselect_b32 {s(M_FOK)}, 1, {s(M_FOK)}')
        A(f's_add_u32 {s(M_FP2)}, {s(M_FPR)}, 1024')
        A(f's_cselect_b32 {s(M_T0)}, 0, 0')
        A(f's_cmp_eq_u32 {s(S_WAVE)}, 3')
        A(f's_cselect_b32 {s(M_FP2)}, {s(M_FP2)}, {OOB}')
        A(f's_add_u32 {s(M_FPR)}, {s(M_FPR)}, 1024')
    if tune.get('bar2', 1):
        A('s_barrier')
    if tune.get('late2', 1):
        if tune.get('late2', 1) > 1:
            A(f's_sleep {tune.get("late2", 1) - 1}')
        p2_loads()
    A(f's_branch {p2b}')
    if poll_in:
        A.label(fslow)
        A(f's_sub_u32 {s(M_T2)}, {s(M_FPR)}, 1024')
        emit_poll_block(A, vFv, vFl, M_T2, M_SPIN, end_label, sleep=4)
        A(f's_branch {top}')
    def retry(lbl, back, loads, regs, tmp, tmp2, finish):
        lp = A.newlabel('trl')
        A.label(lbl)
        A('s_mov_b64 exec, vcc')
        loads()
        A(f's_sleep {tune.get("ppg", 2)}')
        A.label(lp)
        loads()
        A('s_mov_b64 exec, -1')
        A(f's_add_u32 {s(M_SPIN)}, {s(M_SPIN)}, 1')
        A(f's_cmp_gt_u32 {s(M_SPIN)}, {SPIN_LIMIT * 8}')
        A(f's_cbranch_scc1 {end_label}')
        A('s_waitcnt vmcnt(2)')
        R = regs
        A(f'v_max3_u32 {v(tmp)}, {v(R)}, {v(R + 1)}, {v(R + 2)}')
        A(f'v_max3_u32 {v(tmp2)}, {v(R + 3)}, {v(R + 4)}, {v(R + 5)}')
        A(f'v_max3_u32 {v(tmp)}, {v(tmp)}, {v(R + 6)}, {v(R + 7)}')
        A(f'v_max_u32 {v(tmp)}, {v(tmp)}, {v(tmp2)}')
        A(f'v_cmp_eq_u32 vcc, -1, {v(tmp)}')
        A('s_mov_b64 exec, vcc')
        A(f's_cbranch_vccnz {lp}')
        A('s_mov_b64 exec, -1')
        finish()
        A(f's_branch {back}')

    if tune.get('pp', 0):
        def l1():
            A(f'buffer_load_dwordx4 {v(RD, 4)}, {v(vL16)}, {srd(SRD_WS)}, {s(M_PR)} offen sc1')
            A(f'buffer_load_dwordx4 {v(RD + 4, 4)}, {v(vL16)}, {srd(SRD_WS)}, {s(M_PR)} offen offset:1024 sc1')

        def f1():
            A(f'v_mfma_f32_16x16x32_bf16 {v(RA, 4)}, {v(SELR, 4)}, {v(RD, 4)}, 0')
            A(f'v_mfma_f32_16x16x32_bf16 {v(RA, 4)}, {v(SELR, 4)}, {v(RD + 4, 4)}, {v(RA, 4)}')

        def f2():
            for j in range(2):
                A(f'ds_write_b128 {v(vMw)}, {v(MF + j * 4, 4)} offset:{j * 1024}')

        retry(p1r, p1k, l1, RD, t0, t1, f1)
        retry(p2r, p2k, p2_loads, MF, c0, c0 + 1, f2)
    if hyb:
        A.label(hw)
        A(f's_waitcnt vmcnt({nyoung})')
        A(f's_branch {hb}')
    A.label(done)
    dstamp(A, 3, 41, (96, 0))
    dstamp(A, 8, 41, (96, 0), cyc=True)
    dstamp(A, 5, 41, (96, 32))
    A(f'ds_read_b128 {v(EXR, 4)}, {v(vEx)}')
    A('s_waitcnt lgkmcnt(0)')
    A(f'buffer_store_dwordx4 {v(EXR, 4)}, {v(vL16)}, {srd(SRD_WS)}, {s(M_EXP)} offen sc1')
    if has_sig:
        A('s_waitcnt vmcnt(0)')
        A('s_barrier')
        A(f's_cmp_lg_u32 {s(S_WAVE)}, 2')
        A(f's_cbranch_scc1 {end_label}')
        if early_sig:
            emit_signal(A, M_SIG2, vOne)
        emit_signal(A, M_FOUT, vOne)
    A(f's_branch {end_label}')
```
